```python
import torch

def _softmax(x, axis=-1):
    return torch.softmax(x, dim=axis)

def _gelu(x):
    return torch.nn.functional.gelu(x, approximate='tanh')

def _silu(x):
    return torch.nn.functional.silu(x)

def _sigmoid(x):
    return torch.sigmoid(x)

def _layernorm(x, axis=-1, eps=1e-05):
    m = x.mean(dim=axis, keepdim=True)
    v = x.var(dim=axis, keepdim=True, unbiased=False)
    return (x - m) / torch.sqrt(v + eps)

def _scatter_add(tgt, idx, src, axis=0):
    return tgt.clone().index_add_(axis, idx, src)

def _segment_sum(src, seg, n):
    out = torch.zeros((n,) + src.shape[1:], dtype=src.dtype)
    return out.index_add_(0, seg, src)

def _pad(x, pw):
    flat = tuple((v for pair in reversed(pw) for v in pair))
    return torch.nn.functional.pad(x, flat)
kernel_name = 'adaLN_cond__compressed_kv_cla__moe_arch_mod__prompt'

def setup_inputs():

    _w = lambda a: (lambda t: t.to(torch.bfloat16) if t.is_floating_point() else t)(torch.as_tensor(a))

    def _A_setup():
        B, H, Sq, Sk, D, M = (1, 32, 2048, 2048, 128, 512)
        Dc = 4 * D
        return {'x': _w((lambda *s: torch.randn(*s, dtype=torch.bfloat16) * 0.1)(B, Sq, M)), 'c_kv': _w((lambda *s: torch.randn(*s, dtype=torch.bfloat16) * 3.2)(B, Sk, Dc)), 'w_q': _w((lambda *s: torch.randn(*s, dtype=torch.bfloat16) * 0.8)(M, H, D) * M ** (-0.5)), 'w_uk': _w((lambda *s: torch.randn(*s, dtype=torch.bfloat16) * 0.8)(Dc, H, D) * Dc ** (-0.5)), 'w_uv': _w((lambda *s: torch.randn(*s, dtype=torch.bfloat16) * 3.2)(Dc, H, D) * Dc ** (-0.5)), 'w_o': _w((lambda *s: torch.randn(*s, dtype=torch.bfloat16) * 3.2)(H, D, M) * (H * D) ** (-0.5))}
    _A_in = _A_setup()

    def _B_setup():
        B, S, D, F, C = (1, 2048, 512, 1792, 1)
        return {'x': _w((lambda *s: torch.randn(*s, dtype=torch.bfloat16) * 0.1)(B, S, D)), 'w_r': _w((lambda *s: torch.randn(*s, dtype=torch.bfloat16) * 3.2)(D)), 'w_gate': _w((lambda *s: torch.randn(*s, dtype=torch.bfloat16) * 3.2)(D, F)), 'w_up': _w((lambda *s: torch.randn(*s, dtype=torch.bfloat16) * 3.2)(D, F)), 'w_down': _w((lambda *s: torch.randn(*s, dtype=torch.bfloat16) * 3.2)(F, D))}
    _B_in = _B_setup()
    return {'A_x': _A_in['x'], 'A_c_kv': _A_in['c_kv'], 'A_w_q': _A_in['w_q'], 'A_w_uk': _A_in['w_uk'], 'A_w_uv': _A_in['w_uv'], 'A_w_o': _A_in['w_o'], 'B_x': _B_in['x'], 'B_w_r': _B_in['w_r'], 'B_w_gate': _B_in['w_gate'], 'B_w_up': _B_in['w_up'], 'B_w_down': _B_in['w_down'], 'c': _w((lambda *s: torch.randn(*s, dtype=torch.bfloat16) * 0.2)(1, 512) * 8.0), 'w_mod': _w((lambda *s: torch.randn(*s, dtype=torch.bfloat16) * 0.2)(512, 6 * 512) * 512 ** (-0.5) * 8.0)}

def reference(A_x, A_c_kv, A_w_q, A_w_uk, A_w_uv, A_w_o, B_x, B_w_r, B_w_gate, B_w_up, B_w_down, c, w_mod):

    def _A_ref(x, c_kv, w_q, w_uk, w_uv, w_o):
        B, Sq, M = (x.shape[0], x.shape[1], x.shape[2])
        Sk = c_kv.shape[1]
        H, D = (w_q.shape[1], w_q.shape[2])
        q = torch.einsum('bqm,mhd->bhqd', x, w_q)
        k = torch.einsum('bkc,chd->bhkd', c_kv, w_uk)
        v = torch.einsum('bkc,chd->bhkd', c_kv, w_uv)
        scores = torch.einsum('bhqd,bhkd->bhqk', q, k) * D ** (-0.5)
        off = Sk - Sq
        qi = torch.arange(Sq)[:, None]
        kj = torch.arange(Sk)[None, :]
        cmask = kj <= qi + off
        scores = torch.where(cmask[None, None], scores, -1000000000.0)
        p = _softmax(scores, axis=-1)
        ctx = torch.einsum('bhqk,bhkd->bhqd', p, v)
        return torch.einsum('bhqd,hdm->bqm', ctx, w_o)

    def _B_ref(x, w_r, w_gate, w_up, w_down):
        B, S, D = x.shape
        C = 1
        r = x @ w_r
        idx = torch.argsort(-r, axis=-1)[:, :C]
        idx_e = (lambda x, n, axis: torch.repeat_interleave(x, n, dim=axis))(idx.reshape(B, C, 1), D, axis=2)
        x_sel = (lambda x, i, axis: torch.take_along_dim(x, i, dim=axis))(x, idx_e, axis=1)
        g = _silu(x_sel @ w_gate)
        u = x_sel @ w_up
        y = g * u @ w_down
        r_sel = _sigmoid((lambda x, i, axis: torch.take_along_dim(x, i, dim=axis))(r, idx, axis=1))
        y = y * r_sel.reshape(B, C, 1)
        b_off = (torch.arange(B) * S).reshape(B, 1)
        flat_idx = (idx + b_off).reshape(B * C)
        zero = (x * 0.0).reshape(B * S, D)
        upd = _scatter_add(zero, flat_idx, y.reshape(B * C, D), axis=0)
        return x + upd.reshape(B, S, D)
    x = A_x
    mod = (_silu(c) @ w_mod).reshape(c.shape[0], 6, 1, -1)
    sa, ca, ga, sb, cb, gb = (mod[:, 0].clone(), mod[:, 1].clone(), mod[:, 2].clone(), mod[:, 3].clone(), mod[:, 4].clone(), mod[:, 5].clone())
    h = _layernorm(x, axis=-1) * (1 + ca) + sa
    x = x + ga * _A_ref(h, A_c_kv, A_w_q, A_w_uk, A_w_uv, A_w_o)
    h = _layernorm(x, axis=-1) * (1 + cb) + sb
    x = x + gb * _B_ref(h, B_w_r, B_w_gate, B_w_up, B_w_down)
    return x
```

```python
import re

_REG = re.compile(r"(?<![\w.])([vas])(?:\[(\d+):(\d+)\]|(\d+))(?![\w])|\b(vcc_lo|vcc_hi|vcc|exec_lo|exec_hi|exec|m0|scc)\b")
TRANS = ("v_exp_f32", "v_log_f32", "v_rcp_f32", "v_rsq_f32", "v_sqrt_f32", "v_sin_f32", "v_cos_f32")

def regs_of(tok):
    out = set()
    for m in _REG.finditer(tok):
        if m.group(5):
            r = m.group(5)
            out.add({"vcc_lo": "vcc", "vcc_hi": "vcc", "exec_lo": "exec", "exec_hi": "exec"}.get(r, r))
        elif m.group(4) is not None: out.add(m.group(1) + m.group(4))
        else:
            for i in range(int(m.group(2)), int(m.group(3)) + 1): out.add(m.group(1) + str(i))
    return out

class Ins:
    __slots__ = ("text", "mn", "kind", "dst", "src", "ops", "ab", "c", "dpp", "wide", "data", "target")
    def __init__(self, text):
        self.text = text
        t = text.split(";")[0].strip()
        self.dst = set(); self.src = set(); self.ab = set(); self.c = set(); self.dpp = False; self.wide = False; self.data = set(); self.target = None
        if not t or t.startswith("."): self.kind = "none"; self.mn = ""; self.ops = []; return
        if t.endswith(":"): self.kind = "label"; self.mn = t[:-1]; self.ops = []; return
        sp = t.split(None, 1)
        mn = self.mn = sp[0]
        ops = self.ops = [o.strip() for o in sp[1].split(",")] if len(sp) > 1 else []
        R = [regs_of(o) for o in ops]
        allr = set().union(*R) if R else set()
        if mn.startswith("v_mfma"):
            self.kind = "mfma"; self.dst = R[0]; self.ab = R[1] | R[2]; self.c = R[3]; self.src = self.ab | self.c
        elif mn.startswith("v_"):
            self.kind = "trans" if mn.replace("_e32", "").replace("_e64", "") in TRANS else "valu"
            self.dst = set(R[0]); self.src = set().union(*R[1:]) if len(R) > 1 else set()
            if mn.startswith(("v_fmac", "v_dot2c", "v_writelane", "v_pk_fmac")): self.src |= R[0]
            if mn.startswith("v_permlane"): self.dst |= R[1]; self.src |= R[0]
            if "_dpp" in mn or "row_" in t or "quad_perm" in t: self.dpp = True; self.src |= R[0] if "bound_ctrl" not in t else set()
            if mn.startswith(("v_add_co", "v_sub_co", "v_addc_co", "v_subb_co")): self.dst |= R[1]; self.src = set().union(*R[2:])
            if mn.startswith("v_cndmask") and len(ops) == 3: self.src.add("vcc")
        elif mn.startswith("ds_read") or mn.startswith("ds_bpermute") or mn.startswith("ds_swizzle"):
            self.kind = "lds_r"; self.dst = R[0]; self.src = set().union(*R[1:])
        elif mn.startswith("ds_"):
            self.kind = "lds_w"; self.src = allr
        elif mn.startswith(("buffer_load", "global_load")):
            if re.search(r"\blds\b", t): self.kind = "vm_dma"; self.src = allr | {"m0"}
            else: self.kind = "vm_load"; self.dst = R[0]; self.src = set().union(*R[1:])
        elif mn.startswith(("buffer_store", "global_store")):
            self.kind = "vm_store"; self.src = allr
            self.data = R[0] if mn.startswith("buffer") else R[1]
            self.wide = mn.endswith(("x3", "x4"))
        elif mn.startswith(("buffer_atomic", "global_atomic")):
            self.kind = "vm_store"; self.src = allr
            if " sc0" in t: self.kind = "vm_load"; self.dst = R[0]
        elif mn.startswith(("buffer_wbl2", "buffer_inv")):
            self.kind = "vm_store"
        elif mn == "s_waitcnt": self.kind = "wait"
        elif mn == "s_barrier": self.kind = "bar"
        elif mn == "s_nop": self.kind = "nop"
        elif mn.startswith(("s_load", "s_memtime", "s_memrealtime", "s_buffer_load")):
            self.kind = "smem"; self.dst = R[0]; self.src = set().union(*R[1:]) if len(R) > 1 else set()
        elif mn.startswith(("s_branch", "s_cbranch")):
            self.kind = "branch"; self.target = ops[0]
            if "scc" in mn: self.src = {"scc"}
            if "vcc" in mn: self.src = {"vcc"}
        elif mn in ("s_endpgm", "s_sleep", "s_setprio"): self.kind = "salu"
        elif mn.startswith("s_cmp") or mn.startswith("s_bitcmp"): self.kind = "salu"; self.src = allr; self.dst = {"scc"}
        elif mn.startswith("s_"):
            self.kind = "salu"; self.dst = set(R[0]); self.src = set().union(*R[1:]) if len(R) > 1 else set()
            if "saveexec" in mn: self.dst.add("exec")
            if not mn.startswith(("s_mov", "s_cselect", "s_mul", "s_getpc", "s_getreg", "s_bfm", "s_ff1", "s_brev", "s_sext")): self.dst.add("scc")
            if mn.startswith(("s_cselect", "s_addc", "s_subb")): self.src.add("scc")
        else:
            raise ValueError("cannot parse: " + text)
    def states(self):
        if self.kind in ("none", "label"): return 0
        if self.kind == "nop": return int(self.ops[0], 0) + 1
        return 1

class K:
    def __init__(self):
        self.out = []; self.vm = []; self.lg = []; self.nlab = 0
    def save(self): return (list(self.vm), list(self.lg))
    def restore(self, st): self.vm, self.lg = list(st[0]), list(st[1])
    def lab(self, base):
        self.nlab += 1; return f"L_{base}_{self.nlab}"
    def label(self, l): self.out.append(f"{l}:")
    def need(self, ins):
        touch = ins.src | ins.dst
        vn = ln = None
        for i in range(len(self.vm) - 1, -1, -1):
            if self.vm[i][0] & touch: vn = len(self.vm) - 1 - i; break
        for i in range(len(self.lg) - 1, -1, -1):
            if self.lg[i][0] & touch: ln = len(self.lg) - 1 - i; break
        if ln is not None and any(e[1] == "smem" for e in self.lg): ln = 0
        return vn, ln
    def wait(self, vn=None, ln=None):
        parts = []
        if vn is not None:
            vn = min(vn, 63)
            if vn < len(self.vm): parts.append(f"vmcnt({vn})"); self.vm = self.vm[len(self.vm) - vn:] if vn else []
        if ln is not None:
            ln = min(ln, 15)
            if ln < len(self.lg): parts.append(f"lgkmcnt({ln})"); self.lg = self.lg[len(self.lg) - ln:] if ln else []
        if parts: self.out.append("    s_waitcnt " + " ".join(parts))
        return bool(parts)
    def vmn(self, tags):
        if isinstance(tags, str) or isinstance(tags, tuple): tags = [tags]
        idx = [i for i, e in enumerate(self.vm) if e[1] in tags]
        return None if not idx else len(self.vm) - 1 - max(idx)
    def waitvm(self, tags, lgkm0=False): self.wait(self.vmn(tags), 0 if lgkm0 else None)
    def __call__(self, text, tag=None):
        for ln in text.strip("\n").split("\n"):
            ln = ln.strip()
            if not ln: continue
            ins = Ins(ln)
            if ins.kind == "label": self.out.append(ln); continue
            if ins.kind == "wait":
                m = re.search(r"vmcnt\((\d+)\)", ln)
                if m: n = int(m.group(1)); self.vm = self.vm[max(0, len(self.vm) - n):] if n else []
                m = re.search(r"lgkmcnt\((\d+)\)", ln)
                if m: n = int(m.group(1)); self.lg = self.lg[max(0, len(self.lg) - n):] if n else []
                self.out.append("    " + ln); continue
            vn, lnn = self.need(ins)
            if vn is not None or lnn is not None: self.wait(vn, lnn)
            self.out.append("    " + ln)
            if ins.kind in ("vm_load", "vm_dma", "vm_store"): self.vm.append((ins.dst, tag))
            elif ins.kind in ("lds_r", "lds_w"): self.lg.append((ins.dst, tag))
            elif ins.kind == "smem": self.lg.append((ins.dst, "smem"))

ORDER = {"s": 0, "l": 1, "m": 1, "v": 2, "e": 2, "x": 3}
class Phase:
    def __init__(self, k, mfmas):
        self.k = k; self.M = mfmas; n = len(mfmas)
        self.g = [[] for _ in range(n)]
        self.over = 0; self.sid = 0; self.nsid = 0; self.dense = 0; self.thin = False
    def fits(self, g, kind):
        it = [x[0] for x in self.g[g]]
        if kind == "x": return True
        if self.dense and kind in "vel":
            vec = it.count("l") + it.count("v") + 2 * it.count("e") + 2 * it.count("m")
            return vec + (2 if kind == "e" else 1) <= 2 + self.dense
        if "m" in it: return False
        if kind == "m": return not [x for x in it if x != "x"]
        ns = it.count("s"); vec = it.count("l") + it.count("v") + 2 * it.count("e") + max(0, ns - 1)
        if kind == "s": return ns == 0 or (vec < 2 and not self.thin)
        if kind == "l": return "l" not in it and vec < 2
        if kind == "v": return vec < 2 and not (self.thin and "v" in it)
        if kind == "e": return vec == 0
    def put(self, kind, payload, lo, hi=None, tag=None):
        n = len(self.M)
        if hi is None: hi = n - 1
        lo = max(0, min(lo, n - 1)); hi = max(lo, min(hi, n - 1))
        if kind in "sv" and not self.dense:
            for g in range(lo, min(hi, lo + 2) + 1):
                if self.g[g] and self.fits(g, kind): self.g[g].append((kind, payload, tag, self.sid)); return g
        for g in range(lo, hi + 1):
            if self.fits(g, kind): self.g[g].append((kind, payload, tag, self.sid)); return g
        self.over += 1
        g = min(range(lo, hi + 1), key=lambda g: (len(self.g[g]), g))
        self.g[g].append((kind, payload, tag, self.sid)); return g
    def stream(self, items, lo, hi=None, step=0, sid=None, dense=0):
        g = lo; pk = None; lastm = None
        if sid is None: self.nsid += 1; sid = self.nsid
        self.sid = sid; self.dense = dense
        for it in items:
            kind, payload = it[0], it[1]
            tag = it[2] if len(it) > 2 else None
            l = g
            if pk is not None and ORDER[kind] < ORDER[pk]: l = g + 1
            if pk is not None and ORDER[kind] == ORDER[pk] == 1: l = g + 1
            if pk == "s" and kind == "m": l = g + 1
            if len(it) > 3 and it[3] is not None: l = max(l, it[3])
            if step and kind == "m" and lastm is not None: l = max(l, lastm + step)
            if l > len(self.M) - 1:
                g = len(self.M) - 1; self.g[g].append(("x", payload, tag, sid)); pk = "x"; continue
            g = self.put(kind, payload, l, hi, tag); pk = kind
            if kind == "m": lastm = g
        self.sid = 0; self.dense = 0
        return g
    def show(self):
        return " ".join("".join(x[0] for x in sorted(g, key=lambda x: ORDER[x[0]])) or "." for g in self.g)
    def _do(self, payload, tag):
        if callable(payload): payload(self.k)
        else: self.k(payload, tag)
    def emit(self):
        k = self.k; n = len(self.M)
        import os, sys
        if os.environ.get("SHOW"):
            w = self.show().split(" ")
            for i in range(0, n, 32 if n > 40 else 40): print(f"{i:5d}", " ".join(w[i:i + (32 if n > 40 else 40)]), file=sys.stderr)
        lastw = {}; sw = {}
        def note(lines, sid):
            for ln in lines:
                ins = Ins(ln)
                if sid:
                    for r in ins.src:
                        if (sid, r) in sw and lastw.get(r) is not sw[(sid, r)]:
                            raise RuntimeError(f"stream {sid}: {r} read by '{ln.strip()}' was overwritten by '{lastw[r].text.strip()}'")
                for r in ins.dst:
                    lastw[r] = ins
                    if sid: sw[(sid, r)] = ins
        for i in range(n):
            k(self.M[i]); note([self.M[i]], 0)
            items = sorted(self.g[i], key=lambda x: ORDER[x[0]])
            kinds = [x[0] for x in items]
            if "m" not in kinds:
                j = i + 1; vn = ln = None
                while j < n:
                    a, b = k.need(Ins(self.M[j]))
                    if a is not None: vn = a if vn is None else min(vn, a)
                    if b is not None: ln = b if ln is None else min(ln, b)
                    if any(x[0] == "m" for x in self.g[j]) and j < i + 3: j += 1
                    else: break
                k.wait(vn, ln)
            for (kind, payload, tag, sid) in items:
                p0 = len(k.out); self._do(payload, tag); note(k.out[p0:], sid)

def passes(ins): return 8 if "32x32" in ins.mn else 4
def hazard_need(prev, cur):
    need = 0
    pv = prev.kind in ("valu", "trans"); cv = cur.kind in ("valu", "trans")
    vd = {r for r in prev.dst if r[0] in "va" and r != "vcc"}
    sd = {r for r in prev.dst if (r[0] == "s" and r != "scc") or r == "vcc"}
    mem = cur.kind in ("lds_r", "lds_w", "vm_load", "vm_dma", "vm_store")
    if pv:
        if cur.kind == "mfma" and vd & cur.src: need = max(need, 2)
        if cv and cur.dpp and vd & cur.src: need = max(need, 2)
        if cv and cur.mn.startswith("v_permlane") and vd & cur.src: need = max(need, 2)
        if cv and cur.mn.startswith(("v_readlane", "v_readfirstlane")) and vd & cur.src: need = max(need, 1)
        if prev.kind == "trans" and cur.kind == "valu" and vd & cur.src: need = max(need, 1)
        if prev.kind == "trans" and mem and vd & cur.src: need = max(need, 1)
        if cv and sd & cur.src: need = max(need, 4 if cur.mn.startswith(("v_readlane", "v_writelane")) else 2)
        if cur.kind in ("vm_load", "vm_dma", "vm_store") and sd & cur.src: need = max(need, 5)
        if prev.mn.startswith(("v_dot2", "v_dot4")) and (cv or mem or cur.kind == "mfma") and vd & (cur.src | cur.dst):
            if not (cur.mn == prev.mn and vd & cur.dst and not vd & (regs_of(cur.ops[1]) | regs_of(cur.ops[2]))): need = max(need, 3)
    if prev.kind == "mfma":
        p = passes(prev)
        if cur.kind == "mfma":
            if prev.dst & cur.ab: need = max(need, 8 if p == 4 else 12)
            if prev.dst & cur.c and prev.dst != cur.c: need = max(need, 6 if p == 4 else 10)
        elif cv or mem:
            if prev.dst & (cur.src | cur.dst): need = max(need, 8 if p == 4 else 12)
            if cv and prev.c & cur.dst: need = max(need, 3 if p == 4 else 7)
    if prev.kind == "salu" and "m0" in prev.dst and cur.kind == "vm_dma": need = max(need, 1)
    if prev.kind == "vm_store" and prev.wide and prev.data & cur.dst: need = max(need, 2 if cv else 1)
    return need

def fix_hazards(lines, report=False):
    out = []; win = []
    nn = 0
    for ln in lines:
        ins = Ins(ln)
        if ins.kind in ("none", "label"): out.append(ln); continue
        short = 0
        for (p, d) in win:
            short = max(short, hazard_need(p, ins) - d)
        if short > 0:
            out.append(f"    s_nop {short-1}"); nn += 1
            if report: print("nop", short, "before", ln.strip())
            win = [(p, d + short) for (p, d) in win]
        out.append(ln)
        st = ins.states()
        win = [(p, d + st) for (p, d) in win if d + st < 14]
        win.append((ins, 0))
        if ins.mn == "s_branch" or ins.mn == "s_endpgm": win = []
    return out, nn

def trace(lines, decide, maxn=2000000):
    P = [Ins(l) for l in lines]
    lab = {p.mn: i for i, p in enumerate(P) if p.kind == "label"}
    i = 0; T = []; cnt = {}
    while i < len(P) and len(T) < maxn:
        p = P[i]
        if p.kind not in ("none", "label"): T.append(p)
        if p.mn == "s_endpgm": break
        if p.kind == "branch":
            if p.mn == "s_branch": i = lab[p.target]; continue
            c = cnt.get(p.target, 0); cnt[p.target] = c + 1
            if decide(p.target, c): i = lab[p.target]; continue
        i += 1
    return T

def verify(T):
    errs = []; win = []; vm = []; lg = []
    for n, ins in enumerate(T):
        for (p, d) in win:
            if hazard_need(p, ins) > d: errs.append(f"hazard {hazard_need(p, ins)}>{d}: '{p.text.strip()}' -> '{ins.text.strip()}'")
        if ins.kind == "wait":
            m = re.search(r"vmcnt\((\d+)\)", ins.text)
            if m: c = int(m.group(1)); vm = vm[max(0, len(vm) - c):] if c else []
            m = re.search(r"lgkmcnt\((\d+)\)", ins.text)
            if m:
                c = int(m.group(1))
                if c and any(e[1] for e in lg): pass
                else: lg = lg[max(0, len(lg) - c):] if c else []
        touch = ins.src | ins.dst
        for e in vm:
            if e[0] & touch: errs.append(f"vm not waited: '{e[2].text.strip()}' -> '{ins.text.strip()}'")
        for e in lg:
            if e[0] & touch: errs.append(f"lgkm not waited: '{e[2].text.strip()}' -> '{ins.text.strip()}'")
        if ins.kind in ("vm_load", "vm_dma", "vm_store"): vm.append((ins.dst, False, ins))
        elif ins.kind in ("lds_r", "lds_w"): lg.append((ins.dst, False, ins))
        elif ins.kind == "smem": lg.append((ins.dst, True, ins))
        st = ins.states()
        win = [(p, d + st) for (p, d) in win if d + st < 14]
        win.append((ins, 0))
    return errs
```

```python
import sys, os, struct
HERE = os.path.dirname(os.path.abspath(__file__))
sys.path.insert(0, HERE)
from asm import *
E_ = os.environ.get
NAME = "adaLN_cond__compressed_kv_cla__moe_arch_mod__prompt"
def f2u(f): return struct.unpack("<I", struct.pack("<f", f))[0]
def H(f): return f"{f2u(f):#x}"
LOG2E = 1.4426950408889634
QSCALE = LOG2E / (128.0 ** 0.5)
WT = "sc0 sc1"
NT = E_("NT", "")
WS_MOD, WS_MODP, WS_KEY, WS_ACT, WS_TS = 0x0, 0x4000, 0x10000, 0x14000, 0x20000
WS_HF, WS_KVF, WS_CF, WS_LF, WS_FF, WS_CAND = 0x100000, 0x110000, 0x120000, 0x140000, 0x144000, 0x80000
WS_H, WS_KV, WS_CTX, WS_P, WS_SIZE = 0x200000, 0x1000000, 0x3000000, 0x4000000, 0x10000000
OOB = 0x7ffff000
R0, R1, R2, R3, R4 = 0, 32768, 65536, 98304, 131072
MISC = R4 + 16384
sW, sX, sJ, sP, sH = 3, 4, 5, 6, 7
WS, CKV, WUK, WUV, WQ, WO, XS, DBG, WM, CS = 8, 12, 16, 20, 24, 28, 32, 36, 40, 44
WG_, WU_, WD_, OUT, WR_ = 40, 44, 48, 52, 56
def srd(s): return f"s[{s}:{s+3}]"
PTR = dict(x=64, ckv=66, wq=68, wuk=70, wuv=72, wo=74, wr=78, wg=80, wu=82, wd=84, c=86, wmod=88, out=90, dbg=92, ws=94)
sT1, sT2, sW8, sW4 = 60, 61, 62, 63
sXB, sWB, sA, sD, sB, sC = 96, 97, 98, 99, 100, 101
sVB, sKVST, sMODO, sMODA, sMODS, sEO, sLNP, sHST, sHFO, sKFO, sKFP, sH1, sH2, sHFD, sHF1, sEPI, sHLD, sKV, sKp = range(64, 83)
sE, sN1, sRem, sKm, sVm, sPF, sPB, sVo, sCLO, sCHI, sCFO, sCFP, sXC, sRedo, sRPL, sPO = 12, 13, 14, 15, 16, 17, 18, 19, 20, 21, 22, 23, 24, 25, 26, 27
sZO = 80
sSD, sPG = 79, 92
sET, sEP = 68, 67
sQB, sVX, sQR = 0, 1, 68
SPIN = 200000
def MF(d, a, b, c): return f"v_mfma_f32_16x16x32_bf16 {d}, {a}, {b}, {c}"
def V(i, n=4): return f"v[{i}:{i+n-1}]"
def A(i, n=4): return f"a[{i}:{i+n-1}]"
KMAP = {"valu": "v", "trans": "e", "salu": "s", "lds_r": "l", "lds_w": "l", "vm_load": "m", "vm_dma": "m", "vm_store": "m", "wait": "s", "nop": "s"}
def items(text, tag=None):
    out = []
    for ln in text.strip("\n").split("\n"):
        ln = ln.strip()
        if not ln or ln.startswith(";"): continue
        ins = Ins(ln)
        if "scc" in ins.src and out and out[-1][0] == "s": out[-1] = ("s", out[-1][1] + "\n" + ln, tag); continue
        out.append((KMAP[ins.kind], ln, tag))
    return out
```

```python
from common import *
O_, S_, MK, CI, P_, LA = 128, 96, 80, 64, 48, 32
vMW, vQR, vK, vV0, vV1, vT1, vT2, vPO, vSEN, ONE = 16, 17, 18, 19, 20, 21, 22, 23, 24, 28
Q1, KF, VF, Q2, PRE = 64, 128, 160, 192, 0
BIG = 2.0 ** 100
LLO, LHI = 2.0 ** -64, 2.0 ** 80

def mask_items(dst, thr, grp):
    t = ""
    for qt in range(2):
        for kt in range(2):
            for r in range(4):
                d = dst + 8 * qt + 4 * kt + r
                c = 16 * kt + r - 16 * qt
                t += f"v_add_f32 v{d}, {H(-c * BIG) if c else '0'}, v{thr}\nv_min_f32 v{d}, v{d}, v{CI + (grp*2+qt)*4 + r}\n"
    return items(t)

def attn_setup(g):
    t = f"""s_and_b32 s{sB}, s{sW}, 1
    s_lshr_b32 s{sC}, s{sW}, 1
    v_add_u32 v{vMW}, s{sW8}, v1
    s_lshl_b32 s{sVo}, s{sC}, 14
    v_add_u32 v{vQR}, s{sVo}, v1
    s_lshl_b32 s{sVo}, s{sB}, 13
    s_add_u32 s{sVo}, s{sVo}, {R2}
    v_add_u32 v{vK}, s{sVo}, v1
    s_mul_i32 s{sVo}, s{sB}, 12288
    s_add_u32 s{sVo}, s{sVo}, {R3}
    v_add_u32 v{vV0}, s{sVo}, v1
    s_lshl_b32 s{sVo}, s{sB}, 12
    s_add_u32 s{sVo}, s{sVo}, {R3}
    v_add_u32 v{vV1}, s{sVo}, v1
    v_and_b32 v{vPO}, 15, v2
    v_lshrrev_b32 v{vSEN}, 4, v2
    v_lshlrev_b32 v{vSEN+1}, 2, v{vSEN}
    v_sub_u32 v{vSEN+1}, v{vPO}, v{vSEN+1}
    s_sub_i32 s{sVo}, s{sC}, s{sB}
    s_lshl_b32 s{sVo}, s{sVo}, 5
    v_add_u32 v{vT1}, s{sVo}, v{vSEN+1}
    s_add_u32 s{sVo}, s{sC}, s{sB}
    s_sub_i32 s{sVo}, 1, s{sVo}
    s_lshl_b32 s{sVo}, s{sVo}, 5
    v_add_u32 v{vT2}, s{sVo}, v{vSEN+1}
    v_cvt_f32_i32 v{vT1}, v{vT1}
    v_cvt_f32_i32 v{vT2}, v{vT2}
    v_add_f32 v{vT1}, 0.5, v{vT1}
    v_add_f32 v{vT2}, 0.5, v{vT2}
    v_mul_f32 v{vT1}, {H(BIG)}, v{vT1}
    v_mul_f32 v{vT2}, {H(BIG)}, v{vT2}
    v_lshrrev_b32 v{vSEN+1}, 2, v{vPO}
    v_and_b32 v{vPO}, 3, v{vPO}
    v_lshlrev_b32 v{vPO}, 6, v{vPO}
    v_lshl_add_u32 v{vPO}, v{vSEN+1}, 15, v{vPO}
    v_lshl_add_u32 v{vPO}, v{vSEN}, 4, v{vPO}
    s_lshl_b32 s{sPB}, s{sP}, 20
    s_lshl_b32 s{sVo}, s{sW}, 18
    s_add_u32 s{sPB}, s{sPB}, s{sVo}
    s_lshl_b32 s{sVo}, s{sH}, 10
    s_add_u32 s{sPB}, s{sPB}, s{sVo}
    s_add_u32 s{sPB}, s{sPB}, {WS_P}
    s_mov_b32 s{sN1}, s{sT1}
    s_mov_b32 s{sE}, 2
    s_mov_b32 s{sRedo}, 0
    s_mov_b32 s{sRPL}, 28
    s_mov_b32 s64, 128
    s_lshl_b32 s65, s{sW}, 16
    s_add_u32 s{sKm}, s{sW8}, {R2}
    s_add_u32 s{sVm}, s{sW8}, {R0}
    s_lshl_b32 s{sCLO}, s{sH}, 13
    s_lshl_b32 s{sVo}, s{sB}, 11
    s_add_u32 s{sCLO}, s{sCLO}, s{sVo}
    s_add_u32 s{sCLO}, s{sCLO}, {WS_CTX}
    s_sub_u32 s{sVo}, 3, s{sC}
    s_lshl_b32 s{sVo}, s{sVo}, 18
    s_add_u32 s{sCHI}, s{sCLO}, s{sVo}
    s_lshl_b32 s{sVo}, s{sC}, 18
    s_add_u32 s{sCLO}, s{sCLO}, s{sVo}
    s_add_u32 s{sCFO}, s{sHFO}, {WS_CF - WS_HF}
    s_and_b32 s{sCFP}, s2, {0xff & ~24}
    s_lshl_b32 s{sCFP}, s{sCFP}, 8
    s_sub_u32 s{sVo}, 3, s{sW}
    s_min_u32 s{sVo}, s{sVo}, s{sW}
    s_lshl_b32 s{sVo}, s{sVo}, 7
    s_add_u32 s{sCFP}, s{sCFP}, s{sVo}
    s_add_u32 s{sCFP}, s{sCFP}, {WS_CF}
    """
    for i in range(4): t += f"v_mov_b32 v{vSEN+i}, -1\nv_mov_b32 v{ONE+i}, 0x3f803f80\n"
    for i in range(16): t += f"v_mov_b32 v{CI+i}, 0\n"
    return items(t) + first_c(1)

def first_c(tile):
    it = mask_items(MK, vT1, 0)
    if tile == 1:
        it += items(f"""s_cmp_eq_u32 s{sT1}, 0
        s_cselect_b32 s{sVo}, 0, {H(BIG*1024)}
        v_add_f32 v3, s{sVo}, v{vT1}""") + mask_items(S_, 3, 0)
    return it

def qk_m(Q, grp, S, C, order="kt"):
    M = []
    tl = [(0, 0), (1, 0), (0, 1), (1, 1)] if order == "kt" else [(0, 0), (0, 1), (1, 0), (1, 1)]
    for (qt, kt) in tl:
        d = S + 8 * qt + 4 * kt
        for u in range(4):
            c = V(d) if u else (V(CI + (grp * 2 + qt) * 4) if C is None else V(C + 8 * qt + 4 * kt))
            M.append(MF(V(d), A(KF + (kt * 4 + u) * 4), A(Q + (grp * 2 + qt) * 16 + u * 4), c))
    return M
def pv_m(grp, P, zero, order=range(8)):
    M = []
    for qt in range(2):
        d = V(LA + (grp * 2 + qt) * 4)
        M.append(MF(d, V(ONE), V(P + 4 * qt), "0" if zero else d))
    for n in order:
        for qt in range(2):
            d = V(O_ + grp * 64 + qt * 32 + n * 4)
            M.append(MF(d, A(VF + 4 * n), V(P + 4 * qt), "0" if zero else d))
    return M
def kread(ab, f): return ("l", f"ds_read_b128 {A(KF+4*f)}, v{vK} offset:{ab*16384 + f*1024}")
def vread(ab, n): return ("l", f"ds_read_b128 {A(VF+4*n)}, v{vV0 if n < 4 else vV1} offset:{ab*16384 + n*1024}")
def sm_place(ph, S, P, g0=0, stride=2):
    ge = []
    for j in range(16): ge.append(ph.put("e", f"v_exp_f32 v{S+j}, v{S+j}", g0 + stride * j))
    return ge
def cvt_place(ph, S, P, ge):
    for i in range(8):
        lo = max(ge[2 * i], ge[2 * i + 1])
        if lo + 1 <= len(ph.M) - 1: ph.put("v", f"v_cvt_pk_bf16_f32 v{P+i}, v{S+2*i}, v{S+2*i+1}", lo + 1)
        else: ph.put("x", f"v_cvt_pk_bf16_f32 v{P+i}, v{S+2*i}, v{S+2*i+1}", lo)
def adv_items():
    return items(f"""s_add_u32 s{sVo}, s{sKp}, 32768
    s_sub_u32 s{sKp}, s{sE}, s{sN1}
    s_sub_u32 s{sKp}, s{sKp}, 1
    s_cmp_gt_u32 s{sE}, s{sN1}
    s_cselect_b32 s{sKp}, s{sKp}, s{sE}
    s_lshl_b32 s{sKp}, s{sKp}, 16
    s_add_u32 s{sKp}, s{sKp}, s{sKV}
    s_cmp_ge_u32 s{sE}, 17
    s_cselect_b32 s{sKp}, {OOB - 8192}, s{sKp}
    s_add_u32 s{sE}, s{sE}, 1""")
vL2 = 15
def lin8(sm, so, tog, tag):
    it = []
    for h in range(2):
        it.append(("s", f"s_add_u32 m0, s{sm}, {h*4096}"))
        for i in range(4): it.append(("m", f"buffer_load_dwordx4 v{vL2 if h else 1}, {srd(WS)}, s{so} offen offset:{i*1024} lds", tag))
    return it + [("s", f"s_xor_b32 s{sm}, s{sm}, {tog}")]
def kdma(g): return lin8(sKm, sKp, R2 ^ R4, "kd")
def vdma(g): return lin8(sVm, sVo, R3 ^ R0, "vd")
NPEEL = 7
def prefill_items(i):
    return [("s", f"s_add_u32 s{sPO}, s{sPB}, {((i >> 3) << 23) + (i & 1) * 131072}"),
            ("m", f"buffer_store_dwordx4 {V(vSEN)}, v{vPO}, {srd(WS)}, s{sPO} offen offset:{((i >> 1) & 3) * 256} {WT}", "pre")]

DG = {"8": {"c": [3, 7, 11, 15, 19, 23, 27, 31], "d": [3, 7, 11, 15, 19, 23, 27, 31], "a": []},
      "7": {"c": [3, 7, 11, 15, 23, 27, 31], "d": [3, 7, 11, 15, 23, 27, 31], "a": [3, 7]},
      "6": {"c": [3, 7, 15, 19, 27, 31], "d": [0, 7, 11, 19, 23, 31], "a": [3, 7, 15, 19]}}[E_("DG", "7")]
def kv_items(g, name):
    seq = kdma(g) + vdma(g)
    groups = []; pre = []
    for it in seq:
        if it[0] == "m": groups.append([pre, it]); pre = []
        else: pre = pre + [it]
    groups.append([pre, None])
    n0 = {"c": 0, "d": len(DG["c"]), "a": len(DG["c"]) + len(DG["d"])}[name]
    return [(gp, groups[n0 + i][1], groups[n0 + i + 1][0]) for i, gp in enumerate(DG[name])], groups[0][0]
def place_kv(g, ph, name, limit=16):
    lst, first = kv_items(g, name)
    n0 = {"c": 0, "d": len(DG["c"]), "a": len(DG["c"]) + len(DG["d"])}[name]
    if name == "c": ph.stream(first, 0, 1)
    for i, (gp, dma, post) in enumerate(lst):
        if n0 + i >= limit: break
        ph.put("m", dma[1], gp, gp, tag=dma[2])
        ph.stream(post, gp + 1, gp + 2)

def slot(g, Q, name, zero=False, Cm=None, extra=None, dma=True):
    S0, S1, P0, P1 = S_, S_ + 16, P_, P_ + 8
    qk, sm, pv = {"a": ((0, S0), (S1, P1), (0, P0)), "b": ((1, S1), (S0, P0), (1, P1)),
                  "c": ((0, S0), (S1, P1), (0, P0)), "d": ((1, S1), (S0, P0), (1, P1))}[name]
    M = qk_m(Q, qk[0], qk[1], Cm) + pv_m(pv[0], pv[1], zero)
    ph = Phase(g.k, M)
    ge = sm_place(ph, *sm, g0=2 if name != "b" else 0)
    if name in "ac":
        for n, gp in enumerate([0, 1, 5, 9, 13, 17, 21, 25]): ph.put(*vread(1 if name == "a" else 0, n), gp, gp)
    if name == "b":
        for f in range(8): ph.put(*kread(1, f), 9 + 2 * f)
    if name == "d":
        for f in range(8): ph.put(*kread(0, f), 5 + 4 * f, 5 + 4 * f)
    if dma and name != "b": place_kv(g, ph, name)
    cvt_place(ph, *sm, ge)
    if name == "a": ph.stream(items(f"v_xor_b32 v{vV0}, {R3 ^ R0}, v{vV0}\nv_xor_b32 v{vV1}, {R3 ^ R0}, v{vV1}"), 29)
    if name == "b": ph.put("v", f"v_xor_b32 v{vK}, {R2 ^ R4}, v{vK}", 27)
    if extra: extra(ph)
    ph.emit()

def tile(g, T):
    import gen_tail as GT
    k = g.k
    Q = Q1 if T == 1 else Q2
    sT = sT1 if T == 1 else sT2
    S0, S1, P0, P1 = S_, S_ + 16, P_, P_ + 8
    L = f"L_t{T}"
    k.label(L + "_start")
    M = qk_m(Q, 0, S0, S0 if T == 1 else None, order="qt") + qk_m(Q, 1, S1, None)
    ph = Phase(k, M)
    ge = [ph.put("e", f"v_exp_f32 v{S0+j}, v{S0+j}", 4 * (j // 4) + 8 + (j % 4)) for j in range(16)]
    for f in range(8): g1 = ph.put(*kread(1, f), 24 + f, 24 + f)
    ph.put("x", f"v_xor_b32 v{vK}, {R2 ^ R4}, v{vK}", 31)
    ph.stream(adv_items() + items(f"s_sub_u32 s{sRem}, s{sT}, {1 if T == 1 else NPEEL}"), 0)
    cvt_place(ph, S0, P0, ge)
    ph.emit()
    k.waitvm(["kd", "vd", "k1", "v0"], True); k("s_barrier")
    if E_("TSA") == "r" and T == 2 or E_("TSA") == "m1" and T == 2: g.ts(force=True)
    if T == 1: k.vm = []
    st_bar = k.save()
    if T == 1:
        k(f"s_cmp_eq_u32 s{sT1}, 0\ns_cbranch_scc1 {L}_zero")
        z = f"{L}_zero:\n" + "".join(f"    v_mov_b64 v[{r}:{r+1}], 0\n" for r in list(range(O_, O_ + 128, 2)) + list(range(LA, LA + 16, 2)))
        z += "".join("    " + it[1] + "\n" for it in mask_items(MK, vT2, 1)) + f"    s_nop 1\n    s_branch {L}_diagC"
        g.tail.append(z)
    slot(g, Q, "c", zero=True)
    slot(g, Q, "d", zero=True)
    if T == 2:
        for r in range(1, NPEEL):
            slot(g, Q, "a", extra=lambda ph: GT.peel_a(g, ph, r))
            def fb(ph): ph.stream(adv_items(), 10); GT.peel_b(g, ph, r)
            slot(g, Q, "b", extra=fb)
            k.waitvm(["kd", "vd", "ctx"] + (["pre"] if r == NPEEL - 2 else []), True); k("s_barrier")
            if E_("TSA") == "r": g.ts(force=True)
            if r == 1: g.run(g.flag_store(sCFO, []))
            slot(g, Q, "c")
            slot(g, Q, "d")
        k.vm = [e for e in k.vm if e[1] in ("kd", "vd")]
    if T == 1 or NPEEL == 8: k(f"s_cmp_eq_u32 s{sRem}, 0\ns_cbranch_scc1 {L}_diag")
    st_d = k.save()
    k.out.append(".p2align 3")
    k.label(L + "_loop")
    slot(g, Q, "a")
    slot(g, Q, "b", extra=lambda ph: ph.stream(adv_items(), 10))
    k.waitvm(["kd", "vd"], True); k("s_barrier")
    k.vm = []
    slot(g, Q, "c")
    slot(g, Q, "d", extra=lambda ph: ph.put("s", f"s_sub_u32 s{sRem}, s{sRem}, 1", 26))
    k(f"s_cmp_lg_u32 s{sRem}, 0\ns_cbranch_scc1 {L}_loop")
    assert [e[1] for e in k.vm] == [e[1] for e in st_d[0]] and [e[0] for e in k.lg] == [e[0] for e in st_d[1]]
    k.label(L + "_diag")
    TM = lambda: g.ts(force=True) if E_("TSA") == f"m{T}" or (E_("TSA") == "r" and T == 2) else None
    TM()
    m2 = mask_items(MK, vT2, 1)
    def xa(ph):
        if T == 2: GT.diag_a(g, ph)
        ph.stream(m2[:10], 17)
    slot(g, Q, "a", Cm=MK, extra=xa)
    def xb(ph):
        if T == 1: ph.stream(adv_items(), 10)
        else: GT.diag_b(g, ph)
        ph.stream(m2[10:], 1)
    slot(g, Q, "b", extra=xb)
    k.waitvm(["kd", "vd", "pre"], True); k("s_barrier")
    if T == 1: k.restore(st_bar)
    k.label(L + "_diagC")
    TM()
    NO = [4, 5, 6, 7, 0, 1, 2, 3]
    ph = Phase(k, qk_m(Q, 1, S0, MK, order="qt") + pv_m(0, P0, False, NO) + pv_m(1, P1, False, NO))
    snd = lambda grp, va, base: [("l", f"ds_write_b128 v{va}, {V(O_ + grp*64 + (i&1)*32 + 16 + (i>>1)*4)} offset:{base + i*1024}") for i in range(8)]
    rcv = lambda grp, va, base: [("l", f"ds_read_b128 {V(O_ + grp*64 + (i&1)*32 + 16 + (i>>1)*4)}, v{va} offset:{base + i*1024}") for i in range(8)]
    vS, RS = (vMW, R1) if T == 1 else (11, 0)
    for i, n in enumerate(NO): ph.put(*vread(0, n), 2 * i, 2 * i)
    for i, n in enumerate(NO): ph.put(*vread(1, n), min(51, 37 + 2 * i), min(51, 37 + 2 * i))
    for i, it in enumerate(snd(0, vS, RS)): ph.put("l", it[1], 24 + 3 * i - (i > 4) * (i & 1), 24 + 3 * i)
    ge1 = [ph.put("e", f"v_exp_f32 v{S1+j}, v{S1+j}", 1 + 2 * j if j < 8 else 8 + j) for j in range(16)]
    ge2 = []
    for j in range(16): ge2.append(ph.put("e", f"v_exp_f32 v{S0+j}, v{S0+j}", (ge2[-1] if ge2 else 24) + 1, min(49, 27 + 3 * j // 2)))
    for i in range(8): ph.put("v", f"v_cvt_pk_bf16_f32 v{P1+i}, v{S1+2*i}, v{S1+2*i+1}", ge1[2 * i + 1] + 1, min(30, ge1[2 * i + 1] + 4))
    for i in range(8): ph.put("v", f"v_cvt_pk_bf16_f32 v{P0+i}, v{S0+2*i}, v{S0+2*i+1}", max(34, ge2[2 * i + 1] + 1), 51)
    lz = f"s_xor_b32 s{sB}, s{sVm}, 8192" if T == 1 else f"s_xor_b32 s{sB}, s{sW8}, {8192 + R0}"
    hz = f"s_xor_b32 s{sC}, s{sVm}, {R3 ^ R0}" if T == 1 else f"s_add_u32 s{sC}, s{sW8}, {R3}"
    ph.stream(items(f"""{lz}
    {hz}
    v_lshrrev_b32 v13, 1, v1
    v_add_u32 v12, s{sB}, v13
    v_add_u32 v9, s{sC}, v1
    v_xor_b32 v8, 8192, v{vS}
    v_xor_b32 v10, 8192, v9"""), 0, dense=1)
    ph.stream(items(f"v_mov_b32 v{LA+1}, v{LA+4}\nds_write_b64 v12, v[{LA}:{LA+1}]\nv_xor_b32 v12, 8192, v12"), 26, dense=1)
    if T == 1:
        for i, it in enumerate(kdma(g)): ph.put("x", it[1], [0, 3, 8, 13, 18, 19, 23, 29, 35, 41, 42][i], tag=it[2] if len(it) > 2 else None)
    else: GT.diag_c(g, ph)
    ph.emit()
    g.ts(); TM()
    k(f"""v_xor_b32 v{vV0}, {R3 ^ R0}, v{vV0}
    v_xor_b32 v{vV1}, {R3 ^ R0}, v{vV1}
    s_waitcnt lgkmcnt(0)
    s_barrier""")
    TM()
    RL = S1
    ph = Phase(k, pv_m(1, P0, False, NO))
    ph.stream([("l", f"ds_read_b64 v[{RL+8}:{RL+9}], v12")] + rcv(0, 8, RS), 0)
    ph.stream(items(f"""s_lshl_b32 s{sB}, s{sT}, 20
    s_add_u32 s{sC}, s{sB}, s{sCHI}
    s_add_u32 s{sB}, s{sB}, s{sCLO}
    v_lshrrev_b32 v11, 4, v2
    v_lshrrev_b32 v13, 2, v1
    v_add_u32 v13, {R1 if T == 1 else R4}, v13
    s_xor_b32 s{sD}, s{sW8}, 8192
    v_add_u32 v14, s{sD}, v13
    v_cmp_eq_u32 vcc, 1, v11
    v_add_f32 v{RL}, v{RL+8}, v{LA}
    v_add_f32 v{RL+2}, v{RL+9}, v{LA+4}
    v_cndmask_b32 v12, v{LA}, v{LA+4}, vcc
    v_rcp_f32 v{RL}, v{RL}
    v_rcp_f32 v{RL+2}, v{RL+2}
    v_cmp_eq_u32 vcc, 2, v11
    v_cmp_eq_u32 s[{sXB}:{sXB+1}], 3, v11"""), 0)
    sn = snd(1, 9, 0)
    for i in range(3): ph.put("l", sn[i][1], 12 + 2 * i, 12 + 2 * i)
    ph.emit()
    TM()
    def fin(grp):
        out = []
        for qt in range(2):
            b = O_ + grp * 64 + qt * 32; r = RL + 2 * (grp * 2 + qt)
            so = sC if grp else sB
            for u in range(2):
                c = b + 8 * u
                for i in range(0, 8, 2): out.append(("v", f"v_pk_add_f32 v[{c+i}:{c+i+1}], v[{c+i}:{c+i+1}], v[{c+16+i}:{c+16+i+1}]"))
                for i in range(0, 8, 2): out.append(("v", f"v_pk_mul_f32 v[{c+i}:{c+i+1}], v[{c+i}:{c+i+1}], v[{r}:{r+1}] op_sel_hi:[1,0]"))
                for i in range(4): out.append(("v", f"v_cvt_pk_bf16_f32 v{c+i}, v{c+2*i}, v{c+2*i+1}"))
                out.append(("m", f"buffer_store_dwordx4 {V(c)}, v{vL2 if qt else 1}, {srd(WS)}, s{so} offen offset:{u*1024} {WT}", "ctx"))
        return out
    ex = GT.merge_x(g) if T == 2 else vdma(g)
    lo = fin(0)
    k(f"""v_cndmask_b32 v12, v12, v{LA+8}, vcc
    v_cndmask_b32 v12, v12, v{LA+12}, s[{sXB}:{sXB+1}]""")
    ne = len(ex) // 2 if T == 1 else len(ex)
    for i in range(5):
        g.run([sn[3 + i]] + lo[i * 11:(i + 1) * 11] + ex[i * ne // 5:(i + 1) * ne // 5])
    k(f"""ds_write_b32 v14, v12
    v_and_b32 v14, {~192 & 0xffffffff}, v13
    v_add_u32 v14, s{sW8}, v14""")
    if E_("TSA") != "r": TM()
    k.waitvm(["wo1"], True); k("s_barrier")
    TM()
    k(f"ds_read_b32 v{RL+4}, v14 offset:128\nds_read_b32 v{RL+6}, v14 offset:192")
    rc = rcv(1, 10, 0)
    g.run([rc[i] for i in (0, 2, 4, 6, 1, 3, 5, 7)])
    for w in range(4): k(f"ds_read_b32 v{RL+8+w}, v13 offset:{w*8192}")
    k(f"""v_add_f32 v{RL+4}, v{RL+4}, v{LA+8}
    v_add_f32 v{RL+6}, v{RL+6}, v{LA+12}
    v_rcp_f32 v{RL+4}, v{RL+4}
    v_rcp_f32 v{RL+6}, v{RL+6}""")
    hi = fin(1); ex = ex[ne:]
    nxt = [kread(0, f) for f in range(8)] if T == 1 else GT.oread(0) + GT.oread(1)
    for i in range(4):
        g.run(hi[i * 13:(i + 1) * 13] + ex[i * len(ex) // 4:(i + 1) * len(ex) // 4])
        if i == 1:
            k(f"""v_add_f32 v{RL+8}, v{RL+8}, v{RL+9}
            v_add_f32 v{RL+10}, v{RL+10}, v{RL+11}
            v_min_f32 v{RL+12}, v{RL+8}, v{RL+10}
            v_add_f32 v{RL+8}, v{RL+8}, v{RL+10}
            v_cmp_le_f32 vcc, {H(LLO)}, v{RL+12}
            s_mov_b64 s[{sXB}:{sXB+1}], vcc
            v_cmp_ge_f32 vcc, {H(LHI)}, v{RL+8}
            s_and_b64 s[{sXB}:{sXB+1}], s[{sXB}:{sXB+1}], vcc
            s_cmp_eq_u64 s[{sXB}:{sXB+1}], -1
            s_cselect_b32 s{sXB}, s{sRedo}, 1
            s_cmp_lg_u32 s{sXB}, 0
            s_cbranch_scc1 {L}_redo""")
            k.label(L + "_safe")
        if i >= 2: g.run(nxt[(i - 2) * len(nxt) // 2:(i - 1) * len(nxt) // 2])
    redo(g, T)
    g.ts(); TM()

def redo(g, T):
    L = f"L_t{T}"
    Q = Q1 if T == 1 else Q2
    sT = sT1 if T == 1 else sT2
    k = K(); S0, S1, MX = S_, S_ + 16, P_
    k.label(L + "_redo")
    k(f"s_cmp_eq_u32 s{sRedo}, 0\ns_cbranch_scc1 {L}_max\ns_mov_b32 s{sRedo}, 0")
    for i in range(16): k(f"v_mov_b32 v{CI+i}, 0")
    k(f"s_nop 1\ns_branch {L}_safe")
    k.label(L + "_max")
    k(f"""s_waitcnt vmcnt(0) lgkmcnt(0)
    s_barrier
    s_mov_b32 s{sRedo}, 1
    s_and_b32 s{sB}, s{sW}, 1
    s_lshl_b32 s{sB}, s{sB}, 13
    s_sub_u32 s{sC}, s{sKV}, s{sW8}
    s_add_u32 s{sC}, s{sC}, s{sB}
    s_mov_b32 s{sRem}, s{sT}""")
    if T == 2:
        k(f"s_mov_b32 s{sRPL}, 0")
        for i in range(4): k(f"v_mov_b32 v{vSEN+i}, -1")
    for t in range(4): k(f"v_mov_b32 v{MX+t}, 0xff800000")
    def kld(ab):
        k(f"s_add_u32 s{sB}, s{sC}, {ab*16384}")
        for f in range(8): k(f"buffer_load_dwordx4 {A(KF+4*f)}, v{vL2 if f >= 4 else 1}, {srd(WS)}, s{sB} offen offset:{(f&3)*1024}")
    def blk(grp, S, C):
        for m in qk_m(Q, grp, S, C): k(m)
    def mx(grp, S):
        for qt in range(2):
            for i in range(0, 8, 2): k(f"v_max3_f32 v{MX+grp*2+qt}, v{MX+grp*2+qt}, v{S+8*qt+i}, v{S+8*qt+i+1}")
    k.label(L + "_maxl")
    k(f"s_cmp_eq_u32 s{sRem}, 0\ns_cbranch_scc1 {L}_maxd")
    for ab in range(2):
        kld(ab); blk(0, S0, None); blk(1, S1, None); mx(0, S0); mx(1, S1)
    k(f"s_add_u32 s{sC}, s{sC}, 65536\ns_sub_u32 s{sRem}, s{sRem}, 1\ns_nop 7\ns_branch {L}_maxl")
    k.label(L + "_maxd")
    kld(0)
    for it in mask_items(MK, vT1, 0): k(it[1])
    blk(0, S0, MK); blk(1, S1, None); mx(0, S0); mx(1, S1)
    kld(1)
    for it in mask_items(MK, vT2, 1): k(it[1])
    blk(1, S0, MK); mx(1, S0)
    for sw in ("v_permlane16_swap_b32", "v_permlane32_swap_b32"):
        for t in range(4): k(f"v_mov_b32 v{MX+4+t}, v{MX+t}")
        for t in range(4): k(f"{sw} v{MX+t}, v{MX+4+t}")
        for t in range(4): k(f"v_max_f32 v{MX+t}, v{MX+t}, v{MX+4+t}")
    k(f"""ds_write_b128 v{vMW}, {V(MX)} offset:{R1}
    v_xor_b32 v8, 8192, v{vMW}
    s_waitcnt lgkmcnt(0)
    s_barrier
    ds_read_b128 {V(MX+4)}, v8 offset:{R1}""")
    for t in range(4): k(f"v_max_f32 v{MX+t}, v{MX+t}, v{MX+4+t}")
    for t in range(4):
        for r in range(4): k(f"v_sub_f32 v{CI+4*t+r}, 0, v{MX+t}")
    k(f"s_mov_b32 s{sE}, 0" if T == 1 else f"s_add_u32 s{sE}, s{sN1}, 1")
    k(f"""s_and_b32 s{sB}, s{sE}, 1
    s_mul_i32 s{sKm}, s{sB}, {R2 ^ R4}
    s_xor_b32 s{sKm}, s{sKm}, {R2}
    s_mul_i32 s{sVm}, s{sB}, {R3 ^ R0}
    s_xor_b32 s{sVm}, s{sVm}, {R3}
    v_and_b32 v{vK}, 0x7fff, v{vK}
    v_or_b32 v{vK}, s{sKm}, v{vK}
    v_and_b32 v{vV0}, 0x7fff, v{vV0}
    v_or_b32 v{vV0}, s{sVm}, v{vV0}
    v_and_b32 v{vV1}, 0x7fff, v{vV1}
    v_or_b32 v{vV1}, s{sVm}, v{vV1}
    s_add_u32 s{sKm}, s{sKm}, s{sW8}
    s_add_u32 s{sVm}, s{sVm}, s{sW8}
    s_add_u32 s{sE}, s{sE}, 2
    s_mov_b32 s{sKp}, s{sKV}
    s_add_u32 s{sVo}, s{sKV}, 32768""")
    for it in kdma(g) + vdma(g): k(it[1])
    k(f"""s_min_u32 s{sKp}, s{sT}, 1
    s_lshl_b32 s{sKp}, s{sKp}, 16
    s_add_u32 s{sKp}, s{sKp}, s{sKV}""")
    for it in kdma(g): k(it[1])
    if T == 1:
        for it in first_c(1): k(it[1])
    k("s_waitcnt vmcnt(0) lgkmcnt(0)\ns_barrier")
    for f in range(8): k(kread(0, f)[1])
    k(f"s_waitcnt lgkmcnt(0)\ns_branch {L}_start")
    g.tail.append("\n".join(k.out))

def attention(g):
    k = g.k; ACC = g.ACC
    for tt in range(4):
        for u in range(4):
            b = ACC + (tt * 8 + 2 * u) * 4
            for i in range(4): k(f"v_cvt_pk_bf16_f32 v{b+i}, v{b+2*i}, v{b+2*i+1}")
            k(f"ds_write_b128 v{vMW}, {V(b)} offset:{(tt>>1)*R1 + ((tt&1)*4+u)*1024}")
    k(f"v_add_u32 v{vL2}, 4096, v1")
    k.waitvm(["k0"], True); k("s_barrier")
    qr = lambda Q, base, f: f"ds_read_b128 {A(Q+4*f)}, v{vQR} offset:{base + f*1024}"
    for f in range(4): k(qr(Q1, R0, f)); k(kread(0, f)[1])
    for f in range(4, 8): k(kread(0, f)[1])
    for f in range(4, 16): k(qr(Q1, R0, f))
    for f in range(16): k(qr(Q2, R1, f))
    g.ts()
    tile(g, 1)
    tile(g, 2)

def qdump(g):
    k = g.k; ACC = g.ACC
    k(f"s_lshl_b32 s{sB}, s2, 16\ns_lshl_b32 s{sC}, s{sW}, 14\ns_add_u32 s{sB}, s{sB}, s{sC}\ns_add_u32 s{sB}, s{sB}, {WS_CTX}")
    for tt in range(4):
        for u in range(4):
            b = ACC + (tt * 8 + 2 * u) * 4
            for i in range(4): k(f"v_cvt_pk_bf16_f32 v{b+i}, v{b+2*i}, v{b+2*i+1}")
            k(f"buffer_store_dwordx4 {V(b)}, v1, {srd(WS)}, s{sB} offen offset:{u*1024}")
        k(f"s_add_u32 s{sB}, s{sB}, 4096")
```

```python
from common import *
from gen_attn import *
sFO, sWOB, sXL, sPS, sTOK1, sTOK2, sPC, sKEY, sIDX, sCND, sCG, sC2 = 64, 65, 74, 75, 68, 69, 70, 71, 72, 73, 66, 67
sLM = 70
OQB = [R1, R2, R0, R3]
WOV = 8
OA = 56
WR0, OACC, X1, X2 = 192, 64, 64, 128
def wodma(g, c, vb=24):
    it = []
    for h in range(2):
        it += g.dma4(WO, [vb + i for i in range(4)], (sW8, OQB[c] + h * 4096), (sWOB, (c & 1) * 128 + (c >> 1) * 262144 + h * 32768), f"wo{c}")
    return it
def xload(pas, f):
    off = f * 1024
    dst = A(X1 + 4 * f) if pas == 0 else V(X2 + 4 * f)
    return [("s", f"s_add_u32 s{sXL}, s{sXC}, {off & ~4095}"), ("m", f"buffer_load_dwordx4 {dst}, v1, {srd(WS)}, s{sXL} offen offset:{off & 4095}")]
def xc_items(sT):
    return items(f"""s_lshl_b32 s{sXC}, s{sT}, 2
    s_add_u32 s{sXC}, s{sXC}, s{sW}
    s_lshl_b32 s{sXC}, s{sXC}, 3
    s_add_u32 s{sXC}, s{sXC}, s{sX}
    s_lshl_b32 s{sXC}, s{sXC}, 15
    s_add_u32 s{sXC}, s{sXC}, {WS_CTX}""")

def moe_setup():
    return items(f"""s_lshr_b32 s{sB}, s2, 3
    s_mul_i32 s{sCG}, s{sX}, 28
    s_add_u32 s{sCG}, s{sCG}, s{sB}
    s_cmp_lt_u32 s{sB}, 28
    s_cselect_b32 s{sCG}, s{sCG}, 255
    s_lshl_b32 s{sC2}, s{sX}, 3
    s_add_u32 s{sC2}, s{sC2}, s{sB}
    s_sub_u32 s{sC2}, s{sC2}, 24
    s_cmp_ge_u32 s{sB}, 24
    s_cselect_b32 s{sC2}, s{sC2}, 255""")
WS_GP, WS_UP, WS_DP = 0x400000, 0x600000, 0x800000
def repack_loads(t0, s0):
    return items(f"""s_lshl_b32 s{s0}, s2, 2
    s_add_u32 s{s0}, s{s0}, s{sW}
    s_and_b32 s{sB}, s{s0}, 31
    s_lshr_b32 s{sC}, s{s0}, 5
    v_lshrrev_b32 v{t0+1}, 3, v2
    v_and_b32 v{t0}, 4, v{t0+1}
    v_and_b32 v{t0+2}, 2, v{t0+1}
    v_lshl_add_u32 v{t0}, v{t0+2}, 3, v{t0}
    v_and_b32 v{t0+2}, 1, v{t0+1}
    v_lshl_add_u32 v{t0}, v{t0+2}, 1, v{t0}
    v_mul_u32_u24 v{t0}, 3584, v{t0}
    v_and_b32 v{t0+2}, 7, v2
    v_lshl_add_u32 v{t0}, v{t0+2}, 4, v{t0}
    v_lshlrev_b32 v{t0+1}, 13, v{t0+1}
    v_lshl_add_u32 v{t0+1}, v{t0+2}, 4, v{t0+1}
    s_lshr_b32 s{s0}, s{sB}, 1
    s_lshl_b32 s{s0}, s{s0}, 2
    s_and_b32 s{sB}, s{sB}, 1
    s_add_u32 s{s0}, s{s0}, s{sB}
    s_mul_i32 s{s0}, s{s0}, {8*3584}
    s_lshl_b32 s{sB}, s{sC}, 7
    s_add_u32 s{s0}, s{s0}, s{sB}
    s_cmp_lt_u32 s{sC}, 28
    s_cselect_b32 s{s0}, s{s0}, {OOB}
    buffer_load_dwordx4 {A(PRE)}, v{t0}, {srd(WG_)}, s{s0} offen nt
    buffer_load_dwordx4 {A(PRE+4)}, v{t0}, {srd(WG_)}, s{s0} offen offset:3584 nt
    buffer_load_dwordx4 {A(PRE+8)}, v{t0}, {srd(WU_)}, s{s0} offen nt
    buffer_load_dwordx4 {A(PRE+12)}, v{t0}, {srd(WU_)}, s{s0} offen offset:3584 nt
    s_lshl_b32 s{s0}, s{sC}, 16
    s_lshl_b32 s{sB}, s{sW}, 11
    s_add_u32 s{s0}, s{s0}, s{sB}
    s_lshl_b32 s{sB}, s{sX}, 7
    s_add_u32 s{s0}, s{s0}, s{sB}
    buffer_load_dwordx4 {A(PRE+16)}, v{t0+1}, {srd(WD_)}, s{s0} offen nt
    buffer_load_dwordx4 {A(PRE+20)}, v{t0+1}, {srd(WD_)}, s{s0} offen offset:1024 nt""", "ex")
def repack_stores(t0, s0):
    return items(f"""s_lshr_b32 s{sC}, s2, 3
    v_lshrrev_b32 v{t0+2}, 3, v2
    v_lshlrev_b32 v{t0+2}, 4, v{t0+2}
    v_and_b32 v{t0+1}, 7, v2
    v_lshl_add_u32 v{t0}, v{t0+1}, 13, v{t0+2}
    v_mul_u32_u24 v{t0+1}, 28672, v{t0+1}
    v_add_u32 v{t0+1}, v{t0+1}, v{t0+2}
    s_lshl_b32 s{s0}, s{sX}, 2
    s_add_u32 s{s0}, s{s0}, s{sW}
    s_lshl_b32 s{s0}, s{s0}, 7
    s_lshl_b32 s{sB}, s{sC}, 16
    s_add_u32 s{s0}, s{s0}, s{sB}
    s_add_u32 s{s0}, s{s0}, {WS_GP}
    s_cmp_lt_u32 s{sC}, s{sRPL}
    s_cselect_b32 s{s0}, s{s0}, {OOB - 0x400000}
    buffer_store_dwordx4 {A(PRE)}, v{t0}, {srd(WS)}, s{s0} offen {WT}
    s_add_u32 s{s0}, s{s0}, 4096
    buffer_store_dwordx4 {A(PRE+4)}, v{t0}, {srd(WS)}, s{s0} offen {WT}
    s_add_u32 s{s0}, s{s0}, {WS_UP - WS_GP - 4096}
    buffer_store_dwordx4 {A(PRE+8)}, v{t0}, {srd(WS)}, s{s0} offen {WT}
    s_add_u32 s{s0}, s{s0}, 4096
    buffer_store_dwordx4 {A(PRE+12)}, v{t0}, {srd(WS)}, s{s0} offen {WT}
    s_mul_i32 s{s0}, s{sX}, {8*28672}
    s_mul_i32 s{sB}, s{sW}, {2*3584}
    s_add_u32 s{s0}, s{s0}, s{sB}
    s_lshl_b32 s{sB}, s{sC}, 7
    s_add_u32 s{s0}, s{s0}, s{sB}
    s_add_u32 s{s0}, s{s0}, {WS_DP}
    s_cmp_lt_u32 s{sC}, s{sRPL}
    s_cselect_b32 s{s0}, s{s0}, {OOB}
    buffer_store_dwordx4 {A(PRE+16)}, v{t0+1}, {srd(WS)}, s{s0} offen {WT}
    buffer_store_dwordx4 {A(PRE+20)}, v{t0+1}, {srd(WS)}, s{s0} offen offset:3584 {WT}""", "pre")
def moe_loads(t0, s0):
    t = f"""v_lshlrev_b32 v{t0}, 4, v0
    v_cmp_gt_u32 vcc, 224, v0
    v_mov_b32 v{t0+1}, {OOB}
    v_cndmask_b32 v{t0+1}, v{t0+1}, v{t0}, vcc
    s_lshl_b32 s{s0}, s{sCG}, 13
    s_add_u32 s{s0}, s{s0}, {WS_GP}
    s_cmp_lt_u32 s{sCG}, 224
    s_cselect_b32 s{s0}, s{s0}, {OOB - 0x400000}
    buffer_load_dwordx4 {A(PRE)}, v{t0}, {srd(WS)}, s{s0} offen
    s_add_u32 s{s0}, s{s0}, 4096
    buffer_load_dwordx4 {A(PRE+4)}, v{t0}, {srd(WS)}, s{s0} offen
    s_add_u32 s{s0}, s{s0}, {WS_UP - WS_GP - 4096}
    buffer_load_dwordx4 {A(PRE+8)}, v{t0}, {srd(WS)}, s{s0} offen
    s_add_u32 s{s0}, s{s0}, 4096
    buffer_load_dwordx4 {A(PRE+12)}, v{t0}, {srd(WS)}, s{s0} offen
    s_mul_i32 s{s0}, s{sC2}, 28672
    s_add_u32 s{s0}, s{s0}, {WS_DP}
    s_cmp_lt_u32 s{sC2}, 64
    s_cselect_b32 s{s0}, s{s0}, {OOB - 0x400000}
    """
    for r in range(8):
        t += f"buffer_load_dwordx4 {A(PRE+16+4*r)}, v{t0+1}, {srd(WS)}, s{s0} offen offset:{(r&1)*3584}\n"
        if r & 1 and r < 7: t += f"s_add_u32 s{s0}, s{s0}, 7168\n"
    return items(t, "ex")
def merge1_extra(g):
    t = f"""v_lshlrev_b32 v12, 3, v0
    s_lshl_b32 s{sC}, s2, 11
    s_add_u32 s{sC}, s{sC}, {WS_CAND}
    buffer_store_dwordx2 v[{vSEN}:{vSEN+1}], v12, {srd(WS)}, s{sC} offen {WT}
    s_lshl_b32 s{sC}, s2, 6
    s_add_u32 s{sC}, s{sC}, {WS_KEY}
    v_mov_b32 v13, 0
    buffer_store_dword v13, v7, {srd(WS)}, s{sC} offen {WT}
    s_lshl_b32 s{sC}, s{sCG}, 6
    s_add_u32 s{sC}, s{sC}, {WS_ACT}
    buffer_store_dwordx4 {V(vSEN)}, v7, {srd(WS)}, s{sC} offen {WT}
    buffer_store_dwordx4 {V(vSEN)}, v7, {srd(WS)}, s{sC} offen offset:16 {WT}
    """
    return items(t, "pre")
def late_mod_loads(g, b):
    it = items(f"""v_lshlrev_b32 v{b+4}, 2, v0
    v_cmp_gt_u32 vcc, 8, v0
    v_mov_b32 v{b+5}, {OOB}
    v_cndmask_b32 v{b+4}, v{b+5}, v{b+4}, vcc
    s_lshl_b32 s{sLM}, s2, 5
    s_add_u32 s{sLM}, s{sLM}, {WS_MODP + 4096}""")
    ld = []
    for q in range(4):
        ld += [("m", f"buffer_load_dword v{b+q}, v{b+4}, {srd(WS)}, s{sLM} offen"), ("s", f"s_add_u32 s{sLM}, s{sLM}, 12288")]
    return it, ld
def late_mod_fin(g, b):
    return items(f"""v_add_f32 v{b}, v{b}, v{b+1}
    v_add_f32 v{b+2}, v{b+2}, v{b+3}
    v_add_f32 v{b}, v{b}, v{b+2}
    v_cvt_pk_bf16_f32 v{b}, v{b}, v{b}
    v_and_b32 v{b}, 0xffff0000, v{b}
    s_lshr_b32 s{sLM}, s2, 6
    s_cmp_eq_u32 s{sLM}, 2
    s_cselect_b32 s{sLM}, 1.0, 0
    v_add_f32 v{b}, s{sLM}, v{b}
    v_cvt_pk_bf16_f32 v{b}, v{b}, v{b}
    v_and_b32 v{b}, 0xffff0000, v{b}
    s_lshl_b32 s{sLM}, s2, 5
    s_add_u32 s{sLM}, s{sLM}, {WS_MOD + 4096}
    buffer_store_dword v{b}, v{b+4}, {srd(WS)}, s{sLM} offen {WT}""", "ex")
def wo_voff(b):
    return items(f"""v_lshrrev_b32 v{b+1}, 1, v2
    v_lshrrev_b32 v{b+2}, 4, v2
    v_xor_b32 v{b+1}, v{b+1}, v{b+2}
    v_and_b32 v{b+1}, 3, v{b+1}
    v_lshlrev_b32 v{b+1}, 5, v{b+1}
    v_and_b32 v{b+2}, 1, v2
    v_lshl_add_u32 v{b+1}, v{b+2}, 4, v{b+1}
    v_lshrrev_b32 v{b}, 3, v2
    v_lshl_add_u32 v{b}, v{b}, 10, v{b+1}
    v_bfe_u32 v4, v2, 1, 2
    v_lshlrev_b32 v4, 11, v4
    v_lshl_add_u32 v4, v{b+2}, 6, v4
    v_add_u32 v{b+1}, 7168, v{b}
    v_add_u32 v{b+2}, {2*7168}, v{b}
    v_add_u32 v{b+3}, {3*7168}, v{b}""")
def cold_loads(t0, s0):
    return repack_loads(t0, s0) + items(f"""v_lshrrev_b32 v{t0}, 2, v2
    v_and_b32 v{t0+1}, 3, v2
    v_lshlrev_b32 v{t0+1}, 3, v{t0+1}
    v_lshl_add_u32 v{t0}, v{t0}, 6, v{t0+1}
    s_and_b32 s{s0}, s2, 31
    s_lshl_b32 s{s0}, s{s0}, 2
    s_add_u32 s{s0}, s{s0}, s{sW}
    s_lshl_b32 s{sB}, s{sT1}, 7
    s_add_u32 s{sTOK1}, s{s0}, s{sB}
    s_lshl_b32 s{sB}, s{sT2}, 7
    s_add_u32 s{sTOK2}, s{s0}, s{sB}
    s_lshl_b32 s{sB}, s{sTOK1}, 10
    s_lshl_b32 s{sC}, s{sTOK2}, 10
    buffer_load_dwordx2 a[48:49], v{t0}, {srd(XS)}, s{sB} offen nt
    buffer_load_dwordx2 a[50:51], v{t0}, {srd(XS)}, s{sB} offen offset:32 nt
    buffer_load_dwordx2 a[52:53], v{t0}, {srd(XS)}, s{sC} offen nt
    buffer_load_dwordx2 a[54:55], v{t0}, {srd(XS)}, s{sC} offen offset:32 nt
    buffer_load_dwordx2 a[56:57], v{t0}, {srd(WR_)}, 0 offen
    buffer_load_dwordx2 a[58:59], v{t0}, {srd(WR_)}, 0 offen offset:32
    v_lshrrev_b32 v{t0+1}, 1, v2
    v_and_b32 v{t0+1}, 15, v{t0+1}
    v_lshlrev_b32 v{t0+1}, 10, v{t0+1}
    v_and_b32 v{t0+2}, 1, v2
    v_lshl_add_u32 v{t0+1}, v{t0+2}, 7, v{t0+1}
    s_lshl_b32 s{s0}, s{sP}, 2
    s_add_u32 s{s0}, s{s0}, s{sW}
    s_lshl_b32 s{s0}, s{s0}, 14
    buffer_load_dword a60, v{t0+1}, {srd(WO)}, s{s0} offen""", "ex")
def split_m(its, n):
    c = 0
    for i, it in enumerate(its):
        if it[0] == "m":
            c += 1
            if c == n: return its[:i + 1], its[i + 1:]
    return its, []
def peel_plan(g):
    pf = lambda a, b: sum((prefill_items(i) for i in range(a, b)), [])
    rs = []; rest = repack_stores(12, sPF)
    for i in range(6):
        a, rest = split_m(rest, 1); rs.append(a)
    wo = wodma(g, 0, 8)
    xl = lambda a, b: sum((xload(0, f) for f in range(a, b)), [])
    fsig = [("m", f"buffer_atomic_add v6, v7, {srd(DBG)}, s{sFO} offen sc1", "flag"), ("s", f"s_mov_b32 s{sFO}, {OOB}")]
    cpoll = [("m", f"buffer_load_dword v3, v4, {srd(WS)}, s{sCFP} offen {WT}")]
    fc = first_c(2); wv = wo_voff(8)
    return [([pf(0, 2), rs[0]], [rs[1] + pf(2, 6)]),
            ([rs[2] + pf(6, 8), wv[:6]], [rs[3] + pf(8, 11), wv[6:]]),
            ([rs[4] + pf(11, 14)], [rs[5] + pf(14, 16) + cpoll, fc[:12]]),
            ([merge1_extra(g)], [wo[:6], fc[12:24]]),
            ([xc_items(sT1) + [("x", g.poll_check(3, 4, WS, f"s{sCFP}", "C1"))] + xl(0, 4)], [wo[6:] + xl(4, 8)]),
            ([fsig + xl(8, 12)], [xl(12, 16), fc[24:]])]
def peel_a(g, ph, r):
    for st in peel_plan(g)[r - 1][0]: ph.stream(st, 8 if any(it[0] == "m" for it in st[:3]) else 0)
def peel_b(g, ph, r):
    for st in peel_plan(g)[r - 1][1]: ph.stream(st, 0)
def diag_a(g, ph):
    ph.stream(items("".join(f"v_mov_b32 v{24+i}, v{8+i}\n" for i in range(4)) + f"""v_add_u32 v11, {R4}, v{vMW}
    v_mov_b32 v12, 0
    s_mov_b32 s{sKEY}, 128
    buffer_load_dword v3, v12, {srd(DBG)}, s{sKEY} offen {WT}"""), 0, dense=1)
def diag_b(g, ph):
    ml = moe_loads(13, sXL)
    ph.stream(ml[:4], 0)
    ph.put("x", g.poll_check(3, 12, DBG, f"s{sKEY}", "F", target=256), 22)
    ph.stream(split_m(ml[4:], 4)[0], 23)
def diag_c(g, ph):
    its = wodma(g, 1)
    gp = 0
    for it in its:
        ph.put("x", it[1], gp, tag=it[2] if len(it) > 2 else None)
        if it[0] == "m": gp += 5
def merge_x(g):
    its = items(f"""v_lshrrev_b32 v{OA+2}, 2, v2
    v_and_b32 v{OA+1}, 3, v2
    v_lshlrev_b32 v{OA}, 7, v{OA+2}
    v_lshl_add_u32 v{OA}, v{OA+1}, 3, v{OA}
    v_bfe_u32 v{OA+1}, v2, 3, 2
    v_lshl_add_u32 v{OA}, v{OA+1}, 5, v{OA}
    v_xor_b32 v{OA+1}, 32, v{OA}
    v_xor_b32 v{OA+2}, 64, v{OA}
    v_xor_b32 v{OA+3}, 96, v{OA}
    v_add_u32 v{OA+4}, {R2}, v{OA}
    v_add_u32 v{OA+5}, {R2}, v{OA+1}
    v_add_u32 v{OA+6}, {R2}, v{OA+2}
    v_add_u32 v{OA+7}, {R2}, v{OA+3}""")
    return its

STEPS = [[(c, n2) for c in range(4) for n2 in range(4)] + [(c, n2) for c in range(4) for n2 in range(4, 8)]] * 2
def piece(i):
    c, n2 = STEPS[i >> 5][i & 31]
    return (c >> 1) + 2 * (n2 >> 2)
def oread(i):
    c, n2 = STEPS[i >> 5][i & 31]
    reg = OQB[piece(i)]; it = []
    for nt in range(2):
        va = OA + (0 if reg < R2 else 4) + 2 * (c & 1) + nt
        for h in range(2):
            o = (reg & 0xffff) + (2 * (n2 & 3) + h) * 4096
            f = WR0 + ((i & 3) * 4 + nt * 2 + h) * 4
            it += [("l", f"ds_read_b64_tr_b16 a[{f}:{f+1}], v{va} offset:{o}"), ("l", f"ds_read_b64_tr_b16 a[{f+2}:{f+3}], v{va} offset:{o+2048}")]
    return it
def oproj_first(g):
    g.run(oread(0) + oread(1))

P1R, P2R, GA, CB, SB, GB, XR1, XR2, WRR = 128, 192, 160, 168, 176, 184, 32, 36, 40
vPL, vCB, vCF = 44, 45, 46
def pload(T12, dst):
    it = []
    for x in range(8):
        it += [("s", f"s_add_u32 s{sXL}, s{sPC}, {(T12 << 23) + x * 4096}"), ("m", f"buffer_load_dwordx4 {V(dst+4*x)}, v{vPL}, {srd(WS)}, s{sXL} offen {WT}")]
    return it

def oproj(g):
    k = g.k
    M = []
    for i in range(64):
        pas = i >> 5; c, n2 = STEPS[pas][i & 31]
        for nt in range(2):
            for tt in range(2):
                for h in range(2):
                    n = 2 * n2 + h; f = (n >> 2) * 8 + tt * 4 + (n & 3)
                    d = V(OACC + c * 16 + tt * 8 + nt * 4)
                    M.append(MF(d, A(WR0 + ((i & 3) * 4 + nt * 2 + h) * 4), A(X1 + 4 * f) if pas == 0 else V(X2 + 4 * f), "0" if n == 0 else d))
    ph = Phase(k, M); ph.thin = True
    Z0, Z2 = 64 + 38, 64 * 2 + 38
    ph.put("x", g.bar(["wo2"], False), Z0)
    ph.put("x", g.bar(["wo3"], False), Z2)
    xl = lambda a, b: sum((xload(0, (n >> 2) * 8 + tt * 4 + (n & 3)) for n in range(a, b) for tt in range(2)), [])
    gx = ph.stream(wodma(g, 2) + xl(8, 16), 0, None, step=4)
    gx2 = ph.stream(wodma(g, 3), max(gx, Z0) + 1, None, step=4)
    def epi(pas, c):
        it = []
        for tt in range(2):
            b = OACC + c * 16 + tt * 8
            it += [("v", f"v_cvt_pk_bf16_f32 v{b+i}, v{b+2*i}, v{b+2*i+1}") for i in range(4)]
            it += [("v", f"v_min_u32 v{b+i}, -2, v{b+i}") for i in range(4)]
            it += [("s", f"s_add_u32 s{sPS}, s{sPB}, {(pas << 23) + tt * 131072}"), ("m", f"buffer_store_dwordx4 {V(b)}, v{vPO}, {srd(WS)}, s{sPS} offen offset:{c*256} {WT}", "pst")]
        return it
    CD = int(E_("CD", "120")); CP = int(E_("CP", "60"))
    g1 = ph.stream([("s", f"s_add_u32 s{sCFO}, s{sCFO}, 65536"), ("s", f"s_add_u32 s{sCFP}, s{sCFP}, 65536")] + xc_items(sT2), gx + 1)
    g1 = ph.stream(g.flag_store(sCFO, ["ctx"]), CD)
    g1 = ph.stream([("m", f"buffer_load_dword v3, v4, {srd(WS)}, s{sCFP} offen {WT}")], CD + CP - 30)
    ph.put("x", g.poll_check(3, 4, WS, f"s{sCFP}", "C2"), CD + CP)
    its = []
    for n in range(16):
        for tt in range(2): its += xload(1, (n >> 2) * 8 + tt * 4 + (n & 3))
    g1 = ph.stream(its, CD + CP + 1, None, step=4)
    g2 = ph.stream(items(f"""v_lshrrev_b32 v{vCF}, 2, v2
    v_and_b32 v{vCB}, 3, v2
    v_lshlrev_b32 v{vPL}, 8, v{vCF}
    v_lshl_add_u32 v{vPL}, v{vCB}, 4, v{vPL}
    v_lshlrev_b32 v{vCB}, 3, v{vCB}
    v_lshl_add_u32 v{vCB}, v{vCF}, 6, v{vCB}
    v_lshlrev_b32 v{vCF}, 1, v{vCB}
    s_lshl_b32 s{sPC}, s2, 15
    s_lshl_b32 s{sB}, s{sW}, 6
    s_add_u32 s{sPC}, s{sPC}, s{sB}
    s_add_u32 s{sPC}, s{sPC}, {WS_P}
    """), 100)
    ph.stream(items("".join(f"v_accvgpr_read_b32 v{XR1+i}, a{48+i}\n" for i in range(12))), 20)
    ml = moe_loads(50, sPF)
    g2 = ph.stream(ml[:4] + split_m(ml[4:], 4)[1], g1 + 1, None, step=4)
    its = []
    for (R, seg) in ((GA, 2), (CB, 4), (SB, 3), (GB, 5)):
        its += [("s", f"s_mov_b32 s{sXL}, {WS_MOD + seg*2048}"), ("m", f"buffer_load_dwordx4 {V(R)}, v{vCF}, {srd(WS)}, s{sXL} offen"), ("m", f"buffer_load_dwordx4 {V(R+4)}, v{vCF}, {srd(WS)}, s{sXL} offen offset:64")]
    g2 = ph.stream(its, max(g2 + 1, 386), None, step=3)
    ph.stream(pload(0, P1R), max(g2 + 1, int(E_("P1G", "420"))), None, step=4)
    for c in range(4):
        g3 = ph.stream(epi(0, c), 128 + 32 * (c + 1) + 6); assert g3 < 256 + 32 * c - 2, g3
    for c in range(3): ph.stream(epi(1, c), 384 + 32 * (c + 1) + 6)
    for i in range(2, 64):
        lo = 8 * (i - 3)
        if i < 32 and piece(i) == 2: lo = max(lo, Z0 + 1)
        if i < 32 and piece(i) == 3: lo = max(lo, Z2 + 1)
        ph.stream(oread(i), lo, 8 * i - 5)
    if g.TS:
        ph.put("x", g.ts, 255)
        for gp in (E_("TSO") or "").split(","):
            if gp: ph.put("x", lambda k: g.ts(k, True), int(gp))
    ph.emit()
    print("oproj: overloaded placements", ph.over, file=sys.stderr)
    g.run(epi(1, 3))
    g.run(pload(1, P2R))
    g.ts()

def allred(k, regs, op="v_add_f32", tmp=None):
    for pat in ("quad_perm:[1,0,3,2]", "quad_perm:[2,3,0,1]", "row_half_mirror", "row_mirror"):
        for r in regs: k(f"{op}_dpp v{r}, v{r}, v{r} {pat} row_mask:0xf bank_mask:0xf")
    for sw in ("v_permlane16_swap_b32", "v_permlane32_swap_b32"):
        for r, t in zip(regs, tmp): k(f"v_mov_b32 v{t}, v{r}")
        for r, t in zip(regs, tmp): k(f"{sw} v{r}, v{t}")
        for r, t in zip(regs, tmp): k(f"{op} v{r}, v{r}, v{t}")
def unpack(k, dst, src, n):
    for i in range(n // 2):
        k(f"v_lshlrev_b32 v{dst+2*i}, 16, v{src+i}\nv_and_b32 v{dst+2*i+1}, 0xffff0000, v{src+i}")
def pack(k, dst, src, n):
    for i in range(n // 2): k(f"v_cvt_pk_bf16_f32 v{dst+i}, v{src+2*i}, v{src+2*i+1}")
def bf1(k, r): k(f"v_cvt_pk_bf16_f32 v{r}, v{r}, v{r}\nv_and_b32 v{r}, 0xffff0000, v{r}")

def sent_wait(g, regs, reload_items, name, sleep=2):
    k = g.k
    lp, ok = k.lab(name + "_l"), k.lab(name + "_ok")
    k(f"s_mov_b32 s{sD}, 0")
    k.label(lp)
    k("s_waitcnt vmcnt(0)")
    if len(regs) == 1: m = regs[0]
    else:
        m = 3
        k(f"v_max_u32 v3, v{regs[0]}, v{regs[1]}")
        rest = regs[2:]
        for i in range(0, len(rest) - 1, 2): k(f"v_max3_u32 v3, v3, v{rest[i]}, v{rest[i+1]}")
        if len(rest) % 2: k(f"v_max_u32 v3, v3, v{rest[-1]}")
    k(f"""v_cmp_eq_u32 vcc, -1, v{m}
    s_add_u32 s{sD}, s{sD}, 1
    s_cbranch_vccz {ok}
    s_cmp_ge_u32 s{sD}, {SPIN}
    s_cbranch_scc1 {ok}
    s_sleep {sleep}""")
    g.run(reload_items)
    k(f"s_branch {lp}")
    k.label(ok)
    k.vm = []

def part_wait(g, T12, R):
    k = g.k
    lp, ok = k.lab("P2_l"), k.lab("P2_ok")
    k(f"s_mov_b32 s{sD}, 0")
    k.label(lp)
    k("s_waitcnt vmcnt(0)")
    for x in range(8): k(f"v_max_u32 v{48+x}, v{R+4*x}, v{R+4*x+1}\nv_max3_u32 v{48+x}, v{48+x}, v{R+4*x+2}, v{R+4*x+3}")
    k(f"""v_max3_u32 v3, v48, v49, v50
    v_max3_u32 v3, v3, v51, v52
    v_max3_u32 v3, v3, v53, v54
    v_max_u32 v3, v3, v55
    v_cmp_eq_u32 vcc, -1, v3
    s_add_u32 s{sD}, s{sD}, 1
    s_cbranch_vccz {ok}
    s_cmp_ge_u32 s{sD}, {SPIN}
    s_cbranch_scc1 {ok}
    s_sleep {E_("PSL", "2")}""")
    pl = pload(T12, R)
    for x in range(8):
        sk = k.lab("P2_s")
        k(f"v_cmp_eq_u32 vcc, -1, v{48+x}\ns_cbranch_vccz {sk}\ns_mov_b64 exec, vcc")
        g.run(pl[2 * x:2 * x + 2])
        k("s_mov_b64 exec, -1")
        k.label(sk)
    k(f"s_branch {lp}")
    k.label(ok)
    k.vm = []

GW, K0 = 8, 16
def token(g, PR, XR, D, sTOK, key):
    k = g.k; T = 48
    unpack(k, D, PR, 8)
    for x in range(1, 8):
        unpack(k, T, PR + 4 * x, 8)
        for i in range(0, 8, 2): k(f"v_pk_add_f32 v[{D+i}:{D+i+1}], v[{D+i}:{D+i+1}], v[{T+i}:{T+i+1}]")
    pack(k, T, D, 8); unpack(k, D, T, 8)
    for i in range(0, 8, 2): k(f"v_pk_mul_f32 v[{D+i}:{D+i+1}], v[{D+i}:{D+i+1}], v[{GA+i}:{GA+i+1}]")
    pack(k, T, D, 8); unpack(k, D, T, 8); unpack(k, T, XR, 8)
    for i in range(0, 8, 2): k(f"v_pk_add_f32 v[{D+i}:{D+i+1}], v[{D+i}:{D+i+1}], v[{T+i}:{T+i+1}]")
    pack(k, XR, D, 8); unpack(k, D, XR, 8)
    k(f"""v_pk_add_f32 v[{T}:{T+1}], v[{D}:{D+1}], v[{D+2}:{D+3}]
    v_pk_add_f32 v[{T+2}:{T+3}], v[{D+4}:{D+5}], v[{D+6}:{D+7}]
    v_pk_add_f32 v[{T}:{T+1}], v[{T}:{T+1}], v[{T+2}:{T+3}]
    v_add_f32 v{T}, v{T}, v{T+1}""")
    allred(k, [T], tmp=[T + 1])
    k(f"v_mul_f32 v{T}, {H(-1/512)}, v{T}")
    for i in range(0, 8, 2): k(f"v_pk_add_f32 v[{D+8+i}:{D+9+i}], v[{D+i}:{D+i+1}], v[{T}:{T+1}] op_sel_hi:[1,0]")
    k(f"v_pk_mul_f32 v[{T+2}:{T+3}], v[{D+8}:{D+9}], v[{D+8}:{D+9}]\nv_pk_mul_f32 v[{T+4}:{T+5}], v[{D+8}:{D+9}], v[{GW}:{GW+1}]")
    for i in range(2, 8, 2):
        k(f"v_pk_fma_f32 v[{T+2}:{T+3}], v[{D+8+i}:{D+9+i}], v[{D+8+i}:{D+9+i}], v[{T+2}:{T+3}]")
        k(f"v_pk_fma_f32 v[{T+4}:{T+5}], v[{D+8+i}:{D+9+i}], v[{GW+i}:{GW+i+1}], v[{T+4}:{T+5}]")
    k(f"v_add_f32 v{T+2}, v{T+2}, v{T+3}\nv_add_f32 v{T+4}, v{T+4}, v{T+5}")
    allred(k, [T + 2, T + 4], tmp=[T + 3, T + 5])
    k(f"""v_mov_b32 v{T}, {H(1e-5)}
    v_fmac_f32 v{T}, {H(1/512)}, v{T+2}
    v_rsq_f32 v{T}, v{T}
    v_fma_f32 v{T+4}, v{T+4}, v{T}, v{K0}
    v_ashrrev_i32 v{T+5}, 31, v{T+4}
    v_or_b32 v{T+5}, 0x80000000, v{T+5}
    v_xor_b32 v{T+5}, v{T+5}, v{T+4}
    v_and_b32 v{T+5}, 0xfffff800, v{T+5}
    v_or_b32 v{key}, s{sTOK}, v{T+5}""")
def token2(g, XR, D, HP, OP):
    k = g.k; T = 48
    for i in range(0, 8, 2): k(f"v_pk_mul_f32 v[{D+8+i}:{D+9+i}], v[{D+8+i}:{D+9+i}], v[{T}:{T+1}] op_sel_hi:[1,0]")
    for i in range(0, 8, 2): k(f"v_pk_fma_f32 v[{D+8+i}:{D+9+i}], v[{D+8+i}:{D+9+i}], v[{CB+i}:{CB+i+1}], v[{SB+i}:{SB+i+1}]")
    pack(k, HP, D + 8, 8)
def token3(g, D, HP, OP):
    k = g.k
    unpack(k, D + 8, HP, 8)
    for i in range(0, 8, 2): k(f"v_pk_mul_f32 v[{D+8+i}:{D+9+i}], v[{D+8+i}:{D+9+i}], v[{GB+i}:{GB+i+1}]")
    pack(k, OP, D + 8, 8); unpack(k, D + 8, OP, 8)
    for i in range(0, 8, 2): k(f"v_pk_add_f32 v[{D+8+i}:{D+9+i}], v[{D+8+i}:{D+9+i}], v[{D+i}:{D+i+1}]")
    pack(k, OP, D + 8, 8)

def tail(g):
    k = g.k
    D1, D2, H1, H2, O1, O2, KEY1, KEY2 = 64, 80, 20, 24, 56, 60, 17, 18
    GU, WDF = 96, [128 + i for i in range(32)] + [224 + i for i in range(32)]
    nP2 = 8
    unpack(k, 48, WRR, 8)
    for i in range(0, 8, 2): k(f"v_pk_mul_f32 v[{GW+i}:{GW+i+1}], v[{48+i}:{49+i}], v[{CB+i}:{CB+i+1}]")
    k(f"v_mul_f32 v{K0}, v48, v{SB}")
    for i in range(1, 8): k(f"v_fmac_f32 v{K0}, v{48+i}, v{SB+i}")
    allred(k, [K0], tmp=[19])
    slow, ok = k.lab("P1_slow"), k.lab("P1_ok")
    def chk(regs):
        t = f"v_max_u32 v3, v{regs[0]}, v{regs[1]}\n"
        for i in range(2, len(regs), 2): t += f"v_max3_u32 v3, v3, v{regs[i]}, v{regs[i+1]}\n"
        return t + "v_cmp_eq_u32 vcc, -1, v3\n"
    r1 = list(range(P1R, P1R + 32))
    k(chk(r1) + f"s_cbranch_vccnz {slow}")
    k.label(ok)
    g.tail.append(f"{slow}:\n    s_mov_b32 s{sD}, 0\n{slow}_l:\n    s_sleep 2\n" + "".join("    " + it[1] + "\n" for it in pload(0, P1R)) +
                  f"    s_add_u32 s{sD}, s{sD}, 1\n    s_waitcnt vmcnt(0)\n" + "".join("    " + x + "\n" for x in chk(r1).strip().split("\n")) +
                  f"    s_cbranch_vccz {ok}\n    s_cmp_lt_u32 s{sD}, {SPIN}\n    s_cbranch_scc1 {slow}_l\n    s_branch {ok}")
    token(g, P1R, XR1, D1, sTOK1, KEY1); token2(g, XR1, D1, H1, O1); token3(g, D1, H1, O1)
    for i in range(16):
        k(f"v_accvgpr_read_b32 v48, a{PRE+i}\nv_lshlrev_b32 v{GU+2*i}, 16, v48\nv_and_b32 v{GU+2*i+1}, 0xffff0000, v48")
    g.ts()
    part_wait(g, 1, P2R)
    g.ts()
    token(g, P2R, XR2, D2, sTOK2, KEY2)
    k(f"""v_max_u32 v19, v{KEY1}, v{KEY2}
    v_max_u32 v19, 1, v19
    s_lshl_b32 s{sB}, s{sW}, 2
    v_mov_b32 v47, s{sB}
    ds_write_b32 v47, v19
    v_mov_b32 v47, 0""")
    token2(g, XR2, D2, H2, O2)
    k(f"""s_waitcnt lgkmcnt(0)
    s_barrier
    ds_read_b128 v[52:55], v47
    v_cmp_gt_u32 vcc, v{KEY1}, v{KEY2}""")
    for i in range(4): k(f"v_cndmask_b32 v{28+i}, v{H2+i}, v{H1+i}, vcc\nv_cndmask_b32 v{40+i}, v{XR2+i}, v{XR1+i}, vcc")
    for i in range(4): k(f"v_min_u32 v{28+i}, -2, v{28+i}\nv_min_u32 v{40+i}, -2, v{40+i}")
    k(f"""s_lshl_b32 s{sB}, s2, 6
    s_add_u32 s{sB}, s{sB}, {WS_KEY}
    s_lshl_b32 s{sC}, s2, 11
    s_add_u32 s{sC}, s{sC}, {WS_CAND}
    v_max_u32 v52, v52, v53
    v_max3_u32 v52, v52, v54, v55
    v_cmp_eq_u32 vcc, v52, v19
    s_cbranch_vccz L_notbest
    buffer_store_dword v19, v5, {srd(WS)}, s{sB} offen {WT}
    buffer_store_dwordx4 v[28:31], v1, {srd(WS)}, s{sC} offen {WT}
    buffer_store_dwordx4 v[40:43], v1, {srd(WS)}, s{sC} offen offset:1024 {WT}""")
    k.label("L_notbest")
    token3(g, D2, H2, O2)
    for i in range(32):
        k(f"v_accvgpr_read_b32 v48, a{PRE+16+i}\nv_lshlrev_b32 v{WDF[2*i]}, 16, v48\nv_and_b32 v{WDF[2*i+1]}, 0xffff0000, v48")
    k(f"""v_lshlrev_b32 v4, 6, v0
    s_mov_b32 s{sKEY}, {WS_KEY}
    s_mov_b32 s{sD}, 0""")
    k.label("L_kl")
    k(f"""buffer_load_dword v3, v4, {srd(WS)}, s{sKEY} offen {WT}
    s_add_u32 s{sD}, s{sD}, 1
    s_waitcnt vmcnt(0)
    v_cmp_eq_u32 vcc, 0, v3
    s_cbranch_vccz L_kd
    s_cmp_ge_u32 s{sD}, {SPIN}
    s_cbranch_scc1 L_kd
    s_sleep {E_("KSL", "3")}
    s_branch L_kl""")
    k.label("L_kd")
    allred(k, [3], op="v_max_u32", tmp=[19])
    k(f"""s_lshl_b32 s{sB}, s{sW}, 2
    v_mov_b32 v47, s{sB}
    ds_write_b32 v47, v3 offset:64
    v_mov_b32 v47, 0
    s_waitcnt lgkmcnt(0)
    s_barrier
    ds_read_b128 v[52:55], v47 offset:64
    v_lshlrev_b32 v4, 2, v0
    v_max_u32 v52, v52, v53
    v_max3_u32 v52, v52, v54, v55
    v_readfirstlane_b32 s{sKEY}, v52
    s_and_b32 s{sIDX}, s{sKEY}, 2047
    s_lshr_b32 s{sB}, s{sIDX}, 7
    s_sub_u32 s{sC}, 15, s{sB}
    s_min_u32 s{sB}, s{sB}, s{sC}
    s_lshl_b32 s{sB}, s{sB}, 16
    s_and_b32 s{sCND}, s{sIDX}, 124
    s_lshl_b32 s{sCND}, s{sCND}, 9
    s_add_u32 s{sCND}, s{sCND}, s{sB}
    s_add_u32 s{sCND}, s{sCND}, {WS_CAND}""")
    hl = [("m", f"buffer_load_dword v19, v4, {srd(WS)}, s{sCND} offen {WT}")]
    g.run(hl)
    g.ts()
    for (sT, O) in ((sTOK1, O1), (sTOK2, O2)):
        k(f"""s_lshl_b32 s{sB}, s{sT}, 10
        s_cmp_eq_u32 s{sT}, s{sIDX}
        s_cselect_b32 s{sB}, {OOB}, s{sB}
        buffer_store_dwordx2 v[{O}:{O+1}], v{vCB}, {srd(OUT)}, s{sB} offen {E_("OP", "")}
        buffer_store_dwordx2 v[{O+2}:{O+3}], v{vCB}, {srd(OUT)}, s{sB} offen offset:32 {E_("OP", "")}""")
    k(f"s_cmp_ge_u32 s{sCG}, 224\ns_cbranch_scc1 L_nprod")
    lp, ok = "L_hl", "L_hok"
    k(f"s_mov_b32 s{sD}, 0\ns_waitcnt vmcnt(4)")
    k.label(lp)
    k(f"""v_cmp_eq_u32 vcc, -1, v19
    s_add_u32 s{sD}, s{sD}, 1
    s_cbranch_vccz {ok}
    s_cmp_ge_u32 s{sD}, {SPIN}
    s_cbranch_scc1 {ok}""")
    g.run(hl)
    k(f"s_waitcnt vmcnt(0)\ns_branch {lp}")
    k.label(ok)
    k(f"v_lshlrev_b32 v48, 16, v19\nv_and_b32 v50, 0xffff0000, v19")
    for m in range(2):
        for i in range(0, 8, 2):
            d = 64 + 8 * m + i
            k(f"v_pk_mul_f32 v[{d}:{d+1}], v[{GU+16*m+i}:{GU+16*m+i+1}], v[48:49] op_sel_hi:[1,0]")
    for m in range(2):
        for i in range(0, 8, 2):
            d = 64 + 8 * m + i
            k(f"v_pk_fma_f32 v[{d}:{d+1}], v[{GU+16*m+8+i}:{GU+16*m+8+i+1}], v[50:51], v[{d}:{d+1}] op_sel_hi:[1,0,1]")
    k(g.red16(64))
    k(f"""v_and_b32 v50, 15, v2
    v_cmp_eq_u32 vcc, 0, v50
    v_mov_b32 v51, 1024
    v_cndmask_b32 v51, v51, v0, vcc
    ds_write_b128 v51, v[64:67] offset:256
    v_lshlrev_b32 v50, 2, v50
    s_waitcnt lgkmcnt(0)
    s_barrier
    s_cmp_lg_u32 s{sW}, 0
    s_cbranch_scc1 L_nprod
    ds_read_b32 v64, v50 offset:256
    ds_read_b32 v65, v50 offset:320
    ds_read_b32 v66, v50 offset:384
    ds_read_b32 v67, v50 offset:448
    v_cmp_gt_u32 vcc, 8, v2
    v_mov_b32 v51, {OOB}
    v_cndmask_b32 v51, v51, v50, vcc
    s_lshl_b32 s{sB}, s{sCG}, 6
    s_add_u32 s{sB}, s{sB}, {WS_ACT}
    v_add_f32 v64, v64, v65
    v_add_f32 v66, v66, v67
    v_add_f32 v64, v64, v66""")
    bf1(k, 64)
    k(f"""v_mov_b32_dpp v65, v64 row_ror:8 row_mask:0xf bank_mask:0xf
    v_mul_f32 v66, {H(-LOG2E)}, v64
    v_exp_f32 v66, v66
    v_add_f32 v66, 1.0, v66
    v_rcp_f32 v66, v66
    v_mul_f32 v64, v64, v66""")
    bf1(k, 64)
    k("v_mul_f32 v64, v64, v65")
    bf1(k, 64)
    k(f"buffer_store_dword v64, v51, {srd(WS)}, s{sB} offen {WT}")
    k.label("L_nprod")
    k.vm = []; k.lg = []
    k(f"s_cmp_ge_u32 s{sC2}, 64\ns_cbranch_scc1 L_fin")
    k(f"""v_lshlrev_b32 v4, 6, v0
    v_cmp_gt_u32 vcc, 224, v0
    v_mov_b32 v51, {OOB}
    v_cndmask_b32 v4, v51, v4, vcc
    s_mov_b32 s{sB}, {WS_ACT}
    v_and_b32 v52, 7, v2
    s_lshl_b32 s{sC}, s{sC2}, 3
    v_add_u32 v52, s{sC}, v52            ; column
    v_lshrrev_b32 v53, 5, v52
    v_lshlrev_b32 v53, 6, v53
    v_and_b32 v54, 12, v52
    v_lshl_add_u32 v53, v54, 2, v53
    v_bfe_u32 v54, v52, 4, 1
    v_lshl_add_u32 v53, v54, 3, v53
    v_and_b32 v54, 2, v52
    v_lshl_add_u32 v53, v54, 1, v53
    v_lshlrev_b32 v54, 2, v52
    s_mov_b32 s{sC}, {WS_MOD + 5*2048}
    buffer_load_dword v55, v54, {srd(WS)}, s{sC} offen""")
    al = [("m", f"buffer_load_dwordx4 v[80:83], v4, {srd(WS)}, s{sB} offen {WT}"), ("m", f"buffer_load_dwordx4 v[84:87], v4, {srd(WS)}, s{sB} offen offset:16 {WT}"),
          ("m", f"buffer_load_dword v88, v53, {srd(WS)}, s{sCND} offen {WT}"), ("m", f"buffer_load_dword v89, v53, {srd(WS)}, s{sCND} offen offset:1024 {WT}")]
    k(f"s_sleep {E_('ASL', '8')}")
    g.run(al)
    k(f"""s_and_b32 s{sC}, s{sKEY}, 0xfffff800
    s_or_b32 s{sC}, s{sC}, 0x400
    v_mov_b32 v90, s{sC}
    v_not_b32 v91, v90
    v_ashrrev_i32 v91, 31, v91
    v_or_b32 v91, 0x80000000, v91
    v_xor_b32 v90, v90, v91""")
    bf1(k, 90)
    k(f"""v_mul_f32 v90, {H(-LOG2E)}, v90
    v_exp_f32 v90, v90
    v_add_f32 v90, 1.0, v90
    v_rcp_f32 v90, v90""")
    bf1(k, 90)
    sent_wait(g, list(range(80, 90)), al, "ACT", sleep=3)
    for r in range(8):
        for i in range(0, 8, 2):
            w = WDF[8 * r + i]; a = 80 + (r & ~1); sel = r & 1
            if r == 0: k(f"v_pk_mul_f32 v[{64+i}:{65+i}], v[{w}:{w+1}], v[{a}:{a+1}] op_sel_hi:[1,0]")
            else: k(f"v_pk_fma_f32 v[{64+i}:{65+i}], v[{w}:{w+1}], v[{a}:{a+1}], v[{64+i}:{65+i}] op_sel:[0,{sel},0] op_sel_hi:[1,{sel},1]")
    for i in range(4): k(f"v_permlane32_swap_b32 v{64+i}, v{68+i}")
    for i in range(4): k(f"v_add_f32 v{64+i}, v{64+i}, v{68+i}")
    for i in range(2): k(f"v_permlane16_swap_b32 v{64+i}, v{66+i}")
    for i in range(2): k(f"v_add_f32 v{64+i}, v{64+i}, v{66+i}")
    for pat in ("quad_perm:[1,0,3,2]", "quad_perm:[2,3,0,1]", "row_half_mirror", "row_mirror"):
        for i in range(2): k(f"v_add_f32_dpp v{64+i}, v{64+i}, v{64+i} {pat} row_mask:0xf bank_mask:0xf")
    k(f"""v_and_b32 v50, 15, v2
    v_cmp_eq_u32 vcc, 0, v50
    v_lshrrev_b32 v51, 1, v0
    v_mov_b32 v50, 1024
    v_cndmask_b32 v51, v50, v51, vcc
    ds_write_b64 v51, v[64:65] offset:2048
    v_and_b32 v50, 7, v2
    v_lshlrev_b32 v50, 2, v50
    v_and_b32 v51, 1, v52
    v_cmp_eq_u32 vcc, 0, v51
    v_lshlrev_b32 v91, 16, v88
    v_and_b32 v88, 0xffff0000, v88
    v_cndmask_b32 v88, v88, v91, vcc
    v_lshlrev_b32 v91, 16, v89
    v_and_b32 v89, 0xffff0000, v89
    v_cndmask_b32 v89, v89, v91, vcc
    s_waitcnt lgkmcnt(0)
    s_barrier
    s_cmp_lg_u32 s{sW}, 0
    s_cbranch_scc1 L_fin
    ds_read_b32 v64, v50 offset:2048
    ds_read_b32 v65, v50 offset:2080
    ds_read_b32 v66, v50 offset:2112
    ds_read_b32 v67, v50 offset:2144
    v_cmp_gt_u32 vcc, 8, v2
    v_lshlrev_b32 v52, 1, v52
    v_mov_b32 v51, {OOB}
    v_cndmask_b32 v52, v51, v52, vcc
    s_lshl_b32 s{sB}, s{sIDX}, 10
    v_add_f32 v64, v64, v65
    v_add_f32 v66, v66, v67
    v_add_f32 v64, v64, v66""")
    bf1(k, 64)
    k("v_mul_f32 v64, v64, v90"); bf1(k, 64)
    k("v_add_f32 v64, v64, v88"); bf1(k, 64)
    k("v_mul_f32 v64, v64, v55"); bf1(k, 64)
    k(f"""v_add_f32 v64, v64, v89
    v_cvt_pk_bf16_f32 v64, v64, v64
    buffer_store_short v64, v52, {srd(OUT)}, s{sB} offen""")

def verify_all(lines):
    tot = 0
    for name, (n1, n2, slow) in {"p0": (0, 15, False), "p3": (3, 12, False), "p1": (1, 14, True), "redo0": (0, 15, False), "redo3": (3, 12, False)}.items():
        def decide(lab, c):
            if lab.endswith("_redo"): return name.startswith("redo")
            if lab.endswith("_max"): return c == 0
            if lab.endswith("_maxd"): return c >= min(2, n1 if "t1" in lab else n2)
            if lab == "L_t1_zero": return n1 == 0
            if lab == "L_t1_diag": return n1 == 1
            if lab == "L_t1_loop": return c % 2 < min(n1 - 2, 1)
            if lab == "L_t2_loop": return c % 3 < 2
            if "_slow" in lab and not lab.endswith("_l"): return slow
            if "_ok" in lab or lab in ("L_kd", "L_hok"): return (c >= 2) if slow and ("P2" in lab or "ACT" in lab or lab in ("L_kd", "L_hok")) else True
            if lab == "L_notbest": return slow
            return False
        T = trace(lines, decide)
        e = verify(T)
        tot += len(e)
        print(f"verify {name}: {len(T)} instrs, {len(e)} problems", file=sys.stderr)
        for x in e[:12]: print("   ", x, file=sys.stderr)
    assert tot == 0
```

```python
import sys, os
HERE = os.path.dirname(os.path.abspath(__file__))

NAME = "adaLN_cond__compressed_kv_cla__moe_arch_mod__prompt"

KA = dict(x=0, ckv=8, wq=16, wuk=24, wuv=32, wo=40, bx=48, wr=56, wg=64, wu=72, wd=80, c=88, wmod=96, out=104, dbg=112, ws=120)

WS_MOD = 0x0
WS_KEY = 0x4000
WS_R = 0x5000
WS_ACT = 0x8000
WS_XF = 0x100000
WS_X1 = 0x600000
WS_H2 = 0x800000
WS_GP, WS_UP, WS_DP = 0xA00000, 0xC00000, 0xE00000
WS_Q = 0x1000000
WS_KV = 0x2000000
WS_CTX = 0x4000000
WS_P = 0x5000000
WS_SIZE = 0x10000000

LOG2E = 1.4426950408889634
QSCALE = LOG2E / (128.0 ** 0.5)

import struct
def f2u(f):
    return struct.unpack("<I", struct.pack("<f", f))[0]

class Kern:
    def __init__(self, name, vgprs, sgprs=96, wg_y=False):
        self.name = name; self.lines = []; self.vgprs = vgprs; self.sgprs = sgprs
    def __call__(self, s):
        for ln in s.strip("\n").split("\n"):
            self.lines.append("    " + ln.strip())
    def label(self, l):
        self.lines.append(f"{l}:")
    def text(self):
        hdr = f".globl {self.name}\n.p2align 8\n.type {self.name},@function\n{self.name}:\n"
        return hdr + "\n".join(self.lines) + "\n"
    def desc(self):
        acc = (self.vgprs + 3) // 4 * 4
        return f""".amdhsa_kernel {self.name}
  .amdhsa_next_free_vgpr {self.vgprs}
  .amdhsa_next_free_sgpr {self.sgprs}
  .amdhsa_accum_offset {acc}
  .amdhsa_group_segment_fixed_size 0
  .amdhsa_kernarg_size 128
  .amdhsa_user_sgpr_count 2
  .amdhsa_user_sgpr_kernarg_segment_ptr 1
  .amdhsa_system_sgpr_workgroup_id_x 1
.end_amdhsa_kernel
"""

def mts(k, n):
    if os.environ.get("M_TS"):
        k(f"{'s_memrealtime' if os.environ.get('M_RT') else 's_memtime'} vcc\ns_waitcnt lgkmcnt(0)\ns_mov_b32 s{84+n}, vcc_lo")

def mts_dump(k, lab):
    if os.environ.get("M_TS"):
        k(f"""s_waitcnt vmcnt(0)""")
        mts(k, 13)
        k(f"""s_load_dwordx2 s[44:45], s[0:1], {KA['dbg']}
        s_waitcnt lgkmcnt(0)
        s_mov_b32 s46, 256
        s_mov_b32 s47, 0x00020000
        s_and_b32 s30, s2, 63
        s_cmp_lg_u32 s30, {int(os.environ.get("M_TS"))}
        s_cbranch_scc1 {lab}
        s_lshr_b32 s30, s2, 6
        s_lshl_b32 s30, s30, 6
        v_mov_b32 v6, s30
        s_mov_b64 exec, 1""")
        k("v_mov_b32 v4, s84\nbuffer_store_dword v4, v6, s[44:47], 0 offen offset:56")
        for n in range(14):
            k(f"""s_sub_u32 s31, s{84+n}, s84
            v_mov_b32 v4, s31
            buffer_store_dword v4, v6, s[44:47], 0 offen offset:{4*n}""")

def srd(k, s, ptr_lo, nbytes):
    k(f"""s_mov_b32 s{s}, s{ptr_lo}
    s_mov_b32 s{s+1}, s{ptr_lo+1}
    s_mov_b32 s{s+2}, {nbytes}
    s_mov_b32 s{s+3}, 0x00020000""")

def wave_allreduce_add(k, v, t):
    k(f"""s_nop 1
    v_add_f32_dpp {v}, {v}, {v} quad_perm:[1,0,3,2] row_mask:0xf bank_mask:0xf
    s_nop 1
    v_add_f32_dpp {v}, {v}, {v} quad_perm:[2,3,0,1] row_mask:0xf bank_mask:0xf
    s_nop 1
    v_add_f32_dpp {v}, {v}, {v} row_half_mirror row_mask:0xf bank_mask:0xf
    s_nop 1
    v_add_f32_dpp {v}, {v}, {v} row_mirror row_mask:0xf bank_mask:0xf
    v_mov_b32 {t}, {v}
    s_nop 1
    v_permlane16_swap_b32 {v}, {t}
    v_add_f32 {v}, {v}, {t}
    v_mov_b32 {t}, {v}
    s_nop 1
    v_permlane32_swap_b32 {v}, {t}
    v_add_f32 {v}, {v}, {t}""")

def gen_mod():
    k = Kern("k0_mod_kernel", 64, 40)
    k(f"""s_cmp_ge_u32 s2, 48
    s_cbranch_scc1 L_k0_conv
    s_load_dwordx2 s[4:5], s[0:1], {KA['c']}
    s_load_dwordx2 s[6:7], s[0:1], {KA['wmod']}
    s_load_dwordx2 s[20:21], s[0:1], {KA['ws']}
    v_and_b32 v1, 7, v0            ; c8
    v_lshrrev_b32 v2, 3, v0        ; kg
    s_waitcnt lgkmcnt(0)""")
    srd(k, 8, 4, 1024)
    srd(k, 12, 6, 512 * 6144)
    srd(k, 16, 20, WS_SIZE)
    k(f"""v_lshlrev_b32 v3, 4, v2        ; kg*16
    buffer_load_dwordx4 v[4:7], v3, s[8:11], 0 offen
    s_mov_b32 s22, 49152
    v_mul_lo_u32 v8, v2, s22
    v_lshl_add_u32 v8, v1, 4, v8   ; kg*8*6144 + c8*16
    s_lshl_b32 s23, s2, 7          ; wg*128""")
    for i in range(8):
        k(f"s_add_u32 s{24+i}, s23, {i*6144}")
    for i in range(8):
        k(f"buffer_load_dwordx4 v[{16+4*i}:{19+4*i}], v8, s[12:15], s{24+i} offen")
    k("s_waitcnt vmcnt(8)")
    for i in range(4):
        k(f"v_lshlrev_b32 v{48+2*i}, 16, v{4+i}")
        k(f"v_and_b32 v{49+2*i}, 0xffff0000, v{4+i}")
    k(f"s_mov_b32 s32, {f2u(-LOG2E):#x}")
    for i in range(8):
        k(f"v_mul_f32 v{56+i}, s32, v{48+i}")
    for i in range(8):
        k(f"v_exp_f32 v{56+i}, v{56+i}")
    k("s_nop 0")
    for i in range(8):
        k(f"v_add_f32 v{56+i}, 1.0, v{56+i}")
    for i in range(8):
        k(f"v_rcp_f32 v{56+i}, v{56+i}")
    k("s_nop 0")
    for i in range(8):
        k(f"v_mul_f32 v{48+i}, v{48+i}, v{56+i}")
    for i in range(4):
        k(f"v_cvt_pk_bf16_f32 v{56+i}, v{48+2*i}, v{49+2*i}")
    for i in range(4):
        k(f"v_lshlrev_b32 v{48+2*i}, 16, v{56+i}")
        k(f"v_and_b32 v{49+2*i}, 0xffff0000, v{56+i}")
    k("s_waitcnt vmcnt(0)")
    for j in range(8):
        k(f"v_mov_b32 v{8+j}, 0")
    for i in range(8):
        for d in range(4):
            k(f"v_lshlrev_b32 v56, 16, v{16+4*i+d}")
            k(f"v_and_b32 v57, 0xffff0000, v{16+4*i+d}")
            k(f"v_fmac_f32 v{8+2*d}, v{48+i}, v56")
            k(f"v_fmac_f32 v{9+2*d}, v{48+i}, v57")
    k(f"""v_lshlrev_b32 v3, 8, v2
    v_lshl_add_u32 v3, v1, 5, v3     ; kg*256 + c8*32
    ds_write_b128 v3, v[8:11]
    ds_write_b128 v3, v[12:15] offset:16
    v_and_b32 v4, 63, v0             ; col
    v_lshrrev_b32 v5, 6, v0          ; part
    v_lshlrev_b32 v6, 11, v5         ; part*8*256
    v_lshl_add_u32 v6, v4, 2, v6
    s_waitcnt lgkmcnt(0)
    s_barrier""")
    for i in range(8):
        k(f"ds_read_b32 v{16+i}, v6 offset:{i*256}")
    k("s_waitcnt lgkmcnt(0)")
    for i in range(1, 8):
        k(f"v_add_f32 v16, v16, v{16+i}")
    k(f"""v_lshlrev_b32 v7, 8, v5
    v_lshl_add_u32 v7, v4, 2, v7
    ds_write_b32 v7, v16 offset:16384
    s_waitcnt lgkmcnt(0)
    s_barrier
    v_cmp_gt_u32 vcc, 64, v0
    s_and_saveexec_b64 s[34:35], vcc
    s_cbranch_execz L_k0_done
    v_lshlrev_b32 v7, 2, v0""")
    for i in range(8):
        k(f"ds_read_b32 v{16+i}, v7 offset:{16384+i*256}")
    k("s_waitcnt lgkmcnt(0)")
    for i in range(1, 8):
        k(f"v_add_f32 v16, v16, v{16+i}")
    k(f"""v_cvt_pk_bf16_f32 v16, v16, v16
    v_and_b32 v16, 0xffff0000, v16
    s_lshr_b32 s33, s2, 3
    s_cmp_eq_u32 s33, 1
    s_cselect_b32 s36, 1, 0
    s_cmp_eq_u32 s33, 4
    s_cselect_b32 s36, 1, s36
    s_cmp_eq_u32 s36, 0
    s_cbranch_scc1 L_k0_noadd
    v_add_f32 v16, 1.0, v16
    v_cvt_pk_bf16_f32 v16, v16, v16
    v_and_b32 v16, 0xffff0000, v16""")
    k.label("L_k0_noadd")
    k(f"""s_lshl_b32 s33, s2, 8
    buffer_store_dword v16, v7, s[16:19], s33 offen offset:{WS_MOD}
    s_cmp_lg_u32 s2, 0
    s_cbranch_scc1 L_k0_done
    v_mov_b32 v17, 0
    buffer_store_dword v17, v7, s[16:19], 0 offen offset:{0}""" if False else f"""s_lshl_b32 s33, s2, 8
    buffer_store_dword v16, v7, s[16:19], s33 offen
    v_mov_b32 v17, 0
    v_mov_b32 v18, 0
    v_mov_b32 v19, 0
    v_lshlrev_b32 v20, 1, v7
    s_lshl_b32 s33, s2, 9
    s_add_u32 s33, s33, 0x10000
    buffer_store_dwordx2 v[18:19], v20, s[16:19], s33 offen
    s_cmp_gt_u32 s2, 8
    s_cbranch_scc1 L_k0_done
    s_lshl_b32 s33, s2, 8
    s_add_u32 s33, s33, {0x8000 - 256}
    s_cmp_eq_u32 s2, 0
    s_cselect_b32 s33, {WS_KEY}, s33
    buffer_store_dword v17, v7, s[16:19], s33 offen""")
    k("s_endpgm")
    k.label("L_k0_conv")
    k(f"""s_cmp_ge_u32 s2, 176
    s_cbranch_scc1 L_k0_done
    s_load_dwordx2 s[6:7], s[0:1], {KA['ckv']}
    s_load_dwordx2 s[20:21], s[0:1], {KA['ws']}
    s_load_dwordx2 s[24:25], s[0:1], {KA['wuk']}
    s_load_dwordx2 s[26:27], s[0:1], {KA['wuv']}
    v_and_b32 v1, 63, v0            ; lane j
    v_lshrrev_b32 v2, 6, v0         ; wave
    s_nop 0
    v_readfirstlane_b32 s22, v2
    s_sub_u32 s3, s2, 48
    s_waitcnt lgkmcnt(0)""")
    srd(k, 12, 6, 2048 * 1024)
    srd(k, 16, 20, WS_SIZE)
    srd(k, 28, 24, 512 * 8192)
    srd(k, 32, 26, 512 * 8192)
    k(f"""s_lshl_b32 s23, s3, 4
    s_lshl_b32 s22, s22, 1
    s_add_u32 s23, s23, s22          ; row0
    s_lshl_b32 s24, s23, 10
    s_add_u32 s25, s24, 1024
    v_lshlrev_b32 v3, 4, v1
    buffer_load_dwordx4 v[12:15], v3, s[12:15], s24 offen
    buffer_load_dwordx4 v[16:19], v3, s[12:15], s25 offen
    s_lshr_b32 s36, s3, 3
    s_lshl_b32 s36, s36, 9
    v_add_u32 v4, s36, v0
    v_lshrrev_b32 v5, 3, v4
    v_and_b32 v5, 511, v5
    v_lshlrev_b32 v5, 13, v5
    v_and_b32 v6, 7, v4
    v_lshl_add_u32 v5, v6, 7, v5
    s_and_b32 s37, s2, 7
    s_lshl_b32 s37, s37, 10
    s_cmp_lt_u32 s36, 4096
    s_cselect_b32 s28, s28, s32
    s_cselect_b32 s29, s29, s33
    buffer_load_dword v7, v5, s[28:31], s37 offen
    v_lshrrev_b32 v21, 1, v1
    v_lshlrev_b32 v21, 10, v21
    v_and_b32 v22, 1, v1
    v_lshl_add_u32 v21, v22, 9, v21
    s_lshr_b32 s26, s23, 5
    s_lshl_b32 s26, s26, 15
    s_and_b32 s27, s23, 31
    s_lshl_b32 s27, s27, 4
    s_add_u32 s26, s26, s27
    s_add_u32 s38, s26, {WS_XF + 0x200000}
    s_add_u32 s39, s38, 16
    s_waitcnt vmcnt(1)
    buffer_store_dwordx4 v[12:15], v21, s[16:19], s38 offen
    buffer_store_dwordx4 v[16:19], v21, s[16:19], s39 offen
    s_waitcnt vmcnt(0)""")
    k.label("L_k0_done")
    k("s_endpgm")
    return k, (176, 512, 16384 + 2048)

def gen_prep():
    k = Kern("k1_prep_kernel", 64, 40)
    k(f"""s_cmp_ge_u32 s2, 256
    s_cbranch_scc1 L_k1_done
    s_load_dwordx2 s[4:5], s[0:1], {KA['x']}
    s_load_dwordx2 s[6:7], s[0:1], {KA['ckv']}
    s_load_dwordx2 s[20:21], s[0:1], {KA['ws']}
    v_and_b32 v1, 63, v0            ; lane j
    v_lshrrev_b32 v2, 6, v0         ; wave
    s_nop 0
    v_readfirstlane_b32 s22, v2
    s_waitcnt lgkmcnt(0)""")
    srd(k, 8, 4, 2048 * 1024)
    srd(k, 12, 6, 2048 * 1024)
    srd(k, 16, 20, WS_SIZE)
    k(f"""s_lshl_b32 s23, s2, 3
    s_lshl_b32 s22, s22, 1
    s_add_u32 s23, s23, s22          ; row0
    s_lshl_b32 s24, s23, 10          ; row0*1024
    s_add_u32 s25, s24, 1024
    v_lshlrev_b32 v3, 4, v1          ; j*16
    buffer_load_dwordx4 v[4:7], v3, s[8:11], s24 offen
    buffer_load_dwordx4 v[8:11], v3, s[8:11], s25 offen
    buffer_load_dwordx4 v[12:15], v3, s[12:15], s24 offen
    buffer_load_dwordx4 v[16:19], v3, s[12:15], s25 offen
    v_lshlrev_b32 v20, 5, v1          ; j*32 bytes (8 f32)
    buffer_load_dwordx4 v[24:27], v20, s[16:19], 0 offen            ; sa
    buffer_load_dwordx4 v[28:31], v20, s[16:19], 0 offen offset:16
    buffer_load_dwordx4 v[32:35], v20, s[16:19], 0 offen offset:2048 ; 1+ca
    buffer_load_dwordx4 v[36:39], v20, s[16:19], 0 offen offset:2064
    v_lshrrev_b32 v21, 1, v1
    v_lshlrev_b32 v21, 10, v21
    v_and_b32 v22, 1, v1
    v_lshl_add_u32 v21, v22, 9, v21
    s_lshr_b32 s26, s23, 5
    s_lshl_b32 s26, s26, 15
    s_and_b32 s27, s23, 31
    s_lshl_b32 s27, s27, 4
    s_add_u32 s26, s26, s27
    s_add_u32 s26, s26, {WS_XF}
    s_add_u32 s27, s26, 16            ; row1
    s_add_u32 s28, s26, 0x200000
    s_add_u32 s29, s26, 0x200010
    s_mov_b32 s30, {f2u(1.0/512):#x}
    s_mov_b32 s31, {f2u(1e-5):#x}
    """)
    for r in range(2):
        X = 4 + 4 * r
        k(f"s_waitcnt vmcnt({7 - r})")
        for i in range(4):
            k(f"v_lshlrev_b32 v{40+2*i}, 16, v{X+i}")
            k(f"v_and_b32 v{41+2*i}, 0xffff0000, v{X+i}")
        k("v_add_f32 v48, v40, v41")
        for i in range(2, 8):
            k(f"v_add_f32 v48, v48, v{40+i}")
        wave_allreduce_add(k, "v48", "v49")
        k("v_mul_f32 v48, s30, v48")
        for i in range(8):
            k(f"v_sub_f32 v{40+i}, v{40+i}, v48")
        k("v_mul_f32 v48, v40, v40")
        for i in range(1, 8):
            k(f"v_fmac_f32 v48, v{40+i}, v{40+i}")
        wave_allreduce_add(k, "v48", "v49")
        k(f"""v_mov_b32 v49, s31
        v_fmac_f32 v49, s30, v48
        v_rsq_f32 v49, v49
        s_waitcnt vmcnt({max(0, 0)})""" if r == 0 else f"""v_mov_b32 v49, s31
        v_fmac_f32 v49, s30, v48
        v_rsq_f32 v49, v49
        s_nop 0""")
        for i in range(8):
            k(f"v_mul_f32 v{40+i}, v{40+i}, v49")
        for i in range(8):
            k(f"v_fma_f32 v{40+i}, v{40+i}, v{32+i}, v{24+i}")
        for i in range(4):
            k(f"v_cvt_pk_bf16_f32 v{52+4*r+i}, v{40+2*i}, v{41+2*i}")
        k(f"buffer_store_dwordx4 v[{52+4*r}:{55+4*r}], v21, s[16:19], s{26+r} offen")
    k(f"""buffer_store_dwordx4 v[12:15], v21, s[16:19], s28 offen
    buffer_store_dwordx4 v[16:19], v21, s[16:19], s29 offen""")
    k.label("L_k1_done")
    k("s_endpgm")
    return k, (256, 256, 0)

def gen_gemm(mode):
    qkv = mode == "qkv"
    nm = "k2_qkv_kernel" if qkv else "k4_oproj_kernel"
    P = "L_k2" if qkv else "L_k4"
    k = Kern(nm, 256, 96)
    PITCH = 8192 if qkv else 1024
    WF = 16
    ACC = 64
    XF = 128
    VA_LO = 8
    k(f"""s_cmp_ge_u32 s2, 256
    s_cbranch_scc1 {P}_done
    s_load_dwordx2 s[20:21], s[0:1], {KA['ws']}""")
    if qkv:
        k(f"""s_load_dwordx2 s[40:41], s[0:1], {KA['wq']}
        s_load_dwordx2 s[42:43], s[0:1], {KA['wuk']}
        s_load_dwordx2 s[44:45], s[0:1], {KA['wuv']}""")
    else:
        k(f"s_load_dwordx2 s[40:41], s[0:1], {KA['wo']}")
    k(f"""v_and_b32 v1, 63, v0            ; lane
    v_lshrrev_b32 v2, 6, v0         ; wave
    s_nop 0
    v_readfirstlane_b32 s22, v2     ; wv
    v_lshrrev_b32 v3, 4, v1         ; l>>4
    v_and_b32 v5, 15, v1            ; c
    v_lshrrev_b32 v6, 2, v5         ; c>>2
    v_xor_b32 v6, v6, v3
    v_lshlrev_b32 v6, 6, v6
    v_and_b32 v7, 3, v5
    v_lshl_add_u32 v6, v7, 4, v6
    s_mov_b32 s23, {PITCH}
    v_mul_lo_u32 v4, v3, s23
    v_add_u32 v4, v4, v6
    v_and_b32 v3, 15, v1            ; i
    v_lshrrev_b32 v5, 2, v3         ; r
    v_and_b32 v6, 3, v3             ; c4
    v_lshrrev_b32 v7, 4, v1
    v_and_b32 v7, 1, v7             ; grp
    v_lshrrev_b32 v3, 5, v1         ; hf
    v_lshlrev_b32 v3, {11 if qkv else 10}, v3   ; hf*8rows (qkv) or hf*4rows (oproj)
    v_lshl_add_u32 v3, v5, 8, v3
    v_lshl_add_u32 v3, v7, 5, v3
    v_lshl_add_u32 v3, v6, 3, v3""")
    for nb in range(4):
        k(f"""v_xor_b32 v6, {nb}, v5
        v_lshl_add_u32 v{VA_LO+nb}, v6, 6, v3
        v_add_u32 v{VA_LO+4+nb}, 0x10000, v{VA_LO+nb}""")
    k(f"""v_lshlrev_b32 v5, 4, v1         ; lane*16
    v_add_u32 v6, 4096, v5
    s_waitcnt lgkmcnt(0)""")
    srd(k, 8, 20, WS_SIZE)
    BOFF = 1024 if qkv else 2048
    if qkv:
        k(f"""s_and_b32 s24, s2, 7
        s_lshl_b32 s24, s24, 2
        s_lshr_b32 s25, s2, 3
        s_and_b32 s25, s25, 3
        s_add_u32 s24, s24, s25          ; j
        s_mul_i32 s24, s24, 3            ; hb
        s_lshr_b32 s25, s2, 5
        s_lshl_b32 s25, s25, 3
        s_add_u32 s25, s25, s22          ; tb32
        s_add_u32 s26, s24, 3""")
    else:
        k(f"""s_and_b32 s24, s2, 7           ; ks
        s_lshr_b32 s27, s2, 3
        s_and_b32 s27, s27, 3            ; nq
        s_lshr_b32 s25, s2, 5
        s_lshl_b32 s25, s25, 3
        s_add_u32 s25, s25, s22          ; tb32""")
    k(f"""s_mul_i32 s28, s22, {16*PITCH}
    s_lshl_b32 s29, s22, 12""")

    def set_w(sr, hbreg):
        k(f"""s_cmp_lt_u32 {hbreg}, 32
        s_cselect_b32 s30, s40, s42
        s_cselect_b32 s31, s41, s43
        s_cmp_lt_u32 {hbreg}, 64
        s_cselect_b32 s30, s30, s44
        s_cselect_b32 s31, s31, s45
        s_and_b32 s32, {hbreg}, 31
        s_lshl_b32 s32, s32, 8
        s_add_u32 s{sr}, s30, s32
        s_addc_u32 s{sr+1}, s31, 0
        s_sub_u32 s{sr+2}, 0x400000, s32
        s_cmp_lt_u32 {hbreg}, s26
        s_cselect_b32 s{sr+2}, s{sr+2}, 0
        s_mov_b32 s{sr+3}, 0x00020000""")

    def x_soff():
        if qkv:
            k(f"""s_cmp_lt_u32 s24, 32
            s_cselect_b32 s33, 0, 0x200000
            s_lshl_b32 s34, s25, 15
            s_add_u32 s33, s33, s34
            s_add_u32 s33, s33, {WS_XF}""")
        else:
            k(f"""s_lshl_b32 s33, s25, 18
            s_lshl_b32 s34, s24, 15
            s_add_u32 s33, s33, s34
            s_add_u32 s33, s33, {WS_CTX}""")

    def x_loads(lo, hi):
        if os.environ.get("X_NOX"): return
        for s in range(lo, hi):
            if s % 4 == 0:
                k(f"s_add_u32 s34, s33, {(s//4)*4096}")
            if os.environ.get("X_NAT"):
                k(f"buffer_load_dwordx4 v[{XF+4*s}:{XF+4*s+3}], v63, s[48:51], s52 offen offset:{s*32}")
                continue
            k(f"buffer_load_dwordx4 v[{XF+4*s}:{XF+4*s+3}], v5, s[8:11], s34 offen offset:{(s%4)*1024}")

    def dma(sr, q):
        if os.environ.get("X_NODMA") and sr == 16:
            for i in range(4): k("buffer_load_dwordx4 v4, s[16:19], s28 offen lds" if False else "s_nop 0")
            return
        for i in range(4):
            k(f"""s_add_u32 m0, s29, {q*32768 + i*1024}
            s_add_u32 s35, s28, {(q*128 + i*4)*PITCH}
            buffer_load_dwordx4 v4, s[{sr}:{sr+3}], s35 offen lds""")

    def reads(q, s, wset):
        if os.environ.get("X_NOREAD"): return
        hi = q >= 2
        base = (q % 2) * 32768 + s * 4096
        for nb in range(4):
            va = VA_LO + (4 if hi else 0) + nb
            w = WF + wset * 16 + nb * 4
            k(f"ds_read_b64_tr_b16 v[{w}:{w+1}], v{va} offset:{base}")
            k(f"ds_read_b64_tr_b16 v[{w+2}:{w+3}], v{va} offset:{base+BOFF}")

    def mfmas(xs, wset, vtype, first):
        if os.environ.get("X_NOMFMA"): return
        for nb in range(4):
            w = WF + wset * 16 + nb * 4
            a = ACC + nb * 16
            x = XF + 4 * xs
            c = "0" if first else f"v[{a}:{a+15}]"
            if vtype:
                k(f"v_mfma_f32_32x32x16_bf16 v[{a}:{a+15}], v[{x}:{x+3}], v[{w}:{w+3}], {c}")
            else:
                k(f"v_mfma_f32_32x32x16_bf16 v[{a}:{a+15}], v[{w}:{w+3}], v[{x}:{x+3}], {c}")

    def body(tag, first, vtype, last_only=False):
        k.label(f"{P}_{tag}")
        waits = [24, 16, 8, 8] if first else [16, 16, 16, 8]
        if last_only: waits = [24, 12, 0, 0]
        for q in range(4):
            for s in range(8):
                xs = q * 8 + s
                if s < 7:
                    reads(q, s + 1, (s + 1) & 1)
                    k("s_waitcnt lgkmcnt(8)")
                    mfmas(xs, s & 1, vtype, first=(xs == 0))
                else:
                    if last_only and q == 3:
                        k("s_waitcnt lgkmcnt(0)")
                        mfmas(xs, s & 1, vtype, False)
                    else:
                        k(f"s_waitcnt vmcnt({waits[q]}) lgkmcnt(0)")
                        k("s_barrier")
                        if not last_only:
                            dma(16, q)
                        reads((q + 1) % 4, 0, 0)
                        mfmas(xs, s & 1, vtype, False)

    def epilogue(vtype, scale):
        k("s_nop 7\ns_nop 7")
        for nb in range(4):
            a = ACC + nb * 16
            if scale:
                for i in range(16):
                    k(f"v_mul_f32 v{a+i}, s36, v{a+i}")
            for i in range(8):
                k(f"v_cvt_pk_bf16_f32 v{a+i}, v{a+2*i}, v{a+2*i+1}")
            for half in range(2):
                f = nb * 2 + half
                va = "v5" if f < 4 else "v6"
                if not os.environ.get("X_NOSTORE"):
                    k(f"buffer_store_dwordx4 v[{a+4*half}:{a+4*half+3}], {va}, s[8:11], s37 offen offset:{(f%4)*1024}")
        k("s_nop 1")

    if qkv:
        set_w(12, "s24")
        k("s_add_u32 s27, s24, 1")
        set_w(16, "s27")
    else:
        k(f"""s_lshl_b32 s30, s24, 19
        s_lshl_b32 s31, s27, 8
        s_add_u32 s30, s30, s31
        s_add_u32 s12, s40, s30
        s_addc_u32 s13, s41, 0
        s_sub_u32 s14, 0x400000, s30
        s_mov_b32 s15, 0x00020000""")
    if os.environ.get("X_EMPTY"): k("s_endpgm")
    if os.environ.get("X_NAT"):
        k(f"""s_load_dwordx2 s[54:55], s[0:1], {KA['ckv']}
        v_and_b32 v63, 31, v1
        v_lshlrev_b32 v63, 10, v63
        v_lshrrev_b32 v62, 5, v1
        v_lshl_add_u32 v63, v62, 4, v63
        s_lshl_b32 s52, s25, 15
        s_waitcnt lgkmcnt(0)""")
        srd(k, 48, 54, 2048*1024)
    x_soff()
    for q in range(4):
        x_loads(q * 8, q * 8 + 8)
        if not os.environ.get("X_NODMA0"): dma(12, q)
    k("s_waitcnt vmcnt(36)" if True else "")
    k("s_barrier")
    reads(0, 0, 0)

    def out_params():
        k(f"""s_and_b32 s38, s24, 31            ; h
        s_cmp_lt_u32 s24, 32
        s_cbranch_scc0 {P}_notq{out_params.n}""")
        k(f"""s_mov_b32 s36, {f2u(QSCALE):#x}
        s_lshl_b32 s37, s38, 19
        s_lshl_b32 s39, s25, 13
        s_add_u32 s37, s37, s39
        s_add_u32 s37, s37, {WS_Q}
        s_branch {P}_outdone{out_params.n}""")
        k.label(f"{P}_notq{out_params.n}")
        k(f"""s_mov_b32 s36, 1.0
        s_lshl_b32 s37, s38, 20
        s_lshr_b32 s39, s25, 1
        s_lshl_b32 s39, s39, 15
        s_add_u32 s37, s37, s39
        s_and_b32 s39, s25, 1
        s_lshl_b32 s39, s39, 13
        s_add_u32 s37, s37, s39
        s_add_u32 s37, s37, {WS_KV}
        s_cmp_lt_u32 s24, 64
        s_cselect_b32 s39, 0, 16384
        s_add_u32 s37, s37, s39""")
        k.label(f"{P}_outdone{out_params.n}")
        out_params.n += 1
    out_params.n = 0

    if qkv:
        k(f"""s_cmp_lt_u32 s24, 64
        s_cbranch_scc0 {P}_first_v""")
        body("first_qk", True, False)
        out_params()
        epilogue(False, True)
        k(f"s_branch {P}_next")
        body("first_v", True, True)
        out_params()
        epilogue(True, False)
        k.label(f"{P}_next")
        k(f"""s_add_u32 s27, s24, 1
        s_cmp_ge_u32 s27, s26
        s_cbranch_scc1 {P}_done
        s_mov_b32 s12, s16
        s_mov_b32 s13, s17
        s_mov_b32 s14, s18
        s_mov_b32 s15, s19
        s_mov_b32 s24, s27
        s_add_u32 s27, s24, 1""")
        set_w(16, "s27")
        k(f"""s_cmp_lg_u32 s24, 32
        s_cbranch_scc1 {P}_nosw""")
        x_soff()
        x_loads(0, 32)
        k("s_waitcnt vmcnt(0)")
        k.label(f"{P}_nosw")
        k(f"""s_cmp_lt_u32 s24, 64
        s_cbranch_scc0 {P}_rest_v""")
        body("rest_qk", False, False)
        out_params()
        epilogue(False, True)
        k(f"s_branch {P}_next")
        body("rest_v", False, True)
        out_params()
        epilogue(True, False)
        k(f"s_branch {P}_next")
    else:
        body("first_o", True, False, last_only=True)
        k(f"""s_lshl_b32 s37, s24, 21
        s_lshl_b32 s39, s25, 15
        s_add_u32 s37, s37, s39
        s_lshl_b32 s39, s27, 13
        s_add_u32 s37, s37, s39
        s_add_u32 s37, s37, {WS_P}""")
        epilogue(False, False)
    k.label(f"{P}_done")
    k("s_endpgm")
    return k, (256, 512, 131072)

KERNELS = []

def header(launches):
    h = open(os.path.join(HERE, NAME + ".s.ref")).read().split("; Override launch geometry")[0]
    out = h
    for (nm, g, b, lds) in launches:
        out += f"; @launch kernel={nm} grid=({g},1,1) block=({b},1,1) lds={lds}\n"
    out += '.amdgcn_target "amdgcn-amd-amdhsa--gfx950"\n.text\n'
    return out

def build(kernels):
    launches = [(k.name, g, b, lds) for (k, (g, b, lds)) in kernels]
    dup = os.environ.get("LAUNCH_DUP")
    if dup:
        L2 = []
        for l in launches:
            L2.append(l)
            if l[0].startswith(dup): L2.append(l)
        launches = L2
    ne, ns = int(os.environ.get("EMPTY_END", "0")), int(os.environ.get("EMPTY_START", "0"))
    if ne or ns:
        ke = Kern("k9_empty_kernel", 8, 16); ke("s_endpgm")
        kernels = list(kernels) + [(ke, (1, 64, 0))]
        launches = [("k9_empty_kernel", 1, 64, 0)] * ns + launches + [("k9_empty_kernel", 1, 64, 0)] * ne
    out = header(launches)
    for (k, _) in kernels:
        out += k.text()
    out += '.section .rodata,"a"\n'
    for (k, _) in kernels:
        out += ".p2align 6\n" + k.desc()
    return out

def all_kernels(n=99):
    import gen_gemm2
    ks = [gen_gemm2.gen_gemm2("kv")]
    if not (os.environ.get("F23", "1") == "1" and os.environ.get("F0", "0") == "1"): ks = [gen_mod()] + ks
    if n > 2:
        import gen_attn2 as gen_attn
        if os.environ.get("F23", "1") != "1": ks += [gen_attn.gen_attn()]
        if not (os.environ.get("F23", "1") == "1" and os.environ.get("F234", "1") == "1"):
            ks += [gen_gemm2.gen_gemm2("oproj")]
    FU = os.environ.get("FUSE", "1")
    if n > 4 and FU == "0":
        import gen_tail
        ks += gen_tail.gen_tail()
    if n > 4 and FU == "2":
        import gen_fused
        ks += [gen_fused.gen_k5f()]
    return ks[:n]

if __name__ == "__main__":
    sys.path.insert(0, HERE)
    n = int(sys.argv[2]) if len(sys.argv) > 2 else 99
    ks = all_kernels(n)
    path = sys.argv[1] if len(sys.argv) > 1 else os.path.join(HERE, NAME + ".s")
    open(path, "w").write(build(ks[:n]))
    print("wrote", path)
```

```python
import os
from gen import *

THR = float(2.0 ** 30)

def gen_attn():
    k = Kern("k3_attn_kernel", 256, 96)
    P = "L_k3"
    Q, O, SA, SB, NM, PA, PB, F0, F1 = 16, 48, 112, 128, 144, 160, 168, 176, 208
    T0 = 240
    class LQ:
        def __init__(self): self.q = []
        def issue(self, tag): self.q.append(tag)
        def wait(self, tag):
            idx = max(i for i, t in enumerate(self.q) if t == tag)
            n = len(self.q) - 1 - idx
            k(f"s_waitcnt lgkmcnt({min(n, 15)})")
            self.q = self.q[idx + 1:]
        def waitall(self):
            k("s_waitcnt lgkmcnt(0)"); self.q = []
    lq = LQ()
    E_ = os.environ.get
    def rdK(a, s, F):
        if E_("A_NORD"): lq.issue(("K", a, s)); return
        k(f"ds_read_b128 v[{F+4*s}:{F+4*s+3}], v1 offset:{a*8192 + s*1024}"); lq.issue(("K", a, s))
    def rdV(a, db, ks, F):
        f = db * 2 + ks
        if E_("A_NORD"): lq.issue(("V", a, db, ks)); return
        k(f"ds_read_b128 v[{F+4*f}:{F+4*f+3}], v1 offset:{16384 + a*8192 + f*1024}"); lq.issue(("V", a, db, ks))
    def mfmaQK(S, F, s):
        c = f"v[{NM}:{NM+15}]" if s == 0 else f"v[{S}:{S+15}]"
        if E_("A_NOMFMA"): return
        k(f"v_mfma_f32_32x32x16_bf16 v[{S}:{S+15}], v[{F+4*s}:{F+4*s+3}], v[{Q+4*s}:{Q+4*s+3}], {c}")
    def mfmaPV(Pb, F, db, ks):
        f = db * 2 + ks
        o = O + 16 * db
        if E_("A_NOMFMA"): return
        k(f"v_mfma_f32_32x32x16_bf16 v[{o}:{o+15}], v[{F+4*f}:{F+4*f+3}], v[{Pb+4*ks}:{Pb+4*ks+3}], v[{o}:{o+15}]")
    def softmax_ops(S, Pb, lin, lout):
        ops = []
        if E_("A_NOSM") and lin != lout: return ["s_nop 0"] * 40
        E = lambda j: f"v_exp_f32 v{S+j}, v{S+j}"
        A = lambda j: f"v_add_f32 {lout}, {lin if j == 0 else lout}, v{S+j}"
        C = lambda i: f"v_cvt_pk_bf16_f32 v{Pb+i}, v{S+2*i}, v{S+2*i+1}"
        ops.append(E(0)); ops.append(E(1))
        for j in range(16):
            ops.append(A(j))
            if j + 2 < 16: ops.append(E(j + 2))
            if j % 2 == 1: ops.append(C(j // 2))
        return ops
    def exact(S, lreg, also=None, tagn=""):
        t, u, d, sc = f"v{T0}", f"v{T0+1}", f"v{T0+2}", f"v{T0+3}"
        k(f"v_max3_f32 {t}, v{S}, v{S+1}, v{S+2}")
        for j in range(3, 15, 2):
            k(f"v_max3_f32 {t}, {t}, v{S+j}, v{S+j+1}")
        k(f"v_max_f32 {t}, {t}, v{S+15}")
        k(f"""v_mov_b32 {u}, {t}
        s_nop 1
        v_permlane32_swap_b32 {t}, {u}
        v_max_f32 {t}, {t}, {u}
        v_max_f32 {d}, {t}, v11          ; delta
        v_max_f32 {sc}, 0, {d}
        v_exp_f32 {sc}, -{sc}
        v_mov_b32 v11, 0
        v_sub_f32 v{NM}, v{NM}, {d}""")
        for j in range(16):
            k(f"v_sub_f32 v{S+j}, v{S+j}, {d}")
        if also is not None:
            for j in range(16):
                k(f"v_sub_f32 v{also+j}, v{also+j}, {d}")
        for j in range(1, 16):
            k(f"v_mov_b32 v{NM+j}, v{NM}")
        k(f"v_mul_f32 {lreg}, {lreg}, {sc}")
        for j in range(64):
            k(f"v_mul_f32 v{O+j}, v{O+j}, {sc}")
        k("s_nop 1")

    if os.environ.get("A_TS"):
        k(f"""s_memtime s[60:61]
        s_memrealtime s[62:63]
        s_load_dwordx2 s[68:69], s[0:1], {KA['dbg']}""")
    k(f"""s_cmp_ge_u32 s2, 256
    s_cbranch_scc1 {P}_done
    s_load_dwordx2 s[20:21], s[0:1], {KA['ws']}
    v_lshrrev_b32 v2, 6, v0
    v_and_b32 v0, 63, v0            ; lane
    s_nop 0
    v_readfirstlane_b32 s14, v2     ; wv
    v_lshlrev_b32 v2, 4, v0         ; lane*16
    s_waitcnt lgkmcnt(0)""")
    srd(k, 8, 20, WS_SIZE)
    k(f"""s_lshr_b32 s15, s14, 2          ; g
    s_sub_u32 s16, 7, s14
    s_cmp_lt_u32 s14, 4
    s_cselect_b32 s16, s14, s16
    s_and_b32 s22, s2, 7
    s_lshl_b32 s22, s22, 2
    s_lshr_b32 s23, s2, 3
    s_and_b32 s23, s23, 3
    s_add_u32 s22, s22, s23           ; head
    s_lshr_b32 s23, s2, 5             ; pair p
    s_lshl_b32 s12, s22, 20
    s_add_u32 s12, s12, {WS_KV}
    s_lshl_b32 s24, s14, 13
    s_add_u32 s12, s12, s24           ; + wave*8192
    s_lshl_b32 s13, s22, 19
    s_add_u32 s13, s13, {WS_Q}
    s_lshl_b32 s25, s22, 13
    s_add_u32 s25, s25, {WS_CTX}
    s_lshl_b32 s26, s15, 15
    v_add_u32 v1, s26, v2
    s_mov_b32 s27, s24
    v_and_b32 v8, 31, v0
    v_lshrrev_b32 v9, 5, v0
    v_lshlrev_b32 v9, 2, v9
    v_sub_u32 v8, v8, v9
    s_sub_u32 s17, 15, s23
    s_mov_b32 s28, s23
    s_mov_b32 s29, 0
    s_mov_b32 s30, {f2u(THR):#x}
    ; first DMA: round 0 -> slot 0""")
    def dma(off_sreg):
        if E_("A_NODMA") and off_sreg == "s36": return
        for j in range(8):
            k(f"""s_add_u32 m0, s27, {j*1024}
            s_add_u32 s31, {off_sreg}, {j*1024}
            buffer_load_dwordx4 v2, s[8:11], s31 offen lds""")
    dma("s12")
    k("s_xor_b32 s27, s27, 0x10000")
    k.label(f"{P}_tile")
    k(f"""s_lshl_b32 s32, s17, 2
    s_add_u32 s32, s32, s16            ; qb
    s_lshl_b32 s33, s32, 13
    s_add_u32 s33, s33, s13
    s_add_u32 s34, s33, 4096""")
    for s in range(8):
        k(f"buffer_load_dwordx4 v[{Q+4*s}:{Q+4*s+3}], v2, s[8:11], s{33 if s < 4 else 34} offen offset:{(s%4)*1024}")
    for j in range(64):
        k(f"v_mov_b32 v{O+j}, 0")
    for j in range(16):
        k(f"v_mov_b32 v{NM+j}, 0")
    k(f"""v_mov_b32 v3, 0
    v_mov_b32 v11, 0xff800000
    v_mov_b32 v10, 0xff800000
    s_mov_b32 s35, 1
    s_mov_b32 s18, 0                   ; r""")
    k.label(f"{P}_round")
    k(f"""s_waitcnt vmcnt(0)
    s_barrier
    s_add_u32 s36, s18, 1
    s_cmp_lt_u32 s18, s17
    s_cbranch_scc1 {P}_havenext
    s_mov_b32 s36, 0
    s_cmp_lg_u32 s29, 0
    s_cbranch_scc1 {P}_nonext""")
    k.label(f"{P}_havenext")
    k(f"""s_lshl_b32 s36, s36, 16
    s_add_u32 s36, s36, s12""")
    dma("s36")
    k.label(f"{P}_nonext")
    k(f"""s_xor_b32 s27, s27, 0x10000
    s_cmp_eq_u32 s18, s17
    s_cbranch_scc1 {P}_diag""")
    lq.q = []
    for s in range(8): rdK(0, s, F0)
    for s in range(8):
        lq.wait(("K", 0, s))
        mfmaQK(SA, F0, s)
        rdK(1, s, F1)
    k(f"""s_cmp_lg_u32 s35, 0
    s_cbranch_scc1 {P}_firstA""")
    k.label(f"{P}_firstA_ret")
    smA = softmax_ops(SA, PA, "v3", "v4")
    smB = softmax_ops(SB, PB, "v4", "v3")
    va = [(db, ks) for ks in range(2) for db in range(4)]
    pos = 0
    per = [0, 0, 7, 7, 7, 7, 6, 6]
    for s in range(8):
        lq.wait(("K", 1, s))
        mfmaQK(SB, F1, s)
        if s < 2:
            for (db, ks) in va[4*s:4*s+4]: rdV(0, db, ks, F0)
        for op in smA[pos:pos + per[s]]: k(op)
        pos += per[s]
    assert pos == len(smA)
    ANY = any(E_(x) for x in ["A_NORD", "A_NOMFMA", "A_NOSM", "A_NODMA"])
    if not ANY: k(f"""v_cmp_nge_f32 vcc, s30, v4
    s_cbranch_vccnz {P}_slowA""")
    k.label(f"{P}_slowA_ret")
    saveq_A = list(lq.q)
    pos = 0
    for n, (db, ks) in enumerate(va):
        lq.wait(("V", 0, db, ks))
        mfmaPV(PA, F0, db, ks)
        if n < 2:
            for (db2, ks2) in va[4*n:4*n+4]: rdV(1, db2, ks2, F1)
        for op in smB[pos:pos + per[n]]: k(op)
        pos += per[n]
    if not ANY: k(f"""v_cmp_nge_f32 vcc, s30, v3
    s_cbranch_vccnz {P}_slowB""")
    k.label(f"{P}_slowB_ret")
    for n, (db, ks) in enumerate(va):
        lq.wait(("V", 1, db, ks))
        mfmaPV(PB, F1, db, ks)
    k(f"""v_xor_b32 v1, 0x10000, v1
    s_add_u32 s18, s18, 1
    s_branch {P}_round""")

    k.label(f"{P}_firstA")
    k("s_nop 7\ns_nop 7")
    exact(SA, "v3")
    k(f"""s_mov_b32 s35, 0
    s_branch {P}_firstA_ret""")
    k.label(f"{P}_slowA")
    k("s_waitcnt lgkmcnt(0)")
    for s in range(8):
        k(f"ds_read_b128 v[{F1+4*s}:{F1+4*s+3}], v1 offset:{s*1024}")
    k("s_waitcnt lgkmcnt(0)")
    for s in range(8): mfmaQK(SA, F1, s)
    k("s_nop 7\ns_nop 7")
    exact(SA, "v3", also=SB)
    for op in smA: k(op)
    k(f"s_nop 1\ns_branch {P}_slowA_ret")
    k.label(f"{P}_slowB")
    k("s_waitcnt lgkmcnt(0)")
    for s in range(8):
        k(f"ds_read_b128 v[{F0+4*s}:{F0+4*s+3}], v1 offset:{8192 + s*1024}")
    k("s_waitcnt lgkmcnt(0)")
    for s in range(8): mfmaQK(SB, F0, s)
    k("s_nop 7\ns_nop 7")
    exact(SB, "v4")
    for op in smB: k(op)
    k(f"s_nop 1\ns_branch {P}_slowB_ret")

    k.label(f"{P}_diag")
    for a in range(2):
        k(f"""s_lshl_b32 s36, s15, 1
        s_add_u32 s36, s36, {a}
        s_cmp_gt_u32 s36, s16
        s_cbranch_scc1 {P}_dskip{a}""")
        for s in range(8):
            k(f"ds_read_b128 v[{F0+4*s}:{F0+4*s+3}], v1 offset:{a*8192 + s*1024}")
        for f in range(8):
            k(f"ds_read_b128 v[{F1+4*f}:{F1+4*f+3}], v1 offset:{16384 + a*8192 + f*1024}")
        k("s_waitcnt lgkmcnt(8)")
        for s in range(8): mfmaQK(SA, F0, s)
        k(f"""s_nop 7
        s_nop 7
        s_cmp_lg_u32 s36, s16
        s_cbranch_scc1 {P}_dnomask{a}""")
        for j in range(16):
            kl = 8 * (j // 4) + (j % 4)
            k(f"""v_cmp_gt_i32 vcc, {kl}, v8
            s_nop 1
            v_cndmask_b32 v{SA+j}, v{SA+j}, v10, vcc""")
        k.label(f"{P}_dnomask{a}")
        exact(SA, "v3")
        k("s_mov_b32 s35, 0")
        for op in softmax_ops(SA, PA, "v3", "v3"): k(op)
        k("s_waitcnt lgkmcnt(0)\ns_nop 1")
        for (db, ks) in va: mfmaPV(PA, F1, db, ks)
        k.label(f"{P}_dskip{a}")
    k(f"""s_nop 7
    s_nop 7
    v_mov_b32 v5, v3
    s_nop 1
    v_permlane32_swap_b32 v3, v5
    v_add_f32 v3, v3, v5
    v_sub_f32 v4, 0, v{NM}            ; m
    s_cmp_eq_u32 s35, 0
    s_cbranch_scc1 {P}_hasm
    v_mov_b32 v4, 0xf149f2ca          ; -1e30""")
    k.label(f"{P}_hasm")
    k(f"""s_barrier
    v_and_b32 v5, 0x10000, v1
    v_add_u32 v5, v5, v2               ; slot + lane*16
    s_lshl_b32 s36, s14, 13
    v_add_u32 v6, s36, v5              ; own scratch (wave*8192)
    s_sub_u32 s37, 7, s14
    s_lshl_b32 s38, s37, 13
    v_add_u32 v7, s38, v5              ; partner scratch
    v_lshlrev_b32 v9, 2, v0            ; lane*4
    s_lshl_b32 s36, s14, 9
    v_add_u32 v12, s36, v9             ; own ML
    s_lshl_b32 s37, s37, 9
    v_add_u32 v13, s37, v9             ; partner ML
    ds_write_b32 v12, v4 offset:0
    ds_write_b32 v12, v3 offset:256""".replace("ds_write_b32 v12, v4 offset:0", "v_add_u32 v12, 0x20000, v12\n    v_add_u32 v13, 0x20000, v13\n    ds_write_b32 v12, v4"))
    k(f"""s_cmp_eq_u32 s15, 0
    s_cbranch_scc0 {P}_mg1""")
    def give(base):
        for i in range(8):
            k(f"ds_write_b128 v6, v[{O+base+4*i}:{O+base+4*i+3}] offset:{i*1024}")
    def combine(base, dbs):
        k("""s_waitcnt lgkmcnt(0)
        s_barrier
        ds_read_b32 v14, v13
        ds_read_b32 v15, v13 offset:256""")
        for i in range(8):
            k(f"ds_read_b128 v[{F0+4*i}:{F0+4*i+3}], v7 offset:{i*1024}")
        k(f"""s_waitcnt lgkmcnt(8)
        v_max_f32 v5, v4, v14
        v_sub_f32 v4, v4, v5
        v_sub_f32 v14, v14, v5
        v_exp_f32 v4, v4
        v_exp_f32 v14, v14
        s_nop 0
        v_mul_f32 v3, v3, v4
        v_fmac_f32 v3, v15, v14
        v_rcp_f32 v3, v3
        s_nop 0
        v_mul_f32 v4, v4, v3
        v_mul_f32 v14, v14, v3
        s_waitcnt lgkmcnt(0)""")
        for i in range(32):
            k(f"v_mul_f32 v{O+base+i}, v{O+base+i}, v4")
            k(f"v_fmac_f32 v{O+base+i}, v{F0+i}, v14")
        for i in range(16):
            k(f"v_cvt_pk_bf16_f32 v{F1+i}, v{O+base+2*i}, v{O+base+2*i+1}")
        for i in range(4):
            k(f"buffer_store_dwordx4 v[{F1+4*i}:{F1+4*i+3}], v2, s[8:11], s39 offen offset:{i*1024}")
    def dest():
        k(f"""s_lshl_b32 s39, s32, 18
        s_add_u32 s39, s39, s25
        s_lshl_b32 s40, s15, 12
        s_add_u32 s39, s39, s40""")
    give(32); dest(); combine(0, (0, 1))
    k(f"s_branch {P}_mdone")
    k.label(f"{P}_mg1")
    give(0); dest(); combine(32, (2, 3))
    k.label(f"{P}_mdone")
    k(f"""v_xor_b32 v1, 0x10000, v1
    s_cmp_lg_u32 s29, 0
    s_cbranch_scc1 {P}_fin
    s_mov_b32 s29, 1
    s_mov_b32 s17, s28
    s_branch {P}_tile""")
    k.label(f"{P}_fin")
    if os.environ.get("A_TS"):
        k(f"""s_memtime s[64:65]
        s_memrealtime s[66:67]
        s_waitcnt lgkmcnt(0)
        s_and_b32 s70, s2, 31
        s_cmp_lg_u32 s70, 0
        s_cbranch_scc1 {P}_done
        s_cmp_lg_u32 s14, 0
        s_cbranch_scc1 {P}_done
        s_sub_u32 s64, s64, s60
        s_sub_u32 s66, s66, s62
        v_mov_b32 v4, s64
        v_mov_b32 v5, s66
        s_lshr_b32 s70, s2, 5
        s_lshl_b32 s70, s70, 3
        v_mov_b32 v6, s70
        s_mov_b32 s70, 256
        s_mov_b32 s71, 0x00020000
        s_mov_b32 s72, s68
        s_mov_b32 s73, s69
        s_mov_b32 s74, s70
        s_mov_b32 s75, s71
        buffer_store_dwordx2 v[4:5], v6, s[72:75], 0 offen""")
    k.label(f"{P}_done")
    k("s_endpgm")
    return k, (256, 512, 131072 + 4096)
```

```python
import os
from gen import *

THR = 30.0
E_ = os.environ.get
SPC = E_("SP_ctx", "sc0 sc1")

def gen_attn(k=None, vq0=None):
    F23 = k is not None
    SY_KV = 0x10000 + 0x4000
    if not F23: k = Kern("k3_attn_kernel", 256, 100)
    P = "L_k3"
    Q, O, SA, SB, NM, PA, PB, F0, F1 = 16, 48, 112, 128, 144, 160, 168, 176, 208
    S_ = [SA, SB]; P_ = [PA, PB]
    T0 = 240
    L0 = 4
    VK, VV = 1, 3
    KS, VS, ML = 0, 65536, 131072
    class LQ:
        def __init__(self): self.q = []
        def issue(self, tag): self.q.append(tag)
        def wait(self, tag):
            if tag not in self.q: return
            idx = max(i for i, t in enumerate(self.q) if t == tag)
            n = len(self.q) - 1 - idx
            k(f"s_waitcnt lgkmcnt({min(n, 15)})")
            self.q = self.q[idx + 1:]
        def waitall(self):
            k("s_waitcnt lgkmcnt(0)"); self.q = []
    lq = LQ()
    def rdK(a, s, F, vk=None):
        if E_("A_NORD"): return
        k(f"ds_read_b128 v[{F+4*s}:{F+4*s+3}], v{vk or VK} offset:{a*8192 + s*1024}"); lq.issue(("K", a, s))
    def rdV(a, n, F, vv=None):
        if E_("A_NORD"): return
        db, ks = VA[n]
        k(f"ds_read_b128 v[{F+4*n}:{F+4*n+3}], v{vv or VV} offset:{a*8192 + (db*2+ks)*1024}"); lq.issue(("V", a, n))
    VA = [(db, ks) for ks in range(2) for db in range(4)]
    def mfmaQK(S, F, s, czero=False):
        c = (f"v[{NM}:{NM+15}]" if not czero else "0") if s == 0 else f"v[{S}:{S+15}]"
        k(f"v_mfma_f32_32x32x16_bf16 v[{S}:{S+15}], v[{F+4*s}:{F+4*s+3}], v[{Q+4*s}:{Q+4*s+3}], {c}")
    def mfmaPV(Pb, F, n):
        if E_("A_NOPV"): return
        db, ks = VA[n]
        o = O + 16 * db
        k(f"v_mfma_f32_32x32x16_bf16 v[{o}:{o+15}], v[{F+4*n}:{F+4*n+3}], v[{Pb+4*ks}:{Pb+4*ks+3}], v[{o}:{o+15}]")
    def softmax_ops(S, Pb):
        E = lambda j: f"v_exp_f32 v{S+j}, v{S+j}"
        A = lambda i: f"v_pk_add_f32 v[{L0}:{L0+1}], v[{L0}:{L0+1}], v[{S+2*i}:{S+2*i+1}]"
        C = lambda i: f"v_cvt_pk_bf16_f32 v{Pb+i}, v{S+2*i}, v{S+2*i+1}"
        if E_("A_NOEXP"): E = lambda j: f"v_mov_b32 v{S+j}, v{S+j}"
        if E_("A_NOSM"): return ["s_nop 0"] * 16
        A1 = lambda j: f"v_add_f32 v{L0+(j&1)}, v{L0+(j&1)}, v{S+j}"
        ops = [E(0), E(1), E(2)]
        for j in range(16):
            if j + 3 < 16: ops.append(E(j + 3))
            ops.append(A1(j))
            if j % 2 == 1: ops.append(C(j // 2))
        return ops
    def maxops(S, t):
        k(f"v_max3_f32 {t}, v{S}, v{S+1}, v{S+2}")
        for j in range(3, 15, 2):
            k(f"v_max3_f32 {t}, {t}, v{S+j}, v{S+j+1}")
        k(f"v_max_f32 {t}, {t}, v{S+15}")
    def mask(S, vthr):
        for j in range(16):
            kl = 8 * (j // 4) + (j % 4)
            k(f"v_cmp_gt_i32 vcc, {kl}, {vthr}")
            k(f"v_cndmask_b32 v{S+j}, v{S+j}, v10, vcc")
    slow_blocks = []
    nchk = [0]
    def check(S, Ppend, premax=False):
        n = nchk[0]; nchk[0] += 1
        if E_("A_NOCHK"): return
        if not premax: maxops(S, f"v{T0}")
        k(f"""v_cmp_lt_f32 vcc, s30, v{T0}
        s_cbranch_vccnz {P}_slow{n}""")
        k.label(f"{P}_slowret{n}")
        slow_blocks.append((n, S, Ppend))
    def emit_slow(n, S, Ppend):
        t, u, d, sc = f"v{T0}", f"v{T0+1}", f"v{T0+2}", f"v{T0+3}"
        k.label(f"{P}_slow{n}")
        k(f"""s_nop 7
        s_nop 7
        v_mov_b32 {u}, {t}
        s_nop 1
        v_permlane32_swap_b32 {t}, {u}
        v_max_f32 {t}, {t}, {u}
        v_max_f32 {d}, 0, {t}
        v_exp_f32 {sc}, -{d}
        v_sub_f32 v{NM}, v{NM}, {d}""")
        for j in range(16):
            k(f"v_sub_f32 v{S+j}, v{S+j}, {d}")
        for j in range(1, 16):
            k(f"v_mov_b32 v{NM+j}, v{NM}")
        k(f"v_mul_f32 v{L0}, v{L0}, {sc}")
        k(f"v_mul_f32 v{L0+1}, v{L0+1}, {sc}")
        for j in range(64):
            k(f"v_mul_f32 v{O+j}, v{O+j}, {sc}")
        if Ppend is not None:
            for i in range(8):
                k(f"""v_lshlrev_b32 {t}, 16, v{Ppend+i}
                v_and_b32 {u}, 0xffff0000, v{Ppend+i}
                v_mul_f32 {t}, {t}, {sc}
                v_mul_f32 {u}, {u}, {sc}
                v_cvt_pk_bf16_f32 v{Ppend+i}, {t}, {u}""")
        k(f"s_nop 1\ns_branch {P}_slowret{n}")

    def dma4(ldsreg, greg, emit=True):
        if E_("A_NODMA") and greg in ("s34", "s33"): return []
        g = []
        for j in range(4):
            g.append(f"""s_add_u32 m0, {ldsreg}, {j*1024}
            s_add_u32 s31, {greg}, {j*1024}
            buffer_load_dwordx4 v2, s[8:11], s31 offen lds""")
        if emit:
            for x in g: k(x)
        return g
    def dmaV(rexpr):
        k(f"""s_lshl_b32 s36, {rexpr}, 16
        s_add_u32 s36, s36, s12
        s_add_u32 s36, s36, 16384""")
        dma4("s26", "s36")
        k("s_xor_b32 s26, s26, 0x8000")
    def addrK():
        return f"""s_add_u32 s34, s18, 2
        s_cmp_ge_u32 s34, s19
        s_cselect_b32 s37, s19, 0
        s_sub_u32 s34, s34, s37
        s_lshl_b32 s34, s34, 16
        s_add_u32 s34, s34, s12
        s_mov_b32 s35, s27
        s_xor_b32 s27, s27, 0x8000"""
    def addrV():
        return f"""s_add_u32 s33, s18, 1
        s_lshl_b32 s33, s33, 16
        s_add_u32 s33, s33, s12
        s_add_u32 s33, s33, 16384
        s_mov_b32 s32, s26
        s_xor_b32 s26, s26, 0x8000"""
    BAR = "s_waitcnt vmcnt(0) lgkmcnt(0)\ns_barrier"

    def max_list(S, t):
        ops = [f"v_max3_f32 {t}, v{S}, v{S+1}, v{S+2}", f"v_max3_f32 v{T0+1}, v{S+3}, v{S+4}, v{S+5}"]
        ops += [f"v_max3_f32 {t}, {t}, v{S+6}, v{S+7}", f"v_max3_f32 v{T0+1}, v{T0+1}, v{S+8}, v{S+9}"]
        ops += [f"v_max3_f32 {t}, {t}, v{S+10}, v{S+11}", f"v_max3_f32 v{T0+1}, v{T0+1}, v{S+12}, v{S+13}"]
        ops += [f"v_max3_f32 {t}, {t}, v{S+14}, v{S+15}", f"v_max_f32 {t}, {t}, v{T0+1}"]
        return ops
    def step(cur, qk, pv, va, ka, kslots=None, pre=None, post=None, premax=False):
        lq.q = []
        pre = pre or {}; post = post or {}; kslots = kslots or {}
        Sc, Pc, Sn, Pp = S_[cur], P_[cur], S_[1 - cur], P_[1 - cur]
        ops = softmax_ops(Sc, Pc)
        nslots = (8 if qk else 0) + (8 if pv else 0)
        mx = max_list(Sn, f"v{T0}") if (premax and qk and pv and not E_("A_NOCHK")) else []
        extra = [[] for _ in range(nslots)]
        if mx:
            for i, op in enumerate(mx): extra[nslots - 5 + i // 2].append(op)
        tot = len(ops) + len(mx)
        w = [1.0] * nslots; w[-1] = 0.35
        sw = sum(w); acc = 0.0; done = 0; cap = []
        for i in range(nslots):
            acc += tot * w[i] / sw
            c = int(round(acc)) - done; cap.append(c); done += c
        per = [max(0, cap[i] - len(extra[i])) for i in range(nslots)]
        d = sum(per) - len(ops); i = 0
        while d > 0:
            j = nslots - 1 - (i % nslots)
            if per[j] > 0: per[j] -= 1; d -= 1
            i += 1
        i = 0
        while d < 0:
            per[i % (nslots - 1)] += 1; d += 1; i += 1
        st = {"slot": 0, "pos": 0}
        def head():
            if st["slot"] in pre:
                k(pre[st["slot"]])
                if "lgkmcnt(0)" in pre[st["slot"]]: lq.q = []
        def tail():
            sl = st["slot"]
            for f in kslots.get(sl, []): rdK(ka, f, F0)
            for op in ops[st["pos"]:st["pos"] + per[sl]]: k(op)
            for op in extra[sl]: k(op)
            if sl in post: k(post[sl])
            st["pos"] += per[sl]; st["slot"] += 1
        if pv and not qk:
            for n in range(8): rdV(va, n, F1)
        if qk:
            for s in range(8):
                head()
                mfmaQK(Sn, F0, s)
                if pv and s < 4:
                    rdV(va, 2 * s, F1); rdV(va, 2 * s + 1, F1)
                tail()
        if pv:
            for n in range(8):
                head()
                lq.wait(("V", va, n))
                mfmaPV(Pp, F1, n)
                tail()
        assert st["pos"] == len(ops)

    def ts(n):
        if E_("A_TS"):
            k(f"s_memtime s[{76+2*n}:{77+2*n}]")
            if n == 2: k("s_memrealtime s[92:93]")
            if n == 3: k("s_memrealtime s[94:95]")
    if E_("A_TS"):
        k(f"""s_memtime s[60:61]
        s_memrealtime s[62:63]
        s_load_dwordx2 s[68:69], s[0:1], {KA['dbg']}""")
    k(f"""s_cmp_ge_u32 s2, 256
    s_cbranch_scc1 {P}_done
    s_load_dwordx2 s[20:21], s[0:1], {KA['ws']}
    s_load_dwordx2 s[40:41], s[0:1], {KA['wq']}
    s_load_dwordx2 s[54:55], s[0:1], {KA['wg']}
    s_load_dwordx2 s[56:57], s[0:1], {KA['wu']}
    s_load_dwordx2 s[58:59], s[0:1], {KA['wd']}
    v_lshrrev_b32 v2, 6, v0
    v_and_b32 v0, 63, v0            ; lane
    s_nop 0
    v_readfirstlane_b32 s14, v2     ; wv
    v_lshlrev_b32 v2, 4, v0         ; lane*16
    s_lshr_b32 s15, s14, 2          ; g
    s_sub_u32 s16, 7, s14
    s_cmp_lt_u32 s14, 4
    s_cselect_b32 s16, s14, s16       ; wq
    s_and_b32 s22, s2, 7
    s_lshl_b32 s22, s22, 2
    s_lshr_b32 s23, s2, 3
    s_and_b32 s23, s23, 3
    s_add_u32 s22, s22, s23           ; head
    s_lshr_b32 s23, s2, 5             ; pair p
    s_sub_u32 s17, 15, s23            ; T_A
    s_mov_b32 s28, s23                ; T_B
    v_lshrrev_b32 v3, 4, v0
    v_and_b32 v5, 15, v0
    v_lshrrev_b32 v6, 2, v5
    v_xor_b32 v6, v6, v3
    v_lshlrev_b32 v6, 6, v6
    v_and_b32 v7, 3, v5
    v_lshl_add_u32 v6, v7, 4, v6
    v_lshlrev_b32 v4, 13, v3
    v_add_u32 v4, v4, v6
    v_and_b32 v3, 15, v0
    v_lshrrev_b32 v5, 2, v3           ; r
    v_and_b32 v6, 3, v3               ; c4
    v_lshrrev_b32 v7, 4, v0
    v_and_b32 v7, 1, v7               ; grp
    v_lshrrev_b32 v3, 5, v0           ; hf
    v_lshlrev_b32 v3, 11, v3
    v_lshl_add_u32 v3, v5, 8, v3
    v_lshl_add_u32 v3, v7, 5, v3
    v_lshl_add_u32 v3, v6, 3, v3""")
    for nb in range(4):
        k(f"""v_xor_b32 v6, {nb}, v5
        v_lshl_add_u32 v{8+nb}, v6, 6, v3
        v_add_u32 v{12+nb}, 0x10000, v{8+nb}""")
    k(f"""v_add_u32 v6, 4096, v2
    s_waitcnt lgkmcnt(0)""")
    srd(k, 8, 20, WS_SIZE)
    k(f"""s_lshl_b32 s32, s22, 8
    s_add_u32 s44, s40, s32
    s_addc_u32 s45, s41, 0
    s_sub_u32 s46, 0x400000, s32
    s_mov_b32 s47, 0x00020000
    s_mul_i32 s33, s14, {16*8192}
    s_lshl_b32 s34, s14, 12
    s_cmp_eq_u32 s15, 0
    s_cselect_b32 s35, s17, s28
    s_lshl_b32 s35, s35, 2
    s_add_u32 s35, s35, s16            ; tb32
    s_lshl_b32 s35, s35, 15
    s_add_u32 s35, s35, {WS_XF}""")
    XF, ACC, WF = 128, 64, 16
    vq = vq0 if F23 else []
    def vissue(txt, tag):
        k(txt); vq.append(tag)
    def vwait(tag, extra=""):
        idx = max(i for i, t in enumerate(vq) if t == tag)
        n = len(vq) - 1 - idx
        k(f"s_waitcnt vmcnt({n}) {extra}")
        del vq[:idx + 1]
    def stage_loads(q):
        L = []
        for s in range(q * 8, q * 8 + 8):
            L.append((f"""s_add_u32 s36, s35, {(s//4)*4096}
            buffer_load_dwordx4 v[{XF+4*s}:{XF+4*s+3}], v2, s[8:11], s36 offen offset:{(s%4)*1024}""", ("qs", q)))
        W = []
        for i in range(4):
            W.append((f"""s_add_u32 m0, s34, {q*32768 + i*1024}
            s_add_u32 s37, s33, {(q*128 + i*4)*8192}
            buffer_load_dwordx4 v4, s[44:47], s37 offen lds""", ("qs", q)))
        if F23 and q < 3: return L
        return W + L
    for q in range(2):
        if F23: continue
        for (t, tag) in stage_loads(q): vissue(t, tag)
    k(f"""s_lshl_b32 s12, s22, 20
    s_add_u32 s12, s12, {WS_KV}
    s_lshr_b32 s24, s14, 2
    s_lshl_b32 s24, s24, 15           ; (w>>2)*32768
    s_add_u32 s12, s12, s24
    s_and_b32 s24, s14, 3
    s_lshl_b32 s24, s24, 12
    s_add_u32 s12, s12, s24           ; + (w&3)*4096
    s_lshl_b32 s25, s22, 13
    s_add_u32 s25, s25, {WS_CTX}
    s_lshl_b32 s13, s2, 15
    s_lshl_b32 s24, s16, 13
    s_add_u32 s13, s13, s24
    s_add_u32 s13, s13, {WS_Q}        ; Q(B) staging for (wg, wq)
    s_mov_b32 s30, {f2u(THR):#x}
    s_mov_b32 s39, {f2u(QSCALE):#x}""")
    def qreads(q, s, wset):
        hi = q >= 2
        base = (q % 2) * 32768 + s * 4096
        for nb in range(4):
            va = 8 + (4 if hi else 0) + nb
            w = WF + wset * 16 + nb * 4
            k(f"ds_read_b64_tr_b16 v[{w}:{w+1}], v{va} offset:{base}")
            k(f"ds_read_b64_tr_b16 v[{w+2}:{w+3}], v{va} offset:{base+1024}")
    def qmfmas(xs, wset, first):
        for nb in range(4):
            w = WF + wset * 16 + nb * 4
            a = ACC + nb * 16
            x = XF + 4 * xs
            c = "0" if first else f"v[{a}:{a+15}]"
            k(f"v_mfma_f32_32x32x16_bf16 v[{a}:{a+15}], v[{w}:{w+3}], v[{x}:{x+3}], {c}")
    k(f"""s_lshl_b32 s27, s14, 12
    s_add_u32 s26, s27, {VS}""")
    def kv_dma(which):
        out = []
        for j in range(4):
            lds = "s27" if which < 2 else "s26"
            lo = (32768 if which == 1 else 0) + j * 1024
            go = [0, 0x10000, 16384][which] + j * 1024
            out.append((f"""s_add_u32 m0, {lds}, {lo}
            s_add_u32 s31, s12, {go}
            buffer_load_dwordx4 v2, s[8:11], s31 offen lds""", ("kv", which)))
        return out
    vwait(("qs", 0))
    k("s_barrier")
    ts(0)
    qreads(0, 0, 0)
    pend = []
    for q in range(4):
        pend = (stage_loads(q + 2) if q < 2 else []) + pend
        if q >= 1 and not F23: pend = pend + kv_dma(q - 1)
        if F23 and q == 2:
            k(f"""s_lshl_b32 s50, s22, 6
            s_add_u32 s50, s50, {SY_KV}
            v_mov_b32 v5, 0""")
            vissue("buffer_load_dword v6, v5, s[8:11], s50 offen sc0 sc1", ("kc", 0))
        if F23 and q == 3:
            vwait(("kc", 0))
            k(f"""v_readfirstlane_b32 s51, v6
            s_mov_b32 s52, 0""")
            k.label(f"{P}_kl")
            k(f"""s_cmp_ge_u32 s51, 8
            s_cbranch_scc1 {P}_kd
            s_add_u32 s52, s52, 1
            s_cmp_ge_u32 s52, 400000
            s_cbranch_scc1 {P}_kd
            buffer_load_dword v6, v5, s[8:11], s50 offen sc0 sc1
            s_waitcnt vmcnt(0)
            v_readfirstlane_b32 s51, v6
            s_branch {P}_kl""")
            k.label(f"{P}_kd")
            pend = pend + kv_dma(0) + kv_dma(1) + kv_dma(2)
        for s in range(8):
            xs = q * 8 + s
            if s < 7:
                qreads(q, s + 1, (s + 1) & 1)
                k("s_waitcnt lgkmcnt(8)")
                qmfmas(xs, s & 1, xs == 0)
                nper = (len(pend) + (6 - s)) // (7 - s)
                for _ in range(nper):
                    t, tag = pend.pop(0); vissue(t, tag)
            elif q < 3:
                if F23 and q == 0 and ("st", 3) in vq: vwait(("st", 3))
                if ("qs", q + 1) in vq: vwait(("qs", q + 1), "lgkmcnt(0)")
                else: k("s_waitcnt lgkmcnt(0)")
                k("s_barrier")
                if F23 and q == 0:
                    k(f"""s_cmp_lg_u32 s14, 0
                    s_cbranch_scc1 {P}_nsig
                    s_lshl_b32 s50, s22, 6
                    s_add_u32 s50, s50, {SY_KV}
                    v_mov_b32 v5, 0
                    v_mov_b32 v6, 1
                    s_mov_b64 exec, 1
                    buffer_atomic_add v6, v5, s[8:11], s50 offen
                    s_mov_b64 exec, -1""")
                    k.label(f"{P}_nsig")
                qreads(q + 1, 0, 0)
                qmfmas(xs, s & 1, False)
            else:
                k("s_waitcnt lgkmcnt(0)")
                qmfmas(xs, s & 1, False)
    assert not pend
    k("s_xor_b32 s26, s26, 0x8000")
    ts(1)
    mts(k, 3)
    k("s_nop 7\ns_nop 7")
    for j in range(64):
        k(f"v_mul_f32 v{ACC+j}, s39, v{ACC+j}")
    for i in range(32):
        k(f"v_cvt_pk_bf16_f32 v{Q+i}, v{ACC+2*i}, v{ACC+2*i+1}")
    k(f"""s_lshl_b32 s24, s15, 14
    v_add_u32 v{VK}, s24, v2            ; K read base: lane*16 + g*16384 (slot 0)
    v_add_u32 v{VV}, {VS}, v{VK}        ; V read base (slot 0)
    v_and_b32 v8, 31, v0
    v_lshrrev_b32 v9, 5, v0
    v_lshlrev_b32 v9, 2, v9
    v_sub_u32 v8, v8, v9
    s_lshl_b32 s36, s15, 1
    s_sub_u32 s36, s16, s36             ; wq - 2g
    s_lshl_b32 s36, s36, 5
    v_add_u32 v8, s36, v8
    v_subrev_u32 v9, 32, v8
    v_mov_b32 v10, 0xff800000
    ; exchange buffer: V slot 1, wq*8192
    s_lshl_b32 s36, s16, 13
    s_add_u32 s36, s36, {VS + 32768}
    v_add_u32 v11, s36, v2
    s_barrier                          ; all waves done reading W stage 3
    s_cmp_eq_u32 s15, 0
    s_cbranch_scc0 {P}_qg1""")
    for i in range(8):
        k(f"ds_write_b128 v11, v[{Q+4*i}:{Q+4*i+3}] offset:{i*1024}")
    k(f"""s_waitcnt lgkmcnt(0)
    s_barrier
    s_branch {P}_qdone""")
    k.label(f"{P}_qg1")
    k("s_add_u32 s36, s13, 4096")
    for i in range(8):
        k(f"buffer_store_dwordx4 v[{Q+4*i}:{Q+4*i+3}], v2, s[8:11], s{13 if i < 4 else 36} offen offset:{(i%4)*1024} {SPC}")
    k("s_barrier")
    for i in range(8):
        k(f"ds_read_b128 v[{Q+4*i}:{Q+4*i+3}], v11 offset:{i*1024}")
    k.label(f"{P}_qdone")
    k(f"""s_add_u32 s19, s17, 1
    s_mov_b32 s29, 0
    s_waitcnt vmcnt(0) lgkmcnt(0)
    s_barrier""")
    RP = F23 and E_("RP", "0") == "1"
    if RP:
        k(f"""s_min_u32 s60, s2, 223
        s_lshr_b32 s61, s60, 3             ; tile
        s_and_b32 s62, s60, 7              ; i
        s_lshl_b32 s63, s14, 3
        v_lshrrev_b32 v13, 3, v0
        v_and_b32 v15, 7, v13
        v_add_u32 v13, s63, v13            ; tid>>3
        v_and_b32 v14, 7, v0               ; piece
        s_mov_b32 s63, 3584
        v_mul_lo_u32 v6, v13, s63
        v_lshl_add_u32 v6, v14, 4, v6
        s_mul_i32 s63, s62, {64*3584}
        s_lshl_b32 s48, s61, 7
        s_add_u32 s63, s63, s48
        s_mov_b32 s44, s54
        s_mov_b32 s45, s55
        s_mov_b32 s46, {512*3584}
        s_mov_b32 s47, 0x00020000
        buffer_load_dwordx4 v[244:247], v6, s[44:47], s63 offen
        s_mov_b32 s44, s56
        s_mov_b32 s45, s57
        buffer_load_dwordx4 v[248:251], v6, s[44:47], s63 offen
        v_lshlrev_b32 v6, 10, v15
        v_lshl_add_u32 v6, v14, 4, v6
        s_lshl_b32 s48, s14, 7
        v_add_u32 v6, s48, v6              ; src D
        s_lshl_b32 s48, s60, 13
        s_mov_b32 s44, s58
        s_mov_b32 s45, s59
        s_mov_b32 s46, {1792*1024}
        buffer_load_dwordx4 v[252:255], v6, s[44:47], s48 offen""")
    mts(k, 4)
    k.label(f"{P}_tile")
    for j in range(64):
        k(f"v_mov_b32 v{O+j}, 0")
    k(f"""v_mov_b32 v{L0}, 0
    v_mov_b32 v{L0+1}, 0
    s_mov_b32 s18, 0
    s_waitcnt vmcnt({11 if RP else 8})""")
    lq.q = []
    for s in range(8): rdK(0, s, F1)
    for s in range(8): rdK(1, s, F0)
    for s in range(8):
        lq.wait(("K", 0, s))
        mfmaQK(SA, F1, s, czero=True)
    k(f"v_xor_b32 v{VK}, 0x8000, v{VK}")
    k(f"""s_nop 7
    s_nop 7
    s_cmp_lg_u32 s17, 0
    s_cbranch_scc1 {P}_nomask0""")
    mask(SA, "v8")
    k.label(f"{P}_nomask0")
    t, u = f"v{T0}", f"v{T0+1}"
    maxops(SA, t)
    k(f"""v_mov_b32 {u}, {t}
    s_nop 1
    v_permlane32_swap_b32 {t}, {u}
    v_max_f32 {t}, {t}, {u}
    v_max_f32 {t}, 0xf149f2ca, {t}       ; floor -1e30
    v_sub_f32 v{NM}, 0, {t}""")
    for j in range(16):
        k(f"v_sub_f32 v{SA+j}, v{SA+j}, {t}")
    for j in range(1, 16):
        k(f"v_mov_b32 v{NM+j}, v{NM}")
    if E_("A_TS"):
        k(f"s_cmp_lg_u32 s29, 0\ns_cbranch_scc1 {P}_ts2b")
        ts(2)
        k(f"s_branch {P}_ts2c")
        k.label(f"{P}_ts2b")
        ts(5)
        k.label(f"{P}_ts2c")
    step(0, True, False, None, 0, kslots={4: [0, 1], 5: [2, 3], 6: [4, 5], 7: [6, 7]},
         pre={4: f"s_waitcnt vmcnt({7 if RP else 4}) lgkmcnt(0)\ns_barrier"})
    k(f"""s_nop 7
    s_cmp_lg_u32 s17, 0
    s_cbranch_scc1 {P}_nomask1""")
    mask(SB, "v9")
    k.label(f"{P}_nomask1")
    k("s_nop 3")
    check(SB, PA)
    k(addrK()); k(addrV())
    k(BAR)
    gK = dma4("s35", "s34", emit=False); gV = dma4("s32", "s33", emit=False)
    k(f"""s_cmp_eq_u32 s17, 0
    s_cbranch_scc1 {P}_diagB""")
    KB = {8: [0, 1], 9: [2, 3], 10: [4, 5], 11: [6, 7]}
    KA_ = {12: [0, 1], 13: [2, 3], 14: [4, 5], 15: [6, 7]}
    def endB():
        k(f"""v_xor_b32 v{VK}, 0x8000, v{VK}
        s_add_u32 s18, s18, 1
        s_cmp_lg_u32 s18, s17
        s_cbranch_scc1 {P}_nomask2_{endB.n}""")
        mask(SA, "v8")
        maxops(SA, f"v{T0}")
        k.label(f"{P}_nomask2_{endB.n}")
        check(SA, PB, premax=True)
        k(f"""s_cmp_eq_u32 s18, s17
        s_cbranch_scc1 {P}_diagA""")
        endB.n += 1
    endB.n = 0
    allg = gK + gV
    step(1, True, True, 0, 1, kslots=KB, post={i: allg[i] for i in range(len(allg))}, premax=True)
    endB()
    k.label(f"{P}_loop")
    preA = {12: BAR}
    postA = {11: addrK() + "\n" + addrV()}
    for i in range(4):
        if gK: postA[12 + i] = gK[i]
    step(0, True, True, 1, 0, kslots=KA_, pre=preA, post=postA, premax=True)
    k(f"v_xor_b32 v{VV}, 0x8000, v{VV}")
    check(SB, PA, premax=True)
    step(1, True, True, 0, 1, kslots=KB, post={i: gV[i] for i in range(len(gV))}, premax=True)
    endB()
    k(f"s_branch {P}_loop")
    k.label(f"{P}_diagA")
    postD = {11: addrK()}
    for i in range(4):
        if gK: postD[12 + i] = gK[i]
    step(0, True, True, 1, 0, pre=preA, post=postD)
    k(f"v_xor_b32 v{VV}, 0x8000, v{VV}")
    mask(SB, "v9")
    check(SB, PA)
    k.label(f"{P}_diagB")
    k("s_add_u32 s36, s13, 4096")
    for i in range(8):
        k(f"buffer_load_dwordx4 v[{Q+4*i}:{Q+4*i+3}], v2, s[8:11], s{13 if i < 4 else 36} offen offset:{(i%4)*1024} {SPC}")
    step(1, False, True, 0, 0)
    lq.q = []
    for n in range(8): rdV(1, n, F0)
    k("s_nop 1")
    for n in range(8):
        lq.wait(("V", 1, n))
        mfmaPV(PB, F0, n)
    k(f"v_xor_b32 v{VV}, 0x8000, v{VV}")
    if E_("A_TS"):
        k(f"s_cmp_lg_u32 s29, 0\ns_cbranch_scc1 {P}_ts3b")
        ts(3)
        k(f"s_branch {P}_ts3c")
        k.label(f"{P}_ts3b")
        ts(6)
        k.label(f"{P}_ts3c")
    k(f"""v_add_f32 v{L0}, v{L0}, v{L0+1}
    v_mov_b32 v5, v{L0}
    s_nop 1
    v_permlane32_swap_b32 v{L0}, v5
    v_add_f32 v12, v{L0}, v5              ; l
    v_sub_f32 v13, 0, v{NM}               ; m
    v_lshlrev_b32 v14, 2, v0
    s_lshl_b32 s36, s14, 9
    s_add_u32 s36, s36, {ML}
    v_add_u32 v15, s36, v14
    s_sub_u32 s37, 7, s14
    s_lshl_b32 s38, s37, 9
    s_add_u32 s38, s38, {ML}
    v_add_u32 v14, s38, v14
    ds_write_b32 v15, v13
    ds_write_b32 v15, v12 offset:256
    s_lshl_b32 s36, s14, 13
    s_add_u32 s36, s36, {VS}
    v_add_u32 v6, s36, v2                 ; own staging
    s_lshl_b32 s38, s37, 13
    s_add_u32 s38, s38, {VS}
    v_add_u32 v7, s38, v2                 ; partner staging
    s_waitcnt lgkmcnt(0)
    s_barrier
    s_nop 7
    s_cmp_eq_u32 s15, 0
    s_cbranch_scc0 {P}_mg1""")
    def give(base):
        for i in range(8):
            k(f"ds_write_b128 v6, v[{O+base+4*i}:{O+base+4*i+3}] offset:{i*1024}")
        k("ds_read_b32 v4, v14\nds_read_b32 v5, v14 offset:256")
    def combine(base):
        k(f"""s_waitcnt lgkmcnt(0)
        s_barrier""")
        for i in range(8):
            k(f"ds_read_b128 v[{F0+4*i}:{F0+4*i+3}], v7 offset:{i*1024}")
        k(f"""v_max_f32 v15, v13, v4
        v_sub_f32 v13, v13, v15
        v_sub_f32 v4, v4, v15
        v_exp_f32 v13, v13
        v_exp_f32 v4, v4
        s_nop 0
        v_mul_f32 v12, v12, v13
        v_fmac_f32 v12, v5, v4
        v_rcp_f32 v12, v12
        s_nop 0
        v_mul_f32 v13, v13, v12
        v_mul_f32 v4, v4, v12""")
        for i in range(32):
            k(f"v_mul_f32 v{O+base+i}, v{O+base+i}, v13")
        for i in range(8):
            k(f"s_waitcnt lgkmcnt({7-i})")
            for j in range(4):
                k(f"v_fmac_f32 v{O+base+4*i+j}, v{F0+4*i+j}, v4")
        for i in range(16):
            k(f"v_cvt_pk_bf16_f32 v{F1+i}, v{O+base+2*i}, v{O+base+2*i+1}")
        k(f"""s_cmp_eq_u32 s29, 0
        s_cselect_b32 s36, s17, s17
        s_lshl_b32 s32, s17, 2
        s_add_u32 s32, s32, s16            ; qb
        s_lshl_b32 s36, s32, 18
        s_add_u32 s36, s36, s25
        s_lshl_b32 s37, s15, 12
        s_add_u32 s36, s36, s37""")
        for i in range(4):
            k(f"buffer_store_dwordx4 v[{F1+4*i}:{F1+4*i+3}], v2, s[8:11], s36 offen offset:{i*1024} {SPC}")
    give(32); combine(0)
    k(f"s_branch {P}_mdone")
    k.label(f"{P}_mg1")
    give(0); combine(32)
    k.label(f"{P}_mdone")
    k(f"""s_cmp_lg_u32 s29, 0
    s_cbranch_scc1 {P}_fin
    s_mov_b32 s29, 1
    s_mov_b32 s17, s28
    s_mov_b32 s19, 99
    s_barrier                          ; all staging reads done -> V(0) of next tile may land
    s_mov_b32 s38, 0""")
    ts(4)
    mts(k, 6)
    dmaV("s38")
    if RP:
        k(f"""s_lshl_b32 s63, s14, 3
        v_lshrrev_b32 v13, 3, v0
        v_and_b32 v15, 7, v13
        v_add_u32 v13, s63, v13            ; tid>>3
        v_and_b32 v14, 7, v0               ; piece
        v_lshlrev_b32 v6, 13, v14
        v_lshl_add_u32 v6, v13, 4, v6      ; dst GU
        s_lshl_b32 s48, s61, 16
        s_lshl_b32 s49, s62, 10
        s_add_u32 s48, s48, s49
        s_add_u32 s49, s48, {WS_UP}
        s_add_u32 s48, s48, {WS_GP}
        buffer_store_dwordx4 v[244:247], v6, s[8:11], s48 offen sc0 sc1
        buffer_store_dwordx4 v[248:251], v6, s[8:11], s49 offen sc0 sc1
        v_add_u32 v13, s63, v14            ; c2
        s_mov_b32 s48, 28672
        v_mul_lo_u32 v13, v13, s48
        v_lshl_add_u32 v13, v15, 4, v13    ; dst D
        s_lshl_b32 s48, s60, 7
        s_add_u32 s48, s48, {WS_DP}
        buffer_store_dwordx4 v[252:255], v13, s[8:11], s48 offen sc0 sc1""")
    k(f"s_branch {P}_tile")
    for (n, S, Pp) in slow_blocks: emit_slow(n, S, Pp)
    k.label(f"{P}_fin")
    mts(k, 5)
    k("s_waitcnt vmcnt(0)")
    mts(k, 7)
    if F23 and E_("F234", "1") == "1":
        SY_CTX = 0x10000 + 0x5000
        k(f"""s_barrier
        v_lshrrev_b32 v0, 4, v2
        s_lshl_b32 s30, s14, 6
        v_add_u32 v0, s30, v0               ; tid
        s_cmp_lg_u32 s14, 0
        s_cbranch_scc1 {P}_nsig2
        s_and_b32 s30, s2, 7
        s_lshl_b32 s30, s30, 3              ; xcdgroup*8
        s_lshr_b32 s31, s2, 5               ; p
        s_sub_u32 s32, 15, s31
        s_lshr_b32 s31, s31, 1
        s_lshr_b32 s32, s32, 1
        s_add_u32 s31, s31, s30
        s_add_u32 s32, s32, s30
        s_lshl_b32 s31, s31, 6
        s_lshl_b32 s32, s32, 6
        s_add_u32 s31, s31, {SY_CTX}
        s_add_u32 s32, s32, {SY_CTX}
        v_mov_b32 v5, 0
        v_mov_b32 v6, 1
        s_mov_b64 exec, 1
        buffer_atomic_add v6, v5, s[8:11], s31 offen
        buffer_atomic_add v6, v5, s[8:11], s32 offen
        s_mov_b64 exec, -1""")
        k.label(f"{P}_nsig2")
        import gen_gemm2
        return gen_gemm2.gen_gemm2("oproj", k)
    if E_("A_TS"):
        k(f"""s_memtime s[64:65]
        s_memrealtime s[66:67]
        s_waitcnt lgkmcnt(0)
        s_and_b32 s70, s2, 31
        s_cmp_lg_u32 s70, 0
        s_cbranch_scc1 {P}_done
        s_cmp_lg_u32 s14, 0
        s_cbranch_scc1 {P}_done
        s_sub_u32 s64, s64, s60
        s_sub_u32 s66, s66, s62
        v_mov_b32 v4, s64
        v_mov_b32 v5, s66
        s_lshr_b32 s70, s2, 5
        s_lshl_b32 s70, s70, 5
        v_mov_b32 v6, s70
        s_mov_b32 s72, s68
        s_mov_b32 s73, s69
        s_mov_b32 s74, 256
        s_mov_b32 s75, 0x00020000
        buffer_store_dwordx2 v[4:5], v6, s[72:75], 0 offen""")
        k("s_sub_u32 s86, s94, s92\ns_add_u32 s86, s86, s60")
        for n in range(6):
            k(f"""s_sub_u32 s{76+2*n}, s{76+2*n}, s60
            v_mov_b32 v4, s{76+2*n}
            buffer_store_dword v4, v6, s[72:75], 0 offen offset:{8+4*n}""")
    k.label(f"{P}_done")
    if F23: k.label("L_k2_done")
    k("s_endpgm")
    return k, (256, 512, 131072 + 4096 + (8320 if F23 else 0))
```

```python
from gen import *
from gen_tail import bf16r, unpack
import os
E_ = os.environ.get

WS_SYNC = 0x10000
SY_CNT, SY_KEY, SY_ACT = WS_SYNC, WS_SYNC + 0x400, WS_SYNC + 0x800
WT = "sc0 sc1"
RP = E_("RP", "0") == "1"
PREW = E_("PREW", "0")
SPIN_MAX = 400000
SLP = int(E_("SLP", "1"))

XR, WR, GA, CB, SB, GB, GW, UW, DW = 128, 132, 136, 144, 152, 160, 168, 172, 176
vP, vN, vC, vF, vGU, vD, vLW, vLR, vT8 = 48, 49, 50, 51, 52, 53, 54, 55, 56

def setup(k):
    if E_("F_TS"): k("s_memtime s[16:17]")
    k(f"""s_load_dwordx2 s[44:45], s[0:1], {KA['x']}
    s_load_dwordx2 s[48:49], s[0:1], {KA['wr']}
    s_load_dwordx2 s[52:53], s[0:1], {KA['out']}
    s_load_dwordx2 s[60:61], s[0:1], {KA['wg']}
    s_load_dwordx2 s[64:65], s[0:1], {KA['wu']}
    s_load_dwordx2 s[68:69], s[0:1], {KA['wd']}
    v_and_b32 v{vT8}, 7, v0                 ; tok8
    v_lshrrev_b32 v57, 3, v0
    v_and_b32 v57, 1, v57                   ; hf
    v_lshrrev_b32 v58, 4, v0                ; F0 = tid>>4 (0..31)
    v_lshlrev_b32 v{vP}, 10, v58
    v_lshl_add_u32 v{vP}, v57, 9, v{vP}
    v_lshl_add_u32 v{vP}, v{vT8}, 4, v{vP}
    v_lshlrev_b32 v{vC}, 5, v58
    v_lshl_add_u32 v{vC}, v57, 4, v{vC}
    v_cmp_eq_u32 s[98:99], 1, v57
    v_lshl_add_u32 v{vN}, v{vT8}, 10, v{vC}
    v_lshlrev_b32 v{vF}, 1, v{vC}
    {f"v_lshlrev_b32 v{vGU}, 4, v0" if RP else f"v_mul_u32_u24 v{vGU}, 3584, v0"}
    {f"v_min_u32 v{vD}, 447, v0" if RP else ""}
    {f"v_lshlrev_b32 v{vD}, 6, v{vD}" if RP else f"v_lshlrev_b32 v{vD}, 12, v0"}
    v_lshrrev_b32 v57, 6, v0                ; wave
    v_lshlrev_b32 v{vLR}, 5, v{vT8}
    v_lshl_add_u32 v{vLW}, v57, 2, v{vLR}
    s_and_b32 s72, s2, 7                    ; T
    s_lshr_b32 s73, s2, 3                   ; m
    s_lshl_b32 s74, s72, 5
    s_add_u32 s74, s74, s73                 ; g = xcd*32 + m
    s_and_b32 s77, s74, 3
    s_lshl_b32 s74, s74, 3
    s_lshl_b32 s75, s74, 10                 ; rowbase*1024
    s_lshr_b32 s76, s74, 5
    s_lshl_b32 s76, s76, 15
    s_lshl_b32 s77, s77, 7
    s_add_u32 s76, s76, s77
    s_add_u32 s76, s76, {WS_P}
    s_mul_i32 s77, s72, 28
    s_add_u32 s77, s77, s73
    s_min_u32 s77, s77, 223                 ; cg
    s_lshl_b32 s78, s77, {13 if RP else 4}
    s_lshl_b32 s79, s72, 3
    s_add_u32 s79, s79, s73
    s_sub_u32 s79, s79, 24
    s_cmp_ge_u32 s73, 24
    s_cselect_b32 s79, s79, 0
    s_cselect_b32 s80, 1, 0
    v_mul_lo_u32 v{vD}, v{vD}, s80          ; non consumers: all lanes read the same 16B
    s_lshl_b32 s80, s79, 4                  ; c2*16
    s_mul_i32 s59, s79, 28672
    s_add_u32 s59, s59, {WS_DP}
    s_add_u32 s58, s78, {WS_GP}
    s_add_u32 s57, s78, {WS_UP}""")

def srds(k):
    for (s, n) in ((44, 2048 * 1024), (48, 1024), (52, 2048 * 1024), (60, 512 * 3584), (64, 512 * 3584), (68, 1792 * 1024)):
        k(f"s_mov_b32 s{s+2}, {n}\ns_mov_b32 s{s+3}, 0x00020000")

def preloads(which=None):
    L = []
    L.append(f"buffer_load_dwordx4 v[{XR}:{XR+3}], v{vN}, s[44:47], s75 offen")
    L.append(f"buffer_load_dwordx4 v[{WR}:{WR+3}], v{vC}, s[48:51], 0 offen")
    for (R, seg) in ((GA, 2), (CB, 4), (SB, 3), (GB, 5)):
        for c in range(2):
            L.append(f"s_mov_b32 s81, {WS_MOD + seg*2048}\nbuffer_load_dwordx4 v[{R+4*c}:{R+4*c+3}], v{vF}, s[8:11], s81 offen offset:{16*c}")
    if which == "a": return [(t, ("pre", 0)) for t in L]
    if which == "late": L = []
    if (which == "late") == (PREW == "a"):
        L.append(f"buffer_load_dwordx4 v[{GW}:{GW+3}], v{vGU}, s[60:63], s78 offen")
        L.append(f"buffer_load_dwordx4 v[{UW}:{UW+3}], v{vGU}, s[64:67], s78 offen")
    for r in range(4):
        if (which == "late") != (PREW in "ad"): continue
        L.append(f"buffer_load_dwordx4 v[{DW+4*r}:{DW+4*r+3}], v{vD}, s[68:71], s80 offen offset:{1024*r}")
    return [(t, ("pre", 0)) for t in L]

def gen_k5f():
    k = Kern("k5_tail_kernel", 192, 102)
    P = "L_k5f"
    k(f"""s_cmp_ge_u32 s2, 256
    s_cbranch_scc1 {P}_done
    s_load_dwordx2 s[20:21], s[0:1], {KA['ws']}""")
    setup(k)
    k("""v_and_b32 v1, 63, v0
    v_lshrrev_b32 v2, 6, v0
    v_lshlrev_b32 v5, 4, v1
    v_readfirstlane_b32 s22, v2
    s_waitcnt lgkmcnt(0)""")
    srd(k, 8, 20, WS_SIZE)
    srds(k)
    tail(k, P, standalone=True)
    k.label(f"{P}_done")
    k("s_endpgm")
    return k, (256, 512, 8192)

def tail(k, P, standalone=False):
    TS = E_("F_TS")
    def ts(n):
        if TS: k(f"s_memtime s[{84+2*n}:{85+2*n}]")
    PB, A, H = 16, 64, 72
    LATE = "\n".join(t for (t, _) in preloads("late")) if PREW != "0" else ""
    N = 8
    ts(0)
    if not standalone: k(f"""s_waitcnt vmcnt(0)
    s_barrier
    s_cmp_lg_u32 s22, 0
    s_cbranch_scc1 {P}_gw
    s_lshr_b32 s30, s2, 5
    s_lshl_b32 s30, s30, 7
    s_add_u32 s30, s30, {SY_CNT}
    v_mov_b32 v2, 0
    v_mov_b32 v3, 1
    s_mov_b64 exec, 1
    buffer_atomic_add v3, v2, s[8:11], s30 offen
    s_mov_b64 exec, -1
    {LATE}
    s_mov_b64 exec, 1
    s_lshl_b32 s30, s72, 7
    s_add_u32 s30, s30, {SY_CNT}
    s_mov_b32 s31, 0
    s_mov_b32 s32, 0""")
    if not standalone: k.label(f"{P}_gl")
    if not standalone: k(f"""s_cmp_ge_u32 s31, 32
    s_cbranch_scc1 {P}_gd
    s_add_u32 s32, s32, 1
    s_cmp_ge_u32 s32, {SPIN_MAX}
    s_cbranch_scc1 {P}_gd
    s_sleep {SLP}
    buffer_load_dword v3, v2, s[8:11], s30 offen sc0 sc1
    s_waitcnt vmcnt(0)
    v_readfirstlane_b32 s31, v3
    s_branch {P}_gl""")
    if not standalone:
        k.label(f"{P}_gd")
        k(f"s_mov_b64 exec, -1\ns_branch {P}_gw2")
        k.label(f"{P}_gw")
        k(LATE)
        k.label(f"{P}_gw2")
        k("s_barrier")
    ts(1)
    mts(k, 10)
    for ks in range(8):
        r = PB + ks * 4
        k(f"s_add_u32 s30, s76, {ks << 21}\nbuffer_load_dwordx4 v[{r}:{r+3}], v{vP}, s[8:11], s30 offen")
    pre = preloads() if standalone else []
    for (t, _) in pre: k(t)
    for ks in range(8):
        k(f"s_waitcnt vmcnt({7 - ks + len(pre)})")
        r = PB + ks * 4
        for d in range(4):
            e = A + d * 2
            if ks == 0:
                k(f"v_lshlrev_b32 v{e}, 16, v{r+d}")
                k(f"v_and_b32 v{e+1}, 0xffff0000, v{r+d}")
            else:
                k(f"v_lshlrev_b32 v{80+2*d}, 16, v{r+d}")
                k(f"v_and_b32 v{81+2*d}, 0xffff0000, v{r+d}")
        if ks:
            for e in range(8): k(f"v_add_f32 v{A+e}, v{A+e}, v{80+e}")
    for i in range(4): k(f"v_cvt_pk_bf16_f32 v{80+i}, v{A+2*i}, v{A+2*i+1}")
    k("""v_cndmask_b32 v84, v82, v80, s[98:99]
    v_cndmask_b32 v85, v83, v81, s[98:99]
    s_nop 1
    v_mov_b32_dpp v86, v84 row_ror:8 row_mask:0xf bank_mask:0xf
    v_mov_b32_dpp v87, v85 row_ror:8 row_mask:0xf bank_mask:0xf
    s_nop 0
    v_cndmask_b32 v88, v80, v86, s[98:99]
    v_cndmask_b32 v89, v81, v87, s[98:99]
    v_cndmask_b32 v90, v86, v82, s[98:99]
    v_cndmask_b32 v91, v87, v83, s[98:99]""")
    unpack(k, A, 88, N)
    if standalone: k("s_waitcnt vmcnt(6)")
    for e in range(N): k(f"v_mul_f32 v{A+e}, v{A+e}, v{GA+e}")
    bf16r(k, A, N)
    unpack(k, GA, XR, N)
    for e in range(N): k(f"v_add_f32 v{A+e}, v{A+e}, v{GA+e}")
    for i in range(N // 2): k(f"v_cvt_pk_bf16_f32 v{XR+i}, v{A+2*i}, v{A+2*i+1}")
    unpack(k, A, XR, N)
    k(f"s_add_u32 s30, s75, {WS_X1}")
    k(f"buffer_store_dwordx4 v[{XR}:{XR+3}], v{vN}, s[8:11], s30 offen {WT}")
    def reduce_tok(v, stage):
        k(f"""s_nop 1
        v_add_f32_dpp {v}, {v}, {v} row_ror:8 row_mask:0xf bank_mask:0xf
        v_mov_b32 v92, {v}
        s_nop 1
        v_permlane16_swap_b32 {v}, v92
        v_add_f32 {v}, {v}, v92
        v_mov_b32 v92, {v}
        s_nop 1
        v_permlane32_swap_b32 {v}, v92
        v_add_f32 {v}, {v}, v92
        ds_write_b32 v{vLW}, {v} offset:{stage*256}
        s_waitcnt lgkmcnt(0)
        s_barrier
        ds_read_b128 v[84:87], v{vLR} offset:{stage*256}
        ds_read_b128 v[88:91], v{vLR} offset:{stage*256+16}
        s_waitcnt lgkmcnt(0)
        v_add_f32 v84, v84, v85
        v_add_f32 v86, v86, v87
        v_add_f32 v88, v88, v89
        v_add_f32 v90, v90, v91
        v_add_f32 v84, v84, v86
        v_add_f32 v88, v88, v90
        v_add_f32 {v}, v84, v88""")
    k(f"v_add_f32 v93, v{A}, v{A+1}")
    for e in range(2, N): k(f"v_add_f32 v93, v93, v{A+e}")
    reduce_tok("v93", 0)
    k(f"s_mov_b32 s30, {f2u(1.0/512):#x}")
    k(f"s_mov_b32 s31, {f2u(1e-5):#x}")
    k("v_mul_f32 v93, s30, v93")
    for e in range(N): k(f"v_sub_f32 v{H+e}, v{A+e}, v93")
    k(f"v_mul_f32 v93, v{H}, v{H}")
    for e in range(1, N): k(f"v_fmac_f32 v93, v{H+e}, v{H+e}")
    reduce_tok("v93", 1)
    k(f"""v_mov_b32 v94, s31
    v_fmac_f32 v94, s30, v93
    v_rsq_f32 v94, v94
    s_nop 0""")
    for e in range(N): k(f"v_mul_f32 v{H+e}, v{H+e}, v94")
    for e in range(N): k(f"v_fma_f32 v{H+e}, v{H+e}, v{CB+e}, v{SB+e}")
    for i in range(N // 2): k(f"v_cvt_pk_bf16_f32 v{WR+4+0-4+i+0 if False else 96+i}, v{H+2*i}, v{H+2*i+1}")
    unpack(k, H, 96, N)
    k(f"s_add_u32 s30, s75, {WS_H2}")
    k(f"buffer_store_dwordx4 v[96:99], v{vN}, s[8:11], s30 offen {WT}")
    unpack(k, CB, WR, N)
    k(f"v_mul_f32 v93, v{H}, v{CB}")
    for e in range(1, N): k(f"v_fmac_f32 v93, v{H+e}, v{CB+e}")
    for e in range(N): k(f"v_mul_f32 v{H+e}, v{H+e}, v{GB+e}")
    bf16r(k, H, N)
    for e in range(N): k(f"v_add_f32 v{H+e}, v{H+e}, v{A+e}")
    for i in range(N // 2): k(f"v_cvt_pk_bf16_f32 v{100+i}, v{H+2*i}, v{H+2*i+1}")
    k(f"buffer_store_dwordx4 v[100:103], v{vN}, s[52:55], s75 offen {WT}")
    reduce_tok("v93", 2)
    ts(2)
    mts(k, 11)
    k(f"""v_ashrrev_i32 v94, 31, v93
    v_or_b32 v94, 0x80000000, v94
    v_xor_b32 v94, v94, v93             ; ordered
    v_and_b32 v94, 0xfffff800, v94
    v_add_u32 v95, s74, v{vT8}          ; token
    v_or_b32 v94, v94, v95
    s_nop 1
    v_max_u32_dpp v94, v94, v94 quad_perm:[1,0,3,2] row_mask:0xf bank_mask:0xf
    s_nop 1
    v_max_u32_dpp v94, v94, v94 quad_perm:[2,3,0,1] row_mask:0xf bank_mask:0xf
    s_nop 1
    v_max_u32_dpp v94, v94, v94 row_half_mirror row_mask:0xf bank_mask:0xf
    v_max_u32 v94, 1, v94
    s_cmp_lg_u32 s22, 0
    s_cbranch_scc1 {P}_kw0
    v_lshlrev_b32 v95, 2, v95
    s_mov_b32 s30, {WS_R}
    s_mov_b64 exec, 0xff
    buffer_store_dword v93, v95, s[8:11], s30 offen {WT}
    s_mov_b64 exec, -1""")
    k.label(f"{P}_kw0")
    k(f"""s_waitcnt vmcnt(0)
    s_barrier
    s_cmp_lg_u32 s22, 0
    s_cbranch_scc1 {P}_kw
    s_lshl_b32 s30, s2, 2
    s_add_u32 s30, s30, {SY_KEY}
    v_mov_b32 v2, 0
    s_mov_b64 exec, 1
    buffer_store_dword v94, v2, s[8:11], s30 offen {WT}
    s_mov_b64 exec, -1
    s_mov_b32 s30, {SY_KEY}
    s_mov_b32 s32, 0""")
    k.label(f"{P}_kl")
    k(f"""buffer_load_dwordx4 v[84:87], v5, s[8:11], s30 offen sc0 sc1
    s_add_u32 s32, s32, 1
    s_waitcnt vmcnt(0)
    v_min_u32 v88, v84, v85
    v_min_u32 v89, v86, v87
    v_min_u32 v88, v88, v89
    v_cmp_ne_u32 vcc, 0, v88
    s_cmp_eq_u64 vcc, -1
    s_cbranch_scc1 {P}_kd
    s_cmp_ge_u32 s32, {SPIN_MAX}
    s_cbranch_scc1 {P}_kd
    s_sleep {SLP}
    s_branch {P}_kl""")
    k.label(f"{P}_kd")
    k(f"""v_max_u32 v88, v84, v85
    v_max_u32 v89, v86, v87
    v_max_u32 v88, v88, v89
    s_nop 1
    v_max_u32_dpp v88, v88, v88 quad_perm:[1,0,3,2] row_mask:0xf bank_mask:0xf
    s_nop 1
    v_max_u32_dpp v88, v88, v88 quad_perm:[2,3,0,1] row_mask:0xf bank_mask:0xf
    s_nop 1
    v_max_u32_dpp v88, v88, v88 row_half_mirror row_mask:0xf bank_mask:0xf
    s_nop 1
    v_max_u32_dpp v88, v88, v88 row_mirror row_mask:0xf bank_mask:0xf
    v_mov_b32 v89, v88
    s_nop 1
    v_permlane16_swap_b32 v88, v89
    v_max_u32 v88, v88, v89
    v_mov_b32 v89, v88
    s_nop 1
    v_permlane32_swap_b32 v88, v89
    v_max_u32 v88, v88, v89
    v_mov_b32 v2, 0
    ds_write_b32 v2, v88 offset:1024
    s_waitcnt lgkmcnt(0)""")
    k.label(f"{P}_kw")
    k(f"""s_barrier
    v_mov_b32 v2, 0
    ds_read_b32 v88, v2 offset:1024
    s_waitcnt lgkmcnt(0)
    v_readfirstlane_b32 s82, v88
    s_and_b32 s82, s82, 2047            ; idx
    s_lshl_b32 s83, s82, 10""")
    ts(3)
    mts(k, 12)
    k(f"""v_lshlrev_b32 v2, 1, v0
    s_add_u32 s30, s83, {WS_H2}
    buffer_load_ushort v80, v2, s[8:11], s30 offen sc0 sc1
    {f"buffer_load_dwordx4 v[{GW}:{GW+3}], v{vGU}, s[8:11], s58 offen" if RP else ""}
    {f"buffer_load_dwordx4 v[{UW}:{UW+3}], v{vGU}, s[8:11], s57 offen" if RP else ""}
    v_lshlrev_b32 v3, 1, v{vT8}
    v_add_u32 v3, s80, v3
    v_lshlrev_b32 v6, 1, v3             ; bytes (f32)
    buffer_load_ushort v81, v3, s[8:11], s30 offen sc0 sc1      ; h2
    s_add_u32 s31, s83, {WS_X1}
    buffer_load_ushort v82, v3, s[8:11], s31 offen sc0 sc1      ; x1
    s_mov_b32 s31, {WS_MOD + 5*2048}
    buffer_load_dword v83, v6, s[8:11], s31 offen               ; gb
    s_lshl_b32 s31, s82, 2
    s_add_u32 s31, s31, {WS_R}
    v_mov_b32 v7, 0
    buffer_load_dword v95, v7, s[8:11], s31 offen sc0 sc1       ; r
    {f"buffer_load_dwordx4 v[{DW}:{DW+3}], v{vD}, s[8:11], s59 offen" if RP else ""}
    {f"buffer_load_dwordx4 v[{DW+4}:{DW+7}], v{vD}, s[8:11], s59 offen offset:16" if RP else ""}
    {f"buffer_load_dwordx4 v[{DW+8}:{DW+11}], v{vD}, s[8:11], s59 offen offset:32" if RP else ""}
    {f"buffer_load_dwordx4 v[{DW+12}:{DW+15}], v{vD}, s[8:11], s59 offen offset:48" if RP else ""}
    s_cmp_ge_u32 s73, 28
    s_cbranch_scc1 {P}_nprod""")
    k(f"s_waitcnt vmcnt({8 if RP else 4})")
    unpack(k, 16, GW, 8); unpack(k, 24, UW, 8)
    k("v_lshlrev_b32 v80, 16, v80")
    for i in range(16): k(f"v_mul_f32 v{16+i}, v{16+i}, v80")
    k("s_nop 1")
    for i in range(8): k(f"v_permlane32_swap_b32 v{16+i}, v{24+i}")
    for i in range(8): k(f"v_add_f32 v{16+i}, v{16+i}, v{24+i}")
    k("s_nop 1")
    for i in range(4): k(f"v_permlane16_swap_b32 v{16+i}, v{20+i}")
    for i in range(4): k(f"v_add_f32 v{16+i}, v{16+i}, v{20+i}")
    for pat in ("quad_perm:[1,0,3,2]", "quad_perm:[2,3,0,1]", "row_half_mirror", "row_mirror"):
        k("s_nop 0")
        for i in range(4): k(f"v_add_f32_dpp v{16+i}, v{16+i}, v{16+i} {pat} row_mask:0xf bank_mask:0xf")
    k(f"""v_and_b32 v2, 63, v0
    v_lshrrev_b32 v3, 6, v0
    v_lshlrev_b32 v3, 6, v3
    v_add_u32 v3, v3, v2
    v_and_b32 v6, 15, v0
    v_cmp_eq_u32 vcc, 0, v6
    s_and_saveexec_b64 s[30:31], vcc
    ds_write_b128 v3, v[16:19] offset:2048
    s_mov_b64 exec, s[30:31]
    s_waitcnt lgkmcnt(0)
    s_barrier
    s_cmp_lg_u32 s22, 0
    s_cbranch_scc1 {P}_nprod
    v_and_b32 v2, 15, v0
    v_lshlrev_b32 v2, 2, v2""")
    for w in range(8): k(f"ds_read_b32 v{16+w}, v2 offset:{2048+w*64}")
    k("""s_waitcnt lgkmcnt(0)
    v_add_f32 v16, v16, v17
    v_add_f32 v18, v18, v19
    v_add_f32 v20, v20, v21
    v_add_f32 v22, v22, v23
    v_add_f32 v16, v16, v18
    v_add_f32 v20, v20, v22
    v_add_f32 v16, v16, v20""")
    bf16r(k, 16, 1)
    k(f"""s_nop 1
    v_mov_b32_dpp v17, v16 row_ror:8 row_mask:0xf bank_mask:0xf
    s_mov_b32 s30, {f2u(-LOG2E):#x}
    v_mul_f32 v18, s30, v16
    v_exp_f32 v18, v18
    s_nop 0
    v_add_f32 v18, 1.0, v18
    v_rcp_f32 v18, v18
    s_nop 0
    v_mul_f32 v16, v16, v18""")
    bf16r(k, 16, 1)
    k("v_mul_f32 v16, v16, v17")
    bf16r(k, 16, 1)
    k(f"""v_or_b32 v16, 1, v16
    v_lshlrev_b32 v2, 2, v{vT8}
    s_lshl_b32 s30, s77, 5
    s_add_u32 s30, s30, {SY_ACT}
    s_mov_b64 exec, 0xff
    buffer_store_dword v16, v2, s[8:11], s30 offen {WT}
    s_mov_b64 exec, -1""")
    k.label(f"{P}_nprod")
    ts(4)
    k(f"""s_cmp_lt_u32 s73, 24
    s_cbranch_scc1 {P}_{"dump" if E_("M_TS") else "done"}
    v_lshlrev_b32 v2, 4, v0             ; t*16
    v_cmp_le_u32 vcc, 448, v0
    v_cndmask_b32 v3, 0, 1, vcc         ; 1 for unused threads
    s_mov_b32 s30, {SY_ACT}
    s_mov_b32 s32, 0""")
    k.label(f"{P}_al")
    k(f"""buffer_load_dwordx4 v[84:87], v2, s[8:11], s30 offen sc0 sc1
    s_add_u32 s32, s32, 1
    s_waitcnt vmcnt(0)
    v_min_u32 v88, v84, v85
    v_min_u32 v89, v86, v87
    v_min_u32 v88, v88, v89
    v_or_b32 v88, v88, v3
    v_cmp_ne_u32 vcc, 0, v88
    s_cmp_eq_u64 vcc, -1
    s_cbranch_scc1 {P}_ad
    s_cmp_ge_u32 s32, {SPIN_MAX}
    s_cbranch_scc1 {P}_ad
    s_sleep {SLP}
    s_branch {P}_al""")
    k.label(f"{P}_ad")
    for i in range(4): k(f"v_and_b32 v{84+i}, 0xffff0000, v{84+i}")
    for r in range(4):
        unpack(k, 24, DW + 4 * r, 8)
        for c in range(8):
            if r == 0: k(f"v_mul_f32 v{16+c}, v{24+c}, v84")
            else: k(f"v_fmac_f32 v{16+c}, v{24+c}, v{84+r}")
    k("s_nop 1")
    for i in range(4): k(f"v_permlane32_swap_b32 v{16+i}, v{20+i}")
    for i in range(4): k(f"v_add_f32 v{16+i}, v{16+i}, v{20+i}")
    k("s_nop 1")
    for i in range(2): k(f"v_permlane16_swap_b32 v{16+i}, v{18+i}")
    for i in range(2): k(f"v_add_f32 v{16+i}, v{16+i}, v{18+i}")
    for pat in ("quad_perm:[1,0,3,2]", "quad_perm:[2,3,0,1]", "row_half_mirror", "row_mirror"):
        k("s_nop 1")
        for i in range(2): k(f"v_add_f32_dpp v{16+i}, v{16+i}, v{16+i} {pat} row_mask:0xf bank_mask:0xf")
    k(f"""v_and_b32 v2, 63, v0
    v_lshrrev_b32 v2, 1, v2             ; l/2  (l = 16r -> 8r)
    v_lshrrev_b32 v3, 6, v0
    v_lshl_add_u32 v3, v3, 5, v2
    v_and_b32 v6, 15, v0
    v_cmp_eq_u32 vcc, 0, v6
    s_and_saveexec_b64 s[30:31], vcc
    ds_write_b64 v3, v[16:17] offset:4096
    s_mov_b64 exec, s[30:31]
    s_waitcnt lgkmcnt(0)
    s_barrier
    s_cmp_lg_u32 s22, 0
    s_cbranch_scc1 {P}_done
    v_lshlrev_b32 v2, 2, v{vT8}""")
    for w in range(8): k(f"ds_read_b32 v{16+w}, v2 offset:{4096+w*32}")
    k(f"""s_mov_b32 s30, {f2u(-LOG2E):#x}
    v_mov_b32 v24, v95""")
    bf16r(k, 24, 1)
    k(f"""v_mul_f32 v24, s30, v24
    v_exp_f32 v24, v24
    s_nop 0
    v_add_f32 v24, 1.0, v24
    v_rcp_f32 v24, v24
    s_nop 0""")
    bf16r(k, 24, 1)
    k("""v_lshlrev_b32 v81, 16, v81
    v_lshlrev_b32 v82, 16, v82
    s_waitcnt lgkmcnt(0)
    v_add_f32 v16, v16, v17
    v_add_f32 v18, v18, v19
    v_add_f32 v20, v20, v21
    v_add_f32 v22, v22, v23
    v_add_f32 v16, v16, v18
    v_add_f32 v20, v20, v22
    v_add_f32 v16, v16, v20""")
    bf16r(k, 16, 1)
    k("v_mul_f32 v16, v16, v24"); bf16r(k, 16, 1)
    k("v_add_f32 v16, v16, v81"); bf16r(k, 16, 1)
    k("v_mul_f32 v16, v16, v83"); bf16r(k, 16, 1)
    k(f"""v_add_f32 v16, v16, v82
    v_cvt_pk_bf16_f32 v16, v16, v16
    v_lshlrev_b32 v3, 1, v{vT8}
    v_add_u32 v3, s80, v3
    s_mov_b64 exec, 0xff
    buffer_store_short v16, v3, s[52:55], s83 offen {WT}""")
    if E_("M_TS"):
        k.label(f"{P}_dump")
        k(f"s_cmp_lg_u32 s22, 0\ns_cbranch_scc1 {P}_done")
    mts_dump(k, f"{P}_done")
    if TS:
        k("s_waitcnt vmcnt(0)")
        ts(5)
        k(f"""s_load_dwordx2 s[44:45], s[0:1], {KA['dbg']}
        s_waitcnt lgkmcnt(0)
        s_mov_b32 s46, 256
        s_mov_b32 s47, 0x00020000
        s_cmp_lt_u32 s2, 248
        s_cbranch_scc1 {P}_done
        s_sub_u32 s30, s2, 248
        s_lshl_b32 s30, s30, 5
        v_mov_b32 v6, s30
        s_mov_b64 exec, 1""")
        for n in range(6):
            k(f"""s_sub_u32 s31, s{84+2*n}, s16
            v_mov_b32 v4, s31
            buffer_store_dword v4, v6, s[44:47], 0 offen offset:{4*n}""")
```

```python
import os
from gen import *
E_ = os.environ.get

def gen_gemm2(mode, kin=None):
    kv = mode == "kv"
    CH = kin is not None
    nm = "k2_kv_kernel" if kv else "k4_oproj_kernel"
    P = "L_k2" if kv else "L_k4"
    SPOL = E_("SP_" + mode, "sc0 sc1")
    if kv and E_("F23", "1") == "1": nm = "k23_kv_attn_kernel"
    k = kin if CH else Kern(nm, 256, 102)
    PITCH = 8192 if kv else 1024
    WF, ACC, XF = 16, 64, 128
    nmat = 2 if kv else 1
    NST = 4 * nmat
    TS = E_("G_TS") == mode
    FUSE = (not kv) and E_("FUSE", "1") == "1"
    if FUSE: import gen_fused as GF
    F23 = kv and E_("F23", "1") == "1"
    SY_H, SY_KV = 0x10000 + 0x3000, 0x10000 + 0x4000
    F0 = F23 and E_("F0", "0") == "1"
    WS_MODB, HT = 0xA000, 135168
    XH = F0 and E_("XH", "1") == "1"
    HT2 = 143488 if XH else HT
    XG = int(E_("XG", "17"))
    def ts(n):
        if TS: k(f"s_memtime s[{60+2*n}:{61+2*n}]")
    ts(0)
    if kv: mts(k, 0)
    if TS: k(f"s_memrealtime s[56:57]\ns_load_dwordx2 s[58:59], s[0:1], {KA['dbg']}")
    if not CH: k(f"""s_cmp_ge_u32 s2, 256
    s_cbranch_scc1 {P}_done""")
    k(f"s_load_dwordx2 s[20:21], s[0:1], {KA['ws']}")
    if kv:
        k(f"""s_load_dwordx2 s[40:41], s[0:1], {KA['wuk']}
        s_load_dwordx2 s[42:43], s[0:1], {KA['wuv']}
        s_load_dwordx2 s[44:45], s[0:1], {KA['x']}
        s_load_dwordx2 s[46:47], s[0:1], {KA['wq']}""")
        if F0:
            k(f"""s_load_dwordx2 s[76:77], s[0:1], {KA['c']}
            s_load_dwordx2 s[80:81], s[0:1], {KA['wmod']}
            s_load_dwordx2 s[84:85], s[0:1], {KA['ckv']}
            s_load_dwordx2 s[88:89], s[0:1], {KA['dbg']}""")
    else:
        k(f"s_load_dwordx2 s[40:41], s[0:1], {KA['wo']}")
        if FUSE: GF.setup(k)
    k(f"""v_and_b32 v1, 63, v0            ; lane
    v_lshrrev_b32 v2, 6, v0
    s_nop 0
    v_readfirstlane_b32 s22, v2     ; wv
    v_lshrrev_b32 v3, 3, v1
    v_lshrrev_b32 v5, 2, v1
    v_lshrrev_b32 v6, 4, v1
    v_xor_b32 v5, v5, v6
    v_and_b32 v5, 1, v5
    v_lshlrev_b32 v5, 6, v5
    v_and_b32 v6, 3, v1
    v_lshl_add_u32 v5, v6, 4, v5
    v_lshlrev_b32 v4, {13 if kv else 10}, v3
    v_add_u32 v4, v4, v5
    v_and_b32 v3, 15, v1
    v_lshrrev_b32 v5, 2, v3           ; r
    v_and_b32 v6, 3, v3               ; c4
    v_lshrrev_b32 v7, 4, v1
    v_and_b32 v7, 1, v7               ; grp
    v_lshrrev_b32 v3, 5, v1           ; hf
    v_lshlrev_b32 v3, {10 if kv else 9}, v3
    v_lshl_add_u32 v3, v5, 7, v3
    v_lshl_add_u32 v3, v7, 5, v3
    v_lshl_add_u32 v3, v6, 3, v3
    v_lshrrev_b32 v5, 1, v5           ; r>>1""")
    for nb in range(2):
        k(f"""v_xor_b32 v6, {nb}, v5
        v_lshl_add_u32 v{8+nb}, v6, 6, v3
        v_add_u32 v{10+nb}, 0x10000, v{8+nb}""")
    BOFF = 512 if kv else 1024
    k(f"""v_lshlrev_b32 v5, 4, v1         ; lane*16
    s_and_b32 s24, s2, 7               ; xcd
    s_lshr_b32 s27, s2, 3
    s_and_b32 s27, s27, 3              ; j
    s_lshr_b32 s25, s2, 5
    s_lshl_b32 s25, s25, 3
    s_add_u32 s25, s25, s22            ; tb32
    s_mul_i32 s28, s22, {32*PITCH}
    s_lshl_b32 s29, s22, 12
    s_waitcnt lgkmcnt(0)""")
    if FUSE:
        GF.srds(k)
    srd(k, 8, 20, WS_SIZE)
    if kv:
        k(f"""s_lshl_b32 s26, s24, 2
        s_add_u32 s26, s26, s27            ; head
        s_lshl_b32 s30, s26, 8
        s_add_u32 s12, s40, s30
        s_addc_u32 s13, s41, 0
        s_sub_u32 s14, 0x400000, s30
        s_mov_b32 s15, 0x00020000
        s_add_u32 s16, s42, s30
        s_addc_u32 s17, s43, 0
        s_sub_u32 s18, 0x400000, s30
        s_mov_b32 s19, 0x00020000
        s_lshl_b32 s33, s25, 15
        s_add_u32 s33, s33, {WS_XF + 0x200000}     ; ckv frags
        s_lshl_b32 s37, s26, 20
        s_lshr_b32 s39, s25, 1
        s_lshl_b32 s39, s39, 15
        s_add_u32 s37, s37, s39
        s_and_b32 s39, s25, 1
        s_lshl_b32 s39, s39, 13
        s_add_u32 s37, s37, s39
        s_add_u32 s37, s37, {WS_KV}""")
        if F23:
            k(f"""s_add_u32 s64, s46, s30
            s_addc_u32 s65, s47, 0
            s_sub_u32 s66, 0x400000, s30
            s_mov_b32 s67, 0x00020000
            s_mul_i32 s68, s22, {16*8192}
            s_sub_u32 s69, 7, s22
            s_cmp_lt_u32 s22, 4
            s_cselect_b32 s69, s22, s69        ; wq
            s_lshr_b32 s70, s2, 5              ; p
            s_sub_u32 s71, 15, s70
            s_cselect_b32 s70, s70, s70
            s_cmp_lt_u32 s22, 4
            s_cselect_b32 s70, s71, s70
            s_lshl_b32 s70, s70, 2
            s_add_u32 s70, s70, s69            ; tb32
            s_lshl_b32 s71, s70, 6
            s_add_u32 s71, s71, {SY_H}
            s_lshl_b32 s70, s70, 15
            s_add_u32 s70, s70, {WS_XF}
            v_lshrrev_b32 v3, 4, v1
            v_and_b32 v6, 15, v1
            v_lshrrev_b32 v7, 2, v6
            v_xor_b32 v7, v7, v3
            v_lshlrev_b32 v7, 6, v7
            v_and_b32 v6, 3, v6
            v_lshl_add_u32 v7, v6, 4, v7
            v_lshlrev_b32 v48, 13, v3
            v_add_u32 v48, v48, v7
            v_mov_b32 v50, 0
            s_mul_i32 s72, s22, 1040
            v_add_u32 v51, s72, v5
            v_add_u32 v51, 135168, v51
            v_and_b32 v6, 7, v1
            v_mul_u32_u24 v52, 1040, v6
            v_lshrrev_b32 v7, 3, v1
            v_lshl_add_u32 v52, v7, 4, v52
            s_lshl_b32 s72, s22, 7
            v_add_u32 v52, s72, v52
            v_add_u32 v52, 135168, v52
            v_lshlrev_b32 v53, 9, v7
            v_lshl_add_u32 v53, v6, 4, v53
            s_lshl_b32 s72, s22, 12
            v_add_u32 v53, s72, v53
            s_lshr_b32 s72, s2, 2
            s_lshl_b32 s73, s72, 6
            s_add_u32 s73, s73, {SY_H}
            s_lshl_b32 s72, s72, 15
            s_and_b32 s74, s2, 3
            s_lshl_b32 s74, s74, 7
            s_add_u32 s72, s72, s74
            s_add_u32 s72, s72, {WS_XF}""")
    else:
        k(f"""s_lshl_b32 s30, s24, 19
        s_lshl_b32 s31, s27, 8
        s_add_u32 s30, s30, s31
        s_add_u32 s12, s40, s30
        s_addc_u32 s13, s41, 0
        s_sub_u32 s14, 0x400000, s30
        s_mov_b32 s15, 0x00020000
        s_lshl_b32 s33, s25, 18
        s_lshl_b32 s34, s24, 15
        s_add_u32 s33, s33, s34
        s_add_u32 s33, s33, {WS_CTX}
        s_lshl_b32 s37, s24, 21
        s_lshl_b32 s39, s25, 15
        s_add_u32 s37, s37, s39
        s_lshl_b32 s39, s27, 13
        s_add_u32 s37, s37, s39
        s_add_u32 s37, s37, {WS_P}""")
    vq = []
    def vissue(item):
        t, tag = item
        k(t); vq.append(tag)
    def vwait(tag, extra=""):
        if tag not in vq:
            if extra: k(f"s_waitcnt {extra}")
            return
        idx = max(i for i, t in enumerate(vq) if t == tag)
        n = len(vq) - 1 - idx
        k(f"s_waitcnt vmcnt({n}) {extra}")
        del vq[:idx + 1]
    def xload(s):
        if XH and s >= 16: return (f"""s_add_u32 s34, s33, {3145728 + (s//4)*4096}
        buffer_load_dwordx4 v[{XF+4*s}:{XF+4*s+3}], v5, s[8:11], s34 offen offset:{(s%4)*1024}""", ("x", s))
        if F0: return (f"buffer_load_dwordx4 v[{XF+4*s}:{XF+4*s+3}], v49, s[84:87], s33 offen offset:{s*32}", ("x", s))
        return (f"""s_add_u32 s34, s33, {(s//4)*4096}
        buffer_load_dwordx4 v[{XF+4*s}:{XF+4*s+3}], v5, s[8:11], s34 offen offset:{(s%4)*1024}""", ("x", s))
    def wdma(st):
        mat, nbp, kh = st // 4, st % 2, (st // 2) % 2
        sr = 12 + 4 * mat
        L = []
        for i in range(4):
            L.append((f"""s_add_u32 m0, s29, {(st % 4)*32768 + i*1024}
            s_add_u32 s35, s28, {(kh*256 + i*8)*PITCH + nbp*128}
            buffer_load_dwordx4 v4, s[{sr}:{sr+3}], s35 offen lds""", ("w", st)))
        return L
    def reads(g):
        if g >= NST * 16: return
        st, s = g // 16, g % 16
        slot = st % 4
        base = (slot % 2) * 32768 + s * 2048
        for nb in range(2):
            va = 8 + (2 if slot >= 2 else 0) + nb
            w = WF + (g % 4) * 8 + nb * 4
            k(f"ds_read_b64_tr_b16 v[{w}:{w+1}], v{va} offset:{base}")
            k(f"ds_read_b64_tr_b16 v[{w+2}:{w+3}], v{va} offset:{base+BOFF}")
    def mfmas(g):
        st, s = g // 16, g % 16
        mat, nbp, kh = st // 4, st % 2, (st // 2) % 2
        xs = kh * 16 + s
        vtype = kv and mat == 1
        for nb in range(2):
            w = WF + (g % 4) * 8 + nb * 4
            a = ACC + nbp * 32 + nb * 16
            x = XF + 4 * xs
            c = "0" if (kh == 0 and s == 0) else f"v[{a}:{a+15}]"
            if vtype:
                k(f"v_mfma_f32_32x32x16_bf16 v[{a}:{a+15}], v[{x}:{x+3}], v[{w}:{w+3}], {c}")
            else:
                k(f"v_mfma_f32_32x32x16_bf16 v[{a}:{a+15}], v[{w}:{w+3}], v[{x}:{x+3}], {c}")
    def epi_items(pair):
        mat, nbp = pair // 2, pair % 2
        L = []
        for nb in range(2):
            a = ACC + (pair % 2) * 32 + nb * 16
            for half in range(2):
                t = "\n".join(f"v_cvt_pk_bf16_f32 v{a+4*half+i}, v{a+8*half+2*i}, v{a+8*half+2*i+1}" for i in range(4))
                f = (nbp * 2 + nb) * 2 + half
                off = mat * 16384 + f * 1024
                t += f"""
                s_add_u32 s38, s37, {off & ~4095}
                buffer_store_dwordx4 v[{a+4*half}:{a+4*half+3}], v5, s[8:11], s38 offen offset:{off & 4095} {SPOL}"""
                L.append((t, ("st", pair)))
        return L
    if kv:
        L = 64
        srd(k, 48, 44, 2048 * 1024)
        k(f"""s_lshl_b32 s23, s2, 3
        s_add_u32 s23, s23, s22            ; token
        s_lshl_b32 s31, s23, 10
        v_lshlrev_b32 v6, 5, v1""")
        if F0:
            for (sr, n) in ((76, 1024), (80, 512 * 6144), (84, 2048 * 1024), (88, 256)):
                k(f"s_mov_b32 s{sr+2}, {n}\ns_mov_b32 s{sr+3}, 0x00020000")
            k(f"""s_min_u32 s98, s2, 191             ; wgm
            s_lshl_b32 s99, s98, 5
            v_mul_u32_u24 v6, 6144, v0
            v_lshlrev_b32 v7, 1, v0
            v_and_b32 v49, 31, v1
            v_lshlrev_b32 v49, 10, v49
            v_lshrrev_b32 v3, 5, v1
            v_lshl_add_u32 v49, v3, 4, v49
            s_lshl_b32 s33, s25, 15""")
            if XH: vissue(("buffer_load_dwordx4 v[60:63], v5, s[84:87], s31 offen", ("cr", 0)))
            vissue(("buffer_load_ushort v104, v7, s[76:79], 0 offen", ("md", 0)))
            vissue(("buffer_load_dwordx4 v[96:99], v6, s[80:83], s99 offen", ("md", 0)))
            vissue(("buffer_load_dwordx4 v[100:103], v6, s[80:83], s99 offen offset:16", ("md", 0)))
            vissue(("buffer_load_dwordx4 v[56:59], v5, s[48:51], s31 offen", ("ln", 0)))
        else:
            vissue((f"buffer_load_dwordx4 v[{L}:{L+3}], v5, s[48:51], s31 offen", ("ln", 0)))
            for i, off in enumerate([0, 16, 2048, 2064]):
                vissue((f"buffer_load_dwordx4 v[{L+4+4*i}:{L+7+4*i}], v6, s[8:11], 0 offen offset:{WS_MOD + off}", ("ln", 0)))
    if CH:
        SY_CTX = 0x10000 + 0x5000
        k(f"""s_lshl_b32 s30, s24, 3
        s_lshr_b32 s31, s2, 5
        s_add_u32 s30, s30, s31
        s_lshl_b32 s30, s30, 6
        s_add_u32 s30, s30, {SY_CTX}
        v_mov_b32 v6, 0
        s_mov_b32 s31, 0""")
        for it in wdma(0) + wdma(1) + wdma(2): vissue(it)
        k.label(f"{P}_cl")
        k(f"""buffer_load_dword v7, v6, s[8:11], s30 offen sc0 sc1
        s_add_u32 s31, s31, 1
        s_waitcnt vmcnt(0)
        v_readfirstlane_b32 s32, v7
        s_cmp_ge_u32 s32, 8
        s_cbranch_scc1 {P}_cd
        s_cmp_ge_u32 s31, 400000
        s_cbranch_scc1 {P}_cd
        s_sleep 1
        s_branch {P}_cl""")
        del vq[:]
        k.label(f"{P}_cd")
        if E_("M_TS2"): mts(k, 4)
    else:
        for it in wdma(0): vissue(it)
    for s in range(8): vissue(xload(s))
    if F0:
        from gen_tail import bf16r, unpack
        if XH:
            vwait(("cr", 0))
            k("ds_write_b128 v51, v[60:63]")
        vwait(("md", 0))
        k(f"""v_lshlrev_b32 v104, 16, v104
        s_mov_b32 s99, {f2u(-LOG2E):#x}
        v_mul_f32 v105, s99, v104
        v_exp_f32 v105, v105
        s_nop 0
        v_add_f32 v105, 1.0, v105
        v_rcp_f32 v105, v105
        s_nop 0
        v_mul_f32 v104, v104, v105""")
        bf16r(k, 104, 1)
        unpack(k, 108, 96, 16)
        for i in range(16): k(f"v_mul_f32 v{108+i}, v{108+i}, v104")
        k("s_nop 1")
        for i in range(8): k(f"v_permlane32_swap_b32 v{108+i}, v{116+i}")
        for i in range(8): k(f"v_add_f32 v{108+i}, v{108+i}, v{116+i}")
        k("s_nop 1")
        for i in range(4): k(f"v_permlane16_swap_b32 v{108+i}, v{112+i}")
        for i in range(4): k(f"v_add_f32 v{108+i}, v{108+i}, v{112+i}")
        for pat in ("quad_perm:[1,0,3,2]", "quad_perm:[2,3,0,1]", "row_half_mirror", "row_mirror"):
            k("s_nop 0")
            for i in range(4): k(f"v_add_f32_dpp v{108+i}, v{108+i}, v{108+i} {pat} row_mask:0xf bank_mask:0xf")
        k(f"""s_lshl_b32 s99, s22, 6
        v_add_u32 v3, s99, v1               ; w*64 + l
        v_and_b32 v6, 15, v1
        v_cmp_eq_u32 vcc, 0, v6
        s_and_saveexec_b64 s[30:31], vcc
        ds_write_b128 v3, v[108:111] offset:0
        s_mov_b64 exec, s[30:31]
        s_waitcnt lgkmcnt(0)""".replace("ds_write_b128 v3, v[108:111] offset:0", f"v_add_u32 v3, {HT2}, v3\nds_write_b128 v3, v[108:111]"))
    elif kv:
        X0, SAr, CAr, T = L, L + 4, L + 12, L + 24
        k(f"""v_lshrrev_b32 v6, 1, v1
        v_lshlrev_b32 v6, 10, v6
        v_and_b32 v7, 1, v1
        v_lshl_add_u32 v6, v7, 9, v6
        s_lshr_b32 s31, s23, 5
        s_lshl_b32 s31, s31, 15
        s_and_b32 s32, s23, 31
        s_lshl_b32 s32, s32, 4
        s_add_u32 s31, s31, s32
        s_add_u32 s31, s31, {WS_XF}
        s_mov_b32 s52, {f2u(1.0/512):#x}
        s_mov_b32 s53, {f2u(1e-5):#x}""")
        vwait(("ln", 0))
        for i in range(4):
            k(f"v_lshlrev_b32 v{T+2*i}, 16, v{X0+i}")
            k(f"v_and_b32 v{T+1+2*i}, 0xffff0000, v{X0+i}")
        k(f"v_add_f32 v{T+8}, v{T}, v{T+1}")
        for i in range(2, 8): k(f"v_add_f32 v{T+8}, v{T+8}, v{T+i}")
        wave_allreduce_add(k, f"v{T+8}", f"v{T+9}")
        k(f"v_mul_f32 v{T+8}, s52, v{T+8}")
        for i in range(8): k(f"v_sub_f32 v{T+i}, v{T+i}, v{T+8}")
        k(f"v_mul_f32 v{T+8}, v{T}, v{T}")
        for i in range(1, 8): k(f"v_fmac_f32 v{T+8}, v{T+i}, v{T+i}")
        wave_allreduce_add(k, f"v{T+8}", f"v{T+9}")
        k(f"""v_mov_b32 v{T+9}, s53
        v_fmac_f32 v{T+9}, s52, v{T+8}
        v_rsq_f32 v{T+9}, v{T+9}
        s_nop 0""")
        for i in range(8): k(f"v_mul_f32 v{T+i}, v{T+i}, v{T+9}")
        for i in range(8): k(f"v_fma_f32 v{T+i}, v{T+i}, v{CAr+i}, v{SAr+i}")
        for i in range(4): k(f"v_cvt_pk_bf16_f32 v{X0+i}, v{T+2*i}, v{T+1+2*i}")
        if F23: k(f"ds_write_b128 v51, v[{X0}:{X0+3}]\ns_waitcnt lgkmcnt(0)")
        else: vissue((f"buffer_store_dwordx4 v[{X0}:{X0+3}], v6, s[8:11], s31 offen", ("lnst", 0)))
    pend = [xload(s) for s in range(8, 16)] + wdma(1) + wdma(2) + [xload(s) for s in range(16, 32)] + wdma(3)
    if CH: pend = [xload(s) for s in range(8, 32)] + wdma(3)
    if XH: pend = [xload(s) for s in range(8, 16)] + wdma(1) + wdma(2) + wdma(3)
    vwait(("w", 0))
    k("s_barrier")
    ts(1)
    mts(k, 1 if kv else 8)
    if XH:
        k("ds_read_b128 v[60:63], v52\ns_add_u32 s30, s72, 2097152\ns_waitcnt lgkmcnt(0)")
        vissue(("buffer_store_dwordx4 v[60:63], v53, s[8:11], s30 offen sc0 sc1", ("xst", 0)))
        k("""s_lshr_b32 s92, s25, 2
        s_lshl_b32 s92, s92, 2
        s_add_u32 s92, s92, 4
        s_and_b32 s93, s25, 3
        s_lshl_b32 s93, s93, 3""")
    if F0:
        k(f"""s_cmp_lg_u32 s22, 0
        s_cbranch_scc1 {P}_nmod
        v_and_b32 v6, 15, v1
        v_lshlrev_b32 v2, 2, v6
        v_add_u32 v3, {HT2}, v2""")
        for w in range(8): k(f"ds_read_b32 v{96+w}, v3 offset:{w*64}")
        k("""s_waitcnt lgkmcnt(0)
        v_add_f32 v96, v96, v97
        v_add_f32 v98, v98, v99
        v_add_f32 v100, v100, v101
        v_add_f32 v102, v102, v103
        v_add_f32 v96, v96, v98
        v_add_f32 v100, v100, v102
        v_add_f32 v96, v96, v100""")
        bf16r(k, 96, 1)
        k(f"""s_lshr_b32 s99, s98, 5              ; seg
        s_cmp_eq_u32 s99, 1
        s_cselect_b32 s30, 1.0, 0
        s_cmp_eq_u32 s99, 4
        s_cselect_b32 s30, 1.0, s30
        v_add_f32 v96, s30, v96""")
        bf16r(k, 96, 1)
        k(f"""v_lshrrev_b32 v97, 16, v96
        v_lshlrev_b32 v3, 1, v6
        s_lshl_b32 s30, s98, 6
        s_lshl_b32 s31, s98, 5
        s_add_u32 s31, s31, {WS_MODB}
        s_lshl_b32 s99, s98, 7
        s_add_u32 s99, s99, 0x10000
        v_mov_b32 v98, 0
        v_lshlrev_b32 v7, 2, v1
        s_mov_b64 exec, 0xffff
        buffer_store_dword v96, v2, s[8:11], s30 offen sc0 sc1
        buffer_store_short v97, v3, s[8:11], s31 offen sc0 sc1
        s_mov_b64 exec, 0xffffffff
        buffer_store_dword v98, v7, s[8:11], s99 offen sc0 sc1
        s_mov_b64 exec, -1""")
        k.label(f"{P}_nmod")
    elif F23:
        k("ds_read_b128 v[54:57], v52\ns_waitcnt lgkmcnt(0)")
        vissue(("buffer_store_dwordx4 v[54:57], v53, s[8:11], s72 offen sc0 sc1", ("lnst", 0)))
    def sig(lab, srd_, soff):
        k(f"""s_cmp_lg_u32 s22, 0
        s_cbranch_scc1 {P}_{lab}
        v_mov_b32 {"v2" if F0 else "v49"}, 1
        s_mov_b64 exec, 1
        buffer_atomic_add {"v2" if F0 else "v49"}, v50, {srd_}, {soff} offen
        s_mov_b64 exec, -1""")
        k.label(f"{P}_{lab}")
    def wq_dma(q):
        return [(f"""s_add_u32 m0, s29, {q*32768 + i*1024}
            s_add_u32 s35, s68, {(q*128 + i*4)*8192}
            buffer_load_dwordx4 v48, s[64:67], s35 offen lds""", ("qs", q)) for i in range(4)]
    def xq_loads(q):
        return [(f"""s_add_u32 s34, s70, {(s//4)*4096}
            buffer_load_dwordx4 v[{XF+4*s}:{XF+4*s+3}], v5, s[8:11], s34 offen offset:{(s%4)*1024}""", ("qs", q)) for s in range(q*8, q*8+8)]
    reads(0); reads(1)
    for g in range(NST * 16):
        st, s = g // 16, g % 16
        if s == 14 and st + 1 < NST:
            if F0 and st == 3: vwait(("lnst", 0))
            if XH and st == 0: vwait(("xst", 0))
            vwait(("w", st + 1), "lgkmcnt(0)")
            k("s_barrier")
            ts(2 + st)
            if not kv and E_("M_TS2"): mts(k, 1 + st)
            if st + 4 < NST: pend = pend + wdma(st + 4)
            if F23 and st >= 4: pend = pend + wq_dma(st - 4)
            if F0 and st == 0:
                k(f"""s_cmp_lg_u32 s22, 0
                s_cbranch_scc1 {P}_nsig
                v_mov_b32 v2, 1
                s_mov_b64 exec, 1
                buffer_store_byte v2, v50, s[88:91], s2 offen sc0 sc1
                s_mov_b64 exec, -1""")
                k.label(f"{P}_nsig")
            elif F23 and st == 0: sig("nsig", "s[8:11]", "s73")
            if F0 and st == 2:
                k("ds_read_b128 v[60:63], v52\ns_waitcnt lgkmcnt(0)")
                vissue(("buffer_store_dwordx4 v[60:63], v53, s[8:11], s72 offen sc0 sc1", ("lnst", 0)))
            if F0 and st == 3: sig("nsigh", "s[8:11]", "s73")
            reads(g + 2)
        elif s == 15 and st + 1 < NST:
            reads(g + 2)
            k("s_waitcnt lgkmcnt(8)")
        else:
            reads(g + 2)
            nout = 8 if g + 2 < NST * 16 else (4 if g + 1 < NST * 16 else 0)
            k(f"s_waitcnt lgkmcnt({nout})")
        if st in (0, 2): vwait(("x", (st // 2) * 16 + s))
        mfmas(g)
        if FUSE and g == 32: pend = pend + GF.preloads("a" if GF.RP else None)
        if F0 and g == XG:
            k(f"""v_lshlrev_b32 v54, 2, v1
            s_cmp_lg_u32 s22, 0
            s_cbranch_scc1 {P}_np0
            buffer_load_dword v49, v54, s[88:91], 0 offen sc0 sc1""")
            k.label(f"{P}_np0")
        if F0 and g == XG + 4:
            k(f"""s_cmp_lg_u32 s22, 0
            s_cbranch_scc1 {P}_md
            s_mov_b32 s99, 0
            s_waitcnt vmcnt(0)""")
            k.label(f"{P}_ml")
            k(f"""v_cmp_ne_u32 vcc, 0x01010101, v49
            s_nop 3
            s_cmp_eq_u64 vcc, 0
            s_cbranch_scc1 {P}_md
            s_add_u32 s99, s99, 1
            s_cmp_ge_u32 s99, 400000
            s_cbranch_scc1 {P}_md
            s_sleep 2
            buffer_load_dword v49, v54, s[88:91], 0 offen sc0 sc1
            s_waitcnt vmcnt(0)
            s_branch {P}_ml""")
            k.label(f"{P}_md")
            k("s_barrier")
            if XH: pend = [xload(s_) for s_ in range(16, 32)] + pend
        if F0 and g == 38:
            k(f"s_mov_b32 s98, {WS_MODB}")
            vissue(("buffer_load_dwordx4 v[12:15], v5, s[8:11], s98 offen", ("pm", 0)))
            vissue(("buffer_load_dwordx4 v[60:63], v5, s[8:11], s98 offen offset:1024", ("pm", 0)))
        if F0 and g == 44:
            vwait(("pm", 0))
            k(f"s_mov_b32 s98, {f2u(1.0/512):#x}\ns_mov_b32 s99, {f2u(1e-5):#x}")
            for i in range(4):
                k(f"v_lshlrev_b32 v6, 16, v{56+i}\nv_and_b32 v7, 0xffff0000, v{56+i}")
                k("v_add_f32 v2, v6, v7" if i == 0 else "v_add_f32 v2, v2, v6\nv_add_f32 v2, v2, v7")
            wave_allreduce_add(k, "v2", "v3")
            k("v_mul_f32 v55, s98, v2")
            for i in range(4):
                k(f"""v_lshlrev_b32 v6, 16, v{56+i}
                v_and_b32 v7, 0xffff0000, v{56+i}
                v_sub_f32 v6, v6, v55
                v_sub_f32 v7, v7, v55""")
                k("v_mul_f32 v2, v6, v6" if i == 0 else "v_fmac_f32 v2, v6, v6")
                k("v_fmac_f32 v2, v7, v7")
            wave_allreduce_add(k, "v2", "v3")
            k("""v_mov_b32 v3, s99
            v_fmac_f32 v3, s98, v2
            v_rsq_f32 v2, v3
            s_nop 0""")
            for i in range(4):
                k(f"""v_lshlrev_b32 v6, 16, v{56+i}
                v_and_b32 v7, 0xffff0000, v{56+i}
                v_sub_f32 v6, v6, v55
                v_sub_f32 v7, v7, v55
                v_mul_f32 v6, v6, v2
                v_mul_f32 v7, v7, v2
                v_lshlrev_b32 v49, 16, v{60+i}
                v_and_b32 v54, 0xffff0000, v{60+i}
                v_lshlrev_b32 v3, 16, v{12+i}
                v_fma_f32 v6, v6, v49, v3
                v_and_b32 v3, 0xffff0000, v{12+i}
                v_fma_f32 v7, v7, v54, v3
                v_cvt_pk_bf16_f32 v{56+i}, v6, v7""")
            k("ds_write_b128 v51, v[56:59]")
        if F23 and g == (80 if F0 else 72):
            vissue(("buffer_load_dword v49, v50, s[8:11], s71 offen sc0 sc1", ("hc", 0)))
        if F23 and g == 96:
            vwait(("hc", 0))
            k(f"""v_readfirstlane_b32 s74, v49
            s_mov_b32 s75, 0""")
            k.label(f"{P}_hl")
            k(f"""s_cmp_ge_u32 s74, 4
            s_cbranch_scc1 {P}_hd
            s_add_u32 s75, s75, 1
            s_cmp_ge_u32 s75, 400000
            s_cbranch_scc1 {P}_hd
            buffer_load_dword v49, v50, s[8:11], s71 offen sc0 sc1
            s_waitcnt vmcnt(0)
            v_readfirstlane_b32 s74, v49
            s_branch {P}_hl""")
            k.label(f"{P}_hd")
            pend = pend + xq_loads(0) + xq_loads(1)
        if s == 2 and st >= 3 and st % 4 in (3, 0):
            pm = (st - 1) // 4; pp = (st - 1) % 2
            pend = epi_items(pm * 2 + pp) + pend
        if kv and st == 4 and s == 4:
            k(f"""s_lshr_b32 s30, s2, 3
            s_lshl_b32 s30, s30, 3
            s_add_u32 s30, s30, s22            ; wi 0..255
            s_load_dwordx2 s[52:53], s[0:1], {KA['wo']}
            s_load_dwordx2 s[54:55], s[0:1], {KA['wg']}
            s_load_dwordx2 s[56:57], s[0:1], {KA['wu']}
            s_load_dwordx2 s[58:59], s[0:1], {KA['wd']}
            s_and_b32 s31, s30, 63
            s_lshl_b32 s31, s31, 6
            v_add_u32 v6, s31, v1
            v_lshrrev_b32 v7, 3, v6
            v_lshlrev_b32 v7, 13, v7
            v_and_b32 v12, 7, v6
            v_lshl_add_u32 v7, v12, 7, v7
            v_lshlrev_b32 v6, 7, v6
            s_waitcnt lgkmcnt(0)
            s_mov_b32 s48, s46
            s_mov_b32 s49, s47
            s_mov_b32 s50, 0x400000
            s_lshl_b32 s31, s24, 10
            s_cmp_lt_u32 s30, 64
            s_cbranch_scc1 {P}_pfgo
            v_mov_b32 v7, v6
            s_mov_b32 s48, s52
            s_mov_b32 s49, s53
            s_lshl_b32 s31, s24, 19
            s_cmp_lt_u32 s30, 128
            s_cbranch_scc1 {P}_pfgo
            s_sub_u32 s30, s30, 128
            s_mov_b32 s48, s54
            s_mov_b32 s49, s55
            s_cmp_lt_u32 s30, 28
            s_cbranch_scc1 {P}_pfm
            s_sub_u32 s30, s30, 28
            s_mov_b32 s48, s56
            s_mov_b32 s49, s57
            s_cmp_lt_u32 s30, 28
            s_cbranch_scc1 {P}_pfm
            s_sub_u32 s30, s30, 28
            s_mov_b32 s48, s58
            s_mov_b32 s49, s59
            s_min_u32 s30, s30, 27""")
            k.label(f"{P}_pfm")
            k(f"""s_mul_i32 s31, s24, {1792*128}
            s_lshl_b32 s30, s30, 13
            s_add_u32 s31, s31, s30
            s_mov_b32 s50, {1792*1024}
            v_lshlrev_b32 v7, 7, v1""")
            k.label(f"{P}_pfgo")
            vissue(("buffer_load_dword v12, v7, s[48:51], s31 offen", ("pf", 0)))
        n = 2 if (st < 2 or (F23 and st >= 6)) else 1
        for _ in range(n):
            if pend: vissue(pend.pop(0))
    k("s_nop 7\ns_nop 7")
    mts(k, 2 if kv else 9)
    while pend: vissue(pend.pop(0))
    for it in epi_items(NST // 2 - 1): vissue(it)
    if FUSE: GF.tail(k, P)
    if F23:
        import gen_attn2
        return gen_attn2.gen_attn(k, vq)
    if TS:
        k("s_waitcnt vmcnt(0)")
        ts(2 + NST - 1)
        k(f"""s_memrealtime s[54:55]
        s_waitcnt lgkmcnt(0)
        s_and_b32 s30, s2, 31
        s_cmp_lg_u32 s30, 0
        s_cbranch_scc1 {P}_done
        s_cmp_lg_u32 s22, 0
        s_cbranch_scc1 {P}_done
        s_lshr_b32 s30, s2, 5
        s_lshl_b32 s30, s30, 5
        v_mov_b32 v6, s30
        s_mov_b32 s48, s58
        s_mov_b32 s49, s59
        s_mov_b32 s50, 256
        s_mov_b32 s51, 0x00020000
        s_sub_u32 s54, s54, s56
        v_mov_b32 v4, s54
        buffer_store_dword v4, v6, s[48:51], 0 offen""")
        sel = [1, 2, 3, 4, 5, 7, 9] if kv else [1, 2, 3, 4, 5, 5, 5]
        for i, n in enumerate(sel):
            k(f"""s_sub_u32 s{60+2*n}, s{60+2*n}, s60
            v_mov_b32 v4, s{60+2*n}
            buffer_store_dword v4, v6, s[48:51], 0 offen offset:{4+4*i}""")
            if not kv and n == 5: break
    k.label(f"{P}_done")
    if CH:
        k.label("L_k3_done"); k.label("L_k2_done")
        k("s_endpgm")
        return k, (256, 512, 131072 + 4096 + 8320 + (512 if E_("F0", "0") == "1" else 0))
    k("s_endpgm")
    return k, (256, 512, 131072)
```

```python
from gen import *

WS_CNT = WS_KEY + 0x40
WS_Y = 0x8000
NG = 56

def bf16r(k, v, n=1):
    for i in range(0, n, 2):
        if i + 1 < n:
            k(f"v_cvt_pk_bf16_f32 v{v+i}, v{v+i}, v{v+i+1}")
            k(f"v_and_b32 v{v+i+1}, 0xffff0000, v{v+i}")
            k(f"v_lshlrev_b32 v{v+i}, 16, v{v+i}")
        else:
            k(f"v_cvt_pk_bf16_f32 v{v+i}, v{v+i}, v{v+i}")
            k(f"v_lshlrev_b32 v{v+i}, 16, v{v+i}")

def unpack(k, dst, src, n):
    for i in range(n // 2):
        k(f"v_lshlrev_b32 v{dst+2*i}, 16, v{src+i}")
        k(f"v_and_b32 v{dst+2*i+1}, 0xffff0000, v{src+i}")

def gen_k5():
    k = Kern("k5_red_kernel", 192, 80)
    P_ = "L_k5"
    PB = 32
    XR = 96
    WR = 104
    GA, CB, SB, GB = 112, 128, 144, 160
    A = 8
    H = 176
    k(f"""s_cmp_ge_u32 s2, 256
    s_cbranch_scc1 {P_}_done
    s_load_dwordx2 s[4:5], s[0:1], {KA['x']}
    s_load_dwordx2 s[6:7], s[0:1], {KA['wr']}
    s_load_dwordx2 s[20:21], s[0:1], {KA['ws']}
    s_load_dwordx2 s[22:23], s[0:1], {KA['out']}
    v_and_b32 v1, 63, v0
    v_lshrrev_b32 v2, 6, v0            ; w
    v_and_b32 v3, 7, v1                ; tok8
    v_lshrrev_b32 v4, 3, v1
    v_and_b32 v4, 1, v4                ; hf
    v_lshrrev_b32 v5, 4, v1            ; fq
    v_lshl_add_u32 v5, v2, 2, v5       ; F0 = w*4+fq
    v_lshlrev_b32 v6, 10, v5
    v_lshl_add_u32 v6, v4, 9, v6
    v_lshl_add_u32 v6, v3, 4, v6       ; P voffset
    v_lshlrev_b32 v7, 5, v5
    v_lshl_add_u32 v7, v4, 3, v7
    v_lshl_add_u32 v24, v3, 10, v7
    v_lshlrev_b32 v25, 1, v7
    v_lshlrev_b32 v26, 4, v3
    v_lshl_add_u32 v26, v2, 2, v26
    v_lshlrev_b32 v27, 4, v3
    s_lshr_b32 s24, s2, 2              ; tb32
    s_and_b32 s25, s2, 3               ; tq
    s_lshl_b32 s26, s24, 15
    s_lshl_b32 s27, s25, 7
    s_add_u32 s26, s26, s27
    s_add_u32 s26, s26, {WS_P}
    s_lshl_b32 s27, s2, 13
    s_waitcnt lgkmcnt(0)""")
    srd(k, 8, 4, 2048 * 1024)
    srd(k, 12, 6, 1024)
    srd(k, 16, 20, WS_SIZE)
    srd(k, 28, 22, 2048 * 1024)
    for ks in range(8):
        for i in range(2):
            k(f"s_add_u32 s{32+2*ks+i}, s26, {(ks << 21) + i*16384}")
    for ks in range(8):
        for i in range(2):
            r = PB + (ks * 2 + i) * 4
            k(f"buffer_load_dwordx4 v[{r}:{r+3}], v6, s[16:19], s{32+2*ks+i} offen")
    offs = [0, 16, 512, 528]
    for c in range(4):
        k(f"buffer_load_dwordx2 v[{XR+2*c}:{XR+2*c+1}], v24, s[8:11], s27 offen offset:{offs[c]}")
    poffs = [0, 32, 1024, 1056]
    for (R, seg) in ((GA, 2), (CB, 4), (SB, 3), (GB, 5)):
        k(f"s_mov_b32 s48, {WS_MOD + seg*2048}")
        for c in range(4):
            k(f"buffer_load_dwordx4 v[{R+4*c}:{R+4*c+3}], v25, s[16:19], s48 offen offset:{poffs[c]}")
    for c in range(4):
        k(f"buffer_load_dwordx2 v[{WR+2*c}:{WR+2*c+1}], v7, s[12:15], 0 offen offset:{offs[c]}")
    nrest = 4 + 16 + 4
    for ks in range(8):
        k(f"s_waitcnt vmcnt({nrest + (7 - ks) * 2})")
        for i in range(2):
            r = PB + (ks * 2 + i) * 4
            for d in range(4):
                e = A + i * 8 + d * 2
                if ks == 0:
                    k(f"v_lshlrev_b32 v{e}, 16, v{r+d}")
                    k(f"v_and_b32 v{e+1}, 0xffff0000, v{r+d}")
                else:
                    k(f"v_lshlrev_b32 v28, 16, v{r+d}")
                    k(f"v_and_b32 v29, 0xffff0000, v{r+d}")
                    k(f"v_add_f32 v{e}, v{e}, v28")
                    k(f"v_add_f32 v{e+1}, v{e+1}, v29")
    bf16r(k, A, 16)
    k("s_waitcnt vmcnt(16)")
    for e in range(16):
        k(f"v_mul_f32 v{A+e}, v{A+e}, v{GA+e}")
    bf16r(k, A, 16)
    unpack(k, GA, XR, 16)
    for e in range(16):
        k(f"v_add_f32 v{A+e}, v{A+e}, v{GA+e}")
    for i in range(8):
        k(f"v_cvt_pk_bf16_f32 v{XR+i}, v{A+2*i}, v{A+2*i+1}")
    unpack(k, A, XR, 16)
    k(f"s_add_u32 s49, s27, {WS_X1}")
    for c in range(4):
        k(f"buffer_store_dwordx2 v[{XR+2*c}:{XR+2*c+1}], v24, s[16:19], s49 offen offset:{offs[c]}")
    def reduce_tok(v, stage):
        k(f"""s_nop 1
        v_add_f32_dpp {v}, {v}, {v} row_ror:8 row_mask:0xf bank_mask:0xf
        v_mov_b32 v28, {v}
        s_nop 1
        v_permlane16_swap_b32 {v}, v28
        v_add_f32 {v}, {v}, v28
        v_mov_b32 v28, {v}
        s_nop 1
        v_permlane32_swap_b32 {v}, v28
        v_add_f32 {v}, {v}, v28
        ds_write_b32 v26, {v} offset:{stage*128}
        s_waitcnt lgkmcnt(0)
        s_barrier
        ds_read_b128 v[GA0:GA3], v27 offset:{stage*128}
        s_waitcnt lgkmcnt(0)
        v_add_f32 v{GA}, v{GA}, v{GA+1}
        v_add_f32 v{GA+2}, v{GA+2}, v{GA+3}
        v_add_f32 {v}, v{GA}, v{GA+2}""".replace("GA0:GA3", f"{GA}:{GA+3}"))
    k(f"v_add_f32 v30, v{A}, v{A+1}")
    for e in range(2, 16):
        k(f"v_add_f32 v30, v30, v{A+e}")
    reduce_tok("v30", 0)
    k(f"s_mov_b32 s50, {f2u(1.0/512):#x}")
    k(f"s_mov_b32 s51, {f2u(1e-5):#x}")
    k("v_mul_f32 v30, s50, v30")
    for e in range(16):
        k(f"v_sub_f32 v{H+e}, v{A+e}, v30")
    k(f"v_mul_f32 v30, v{H}, v{H}")
    for e in range(1, 16):
        k(f"v_fmac_f32 v30, v{H+e}, v{H+e}")
    reduce_tok("v30", 1)
    k(f"""v_mov_b32 v31, s51
    v_fmac_f32 v31, s50, v30
    v_rsq_f32 v31, v31
    s_waitcnt vmcnt(4)""")
    for e in range(16):
        k(f"v_mul_f32 v{H+e}, v{H+e}, v31")
    for e in range(16):
        k(f"v_fma_f32 v{H+e}, v{H+e}, v{CB+e}, v{SB+e}")
    for i in range(8):
        k(f"v_cvt_pk_bf16_f32 v{XR+i}, v{H+2*i}, v{H+2*i+1}")
    unpack(k, H, XR, 16)
    k(f"s_add_u32 s49, s27, {WS_H2}")
    for c in range(4):
        k(f"buffer_store_dwordx2 v[{XR+2*c}:{XR+2*c+1}], v24, s[16:19], s49 offen offset:{offs[c]}")
    unpack(k, CB, WR, 16)
    k(f"v_mul_f32 v30, v{H}, v{CB}")
    for e in range(1, 16):
        k(f"v_fmac_f32 v30, v{H+e}, v{CB+e}")
    for e in range(16):
        k(f"v_mul_f32 v{H+e}, v{H+e}, v{GB+e}")
    bf16r(k, H, 16)
    for e in range(16):
        k(f"v_add_f32 v{H+e}, v{H+e}, v{A+e}")
    for i in range(8):
        k(f"v_cvt_pk_bf16_f32 v{WR+i}, v{H+2*i}, v{H+2*i+1}")
    for c in range(4):
        k(f"buffer_store_dwordx2 v[{WR+2*c}:{WR+2*c+1}], v24, s[28:31], s27 offen offset:{offs[c]}")
    reduce_tok("v30", 2)
    k(f"""v_ashrrev_i32 v31, 31, v30
    v_or_b32 v31, 0x80000000, v31
    v_xor_b32 v31, v31, v30             ; ordered
    v_and_b32 v31, 0xfffff800, v31
    s_lshl_b32 s52, s2, 3
    v_add_u32 v28, s52, v3
    v_or_b32 v31, v31, v28
    s_nop 1
    v_max_u32_dpp v31, v31, v31 quad_perm:[1,0,3,2] row_mask:0xf bank_mask:0xf
    s_nop 1
    v_max_u32_dpp v31, v31, v31 quad_perm:[2,3,0,1] row_mask:0xf bank_mask:0xf
    s_nop 1
    v_max_u32_dpp v31, v31, v31 row_half_mirror row_mask:0xf bank_mask:0xf
    v_cmp_gt_u32 vcc, 8, v0
    s_and_saveexec_b64 s[54:55], vcc
    s_cbranch_execz {P_}_done
    v_lshlrev_b32 v28, 2, v28
    s_mov_b32 s53, {WS_R}
    buffer_store_dword v30, v28, s[16:19], s53 offen
    v_cmp_gt_u32 vcc, 1, v0
    s_and_saveexec_b64 s[54:55], vcc
    s_cbranch_execz {P_}_done
    v_mov_b32 v28, 0
    s_mov_b32 s53, {WS_KEY}
    buffer_atomic_umax v31, v28, s[16:19], s53 offen""")
    k.label(f"{P_}_done")
    k("s_endpgm")
    return k, (256, 256, 1024)

def gen_k6():
    k = Kern("k6_moe_kernel", 160, 80)
    P_ = "L_k6"
    G, U, D = 16, 48, 80
    XS = 112
    AG, AU = 124, 132
    k(f"""s_cmp_ge_u32 s2, {NG}
    s_cbranch_scc1 {P_}_done
    s_load_dwordx2 s[4:5], s[0:1], {KA['wg']}
    s_load_dwordx2 s[6:7], s[0:1], {KA['wu']}
    s_load_dwordx2 s[24:25], s[0:1], {KA['wd']}
    s_load_dwordx2 s[20:21], s[0:1], {KA['ws']}
    s_load_dwordx2 s[22:23], s[0:1], {KA['out']}
    v_and_b32 v1, 3, v0                ; c8
    v_lshrrev_b32 v2, 2, v0            ; rg
    s_mov_b32 s26, {8*3584}
    v_mul_lo_u32 v3, v2, s26
    v_lshl_add_u32 v3, v1, 4, v3
    v_and_b32 v4, 63, v0               ; lane
    v_lshrrev_b32 v5, 6, v0            ; w
    v_lshlrev_b32 v6, 13, v5
    v_lshl_add_u32 v6, v4, 4, v6
    v_lshlrev_b32 v7, 4, v2
    s_waitcnt lgkmcnt(0)
    s_load_dword s27, s[20:21], {WS_KEY}""")
    srd(k, 8, 4, 512 * 3584)
    srd(k, 12, 6, 512 * 3584)
    srd(k, 28, 24, 1792 * 1024)
    srd(k, 16, 20, WS_SIZE)
    srd(k, 32, 22, 2048 * 1024)
    k("s_lshl_b32 s36, s2, 6")
    for i in range(8):
        k(f"s_add_u32 s{40+i}, s36, {i*3584}")
    for i in range(8):
        k(f"buffer_load_dwordx4 v[{G+4*i}:{G+4*i+3}], v3, s[8:11], s{40+i} offen")
    for i in range(8):
        k(f"buffer_load_dwordx4 v[{U+4*i}:{U+4*i+3}], v3, s[12:15], s{40+i} offen")
    k("s_lshl_b32 s37, s2, 15")
    for i in range(8):
        k(f"s_add_u32 s{48+i}, s37, {i*1024}")
    for i in range(8):
        k(f"buffer_load_dwordx4 v[{D+4*i}:{D+4*i+3}], v6, s[28:31], s{48+i} offen")
    k(f"""s_waitcnt lgkmcnt(0)
    s_and_b32 s27, s27, 2047           ; idx
    s_lshl_b32 s38, s27, 10
    s_add_u32 s39, s38, {WS_H2}
    buffer_load_dwordx4 v[{XS}:{XS+3}], v7, s[16:19], s39 offen
    s_waitcnt vmcnt(0)""")
    unpack(k, XS + 4, XS, 8)
    for j in range(16):
        k(f"v_mov_b32 v{AG+j}, 0")
    for (W, AC) in ((G, AG), (U, AU)):
        for i in range(8):
            for d in range(4):
                k(f"v_lshlrev_b32 v8, 16, v{W+4*i+d}")
                k(f"v_and_b32 v9, 0xffff0000, v{W+4*i+d}")
                k(f"v_fmac_f32 v{AC+2*d}, v{XS+4+i}, v8")
                k(f"v_fmac_f32 v{AC+2*d+1}, v{XS+4+i}, v9")
    k(f"""v_lshlrev_b32 v8, 8, v2
    v_lshl_add_u32 v8, v1, 5, v8       ; rg*256 + c8*32
    ds_write_b128 v8, v[{AG}:{AG+3}]
    ds_write_b128 v8, v[{AG+4}:{AG+7}] offset:16
    ds_write_b128 v8, v[{AU}:{AU+3}] offset:128
    ds_write_b128 v8, v[{AU+4}:{AU+7}] offset:144
    v_lshlrev_b32 v9, 12, v5           ; part*16*256
    v_lshl_add_u32 v9, v4, 2, v9
    s_waitcnt lgkmcnt(0)
    s_barrier""")
    for i in range(16):
        k(f"ds_read_b32 v{G+i}, v9 offset:{i*256}")
    k("s_waitcnt lgkmcnt(0)")
    for i in range(1, 16):
        k(f"v_add_f32 v{G}, v{G}, v{G+i}")
    k(f"""v_lshlrev_b32 v10, 8, v5
    v_lshl_add_u32 v10, v4, 2, v10
    ds_write_b32 v10, v{G} offset:16384
    v_lshlrev_b32 v11, 2, v4
    s_waitcnt lgkmcnt(0)
    s_barrier""")
    for i in range(4):
        k(f"ds_read_b32 v{G+i}, v11 offset:{16384+i*256}")
    k(f"""s_waitcnt lgkmcnt(0)
    v_add_f32 v{G}, v{G}, v{G+1}
    v_add_f32 v{G+2}, v{G+2}, v{G+3}
    v_add_f32 v{G}, v{G}, v{G+2}""")
    bf16r(k, G, 1)
    k(f"""v_mov_b32 v{G+1}, v{G}
    s_nop 1
    v_permlane32_swap_b32 v{G}, v{G+1}
    s_mov_b32 s56, {f2u(-LOG2E):#x}
    v_mul_f32 v{G+2}, s56, v{G}
    v_exp_f32 v{G+2}, v{G+2}
    s_nop 0
    v_add_f32 v{G+2}, 1.0, v{G+2}
    v_rcp_f32 v{G+2}, v{G+2}
    s_nop 0
    v_mul_f32 v{G}, v{G}, v{G+2}""")
    bf16r(k, G, 1)
    k(f"v_mul_f32 v{G}, v{G}, v{G+1}")
    bf16r(k, G, 1)
    k(f"""v_and_b32 v12, 31, v4
    v_lshlrev_b32 v12, 2, v12
    v_lshl_add_u32 v12, v5, 7, v12
    ds_write_b32 v12, v{G} offset:17408
    v_lshlrev_b32 v13, 7, v5
    v_lshl_add_u32 v13, v5, 5, v13           ; w*128 + w*32
    s_waitcnt lgkmcnt(0)
    ds_read_b128 v[{XS}:{XS+3}], v13 offset:17408
    ds_read_b128 v[{XS+4}:{XS+7}], v13 offset:17424
    s_waitcnt lgkmcnt(0)""")
    for j in range(8):
        k(f"v_mov_b32 v{AG+j}, 0")
    for i in range(8):
        for d in range(4):
            k(f"v_lshlrev_b32 v8, 16, v{D+4*i+d}")
            k(f"v_and_b32 v9, 0xffff0000, v{D+4*i+d}")
            k(f"v_fmac_f32 v{AG+2*d}, v{XS+i}, v8")
            k(f"v_fmac_f32 v{AG+2*d+1}, v{XS+i}, v9")
    k(f"""v_lshlrev_b32 v8, 11, v5
    v_lshl_add_u32 v8, v4, 5, v8
    ds_write_b128 v8, v[{AG}:{AG+3}] offset:20480
    ds_write_b128 v8, v[{AG+4}:{AG+7}] offset:20496
    v_lshlrev_b32 v9, 2, v0
    s_waitcnt lgkmcnt(0)
    s_barrier""")
    for h in range(2):
        for w in range(4):
            k(f"ds_read_b32 v{G+h*4+w}, v9 offset:{20480 + w*2048 + h*1024}")
    k("s_waitcnt lgkmcnt(0)")
    for h in range(2):
        b = G + h * 4
        k(f"""v_add_f32 v{b}, v{b}, v{b+1}
        v_add_f32 v{b+2}, v{b+2}, v{b+3}
        v_add_f32 v{b}, v{b}, v{b+2}""")
    k(f"""s_mov_b32 s57, {WS_Y}
    buffer_atomic_add_f32 v{G}, v9, s[16:19], s57 offen
    buffer_atomic_add_f32 v{G+4}, v9, s[16:19], s57 offen offset:1024
    s_waitcnt vmcnt(0)
    s_barrier
    v_readfirstlane_b32 s58, v5
    s_cmp_lg_u32 s58, 0
    s_cbranch_scc1 {P_}_done
    v_lshlrev_b32 v8, 4, v4             ; lane*16
    v_lshlrev_b32 v9, 5, v4             ; lane*32
    s_add_u32 s40, s38, {WS_X1}
    s_mov_b32 s41, {WS_MOD + 5*2048}
    s_lshl_b32 s42, s27, 2
    s_add_u32 s42, s42, {WS_R}
    v_mov_b32 v10, 0
    buffer_load_dwordx4 v[{U}:{U+3}], v8, s[16:19], s39 offen          ; h2
    buffer_load_dwordx4 v[{U+4}:{U+7}], v8, s[16:19], s40 offen        ; x1
    buffer_load_dwordx4 v[{U+8}:{U+11}], v9, s[16:19], s41 offen       ; gb
    buffer_load_dwordx4 v[{U+12}:{U+15}], v9, s[16:19], s41 offen offset:16
    buffer_load_dword v{U+16}, v10, s[16:19], s42 offen                ; r
    v_mov_b32 v11, 1
    s_mov_b32 s43, {WS_CNT}
    s_mov_b64 s[60:61], exec
    s_mov_b64 exec, 1
    buffer_atomic_add v11, v10, s[16:19], s43 offen sc0
    s_waitcnt vmcnt(0)
    v_readfirstlane_b32 s44, v11
    s_mov_b64 exec, s[60:61]
    s_cmp_lg_u32 s44, {NG-1}
    s_cbranch_scc1 {P_}_done""")
    for j in range(8):
        k(f"v_mov_b32 v{AG+j}, 0")
    for j in range(8):
        k(f"buffer_atomic_add_f32 v{AG+j}, v9, s[16:19], s57 offen offset:{4*j} sc0")
    R = U + 16
    bf16r(k, R, 1)
    k(f"""v_mul_f32 v{R}, s56, v{R}
    v_exp_f32 v{R}, v{R}
    s_nop 0
    v_add_f32 v{R}, 1.0, v{R}
    v_rcp_f32 v{R}, v{R}
    s_nop 0""")
    bf16r(k, R, 1)
    unpack(k, G, U, 8)
    unpack(k, G + 8, U + 4, 8)
    k("s_waitcnt vmcnt(0)")
    bf16r(k, AG, 8)
    for j in range(8):
        k(f"v_mul_f32 v{AG+j}, v{AG+j}, v{R}")
    bf16r(k, AG, 8)
    for j in range(8):
        k(f"v_add_f32 v{AG+j}, v{AG+j}, v{G+j}")
    bf16r(k, AG, 8)
    for j in range(8):
        k(f"v_mul_f32 v{AG+j}, v{AG+j}, v{U+8+j}")
    bf16r(k, AG, 8)
    for j in range(8):
        k(f"v_add_f32 v{AG+j}, v{AG+j}, v{G+8+j}")
    for i in range(4):
        k(f"v_cvt_pk_bf16_f32 v{AG+i}, v{AG+2*i}, v{AG+2*i+1}")
    k(f"buffer_store_dwordx4 v[{AG}:{AG+3}], v8, s[32:35], s38 offen")
    k.label(f"{P_}_done")
    k("s_endpgm")
    return k, (NG, 256, 20480 + 8192)

def gen_tail():
    return [gen_k5(), gen_k6()]
```

```python
import sys, os
sys.path.insert(0, os.path.dirname(os.path.abspath(__file__)))
from common import *
from gen_attn import *
from gen_tail import *

TSR = list(range(83, 96)) + ([76, 77, 78] if not E_('TSP') else [])
NTS = [dict(k=WUK, v=WUV, q=WQ, o=WO)[c] for c in E_('NTS', 'k')]
class G:
    def __init__(self):
        self.k = K(); self.tail = []
        self.TS = E_("TS"); self.nts = 0
    def ts(self, k=None, force=False):
        if not self.TS: return
        if (E_("TSP") or E_("TSO") or E_("TSA")) and not force: return
        k = k or self.k
        n = self.nts; self.nts += 1
        assert n < len(TSR)
        k(f"{'s_memrealtime' if self.TS == 'r' else 's_memtime'} vcc\ns_waitcnt lgkmcnt(0)\ns_mov_b32 s{TSR[n]}, vcc_lo")
    def ts0(self):
        if not E_("TS0"): return
        self.n0 = getattr(self, "n0", 0) + 1
        self.k(f"s_memrealtime vcc\ns_waitcnt lgkmcnt(0)\nv_writelane_b32 v255, vcc_lo, {self.n0}")
    def poll_check(self, vreg, vaddr, sr, soff, name, target=None):
        def f(k):
            slow, back = k.lab(name + "_slow"), k.lab(name + "_ok")
            cmp_ = f"v_cmp_ne_u32 vcc, 0, v{vreg}" if target is None else f"v_cmp_le_u32 vcc, {target}, v{vreg}"
            k(f"{cmp_}\ns_cmp_eq_u64 vcc, -1\ns_cbranch_scc0 {slow}")
            k.label(back)
            self.tail.append(f"""{slow}:
    s_mov_b32 s{sD}, 0
{slow}_l:
    s_sleep 4
    buffer_load_dword v{vreg}, v{vaddr}, {srd(sr)}, {soff} offen {WT}
    s_add_u32 s{sD}, s{sD}, 1
    s_waitcnt vmcnt(0)
    {cmp_}
    s_cmp_eq_u64 vcc, -1
    s_cbranch_scc1 {back}
    s_cmp_lt_u32 s{sD}, {SPIN}
    s_cbranch_scc1 {slow}_l
    s_branch {back}""")
        return f
    def dma4(self, sr, voffs, m0, so, tag, xor=False, nt=None):
        it = [("s", f"s_add_u32 m0, s{m0[0]}, {m0[1]}"), ("s", f"{'s_xor_b32' if xor else 's_add_u32'} s{sA}, s{so[0]}, {so[1]}")]
        for i in range(4):
            it.append(("m", f"buffer_load_dwordx4 v{voffs[i]}, {srd(sr)}, s{sA} offen offset:{i*1024} {NT if (sr in NTS if nt is None else nt) else ''} lds", tag))
        return it
    def run(self, its):
        for it in its:
            if callable(it[1]): it[1](self.k)
            else: self.k(it[1], it[2] if len(it) > 2 else None)
    def bar(self, tags, lgkm0=True):
        def f(k):
            k.waitvm(tags, lgkm0); k("s_barrier")
        return f
    def flag_store(self, so, tags):
        return [("x", lambda k: k.waitvm(tags)), ("m", f"buffer_store_dword v6, v5, {srd(WS)}, s{so} offen {WT}", "flag")]

    def startup(self):
        k = self.k
        if self.TS: k(f"{'s_memrealtime' if self.TS == 'r' else 's_memtime'} s[58:59]")
        k(f"""s_cmp_ge_u32 s2, 256
        s_cbranch_scc1 L_end
        s_load_dwordx16 s[64:79], s[0:1], 0
        s_load_dwordx16 s[80:95], s[0:1], 64
        s_getpc_b64 s[{sB}:{sC}]
        L_pf1:
        v_lshrrev_b32 v3, 6, v0
        v_and_b32 v2, 63, v0
        s_lshr_b32 s{sJ}, s2, 3
        s_mul_i32 s{sA}, s{sJ}, 24
        v_min_u32 v5, 5, v2
        v_mad_u32_u24 v5, v3, 6, v5
        v_add_u32 v5, s{sA}, v5
        v_lshlrev_b32 v5, 7, v5
        v_min_u32 v5, L_code_end-L_pf1, v5""")
        k(f"global_load_dword a255, v5, s[{sB}:{sC}]", "pf")
        k(f"""v_readfirstlane_b32 s{sW}, v3
        v_lshlrev_b32 v1, 4, v2
        s_and_b32 s{sX}, s2, 7
        s_and_b32 s{sJ}, s{sJ}, 3
        s_lshr_b32 s{sP}, s2, 5
        s_lshl_b32 s{sH}, s{sX}, 2
        s_add_u32 s{sH}, s{sH}, s{sJ}
        s_mov_b32 s{sT1}, s{sP}
        s_sub_u32 s{sT2}, 15, s{sP}
        v_lshrrev_b32 v3, 3, v2
        v_lshrrev_b32 v4, 4, v2
        v_and_b32 v5, 7, v2
        v_xor_b32 v5, v5, v4
        v_lshlrev_b32 v5, 4, v5
        v_lshl_add_u32 v16, v3, 10, v5
        v_xor_b32 v17, 64, v16
        v_add_u32 v17, {7168}, v17
        v_add_u32 v18, {2*7168}, v16
        v_add_u32 v19, {2*7168}, v17
        ; W (k-major): v20..23
        v_bfe_u32 v5, v2, 1, 3
        v_xor_b32 v5, v5, v4
        v_lshlrev_b32 v5, 5, v5
        v_and_b32 v6, 1, v2
        v_lshl_add_u32 v5, v6, 4, v5
        v_lshl_add_u32 v20, v4, 13, v5
        v_add_u32 v21, {31744}, v20
        v_xor_b32 v22, 128, v20
        v_add_u32 v22, {2*31744}, v22
        v_add_u32 v23, {31744}, v22
        s_lshl_b32 s{sW8}, s{sW}, 13
        s_lshl_b32 s{sW4}, s{sW}, 12
        s_lshl_b32 s{sXB}, s{sP}, 18
        s_lshl_b32 s{sA}, s{sW}, 16
        s_add_u32 s{sXB}, s{sXB}, s{sA}
        s_lshl_b32 s{sWB}, s{sW}, 17
        s_lshl_b32 s{sD}, s{sJ}, {int(E_("RJ", "0"))}
        s_xor_b32 s{sD}, s{sD}, s{sP}
        s_lshl_b32 s{sD}, s{sD}, {int(E_("RS", "3"))}
        s_and_b32 s{sD}, s{sD}, 7
        s_lshl_b32 s{sA}, s{sD}, 7
        s_add_u32 s{sXB}, s{sXB}, s{sA}
        s_lshl_b32 s{sA}, s{sD}, 19
        s_add_u32 s{sWB}, s{sWB}, s{sA}
        v_and_b32 v84, 7, v2
        v_lshrrev_b32 v65, 3, v0
        v_mul_u32_u24 v64, 24576, v65
        v_lshl_add_u32 v64, v84, 4, v64
        v_lshlrev_b32 v65, 3, v65
        v_lshrrev_b32 v85, 3, v2
        v_lshlrev_b32 v86, 10, v84
        v_lshl_add_u32 v86, v85, 4, v86
        s_lshl_b32 s{sB}, s{sH}, 8
        s_waitcnt lgkmcnt(0)""")
        def mk(s, p, n, off=None):
            if off is None: k(f"s_mov_b32 s{s}, s{PTR[p]}\ns_mov_b32 s{s+1}, s{PTR[p]+1}\ns_mov_b32 s{s+2}, {n}\ns_mov_b32 s{s+3}, 0x00020000")
            else: k(f"s_add_u32 s{s}, s{PTR[p]}, s{off}\ns_addc_u32 s{s+1}, s{PTR[p]+1}, 0\ns_sub_u32 s{s+2}, {n}, s{off}\ns_mov_b32 s{s+3}, 0x00020000")
        if E_("TS0"): k("v_writelane_b32 v255, s58, 0")
        self.ts0()
        mk(WUK, "wuk", 0x400000, sB); mk(CKV, "ckv", 2048 * 1024)
        self.run(self.wdma(0)); self.ts0(); self.run(self.xdma(0)); self.ts0()
        mk(WM, "wmod", 512 * 6144); mk(CS, "c", 1024); mk(XS, "x", 2048 * 1024)
        mk(WS, "ws", WS_SIZE); mk(WUV, "wuv", 0x400000, sB); mk(WQ, "wq", 0x400000, sB); mk(DBG, "dbg", 256)
        k(f"""s_lshl_b32 s{sB}, s{sX}, 19
        s_lshl_b32 s{sD}, s{sJ}, 8
        s_add_u32 s{sB}, s{sB}, s{sD}""")
        mk(WO, "wo", 0x400000, sB)
        mk(WD_, "wd", 1792 * 1024); mk(OUT, "out", 2048 * 1024)
        k(f"s_mov_b64 s[{sPG}:{sPG+1}], s[{PTR['wg']}:{PTR['wg']+1}]\ns_mov_b64 s[{sPG+2}:{sPG+3}], s[{PTR['wu']}:{PTR['wu']+1}]")
        if self.TS: k(f"s_mov_b32 s{TSR[0]}, s58"); self.nts = 1
        mk(WR_, "wr", 1024)
        k(f"""s_lshl_b32 s{sVB}, s{sW}, 19
        s_and_b32 s{sB}, s{sWB}, {7 << 19}
        s_xor_b32 s{sVB}, s{sVB}, s{sB}
        s_lshr_b32 s{sB}, s{sP}, {int(E_("RV", "1"))}
        s_and_b32 s{sB}, s{sB}, {int(E_("RVM", "0"))}
        s_lshl_b32 s{sVX}, s{sB}, 12                ; column half order of the V projection
        s_lshl_b32 s{sB}, s{sB}, 7
        s_add_u32 s{sVB}, s{sVB}, s{sB}
        s_lshl_b32 s{sB}, s{sJ}, 1
        s_xor_b32 s{sB}, s{sB}, s{sP}
        s_and_b32 s{sB}, s{sB}, {int(E_("RQM", "0"))}
        s_lshl_b32 s{sQR}, s{sB}, 11                ; chunk order of the Q projection
        s_lshl_b32 s{sB}, s{sB}, 19
        s_lshl_b32 s{sQB}, s{sW}, 17
        s_add_u32 s{sQB}, s{sQB}, s{sB}
        s_lshl_b32 s{sKV}, s{sH}, 20
        s_add_u32 s{sKV}, s{sKV}, {WS_KV}
        s_lshl_b32 s{sB}, s{sP}, 17
        s_add_u32 s{sKVST}, s{sKV}, s{sB}
        s_lshr_b32 s{sB}, s{sW}, 1
        s_lshl_b32 s{sB}, s{sB}, 16
        s_add_u32 s{sKVST}, s{sKVST}, s{sB}
        s_and_b32 s{sB}, s{sW}, 1
        s_lshl_b32 s{sB}, s{sB}, 14
        s_add_u32 s{sKVST}, s{sKVST}, s{sB}
        s_add_u32 s{sKV}, s{sKV}, s{sW8}
        s_min_u32 s{sKp}, s{sT1}, 1
        s_lshl_b32 s{sKp}, s{sKp}, 16
        s_add_u32 s{sKp}, s{sKp}, s{sKV}
        s_cmp_lt_u32 s{sP}, 2
        s_cselect_b32 s{sEO}, 0, 64
        s_lshl_b32 s{sB}, s{sP}, 3
        s_add_u32 s{sB}, s{sB}, s{sX}
        s_lshl_b32 s{sB}, s{sB}, 8
        s_mul_i32 s{sC}, s{sJ}, 12288
        s_add_u32 s{sB}, s{sB}, s{sC}
        s_add_u32 s{sB}, s{sB}, {WS_MODP}
        s_cmp_lt_u32 s{sP}, 6
        s_cselect_b32 s{sMODO}, s{sB}, {OOB}
        s_cselect_b32 s{sEO}, s{sEO}, {OOB}
        s_cmp_eq_u32 s{sW}, 0
        s_cselect_b32 s{sMODO}, s{sMODO}, {OOB}
        s_lshl_b32 s{sLNP}, s{sW}, 9
        s_add_u32 s{sLNP}, s{sLNP}, {WS_MODP}
        s_lshr_b32 s{sHST}, s2, 1
        s_lshl_b32 s{sHST}, s{sHST}, 14
        s_and_b32 s{sB}, s2, 1
        s_lshl_b32 s{sB}, s{sB}, 7
        s_add_u32 s{sHST}, s{sHST}, s{sB}
        s_add_u32 s{sHST}, s{sHST}, s{sW4}
        s_add_u32 s{sHST}, s{sHST}, {WS_H}
        s_lshl_b32 s{sHFO}, s2, 2
        s_add_u32 s{sHFO}, s{sHFO}, s{sW}
        s_lshl_b32 s{sHFO}, s{sHFO}, 6
        s_add_u32 s{sHFO}, s{sHFO}, {WS_HF}
        s_lshl_b32 s{sKFP}, s{sH}, 11
        s_add_u32 s{sKFP}, s{sKFP}, {WS_KVF}
        s_lshl_b32 s{sKFO}, s{sP}, 2
        s_add_u32 s{sKFO}, s{sKFO}, s{sW}
        s_lshl_b32 s{sKFO}, s{sKFO}, 6
        s_add_u32 s{sKFO}, s{sKFO}, s{sKFP}
        s_lshr_b32 s{sB}, s{sW}, 1
        s_sub_u32 s{sC}, 3, s{sB}
        s_and_b32 s{sA}, s{sW}, 1
        s_cselect_b32 s{sB}, s{sC}, s{sB}          ; row group projected by this wave
        s_lshl_b32 s{sH1}, s{sT1}, 2
        s_add_u32 s{sH1}, s{sH1}, s{sB}
        s_lshl_b32 s{sH2}, s{sT2}, 2
        s_add_u32 s{sH2}, s{sH2}, s{sB}
        s_sub_u32 s{sHFD}, s{sH2}, s{sH1}
        s_lshl_b32 s{sHFD}, s{sHFD}, 10
        s_lshl_b32 s{sHF1}, s{sH1}, 10
        s_add_u32 s{sHF1}, s{sHF1}, {WS_HF - 65536}
        s_lshl_b32 s{sH1}, s{sH1}, 15
        s_add_u32 s{sH1}, s{sH1}, {WS_H}
        s_add_u32 s{sH1}, s{sH1}, s{sQR}
        s_lshl_b32 s{sH2}, s{sH2}, 15
        s_add_u32 s{sH2}, s{sH2}, {WS_H}
        s_add_u32 s{sH2}, s{sH2}, s{sQR}
        s_add_u32 s{sVX}, s{sVX}, s{sKVST}""")
        k(f"""v_and_b32 v48, 15, v2          ; i16
        v_lshrrev_b32 v49, 4, v2       ; q4
        v_lshrrev_b32 v50, 1, v48
        v_xor_b32 v50, v50, v49
        v_lshlrev_b32 v50, 4, v50
        v_lshl_add_u32 v28, v48, 7, v50
        v_add_u32 v28, s{sW8}, v28
        v_xor_b32 v29, 64, v28
        v_add_u32 v30, 65536, v28
        v_add_u32 v31, 65536, v29
        v_lshrrev_b32 v50, 2, v48     ; r
        v_and_b32 v51, 3, v48         ; c
        v_lshl_add_u32 v52, v49, 3, v50      ; row = 8q4 + r
        v_lshlrev_b32 v53, 8, v52
        v_lshl_add_u32 v53, v51, 3, v53
        v_add_u32 v53, {R3}, v53
        v_and_b32 v54, 1, v49
        v_lshl_add_u32 v54, v54, 2, v50      ; f""")
        for nt in range(8):
            k(f"v_xor_b32 v55, {nt}, v54\nv_lshl_add_u32 v{8+nt}, v55, 5, v53")
        k(f"""v_bfe_u32 v49, v2, 1, 2
        v_bfe_u32 v50, v2, 4, 1
        v_xor_b32 v49, v49, v50
        v_lshlrev_b32 v49, 5, v49
        v_and_b32 v50, 1, v2
        v_lshl_add_u32 v49, v50, 4, v49
        v_lshl_add_u32 v24, v85, 13, v49
        v_xor_b32 v25, 64, v24
        v_add_u32 v25, {64512}, v25
        v_add_u32 v26, {2*64512}, v24
        v_add_u32 v27, {2*64512}, v25
        v_cmp_eq_u32 vcc, 0, v2
        v_mov_b32 v6, {OOB}
        v_cndmask_b32 v5, v6, v2, vcc
        v_cmp_eq_u32 vcc, 0, v0
        v_cndmask_b32 v7, v6, v0, vcc
        v_and_b32 v48, 8, v2
        v_cmp_eq_u32 vcc, 0, v48
        v_lshlrev_b32 v48, 5, v84
        v_lshrrev_b32 v49, 1, v2
        v_and_b32 v49, 24, v49
        v_add_u32 v48, v48, v49
        s_lshl_b32 s{sB}, s{sW}, 8
        s_add_u32 s{sB}, s{sB}, {MISC}
        v_add_u32 v48, s{sB}, v48
        v_mov_b32 v49, {MISC + 1024}
        v_cndmask_b32 v98, v49, v48, vcc
        v_lshlrev_b32 v99, 5, v84
        v_add_u32 v99, {MISC + 2048}, v99
        s_lshl_b32 s{sB}, s{sW}, 3
        v_add_u32 v100, s{sB}, v99
        v_lshlrev_b32 v106, 5, v85
        v_lshlrev_b32 v107, 8, v85
        v_lshl_add_u32 v107, v84, 4, v107
        s_lshl_b32 s{sZO}, s2, 12
        s_add_u32 s{sZO}, s{sZO}, {WS_HF}
        s_cmp_lt_u32 s2, 64
        s_cselect_b32 s{sZO}, s{sZO}, {OOB}
        s_mul_i32 s{sD}, s{sJ}, {128*6144}
        s_lshl_b32 s{sSD}, s{sP}, 3
        s_add_u32 s{sSD}, s{sSD}, s{sX}
        s_lshl_b32 s{sSD}, s{sSD}, 7
        s_add_u32 s{sSD}, s{sSD}, s{sD}
        s_cmp_lt_u32 s{sP}, 6
        s_cselect_b32 s{sSD}, s{sSD}, {OOB - 0x10000}
        s_lshl_b32 s{sB}, s{sJ}, 8
        v_add_u32 v65, s{sB}, v65
        v_mov_b32 v6, 1
        v_mov_b32 v4, 0""")
        self.ts0()
        if E_("SIDE", "0") == "0": self.run(self.side())
        self.run(self.wdma(1) + self.xdma(1))
        self.ts0()
        if E_("TS0"):
            k.waitvm([("x", 0), ("w", 0)], True); self.ts0()
            k.waitvm(["pf"], True); self.ts0()
            k("s_waitcnt vmcnt(0)"); self.ts0()
            k(f"""s_lshl_b32 s{sB}, s2, 2
            s_add_u32 s{sB}, s{sB}, s{sW}
            s_lshl_b32 s{sB}, s{sB}, 6
            s_add_u32 s{sB}, s{sB}, {WS_TS}
            v_lshlrev_b32 v5, 2, v2
            s_mov_b64 exec, 0xffff
            buffer_store_dword v255, v5, {srd(WS)}, s{sB} offen
            s_endpgm""")

    def side(self):
        return items(f"""buffer_load_dwordx2 v[66:67], v65, {srd(CS)}, 0 offen
        buffer_load_dwordx4 v[68:71], v64, {srd(WM)}, s{sSD} offen {NT}
        s_add_u32 s{sSD}, s{sSD}, 6144
        buffer_load_dwordx4 v[72:75], v64, {srd(WM)}, s{sSD} offen {NT}
        s_add_u32 s{sSD}, s{sSD}, 6144
        buffer_load_dwordx4 v[76:79], v64, {srd(WM)}, s{sSD} offen {NT}
        s_add_u32 s{sSD}, s{sSD}, 6144
        buffer_load_dwordx4 v[80:83], v64, {srd(WM)}, s{sSD} offen {NT}
        s_lshl_b32 s{sSD}, s2, 5
        s_add_u32 s{sSD}, s{sSD}, s{sW}
        s_lshl_b32 s{sSD}, s{sSD}, 8
        buffer_load_dwordx4 v[88:91], v86, {srd(XS)}, s{sSD} offen {NT}
        buffer_load_dwordx4 v[92:95], v86, {srd(XS)}, s{sSD} offen offset:128 {NT}""")
    XR = [R0, R1, R2]
    WSL = [R3, R3 + 16384, R4]
    WQB = [R4, R3, R3 + 16384, MISC, R0, R0 + 16384, R1, R1 + 16384]
    VQB = [R2, R0, R1, R2]
    def xdma(self, s):
        it = []
        for g in range(2):
            it += self.dma4(CKV, [16, 17, 18, 19], (sW8, self.XR[s % 3] + g * 4096), (sXB, s * 128 + g * 32768), ("x", s), True)
        return it
    def wdma(self, s): return self.dma4(WUK, [20, 21, 22, 23], (sW4, self.WSL[s % 3]), (sWB, s * 64 * 8192), ("w", s), True)
    def qdma(self, c): return self.dma4(WQ, [20, 21, 22, 23], (sW4, self.WQB[c]), (sQB, c * 64 * 8192), ("q", c), True)
    def vdma(self, c):
        it = []
        for g in range(2):
            it += self.dma4(WUV, [24, 25, 26, 27], (sW8, self.VQB[c] + g * 4096), (sVB, (c >> 1) * 128 + (c & 1) * 256 * 8192 + g * 4 * 65536), ("v", c), True, c < int(E_("VNT", "0")))
        return it

    def modA(self):
        C, T, AC = 102, 108, 120
        t = f"""v_lshlrev_b32 v{C}, 16, v66
        v_and_b32 v{C+1}, 0xffff0000, v66
        v_lshlrev_b32 v{C+2}, 16, v67
        v_and_b32 v{C+3}, 0xffff0000, v67
        """
        for i in range(4): t += f"v_mul_f32 v{T+i}, {H(-LOG2E)}, v{C+i}\n"
        for i in range(4): t += f"v_exp_f32 v{T+i}, v{T+i}\n"
        for i in range(4): t += f"v_add_f32 v{T+i}, 1.0, v{T+i}\n"
        for i in range(4): t += f"v_rcp_f32 v{T+i}, v{T+i}\n"
        for i in range(4): t += f"v_mul_f32 v{C+i}, v{C+i}, v{T+i}\n"
        t += f"""v_cvt_pk_bf16_f32 v{T}, v{C}, v{C+1}
        v_cvt_pk_bf16_f32 v{T+1}, v{C+2}, v{C+3}
        v_lshlrev_b32 v{C}, 16, v{T}
        v_and_b32 v{C+1}, 0xffff0000, v{T}
        v_lshlrev_b32 v{C+2}, 16, v{T+1}
        v_and_b32 v{C+3}, 0xffff0000, v{T+1}
        """
        for r in range(4):
            for i in range(4):
                a, b = T + 2 * (i & 1), T + 2 * (i & 1) + 1
                op = "v_mul_f32" if r == 0 else "v_fmac_f32"
                t += f"""v_lshlrev_b32 v{a}, 16, v{68+4*r+i}
                v_and_b32 v{b}, 0xffff0000, v{68+4*r+i}
                {op} v{AC+2*i}, v{a}, v{C+r}
                {op} v{AC+2*i+1}, v{b}, v{C+r}
                """
        for i in range(4): t += f"v_permlane32_swap_b32 v{AC+i}, v{AC+4+i}\n"
        for i in range(4): t += f"v_add_f32 v{AC+i}, v{AC+i}, v{AC+4+i}\n"
        for i in range(2): t += f"v_permlane16_swap_b32 v{AC+i}, v{AC+2+i}\n"
        for i in range(2): t += f"v_add_f32 v{AC+i}, v{AC+i}, v{AC+2+i}\n"
        for i in range(2): t += f"v_add_f32_dpp v{AC+i}, v{AC+i}, v{AC+i} row_ror:8 row_mask:0xf bank_mask:0xf\n"
        t += f"ds_write_b64 v98, v[{AC}:{AC+1}]\n"
        return items(t)
    def red16(self, b):
        t = ""
        for i in range(8): t += f"v_permlane32_swap_b32 v{b+i}, v{b+8+i}\n"
        for i in range(8): t += f"v_add_f32 v{b+i}, v{b+i}, v{b+8+i}\n"
        for i in range(4): t += f"v_permlane16_swap_b32 v{b+i}, v{b+4+i}\n"
        for i in range(4): t += f"v_add_f32 v{b+i}, v{b+i}, v{b+4+i}\n"
        for pat in ("quad_perm:[1,0,3,2]", "quad_perm:[2,3,0,1]", "row_half_mirror", "row_mirror"):
            for i in range(4): t += f"v_add_f32_dpp v{b+i}, v{b+i}, v{b+i} {pat} row_mask:0xf bank_mask:0xf\n"
        return t
    def modB(self):
        it = items(f"""v_lshrrev_b32 v87, 2, v1
        v_add_u32 v101, {MISC}, v87
        ds_read_b32 v102, v101
        ds_read_b32 v103, v101 offset:256
        ds_read_b32 v104, v101 offset:512
        ds_read_b32 v105, v101 offset:768""")
        it2 = items(f"""v_add_f32 v102, v102, v103
        v_add_f32 v104, v104, v105
        v_add_f32 v102, v102, v104""")
        it2.append(("m", f"buffer_store_dword v102, v87, {srd(WS)}, s{sMODO} offen {WT}", "mod"))
        return it, it2
    def red8(self, v, t):
        return f"""v_add_f32_dpp v{v}, v{v}, v{v} row_ror:8 row_mask:0xf bank_mask:0xf
        v_mov_b32 v{t}, v{v}
        v_permlane16_swap_b32 v{v}, v{t}
        v_add_f32 v{v}, v{v}, v{t}
        v_mov_b32 v{t}, v{v}
        v_permlane32_swap_b32 v{v}, v{t}
        v_add_f32 v{v}, v{v}, v{t}
        """
    XH = 64
    def lnA(self):
        X = self.XH
        t = ""
        for i in range(8): t += f"v_lshlrev_b32 v{X+2*i}, 16, v{88+i}\nv_and_b32 v{X+2*i+1}, 0xffff0000, v{88+i}\n"
        t += f"v_add_f32 v108, v{X}, v{X+1}\nv_add_f32 v109, v{X+2}, v{X+3}\n"
        for i in range(4, 16, 2): t += f"v_add_f32 v108, v108, v{X+i}\nv_add_f32 v109, v109, v{X+i+1}\n"
        t += "v_add_f32 v108, v108, v109\n" + self.red8(108, 110)
        t += f"v_mul_f32 v108, {H(1/128)}, v108\n"
        t += f"v_sub_f32 v110, v{X}, v108\nv_mul_f32 v109, v110, v110\n"
        for i in range(1, 16): t += f"v_sub_f32 v{110+(i&1)}, v{X+i}, v108\nv_fmac_f32 v109, v{110+(i&1)}, v{110+(i&1)}\n"
        t += self.red8(109, 110)
        t += "ds_write_b64 v100, v[108:109]\n"
        return items(t)
    def lnB(self):
        X = self.XH
        it = items(f"""ds_read_b128 v[88:91], v99
        ds_read_b128 v[92:95], v99 offset:16""")
        t = f"""v_add_f32 v108, v88, v90
        v_add_f32 v109, v92, v94
        v_add_f32 v108, v108, v109
        v_mul_f32 v108, {H(0.25)}, v108
        v_add_f32 v109, v89, v91
        v_add_f32 v110, v93, v95
        v_add_f32 v109, v109, v110
        v_sub_f32 v88, v88, v108
        v_sub_f32 v90, v90, v108
        v_sub_f32 v92, v92, v108
        v_sub_f32 v94, v94, v108
        v_mul_f32 v110, v88, v88
        v_fmac_f32 v110, v90, v90
        v_fmac_f32 v110, v92, v92
        v_fmac_f32 v110, v94, v94
        v_fmac_f32 v109, {H(128.0)}, v110
        v_mov_b32 v110, {H(1e-5)}
        v_fmac_f32 v110, {H(1/512)}, v109
        v_rsq_f32 v110, v110
        """
        for i in range(16): t += f"v_sub_f32 v{X+i}, v{X+i}, v108\n"
        for i in range(16): t += f"v_mul_f32 v{X+i}, v{X+i}, v110\n"
        return it, items(t)
    def lnC_loads(self):
        it = items(f"""v_and_b32 v96, 31, v2
        v_lshlrev_b32 v96, 4, v96
        v_lshrrev_b32 v97, 5, v2
        v_lshl_add_u32 v96, v97, 11, v96""")
        ld = []
        for q in range(4):
            ld += [("m", f"buffer_load_dwordx4 v[{80+4*q}:{83+4*q}], v96, {srd(WS)}, s{sLNP} offen")]
            if q < 3: ld += [("s", f"s_add_u32 s{sLNP}, s{sLNP}, 12288")]
        return it, ld
    def lnC_fin(self):
        t = ""
        for e in range(4): t += f"v_add_f32 v{80+e}, v{80+e}, v{84+e}\nv_add_f32 v{88+e}, v{88+e}, v{92+e}\n"
        for e in range(4): t += f"v_add_f32 v{80+e}, v{80+e}, v{88+e}\n"
        rnd = lambda: "".join(f"v_cvt_pk_bf16_f32 v{84+e}, v{80+2*e}, v{81+2*e}\n" for e in range(2)) + "".join(f"v_lshlrev_b32 v{80+2*e}, 16, v{84+e}\nv_and_b32 v{81+2*e}, 0xffff0000, v{84+e}\n" for e in range(2))
        t += "v_lshrrev_b32 v88, 5, v2\nv_cvt_f32_u32 v88, v88\n" + rnd()
        for e in range(4): t += f"v_add_f32 v{80+e}, v{80+e}, v88\n"
        t += rnd()
        for e in range(4): t += f"v_mul_f32 v{80+e}, {H(QSCALE)}, v{80+e}\n"
        t += f"""s_lshl_b32 s{sLNP}, s{sW}, 10
        s_add_u32 s{sLNP}, s{sLNP}, {MISC + 4096}
        v_add_u32 v88, s{sLNP}, v1
        v_add_u32 v18, s{sLNP}, v18
        ds_write_b128 v88, v[80:83]
        """
        return items(t)
    def lnC_rd(self, i):
        return [("l", f"ds_read_b128 v[{80+seg*8+hf*4}:{83+seg*8+hf*4}], v18 offset:{seg*512 + i*256 + hf*16}") for seg in range(2) for hf in range(2)]
    def lnC(self, i):
        X = self.XH + 8 * i
        t = ""
        for e in range(8): t += f"v_fma_f32 v{X+e}, v{X+e}, v{88+e}, v{80+e}\n"
        t2 = ""
        for e in range(4): t2 += f"v_cvt_pk_bf16_f32 v{X+e}, v{X+2*e}, v{X+2*e+1}\n"
        return items(t), items(t2) + [("m", f"buffer_store_dwordx4 v[{X}:{X+3}], v19, {srd(WS)}, s{sHST} offen offset:{2048*i} {WT}", "hst")]

    WF, VACC, ACC = 32, 64, 128
    def proj(self):
        k = self.k; WF, VACC, ACC = self.WF, self.VACC, self.ACC
        M = []
        def kmajor():
            for n in range(16):
                for dt in range(8):
                    for tt in range(4):
                        d = V(ACC + (tt * 8 + dt) * 4)
                        M.append(MF(d, V(WF + 4 * dt), A((n * 4 + tt) * 4), "0" if n == 0 else d))
        kmajor()
        V0 = len(M)
        VST = [(pc, sh, q) for pc in range(4) for sh in range(2) for q in range(4)]
        for i, (pc, sh, q) in enumerate(VST):
            for nt in range(2):
                for tt in range(4):
                    for h in range(2):
                        n = (pc & 1) * 8 + 2 * q + h
                        d = V(VACC + (1 - sh) * 32 + (nt * 4 + tt) * 4)
                        M.append(MF(d, A((n * 4 + tt) * 4), V(WF + ((i & 1) * 4 + nt * 2 + h) * 4), "0" if n == 0 else d))
        Q0 = len(M)
        kmajor()
        ph = Phase(k, M); N = len(M)
        def wread(base, n, dt):
            o = base + (n & 1) * 8192
            return [("l", f"ds_read_b64_tr_b16 v[{WF+4*dt}:{WF+4*dt+1}], v{8+dt} offset:{o}"),
                    ("l", f"ds_read_b64_tr_b16 v[{WF+4*dt+2}:{WF+4*dt+3}], v{8+dt} offset:{o+1024}")]
        def xread(n, tt):
            s = n >> 1; sl = s % 3
            va = (28 if sl < 2 else 30) + (n & 1)
            return ("l", f"ds_read_b128 {A((n*4+tt)*4)}, v{va} offset:{(sl if sl < 2 else 0)*32768 + tt*2048}")
        def vread(i, nt, h):
            pc, sh, q = VST[i]
            reg = self.VQB[pc]; va = 28 + 2 * sh + nt
            o = (reg if reg < R2 else 0) + (2 * q + h) * 4096
            f = WF + ((i & 1) * 4 + nt * 2 + h) * 4
            return [("l", f"ds_read_b64_tr_b16 v[{f}:{f+1}], v{va} offset:{o}"), ("l", f"ds_read_b64_tr_b16 v[{f+2}:{f+3}], v{va} offset:{o+512}")]
        BOFF = 40
        k.waitvm([("x", 0), ("w", 0)], True); k("s_barrier")
        self.ts()
        for it in wread(self.WSL[0] - R3, 0, 0): k(it[1])
        for tt in range(4): k(xread(0, tt)[1])
        for dt in range(1, 8):
            for it in wread(self.WSL[0] - R3, 0, dt): k(it[1])
        for s in range(7): ph.put("x", self.bar([("x", s + 1), ("w", s + 1)]), 64 * s + BOFF)
        ph.put("x", self.bar([("v", 0)]), 64 * 7 + BOFF)
        BV = [V0 + 128 * c + 110 for c in range(4)]
        for c in range(3): ph.put("x", self.bar([("v", c + 1)]), BV[c])
        ph.put("x", self.bar([("q", i) for i in range(4)]), BV[3])
        BQ = Q0 + 64 * 3 + BOFF
        ph.put("x", self.bar([("q", i) for i in range(4, 8)]), BQ)
        BE = Q0 + 32 * 15 + 10
        ph.put("x", self.bar([]), BE)
        for (G0, bases) in ((0, [self.WSL[s % 3] - R3 for s in range(8)]), (Q0, [b - R3 if b >= R3 else b for b in self.WQB])):
            for n in range(0 if G0 else 1, 16):
                for dt in range(8):
                    lo = G0 + 32 * (n - 1) + 4 * dt + 4
                    if n == 0: lo = max(BV[3] + 1, [Q0 - 24, Q0 - 16, Q0 - 8, Q0][dt >> 1])
                    elif n % 2 == 0 and (G0 == 0 or n == 8): lo = max(lo, G0 + 32 * (n - 2) + BOFF + 1)
                    pre = []
                    if G0 and n == 8: pre = [("v", f"v_subrev_u32 v{8+dt}, {R3}, v{8+dt}")]; lo -= 1
                    g = ph.stream(pre + wread(bases[n >> 1], n, dt), lo, G0 + 32 * n + 4 * dt - 6)
                    if n % 2 == 1 and (G0 == 0 or n in (7, 15)): assert g < (G0 + 32 * (n - 1) + BOFF if n < 15 or not G0 else BE), (n, dt, g)
        for n in range(1, 16):
            lo = 32 * (n - 1) + 2
            if n % 2 == 0: lo = 32 * (n - 2) + BOFF + 1
            gx = ph.stream([xread(n, tt) for tt in range(4)], lo, 32 * n - 6)
        vaddr = items(f"""v_and_b32 v16, 15, v2
        v_lshrrev_b32 v17, 4, v2
        v_lshrrev_b32 v29, 2, v16
        v_and_b32 v16, 3, v16
        v_lshl_add_u32 v28, v17, 3, v29
        v_lshlrev_b32 v28, 7, v28
        v_lshl_add_u32 v28, v16, 3, v28
        v_and_b32 v17, 1, v17
        v_lshrrev_b32 v29, 1, v29
        v_lshl_add_u32 v29, v17, 1, v29
        v_lshl_add_u32 v28, v29, 5, v28
        v_add_u32 v28, 65536, v28
        v_xor_b32 v29, 32, v28
        v_xor_b32 v30, 64, v28
        v_xor_b32 v31, 96, v28
        v_and_b32 v16, 15, v2
        v_lshlrev_b32 v16, 6, v16
        v_add_u32 v16, 65536, v16
        v_mad_i32_i24 v16, v17, s{sHFD}, v16
        v_and_b32 v17, 31, v2
        v_lshlrev_b32 v17, 6, v17""")
        g = ph.stream(vaddr, gx + 1)
        assert g <= 64 * 7 + BOFF + 6, g
        for i, (pc, sh, q) in enumerate(VST):
            g0 = V0 + 16 * i
            for nt in range(2):
                for h in range(2):
                    slot = (i & 1) * 4 + nt * 2 + h
                    if i < 2: lo = max(64 * 7 + BOFF + 1, V0 - 32 + 4 * slot + 4)
                    else: lo = g0 - 32 + 8 * nt + 8
                    if pc > 0: lo = max(lo, BV[pc - 1] + 1)
                    pre = []
                    if q == 0 and h == 0 and pc in (1, 3): pre = [("v", f"v_xor_b32 v{28+2*sh+nt}, 65536, v{28+2*sh+nt}")]; lo -= 1
                    g = ph.stream(pre + vread(i, nt, h), max(lo, gprev + 1) if (h and q == 0) else lo, g0 + 8 * nt - 4)
                    gprev = g
                    assert g < BV[pc], (i, g)
        first = self.wdma(2) + self.xdma(2)
        if E_("SIDE", "0") == "1": first = self.side() + first
        if E_("SIDE", "0") == "2": first = first + self.side()
        ph.stream(first, 0, BOFF - 1, sid=900)
        ph.stream(items("".join(f"s_mov_b32 s{d}, s{p}\ns_mov_b32 s{d+1}, s{p+1}\ns_mov_b32 s{d+2}, {512*3584}\n" for (d, p) in ((WG_, sPG), (WU_, sPG + 2)))), 120)
        for s in range(8):
            its = (self.wdma(s + 3) + self.xdma(s + 3)) if s < 5 else self.vdma(s - 5)
            if s == 7: its += self.qdma(0) + self.qdma(1)
            g = ph.stream(its, 64 * s + BOFF + 1, None, step=2 if s < 5 else 4, sid=900)
            assert g < (64 * (s + 1) + BOFF if s < 7 else BV[0]), (s, g)
        g = ph.stream(self.vdma(3) + self.qdma(2) + self.qdma(3), BV[0] + 1, None, step=5, sid=900); assert g < BV[1]
        ph.stream(self.qdma(4) + self.qdma(5), BV[1] + 1, None, step=6, sid=900)
        ph.stream(self.qdma(6) + self.qdma(7), BV[2] + 1, None, step=6, sid=900)
        m1, m2 = self.modB(); l1, l2 = self.lnB()
        zero = items(f"""v_mov_b32 v112, 0
        v_mov_b32 v113, 0
        v_mov_b32 v114, 0
        v_mov_b32 v115, 0
        v_lshlrev_b32 v116, 4, v0""") + [("m", f"buffer_store_dwordx4 v[112:115], v116, {srd(WS)}, s{sZO} offen {WT}", "zero")]
        g = ph.stream(items(f"""v_lshlrev_b32 v117, 13, v2
        s_lshl_b32 s{sB}, s{sP}, 19
        s_and_b32 s{sC}, s{sW}, 1
        s_lshl_b32 s{sC}, s{sC}, 7
        s_add_u32 s{sB}, s{sB}, s{sC}"""), 60, sid=904)
        for w, gp in enumerate(int(x) for x in E_("TG", "102,166,230,294").split(",")):
            ph.put("x", f"""s_cmp_eq_u32 s{sW}, {w}
            s_cselect_b32 s{sC}, s{sB}, {OOB}
            buffer_load_dword a{240+2*w}, v117, {srd(WUV if w < 2 else WQ)}, s{sC} offen nt
            buffer_load_dword a{241+2*w}, v117, {srd(WUV if w < 2 else WQ)}, s{sC} offen offset:4""", gp, tag="pf")
        g = ph.stream(zero, BOFF + 10)
        g = ph.stream(self.modA(), int(E_("MG", "41")), sid=901, dense=int(E_("MD", "1")))
        b1 = (g - BOFF) // 64 + 1
        g0 = g
        ph.put("x", lambda k: k.waitvm(["zero"]), 64 * b1 + BOFF - 1)
        g = ph.stream(m1, 64 * b1 + BOFF + 1, sid=901, dense=1)
        g = ph.stream(m2[:-1], g + 6, sid=901)
        g = ph.put("x", m2[-1][1], g, tag="mod")
        g = ph.put("x", lambda k: k.waitvm(["mod"]), g + int(E_("ED", "60")))
        ph.put("x", f"buffer_atomic_add v6, v7, {srd(DBG)}, s{sEO} offen sc1", g, tag="flag")
        gl = ph.stream(self.lnA(), g0 + 1, sid=902)
        b2 = (gl - BOFF) // 64 + 1
        gl = ph.stream(l1, 64 * b2 + BOFF + 1, sid=902)
        gl = ph.stream(l2, gl + 8, sid=902)
        print("mod barrier", b1, "E at", g, "ln barrier", b2, "lnB end", gl, file=sys.stderr)
        a, ld = self.lnC_loads()
        gl = ph.stream(a, gl + 1, sid=902)
        gva = ph.stream(items("v_mov_b32 v18, v106\nv_mov_b32 v19, v107"), 64 * 5 + BOFF + 1, sid=902)
        PG = int(E_("PG", "330"))
        g = ph.put("x", f"buffer_load_dword v3, v4, {srd(DBG)}, 0 offen {WT}", PG)
        g = ph.put("x", self.poll_check(3, 4, DBG, "0", "E", target=64), max(g + int(E_("PL", "60")), gl))
        g = ph.stream(ld, g + 1, sid=902); assert g < V0 - 2
        g = ph.stream(self.lnC_fin(), max(g + int(E_("PL2", "50")), gva + 1), sid=902, dense=int(E_("FD", "1")))
        for i in range(2):
            g = ph.stream(self.lnC_rd(i), g + (6 if i == 0 else 1), sid=902)
            a, b = self.lnC(i)
            g = ph.stream(a, g + 6, sid=902)
            g2 = ph.stream(b, g + 1, sid=902)
        assert g2 < V0 + 60, g2
        print("h stored at", g2, file=sys.stderr)
        g = ph.stream(self.flag_store(sHFO, ["hst"]), g2 + 70)
        def epi(b, off, vtype=False):
            it = [("v", f"v_cvt_pk_bf16_f32 v{b+i}, v{b+2*i}, v{b+2*i+1}") for i in range(4)]
            it.append(("s", f"s_xor_b32 s{sEPI}, s{sVX if vtype else sKVST}, {off & ~4095}"))
            it.append(("m", f"buffer_store_dwordx4 {V(b)}, v1, {srd(WS)}, s{sEPI} offen offset:{off & 4095} {WT}", "kv"))
            return it
        ep = []
        kst = [10 + 18 * i for i in range(10)] + [330 + 18 * i for i in range(6)]
        for tt in range(4):
            for u in range(4): ep.append((V0 + kst[tt * 4 + u], epi(ACC + (tt * 8 + 2 * u) * 4, tt * 4096 + u * 1024), Q0 - 4))
        for c in range(4):
            done = V0 + [192, 256, 448, 512][c]
            for nt in range(2):
                for kbl in range(2):
                    i = nt * 2 + kbl
                    ep.append((done + 6 + (12 if c < 3 else 6) * i, epi(VACC + (1 - (c & 1)) * 32 + (nt * 4 + 2 * kbl) * 4, 32768 + kbl * 8192 + (2 * c + nt) * 1024, True), done + 62))
        ep.sort(key=lambda e: e[0])
        g = 0
        for (lo, its, dl) in ep:
            g = ph.stream(its, max(lo, g + 1)); assert g < dl
        g = ph.stream(self.flag_store(sKFO, ["kv"]), g + int(E_("KVD", "70")))
        HG = V0 + 384
        g = ph.stream([("m", f"buffer_load_dword v3, v16, {srd(WS)}, s{sHF1} offen {WT}")], HG - 44)
        ph.put("x", self.poll_check(3, 16, WS, f"s{sHF1}", "H"), HG)
        g = HG + 1
        for n in range(16):
            for tt in range(4):
                lo = max(HG + 64 + 16 * ((n - 8) // 2 + 1) if n >= 8 else 0, HG + 1 + 7 * (n * 4 + tt))
                off = (tt & 1) * 16384 + n * 1024
                g = ph.stream([("s", f"s_xor_b32 s{sHLD}, s{sH1 + (tt >> 1)}, {off & ~2047}"),
                               ("m", f"buffer_load_dwordx4 {A((n*4+tt)*4)}, v1, {srd(WS)}, s{sHLD} offen offset:{off & 2047}")], max(lo, g + 1))
        g = ph.stream(moe_setup(), V0 + 20)
        a, ld = late_mod_loads(self, 112)
        g = ph.stream(a + [("s", f"s_mov_b32 s{sEO}, 64"), ("m", f"buffer_load_dword v118, v4, {srd(DBG)}, s{sEO} offen {WT}")], Q0 + 20, sid=903)
        g = ph.put("x", self.poll_check(118, 4, DBG, f"s{sEO}", "E2", target=128), g + 50)
        g = ph.stream(ld, g + 1, sid=903)
        g = ph.stream(late_mod_fin(self, 112), g + 60, sid=903)
        KG = int(E_("KG", "30"))
        g = ph.stream([("m", f"buffer_load_dword v3, v17, {srd(WS)}, s{sKFP} offen {WT}")], BQ + KG - 40)
        ph.put("x", self.poll_check(3, 17, WS, f"s{sKFP}", "KV"), BQ + KG)
        its = []
        for (lds, so, tag) in ((R2, (sKV, 0), "k0"), (R3, (sKV, 32768), "v0"), (R4, (sKp, 0), "k1")):
            for g2 in range(2):
                its += self.dma4(WS, [1, 1, 1, 1], (sW8, lds + g2 * 4096), (so[0], so[1] + g2 * 4096), tag)
        g = ph.stream(its, BQ + KG + 1, None, step=int(E_("KST", "5")), sid=900)
        g2 = ph.stream(attn_setup(self), BQ + KG + 2)
        cl = cold_loads(120, sEPI)
        nf = [i for i, it in enumerate(cl) if it[0] == "m"][0]
        g2 = ph.stream(cl[:nf], g2 + 1, sid=905)
        g = ph.stream(cl[nf:], max(g, g2) + 1, sid=905)
        print("cold loads end at", g, file=sys.stderr)
        if self.TS:
            ph.put("x", self.ts, V0 - 1); ph.put("x", self.ts, Q0 - 1)
            for gp in (E_("TSP") or "").split(","):
                if gp: ph.put("x", lambda k: self.ts(k, True), int(gp))
        ph.emit()
        print("proj: overloaded placements", ph.over, file=sys.stderr)
        self.ts()


def build(stop=None):
    g = G()
    k = g.k
    g.startup(); g.proj()
    if stop != "proj":
        attention(g)
        if stop != "attn":
            oproj(g); tail(g)
    else:
        qdump(g)
    k.label("L_fin")
    if g.TS:
        k("s_waitcnt vmcnt(0)"); g.ts()
        k(f"""s_lshl_b32 s{sB}, s2, 2
        s_add_u32 s{sB}, s{sB}, s{sW}
        s_lshl_b32 s{sB}, s{sB}, 6
        s_add_u32 s{sB}, s{sB}, {WS_TS}
        v_cmp_eq_u32 vcc, 0, v2
        v_mov_b32 v6, {OOB}
        s_nop 1
        v_cndmask_b32 v5, v6, v2, vcc""")
        for n in range(g.nts):
            k(f"v_mov_b32 v4, s{TSR[n]}\nbuffer_store_dword v4, v5, {srd(WS)}, s{sB} offen offset:{4*n}")
    k.label("L_end")
    k("s_endpgm")
    lines = k.out + "\n".join(g.tail).split("\n") + ["L_code_end:", "    s_endpgm"]
    lines, nn = fix_hazards(lines, report=bool(E_("NOPS")))
    print("nops inserted:", nn, file=sys.stderr)
    hdr = open(os.path.join(HERE, "..", NAME + ".s.ref")).read().split("; Override launch geometry")[0]
    kn = NAME + "_kernel"
    text = hdr + f"""; @launch grid=(256,1,1) block=(256,1,1) lds=163840
.amdgcn_target "amdgcn-amd-amdhsa--gfx950"
.text
.globl {kn}
.p2align 8
.type {kn},@function
{kn}:
""" + "\n".join(lines) + f"""
.section .rodata,"a"
.p2align 6
.amdhsa_kernel {kn}
  .amdhsa_next_free_vgpr 512
  .amdhsa_next_free_sgpr 102
  .amdhsa_accum_offset 256
  .amdhsa_group_segment_fixed_size 0
  .amdhsa_kernarg_size 128
  .amdhsa_user_sgpr_count 2
  .amdhsa_user_sgpr_kernarg_segment_ptr 1
  .amdhsa_system_sgpr_workgroup_id_x 1
.end_amdhsa_kernel
"""
    return text, lines

if __name__ == "__main__":
    path = sys.argv[1] if len(sys.argv) > 1 else os.path.join(HERE, "..", NAME + ".s")
    text, lines = build(E_("STOP"))
    verify_all(lines)
    open(path, "w").write(text)
    print("wrote", path, len(text), file=sys.stderr)
```

```python
import sys, os
sys.path.insert(0, os.path.dirname(os.path.abspath(__file__)))
from common import *
from gen_attn import *
from gen_tail import *

TSR = list(range(83, 96)) + ([76, 77, 78] if not E_('TSP') else [])
NTS = [dict(k=WUK, v=WUV, q=WQ, o=WO)[c] for c in E_('NTS', 'k')]
class G:
    def __init__(self):
        self.k = K(); self.tail = []
        self.TS = E_("TS"); self.nts = 0
    def ts(self, k=None, force=False):
        if not self.TS: return
        if (E_("TSP") or E_("TSO") or E_("TSA")) and not force: return
        k = k or self.k
        n = self.nts; self.nts += 1
        assert n < len(TSR)
        k(f"{'s_memrealtime' if self.TS == 'r' else 's_memtime'} vcc\ns_waitcnt lgkmcnt(0)\ns_mov_b32 s{TSR[n]}, vcc_lo")
    def ts0(self):
        if not E_("TS0"): return
        self.n0 = getattr(self, "n0", 0) + 1
        self.k(f"s_memrealtime vcc\ns_waitcnt lgkmcnt(0)\nv_writelane_b32 v255, vcc_lo, {self.n0}")
    def poll_check(self, vreg, vaddr, sr, soff, name, target=None):
        def f(k):
            slow, back = k.lab(name + "_slow"), k.lab(name + "_ok")
            cmp_ = f"v_cmp_ne_u32 vcc, 0, v{vreg}" if target is None else f"v_cmp_le_u32 vcc, {target}, v{vreg}"
            k(f"{cmp_}\ns_cmp_eq_u64 vcc, -1\ns_cbranch_scc0 {slow}")
            k.label(back)
            self.tail.append(f"""{slow}:
    s_mov_b32 s{sD}, 0
{slow}_l:
    s_sleep 4
    buffer_load_dword v{vreg}, v{vaddr}, {srd(sr)}, {soff} offen {WT}
    s_add_u32 s{sD}, s{sD}, 1
    s_waitcnt vmcnt(0)
    {cmp_}
    s_cmp_eq_u64 vcc, -1
    s_cbranch_scc1 {back}
    s_cmp_lt_u32 s{sD}, {SPIN}
    s_cbranch_scc1 {slow}_l
    s_branch {back}""")
        return f
    def dma4(self, sr, voffs, m0, so, tag, xor=False, nt=None):
        it = [("s", f"s_add_u32 m0, s{m0[0]}, {m0[1]}"), ("s", f"{'s_xor_b32' if xor else 's_add_u32'} s{sA}, s{so[0]}, {so[1]}")]
        for i in range(4):
            it.append(("m", f"buffer_load_dwordx4 v{voffs[i]}, {srd(sr)}, s{sA} offen offset:{i*1024} {NT if (sr in NTS if nt is None else nt) else ''} lds", tag))
        return it
    def run(self, its):
        for it in its:
            if callable(it[1]): it[1](self.k)
            else: self.k(it[1], it[2] if len(it) > 2 else None)
    def bar(self, tags, lgkm0=True):
        def f(k):
            k.waitvm(tags, lgkm0); k("s_barrier")
        return f
    def flag_store(self, so, tags):
        return [("x", lambda k: k.waitvm(tags)), ("m", f"buffer_store_dword v6, v5, {srd(WS)}, s{so} offen {WT}", "flag")]

    def startup(self):
        k = self.k
        if self.TS: k(f"{'s_memrealtime' if self.TS == 'r' else 's_memtime'} s[58:59]")
        k(f"""s_cmp_ge_u32 s2, 256
        s_cbranch_scc1 L_end
        s_load_dwordx16 s[64:79], s[0:1], 0
        s_load_dwordx16 s[80:95], s[0:1], 64
        s_getpc_b64 s[{sB}:{sC}]
        L_pf1:
        v_lshrrev_b32 v3, 6, v0
        v_and_b32 v2, 63, v0
        s_lshr_b32 s{sJ}, s2, 3
        s_mul_i32 s{sA}, s{sJ}, 24
        v_min_u32 v5, 5, v2
        v_mad_u32_u24 v5, v3, 6, v5
        v_add_u32 v5, s{sA}, v5
        v_lshlrev_b32 v5, 7, v5
        v_min_u32 v5, L_code_end-L_pf1, v5""")
        k(f"global_load_dword a255, v5, s[{sB}:{sC}]", "pf")
        k(f"""v_readfirstlane_b32 s{sW}, v3
        v_lshlrev_b32 v1, 4, v2
        s_and_b32 s{sX}, s2, 7
        s_and_b32 s{sJ}, s{sJ}, 3
        s_lshr_b32 s{sP}, s2, 5
        s_lshl_b32 s{sH}, s{sX}, 2
        s_add_u32 s{sH}, s{sH}, s{sJ}
        s_mov_b32 s{sT1}, s{sP}
        s_sub_u32 s{sT2}, 15, s{sP}
        v_lshrrev_b32 v3, 3, v2
        v_lshrrev_b32 v4, 4, v2
        v_and_b32 v5, 7, v2
        v_xor_b32 v5, v5, v4
        v_lshlrev_b32 v5, 4, v5
        v_lshl_add_u32 v16, v3, 10, v5
        v_xor_b32 v17, 64, v16
        v_add_u32 v17, {7168}, v17
        v_add_u32 v18, {2*7168}, v16
        v_add_u32 v19, {2*7168}, v17
        ; W (k-major): v20..23
        v_bfe_u32 v5, v2, 1, 3
        v_xor_b32 v5, v5, v4
        v_lshlrev_b32 v5, 5, v5
        v_and_b32 v6, 1, v2
        v_lshl_add_u32 v5, v6, 4, v5
        v_lshl_add_u32 v20, v4, 13, v5
        v_add_u32 v21, {31744}, v20
        v_xor_b32 v22, 128, v20
        v_add_u32 v22, {2*31744}, v22
        v_add_u32 v23, {31744}, v22
        s_lshl_b32 s{sW8}, s{sW}, 13
        s_lshl_b32 s{sW4}, s{sW}, 12
        s_lshl_b32 s{sXB}, s{sP}, 18
        s_lshl_b32 s{sA}, s{sW}, 16
        s_add_u32 s{sXB}, s{sXB}, s{sA}
        s_lshl_b32 s{sWB}, s{sW}, 17
        s_lshl_b32 s{sD}, s{sJ}, {int(E_("RJ", "0"))}
        s_xor_b32 s{sD}, s{sD}, s{sP}
        s_lshl_b32 s{sD}, s{sD}, {int(E_("RS", "3"))}
        s_and_b32 s{sD}, s{sD}, 7
        s_lshl_b32 s{sA}, s{sD}, 7
        s_add_u32 s{sXB}, s{sXB}, s{sA}
        s_lshl_b32 s{sA}, s{sD}, 19
        s_add_u32 s{sWB}, s{sWB}, s{sA}
        v_and_b32 v84, 7, v2
        v_lshrrev_b32 v65, 3, v0
        v_mul_u32_u24 v64, 24576, v65
        v_lshl_add_u32 v64, v84, 4, v64
        v_lshlrev_b32 v65, 3, v65
        v_lshrrev_b32 v85, 3, v2
        v_lshlrev_b32 v86, 10, v84
        v_lshl_add_u32 v86, v85, 4, v86
        s_lshl_b32 s{sB}, s{sH}, 8
        s_waitcnt lgkmcnt(0)""")
        def mk(s, p, n, off=None):
            if off is None: k(f"s_mov_b32 s{s}, s{PTR[p]}\ns_mov_b32 s{s+1}, s{PTR[p]+1}\ns_mov_b32 s{s+2}, {n}\ns_mov_b32 s{s+3}, 0x00020000")
            else: k(f"s_add_u32 s{s}, s{PTR[p]}, s{off}\ns_addc_u32 s{s+1}, s{PTR[p]+1}, 0\ns_sub_u32 s{s+2}, {n}, s{off}\ns_mov_b32 s{s+3}, 0x00020000")
        if E_("TS0"): k("v_writelane_b32 v255, s58, 0")
        self.ts0()
        mk(WUK, "wuk", 0x400000, sB); mk(CKV, "ckv", 2048 * 1024)
        self.run(self.wdma(0)); self.ts0(); self.run(self.xdma(0)); self.ts0()
        mk(WM, "wmod", 512 * 6144); mk(CS, "c", 1024); mk(XS, "x", 2048 * 1024)
        mk(WS, "ws", WS_SIZE); mk(WUV, "wuv", 0x400000, sB); mk(WQ, "wq", 0x400000, sB); mk(DBG, "dbg", 256)
        k(f"""s_lshl_b32 s{sB}, s{sX}, 19
        s_lshl_b32 s{sD}, s{sJ}, 8
        s_add_u32 s{sB}, s{sB}, s{sD}""")
        mk(WO, "wo", 0x400000, sB)
        mk(WD_, "wd", 1792 * 1024); mk(OUT, "out", 2048 * 1024)
        k(f"s_mov_b64 s[{sPG}:{sPG+1}], s[{PTR['wg']}:{PTR['wg']+1}]\ns_mov_b64 s[{sPG+2}:{sPG+3}], s[{PTR['wu']}:{PTR['wu']+1}]")
        if self.TS: k(f"s_mov_b32 s{TSR[0]}, s58"); self.nts = 1
        mk(WR_, "wr", 1024)
        k(f"""s_lshl_b32 s{sVB}, s{sW}, 19
        s_and_b32 s{sB}, s{sWB}, {7 << 19}
        s_xor_b32 s{sVB}, s{sVB}, s{sB}
        s_lshr_b32 s{sB}, s{sP}, {int(E_("RV", "1"))}
        s_and_b32 s{sB}, s{sB}, {int(E_("RVM", "0"))}
        s_lshl_b32 s{sVX}, s{sB}, 12                ; column half order of the V projection
        s_lshl_b32 s{sB}, s{sB}, 7
        s_add_u32 s{sVB}, s{sVB}, s{sB}
        s_lshl_b32 s{sB}, s{sJ}, 1
        s_xor_b32 s{sB}, s{sB}, s{sP}
        s_and_b32 s{sB}, s{sB}, {int(E_("RQM", "0"))}
        s_lshl_b32 s{sQR}, s{sB}, 11                ; chunk order of the Q projection
        s_lshl_b32 s{sB}, s{sB}, 19
        s_lshl_b32 s{sQB}, s{sW}, 17
        s_add_u32 s{sQB}, s{sQB}, s{sB}
        s_lshl_b32 s{sKV}, s{sH}, 20
        s_add_u32 s{sKV}, s{sKV}, {WS_KV}
        s_lshl_b32 s{sB}, s{sP}, 17
        s_add_u32 s{sKVST}, s{sKV}, s{sB}
        s_lshr_b32 s{sB}, s{sW}, 1
        s_lshl_b32 s{sB}, s{sB}, 16
        s_add_u32 s{sKVST}, s{sKVST}, s{sB}
        s_and_b32 s{sB}, s{sW}, 1
        s_lshl_b32 s{sB}, s{sB}, 14
        s_add_u32 s{sKVST}, s{sKVST}, s{sB}
        s_add_u32 s{sKV}, s{sKV}, s{sW8}
        s_min_u32 s{sKp}, s{sT1}, 1
        s_lshl_b32 s{sKp}, s{sKp}, 16
        s_add_u32 s{sKp}, s{sKp}, s{sKV}
        s_cmp_lt_u32 s{sP}, 2
        s_cselect_b32 s{sEO}, 0, 64
        s_lshl_b32 s{sB}, s{sP}, 3
        s_add_u32 s{sB}, s{sB}, s{sX}
        s_lshl_b32 s{sB}, s{sB}, 8
        s_mul_i32 s{sC}, s{sJ}, 12288
        s_add_u32 s{sB}, s{sB}, s{sC}
        s_add_u32 s{sB}, s{sB}, {WS_MODP}
        s_cmp_lt_u32 s{sP}, 6
        s_cselect_b32 s{sMODO}, s{sB}, {OOB}
        s_cselect_b32 s{sEO}, s{sEO}, {OOB}
        s_cmp_eq_u32 s{sW}, 0
        s_cselect_b32 s{sMODO}, s{sMODO}, {OOB}
        s_lshl_b32 s{sLNP}, s{sW}, 9
        s_add_u32 s{sLNP}, s{sLNP}, {WS_MODP}
        s_lshr_b32 s{sHST}, s2, 1
        s_lshl_b32 s{sHST}, s{sHST}, 14
        s_and_b32 s{sB}, s2, 1
        s_lshl_b32 s{sB}, s{sB}, 7
        s_add_u32 s{sHST}, s{sHST}, s{sB}
        s_add_u32 s{sHST}, s{sHST}, s{sW4}
        s_add_u32 s{sHST}, s{sHST}, {WS_H}
        s_lshl_b32 s{sHFO}, s2, 2
        s_add_u32 s{sHFO}, s{sHFO}, s{sW}
        s_lshl_b32 s{sHFO}, s{sHFO}, 6
        s_add_u32 s{sHFO}, s{sHFO}, {WS_HF}
        s_lshl_b32 s{sKFP}, s{sH}, 11
        s_add_u32 s{sKFP}, s{sKFP}, {WS_KVF}
        s_lshl_b32 s{sKFO}, s{sP}, 2
        s_add_u32 s{sKFO}, s{sKFO}, s{sW}
        s_lshl_b32 s{sKFO}, s{sKFO}, 6
        s_add_u32 s{sKFO}, s{sKFO}, s{sKFP}
        s_lshr_b32 s{sB}, s{sW}, 1
        s_sub_u32 s{sC}, 3, s{sB}
        s_and_b32 s{sA}, s{sW}, 1
        s_cselect_b32 s{sB}, s{sC}, s{sB}          ; row group projected by this wave
        s_lshl_b32 s{sH1}, s{sT1}, 2
        s_add_u32 s{sH1}, s{sH1}, s{sB}
        s_lshl_b32 s{sH2}, s{sT2}, 2
        s_add_u32 s{sH2}, s{sH2}, s{sB}
        s_sub_u32 s{sHFD}, s{sH2}, s{sH1}
        s_lshl_b32 s{sHFD}, s{sHFD}, 10
        s_lshl_b32 s{sHF1}, s{sH1}, 10
        s_add_u32 s{sHF1}, s{sHF1}, {WS_HF - 65536}
        s_lshl_b32 s{sH1}, s{sH1}, 15
        s_add_u32 s{sH1}, s{sH1}, {WS_H}
        s_add_u32 s{sH1}, s{sH1}, s{sQR}
        s_lshl_b32 s{sH2}, s{sH2}, 15
        s_add_u32 s{sH2}, s{sH2}, {WS_H}
        s_add_u32 s{sH2}, s{sH2}, s{sQR}
        s_add_u32 s{sVX}, s{sVX}, s{sKVST}""")
        k(f"""v_and_b32 v48, 15, v2          ; i16
        v_lshrrev_b32 v49, 4, v2       ; q4
        v_lshrrev_b32 v50, 1, v48
        v_xor_b32 v50, v50, v49
        v_lshlrev_b32 v50, 4, v50
        v_lshl_add_u32 v28, v48, 7, v50
        v_add_u32 v28, s{sW8}, v28
        v_xor_b32 v29, 64, v28
        v_add_u32 v30, 65536, v28
        v_add_u32 v31, 65536, v29
        v_lshrrev_b32 v50, 2, v48     ; r
        v_and_b32 v51, 3, v48         ; c
        v_lshl_add_u32 v52, v49, 3, v50      ; row = 8q4 + r
        v_lshlrev_b32 v53, 8, v52
        v_lshl_add_u32 v53, v51, 3, v53
        v_add_u32 v53, {R3}, v53
        v_and_b32 v54, 1, v49
        v_lshl_add_u32 v54, v54, 2, v50      ; f""")
        for nt in range(8):
            k(f"v_xor_b32 v55, {nt}, v54\nv_lshl_add_u32 v{8+nt}, v55, 5, v53")
        k(f"""v_bfe_u32 v49, v2, 1, 2
        v_bfe_u32 v50, v2, 4, 1
        v_xor_b32 v49, v49, v50
        v_lshlrev_b32 v49, 5, v49
        v_and_b32 v50, 1, v2
        v_lshl_add_u32 v49, v50, 4, v49
        v_lshl_add_u32 v24, v85, 13, v49
        v_xor_b32 v25, 64, v24
        v_add_u32 v25, {64512}, v25
        v_add_u32 v26, {2*64512}, v24
        v_add_u32 v27, {2*64512}, v25
        v_cmp_eq_u32 vcc, 0, v2
        v_mov_b32 v6, {OOB}
        v_cndmask_b32 v5, v6, v2, vcc
        v_cmp_eq_u32 vcc, 0, v0
        v_cndmask_b32 v7, v6, v0, vcc
        v_and_b32 v48, 8, v2
        v_cmp_eq_u32 vcc, 0, v48
        v_lshlrev_b32 v48, 5, v84
        v_lshrrev_b32 v49, 1, v2
        v_and_b32 v49, 24, v49
        v_add_u32 v48, v48, v49
        s_lshl_b32 s{sB}, s{sW}, 8
        s_add_u32 s{sB}, s{sB}, {MISC}
        v_add_u32 v48, s{sB}, v48
        v_mov_b32 v49, {MISC + 1024}
        v_cndmask_b32 v98, v49, v48, vcc
        v_lshlrev_b32 v99, 5, v84
        v_add_u32 v99, {MISC + 2048}, v99
        s_lshl_b32 s{sB}, s{sW}, 3
        v_add_u32 v100, s{sB}, v99
        v_lshlrev_b32 v106, 5, v85
        v_lshlrev_b32 v107, 8, v85
        v_lshl_add_u32 v107, v84, 4, v107
        s_lshl_b32 s{sZO}, s2, 12
        s_add_u32 s{sZO}, s{sZO}, {WS_HF}
        s_cmp_lt_u32 s2, 64
        s_cselect_b32 s{sZO}, s{sZO}, {OOB}
        s_mul_i32 s{sD}, s{sJ}, {128*6144}
        s_lshl_b32 s{sSD}, s{sP}, 3
        s_add_u32 s{sSD}, s{sSD}, s{sX}
        s_lshl_b32 s{sSD}, s{sSD}, 7
        s_add_u32 s{sSD}, s{sSD}, s{sD}
        s_cmp_lt_u32 s{sP}, 6
        s_cselect_b32 s{sSD}, s{sSD}, {OOB - 0x10000}
        s_lshl_b32 s{sB}, s{sJ}, 8
        v_add_u32 v65, s{sB}, v65
        v_mov_b32 v6, 1
        v_mov_b32 v4, 0""")
        self.ts0()
        if E_("SIDE", "0") == "0": self.run(self.side())
        self.run(self.wdma(1) + self.xdma(1))
        self.ts0()
        if E_("TS0"):
            k.waitvm([("x", 0), ("w", 0)], True); self.ts0()
            k.waitvm(["pf"], True); self.ts0()
            k("s_waitcnt vmcnt(0)"); self.ts0()
            k(f"""s_lshl_b32 s{sB}, s2, 2
            s_add_u32 s{sB}, s{sB}, s{sW}
            s_lshl_b32 s{sB}, s{sB}, 6
            s_add_u32 s{sB}, s{sB}, {WS_TS}
            v_lshlrev_b32 v5, 2, v2
            s_mov_b64 exec, 0xffff
            buffer_store_dword v255, v5, {srd(WS)}, s{sB} offen
            s_endpgm""")

    def side(self):
        return items(f"""buffer_load_dwordx2 v[66:67], v65, {srd(CS)}, 0 offen
        buffer_load_dwordx4 v[68:71], v64, {srd(WM)}, s{sSD} offen {NT}
        s_add_u32 s{sSD}, s{sSD}, 6144
        buffer_load_dwordx4 v[72:75], v64, {srd(WM)}, s{sSD} offen {NT}
        s_add_u32 s{sSD}, s{sSD}, 6144
        buffer_load_dwordx4 v[76:79], v64, {srd(WM)}, s{sSD} offen {NT}
        s_add_u32 s{sSD}, s{sSD}, 6144
        buffer_load_dwordx4 v[80:83], v64, {srd(WM)}, s{sSD} offen {NT}
        s_lshl_b32 s{sSD}, s2, 5
        s_add_u32 s{sSD}, s{sSD}, s{sW}
        s_lshl_b32 s{sSD}, s{sSD}, 8
        buffer_load_dwordx4 v[88:91], v86, {srd(XS)}, s{sSD} offen {NT}
        buffer_load_dwordx4 v[92:95], v86, {srd(XS)}, s{sSD} offen offset:128 {NT}""")
    XR = [R0, R1, R2]
    WSL = [R3, R3 + 16384, R4]
    WQB = [R4, R3, R3 + 16384, MISC, R0, R0 + 16384, R1, R1 + 16384]
    VQB = [R2, R0, R1, R2]
    def xdma(self, s):
        it = []
        for g in range(2):
            it += self.dma4(CKV, [16, 17, 18, 19], (sW8, self.XR[s % 3] + g * 4096), (sXB, s * 128 + g * 32768), ("x", s), True)
        return it
    def wdma(self, s): return self.dma4(WUK, [20, 21, 22, 23], (sW4, self.WSL[s % 3]), (sWB, s * 64 * 8192), ("w", s), True)
    def qdma(self, c): return self.dma4(WQ, [20, 21, 22, 23], (sW4, self.WQB[c]), (sQB, c * 64 * 8192), ("q", c), True)
    def vdma(self, c):
        it = []
        for g in range(2):
            it += self.dma4(WUV, [24, 25, 26, 27], (sW8, self.VQB[c] + g * 4096), (sVB, (c >> 1) * 128 + (c & 1) * 256 * 8192 + g * 4 * 65536), ("v", c), True, c < int(E_("VNT", "0")))
        return it

    def modA(self):
        C, T, AC = 102, 108, 120
        t = f"""v_lshlrev_b32 v{C}, 16, v66
        v_and_b32 v{C+1}, 0xffff0000, v66
        v_lshlrev_b32 v{C+2}, 16, v67
        v_and_b32 v{C+3}, 0xffff0000, v67
        """
        for i in range(4): t += f"v_mul_f32 v{T+i}, {H(-LOG2E)}, v{C+i}\n"
        for i in range(4): t += f"v_exp_f32 v{T+i}, v{T+i}\n"
        for i in range(4): t += f"v_add_f32 v{T+i}, 1.0, v{T+i}\n"
        for i in range(4): t += f"v_rcp_f32 v{T+i}, v{T+i}\n"
        for i in range(4): t += f"v_mul_f32 v{C+i}, v{C+i}, v{T+i}\n"
        t += f"""v_cvt_pk_bf16_f32 v{T}, v{C}, v{C+1}
        v_cvt_pk_bf16_f32 v{T+1}, v{C+2}, v{C+3}
        v_lshlrev_b32 v{C}, 16, v{T}
        v_and_b32 v{C+1}, 0xffff0000, v{T}
        v_lshlrev_b32 v{C+2}, 16, v{T+1}
        v_and_b32 v{C+3}, 0xffff0000, v{T+1}
        """
        for r in range(4):
            for i in range(4):
                a, b = T + 2 * (i & 1), T + 2 * (i & 1) + 1
                op = "v_mul_f32" if r == 0 else "v_fmac_f32"
                t += f"""v_lshlrev_b32 v{a}, 16, v{68+4*r+i}
                v_and_b32 v{b}, 0xffff0000, v{68+4*r+i}
                {op} v{AC+2*i}, v{a}, v{C+r}
                {op} v{AC+2*i+1}, v{b}, v{C+r}
                """
        for i in range(4): t += f"v_permlane32_swap_b32 v{AC+i}, v{AC+4+i}\n"
        for i in range(4): t += f"v_add_f32 v{AC+i}, v{AC+i}, v{AC+4+i}\n"
        for i in range(2): t += f"v_permlane16_swap_b32 v{AC+i}, v{AC+2+i}\n"
        for i in range(2): t += f"v_add_f32 v{AC+i}, v{AC+i}, v{AC+2+i}\n"
        for i in range(2): t += f"v_add_f32_dpp v{AC+i}, v{AC+i}, v{AC+i} row_ror:8 row_mask:0xf bank_mask:0xf\n"
        t += f"ds_write_b64 v98, v[{AC}:{AC+1}]\n"
        return items(t)
    def red16(self, b):
        t = ""
        for i in range(8): t += f"v_permlane32_swap_b32 v{b+i}, v{b+8+i}\n"
        for i in range(8): t += f"v_add_f32 v{b+i}, v{b+i}, v{b+8+i}\n"
        for i in range(4): t += f"v_permlane16_swap_b32 v{b+i}, v{b+4+i}\n"
        for i in range(4): t += f"v_add_f32 v{b+i}, v{b+i}, v{b+4+i}\n"
        for pat in ("quad_perm:[1,0,3,2]", "quad_perm:[2,3,0,1]", "row_half_mirror", "row_mirror"):
            for i in range(4): t += f"v_add_f32_dpp v{b+i}, v{b+i}, v{b+i} {pat} row_mask:0xf bank_mask:0xf\n"
        return t
    def modB(self):
        it = items(f"""v_lshrrev_b32 v87, 2, v1
        v_add_u32 v101, {MISC}, v87
        ds_read_b32 v102, v101
        ds_read_b32 v103, v101 offset:256
        ds_read_b32 v104, v101 offset:512
        ds_read_b32 v105, v101 offset:768""")
        it2 = items(f"""v_add_f32 v102, v102, v103
        v_add_f32 v104, v104, v105
        v_add_f32 v102, v102, v104""")
        it2.append(("m", f"buffer_store_dword v102, v87, {srd(WS)}, s{sMODO} offen {WT}", "mod"))
        return it, it2
    def red8(self, v, t):
        return f"""v_add_f32_dpp v{v}, v{v}, v{v} row_ror:8 row_mask:0xf bank_mask:0xf
        v_mov_b32 v{t}, v{v}
        v_permlane16_swap_b32 v{v}, v{t}
        v_add_f32 v{v}, v{v}, v{t}
        v_mov_b32 v{t}, v{v}
        v_permlane32_swap_b32 v{v}, v{t}
        v_add_f32 v{v}, v{v}, v{t}
        """
    XH = 64
    def lnA(self):
        X = self.XH
        t = ""
        for i in range(8): t += f"v_lshlrev_b32 v{X+2*i}, 16, v{88+i}\nv_and_b32 v{X+2*i+1}, 0xffff0000, v{88+i}\n"
        t += f"v_add_f32 v108, v{X}, v{X+1}\nv_add_f32 v109, v{X+2}, v{X+3}\n"
        for i in range(4, 16, 2): t += f"v_add_f32 v108, v108, v{X+i}\nv_add_f32 v109, v109, v{X+i+1}\n"
        t += "v_add_f32 v108, v108, v109\n" + self.red8(108, 110)
        t += f"v_mul_f32 v108, {H(1/128)}, v108\n"
        t += f"v_sub_f32 v110, v{X}, v108\nv_mul_f32 v109, v110, v110\n"
        for i in range(1, 16): t += f"v_sub_f32 v{110+(i&1)}, v{X+i}, v108\nv_fmac_f32 v109, v{110+(i&1)}, v{110+(i&1)}\n"
        t += self.red8(109, 110)
        t += "ds_write_b64 v100, v[108:109]\n"
        return items(t)
    def lnB(self):
        X = self.XH
        it = items(f"""ds_read_b128 v[88:91], v99
        ds_read_b128 v[92:95], v99 offset:16""")
        t = f"""v_add_f32 v108, v88, v90
        v_add_f32 v109, v92, v94
        v_add_f32 v108, v108, v109
        v_mul_f32 v108, {H(0.25)}, v108
        v_add_f32 v109, v89, v91
        v_add_f32 v110, v93, v95
        v_add_f32 v109, v109, v110
        v_sub_f32 v88, v88, v108
        v_sub_f32 v90, v90, v108
        v_sub_f32 v92, v92, v108
        v_sub_f32 v94, v94, v108
        v_mul_f32 v110, v88, v88
        v_fmac_f32 v110, v90, v90
        v_fmac_f32 v110, v92, v92
        v_fmac_f32 v110, v94, v94
        v_fmac_f32 v109, {H(128.0)}, v110
        v_mov_b32 v110, {H(1e-5)}
        v_fmac_f32 v110, {H(1/512)}, v109
        v_rsq_f32 v110, v110
        """
        for i in range(16): t += f"v_sub_f32 v{X+i}, v{X+i}, v108\n"
        for i in range(16): t += f"v_mul_f32 v{X+i}, v{X+i}, v110\n"
        return it, items(t)
    def lnC_loads(self):
        it = items(f"""v_and_b32 v96, 31, v2
        v_lshlrev_b32 v96, 4, v96
        v_lshrrev_b32 v97, 5, v2
        v_lshl_add_u32 v96, v97, 11, v96""")
        ld = []
        for q in range(4):
            ld += [("m", f"buffer_load_dwordx4 v[{80+4*q}:{83+4*q}], v96, {srd(WS)}, s{sLNP} offen")]
            if q < 3: ld += [("s", f"s_add_u32 s{sLNP}, s{sLNP}, 12288")]
        return it, ld
    def lnC_fin(self):
        t = ""
        for e in range(4): t += f"v_add_f32 v{80+e}, v{80+e}, v{84+e}\nv_add_f32 v{88+e}, v{88+e}, v{92+e}\n"
        for e in range(4): t += f"v_add_f32 v{80+e}, v{80+e}, v{88+e}\n"
        rnd = lambda: "".join(f"v_cvt_pk_bf16_f32 v{84+e}, v{80+2*e}, v{81+2*e}\n" for e in range(2)) + "".join(f"v_lshlrev_b32 v{80+2*e}, 16, v{84+e}\nv_and_b32 v{81+2*e}, 0xffff0000, v{84+e}\n" for e in range(2))
        t += "v_lshrrev_b32 v88, 5, v2\nv_cvt_f32_u32 v88, v88\n" + rnd()
        for e in range(4): t += f"v_add_f32 v{80+e}, v{80+e}, v88\n"
        t += rnd()
        for e in range(4): t += f"v_mul_f32 v{80+e}, {H(QSCALE)}, v{80+e}\n"
        t += f"""s_lshl_b32 s{sLNP}, s{sW}, 10
        s_add_u32 s{sLNP}, s{sLNP}, {MISC + 4096}
        v_add_u32 v88, s{sLNP}, v1
        v_add_u32 v18, s{sLNP}, v18
        ds_write_b128 v88, v[80:83]
        """
        return items(t)
    def lnC_rd(self, i):
        return [("l", f"ds_read_b128 v[{80+seg*8+hf*4}:{83+seg*8+hf*4}], v18 offset:{seg*512 + i*256 + hf*16}") for seg in range(2) for hf in range(2)]
    def lnC(self, i):
        X = self.XH + 8 * i
        t = ""
        for e in range(8): t += f"v_fma_f32 v{X+e}, v{X+e}, v{88+e}, v{80+e}\n"
        t2 = ""
        for e in range(4): t2 += f"v_cvt_pk_bf16_f32 v{X+e}, v{X+2*e}, v{X+2*e+1}\n"
        return items(t), items(t2) + [("m", f"buffer_store_dwordx4 v[{X}:{X+3}], v19, {srd(WS)}, s{sHST} offen offset:{2048*i} {WT}", "hst")]

    WF, VACC, ACC = 32, 64, 128
    def proj(self):
        k = self.k; WF, VACC, ACC = self.WF, self.VACC, self.ACC
        M = []
        def kmajor():
            for n in range(16):
                for dt in range(8):
                    for tt in range(4):
                        d = V(ACC + (tt * 8 + dt) * 4)
                        M.append(MF(d, V(WF + 4 * dt), A((n * 4 + tt) * 4), "0" if n == 0 else d))
        kmajor()
        V0 = len(M)
        VST = [(pc, sh, q) for pc in range(4) for sh in range(2) for q in range(4)]
        for i, (pc, sh, q) in enumerate(VST):
            for nt in range(2):
                for tt in range(4):
                    for h in range(2):
                        n = (pc & 1) * 8 + 2 * q + h
                        d = V(VACC + (1 - sh) * 32 + (nt * 4 + tt) * 4)
                        M.append(MF(d, A((n * 4 + tt) * 4), V(WF + ((i & 1) * 4 + nt * 2 + h) * 4), "0" if n == 0 else d))
        Q0 = len(M)
        kmajor()
        ph = Phase(k, M); N = len(M)
        def wread(base, n, dt):
            o = base + (n & 1) * 8192
            return [("l", f"ds_read_b64_tr_b16 v[{WF+4*dt}:{WF+4*dt+1}], v{8+dt} offset:{o}"),
                    ("l", f"ds_read_b64_tr_b16 v[{WF+4*dt+2}:{WF+4*dt+3}], v{8+dt} offset:{o+1024}")]
        def xread(n, tt):
            s = n >> 1; sl = s % 3
            va = (28 if sl < 2 else 30) + (n & 1)
            return ("l", f"ds_read_b128 {A((n*4+tt)*4)}, v{va} offset:{(sl if sl < 2 else 0)*32768 + tt*2048}")
        def vread(i, nt, h):
            pc, sh, q = VST[i]
            reg = self.VQB[pc]; va = 28 + 2 * sh + nt
            o = (reg if reg < R2 else 0) + (2 * q + h) * 4096
            f = WF + ((i & 1) * 4 + nt * 2 + h) * 4
            return [("l", f"ds_read_b64_tr_b16 v[{f}:{f+1}], v{va} offset:{o}"), ("l", f"ds_read_b64_tr_b16 v[{f+2}:{f+3}], v{va} offset:{o+512}")]
        BOFF = 40
        k.waitvm([("x", 0), ("w", 0)], True); k("s_barrier")
        self.ts()
        for it in wread(self.WSL[0] - R3, 0, 0): k(it[1])
        for tt in range(4): k(xread(0, tt)[1])
        for dt in range(1, 8):
            for it in wread(self.WSL[0] - R3, 0, dt): k(it[1])
        for s in range(7): ph.put("x", self.bar([("x", s + 1), ("w", s + 1)]), 64 * s + BOFF)
        ph.put("x", self.bar([("v", 0)]), 64 * 7 + BOFF)
        BV = [V0 + 128 * c + 110 for c in range(4)]
        for c in range(3): ph.put("x", self.bar([("v", c + 1)]), BV[c])
        ph.put("x", self.bar([("q", i) for i in range(4)]), BV[3])
        BQ = Q0 + 64 * 3 + BOFF
        ph.put("x", self.bar([("q", i) for i in range(4, 8)]), BQ)
        BE = Q0 + 32 * 15 + 10
        ph.put("x", self.bar([]), BE)
        for (G0, bases) in ((0, [self.WSL[s % 3] - R3 for s in range(8)]), (Q0, [b - R3 if b >= R3 else b for b in self.WQB])):
            for n in range(0 if G0 else 1, 16):
                for dt in range(8):
                    lo = G0 + 32 * (n - 1) + 4 * dt + 4
                    if n == 0: lo = max(BV[3] + 1, [Q0 - 24, Q0 - 16, Q0 - 8, Q0][dt >> 1])
                    elif n % 2 == 0 and (G0 == 0 or n == 8): lo = max(lo, G0 + 32 * (n - 2) + BOFF + 1)
                    pre = []
                    if G0 and n == 8: pre = [("v", f"v_subrev_u32 v{8+dt}, {R3}, v{8+dt}")]; lo -= 1
                    g = ph.stream(pre + wread(bases[n >> 1], n, dt), lo, G0 + 32 * n + 4 * dt - 6)
                    if n % 2 == 1 and (G0 == 0 or n in (7, 15)): assert g < (G0 + 32 * (n - 1) + BOFF if n < 15 or not G0 else BE), (n, dt, g)
        for n in range(1, 16):
            lo = 32 * (n - 1) + 2
            if n % 2 == 0: lo = 32 * (n - 2) + BOFF + 1
            gx = ph.stream([xread(n, tt) for tt in range(4)], lo, 32 * n - 6)
        vaddr = items(f"""v_and_b32 v16, 15, v2
        v_lshrrev_b32 v17, 4, v2
        v_lshrrev_b32 v29, 2, v16
        v_and_b32 v16, 3, v16
        v_lshl_add_u32 v28, v17, 3, v29
        v_lshlrev_b32 v28, 7, v28
        v_lshl_add_u32 v28, v16, 3, v28
        v_and_b32 v17, 1, v17
        v_lshrrev_b32 v29, 1, v29
        v_lshl_add_u32 v29, v17, 1, v29
        v_lshl_add_u32 v28, v29, 5, v28
        v_add_u32 v28, 65536, v28
        v_xor_b32 v29, 32, v28
        v_xor_b32 v30, 64, v28
        v_xor_b32 v31, 96, v28
        v_and_b32 v16, 15, v2
        v_lshlrev_b32 v16, 6, v16
        v_add_u32 v16, 65536, v16
        v_mad_i32_i24 v16, v17, s{sHFD}, v16
        v_and_b32 v17, 31, v2
        v_lshlrev_b32 v17, 6, v17""")
        g = ph.stream(vaddr, gx + 1)
        assert g <= 64 * 7 + BOFF + 6, g
        for i, (pc, sh, q) in enumerate(VST):
            g0 = V0 + 16 * i
            for nt in range(2):
                for h in range(2):
                    slot = (i & 1) * 4 + nt * 2 + h
                    if i < 2: lo = max(64 * 7 + BOFF + 1, V0 - 32 + 4 * slot + 4)
                    else: lo = g0 - 32 + 8 * nt + 8
                    if pc > 0: lo = max(lo, BV[pc - 1] + 1)
                    pre = []
                    if q == 0 and h == 0 and pc in (1, 3): pre = [("v", f"v_xor_b32 v{28+2*sh+nt}, 65536, v{28+2*sh+nt}")]; lo -= 1
                    g = ph.stream(pre + vread(i, nt, h), max(lo, gprev + 1) if (h and q == 0) else lo, g0 + 8 * nt - 4)
                    gprev = g
                    assert g < BV[pc], (i, g)
        first = self.wdma(2) + self.xdma(2)
        if E_("SIDE", "0") == "1": first = self.side() + first
        if E_("SIDE", "0") == "2": first = first + self.side()
        ph.stream(first, 0, BOFF - 1, sid=900)
        ph.stream(items("".join(f"s_mov_b32 s{d}, s{p}\ns_mov_b32 s{d+1}, s{p+1}\ns_mov_b32 s{d+2}, {512*3584}\n" for (d, p) in ((WG_, sPG), (WU_, sPG + 2)))), 120)
        for s in range(8):
            its = (self.wdma(s + 3) + self.xdma(s + 3)) if s < 5 else self.vdma(s - 5)
            if s == 7: its += self.qdma(0) + self.qdma(1)
            g = ph.stream(its, 64 * s + BOFF + 1, None, step=2 if s < 5 else 4, sid=900)
            assert g < (64 * (s + 1) + BOFF if s < 7 else BV[0]), (s, g)
        g = ph.stream(self.vdma(3) + self.qdma(2) + self.qdma(3), BV[0] + 1, None, step=5, sid=900); assert g < BV[1]
        ph.stream(self.qdma(4) + self.qdma(5), BV[1] + 1, None, step=6, sid=900)
        ph.stream(self.qdma(6) + self.qdma(7), BV[2] + 1, None, step=6, sid=900)
        m1, m2 = self.modB(); l1, l2 = self.lnB()
        zero = items(f"""v_mov_b32 v112, 0
        v_mov_b32 v113, 0
        v_mov_b32 v114, 0
        v_mov_b32 v115, 0
        v_lshlrev_b32 v116, 4, v0""") + [("m", f"buffer_store_dwordx4 v[112:115], v116, {srd(WS)}, s{sZO} offen {WT}", "zero")]
        g = ph.stream(items(f"""v_lshlrev_b32 v117, 13, v2
        s_lshl_b32 s{sB}, s{sP}, 19
        s_and_b32 s{sC}, s{sW}, 1
        s_lshl_b32 s{sC}, s{sC}, 7
        s_add_u32 s{sB}, s{sB}, s{sC}"""), 60, sid=904)
        for w, gp in enumerate(int(x) for x in E_("TG", "102,166,230,294").split(",")):
            ph.put("x", f"""s_cmp_eq_u32 s{sW}, {w}
            s_cselect_b32 s{sC}, s{sB}, {OOB}
            buffer_load_dword a{240+2*w}, v117, {srd(WUV if w < 2 else WQ)}, s{sC} offen nt
            buffer_load_dword a{241+2*w}, v117, {srd(WUV if w < 2 else WQ)}, s{sC} offen offset:4""", gp, tag="pf")
        g = ph.stream(zero, BOFF + 10)
        g = ph.stream(self.modA(), int(E_("MG", "41")), sid=901, dense=int(E_("MD", "1")))
        b1 = (g - BOFF) // 64 + 1
        g0 = g
        ph.put("x", lambda k: k.waitvm(["zero"]), 64 * b1 + BOFF - 1)
        g = ph.stream(m1, 64 * b1 + BOFF + 1, sid=901, dense=1)
        g = ph.stream(m2[:-1], g + 6, sid=901)
        g = ph.put("x", m2[-1][1], g, tag="mod")
        g = ph.put("x", lambda k: k.waitvm(["mod"]), g + int(E_("ED", "60")))
        ph.put("x", f"buffer_atomic_add v6, v7, {srd(DBG)}, s{sEO} offen sc1", g, tag="flag")
        gl = ph.stream(self.lnA(), g0 + 1, sid=902)
        b2 = (gl - BOFF) // 64 + 1
        gl = ph.stream(l1, 64 * b2 + BOFF + 1, sid=902)
        gl = ph.stream(l2, gl + 8, sid=902)
        print("mod barrier", b1, "E at", g, "ln barrier", b2, "lnB end", gl, file=sys.stderr)
        a, ld = self.lnC_loads()
        gl = ph.stream(a, gl + 1, sid=902)
        gva = ph.stream(items("v_mov_b32 v18, v106\nv_mov_b32 v19, v107"), 64 * 5 + BOFF + 1, sid=902)
        PG = int(E_("PG", "330"))
        g = ph.put("x", f"buffer_load_dword v3, v4, {srd(DBG)}, 0 offen {WT}", PG)
        g = ph.put("x", self.poll_check(3, 4, DBG, "0", "E", target=64), max(g + int(E_("PL", "60")), gl))
        g = ph.stream(ld, g + 1, sid=902); assert g < V0 - 2
        g = ph.stream(self.lnC_fin(), max(g + int(E_("PL2", "50")), gva + 1), sid=902, dense=int(E_("FD", "1")))
        for i in range(2):
            g = ph.stream(self.lnC_rd(i), g + (6 if i == 0 else 1), sid=902)
            a, b = self.lnC(i)
            g = ph.stream(a, g + 6, sid=902)
            g2 = ph.stream(b, g + 1, sid=902)
        assert g2 < V0 + 60, g2
        print("h stored at", g2, file=sys.stderr)
        g = ph.stream(self.flag_store(sHFO, ["hst"]), g2 + 70)
        def epi(b, off, vtype=False):
            it = [("v", f"v_cvt_pk_bf16_f32 v{b+i}, v{b+2*i}, v{b+2*i+1}") for i in range(4)]
            it.append(("s", f"s_xor_b32 s{sEPI}, s{sVX if vtype else sKVST}, {off & ~4095}"))
            it.append(("m", f"buffer_store_dwordx4 {V(b)}, v1, {srd(WS)}, s{sEPI} offen offset:{off & 4095} {WT}", "kv"))
            return it
        ep = []
        kst = [10 + 18 * i for i in range(10)] + [330 + 18 * i for i in range(6)]
        for tt in range(4):
            for u in range(4): ep.append((V0 + kst[tt * 4 + u], epi(ACC + (tt * 8 + 2 * u) * 4, tt * 4096 + u * 1024), Q0 - 4))
        for c in range(4):
            done = V0 + [192, 256, 448, 512][c]
            for nt in range(2):
                for kbl in range(2):
                    i = nt * 2 + kbl
                    ep.append((done + 6 + (12 if c < 3 else 6) * i, epi(VACC + (1 - (c & 1)) * 32 + (nt * 4 + 2 * kbl) * 4, 32768 + kbl * 8192 + (2 * c + nt) * 1024, True), done + 62))
        ep.sort(key=lambda e: e[0])
        g = 0
        for (lo, its, dl) in ep:
            g = ph.stream(its, max(lo, g + 1)); assert g < dl
        g = ph.stream(self.flag_store(sKFO, ["kv"]), g + int(E_("KVD", "70")))
        HG = V0 + 384
        g = ph.stream([("m", f"buffer_load_dword v3, v16, {srd(WS)}, s{sHF1} offen {WT}")], HG - 44)
        ph.put("x", self.poll_check(3, 16, WS, f"s{sHF1}", "H"), HG)
        g = HG + 1
        for n in range(16):
            for tt in range(4):
                lo = max(HG + 64 + 16 * ((n - 8) // 2 + 1) if n >= 8 else 0, HG + 1 + 7 * (n * 4 + tt))
                off = (tt & 1) * 16384 + n * 1024
                g = ph.stream([("s", f"s_xor_b32 s{sHLD}, s{sH1 + (tt >> 1)}, {off & ~2047}"),
                               ("m", f"buffer_load_dwordx4 {A((n*4+tt)*4)}, v1, {srd(WS)}, s{sHLD} offen offset:{off & 2047}")], max(lo, g + 1))
        g = ph.stream(moe_setup(), V0 + 20)
        a, ld = late_mod_loads(self, 112)
        g = ph.stream(a + [("s", f"s_mov_b32 s{sEO}, 64"), ("m", f"buffer_load_dword v118, v4, {srd(DBG)}, s{sEO} offen {WT}")], Q0 + 20, sid=903)
        g = ph.put("x", self.poll_check(118, 4, DBG, f"s{sEO}", "E2", target=128), g + 50)
        g = ph.stream(ld, g + 1, sid=903)
        g = ph.stream(late_mod_fin(self, 112), g + 60, sid=903)
        KG = int(E_("KG", "30"))
        g = ph.stream([("m", f"buffer_load_dword v3, v17, {srd(WS)}, s{sKFP} offen {WT}")], BQ + KG - 40)
        ph.put("x", self.poll_check(3, 17, WS, f"s{sKFP}", "KV"), BQ + KG)
        its = []
        for (lds, so, tag) in ((R2, (sKV, 0), "k0"), (R3, (sKV, 32768), "v0"), (R4, (sKp, 0), "k1")):
            for g2 in range(2):
                its += self.dma4(WS, [1, 1, 1, 1], (sW8, lds + g2 * 4096), (so[0], so[1] + g2 * 4096), tag)
        g = ph.stream(its, BQ + KG + 1, None, step=int(E_("KST", "5")), sid=900)
        g2 = ph.stream(attn_setup(self), BQ + KG + 2)
        cl = cold_loads(120, sEPI)
        nf = [i for i, it in enumerate(cl) if it[0] == "m"][0]
        g2 = ph.stream(cl[:nf], g2 + 1, sid=905)
        g = ph.stream(cl[nf:], max(g, g2) + 1, sid=905)
        print("cold loads end at", g, file=sys.stderr)
        if self.TS:
            ph.put("x", self.ts, V0 - 1); ph.put("x", self.ts, Q0 - 1)
            for gp in (E_("TSP") or "").split(","):
                if gp: ph.put("x", lambda k: self.ts(k, True), int(gp))
        ph.emit()
        print("proj: overloaded placements", ph.over, file=sys.stderr)
        self.ts()


def build(stop=None):
    g = G()
    k = g.k
    g.startup(); g.proj()
    if stop != "proj":
        attention(g)
        if stop != "attn":
            oproj(g); tail(g)
    else:
        qdump(g)
    k.label("L_fin")
    if g.TS:
        k("s_waitcnt vmcnt(0)"); g.ts()
        k(f"""s_lshl_b32 s{sB}, s2, 2
        s_add_u32 s{sB}, s{sB}, s{sW}
        s_lshl_b32 s{sB}, s{sB}, 6
        s_add_u32 s{sB}, s{sB}, {WS_TS}
        v_cmp_eq_u32 vcc, 0, v2
        v_mov_b32 v6, {OOB}
        s_nop 1
        v_cndmask_b32 v5, v6, v2, vcc""")
        for n in range(g.nts):
            k(f"v_mov_b32 v4, s{TSR[n]}\nbuffer_store_dword v4, v5, {srd(WS)}, s{sB} offen offset:{4*n}")
        if E_("TSDBG"):
            k(f"s_cmp_eq_u32 s2, {E_('TSDBG')}\ns_cselect_b32 s{sB}, 0, {OOB}\ns_cmp_eq_u32 s{sW}, 0\ns_cselect_b32 s{sB}, s{sB}, {OOB}")
            for n in range(1, g.nts):
                k(f"s_sub_u32 s{sC}, s{TSR[n]}, s{TSR[0]}\nv_mov_b32 v4, s{sC}\nbuffer_store_dword v4, v5, {srd(DBG)}, s{sB} offen offset:{4*n}")
    k.label("L_end")
    k("s_endpgm")
    lines = k.out + "\n".join(g.tail).split("\n") + ["L_code_end:", "    s_endpgm"]
    lines, nn = fix_hazards(lines, report=bool(E_("NOPS")))
    print("nops inserted:", nn, file=sys.stderr)
    hdr = open(os.path.join(HERE, "..", NAME + ".s.ref")).read().split("; Override launch geometry")[0]
    kn = NAME + "_kernel"
    text = hdr + f"""; @launch grid=(256,1,1) block=(256,1,1) lds=163840
.amdgcn_target "amdgcn-amd-amdhsa--gfx950"
.text
.globl {kn}
.p2align 8
.type {kn},@function
{kn}:
""" + "\n".join(lines) + f"""
.section .rodata,"a"
.p2align 6
.amdhsa_kernel {kn}
  .amdhsa_next_free_vgpr 512
  .amdhsa_next_free_sgpr 102
  .amdhsa_accum_offset 256
  .amdhsa_group_segment_fixed_size 0
  .amdhsa_kernarg_size 128
  .amdhsa_user_sgpr_count 2
  .amdhsa_user_sgpr_kernarg_segment_ptr 1
  .amdhsa_system_sgpr_workgroup_id_x 1
.end_amdhsa_kernel
"""
    return text, lines

if __name__ == "__main__":
    path = sys.argv[1] if len(sys.argv) > 1 else os.path.join(HERE, "..", NAME + ".s")
    text, lines = build(E_("STOP"))
    verify_all(lines)
    open(path, "w").write(text)
    print("wrote", path, len(text), file=sys.stderr)
```

```python
import sys, os
sys.path.insert(0, os.path.dirname(os.path.abspath(__file__)))
from common import *
from gen_attn import *
from gen_tail import *

TSR = list(range(83, 96)) + ([76, 77, 78] if not E_('TSP') else [])
NTS = [dict(k=WUK, v=WUV, q=WQ, o=WO)[c] for c in E_('NTS', 'k')]
class G:
    def __init__(self):
        self.k = K(); self.tail = []
        self.TS = E_("TS"); self.nts = 0
    def ts(self, k=None, force=False):
        if not self.TS: return
        if (E_("TSP") or E_("TSO") or E_("TSA")) and not force: return
        k = k or self.k
        n = self.nts; self.nts += 1
        assert n < len(TSR)
        k(f"{'s_memrealtime' if self.TS == 'r' else 's_memtime'} vcc\ns_waitcnt lgkmcnt(0)\ns_mov_b32 s{TSR[n]}, vcc_lo")
    def ts0(self):
        if not E_("TS0"): return
        self.n0 = getattr(self, "n0", 0) + 1
        self.k(f"s_memrealtime vcc\ns_waitcnt lgkmcnt(0)\nv_writelane_b32 v255, vcc_lo, {self.n0}")
    def poll_check(self, vreg, vaddr, sr, soff, name, target=None):
        def f(k):
            slow, back = k.lab(name + "_slow"), k.lab(name + "_ok")
            cmp_ = f"v_cmp_ne_u32 vcc, 0, v{vreg}" if target is None else f"v_cmp_le_u32 vcc, {target}, v{vreg}"
            k(f"{cmp_}\ns_cmp_eq_u64 vcc, -1\ns_cbranch_scc0 {slow}")
            k.label(back)
            self.tail.append(f"""{slow}:
    s_mov_b32 s{sD}, 0
{slow}_l:
    s_sleep 4
    buffer_load_dword v{vreg}, v{vaddr}, {srd(sr)}, {soff} offen {WT}
    s_add_u32 s{sD}, s{sD}, 1
    s_waitcnt vmcnt(0)
    {cmp_}
    s_cmp_eq_u64 vcc, -1
    s_cbranch_scc1 {back}
    s_cmp_lt_u32 s{sD}, {SPIN}
    s_cbranch_scc1 {slow}_l
    s_branch {back}""")
        return f
    def dma4(self, sr, voffs, m0, so, tag, xor=False, nt=None):
        it = [("s", f"s_add_u32 m0, s{m0[0]}, {m0[1]}"), ("s", f"{'s_xor_b32' if xor else 's_add_u32'} s{sA}, s{so[0]}, {so[1]}")]
        for i in range(4):
            it.append(("m", f"buffer_load_dwordx4 v{voffs[i]}, {srd(sr)}, s{sA} offen offset:{i*1024} {NT if (sr in NTS if nt is None else nt) else ''} lds", tag))
        return it
    def run(self, its):
        for it in its:
            if callable(it[1]): it[1](self.k)
            else: self.k(it[1], it[2] if len(it) > 2 else None)
    def bar(self, tags, lgkm0=True):
        def f(k):
            k.waitvm(tags, lgkm0); k("s_barrier")
        return f
    def flag_store(self, so, tags):
        return [("x", lambda k: k.waitvm(tags)), ("m", f"buffer_store_dword v6, v5, {srd(WS)}, s{so} offen {WT}", "flag")]

    def startup(self):
        k = self.k
        if self.TS: k(f"{'s_memrealtime' if self.TS == 'r' else 's_memtime'} s[58:59]")
        k(f"""s_cmp_ge_u32 s2, 256
        s_cbranch_scc1 L_end
        s_load_dwordx16 s[64:79], s[0:1], 0
        s_load_dwordx16 s[80:95], s[0:1], 64
        s_getpc_b64 s[{sB}:{sC}]
        L_pf1:
        v_lshrrev_b32 v3, 6, v0
        v_and_b32 v2, 63, v0
        s_lshr_b32 s{sJ}, s2, 3
        s_mul_i32 s{sA}, s{sJ}, 24
        v_min_u32 v5, 5, v2
        v_mad_u32_u24 v5, v3, 6, v5
        v_add_u32 v5, s{sA}, v5
        v_lshlrev_b32 v5, 7, v5
        v_min_u32 v5, L_code_end-L_pf1, v5""")
        k(f"global_load_dword a255, v5, s[{sB}:{sC}]", "pf")
        k(f"""v_readfirstlane_b32 s{sW}, v3
        v_lshlrev_b32 v1, 4, v2
        s_and_b32 s{sX}, s2, 7
        s_and_b32 s{sJ}, s{sJ}, 3
        s_lshr_b32 s{sP}, s2, 5
        s_lshl_b32 s{sH}, s{sX}, 2
        s_add_u32 s{sH}, s{sH}, s{sJ}
        s_mov_b32 s{sT1}, s{sP}
        s_sub_u32 s{sT2}, 15, s{sP}
        v_lshrrev_b32 v3, 3, v2
        v_lshrrev_b32 v4, 4, v2
        v_and_b32 v5, 7, v2
        v_xor_b32 v5, v5, v4
        v_lshlrev_b32 v5, 4, v5
        v_lshl_add_u32 v16, v3, 10, v5
        v_xor_b32 v17, 64, v16
        v_add_u32 v17, {7168}, v17
        v_add_u32 v18, {2*7168}, v16
        v_add_u32 v19, {2*7168}, v17
        ; W (k-major): v20..23
        v_bfe_u32 v5, v2, 1, 3
        v_xor_b32 v5, v5, v4
        v_lshlrev_b32 v5, 5, v5
        v_and_b32 v6, 1, v2
        v_lshl_add_u32 v5, v6, 4, v5
        v_lshl_add_u32 v20, v4, 13, v5
        v_add_u32 v21, {31744}, v20
        v_xor_b32 v22, 128, v20
        v_add_u32 v22, {2*31744}, v22
        v_add_u32 v23, {31744}, v22
        s_lshl_b32 s{sW8}, s{sW}, 13
        s_lshl_b32 s{sW4}, s{sW}, 12
        s_lshl_b32 s{sXB}, s{sP}, 18
        s_lshl_b32 s{sA}, s{sW}, 16
        s_add_u32 s{sXB}, s{sXB}, s{sA}
        s_lshl_b32 s{sWB}, s{sW}, 17
        s_lshl_b32 s{sD}, s{sJ}, {int(E_("RJ", "0"))}
        s_xor_b32 s{sD}, s{sD}, s{sP}
        s_lshl_b32 s{sD}, s{sD}, {int(E_("RS", "3"))}
        s_and_b32 s{sD}, s{sD}, 7
        s_lshl_b32 s{sA}, s{sD}, 7
        s_add_u32 s{sXB}, s{sXB}, s{sA}
        s_lshl_b32 s{sA}, s{sD}, 19
        s_add_u32 s{sWB}, s{sWB}, s{sA}
        v_and_b32 v84, 7, v2
        v_lshrrev_b32 v65, 3, v0
        v_mul_u32_u24 v64, 24576, v65
        v_lshl_add_u32 v64, v84, 4, v64
        v_lshlrev_b32 v65, 3, v65
        v_lshrrev_b32 v85, 3, v2
        v_lshlrev_b32 v86, 10, v84
        v_lshl_add_u32 v86, v85, 4, v86
        s_lshl_b32 s{sB}, s{sH}, 8
        s_waitcnt lgkmcnt(0)""")
        def mk(s, p, n, off=None):
            if off is None: k(f"s_mov_b32 s{s}, s{PTR[p]}\ns_mov_b32 s{s+1}, s{PTR[p]+1}\ns_mov_b32 s{s+2}, {n}\ns_mov_b32 s{s+3}, 0x00020000")
            else: k(f"s_add_u32 s{s}, s{PTR[p]}, s{off}\ns_addc_u32 s{s+1}, s{PTR[p]+1}, 0\ns_sub_u32 s{s+2}, {n}, s{off}\ns_mov_b32 s{s+3}, 0x00020000")
        if E_("TS0"): k("v_writelane_b32 v255, s58, 0")
        self.ts0()
        mk(WUK, "wuk", 0x400000, sB); mk(CKV, "ckv", 2048 * 1024)
        self.run(self.wdma(0)); self.ts0(); self.run(self.xdma(0)); self.ts0()
        mk(WM, "wmod", 512 * 6144); mk(CS, "c", 1024); mk(XS, "x", 2048 * 1024)
        mk(WS, "ws", WS_SIZE); mk(WUV, "wuv", 0x400000, sB); mk(WQ, "wq", 0x400000, sB); mk(DBG, "dbg", 256)
        k(f"""s_lshl_b32 s{sB}, s{sX}, 19
        s_lshl_b32 s{sD}, s{sJ}, 8
        s_add_u32 s{sB}, s{sB}, s{sD}""")
        mk(WO, "wo", 0x400000, sB)
        mk(WD_, "wd", 1792 * 1024); mk(OUT, "out", 2048 * 1024)
        k(f"s_mov_b64 s[{sPG}:{sPG+1}], s[{PTR['wg']}:{PTR['wg']+1}]\ns_mov_b64 s[{sPG+2}:{sPG+3}], s[{PTR['wu']}:{PTR['wu']+1}]")
        if self.TS: k(f"s_mov_b32 s{TSR[0]}, s58"); self.nts = 1
        mk(WR_, "wr", 1024)
        k(f"""s_lshl_b32 s{sVB}, s{sW}, 19
        s_and_b32 s{sB}, s{sWB}, {7 << 19}
        s_xor_b32 s{sVB}, s{sVB}, s{sB}
        s_lshr_b32 s{sB}, s{sP}, {int(E_("RV", "1"))}
        s_and_b32 s{sB}, s{sB}, {int(E_("RVM", "0"))}
        s_lshl_b32 s{sVX}, s{sB}, 12                ; column half order of the V projection
        s_lshl_b32 s{sB}, s{sB}, 7
        s_add_u32 s{sVB}, s{sVB}, s{sB}
        s_lshl_b32 s{sB}, s{sJ}, 1
        s_xor_b32 s{sB}, s{sB}, s{sP}
        s_and_b32 s{sB}, s{sB}, {int(E_("RQM", "0"))}
        s_lshl_b32 s{sQR}, s{sB}, 11                ; chunk order of the Q projection
        s_lshl_b32 s{sB}, s{sB}, 19
        s_lshl_b32 s{sQB}, s{sW}, 17
        s_add_u32 s{sQB}, s{sQB}, s{sB}
        s_lshl_b32 s{sKV}, s{sH}, 20
        s_add_u32 s{sKV}, s{sKV}, {WS_KV}
        s_lshl_b32 s{sB}, s{sP}, 17
        s_add_u32 s{sKVST}, s{sKV}, s{sB}
        s_lshr_b32 s{sB}, s{sW}, 1
        s_lshl_b32 s{sB}, s{sB}, 16
        s_add_u32 s{sKVST}, s{sKVST}, s{sB}
        s_and_b32 s{sB}, s{sW}, 1
        s_lshl_b32 s{sB}, s{sB}, 14
        s_add_u32 s{sKVST}, s{sKVST}, s{sB}
        s_add_u32 s{sKV}, s{sKV}, s{sW8}
        s_min_u32 s{sKp}, s{sT1}, 1
        s_lshl_b32 s{sKp}, s{sKp}, 16
        s_add_u32 s{sKp}, s{sKp}, s{sKV}
        s_cmp_lt_u32 s{sP}, 2
        s_cselect_b32 s{sEO}, 0, 64
        s_lshl_b32 s{sB}, s{sP}, 3
        s_add_u32 s{sB}, s{sB}, s{sX}
        s_lshl_b32 s{sB}, s{sB}, 8
        s_mul_i32 s{sC}, s{sJ}, 12288
        s_add_u32 s{sB}, s{sB}, s{sC}
        s_add_u32 s{sB}, s{sB}, {WS_MODP}
        s_cmp_lt_u32 s{sP}, 6
        s_cselect_b32 s{sMODO}, s{sB}, {OOB}
        s_cselect_b32 s{sEO}, s{sEO}, {OOB}
        s_cmp_eq_u32 s{sW}, 0
        s_cselect_b32 s{sMODO}, s{sMODO}, {OOB}
        s_lshl_b32 s{sLNP}, s{sW}, 9
        s_add_u32 s{sLNP}, s{sLNP}, {WS_MODP}
        s_lshr_b32 s{sHST}, s2, 1
        s_lshl_b32 s{sHST}, s{sHST}, 14
        s_and_b32 s{sB}, s2, 1
        s_lshl_b32 s{sB}, s{sB}, 7
        s_add_u32 s{sHST}, s{sHST}, s{sB}
        s_add_u32 s{sHST}, s{sHST}, s{sW4}
        s_add_u32 s{sHST}, s{sHST}, {WS_H}
        s_lshl_b32 s{sHFO}, s2, 2
        s_add_u32 s{sHFO}, s{sHFO}, s{sW}
        s_lshl_b32 s{sHFO}, s{sHFO}, 6
        s_add_u32 s{sHFO}, s{sHFO}, {WS_HF}
        s_lshl_b32 s{sKFP}, s{sH}, 11
        s_add_u32 s{sKFP}, s{sKFP}, {WS_KVF}
        s_lshl_b32 s{sKFO}, s{sP}, 2
        s_add_u32 s{sKFO}, s{sKFO}, s{sW}
        s_lshl_b32 s{sKFO}, s{sKFO}, 6
        s_add_u32 s{sKFO}, s{sKFO}, s{sKFP}
        s_lshr_b32 s{sB}, s{sW}, 1
        s_sub_u32 s{sC}, 3, s{sB}
        s_and_b32 s{sA}, s{sW}, 1
        s_cselect_b32 s{sB}, s{sC}, s{sB}          ; row group projected by this wave
        s_lshl_b32 s{sH1}, s{sT1}, 2
        s_add_u32 s{sH1}, s{sH1}, s{sB}
        s_lshl_b32 s{sH2}, s{sT2}, 2
        s_add_u32 s{sH2}, s{sH2}, s{sB}
        s_sub_u32 s{sHFD}, s{sH2}, s{sH1}
        s_lshl_b32 s{sHFD}, s{sHFD}, 10
        s_lshl_b32 s{sHF1}, s{sH1}, 10
        s_add_u32 s{sHF1}, s{sHF1}, {WS_HF - 65536}
        s_lshl_b32 s{sH1}, s{sH1}, 15
        s_add_u32 s{sH1}, s{sH1}, {WS_H}
        s_add_u32 s{sH1}, s{sH1}, s{sQR}
        s_lshl_b32 s{sH2}, s{sH2}, 15
        s_add_u32 s{sH2}, s{sH2}, {WS_H}
        s_add_u32 s{sH2}, s{sH2}, s{sQR}
        s_add_u32 s{sVX}, s{sVX}, s{sKVST}""")
        k(f"""v_and_b32 v48, 15, v2          ; i16
        v_lshrrev_b32 v49, 4, v2       ; q4
        v_lshrrev_b32 v50, 1, v48
        v_xor_b32 v50, v50, v49
        v_lshlrev_b32 v50, 4, v50
        v_lshl_add_u32 v28, v48, 7, v50
        v_add_u32 v28, s{sW8}, v28
        v_xor_b32 v29, 64, v28
        v_add_u32 v30, 65536, v28
        v_add_u32 v31, 65536, v29
        v_lshrrev_b32 v50, 2, v48     ; r
        v_and_b32 v51, 3, v48         ; c
        v_lshl_add_u32 v52, v49, 3, v50      ; row = 8q4 + r
        v_lshlrev_b32 v53, 8, v52
        v_lshl_add_u32 v53, v51, 3, v53
        v_add_u32 v53, {R3}, v53
        v_and_b32 v54, 1, v49
        v_lshl_add_u32 v54, v54, 2, v50      ; f""")
        for nt in range(8):
            k(f"v_xor_b32 v55, {nt}, v54\nv_lshl_add_u32 v{8+nt}, v55, 5, v53")
        k(f"""v_bfe_u32 v49, v2, 1, 2
        v_bfe_u32 v50, v2, 4, 1
        v_xor_b32 v49, v49, v50
        v_lshlrev_b32 v49, 5, v49
        v_and_b32 v50, 1, v2
        v_lshl_add_u32 v49, v50, 4, v49
        v_lshl_add_u32 v24, v85, 13, v49
        v_xor_b32 v25, 64, v24
        v_add_u32 v25, {64512}, v25
        v_add_u32 v26, {2*64512}, v24
        v_add_u32 v27, {2*64512}, v25
        v_cmp_eq_u32 vcc, 0, v2
        v_mov_b32 v6, {OOB}
        v_cndmask_b32 v5, v6, v2, vcc
        v_cmp_eq_u32 vcc, 0, v0
        v_cndmask_b32 v7, v6, v0, vcc
        v_and_b32 v48, 8, v2
        v_cmp_eq_u32 vcc, 0, v48
        v_lshlrev_b32 v48, 5, v84
        v_lshrrev_b32 v49, 1, v2
        v_and_b32 v49, 24, v49
        v_add_u32 v48, v48, v49
        s_lshl_b32 s{sB}, s{sW}, 8
        s_add_u32 s{sB}, s{sB}, {MISC}
        v_add_u32 v48, s{sB}, v48
        v_mov_b32 v49, {MISC + 1024}
        v_cndmask_b32 v98, v49, v48, vcc
        v_lshlrev_b32 v99, 5, v84
        v_add_u32 v99, {MISC + 2048}, v99
        s_lshl_b32 s{sB}, s{sW}, 3
        v_add_u32 v100, s{sB}, v99
        v_lshlrev_b32 v106, 5, v85
        v_lshlrev_b32 v107, 8, v85
        v_lshl_add_u32 v107, v84, 4, v107
        s_lshl_b32 s{sZO}, s2, 12
        s_add_u32 s{sZO}, s{sZO}, {WS_HF}
        s_cmp_lt_u32 s2, 64
        s_cselect_b32 s{sZO}, s{sZO}, {OOB}
        s_mul_i32 s{sD}, s{sJ}, {128*6144}
        s_lshl_b32 s{sSD}, s{sP}, 3
        s_add_u32 s{sSD}, s{sSD}, s{sX}
        s_lshl_b32 s{sSD}, s{sSD}, 7
        s_add_u32 s{sSD}, s{sSD}, s{sD}
        s_cmp_lt_u32 s{sP}, 6
        s_cselect_b32 s{sSD}, s{sSD}, {OOB - 0x10000}
        s_lshl_b32 s{sB}, s{sJ}, 8
        v_add_u32 v65, s{sB}, v65
        v_mov_b32 v6, 1
        v_mov_b32 v4, 0""")
        self.ts0()
        if E_("SIDE", "0") == "0": self.run(self.side())
        self.run(self.wdma(1) + self.xdma(1))
        self.ts0()
        if E_("TS0"):
            k.waitvm([("x", 0), ("w", 0)], True); self.ts0()
            k.waitvm(["pf"], True); self.ts0()
            k("s_waitcnt vmcnt(0)"); self.ts0()
            k(f"""s_lshl_b32 s{sB}, s2, 2
            s_add_u32 s{sB}, s{sB}, s{sW}
            s_lshl_b32 s{sB}, s{sB}, 6
            s_add_u32 s{sB}, s{sB}, {WS_TS}
            v_lshlrev_b32 v5, 2, v2
            s_mov_b64 exec, 0xffff
            buffer_store_dword v255, v5, {srd(WS)}, s{sB} offen
            s_endpgm""")

    def side(self):
        return items(f"""buffer_load_dwordx2 v[66:67], v65, {srd(CS)}, 0 offen
        buffer_load_dwordx4 v[68:71], v64, {srd(WM)}, s{sSD} offen {NT}
        s_add_u32 s{sSD}, s{sSD}, 6144
        buffer_load_dwordx4 v[72:75], v64, {srd(WM)}, s{sSD} offen {NT}
        s_add_u32 s{sSD}, s{sSD}, 6144
        buffer_load_dwordx4 v[76:79], v64, {srd(WM)}, s{sSD} offen {NT}
        s_add_u32 s{sSD}, s{sSD}, 6144
        buffer_load_dwordx4 v[80:83], v64, {srd(WM)}, s{sSD} offen {NT}
        s_lshl_b32 s{sSD}, s2, 5
        s_add_u32 s{sSD}, s{sSD}, s{sW}
        s_lshl_b32 s{sSD}, s{sSD}, 8
        buffer_load_dwordx4 v[88:91], v86, {srd(XS)}, s{sSD} offen {NT}
        buffer_load_dwordx4 v[92:95], v86, {srd(XS)}, s{sSD} offen offset:128 {NT}""")
    XR = [R0, R1, R2]
    WSL = [R3, R3 + 16384, R4]
    WQB = [R4, R3, R3 + 16384, MISC, R0, R0 + 16384, R1, R1 + 16384]
    VQB = [R2, R0, R1, R2]
    def xdma(self, s):
        it = []
        for g in range(2):
            it += self.dma4(CKV, [16, 17, 18, 19], (sW8, self.XR[s % 3] + g * 4096), (sXB, s * 128 + g * 32768), ("x", s), True)
        return it
    def wdma(self, s): return self.dma4(WUK, [20, 21, 22, 23], (sW4, self.WSL[s % 3]), (sWB, s * 64 * 8192), ("w", s), True)
    def qdma(self, c): return self.dma4(WQ, [20, 21, 22, 23], (sW4, self.WQB[c]), (sQB, c * 64 * 8192), ("q", c), True)
    def vdma(self, c):
        it = []
        for g in range(2):
            it += self.dma4(WUV, [24, 25, 26, 27], (sW8, self.VQB[c] + g * 4096), (sVB, (c >> 1) * 128 + (c & 1) * 256 * 8192 + g * 4 * 65536), ("v", c), True, c < int(E_("VNT", "0")))
        return it

    def modA(self):
        C, T, AC = 102, 108, 120
        t = f"""v_lshlrev_b32 v{C}, 16, v66
        v_and_b32 v{C+1}, 0xffff0000, v66
        v_lshlrev_b32 v{C+2}, 16, v67
        v_and_b32 v{C+3}, 0xffff0000, v67
        """
        for i in range(4): t += f"v_mul_f32 v{T+i}, {H(-LOG2E)}, v{C+i}\n"
        for i in range(4): t += f"v_exp_f32 v{T+i}, v{T+i}\n"
        for i in range(4): t += f"v_add_f32 v{T+i}, 1.0, v{T+i}\n"
        for i in range(4): t += f"v_rcp_f32 v{T+i}, v{T+i}\n"
        for i in range(4): t += f"v_mul_f32 v{C+i}, v{C+i}, v{T+i}\n"
        t += f"""v_cvt_pk_bf16_f32 v{T}, v{C}, v{C+1}
        v_cvt_pk_bf16_f32 v{T+1}, v{C+2}, v{C+3}
        v_lshlrev_b32 v{C}, 16, v{T}
        v_and_b32 v{C+1}, 0xffff0000, v{T}
        v_lshlrev_b32 v{C+2}, 16, v{T+1}
        v_and_b32 v{C+3}, 0xffff0000, v{T+1}
        """
        for r in range(4):
            for i in range(4):
                a, b = T + 2 * (i & 1), T + 2 * (i & 1) + 1
                op = "v_mul_f32" if r == 0 else "v_fmac_f32"
                t += f"""v_lshlrev_b32 v{a}, 16, v{68+4*r+i}
                v_and_b32 v{b}, 0xffff0000, v{68+4*r+i}
                {op} v{AC+2*i}, v{a}, v{C+r}
                {op} v{AC+2*i+1}, v{b}, v{C+r}
                """
        for i in range(4): t += f"v_permlane32_swap_b32 v{AC+i}, v{AC+4+i}\n"
        for i in range(4): t += f"v_add_f32 v{AC+i}, v{AC+i}, v{AC+4+i}\n"
        for i in range(2): t += f"v_permlane16_swap_b32 v{AC+i}, v{AC+2+i}\n"
        for i in range(2): t += f"v_add_f32 v{AC+i}, v{AC+i}, v{AC+2+i}\n"
        for i in range(2): t += f"v_add_f32_dpp v{AC+i}, v{AC+i}, v{AC+i} row_ror:8 row_mask:0xf bank_mask:0xf\n"
        t += f"ds_write_b64 v98, v[{AC}:{AC+1}]\n"
        return items(t)
    def red16(self, b):
        t = ""
        for i in range(8): t += f"v_permlane32_swap_b32 v{b+i}, v{b+8+i}\n"
        for i in range(8): t += f"v_add_f32 v{b+i}, v{b+i}, v{b+8+i}\n"
        for i in range(4): t += f"v_permlane16_swap_b32 v{b+i}, v{b+4+i}\n"
        for i in range(4): t += f"v_add_f32 v{b+i}, v{b+i}, v{b+4+i}\n"
        for pat in ("quad_perm:[1,0,3,2]", "quad_perm:[2,3,0,1]", "row_half_mirror", "row_mirror"):
            for i in range(4): t += f"v_add_f32_dpp v{b+i}, v{b+i}, v{b+i} {pat} row_mask:0xf bank_mask:0xf\n"
        return t
    def modB(self):
        it = items(f"""v_lshrrev_b32 v87, 2, v1
        v_add_u32 v101, {MISC}, v87
        ds_read_b32 v102, v101
        ds_read_b32 v103, v101 offset:256
        ds_read_b32 v104, v101 offset:512
        ds_read_b32 v105, v101 offset:768""")
        it2 = items(f"""v_add_f32 v102, v102, v103
        v_add_f32 v104, v104, v105
        v_add_f32 v102, v102, v104""")
        it2.append(("m", f"buffer_store_dword v102, v87, {srd(WS)}, s{sMODO} offen {WT}", "mod"))
        return it, it2
    def red8(self, v, t):
        return f"""v_add_f32_dpp v{v}, v{v}, v{v} row_ror:8 row_mask:0xf bank_mask:0xf
        v_mov_b32 v{t}, v{v}
        v_permlane16_swap_b32 v{v}, v{t}
        v_add_f32 v{v}, v{v}, v{t}
        v_mov_b32 v{t}, v{v}
        v_permlane32_swap_b32 v{v}, v{t}
        v_add_f32 v{v}, v{v}, v{t}
        """
    XH = 64
    def lnA(self):
        X = self.XH
        t = ""
        for i in range(8): t += f"v_lshlrev_b32 v{X+2*i}, 16, v{88+i}\nv_and_b32 v{X+2*i+1}, 0xffff0000, v{88+i}\n"
        t += f"v_add_f32 v108, v{X}, v{X+1}\nv_add_f32 v109, v{X+2}, v{X+3}\n"
        for i in range(4, 16, 2): t += f"v_add_f32 v108, v108, v{X+i}\nv_add_f32 v109, v109, v{X+i+1}\n"
        t += "v_add_f32 v108, v108, v109\n" + self.red8(108, 110)
        t += f"v_mul_f32 v108, {H(1/128)}, v108\n"
        t += f"v_sub_f32 v110, v{X}, v108\nv_mul_f32 v109, v110, v110\n"
        for i in range(1, 16): t += f"v_sub_f32 v{110+(i&1)}, v{X+i}, v108\nv_fmac_f32 v109, v{110+(i&1)}, v{110+(i&1)}\n"
        t += self.red8(109, 110)
        t += "ds_write_b64 v100, v[108:109]\n"
        return items(t)
    def lnB(self):
        X = self.XH
        it = items(f"""ds_read_b128 v[88:91], v99
        ds_read_b128 v[92:95], v99 offset:16""")
        t = f"""v_add_f32 v108, v88, v90
        v_add_f32 v109, v92, v94
        v_add_f32 v108, v108, v109
        v_mul_f32 v108, {H(0.25)}, v108
        v_add_f32 v109, v89, v91
        v_add_f32 v110, v93, v95
        v_add_f32 v109, v109, v110
        v_sub_f32 v88, v88, v108
        v_sub_f32 v90, v90, v108
        v_sub_f32 v92, v92, v108
        v_sub_f32 v94, v94, v108
        v_mul_f32 v110, v88, v88
        v_fmac_f32 v110, v90, v90
        v_fmac_f32 v110, v92, v92
        v_fmac_f32 v110, v94, v94
        v_fmac_f32 v109, {H(128.0)}, v110
        v_mov_b32 v110, {H(1e-5)}
        v_fmac_f32 v110, {H(1/512)}, v109
        v_rsq_f32 v110, v110
        """
        for i in range(16): t += f"v_sub_f32 v{X+i}, v{X+i}, v108\n"
        for i in range(16): t += f"v_mul_f32 v{X+i}, v{X+i}, v110\n"
        return it, items(t)
    def lnC_loads(self):
        it = items(f"""v_and_b32 v96, 31, v2
        v_lshlrev_b32 v96, 4, v96
        v_lshrrev_b32 v97, 5, v2
        v_lshl_add_u32 v96, v97, 11, v96""")
        ld = []
        for q in range(4):
            ld += [("m", f"buffer_load_dwordx4 v[{80+4*q}:{83+4*q}], v96, {srd(WS)}, s{sLNP} offen")]
            if q < 3: ld += [("s", f"s_add_u32 s{sLNP}, s{sLNP}, 12288")]
        return it, ld
    def lnC_fin(self):
        t = ""
        for e in range(4): t += f"v_add_f32 v{80+e}, v{80+e}, v{84+e}\nv_add_f32 v{88+e}, v{88+e}, v{92+e}\n"
        for e in range(4): t += f"v_add_f32 v{80+e}, v{80+e}, v{88+e}\n"
        rnd = lambda: "".join(f"v_cvt_pk_bf16_f32 v{84+e}, v{80+2*e}, v{81+2*e}\n" for e in range(2)) + "".join(f"v_lshlrev_b32 v{80+2*e}, 16, v{84+e}\nv_and_b32 v{81+2*e}, 0xffff0000, v{84+e}\n" for e in range(2))
        t += "v_lshrrev_b32 v88, 5, v2\nv_cvt_f32_u32 v88, v88\n" + rnd()
        for e in range(4): t += f"v_add_f32 v{80+e}, v{80+e}, v88\n"
        t += rnd()
        for e in range(4): t += f"v_mul_f32 v{80+e}, {H(QSCALE)}, v{80+e}\n"
        t += f"""s_lshl_b32 s{sLNP}, s{sW}, 10
        s_add_u32 s{sLNP}, s{sLNP}, {MISC + 4096}
        v_add_u32 v88, s{sLNP}, v1
        v_add_u32 v18, s{sLNP}, v18
        ds_write_b128 v88, v[80:83]
        """
        return items(t)
    def lnC_rd(self, i):
        return [("l", f"ds_read_b128 v[{80+seg*8+hf*4}:{83+seg*8+hf*4}], v18 offset:{seg*512 + i*256 + hf*16}") for seg in range(2) for hf in range(2)]
    def lnC(self, i):
        X = self.XH + 8 * i
        t = ""
        for e in range(8): t += f"v_fma_f32 v{X+e}, v{X+e}, v{88+e}, v{80+e}\n"
        t2 = ""
        for e in range(4): t2 += f"v_cvt_pk_bf16_f32 v{X+e}, v{X+2*e}, v{X+2*e+1}\n"
        return items(t), items(t2) + [("m", f"buffer_store_dwordx4 v[{X}:{X+3}], v19, {srd(WS)}, s{sHST} offen offset:{2048*i} {WT}", "hst")]

    WF, VACC, ACC = 32, 64, 128
    def proj(self):
        k = self.k; WF, VACC, ACC = self.WF, self.VACC, self.ACC
        M = []
        def kmajor():
            for n in range(16):
                for dt in range(8):
                    for tt in range(4):
                        d = V(ACC + (tt * 8 + dt) * 4)
                        M.append(MF(d, V(WF + 4 * dt), A((n * 4 + tt) * 4), "0" if n == 0 else d))
        kmajor()
        V0 = len(M)
        VST = [(pc, sh, q) for pc in range(4) for sh in range(2) for q in range(4)]
        for i, (pc, sh, q) in enumerate(VST):
            for nt in range(2):
                for tt in range(4):
                    for h in range(2):
                        n = (pc & 1) * 8 + 2 * q + h
                        d = V(VACC + (1 - sh) * 32 + (nt * 4 + tt) * 4)
                        M.append(MF(d, A((n * 4 + tt) * 4), V(WF + ((i & 1) * 4 + nt * 2 + h) * 4), "0" if n == 0 else d))
        Q0 = len(M)
        kmajor()
        ph = Phase(k, M); N = len(M)
        def wread(base, n, dt):
            o = base + (n & 1) * 8192
            return [("l", f"ds_read_b64_tr_b16 v[{WF+4*dt}:{WF+4*dt+1}], v{8+dt} offset:{o}"),
                    ("l", f"ds_read_b64_tr_b16 v[{WF+4*dt+2}:{WF+4*dt+3}], v{8+dt} offset:{o+1024}")]
        def xread(n, tt):
            s = n >> 1; sl = s % 3
            va = (28 if sl < 2 else 30) + (n & 1)
            return ("l", f"ds_read_b128 {A((n*4+tt)*4)}, v{va} offset:{(sl if sl < 2 else 0)*32768 + tt*2048}")
        def vread(i, nt, h):
            pc, sh, q = VST[i]
            reg = self.VQB[pc]; va = 28 + 2 * sh + nt
            o = (reg if reg < R2 else 0) + (2 * q + h) * 4096
            f = WF + ((i & 1) * 4 + nt * 2 + h) * 4
            return [("l", f"ds_read_b64_tr_b16 v[{f}:{f+1}], v{va} offset:{o}"), ("l", f"ds_read_b64_tr_b16 v[{f+2}:{f+3}], v{va} offset:{o+512}")]
        BOFF = 40
        k.waitvm([("x", 0), ("w", 0)], True); k("s_barrier")
        self.ts()
        for it in wread(self.WSL[0] - R3, 0, 0): k(it[1])
        for tt in range(4): k(xread(0, tt)[1])
        for dt in range(1, 8):
            for it in wread(self.WSL[0] - R3, 0, dt): k(it[1])
        for s in range(7): ph.put("x", self.bar([("x", s + 1), ("w", s + 1)]), 64 * s + BOFF)
        ph.put("x", self.bar([("v", 0)]), 64 * 7 + BOFF)
        BV = [V0 + 128 * c + 110 for c in range(4)]
        for c in range(3): ph.put("x", self.bar([("v", c + 1)]), BV[c])
        ph.put("x", self.bar([("q", i) for i in range(4)]), BV[3])
        BQ = Q0 + 64 * 3 + BOFF
        ph.put("x", self.bar([("q", i) for i in range(4, 8)]), BQ)
        BE = Q0 + 32 * 15 + 10
        ph.put("x", self.bar([]), BE)
        for (G0, bases) in ((0, [self.WSL[s % 3] - R3 for s in range(8)]), (Q0, [b - R3 if b >= R3 else b for b in self.WQB])):
            for n in range(0 if G0 else 1, 16):
                for dt in range(8):
                    lo = G0 + 32 * (n - 1) + 4 * dt + 4
                    if n == 0: lo = max(BV[3] + 1, [Q0 - 24, Q0 - 16, Q0 - 8, Q0][dt >> 1])
                    elif n % 2 == 0 and (G0 == 0 or n == 8): lo = max(lo, G0 + 32 * (n - 2) + BOFF + 1)
                    pre = []
                    if G0 and n == 8: pre = [("v", f"v_subrev_u32 v{8+dt}, {R3}, v{8+dt}")]; lo -= 1
                    g = ph.stream(pre + wread(bases[n >> 1], n, dt), lo, G0 + 32 * n + 4 * dt - 6)
                    if n % 2 == 1 and (G0 == 0 or n in (7, 15)): assert g < (G0 + 32 * (n - 1) + BOFF if n < 15 or not G0 else BE), (n, dt, g)
        for n in range(1, 16):
            lo = 32 * (n - 1) + 2
            if n % 2 == 0: lo = 32 * (n - 2) + BOFF + 1
            gx = ph.stream([xread(n, tt) for tt in range(4)], lo, 32 * n - 6)
        vaddr = items(f"""v_and_b32 v16, 15, v2
        v_lshrrev_b32 v17, 4, v2
        v_lshrrev_b32 v29, 2, v16
        v_and_b32 v16, 3, v16
        v_lshl_add_u32 v28, v17, 3, v29
        v_lshlrev_b32 v28, 7, v28
        v_lshl_add_u32 v28, v16, 3, v28
        v_and_b32 v17, 1, v17
        v_lshrrev_b32 v29, 1, v29
        v_lshl_add_u32 v29, v17, 1, v29
        v_lshl_add_u32 v28, v29, 5, v28
        v_add_u32 v28, 65536, v28
        v_xor_b32 v29, 32, v28
        v_xor_b32 v30, 64, v28
        v_xor_b32 v31, 96, v28
        v_and_b32 v16, 15, v2
        v_lshlrev_b32 v16, 6, v16
        v_add_u32 v16, 65536, v16
        v_mad_i32_i24 v16, v17, s{sHFD}, v16
        v_and_b32 v17, 31, v2
        v_lshlrev_b32 v17, 6, v17""")
        g = ph.stream(vaddr, gx + 1)
        assert g <= 64 * 7 + BOFF + 6, g
        for i, (pc, sh, q) in enumerate(VST):
            g0 = V0 + 16 * i
            for nt in range(2):
                for h in range(2):
                    slot = (i & 1) * 4 + nt * 2 + h
                    if i < 2: lo = max(64 * 7 + BOFF + 1, V0 - 32 + 4 * slot + 4)
                    else: lo = g0 - 32 + 8 * nt + 8
                    if pc > 0: lo = max(lo, BV[pc - 1] + 1)
                    pre = []
                    if q == 0 and h == 0 and pc in (1, 3): pre = [("v", f"v_xor_b32 v{28+2*sh+nt}, 65536, v{28+2*sh+nt}")]; lo -= 1
                    g = ph.stream(pre + vread(i, nt, h), max(lo, gprev + 1) if (h and q == 0) else lo, g0 + 8 * nt - 4)
                    gprev = g
                    assert g < BV[pc], (i, g)
        first = self.wdma(2) + self.xdma(2)
        if E_("SIDE", "0") == "1": first = self.side() + first
        if E_("SIDE", "0") == "2": first = first + self.side()
        ph.stream(first, 0, BOFF - 1, sid=900)
        ph.stream(items("".join(f"s_mov_b32 s{d}, s{p}\ns_mov_b32 s{d+1}, s{p+1}\ns_mov_b32 s{d+2}, {512*3584}\n" for (d, p) in ((WG_, sPG), (WU_, sPG + 2)))), 120)
        for s in range(8):
            its = (self.wdma(s + 3) + self.xdma(s + 3)) if s < 5 else self.vdma(s - 5)
            if s == 7: its += self.qdma(0) + self.qdma(1)
            g = ph.stream(its, 64 * s + BOFF + 1, None, step=2 if s < 5 else 4, sid=900)
            assert g < (64 * (s + 1) + BOFF if s < 7 else BV[0]), (s, g)
        g = ph.stream(self.vdma(3) + self.qdma(2) + self.qdma(3), BV[0] + 1, None, step=5, sid=900); assert g < BV[1]
        ph.stream(self.qdma(4) + self.qdma(5), BV[1] + 1, None, step=6, sid=900)
        ph.stream(self.qdma(6) + self.qdma(7), BV[2] + 1, None, step=6, sid=900)
        m1, m2 = self.modB(); l1, l2 = self.lnB()
        zero = items(f"""v_mov_b32 v112, 0
        v_mov_b32 v113, 0
        v_mov_b32 v114, 0
        v_mov_b32 v115, 0
        v_lshlrev_b32 v116, 4, v0""") + [("m", f"buffer_store_dwordx4 v[112:115], v116, {srd(WS)}, s{sZO} offen {WT}", "zero")]
        g = ph.stream(items(f"""v_lshlrev_b32 v117, 13, v2
        s_lshl_b32 s{sB}, s{sP}, 19
        s_and_b32 s{sC}, s{sW}, 1
        s_lshl_b32 s{sC}, s{sC}, 7
        s_add_u32 s{sB}, s{sB}, s{sC}"""), 60, sid=904)
        for w, gp in enumerate(int(x) for x in E_("TG", "102,166,230,294").split(",")):
            if E_("TM", "pair") == "none": continue
            first = f"buffer_load_dword a{240+2*w}, v117, {srd(WUV if w < 2 else WQ)}, s{sC} offen nt" if E_("TM", "pair") == "pair" else ""
            ph.put("x", f"""s_cmp_eq_u32 s{sW}, {w}
            s_cselect_b32 s{sC}, s{sB}, {OOB}
            {first}
            buffer_load_dword a{241+2*w}, v117, {srd(WUV if w < 2 else WQ)}, s{sC} offen offset:4""", gp, tag="pf")
        g = ph.stream(zero, BOFF + 10)
        g = ph.stream(self.modA(), int(E_("MG", "41")), sid=901, dense=int(E_("MD", "1")))
        b1 = (g - BOFF) // 64 + 1
        g0 = g
        ph.put("x", lambda k: k.waitvm(["zero"]), 64 * b1 + BOFF - 1)
        g = ph.stream(m1, 64 * b1 + BOFF + 1, sid=901, dense=1)
        g = ph.stream(m2[:-1], g + 6, sid=901)
        g = ph.put("x", m2[-1][1], g, tag="mod")
        g = ph.put("x", lambda k: k.waitvm(["mod"]), g + int(E_("ED", "60")))
        ph.put("x", f"buffer_atomic_add v6, v7, {srd(DBG)}, s{sEO} offen sc1", g, tag="flag")
        gl = ph.stream(self.lnA(), g0 + 1, sid=902)
        b2 = (gl - BOFF) // 64 + 1
        gl = ph.stream(l1, 64 * b2 + BOFF + 1, sid=902)
        gl = ph.stream(l2, gl + 8, sid=902)
        print("mod barrier", b1, "E at", g, "ln barrier", b2, "lnB end", gl, file=sys.stderr)
        a, ld = self.lnC_loads()
        gl = ph.stream(a, gl + 1, sid=902)
        gva = ph.stream(items("v_mov_b32 v18, v106\nv_mov_b32 v19, v107"), 64 * 5 + BOFF + 1, sid=902)
        PG = int(E_("PG", "330"))
        g = ph.put("x", f"buffer_load_dword v3, v4, {srd(DBG)}, 0 offen {WT}", PG)
        g = ph.put("x", self.poll_check(3, 4, DBG, "0", "E", target=64), max(g + int(E_("PL", "60")), gl))
        g = ph.stream(ld, g + 1, sid=902); assert g < V0 - 2
        g = ph.stream(self.lnC_fin(), max(g + int(E_("PL2", "50")), gva + 1), sid=902, dense=int(E_("FD", "1")))
        for i in range(2):
            g = ph.stream(self.lnC_rd(i), g + (6 if i == 0 else 1), sid=902)
            a, b = self.lnC(i)
            g = ph.stream(a, g + 6, sid=902)
            g2 = ph.stream(b, g + 1, sid=902)
        assert g2 < V0 + 60, g2
        print("h stored at", g2, file=sys.stderr)
        g = ph.stream(self.flag_store(sHFO, ["hst"]), g2 + 70)
        def epi(b, off, vtype=False):
            it = [("v", f"v_cvt_pk_bf16_f32 v{b+i}, v{b+2*i}, v{b+2*i+1}") for i in range(4)]
            it.append(("s", f"s_xor_b32 s{sEPI}, s{sVX if vtype else sKVST}, {off & ~4095}"))
            it.append(("m", f"buffer_store_dwordx4 {V(b)}, v1, {srd(WS)}, s{sEPI} offen offset:{off & 4095} {WT}", "kv"))
            return it
        ep = []
        kst = [10 + 18 * i for i in range(10)] + [330 + 18 * i for i in range(6)]
        for tt in range(4):
            for u in range(4): ep.append((V0 + kst[tt * 4 + u], epi(ACC + (tt * 8 + 2 * u) * 4, tt * 4096 + u * 1024), Q0 - 4))
        for c in range(4):
            done = V0 + [192, 256, 448, 512][c]
            for nt in range(2):
                for kbl in range(2):
                    i = nt * 2 + kbl
                    ep.append((done + 6 + (12 if c < 3 else 6) * i, epi(VACC + (1 - (c & 1)) * 32 + (nt * 4 + 2 * kbl) * 4, 32768 + kbl * 8192 + (2 * c + nt) * 1024, True), done + 62))
        ep.sort(key=lambda e: e[0])
        g = 0
        for (lo, its, dl) in ep:
            g = ph.stream(its, max(lo, g + 1)); assert g < dl
        g = ph.stream(self.flag_store(sKFO, ["kv"]), g + int(E_("KVD", "70")))
        HG = V0 + 384
        g = ph.stream([("m", f"buffer_load_dword v3, v16, {srd(WS)}, s{sHF1} offen {WT}")], HG - 44)
        ph.put("x", self.poll_check(3, 16, WS, f"s{sHF1}", "H"), HG)
        g = HG + 1
        for n in range(16):
            for tt in range(4):
                lo = max(HG + 64 + 16 * ((n - 8) // 2 + 1) if n >= 8 else 0, HG + 1 + 7 * (n * 4 + tt))
                off = (tt & 1) * 16384 + n * 1024
                g = ph.stream([("s", f"s_xor_b32 s{sHLD}, s{sH1 + (tt >> 1)}, {off & ~2047}"),
                               ("m", f"buffer_load_dwordx4 {A((n*4+tt)*4)}, v1, {srd(WS)}, s{sHLD} offen offset:{off & 2047}")], max(lo, g + 1))
        g = ph.stream(moe_setup(), V0 + 20)
        a, ld = late_mod_loads(self, 112)
        g = ph.stream(a + [("s", f"s_mov_b32 s{sEO}, 64"), ("m", f"buffer_load_dword v118, v4, {srd(DBG)}, s{sEO} offen {WT}")], Q0 + 20, sid=903)
        g = ph.put("x", self.poll_check(118, 4, DBG, f"s{sEO}", "E2", target=128), g + 50)
        g = ph.stream(ld, g + 1, sid=903)
        g = ph.stream(late_mod_fin(self, 112), g + 60, sid=903)
        KG = int(E_("KG", "30"))
        g = ph.stream([("m", f"buffer_load_dword v3, v17, {srd(WS)}, s{sKFP} offen {WT}")], BQ + KG - 40)
        ph.put("x", self.poll_check(3, 17, WS, f"s{sKFP}", "KV"), BQ + KG)
        its = []
        for (lds, so, tag) in ((R2, (sKV, 0), "k0"), (R3, (sKV, 32768), "v0"), (R4, (sKp, 0), "k1")):
            for g2 in range(2):
                its += self.dma4(WS, [1, 1, 1, 1], (sW8, lds + g2 * 4096), (so[0], so[1] + g2 * 4096), tag)
        g = ph.stream(its, BQ + KG + 1, None, step=int(E_("KST", "5")), sid=900)
        g2 = ph.stream(attn_setup(self), BQ + KG + 2)
        cl = cold_loads(120, sEPI)
        nf = [i for i, it in enumerate(cl) if it[0] == "m"][0]
        g2 = ph.stream(cl[:nf], g2 + 1, sid=905)
        g = ph.stream(cl[nf:], max(g, g2) + 1, sid=905)
        print("cold loads end at", g, file=sys.stderr)
        if self.TS:
            ph.put("x", self.ts, V0 - 1); ph.put("x", self.ts, Q0 - 1)
            for gp in (E_("TSP") or "").split(","):
                if gp: ph.put("x", lambda k: self.ts(k, True), int(gp))
        ph.emit()
        print("proj: overloaded placements", ph.over, file=sys.stderr)
        self.ts()


def build(stop=None):
    g = G()
    k = g.k
    g.startup(); g.proj()
    if stop != "proj":
        attention(g)
        if stop != "attn":
            oproj(g); tail(g)
    else:
        qdump(g)
    k.label("L_fin")
    if g.TS:
        k("s_waitcnt vmcnt(0)"); g.ts()
        k(f"""s_lshl_b32 s{sB}, s2, 2
        s_add_u32 s{sB}, s{sB}, s{sW}
        s_lshl_b32 s{sB}, s{sB}, 6
        s_add_u32 s{sB}, s{sB}, {WS_TS}
        v_cmp_eq_u32 vcc, 0, v2
        v_mov_b32 v6, {OOB}
        s_nop 1
        v_cndmask_b32 v5, v6, v2, vcc""")
        for n in range(g.nts):
            k(f"v_mov_b32 v4, s{TSR[n]}\nbuffer_store_dword v4, v5, {srd(WS)}, s{sB} offen offset:{4*n}")
        if E_("TSDBG"):
            k(f"s_cmp_eq_u32 s2, {E_('TSDBG')}\ns_cselect_b32 s{sB}, 0, {OOB}\ns_cmp_eq_u32 s{sW}, 0\ns_cselect_b32 s{sB}, s{sB}, {OOB}")
            for n in range(1, g.nts):
                k(f"s_sub_u32 s{sC}, s{TSR[n]}, s{TSR[0]}\nv_mov_b32 v4, s{sC}\nbuffer_store_dword v4, v5, {srd(DBG)}, s{sB} offen offset:{4*n}")
    if E_("SPINT"):
        n = int(E_("SPINT"))
        if E_("SPINW"): k(f"s_cmp_lg_u32 s2, {E_('SPINW')}\ns_cbranch_scc1 L_end")
        k(f"s_add_u32 s{sC}, s{TSR[n]}, 10000")
        k.label("L_spint")
        k(f"s_memrealtime vcc\ns_waitcnt lgkmcnt(0)\ns_sub_u32 s{sB}, vcc_lo, s{sC}\ns_cmp_lt_i32 s{sB}, 0\ns_cbranch_scc1 L_spint")
    k.label("L_end")
    k("s_endpgm")
    lines = k.out + "\n".join(g.tail).split("\n") + ["L_code_end:", "    s_endpgm"]
    lines, nn = fix_hazards(lines, report=bool(E_("NOPS")))
    print("nops inserted:", nn, file=sys.stderr)
    hdr = open(os.path.join(HERE, "..", NAME + ".s.ref")).read().split("; Override launch geometry")[0]
    kn = NAME + "_kernel"
    text = hdr + f"""; @launch grid=(256,1,1) block=(256,1,1) lds=163840
.amdgcn_target "amdgcn-amd-amdhsa--gfx950"
.text
.globl {kn}
.p2align 8
.type {kn},@function
{kn}:
""" + "\n".join(lines) + f"""
.section .rodata,"a"
.p2align 6
.amdhsa_kernel {kn}
  .amdhsa_next_free_vgpr 512
  .amdhsa_next_free_sgpr 102
  .amdhsa_accum_offset 256
  .amdhsa_group_segment_fixed_size 0
  .amdhsa_kernarg_size 128
  .amdhsa_user_sgpr_count 2
  .amdhsa_user_sgpr_kernarg_segment_ptr 1
  .amdhsa_system_sgpr_workgroup_id_x 1
.end_amdhsa_kernel
"""
    return text, lines

if __name__ == "__main__":
    path = sys.argv[1] if len(sys.argv) > 1 else os.path.join(HERE, "..", NAME + ".s")
    text, lines = build(E_("STOP"))
    verify_all(lines)
    open(path, "w").write(text)
    print("wrote", path, len(text), file=sys.stderr)
```

```python
from common import *
from gen_attn import *
sFO, sWOB, sXL, sPS, sTOK1, sTOK2, sPC, sKEY, sIDX, sCND, sCG, sC2 = 64, 65, 74, 75, 68, 69, 70, 71, 72, 73, 66, 67
CNT = E_("CNT", "nt")
sLM = 70
OQB = [R1, R2, R0, R3]
WOV = 8
OA = 56
WR0, OACC, X1, X2 = 192, 64, 64, 128
def wodma(g, c, vb=24):
    it = []
    for h in range(2):
        it += g.dma4(WO, [vb + i for i in range(4)], (sW8, OQB[c] + h * 4096), (sWOB, (c & 1) * 128 + (c >> 1) * 262144 + h * 32768), f"wo{c}")
    return it
def xload(pas, f):
    off = f * 1024
    dst = A(X1 + 4 * f) if pas == 0 else V(X2 + 4 * f)
    return [("s", f"s_add_u32 s{sXL}, s{sXC}, {off & ~4095}"), ("m", f"buffer_load_dwordx4 {dst}, v1, {srd(WS)}, s{sXL} offen offset:{off & 4095}")]
def xc_items(sT):
    return items(f"""s_lshl_b32 s{sXC}, s{sT}, 2
    s_add_u32 s{sXC}, s{sXC}, s{sW}
    s_lshl_b32 s{sXC}, s{sXC}, 3
    s_add_u32 s{sXC}, s{sXC}, s{sX}
    s_lshl_b32 s{sXC}, s{sXC}, 15
    s_add_u32 s{sXC}, s{sXC}, {WS_CTX}""")

def moe_setup():
    return items(f"""s_lshr_b32 s{sB}, s2, 3
    s_mul_i32 s{sCG}, s{sX}, 28
    s_add_u32 s{sCG}, s{sCG}, s{sB}
    s_cmp_lt_u32 s{sB}, 28
    s_cselect_b32 s{sCG}, s{sCG}, 255
    s_lshl_b32 s{sC2}, s{sX}, 3
    s_add_u32 s{sC2}, s{sC2}, s{sB}
    s_sub_u32 s{sC2}, s{sC2}, 24
    s_cmp_ge_u32 s{sB}, 24
    s_cselect_b32 s{sC2}, s{sC2}, 255""")
WS_GP, WS_UP, WS_DP = 0x400000, 0x600000, 0x800000
def repack_loads(t0, s0):
    return items(f"""s_lshl_b32 s{s0}, s2, 2
    s_add_u32 s{s0}, s{s0}, s{sW}
    s_and_b32 s{sB}, s{s0}, 31
    s_lshr_b32 s{sC}, s{s0}, 5
    v_lshrrev_b32 v{t0+1}, 3, v2
    v_and_b32 v{t0}, 4, v{t0+1}
    v_and_b32 v{t0+2}, 2, v{t0+1}
    v_lshl_add_u32 v{t0}, v{t0+2}, 3, v{t0}
    v_and_b32 v{t0+2}, 1, v{t0+1}
    v_lshl_add_u32 v{t0}, v{t0+2}, 1, v{t0}
    v_mul_u32_u24 v{t0}, 3584, v{t0}
    v_and_b32 v{t0+2}, 7, v2
    v_lshl_add_u32 v{t0}, v{t0+2}, 4, v{t0}
    v_lshlrev_b32 v{t0+1}, 13, v{t0+1}
    v_lshl_add_u32 v{t0+1}, v{t0+2}, 4, v{t0+1}
    s_lshr_b32 s{s0}, s{sB}, 1
    s_lshl_b32 s{s0}, s{s0}, 2
    s_and_b32 s{sB}, s{sB}, 1
    s_add_u32 s{s0}, s{s0}, s{sB}
    s_mul_i32 s{s0}, s{s0}, {8*3584}
    s_lshl_b32 s{sB}, s{sC}, 7
    s_add_u32 s{s0}, s{s0}, s{sB}
    s_cmp_lt_u32 s{sC}, 28
    s_cselect_b32 s{s0}, s{s0}, {OOB}
    buffer_load_dwordx4 {A(PRE)}, v{t0}, {srd(WG_)}, s{s0} offen {CNT}
    buffer_load_dwordx4 {A(PRE+4)}, v{t0}, {srd(WG_)}, s{s0} offen offset:3584 {CNT}
    buffer_load_dwordx4 {A(PRE+8)}, v{t0}, {srd(WU_)}, s{s0} offen {CNT}
    buffer_load_dwordx4 {A(PRE+12)}, v{t0}, {srd(WU_)}, s{s0} offen offset:3584 {CNT}
    s_lshl_b32 s{s0}, s{sC}, 16
    s_lshl_b32 s{sB}, s{sW}, 11
    s_add_u32 s{s0}, s{s0}, s{sB}
    s_lshl_b32 s{sB}, s{sX}, 7
    s_add_u32 s{s0}, s{s0}, s{sB}
    buffer_load_dwordx4 {A(PRE+16)}, v{t0+1}, {srd(WD_)}, s{s0} offen {CNT}
    buffer_load_dwordx4 {A(PRE+20)}, v{t0+1}, {srd(WD_)}, s{s0} offen offset:1024 {CNT}""", "ex")
def repack_stores(t0, s0):
    return items(f"""s_lshr_b32 s{sC}, s2, 3
    v_lshrrev_b32 v{t0+2}, 3, v2
    v_lshlrev_b32 v{t0+2}, 4, v{t0+2}
    v_and_b32 v{t0+1}, 7, v2
    v_lshl_add_u32 v{t0}, v{t0+1}, 13, v{t0+2}
    v_mul_u32_u24 v{t0+1}, 28672, v{t0+1}
    v_add_u32 v{t0+1}, v{t0+1}, v{t0+2}
    s_lshl_b32 s{s0}, s{sX}, 2
    s_add_u32 s{s0}, s{s0}, s{sW}
    s_lshl_b32 s{s0}, s{s0}, 7
    s_lshl_b32 s{sB}, s{sC}, 16
    s_add_u32 s{s0}, s{s0}, s{sB}
    s_add_u32 s{s0}, s{s0}, {WS_GP}
    s_cmp_lt_u32 s{sC}, s{sRPL}
    s_cselect_b32 s{s0}, s{s0}, {OOB - 0x400000}
    buffer_store_dwordx4 {A(PRE)}, v{t0}, {srd(WS)}, s{s0} offen {WT}
    s_add_u32 s{s0}, s{s0}, 4096
    buffer_store_dwordx4 {A(PRE+4)}, v{t0}, {srd(WS)}, s{s0} offen {WT}
    s_add_u32 s{s0}, s{s0}, {WS_UP - WS_GP - 4096}
    buffer_store_dwordx4 {A(PRE+8)}, v{t0}, {srd(WS)}, s{s0} offen {WT}
    s_add_u32 s{s0}, s{s0}, 4096
    buffer_store_dwordx4 {A(PRE+12)}, v{t0}, {srd(WS)}, s{s0} offen {WT}
    s_mul_i32 s{s0}, s{sX}, {8*28672}
    s_mul_i32 s{sB}, s{sW}, {2*3584}
    s_add_u32 s{s0}, s{s0}, s{sB}
    s_lshl_b32 s{sB}, s{sC}, 7
    s_add_u32 s{s0}, s{s0}, s{sB}
    s_add_u32 s{s0}, s{s0}, {WS_DP}
    s_cmp_lt_u32 s{sC}, s{sRPL}
    s_cselect_b32 s{s0}, s{s0}, {OOB}
    buffer_store_dwordx4 {A(PRE+16)}, v{t0+1}, {srd(WS)}, s{s0} offen {WT}
    buffer_store_dwordx4 {A(PRE+20)}, v{t0+1}, {srd(WS)}, s{s0} offen offset:3584 {WT}""", "pre")
def moe_loads(t0, s0):
    t = f"""v_lshlrev_b32 v{t0}, 4, v0
    v_cmp_gt_u32 vcc, 224, v0
    v_mov_b32 v{t0+1}, {OOB}
    v_cndmask_b32 v{t0+1}, v{t0+1}, v{t0}, vcc
    s_lshl_b32 s{s0}, s{sCG}, 13
    s_add_u32 s{s0}, s{s0}, {WS_GP}
    s_cmp_lt_u32 s{sCG}, 224
    s_cselect_b32 s{s0}, s{s0}, {OOB - 0x400000}
    buffer_load_dwordx4 {A(PRE)}, v{t0}, {srd(WS)}, s{s0} offen
    s_add_u32 s{s0}, s{s0}, 4096
    buffer_load_dwordx4 {A(PRE+4)}, v{t0}, {srd(WS)}, s{s0} offen
    s_add_u32 s{s0}, s{s0}, {WS_UP - WS_GP - 4096}
    buffer_load_dwordx4 {A(PRE+8)}, v{t0}, {srd(WS)}, s{s0} offen
    s_add_u32 s{s0}, s{s0}, 4096
    buffer_load_dwordx4 {A(PRE+12)}, v{t0}, {srd(WS)}, s{s0} offen
    s_mul_i32 s{s0}, s{sC2}, 28672
    s_add_u32 s{s0}, s{s0}, {WS_DP}
    s_cmp_lt_u32 s{sC2}, 64
    s_cselect_b32 s{s0}, s{s0}, {OOB - 0x400000}
    """
    for r in range(8):
        t += f"buffer_load_dwordx4 {A(PRE+16+4*r)}, v{t0+1}, {srd(WS)}, s{s0} offen offset:{(r&1)*3584}\n"
        if r & 1 and r < 7: t += f"s_add_u32 s{s0}, s{s0}, 7168\n"
    return items(t, "ex")
def merge1_extra(g):
    t = f"""v_lshlrev_b32 v12, 3, v0
    s_lshl_b32 s{sC}, s2, 11
    s_add_u32 s{sC}, s{sC}, {WS_CAND}
    buffer_store_dwordx2 v[{vSEN}:{vSEN+1}], v12, {srd(WS)}, s{sC} offen {WT}
    s_lshl_b32 s{sC}, s2, 6
    s_add_u32 s{sC}, s{sC}, {WS_KEY}
    v_mov_b32 v13, 0
    buffer_store_dword v13, v7, {srd(WS)}, s{sC} offen {WT}
    s_lshl_b32 s{sC}, s{sCG}, 6
    s_add_u32 s{sC}, s{sC}, {WS_ACT}
    buffer_store_dwordx4 {V(vSEN)}, v7, {srd(WS)}, s{sC} offen {WT}
    buffer_store_dwordx4 {V(vSEN)}, v7, {srd(WS)}, s{sC} offen offset:16 {WT}
    """
    return items(t, "pre")
def late_mod_loads(g, b):
    it = items(f"""v_lshlrev_b32 v{b+4}, 2, v0
    v_cmp_gt_u32 vcc, 8, v0
    v_mov_b32 v{b+5}, {OOB}
    v_cndmask_b32 v{b+4}, v{b+5}, v{b+4}, vcc
    s_lshl_b32 s{sLM}, s2, 5
    s_add_u32 s{sLM}, s{sLM}, {WS_MODP + 4096}""")
    ld = []
    for q in range(4):
        ld += [("m", f"buffer_load_dword v{b+q}, v{b+4}, {srd(WS)}, s{sLM} offen"), ("s", f"s_add_u32 s{sLM}, s{sLM}, 12288")]
    return it, ld
def late_mod_fin(g, b):
    return items(f"""v_add_f32 v{b}, v{b}, v{b+1}
    v_add_f32 v{b+2}, v{b+2}, v{b+3}
    v_add_f32 v{b}, v{b}, v{b+2}
    v_cvt_pk_bf16_f32 v{b}, v{b}, v{b}
    v_and_b32 v{b}, 0xffff0000, v{b}
    s_lshr_b32 s{sLM}, s2, 6
    s_cmp_eq_u32 s{sLM}, 2
    s_cselect_b32 s{sLM}, 1.0, 0
    v_add_f32 v{b}, s{sLM}, v{b}
    v_cvt_pk_bf16_f32 v{b}, v{b}, v{b}
    v_and_b32 v{b}, 0xffff0000, v{b}
    s_lshl_b32 s{sLM}, s2, 5
    s_add_u32 s{sLM}, s{sLM}, {WS_MOD + 4096}
    buffer_store_dword v{b}, v{b+4}, {srd(WS)}, s{sLM} offen {WT}""", "ex")
def wo_voff(b):
    return items(f"""v_lshrrev_b32 v{b+1}, 1, v2
    v_lshrrev_b32 v{b+2}, 4, v2
    v_xor_b32 v{b+1}, v{b+1}, v{b+2}
    v_and_b32 v{b+1}, 3, v{b+1}
    v_lshlrev_b32 v{b+1}, 5, v{b+1}
    v_and_b32 v{b+2}, 1, v2
    v_lshl_add_u32 v{b+1}, v{b+2}, 4, v{b+1}
    v_lshrrev_b32 v{b}, 3, v2
    v_lshl_add_u32 v{b}, v{b}, 10, v{b+1}
    v_bfe_u32 v4, v2, 1, 2
    v_lshlrev_b32 v4, 11, v4
    v_lshl_add_u32 v4, v{b+2}, 6, v4
    v_add_u32 v{b+1}, 7168, v{b}
    v_add_u32 v{b+2}, {2*7168}, v{b}
    v_add_u32 v{b+3}, {3*7168}, v{b}""")
def cold_loads(t0, s0):
    return repack_loads(t0, s0) + items(f"""v_lshrrev_b32 v{t0}, 2, v2
    v_and_b32 v{t0+1}, 3, v2
    v_lshlrev_b32 v{t0+1}, 3, v{t0+1}
    v_lshl_add_u32 v{t0}, v{t0}, 6, v{t0+1}
    s_and_b32 s{s0}, s2, 31
    s_lshl_b32 s{s0}, s{s0}, 2
    s_add_u32 s{s0}, s{s0}, s{sW}
    s_lshl_b32 s{sB}, s{sT1}, 7
    s_add_u32 s{sTOK1}, s{s0}, s{sB}
    s_lshl_b32 s{sB}, s{sT2}, 7
    s_add_u32 s{sTOK2}, s{s0}, s{sB}
    s_lshl_b32 s{sB}, s{sTOK1}, 10
    s_lshl_b32 s{sC}, s{sTOK2}, 10
    buffer_load_dwordx2 a[48:49], v{t0}, {srd(XS)}, s{sB} offen {CNT}
    buffer_load_dwordx2 a[50:51], v{t0}, {srd(XS)}, s{sB} offen offset:32 {CNT}
    buffer_load_dwordx2 a[52:53], v{t0}, {srd(XS)}, s{sC} offen {CNT}
    buffer_load_dwordx2 a[54:55], v{t0}, {srd(XS)}, s{sC} offen offset:32 {CNT}
    buffer_load_dwordx2 a[56:57], v{t0}, {srd(WR_)}, 0 offen
    buffer_load_dwordx2 a[58:59], v{t0}, {srd(WR_)}, 0 offen offset:32
    v_lshrrev_b32 v{t0+1}, 1, v2
    v_and_b32 v{t0+1}, 15, v{t0+1}
    v_lshlrev_b32 v{t0+1}, 10, v{t0+1}
    v_and_b32 v{t0+2}, 1, v2
    v_lshl_add_u32 v{t0+1}, v{t0+2}, 7, v{t0+1}
    s_lshl_b32 s{s0}, s{sP}, 2
    s_add_u32 s{s0}, s{s0}, s{sW}
    s_lshl_b32 s{s0}, s{s0}, 14
    buffer_load_dword a60, v{t0+1}, {srd(WO)}, s{s0} offen""", "ex")
def split_m(its, n):
    c = 0
    for i, it in enumerate(its):
        if it[0] == "m":
            c += 1
            if c == n: return its[:i + 1], its[i + 1:]
    return its, []
def peel_plan(g):
    pf = lambda a, b: sum((prefill_items(i) for i in range(a, b)), [])
    rs = []; rest = repack_stores(12, sPF)
    for i in range(6):
        a, rest = split_m(rest, 1); rs.append(a)
    wo = wodma(g, 0, 8)
    xl = lambda a, b: sum((xload(0, f) for f in range(a, b)), [])
    fsig = [("m", f"buffer_atomic_add v6, v7, {srd(DBG)}, s{sFO} offen sc1", "flag"), ("s", f"s_mov_b32 s{sFO}, {OOB}")]
    cpoll = [("m", f"buffer_load_dword v3, v4, {srd(WS)}, s{sCFP} offen {WT}")]
    fc = first_c(2); wv = wo_voff(8)
    return [([pf(0, 2), rs[0]], [rs[1] + pf(2, 6)]),
            ([rs[2] + pf(6, 8), wv[:6]], [rs[3] + pf(8, 11), wv[6:]]),
            ([rs[4] + pf(11, 14)], [rs[5] + pf(14, 16) + cpoll, fc[:12]]),
            ([merge1_extra(g)], [wo[:6], fc[12:24]]),
            ([xc_items(sT1) + [("x", g.poll_check(3, 4, WS, f"s{sCFP}", "C1"))] + xl(0, 4)], [wo[6:] + xl(4, 8)]),
            ([fsig + xl(8, 12)], [xl(12, 16), fc[24:]])]
def peel_a(g, ph, r):
    for st in peel_plan(g)[r - 1][0]: ph.stream(st, 8 if any(it[0] == "m" for it in st[:3]) else 0)
def peel_b(g, ph, r):
    for st in peel_plan(g)[r - 1][1]: ph.stream(st, 0)
def diag_a(g, ph):
    ph.stream(items("".join(f"v_mov_b32 v{24+i}, v{8+i}\n" for i in range(4)) + f"""v_add_u32 v11, {R4}, v{vMW}
    v_mov_b32 v12, 0
    s_mov_b32 s{sKEY}, 128
    buffer_load_dword v3, v12, {srd(DBG)}, s{sKEY} offen {WT}"""), 0, dense=1)
def diag_b(g, ph):
    ml = moe_loads(13, sXL)
    ph.stream(ml[:4], 0)
    ph.put("x", g.poll_check(3, 12, DBG, f"s{sKEY}", "F", target=256), 22)
    ph.stream(split_m(ml[4:], 4)[0], 23)
def diag_c(g, ph):
    its = wodma(g, 1)
    gp = 0
    for it in its:
        ph.put("x", it[1], gp, tag=it[2] if len(it) > 2 else None)
        if it[0] == "m": gp += 5
def merge_x(g):
    its = items(f"""v_lshrrev_b32 v{OA+2}, 2, v2
    v_and_b32 v{OA+1}, 3, v2
    v_lshlrev_b32 v{OA}, 7, v{OA+2}
    v_lshl_add_u32 v{OA}, v{OA+1}, 3, v{OA}
    v_bfe_u32 v{OA+1}, v2, 3, 2
    v_lshl_add_u32 v{OA}, v{OA+1}, 5, v{OA}
    v_xor_b32 v{OA+1}, 32, v{OA}
    v_xor_b32 v{OA+2}, 64, v{OA}
    v_xor_b32 v{OA+3}, 96, v{OA}
    v_add_u32 v{OA+4}, {R2}, v{OA}
    v_add_u32 v{OA+5}, {R2}, v{OA+1}
    v_add_u32 v{OA+6}, {R2}, v{OA+2}
    v_add_u32 v{OA+7}, {R2}, v{OA+3}""")
    return its

STEPS = [[(c, n2) for c in range(4) for n2 in range(4)] + [(c, n2) for c in range(4) for n2 in range(4, 8)]] * 2
def piece(i):
    c, n2 = STEPS[i >> 5][i & 31]
    return (c >> 1) + 2 * (n2 >> 2)
def oread(i):
    c, n2 = STEPS[i >> 5][i & 31]
    reg = OQB[piece(i)]; it = []
    for nt in range(2):
        va = OA + (0 if reg < R2 else 4) + 2 * (c & 1) + nt
        for h in range(2):
            o = (reg & 0xffff) + (2 * (n2 & 3) + h) * 4096
            f = WR0 + ((i & 3) * 4 + nt * 2 + h) * 4
            it += [("l", f"ds_read_b64_tr_b16 a[{f}:{f+1}], v{va} offset:{o}"), ("l", f"ds_read_b64_tr_b16 a[{f+2}:{f+3}], v{va} offset:{o+2048}")]
    return it
def oproj_first(g):
    g.run(oread(0) + oread(1))

P1R, P2R, GA, CB, SB, GB, XR1, XR2, WRR = 128, 192, 160, 168, 176, 184, 32, 36, 40
vPL, vCB, vCF = 44, 45, 46
def pload(T12, dst):
    it = []
    for x in range(8):
        it += [("s", f"s_add_u32 s{sXL}, s{sPC}, {(T12 << 23) + x * 4096}"), ("m", f"buffer_load_dwordx4 {V(dst+4*x)}, v{vPL}, {srd(WS)}, s{sXL} offen {WT}")]
    return it

def oproj(g):
    k = g.k
    M = []
    for i in range(64):
        pas = i >> 5; c, n2 = STEPS[pas][i & 31]
        for nt in range(2):
            for tt in range(2):
                for h in range(2):
                    n = 2 * n2 + h; f = (n >> 2) * 8 + tt * 4 + (n & 3)
                    d = V(OACC + c * 16 + tt * 8 + nt * 4)
                    M.append(MF(d, A(WR0 + ((i & 3) * 4 + nt * 2 + h) * 4), A(X1 + 4 * f) if pas == 0 else V(X2 + 4 * f), "0" if n == 0 else d))
    ph = Phase(k, M); ph.thin = True
    Z0, Z2 = 64 + 38, 64 * 2 + 38
    ph.put("x", g.bar(["wo2"], False), Z0)
    ph.put("x", g.bar(["wo3"], False), Z2)
    xl = lambda a, b: sum((xload(0, (n >> 2) * 8 + tt * 4 + (n & 3)) for n in range(a, b) for tt in range(2)), [])
    gx = ph.stream(wodma(g, 2) + xl(8, 16), 0, None, step=4)
    gx2 = ph.stream(wodma(g, 3), max(gx, Z0) + 1, None, step=4)
    def epi(pas, c):
        it = []
        for tt in range(2):
            b = OACC + c * 16 + tt * 8
            it += [("v", f"v_cvt_pk_bf16_f32 v{b+i}, v{b+2*i}, v{b+2*i+1}") for i in range(4)]
            it += [("v", f"v_min_u32 v{b+i}, -2, v{b+i}") for i in range(4)]
            it += [("s", f"s_add_u32 s{sPS}, s{sPB}, {(pas << 23) + tt * 131072}"), ("m", f"buffer_store_dwordx4 {V(b)}, v{vPO}, {srd(WS)}, s{sPS} offen offset:{c*256} {WT}", "pst")]
        return it
    CD = int(E_("CD", "120")); CP = int(E_("CP", "60"))
    g1 = ph.stream([("s", f"s_add_u32 s{sCFO}, s{sCFO}, 65536"), ("s", f"s_add_u32 s{sCFP}, s{sCFP}, 65536")] + xc_items(sT2), gx + 1)
    g1 = ph.stream(g.flag_store(sCFO, ["ctx"]), CD)
    g1 = ph.stream([("m", f"buffer_load_dword v3, v4, {srd(WS)}, s{sCFP} offen {WT}")], CD + CP - 30)
    ph.put("x", g.poll_check(3, 4, WS, f"s{sCFP}", "C2"), CD + CP)
    its = []
    for n in range(16):
        for tt in range(2): its += xload(1, (n >> 2) * 8 + tt * 4 + (n & 3))
    g1 = ph.stream(its, CD + CP + 1, None, step=4)
    g2 = ph.stream(items(f"""v_lshrrev_b32 v{vCF}, 2, v2
    v_and_b32 v{vCB}, 3, v2
    v_lshlrev_b32 v{vPL}, 8, v{vCF}
    v_lshl_add_u32 v{vPL}, v{vCB}, 4, v{vPL}
    v_lshlrev_b32 v{vCB}, 3, v{vCB}
    v_lshl_add_u32 v{vCB}, v{vCF}, 6, v{vCB}
    v_lshlrev_b32 v{vCF}, 1, v{vCB}
    s_lshl_b32 s{sPC}, s2, 15
    s_lshl_b32 s{sB}, s{sW}, 6
    s_add_u32 s{sPC}, s{sPC}, s{sB}
    s_add_u32 s{sPC}, s{sPC}, {WS_P}
    """), 100)
    ph.stream(items("".join(f"v_accvgpr_read_b32 v{XR1+i}, a{48+i}\n" for i in range(12))), 20)
    ml = moe_loads(50, sPF)
    g2 = ph.stream(ml[:4] + split_m(ml[4:], 4)[1], g1 + 1, None, step=4)
    its = []
    for (R, seg) in ((GA, 2), (CB, 4), (SB, 3), (GB, 5)):
        its += [("s", f"s_mov_b32 s{sXL}, {WS_MOD + seg*2048}"), ("m", f"buffer_load_dwordx4 {V(R)}, v{vCF}, {srd(WS)}, s{sXL} offen"), ("m", f"buffer_load_dwordx4 {V(R+4)}, v{vCF}, {srd(WS)}, s{sXL} offen offset:64")]
    g2 = ph.stream(its, max(g2 + 1, 386), None, step=3)
    ph.stream(pload(0, P1R), max(g2 + 1, int(E_("P1G", "420"))), None, step=4)
    for c in range(4):
        g3 = ph.stream(epi(0, c), 128 + 32 * (c + 1) + 6); assert g3 < 256 + 32 * c - 2, g3
    for c in range(3): ph.stream(epi(1, c), 384 + 32 * (c + 1) + 6)
    for i in range(2, 64):
        lo = 8 * (i - 3)
        if i < 32 and piece(i) == 2: lo = max(lo, Z0 + 1)
        if i < 32 and piece(i) == 3: lo = max(lo, Z2 + 1)
        ph.stream(oread(i), lo, 8 * i - 5)
    if g.TS:
        ph.put("x", g.ts, 255)
        for gp in (E_("TSO") or "").split(","):
            if gp: ph.put("x", lambda k: g.ts(k, True), int(gp))
    ph.emit()
    print("oproj: overloaded placements", ph.over, file=sys.stderr)
    g.run(epi(1, 3))
    g.run(pload(1, P2R))
    g.ts()

def allred(k, regs, op="v_add_f32", tmp=None):
    for pat in ("quad_perm:[1,0,3,2]", "quad_perm:[2,3,0,1]", "row_half_mirror", "row_mirror"):
        for r in regs: k(f"{op}_dpp v{r}, v{r}, v{r} {pat} row_mask:0xf bank_mask:0xf")
    for sw in ("v_permlane16_swap_b32", "v_permlane32_swap_b32"):
        for r, t in zip(regs, tmp): k(f"v_mov_b32 v{t}, v{r}")
        for r, t in zip(regs, tmp): k(f"{sw} v{r}, v{t}")
        for r, t in zip(regs, tmp): k(f"{op} v{r}, v{r}, v{t}")
def unpack(k, dst, src, n):
    for i in range(n // 2):
        k(f"v_lshlrev_b32 v{dst+2*i}, 16, v{src+i}\nv_and_b32 v{dst+2*i+1}, 0xffff0000, v{src+i}")
def pack(k, dst, src, n):
    for i in range(n // 2): k(f"v_cvt_pk_bf16_f32 v{dst+i}, v{src+2*i}, v{src+2*i+1}")
def bf1(k, r): k(f"v_cvt_pk_bf16_f32 v{r}, v{r}, v{r}\nv_and_b32 v{r}, 0xffff0000, v{r}")

def sent_wait(g, regs, reload_items, name, sleep=2):
    k = g.k
    lp, ok = k.lab(name + "_l"), k.lab(name + "_ok")
    k(f"s_mov_b32 s{sD}, 0")
    k.label(lp)
    k("s_waitcnt vmcnt(0)")
    if len(regs) == 1: m = regs[0]
    else:
        m = 3
        k(f"v_max_u32 v3, v{regs[0]}, v{regs[1]}")
        rest = regs[2:]
        for i in range(0, len(rest) - 1, 2): k(f"v_max3_u32 v3, v3, v{rest[i]}, v{rest[i+1]}")
        if len(rest) % 2: k(f"v_max_u32 v3, v3, v{rest[-1]}")
    k(f"""v_cmp_eq_u32 vcc, -1, v{m}
    s_add_u32 s{sD}, s{sD}, 1
    s_cbranch_vccz {ok}
    s_cmp_ge_u32 s{sD}, {SPIN}
    s_cbranch_scc1 {ok}
    s_sleep {sleep}""")
    g.run(reload_items)
    k(f"s_branch {lp}")
    k.label(ok)
    k.vm = []

def part_wait(g, T12, R):
    k = g.k
    lp, ok = k.lab("P2_l"), k.lab("P2_ok")
    k(f"s_mov_b32 s{sD}, 0")
    k.label(lp)
    k("s_waitcnt vmcnt(0)")
    for x in range(8): k(f"v_max_u32 v{48+x}, v{R+4*x}, v{R+4*x+1}\nv_max3_u32 v{48+x}, v{48+x}, v{R+4*x+2}, v{R+4*x+3}")
    k(f"""v_max3_u32 v3, v48, v49, v50
    v_max3_u32 v3, v3, v51, v52
    v_max3_u32 v3, v3, v53, v54
    v_max_u32 v3, v3, v55
    v_cmp_eq_u32 vcc, -1, v3
    s_add_u32 s{sD}, s{sD}, 1
    s_cbranch_vccz {ok}
    s_cmp_ge_u32 s{sD}, {SPIN}
    s_cbranch_scc1 {ok}
    s_sleep {E_("PSL", "2")}""")
    pl = pload(T12, R)
    for x in range(8):
        sk = k.lab("P2_s")
        k(f"v_cmp_eq_u32 vcc, -1, v{48+x}\ns_cbranch_vccz {sk}\ns_mov_b64 exec, vcc")
        g.run(pl[2 * x:2 * x + 2])
        k("s_mov_b64 exec, -1")
        k.label(sk)
    k(f"s_branch {lp}")
    k.label(ok)
    k.vm = []

GW, K0 = 8, 16
def token(g, PR, XR, D, sTOK, key):
    k = g.k; T = 48
    unpack(k, D, PR, 8)
    for x in range(1, 8):
        unpack(k, T, PR + 4 * x, 8)
        for i in range(0, 8, 2): k(f"v_pk_add_f32 v[{D+i}:{D+i+1}], v[{D+i}:{D+i+1}], v[{T+i}:{T+i+1}]")
    pack(k, T, D, 8); unpack(k, D, T, 8)
    for i in range(0, 8, 2): k(f"v_pk_mul_f32 v[{D+i}:{D+i+1}], v[{D+i}:{D+i+1}], v[{GA+i}:{GA+i+1}]")
    pack(k, T, D, 8); unpack(k, D, T, 8); unpack(k, T, XR, 8)
    for i in range(0, 8, 2): k(f"v_pk_add_f32 v[{D+i}:{D+i+1}], v[{D+i}:{D+i+1}], v[{T+i}:{T+i+1}]")
    pack(k, XR, D, 8); unpack(k, D, XR, 8)
    k(f"""v_pk_add_f32 v[{T}:{T+1}], v[{D}:{D+1}], v[{D+2}:{D+3}]
    v_pk_add_f32 v[{T+2}:{T+3}], v[{D+4}:{D+5}], v[{D+6}:{D+7}]
    v_pk_add_f32 v[{T}:{T+1}], v[{T}:{T+1}], v[{T+2}:{T+3}]
    v_add_f32 v{T}, v{T}, v{T+1}""")
    allred(k, [T], tmp=[T + 1])
    k(f"v_mul_f32 v{T}, {H(-1/512)}, v{T}")
    for i in range(0, 8, 2): k(f"v_pk_add_f32 v[{D+8+i}:{D+9+i}], v[{D+i}:{D+i+1}], v[{T}:{T+1}] op_sel_hi:[1,0]")
    k(f"v_pk_mul_f32 v[{T+2}:{T+3}], v[{D+8}:{D+9}], v[{D+8}:{D+9}]\nv_pk_mul_f32 v[{T+4}:{T+5}], v[{D+8}:{D+9}], v[{GW}:{GW+1}]")
    for i in range(2, 8, 2):
        k(f"v_pk_fma_f32 v[{T+2}:{T+3}], v[{D+8+i}:{D+9+i}], v[{D+8+i}:{D+9+i}], v[{T+2}:{T+3}]")
        k(f"v_pk_fma_f32 v[{T+4}:{T+5}], v[{D+8+i}:{D+9+i}], v[{GW+i}:{GW+i+1}], v[{T+4}:{T+5}]")
    k(f"v_add_f32 v{T+2}, v{T+2}, v{T+3}\nv_add_f32 v{T+4}, v{T+4}, v{T+5}")
    allred(k, [T + 2, T + 4], tmp=[T + 3, T + 5])
    k(f"""v_mov_b32 v{T}, {H(1e-5)}
    v_fmac_f32 v{T}, {H(1/512)}, v{T+2}
    v_rsq_f32 v{T}, v{T}
    v_fma_f32 v{T+4}, v{T+4}, v{T}, v{K0}
    v_ashrrev_i32 v{T+5}, 31, v{T+4}
    v_or_b32 v{T+5}, 0x80000000, v{T+5}
    v_xor_b32 v{T+5}, v{T+5}, v{T+4}
    v_and_b32 v{T+5}, 0xfffff800, v{T+5}
    v_or_b32 v{key}, s{sTOK}, v{T+5}""")
def token2(g, XR, D, HP, OP):
    k = g.k; T = 48
    for i in range(0, 8, 2): k(f"v_pk_mul_f32 v[{D+8+i}:{D+9+i}], v[{D+8+i}:{D+9+i}], v[{T}:{T+1}] op_sel_hi:[1,0]")
    for i in range(0, 8, 2): k(f"v_pk_fma_f32 v[{D+8+i}:{D+9+i}], v[{D+8+i}:{D+9+i}], v[{CB+i}:{CB+i+1}], v[{SB+i}:{SB+i+1}]")
    pack(k, HP, D + 8, 8)
def token3(g, D, HP, OP):
    k = g.k
    unpack(k, D + 8, HP, 8)
    for i in range(0, 8, 2): k(f"v_pk_mul_f32 v[{D+8+i}:{D+9+i}], v[{D+8+i}:{D+9+i}], v[{GB+i}:{GB+i+1}]")
    pack(k, OP, D + 8, 8); unpack(k, D + 8, OP, 8)
    for i in range(0, 8, 2): k(f"v_pk_add_f32 v[{D+8+i}:{D+9+i}], v[{D+8+i}:{D+9+i}], v[{D+i}:{D+i+1}]")
    pack(k, OP, D + 8, 8)

def tail(g):
    k = g.k
    D1, D2, H1, H2, O1, O2, KEY1, KEY2 = 64, 80, 20, 24, 56, 60, 17, 18
    GU, WDF = 96, [128 + i for i in range(32)] + [224 + i for i in range(32)]
    nP2 = 8
    unpack(k, 48, WRR, 8)
    for i in range(0, 8, 2): k(f"v_pk_mul_f32 v[{GW+i}:{GW+i+1}], v[{48+i}:{49+i}], v[{CB+i}:{CB+i+1}]")
    k(f"v_mul_f32 v{K0}, v48, v{SB}")
    for i in range(1, 8): k(f"v_fmac_f32 v{K0}, v{48+i}, v{SB+i}")
    allred(k, [K0], tmp=[19])
    slow, ok = k.lab("P1_slow"), k.lab("P1_ok")
    def chk(regs):
        t = f"v_max_u32 v3, v{regs[0]}, v{regs[1]}\n"
        for i in range(2, len(regs), 2): t += f"v_max3_u32 v3, v3, v{regs[i]}, v{regs[i+1]}\n"
        return t + "v_cmp_eq_u32 vcc, -1, v3\n"
    r1 = list(range(P1R, P1R + 32))
    k(chk(r1) + f"s_cbranch_vccnz {slow}")
    k.label(ok)
    g.tail.append(f"{slow}:\n    s_mov_b32 s{sD}, 0\n{slow}_l:\n    s_sleep 2\n" + "".join("    " + it[1] + "\n" for it in pload(0, P1R)) +
                  f"    s_add_u32 s{sD}, s{sD}, 1\n    s_waitcnt vmcnt(0)\n" + "".join("    " + x + "\n" for x in chk(r1).strip().split("\n")) +
                  f"    s_cbranch_vccz {ok}\n    s_cmp_lt_u32 s{sD}, {SPIN}\n    s_cbranch_scc1 {slow}_l\n    s_branch {ok}")
    token(g, P1R, XR1, D1, sTOK1, KEY1); token2(g, XR1, D1, H1, O1); token3(g, D1, H1, O1)
    for i in range(16):
        k(f"v_accvgpr_read_b32 v48, a{PRE+i}\nv_lshlrev_b32 v{GU+2*i}, 16, v48\nv_and_b32 v{GU+2*i+1}, 0xffff0000, v48")
    g.ts()
    part_wait(g, 1, P2R)
    g.ts()
    token(g, P2R, XR2, D2, sTOK2, KEY2)
    k(f"""v_max_u32 v19, v{KEY1}, v{KEY2}
    v_max_u32 v19, 1, v19
    s_lshl_b32 s{sB}, s{sW}, 2
    v_mov_b32 v47, s{sB}
    ds_write_b32 v47, v19
    v_mov_b32 v47, 0""")
    token2(g, XR2, D2, H2, O2)
    k(f"""s_waitcnt lgkmcnt(0)
    s_barrier
    ds_read_b128 v[52:55], v47
    v_cmp_gt_u32 vcc, v{KEY1}, v{KEY2}""")
    for i in range(4): k(f"v_cndmask_b32 v{28+i}, v{H2+i}, v{H1+i}, vcc\nv_cndmask_b32 v{40+i}, v{XR2+i}, v{XR1+i}, vcc")
    for i in range(4): k(f"v_min_u32 v{28+i}, -2, v{28+i}\nv_min_u32 v{40+i}, -2, v{40+i}")
    k(f"""s_lshl_b32 s{sB}, s2, 6
    s_add_u32 s{sB}, s{sB}, {WS_KEY}
    s_lshl_b32 s{sC}, s2, 11
    s_add_u32 s{sC}, s{sC}, {WS_CAND}
    v_max_u32 v52, v52, v53
    v_max3_u32 v52, v52, v54, v55
    v_cmp_eq_u32 vcc, v52, v19
    s_cbranch_vccz L_notbest
    buffer_store_dword v19, v5, {srd(WS)}, s{sB} offen {WT}
    buffer_store_dwordx4 v[28:31], v1, {srd(WS)}, s{sC} offen {WT}
    buffer_store_dwordx4 v[40:43], v1, {srd(WS)}, s{sC} offen offset:1024 {WT}""")
    k.label("L_notbest")
    token3(g, D2, H2, O2)
    for i in range(32):
        k(f"v_accvgpr_read_b32 v48, a{PRE+16+i}\nv_lshlrev_b32 v{WDF[2*i]}, 16, v48\nv_and_b32 v{WDF[2*i+1]}, 0xffff0000, v48")
    k(f"""v_lshlrev_b32 v4, 6, v0
    s_mov_b32 s{sKEY}, {WS_KEY}
    s_mov_b32 s{sD}, 0""")
    k.label("L_kl")
    k(f"""buffer_load_dword v3, v4, {srd(WS)}, s{sKEY} offen {WT}
    s_add_u32 s{sD}, s{sD}, 1
    s_waitcnt vmcnt(0)
    v_cmp_eq_u32 vcc, 0, v3
    s_cbranch_vccz L_kd
    s_cmp_ge_u32 s{sD}, {SPIN}
    s_cbranch_scc1 L_kd
    s_sleep {E_("KSL", "3")}
    s_branch L_kl""")
    k.label("L_kd")
    allred(k, [3], op="v_max_u32", tmp=[19])
    k(f"""s_lshl_b32 s{sB}, s{sW}, 2
    v_mov_b32 v47, s{sB}
    ds_write_b32 v47, v3 offset:64
    v_mov_b32 v47, 0
    s_waitcnt lgkmcnt(0)
    s_barrier
    ds_read_b128 v[52:55], v47 offset:64
    v_lshlrev_b32 v4, 2, v0
    v_max_u32 v52, v52, v53
    v_max3_u32 v52, v52, v54, v55
    v_readfirstlane_b32 s{sKEY}, v52
    s_and_b32 s{sIDX}, s{sKEY}, 2047
    s_lshr_b32 s{sB}, s{sIDX}, 7
    s_sub_u32 s{sC}, 15, s{sB}
    s_min_u32 s{sB}, s{sB}, s{sC}
    s_lshl_b32 s{sB}, s{sB}, 16
    s_and_b32 s{sCND}, s{sIDX}, 124
    s_lshl_b32 s{sCND}, s{sCND}, 9
    s_add_u32 s{sCND}, s{sCND}, s{sB}
    s_add_u32 s{sCND}, s{sCND}, {WS_CAND}""")
    hl = [("m", f"buffer_load_dword v19, v4, {srd(WS)}, s{sCND} offen {WT}")]
    g.run(hl)
    g.ts()
    for (sT, O) in ((sTOK1, O1), (sTOK2, O2)):
        k(f"""s_lshl_b32 s{sB}, s{sT}, 10
        s_cmp_eq_u32 s{sT}, s{sIDX}
        s_cselect_b32 s{sB}, {OOB}, s{sB}
        buffer_store_dwordx2 v[{O}:{O+1}], v{vCB}, {srd(OUT)}, s{sB} offen {E_("OP", "")}
        buffer_store_dwordx2 v[{O+2}:{O+3}], v{vCB}, {srd(OUT)}, s{sB} offen offset:32 {E_("OP", "")}""")
    k(f"s_cmp_ge_u32 s{sCG}, 224\ns_cbranch_scc1 L_nprod")
    lp, ok = "L_hl", "L_hok"
    k(f"s_mov_b32 s{sD}, 0\ns_waitcnt vmcnt(4)")
    k.label(lp)
    k(f"""v_cmp_eq_u32 vcc, -1, v19
    s_add_u32 s{sD}, s{sD}, 1
    s_cbranch_vccz {ok}
    s_cmp_ge_u32 s{sD}, {SPIN}
    s_cbranch_scc1 {ok}""")
    g.run(hl)
    k(f"s_waitcnt vmcnt(0)\ns_branch {lp}")
    k.label(ok)
    k(f"v_lshlrev_b32 v48, 16, v19\nv_and_b32 v50, 0xffff0000, v19")
    for m in range(2):
        for i in range(0, 8, 2):
            d = 64 + 8 * m + i
            k(f"v_pk_mul_f32 v[{d}:{d+1}], v[{GU+16*m+i}:{GU+16*m+i+1}], v[48:49] op_sel_hi:[1,0]")
    for m in range(2):
        for i in range(0, 8, 2):
            d = 64 + 8 * m + i
            k(f"v_pk_fma_f32 v[{d}:{d+1}], v[{GU+16*m+8+i}:{GU+16*m+8+i+1}], v[50:51], v[{d}:{d+1}] op_sel_hi:[1,0,1]")
    k(g.red16(64))
    k(f"""v_and_b32 v50, 15, v2
    v_cmp_eq_u32 vcc, 0, v50
    v_mov_b32 v51, 1024
    v_cndmask_b32 v51, v51, v0, vcc
    ds_write_b128 v51, v[64:67] offset:256
    v_lshlrev_b32 v50, 2, v50
    s_waitcnt lgkmcnt(0)
    s_barrier
    s_cmp_lg_u32 s{sW}, 0
    s_cbranch_scc1 L_nprod
    ds_read_b32 v64, v50 offset:256
    ds_read_b32 v65, v50 offset:320
    ds_read_b32 v66, v50 offset:384
    ds_read_b32 v67, v50 offset:448
    v_cmp_gt_u32 vcc, 8, v2
    v_mov_b32 v51, {OOB}
    v_cndmask_b32 v51, v51, v50, vcc
    s_lshl_b32 s{sB}, s{sCG}, 6
    s_add_u32 s{sB}, s{sB}, {WS_ACT}
    v_add_f32 v64, v64, v65
    v_add_f32 v66, v66, v67
    v_add_f32 v64, v64, v66""")
    bf1(k, 64)
    k(f"""v_mov_b32_dpp v65, v64 row_ror:8 row_mask:0xf bank_mask:0xf
    v_mul_f32 v66, {H(-LOG2E)}, v64
    v_exp_f32 v66, v66
    v_add_f32 v66, 1.0, v66
    v_rcp_f32 v66, v66
    v_mul_f32 v64, v64, v66""")
    bf1(k, 64)
    k("v_mul_f32 v64, v64, v65")
    bf1(k, 64)
    k(f"buffer_store_dword v64, v51, {srd(WS)}, s{sB} offen {WT}")
    k.label("L_nprod")
    k.vm = []; k.lg = []
    k(f"s_cmp_ge_u32 s{sC2}, 64\ns_cbranch_scc1 L_fin")
    k(f"""v_lshlrev_b32 v4, 6, v0
    v_cmp_gt_u32 vcc, 224, v0
    v_mov_b32 v51, {OOB}
    v_cndmask_b32 v4, v51, v4, vcc
    s_mov_b32 s{sB}, {WS_ACT}
    v_and_b32 v52, 7, v2
    s_lshl_b32 s{sC}, s{sC2}, 3
    v_add_u32 v52, s{sC}, v52            ; column
    v_lshrrev_b32 v53, 5, v52
    v_lshlrev_b32 v53, 6, v53
    v_and_b32 v54, 12, v52
    v_lshl_add_u32 v53, v54, 2, v53
    v_bfe_u32 v54, v52, 4, 1
    v_lshl_add_u32 v53, v54, 3, v53
    v_and_b32 v54, 2, v52
    v_lshl_add_u32 v53, v54, 1, v53
    v_lshlrev_b32 v54, 2, v52
    s_mov_b32 s{sC}, {WS_MOD + 5*2048}
    buffer_load_dword v55, v54, {srd(WS)}, s{sC} offen""")
    al = [("m", f"buffer_load_dwordx4 v[80:83], v4, {srd(WS)}, s{sB} offen {WT}"), ("m", f"buffer_load_dwordx4 v[84:87], v4, {srd(WS)}, s{sB} offen offset:16 {WT}"),
          ("m", f"buffer_load_dword v88, v53, {srd(WS)}, s{sCND} offen {WT}"), ("m", f"buffer_load_dword v89, v53, {srd(WS)}, s{sCND} offen offset:1024 {WT}")]
    k(f"s_sleep {E_('ASL', '8')}")
    g.run(al)
    k(f"""s_and_b32 s{sC}, s{sKEY}, 0xfffff800
    s_or_b32 s{sC}, s{sC}, 0x400
    v_mov_b32 v90, s{sC}
    v_not_b32 v91, v90
    v_ashrrev_i32 v91, 31, v91
    v_or_b32 v91, 0x80000000, v91
    v_xor_b32 v90, v90, v91""")
    bf1(k, 90)
    k(f"""v_mul_f32 v90, {H(-LOG2E)}, v90
    v_exp_f32 v90, v90
    v_add_f32 v90, 1.0, v90
    v_rcp_f32 v90, v90""")
    bf1(k, 90)
    sent_wait(g, list(range(80, 90)), al, "ACT", sleep=3)
    for r in range(8):
        for i in range(0, 8, 2):
            w = WDF[8 * r + i]; a = 80 + (r & ~1); sel = r & 1
            if r == 0: k(f"v_pk_mul_f32 v[{64+i}:{65+i}], v[{w}:{w+1}], v[{a}:{a+1}] op_sel_hi:[1,0]")
            else: k(f"v_pk_fma_f32 v[{64+i}:{65+i}], v[{w}:{w+1}], v[{a}:{a+1}], v[{64+i}:{65+i}] op_sel:[0,{sel},0] op_sel_hi:[1,{sel},1]")
    for i in range(4): k(f"v_permlane32_swap_b32 v{64+i}, v{68+i}")
    for i in range(4): k(f"v_add_f32 v{64+i}, v{64+i}, v{68+i}")
    for i in range(2): k(f"v_permlane16_swap_b32 v{64+i}, v{66+i}")
    for i in range(2): k(f"v_add_f32 v{64+i}, v{64+i}, v{66+i}")
    for pat in ("quad_perm:[1,0,3,2]", "quad_perm:[2,3,0,1]", "row_half_mirror", "row_mirror"):
        for i in range(2): k(f"v_add_f32_dpp v{64+i}, v{64+i}, v{64+i} {pat} row_mask:0xf bank_mask:0xf")
    k(f"""v_and_b32 v50, 15, v2
    v_cmp_eq_u32 vcc, 0, v50
    v_lshrrev_b32 v51, 1, v0
    v_mov_b32 v50, 1024
    v_cndmask_b32 v51, v50, v51, vcc
    ds_write_b64 v51, v[64:65] offset:2048
    v_and_b32 v50, 7, v2
    v_lshlrev_b32 v50, 2, v50
    v_and_b32 v51, 1, v52
    v_cmp_eq_u32 vcc, 0, v51
    v_lshlrev_b32 v91, 16, v88
    v_and_b32 v88, 0xffff0000, v88
    v_cndmask_b32 v88, v88, v91, vcc
    v_lshlrev_b32 v91, 16, v89
    v_and_b32 v89, 0xffff0000, v89
    v_cndmask_b32 v89, v89, v91, vcc
    s_waitcnt lgkmcnt(0)
    s_barrier
    s_cmp_lg_u32 s{sW}, 0
    s_cbranch_scc1 L_fin
    ds_read_b32 v64, v50 offset:2048
    ds_read_b32 v65, v50 offset:2080
    ds_read_b32 v66, v50 offset:2112
    ds_read_b32 v67, v50 offset:2144
    v_cmp_gt_u32 vcc, 8, v2
    v_lshlrev_b32 v52, 1, v52
    v_mov_b32 v51, {OOB}
    v_cndmask_b32 v52, v51, v52, vcc
    s_lshl_b32 s{sB}, s{sIDX}, 10
    v_add_f32 v64, v64, v65
    v_add_f32 v66, v66, v67
    v_add_f32 v64, v64, v66""")
    bf1(k, 64)
    k("v_mul_f32 v64, v64, v90"); bf1(k, 64)
    k("v_add_f32 v64, v64, v88"); bf1(k, 64)
    k("v_mul_f32 v64, v64, v55"); bf1(k, 64)
    k(f"""v_add_f32 v64, v64, v89
    v_cvt_pk_bf16_f32 v64, v64, v64
    buffer_store_short v64, v52, {srd(OUT)}, s{sB} offen""")

def verify_all(lines):
    tot = 0
    for name, (n1, n2, slow) in {"p0": (0, 15, False), "p3": (3, 12, False), "p1": (1, 14, True), "redo0": (0, 15, False), "redo3": (3, 12, False)}.items():
        def decide(lab, c):
            if lab.endswith("_redo"): return name.startswith("redo")
            if lab.endswith("_max"): return c == 0
            if lab.endswith("_maxd"): return c >= min(2, n1 if "t1" in lab else n2)
            if lab == "L_t1_zero": return n1 == 0
            if lab == "L_t1_diag": return n1 == 1
            if lab == "L_t1_loop": return c % 2 < min(n1 - 2, 1)
            if lab == "L_t2_loop": return c % 3 < 2
            if "_slow" in lab and not lab.endswith("_l"): return slow
            if "_ok" in lab or lab in ("L_kd", "L_hok"): return (c >= 2) if slow and ("P2" in lab or "ACT" in lab or lab in ("L_kd", "L_hok")) else True
            if lab == "L_notbest": return slow
            return False
        T = trace(lines, decide)
        e = verify(T)
        tot += len(e)
        print(f"verify {name}: {len(T)} instrs, {len(e)} problems", file=sys.stderr)
        for x in e[:12]: print("   ", x, file=sys.stderr)
    assert tot == 0
```

```python
from common import *
O_, S_, MK, CI, P_, LA = 128, 96, 80, 64, 48, 32
vMW, vQR, vK, vV0, vV1, vT1, vT2, vPO, vSEN, ONE = 16, 17, 18, 19, 20, 21, 22, 23, 24, 28
Q1, KF, VF, Q2, PRE = 64, 128, 160, 192, 0
BIG = 2.0 ** 100
LLO, LHI = 2.0 ** -64, 2.0 ** 80

def mask_items(dst, thr, grp):
    t = ""
    for qt in range(2):
        for kt in range(2):
            for r in range(4):
                d = dst + 8 * qt + 4 * kt + r
                c = 16 * kt + r - 16 * qt
                t += f"v_add_f32 v{d}, {H(-c * BIG) if c else '0'}, v{thr}\nv_min_f32 v{d}, v{d}, v{CI + (grp*2+qt)*4 + r}\n"
    return items(t)

def attn_setup(g):
    t = f"""s_and_b32 s{sB}, s{sW}, 1
    s_lshr_b32 s{sC}, s{sW}, 1
    v_add_u32 v{vMW}, s{sW8}, v1
    s_lshl_b32 s{sVo}, s{sC}, 14
    v_add_u32 v{vQR}, s{sVo}, v1
    s_lshl_b32 s{sVo}, s{sB}, 13
    s_add_u32 s{sVo}, s{sVo}, {R2}
    v_add_u32 v{vK}, s{sVo}, v1
    s_mul_i32 s{sVo}, s{sB}, 12288
    s_add_u32 s{sVo}, s{sVo}, {R3}
    v_add_u32 v{vV0}, s{sVo}, v1
    s_lshl_b32 s{sVo}, s{sB}, 12
    s_add_u32 s{sVo}, s{sVo}, {R3}
    v_add_u32 v{vV1}, s{sVo}, v1
    v_and_b32 v{vPO}, 15, v2
    v_lshrrev_b32 v{vSEN}, 4, v2
    v_lshlrev_b32 v{vSEN+1}, 2, v{vSEN}
    v_sub_u32 v{vSEN+1}, v{vPO}, v{vSEN+1}
    s_sub_i32 s{sVo}, s{sC}, s{sB}
    s_lshl_b32 s{sVo}, s{sVo}, 5
    v_add_u32 v{vT1}, s{sVo}, v{vSEN+1}
    s_add_u32 s{sVo}, s{sC}, s{sB}
    s_sub_i32 s{sVo}, 1, s{sVo}
    s_lshl_b32 s{sVo}, s{sVo}, 5
    v_add_u32 v{vT2}, s{sVo}, v{vSEN+1}
    v_cvt_f32_i32 v{vT1}, v{vT1}
    v_cvt_f32_i32 v{vT2}, v{vT2}
    v_add_f32 v{vT1}, 0.5, v{vT1}
    v_add_f32 v{vT2}, 0.5, v{vT2}
    v_mul_f32 v{vT1}, {H(BIG)}, v{vT1}
    v_mul_f32 v{vT2}, {H(BIG)}, v{vT2}
    v_lshrrev_b32 v{vSEN+1}, 2, v{vPO}
    v_and_b32 v{vPO}, 3, v{vPO}
    v_lshlrev_b32 v{vPO}, 6, v{vPO}
    v_lshl_add_u32 v{vPO}, v{vSEN+1}, 15, v{vPO}
    v_lshl_add_u32 v{vPO}, v{vSEN}, 4, v{vPO}
    s_lshl_b32 s{sPB}, s{sP}, 20
    s_lshl_b32 s{sVo}, s{sW}, 18
    s_add_u32 s{sPB}, s{sPB}, s{sVo}
    s_lshl_b32 s{sVo}, s{sH}, 10
    s_add_u32 s{sPB}, s{sPB}, s{sVo}
    s_add_u32 s{sPB}, s{sPB}, {WS_P}
    s_mov_b32 s{sN1}, s{sT1}
    s_mov_b32 s{sE}, 2
    s_mov_b32 s{sRedo}, 0
    s_mov_b32 s{sRPL}, 28
    s_mov_b32 s64, 128
    s_lshl_b32 s65, s{sW}, 16
    s_add_u32 s{sKm}, s{sW8}, {R2}
    s_add_u32 s{sVm}, s{sW8}, {R0}
    s_lshl_b32 s{sCLO}, s{sH}, 13
    s_lshl_b32 s{sVo}, s{sB}, 11
    s_add_u32 s{sCLO}, s{sCLO}, s{sVo}
    s_add_u32 s{sCLO}, s{sCLO}, {WS_CTX}
    s_sub_u32 s{sVo}, 3, s{sC}
    s_lshl_b32 s{sVo}, s{sVo}, 18
    s_add_u32 s{sCHI}, s{sCLO}, s{sVo}
    s_lshl_b32 s{sVo}, s{sC}, 18
    s_add_u32 s{sCLO}, s{sCLO}, s{sVo}
    s_add_u32 s{sCFO}, s{sHFO}, {WS_CF - WS_HF}
    s_and_b32 s{sCFP}, s2, {0xff & ~24}
    s_lshl_b32 s{sCFP}, s{sCFP}, 8
    s_sub_u32 s{sVo}, 3, s{sW}
    s_min_u32 s{sVo}, s{sVo}, s{sW}
    s_lshl_b32 s{sVo}, s{sVo}, 7
    s_add_u32 s{sCFP}, s{sCFP}, s{sVo}
    s_add_u32 s{sCFP}, s{sCFP}, {WS_CF}
    """
    for i in range(4): t += f"v_mov_b32 v{vSEN+i}, -1\nv_mov_b32 v{ONE+i}, 0x3f803f80\n"
    for i in range(16): t += f"v_mov_b32 v{CI+i}, 0\n"
    return items(t) + first_c(1)

def first_c(tile, redo=False):
    if tile == 2: return mask_items(MK, vT1, 0)
    it = items(f"""s_cmp_eq_u32 s{sT1}, 0
    s_cselect_b32 s{sVo}, 0, {H(BIG*1024)}
    v_add_f32 v3, s{sVo}, v{vT1}""") + mask_items(S_, 3, 0)
    if redo: return it
    return it + items(f"""s_cmp_eq_u32 s{sT1}, 0
    s_cselect_b32 s{sVo}, 1.0, 0
    v_sub_f32 v3, v{vT2}, v{vT1}
    v_fma_f32 v3, s{sVo}, v3, v{vT1}""") + mask_items(MK, 3, 0)

def qk_m(Q, grp, S, C, order="kt"):
    M = []
    tl = [(0, 0), (1, 0), (0, 1), (1, 1)] if order == "kt" else [(0, 0), (0, 1), (1, 0), (1, 1)]
    for (qt, kt) in tl:
        d = S + 8 * qt + 4 * kt
        for u in range(4):
            c = V(d) if u else (V(CI + (grp * 2 + qt) * 4) if C is None else V(C + 8 * qt + 4 * kt))
            M.append(MF(V(d), A(KF + (kt * 4 + u) * 4), A(Q + (grp * 2 + qt) * 16 + u * 4), c))
    return M
def pv_m(grp, P, zero, order=range(8)):
    M = []
    for qt in range(2):
        d = V(LA + (grp * 2 + qt) * 4)
        M.append(MF(d, V(ONE), V(P + 4 * qt), "0" if zero else d))
    for n in order:
        for qt in range(2):
            d = V(O_ + grp * 64 + qt * 32 + n * 4)
            M.append(MF(d, A(VF + 4 * n), V(P + 4 * qt), "0" if zero else d))
    return M
def kread(ab, f): return ("l", f"ds_read_b128 {A(KF+4*f)}, v{vK} offset:{ab*16384 + f*1024}")
def vread(ab, n): return ("l", f"ds_read_b128 {A(VF+4*n)}, v{vV0 if n < 4 else vV1} offset:{ab*16384 + n*1024}")
def sm_place(ph, S, P, g0=0, stride=2):
    ge = []
    for j in range(16): ge.append(ph.put("e", f"v_exp_f32 v{S+j}, v{S+j}", g0 + stride * j))
    return ge
def cvt_place(ph, S, P, ge):
    for i in range(8):
        lo = max(ge[2 * i], ge[2 * i + 1])
        if lo + 1 <= len(ph.M) - 1: ph.put("v", f"v_cvt_pk_bf16_f32 v{P+i}, v{S+2*i}, v{S+2*i+1}", lo + 1)
        else: ph.put("x", f"v_cvt_pk_bf16_f32 v{P+i}, v{S+2*i}, v{S+2*i+1}", lo)
def adv_items():
    return items(f"""s_add_u32 s{sVo}, s{sKp}, 32768
    s_sub_u32 s{sKp}, s{sE}, s{sN1}
    s_sub_u32 s{sKp}, s{sKp}, 1
    s_cmp_gt_u32 s{sE}, s{sN1}
    s_cselect_b32 s{sKp}, s{sKp}, s{sE}
    s_lshl_b32 s{sKp}, s{sKp}, 16
    s_add_u32 s{sKp}, s{sKp}, s{sKV}
    s_cmp_ge_u32 s{sE}, 17
    s_cselect_b32 s{sKp}, {OOB - 8192}, s{sKp}
    s_add_u32 s{sE}, s{sE}, 1""")
vL2 = 15
def lin8(sm, so, tog, tag):
    it = []
    for h in range(2):
        it.append(("s", f"s_add_u32 m0, s{sm}, {h*4096}"))
        for i in range(4): it.append(("m", f"buffer_load_dwordx4 v{vL2 if h else 1}, {srd(WS)}, s{so} offen offset:{i*1024} lds", tag))
    return it + [("s", f"s_xor_b32 s{sm}, s{sm}, {tog}")]
def kdma(g): return lin8(sKm, sKp, R2 ^ R4, "kd")
def vdma(g): return lin8(sVm, sVo, R3 ^ R0, "vd")
NPEEL = 8
def prefill_items(i):
    return [("s", f"s_add_u32 s{sPO}, s{sPB}, {((i >> 3) << 23) + (i & 1) * 131072}"),
            ("m", f"buffer_store_dwordx4 {V(vSEN)}, v{vQR if E_('PLIN', '1') == '1' else vPO}, {srd(WS)}, s{sPO} offen offset:{((i >> 1) & 3) * 256} {WT}", "pre")]

DG = {"8": {"c": [3, 7, 11, 15, 19, 23, 27, 31], "d": [3, 7, 11, 15, 19, 23, 27, 31], "a": []},
      "7": {"c": [3, 7, 11, 15, 23, 27, 31], "d": [3, 7, 11, 15, 23, 27, 31], "a": [3, 7]},
      "6": {"c": [3, 7, 15, 19, 27, 31], "d": [0, 7, 11, 19, 23, 31], "a": [3, 7, 15, 19]}}[E_("DG", "7")]
def kv_items(g, name):
    seq = kdma(g) + vdma(g)
    groups = []; pre = []
    for it in seq:
        if it[0] == "m": groups.append([pre, it]); pre = []
        else: pre = pre + [it]
    groups.append([pre, None])
    n0 = {"c": 0, "d": len(DG["c"]), "a": len(DG["c"]) + len(DG["d"])}[name]
    return [(gp, groups[n0 + i][1], groups[n0 + i + 1][0]) for i, gp in enumerate(DG[name])], groups[0][0]
def place_kv(g, ph, name, limit=16):
    lst, first = kv_items(g, name)
    n0 = {"c": 0, "d": len(DG["c"]), "a": len(DG["c"]) + len(DG["d"])}[name]
    if name == "c": ph.stream(first, 0, 1)
    for i, (gp, dma, post) in enumerate(lst):
        if n0 + i >= limit: break
        ph.put("m", dma[1], gp, gp, tag=dma[2])
        ph.stream(post, gp + 1, gp + 2)

def slot(g, Q, name, zero=False, Cm=None, extra=None, dma=True):
    S0, S1, P0, P1 = S_, S_ + 16, P_, P_ + 8
    qk, sm, pv = {"a": ((0, S0), (S1, P1), (0, P0)), "b": ((1, S1), (S0, P0), (1, P1)),
                  "c": ((0, S0), (S1, P1), (0, P0)), "d": ((1, S1), (S0, P0), (1, P1))}[name]
    M = qk_m(Q, qk[0], qk[1], Cm) + pv_m(pv[0], pv[1], zero)
    ph = Phase(g.k, M)
    ge = sm_place(ph, *sm, g0=2 if name != "b" else 0)
    if name in "ac":
        for n, gp in enumerate([0, 1, 5, 9, 13, 17, 21, 25]): ph.put(*vread(1 if name == "a" else 0, n), gp, gp)
    if name == "b":
        for f in range(8): ph.put(*kread(1, f), 9 + 2 * f)
    if name == "d":
        for f in range(8): ph.put(*kread(0, f), 5 + 4 * f, 5 + 4 * f)
    if dma and name != "b": place_kv(g, ph, name)
    cvt_place(ph, *sm, ge)
    if name == "a": ph.stream(items(f"v_xor_b32 v{vV0}, {R3 ^ R0}, v{vV0}\nv_xor_b32 v{vV1}, {R3 ^ R0}, v{vV1}"), 29)
    if name == "b": ph.put("v", f"v_xor_b32 v{vK}, {R2 ^ R4}, v{vK}", 27)
    if extra: extra(ph)
    ph.emit()

def tile(g, T):
    import gen_tail as GT
    k = g.k
    Q = Q1 if T == 1 else Q2
    sT = sT1 if T == 1 else sT2
    S0, S1, P0, P1 = S_, S_ + 16, P_, P_ + 8
    L = f"L_t{T}"
    k.label(L + "_start")
    M = qk_m(Q, 0, S0, S0 if T == 1 else None, order="qt") + qk_m(Q, 1, S1, None)
    ph = Phase(k, M)
    ge = [ph.put("e", f"v_exp_f32 v{S0+j}, v{S0+j}", 4 * (j // 4) + 8 + (j % 4)) for j in range(16)]
    for f in range(8): g1 = ph.put(*kread(1, f), 24 + f, 24 + f)
    ph.put("x", f"v_xor_b32 v{vK}, {R2 ^ R4}, v{vK}", 31)
    ph.stream(adv_items() + items(f"s_sub_u32 s{sRem}, s{sT}, {1 if T == 1 else NPEEL}"), 0)
    cvt_place(ph, S0, P0, ge)
    ph.emit()
    k.waitvm(["kd", "vd", "k1", "v0"], True); k("s_barrier")
    if E_("TSA") == "r" and T == 2 or E_("TSA") == "m1" and T == 2: g.ts(force=True)
    if T == 1: k.vm = []
    st_bar = k.save()
    if T == 1:
        k(f"s_cmp_eq_u32 s{sT1}, 0\ns_cbranch_scc1 {L}_zero")
    slot(g, Q, "c", zero=True)
    slot(g, Q, "d", zero=True)
    if T == 2:
        for r in range(1, NPEEL):
            slot(g, Q, "a", extra=lambda ph: GT.peel_a(g, ph, r))
            def fb(ph): ph.stream(adv_items(), 10); GT.peel_b(g, ph, r)
            slot(g, Q, "b", extra=fb)
            k.waitvm(["kd", "vd", "ctx"] + (["pre"] if r == 4 else []), True); k("s_barrier")
            if E_("TSA") == "r": g.ts(force=True)
            if r == 1: g.run(g.flag_store(sCFO, []))
            slot(g, Q, "c")
            slot(g, Q, "d")
        k.vm = [e for e in k.vm if e[1] in ("kd", "vd")]
    if T == 1 or NPEEL == 8: k(f"s_cmp_eq_u32 s{sRem}, 0\ns_cbranch_scc1 {L}_diag")
    st_d = k.save()
    k.out.append(".p2align 3")
    k.label(L + "_loop")
    slot(g, Q, "a")
    slot(g, Q, "b", extra=lambda ph: ph.stream(adv_items(), 10))
    k.waitvm(["kd", "vd"], True); k("s_barrier")
    k.vm = []
    slot(g, Q, "c")
    slot(g, Q, "d", extra=lambda ph: ph.put("s", f"s_sub_u32 s{sRem}, s{sRem}, 1", 26))
    k(f"s_cmp_lg_u32 s{sRem}, 0\ns_cbranch_scc1 {L}_loop")
    assert [e[1] for e in k.vm] == [e[1] for e in st_d[0]] and [e[0] for e in k.lg] == [e[0] for e in st_d[1]]
    k.label(L + "_diag")
    TM = lambda: g.ts(force=True) if E_("TSA") == f"m{T}" or (E_("TSA") == "r" and T == 2) else None
    TM()
    m2 = mask_items(MK, vT2, 1)
    def xa(ph):
        if T == 2: GT.diag_a(g, ph)
        ph.stream(m2[:10], 17)
    slot(g, Q, "a", Cm=MK, extra=xa)
    def xb(ph):
        if T == 1: ph.stream(adv_items(), 10)
        else: GT.diag_b(g, ph)
        ph.stream(m2[10:], 1)
    slot(g, Q, "b", extra=xb)
    k.waitvm(["kd", "vd", "pre"], True); k("s_barrier")
    if T == 1: k.restore(st_bar)
    TM()
    NO = [4, 5, 6, 7, 0, 1, 2, 3]
    snd = lambda grp, va, base: [("l", f"ds_write_b128 v{va}, {V(O_ + grp*64 + (i&1)*32 + 16 + (i>>1)*4)} offset:{base + i*1024}") for i in range(8)]
    rcv = lambda grp, va, base: [("l", f"ds_read_b128 {V(O_ + grp*64 + (i&1)*32 + 16 + (i>>1)*4)}, v{va} offset:{base + i*1024}") for i in range(8)]
    vS, RS = (vMW, R1) if T == 1 else (11, 0)
    def big(k, zero):
        ph = Phase(k, qk_m(Q, 1, S0, MK, order="qt") + pv_m(0, P0, zero, NO) + pv_m(1, P1, zero, NO))
        for i, n in enumerate(NO): ph.put(*vread(0, n), [0, 1, 4, 7, 10, 13, 16, 19][i], [0, 1, 4, 7, 10, 13, 16, 19][i])
        for i, n in enumerate(NO): ph.put(*vread(1, n), min(51, 37 + 2 * i), min(51, 37 + 2 * i))
        for i, it in enumerate(snd(0, vS, RS)): ph.put("l", it[1], [24, 27, 30, 33, 36, 40, 44, 48][i], [24, 27, 30, 33, 36, 40, 44, 48][i])
        ge1 = []
        for j in range(16): ge1.append(ph.put("e", f"v_exp_f32 v{S1+j}, v{S1+j}", (ge1[-1] if ge1 else 1) + 1))
        ge2 = []
        for j, gp in enumerate([25, 26, 28, 29, 31, 32, 34, 35, 37, 38, 39, 41, 42, 43, 45, 46]): ge2.append(ph.put("e", f"v_exp_f32 v{S0+j}, v{S0+j}", gp, gp))
        for i in range(8): ph.put("v", f"v_cvt_pk_bf16_f32 v{P1+i}, v{S1+2*i}, v{S1+2*i+1}", ge1[2 * i + 1] + 1, 30)
        for i in range(8): ph.put("v", f"v_cvt_pk_bf16_f32 v{P0+i}, v{S0+2*i}, v{S0+2*i+1}", [36, 40, 44, 47, 48, 49, 50, 50][i], [36, 40, 44, 47, 48, 49, 50, 50][i])
        lz = f"s_xor_b32 s{sB}, s{sVm}, 8192" if T == 1 else f"s_xor_b32 s{sB}, s{sW8}, {8192 + R0}"
        hz = f"s_xor_b32 s{sC}, s{sVm}, {R3 ^ R0}" if T == 1 else f"s_add_u32 s{sC}, s{sW8}, {R3}"
        ph.stream(items(f"""{lz}
        v_lshrrev_b32 v13, 1, v1
        v_add_u32 v12, s{sB}, v13"""), 0)
        gl = [2, 6, 11, 15, 20, 23, 29, 34]; gi = 0
        for it in (kdma(g) if T == 1 else GT.wodma(g, 1)):
            if it[0] == "m": ph.g[gl[gi]].append(("m", it[1], it[2], 0)); gi += 1
            else: ph.put("s", it[1], gl[gi - 1] + 1 if gi else 0, gl[gi] - 1 if gi < 8 else None)
        ph.put("v", f"v_mov_b32 v{LA+1}, v{LA+4}", 33, 33)
        ph.put("x", f"""ds_write_b64 v12, v[{LA}:{LA+1}]
        {hz}
        v_xor_b32 v12, 8192, v12
        v_add_u32 v9, s{sC}, v1
        v_xor_b32 v8, 8192, v{vS}
        v_xor_b32 v10, 8192, v9""", 51)
        ph.emit()
    if T == 1:
        k2 = K(); k2.label(L + "_zero"); big(k2, True); k2(f"s_branch {L}_join")
        g.tail.append("\n".join(k2.out))
    big(k, False)
    k.label(L + "_join")
    g.ts(); TM()
    k(f"""v_xor_b32 v{vV0}, {R3 ^ R0}, v{vV0}
    v_xor_b32 v{vV1}, {R3 ^ R0}, v{vV1}
    s_waitcnt lgkmcnt(0)
    s_barrier""")
    TM()
    RL = S1
    ph = Phase(k, pv_m(1, P0, False, NO))
    ph.stream([("l", f"ds_read_b64 v[{RL+8}:{RL+9}], v12")] + rcv(0, 8, RS), 0)
    ph.stream(items(f"""s_lshl_b32 s{sB}, s{sT}, 20
    s_add_u32 s{sC}, s{sB}, s{sCHI}
    s_add_u32 s{sB}, s{sB}, s{sCLO}
    v_lshrrev_b32 v11, 4, v2
    v_lshrrev_b32 v13, 2, v1
    v_add_u32 v13, {R1 if T == 1 else R4}, v13
    s_xor_b32 s{sD}, s{sW8}, 8192
    v_add_u32 v14, s{sD}, v13
    v_cmp_eq_u32 vcc, 1, v11
    v_add_f32 v{RL}, v{RL+8}, v{LA}
    v_add_f32 v{RL+2}, v{RL+9}, v{LA+4}
    v_cndmask_b32 v12, v{LA}, v{LA+4}, vcc
    v_rcp_f32 v{RL}, v{RL}
    v_rcp_f32 v{RL+2}, v{RL+2}
    v_cmp_eq_u32 vcc, 2, v11
    v_cmp_eq_u32 s[{sXB}:{sXB+1}], 3, v11"""), 0)
    sn = snd(1, 9, 0)
    for i in range(3): ph.put("l", sn[i][1], 12 + 2 * i, 12 + 2 * i)
    ph.emit()
    TM()
    def fin(grp):
        out = []
        for qt in range(2):
            b = O_ + grp * 64 + qt * 32; r = RL + 2 * (grp * 2 + qt)
            so = sC if grp else sB
            for u in range(2):
                c = b + 8 * u
                for i in range(0, 8, 2): out.append(("v", f"v_pk_add_f32 v[{c+i}:{c+i+1}], v[{c+i}:{c+i+1}], v[{c+16+i}:{c+16+i+1}]"))
                for i in range(0, 8, 2): out.append(("v", f"v_pk_mul_f32 v[{c+i}:{c+i+1}], v[{c+i}:{c+i+1}], v[{r}:{r+1}] op_sel_hi:[1,0]"))
                for i in range(4): out.append(("v", f"v_cvt_pk_bf16_f32 v{c+i}, v{c+2*i}, v{c+2*i+1}"))
                out.append(("m", f"buffer_store_dwordx4 {V(c)}, v{vL2 if qt else 1}, {srd(WS)}, s{so} offen offset:{u*1024} {WT}", "ctx"))
        return out
    ex = GT.merge_x(g) if T == 2 else vdma(g)
    lo = fin(0)
    k(f"""v_cndmask_b32 v12, v12, v{LA+8}, vcc
    v_cndmask_b32 v12, v12, v{LA+12}, s[{sXB}:{sXB+1}]""")
    ne = len(ex) // 2 if T == 1 else len(ex)
    for i in range(5):
        g.run([sn[3 + i]] + lo[i * 11:(i + 1) * 11] + ex[i * ne // 5:(i + 1) * ne // 5])
    k(f"""ds_write_b32 v14, v12
    v_and_b32 v14, {~192 & 0xffffffff}, v13
    v_add_u32 v14, s{sW8}, v14""")
    if E_("TSA") != "r": TM()
    k("s_waitcnt lgkmcnt(0)\ns_barrier")
    TM()
    k(f"ds_read_b32 v{RL+4}, v14 offset:128\nds_read_b32 v{RL+6}, v14 offset:192")
    rc = rcv(1, 10, 0)
    g.run([rc[i] for i in (0, 2, 4, 6, 1, 3, 5, 7)])
    for w in range(4): k(f"ds_read_b32 v{RL+8+w}, v13 offset:{w*8192}")
    k(f"""v_add_f32 v{RL+4}, v{RL+4}, v{LA+8}
    v_add_f32 v{RL+6}, v{RL+6}, v{LA+12}
    v_rcp_f32 v{RL+4}, v{RL+4}
    v_rcp_f32 v{RL+6}, v{RL+6}""")
    hi = fin(1); ex = ex[ne:]
    nxt = [kread(0, f) for f in range(8)] if T == 1 else GT.oread(0) + GT.oread(1)
    for i in range(4):
        g.run(hi[i * 13:(i + 1) * 13] + ex[i * len(ex) // 4:(i + 1) * len(ex) // 4])
        if i == 1:
            k(f"""v_add_f32 v{RL+8}, v{RL+8}, v{RL+9}
            v_add_f32 v{RL+10}, v{RL+10}, v{RL+11}
            v_min_f32 v{RL+12}, v{RL+8}, v{RL+10}
            v_add_f32 v{RL+8}, v{RL+8}, v{RL+10}
            v_cmp_le_f32 vcc, {H(LLO)}, v{RL+12}
            s_mov_b64 s[{sXB}:{sXB+1}], vcc
            v_cmp_ge_f32 vcc, {H(LHI)}, v{RL+8}
            s_and_b64 s[{sXB}:{sXB+1}], s[{sXB}:{sXB+1}], vcc
            s_cmp_eq_u64 s[{sXB}:{sXB+1}], -1
            s_cselect_b32 s{sXB}, s{sRedo}, 1
            s_cmp_lg_u32 s{sXB}, 0
            s_cbranch_scc1 {L}_redo""")
            k.label(L + "_safe")
        if i >= 2: g.run(nxt[(i - 2) * len(nxt) // 2:(i - 1) * len(nxt) // 2])
    redo(g, T)
    g.ts(); TM()

def redo(g, T):
    L = f"L_t{T}"
    Q = Q1 if T == 1 else Q2
    sT = sT1 if T == 1 else sT2
    k = K(); S0, S1, MX = S_, S_ + 16, P_
    k.label(L + "_redo")
    k(f"s_cmp_eq_u32 s{sRedo}, 0\ns_cbranch_scc1 {L}_max\ns_mov_b32 s{sRedo}, 0")
    for i in range(16): k(f"v_mov_b32 v{CI+i}, 0")
    k(f"s_nop 1\ns_branch {L}_safe")
    k.label(L + "_max")
    k(f"""s_waitcnt vmcnt(0) lgkmcnt(0)
    s_barrier
    s_mov_b32 s{sRedo}, 1
    s_and_b32 s{sB}, s{sW}, 1
    s_lshl_b32 s{sB}, s{sB}, 13
    s_sub_u32 s{sC}, s{sKV}, s{sW8}
    s_add_u32 s{sC}, s{sC}, s{sB}
    s_mov_b32 s{sRem}, s{sT}""")
    if T == 2:
        k(f"s_mov_b32 s{sRPL}, 0")
        for i in range(4): k(f"v_mov_b32 v{vSEN+i}, -1")
    for t in range(4): k(f"v_mov_b32 v{MX+t}, 0xff800000")
    def kld(ab):
        k(f"s_add_u32 s{sB}, s{sC}, {ab*16384}")
        for f in range(8): k(f"buffer_load_dwordx4 {A(KF+4*f)}, v{vL2 if f >= 4 else 1}, {srd(WS)}, s{sB} offen offset:{(f&3)*1024}")
    def blk(grp, S, C):
        for m in qk_m(Q, grp, S, C): k(m)
    def mx(grp, S):
        for qt in range(2):
            for i in range(0, 8, 2): k(f"v_max3_f32 v{MX+grp*2+qt}, v{MX+grp*2+qt}, v{S+8*qt+i}, v{S+8*qt+i+1}")
    k.label(L + "_maxl")
    k(f"s_cmp_eq_u32 s{sRem}, 0\ns_cbranch_scc1 {L}_maxd")
    for ab in range(2):
        kld(ab); blk(0, S0, None); blk(1, S1, None); mx(0, S0); mx(1, S1)
    k(f"s_add_u32 s{sC}, s{sC}, 65536\ns_sub_u32 s{sRem}, s{sRem}, 1\ns_nop 7\ns_branch {L}_maxl")
    k.label(L + "_maxd")
    kld(0)
    for it in mask_items(MK, vT1, 0): k(it[1])
    blk(0, S0, MK); blk(1, S1, None); mx(0, S0); mx(1, S1)
    kld(1)
    for it in mask_items(MK, vT2, 1): k(it[1])
    blk(1, S0, MK); mx(1, S0)
    for sw in ("v_permlane16_swap_b32", "v_permlane32_swap_b32"):
        for t in range(4): k(f"v_mov_b32 v{MX+4+t}, v{MX+t}")
        for t in range(4): k(f"{sw} v{MX+t}, v{MX+4+t}")
        for t in range(4): k(f"v_max_f32 v{MX+t}, v{MX+t}, v{MX+4+t}")
    k(f"""ds_write_b128 v{vMW}, {V(MX)} offset:{R1}
    v_xor_b32 v8, 8192, v{vMW}
    s_waitcnt lgkmcnt(0)
    s_barrier
    ds_read_b128 {V(MX+4)}, v8 offset:{R1}""")
    for t in range(4): k(f"v_max_f32 v{MX+t}, v{MX+t}, v{MX+4+t}")
    for t in range(4):
        for r in range(4): k(f"v_sub_f32 v{CI+4*t+r}, 0, v{MX+t}")
    k(f"s_mov_b32 s{sE}, 0" if T == 1 else f"s_add_u32 s{sE}, s{sN1}, 1")
    k(f"""s_and_b32 s{sB}, s{sE}, 1
    s_mul_i32 s{sKm}, s{sB}, {R2 ^ R4}
    s_xor_b32 s{sKm}, s{sKm}, {R2}
    s_mul_i32 s{sVm}, s{sB}, {R3 ^ R0}
    s_xor_b32 s{sVm}, s{sVm}, {R3}
    v_and_b32 v{vK}, 0x7fff, v{vK}
    v_or_b32 v{vK}, s{sKm}, v{vK}
    v_and_b32 v{vV0}, 0x7fff, v{vV0}
    v_or_b32 v{vV0}, s{sVm}, v{vV0}
    v_and_b32 v{vV1}, 0x7fff, v{vV1}
    v_or_b32 v{vV1}, s{sVm}, v{vV1}
    s_add_u32 s{sKm}, s{sKm}, s{sW8}
    s_add_u32 s{sVm}, s{sVm}, s{sW8}
    s_add_u32 s{sE}, s{sE}, 2
    s_mov_b32 s{sKp}, s{sKV}
    s_add_u32 s{sVo}, s{sKV}, 32768""")
    for it in kdma(g) + vdma(g): k(it[1])
    k(f"""s_min_u32 s{sKp}, s{sT}, 1
    s_lshl_b32 s{sKp}, s{sKp}, 16
    s_add_u32 s{sKp}, s{sKp}, s{sKV}""")
    for it in kdma(g): k(it[1])
    if T == 1:
        for it in first_c(1, True) + mask_items(MK, vT2, 1): k(it[1])
        k(f"s_cmp_eq_u32 s{sT1}, 0\ns_cbranch_scc1 {L}_mk")
        for it in mask_items(MK, vT1, 0): k(it[1])
        k.label(L + "_mk")
    k("s_waitcnt vmcnt(0) lgkmcnt(0)\ns_barrier")
    for f in range(8): k(kread(0, f)[1])
    k(f"s_waitcnt lgkmcnt(0)\ns_branch {L}_start")
    g.tail.append("\n".join(k.out))

def attention(g):
    k = g.k; ACC = g.ACC
    for tt in range(4):
        for u in range(4):
            b = ACC + (tt * 8 + 2 * u) * 4
            for i in range(4): k(f"v_cvt_pk_bf16_f32 v{b+i}, v{b+2*i}, v{b+2*i+1}")
            k(f"ds_write_b128 v{vMW}, {V(b)} offset:{(tt>>1)*R1 + ((tt&1)*4+u)*1024}")
    k(f"v_add_u32 v{vL2}, 4096, v1")
    k.waitvm(["k0"], True); k("s_barrier")
    qr = lambda Q, base, f: f"ds_read_b128 {A(Q+4*f)}, v{vQR} offset:{base + f*1024}"
    for f in range(4): k(qr(Q1, R0, f)); k(kread(0, f)[1])
    for f in range(4, 8): k(kread(0, f)[1])
    for f in range(4, 16): k(qr(Q1, R0, f))
    for f in range(16): k(qr(Q2, R1, f))
    k(f"""v_lshrrev_b32 v{vQR}, 4, v2
    v_lshlrev_b32 v{vQR}, 15, v{vQR}
    v_and_b32 v14, 255, v1
    v_add_u32 v{vQR}, v{vQR}, v14""")
    g.ts()
    tile(g, 1)
    tile(g, 2)

def qdump(g):
    k = g.k; ACC = g.ACC
    k(f"s_lshl_b32 s{sB}, s2, 16\ns_lshl_b32 s{sC}, s{sW}, 14\ns_add_u32 s{sB}, s{sB}, s{sC}\ns_add_u32 s{sB}, s{sB}, {WS_CTX}")
    for tt in range(4):
        for u in range(4):
            b = ACC + (tt * 8 + 2 * u) * 4
            for i in range(4): k(f"v_cvt_pk_bf16_f32 v{b+i}, v{b+2*i}, v{b+2*i+1}")
            k(f"buffer_store_dwordx4 {V(b)}, v1, {srd(WS)}, s{sB} offen offset:{u*1024}")
        k(f"s_add_u32 s{sB}, s{sB}, 4096")
```

```python
from common import *
from gen_attn import *
sFO, sWOB, sXL, sPS, sTOK1, sTOK2, sPC, sKEY, sIDX, sCND, sCG, sC2 = 64, 65, 74, 75, 68, 69, 70, 71, 72, 73, 66, 67
CNT = E_("CNT", "")
sLM = 70
OQB = [R1, R2, R0, R3]
WOV = 8
OA = 56
WR0, OACC, X2, MW = 192, 64, 128, 128
def X1R(f): return 64 + 4 * f if f < 16 else 4 * (f - 16)
def wodma(g, c, vb=24):
    it = []
    for h in range(2):
        it += g.dma4(WO, [vb + i for i in range(4)], (sW8, OQB[c] + h * 4096), (sWOB, (c & 1) * 128 + (c >> 1) * 262144 + h * 32768), f"wo{c}")
    return it
def xload(pas, f):
    off = f * 1024
    dst = A(X1R(f)) if pas == 0 else V(X2 + 4 * f)
    return [("s", f"s_add_u32 s{sXL}, s{sXC}, {off & ~4095}"), ("m", f"buffer_load_dwordx4 {dst}, v1, {srd(WS)}, s{sXL} offen offset:{off & 4095}")]
def xc_items(sT):
    return items(f"""s_lshl_b32 s{sXC}, s{sT}, 2
    s_add_u32 s{sXC}, s{sXC}, s{sW}
    s_lshl_b32 s{sXC}, s{sXC}, 3
    s_add_u32 s{sXC}, s{sXC}, s{sX}
    s_lshl_b32 s{sXC}, s{sXC}, 15
    s_add_u32 s{sXC}, s{sXC}, {WS_CTX}""")

def moe_setup():
    return items(f"""s_lshr_b32 s{sB}, s2, 3
    s_mul_i32 s{sCG}, s{sX}, 28
    s_add_u32 s{sCG}, s{sCG}, s{sB}
    s_cmp_lt_u32 s{sB}, 28
    s_cselect_b32 s{sCG}, s{sCG}, 255
    s_lshl_b32 s{sC2}, s{sX}, 3
    s_add_u32 s{sC2}, s{sC2}, s{sB}
    s_sub_u32 s{sC2}, s{sC2}, 24
    s_cmp_ge_u32 s{sB}, 24
    s_cselect_b32 s{sC2}, s{sC2}, 255""")
WS_GP, WS_UP, WS_DP = 0x400000, 0x600000, 0x800000
def repack_loads(t0, s0):
    return items(f"""s_lshl_b32 s{s0}, s2, 2
    s_add_u32 s{s0}, s{s0}, s{sW}
    s_and_b32 s{sB}, s{s0}, 31
    s_lshr_b32 s{sC}, s{s0}, 5
    s_sub_u32 s{sC}, s{sC}, 4
    s_and_b32 s{sC}, s{sC}, 31
    v_lshrrev_b32 v{t0+1}, 3, v2
    v_and_b32 v{t0}, 4, v{t0+1}
    v_and_b32 v{t0+2}, 2, v{t0+1}
    v_lshl_add_u32 v{t0}, v{t0+2}, 3, v{t0}
    v_and_b32 v{t0+2}, 1, v{t0+1}
    v_lshl_add_u32 v{t0}, v{t0+2}, 1, v{t0}
    v_mul_u32_u24 v{t0}, 3584, v{t0}
    v_and_b32 v{t0+2}, 7, v2
    v_lshl_add_u32 v{t0}, v{t0+2}, 4, v{t0}
    v_lshlrev_b32 v{t0+1}, 13, v{t0+1}
    v_lshl_add_u32 v{t0+1}, v{t0+2}, 4, v{t0+1}
    s_lshr_b32 s{s0}, s{sB}, 1
    s_lshl_b32 s{s0}, s{s0}, 2
    s_and_b32 s{sB}, s{sB}, 1
    s_add_u32 s{s0}, s{s0}, s{sB}
    s_mul_i32 s{s0}, s{s0}, {8*3584}
    s_lshl_b32 s{sB}, s{sC}, 7
    s_add_u32 s{s0}, s{s0}, s{sB}
    s_cmp_lt_u32 s{sC}, 28
    s_cselect_b32 s{s0}, s{s0}, {OOB}
    buffer_load_dwordx4 {A(PRE)}, v{t0}, {srd(WG_)}, s{s0} offen {CNT}
    buffer_load_dwordx4 {A(PRE+4)}, v{t0}, {srd(WG_)}, s{s0} offen offset:3584 {CNT}
    buffer_load_dwordx4 {A(PRE+8)}, v{t0}, {srd(WU_)}, s{s0} offen {CNT}
    buffer_load_dwordx4 {A(PRE+12)}, v{t0}, {srd(WU_)}, s{s0} offen offset:3584 {CNT}
    s_lshl_b32 s{s0}, s{sC}, 16
    s_lshl_b32 s{sB}, s{sW}, 11
    s_add_u32 s{s0}, s{s0}, s{sB}
    s_lshl_b32 s{sB}, s{sX}, 7
    s_add_u32 s{s0}, s{s0}, s{sB}
    buffer_load_dwordx4 {A(PRE+16)}, v{t0+1}, {srd(WD_)}, s{s0} offen {CNT}
    buffer_load_dwordx4 {A(PRE+20)}, v{t0+1}, {srd(WD_)}, s{s0} offen offset:1024 {CNT}""", "ex")
def repack_stores(t0, s0):
    return items(f"""s_lshr_b32 s{sC}, s2, 3
    s_sub_u32 s{sC}, s{sC}, 4
    s_and_b32 s{sC}, s{sC}, 31
    v_lshrrev_b32 v{t0+2}, 3, v2
    v_lshlrev_b32 v{t0+2}, 4, v{t0+2}
    v_and_b32 v{t0+1}, 7, v2
    v_lshl_add_u32 v{t0}, v{t0+1}, 13, v{t0+2}
    v_mul_u32_u24 v{t0+1}, 28672, v{t0+1}
    v_add_u32 v{t0+1}, v{t0+1}, v{t0+2}
    s_lshl_b32 s{s0}, s{sX}, 2
    s_add_u32 s{s0}, s{s0}, s{sW}
    s_lshl_b32 s{s0}, s{s0}, 7
    s_lshl_b32 s{sB}, s{sC}, 16
    s_add_u32 s{s0}, s{s0}, s{sB}
    s_add_u32 s{s0}, s{s0}, {WS_GP}
    s_cmp_lt_u32 s{sC}, s{sRPL}
    s_cselect_b32 s{s0}, s{s0}, {OOB - 0x400000}
    buffer_store_dwordx4 {A(PRE)}, v{t0}, {srd(WS)}, s{s0} offen {WT}
    s_add_u32 s{s0}, s{s0}, 4096
    buffer_store_dwordx4 {A(PRE+4)}, v{t0}, {srd(WS)}, s{s0} offen {WT}
    s_add_u32 s{s0}, s{s0}, {WS_UP - WS_GP - 4096}
    buffer_store_dwordx4 {A(PRE+8)}, v{t0}, {srd(WS)}, s{s0} offen {WT}
    s_add_u32 s{s0}, s{s0}, 4096
    buffer_store_dwordx4 {A(PRE+12)}, v{t0}, {srd(WS)}, s{s0} offen {WT}
    s_mul_i32 s{s0}, s{sX}, {8*28672}
    s_mul_i32 s{sB}, s{sW}, {2*3584}
    s_add_u32 s{s0}, s{s0}, s{sB}
    s_lshl_b32 s{sB}, s{sC}, 7
    s_add_u32 s{s0}, s{s0}, s{sB}
    s_add_u32 s{s0}, s{s0}, {WS_DP}
    s_cmp_lt_u32 s{sC}, s{sRPL}
    s_cselect_b32 s{s0}, s{s0}, {OOB}
    buffer_store_dwordx4 {A(PRE+16)}, v{t0+1}, {srd(WS)}, s{s0} offen {WT}
    buffer_store_dwordx4 {A(PRE+20)}, v{t0+1}, {srd(WS)}, s{s0} offen offset:3584 {WT}""", "pre")
MG, MD = 112, 128
def moe_loads(t0, s0):
    t = f"""v_lshlrev_b32 v{t0}, 4, v0
    v_cmp_gt_u32 vcc, 224, v0
    v_mov_b32 v{t0+1}, {OOB}
    v_cndmask_b32 v{t0+1}, v{t0+1}, v{t0}, vcc
    s_lshl_b32 s{s0}, s{sCG}, 13
    s_add_u32 s{s0}, s{s0}, {WS_GP}
    s_cmp_lt_u32 s{sCG}, 224
    s_cselect_b32 s{s0}, s{s0}, {OOB - 0x400000}
    buffer_load_dwordx4 {V(MG)}, v{t0}, {srd(WS)}, s{s0} offen
    s_add_u32 s{s0}, s{s0}, 4096
    buffer_load_dwordx4 {V(MG+4)}, v{t0}, {srd(WS)}, s{s0} offen
    s_add_u32 s{s0}, s{s0}, {WS_UP - WS_GP - 4096}
    buffer_load_dwordx4 {V(MG+8)}, v{t0}, {srd(WS)}, s{s0} offen
    s_add_u32 s{s0}, s{s0}, 4096
    buffer_load_dwordx4 {V(MG+12)}, v{t0}, {srd(WS)}, s{s0} offen
    s_mul_i32 s{s0}, s{sC2}, 28672
    s_add_u32 s{s0}, s{s0}, {WS_DP}
    s_cmp_lt_u32 s{sC2}, 64
    s_cselect_b32 s{s0}, s{s0}, {OOB - 0x400000}
    """
    for r in range(8):
        t += f"buffer_load_dwordx4 {V(MD+4*r)}, v{t0+1}, {srd(WS)}, s{s0} offen offset:{(r&1)*3584}\n"
        if r & 1 and r < 7: t += f"s_add_u32 s{s0}, s{s0}, 7168\n"
    return items(t, "ex")
def merge1_extra(g):
    t = f"""v_lshlrev_b32 v12, 3, v0
    s_lshl_b32 s{sC}, s2, 11
    s_add_u32 s{sC}, s{sC}, {WS_CAND}
    buffer_store_dwordx2 v[{vSEN}:{vSEN+1}], v12, {srd(WS)}, s{sC} offen {WT}
    s_lshl_b32 s{sC}, s2, 6
    s_add_u32 s{sC}, s{sC}, {WS_KEY}
    v_mov_b32 v13, 0
    buffer_store_dword v13, v7, {srd(WS)}, s{sC} offen {WT}
    s_lshl_b32 s{sC}, s{sCG}, 6
    s_add_u32 s{sC}, s{sC}, {WS_ACT}
    buffer_store_dwordx4 {V(vSEN)}, v7, {srd(WS)}, s{sC} offen {WT}
    buffer_store_dwordx4 {V(vSEN)}, v7, {srd(WS)}, s{sC} offen offset:16 {WT}
    """
    return items(t, "pre")
def late_mod_loads(g, b):
    it = items(f"""v_lshlrev_b32 v{b+4}, 2, v0
    v_cmp_gt_u32 vcc, 8, v0
    v_mov_b32 v{b+5}, {OOB}
    v_cndmask_b32 v{b+4}, v{b+5}, v{b+4}, vcc
    s_lshl_b32 s{sLM}, s2, 5
    s_add_u32 s{sLM}, s{sLM}, {WS_MODP + 4096}""")
    ld = []
    for q in range(4):
        ld += [("m", f"buffer_load_dword v{b+q}, v{b+4}, {srd(WS)}, s{sLM} offen"), ("s", f"s_add_u32 s{sLM}, s{sLM}, 12288")]
    return it, ld
def late_mod_fin(g, b):
    return items(f"""v_add_f32 v{b}, v{b}, v{b+1}
    v_add_f32 v{b+2}, v{b+2}, v{b+3}
    v_add_f32 v{b}, v{b}, v{b+2}
    v_cvt_pk_bf16_f32 v{b}, v{b}, v{b}
    v_and_b32 v{b}, 0xffff0000, v{b}
    s_lshr_b32 s{sLM}, s2, 6
    s_cmp_eq_u32 s{sLM}, 2
    s_cselect_b32 s{sLM}, 1.0, 0
    v_add_f32 v{b}, s{sLM}, v{b}
    v_cvt_pk_bf16_f32 v{b}, v{b}, v{b}
    v_and_b32 v{b}, 0xffff0000, v{b}
    s_lshl_b32 s{sLM}, s2, 5
    s_add_u32 s{sLM}, s{sLM}, {WS_MOD + 4096}
    buffer_store_dword v{b}, v{b+4}, {srd(WS)}, s{sLM} offen {WT}""", "ex")
def wo_voff(b):
    return items(f"""v_lshrrev_b32 v{b+1}, 1, v2
    v_lshrrev_b32 v{b+2}, 4, v2
    v_xor_b32 v{b+1}, v{b+1}, v{b+2}
    v_and_b32 v{b+1}, 3, v{b+1}
    v_lshlrev_b32 v{b+1}, 5, v{b+1}
    v_and_b32 v{b+2}, 1, v2
    v_lshl_add_u32 v{b+1}, v{b+2}, 4, v{b+1}
    v_lshrrev_b32 v{b}, 3, v2
    v_lshl_add_u32 v{b}, v{b}, 10, v{b+1}
    v_bfe_u32 v4, v2, 1, 2
    v_lshlrev_b32 v4, 11, v4
    v_lshl_add_u32 v4, v{b+2}, 6, v4
    v_add_u32 v{b+1}, 7168, v{b}
    v_add_u32 v{b+2}, {2*7168}, v{b}
    v_add_u32 v{b+3}, {3*7168}, v{b}""")
def cold_loads(t0, s0):
    return repack_loads(t0, s0) + items(f"""
    v_lshrrev_b32 v{t0+1}, 1, v2
    v_and_b32 v{t0+1}, 15, v{t0+1}
    v_lshlrev_b32 v{t0+1}, 10, v{t0+1}
    v_and_b32 v{t0+2}, 1, v2
    v_lshl_add_u32 v{t0+1}, v{t0+2}, 7, v{t0+1}
    s_lshl_b32 s{s0}, s{sP}, 2
    s_add_u32 s{s0}, s{s0}, s{sW}
    s_lshl_b32 s{s0}, s{s0}, 14
    buffer_load_dword a60, v{t0+1}, {srd(WO)}, s{s0} offen""", "ex")
def split_m(its, n):
    c = 0
    for i, it in enumerate(its):
        if it[0] == "m":
            c += 1
            if c == n: return its[:i + 1], its[i + 1:]
    return its, []
def peel_plan(g):
    pf = lambda a, b: sum((prefill_items(i) for i in range(a, b)), [])
    rs = []; rest = repack_stores(12, sPF)
    for i in range(6):
        a, rest = split_m(rest, 1); rs.append(a)
    wo = wodma(g, 0, 8)
    xl = lambda a, b: sum((xload(0, f) for f in range(a, b)), [])
    fsig = items(f"""s_lshl_b32 s{sFO}, s2, 6
    s_add_u32 s{sFO}, s{sFO}, {WS_FF}
    buffer_store_dword v6, v7, {srd(WS)}, s{sFO} offen {WT}""", "flag")
    cpoll = [("m", f"buffer_load_dword v3, v4, {srd(WS)}, s{sCFP} offen {WT}")]
    fc = first_c(2); wv = wo_voff(8)
    return [([pf(0, 2), rs[0]], [rs[1] + pf(2, 7), wv[:8]]),
            ([rs[2] + pf(7, 10)], [rs[3] + pf(10, 14), wv[8:]]),
            ([rs[4] + pf(14, 16) + cpoll], [rs[5] + merge1_extra(g), fc[:6]]),
            ([xc_items(sT1) + [("x", g.poll_check(3, 4, WS, f"s{sCFP}", "C1"))] + xl(0, 5)], [wo[:6] + xl(5, 8), fc[6:12]]),
            ([fsig + xl(8, 13)], [wo[6:] + xl(13, 16), fc[12:18]]),
            ([xl(16, 22)], [xl(22, 28), fc[18:26]]),
            ([xl(28, 32), fc[26:]], [])]
def peel_a(g, ph, r):
    for st in peel_plan(g)[r - 1][0]: ph.stream(st, 8 if any(it[0] == "m" for it in st[:3]) else 0)
def peel_b(g, ph, r):
    for st in peel_plan(g)[r - 1][1]: ph.stream(st, 0)
def diag_a(g, ph):
    ph.stream(items("".join(f"v_mov_b32 v{24+i}, v{8+i}\n" for i in range(4)) + f"""v_add_u32 v11, {R4}, v{vMW}
    v_lshlrev_b32 v12, 6, v0
    s_mov_b32 s{sKEY}, {WS_FF}
    buffer_load_dword v3, v12, {srd(WS)}, s{sKEY} offen {WT}
    v_bfe_u32 v13, v2, 1, 4
    v_lshlrev_b32 v13, 10, v13
    v_and_b32 v14, 1, v2
    v_lshl_add_u32 v13, v14, 7, v13
    s_lshl_b32 s{sXL}, s{sP}, 2
    s_add_u32 s{sXL}, s{sXL}, s{sW}
    s_lshl_b32 s{sXL}, s{sXL}, 14
    {f"buffer_load_dword v14, v13, {srd(WO)}, s{sXL} offen" if E_("WOT", "1") == "1" else ""}"""), 0, dense=1)
def diag_b(g, ph):
    ph.put("x", g.poll_check(3, 12, WS, f"s{sKEY}", "F"), 31)
def merge_x(g):
    its = items(f"""v_lshrrev_b32 v{OA+2}, 2, v2
    v_and_b32 v{OA+1}, 3, v2
    v_lshlrev_b32 v{OA}, 7, v{OA+2}
    v_lshl_add_u32 v{OA}, v{OA+1}, 3, v{OA}
    v_bfe_u32 v{OA+1}, v2, 3, 2
    v_lshl_add_u32 v{OA}, v{OA+1}, 5, v{OA}
    v_xor_b32 v{OA+1}, 32, v{OA}
    v_xor_b32 v{OA+2}, 64, v{OA}
    v_xor_b32 v{OA+3}, 96, v{OA}
    v_add_u32 v{OA+4}, {R2}, v{OA}
    v_add_u32 v{OA+5}, {R2}, v{OA+1}
    v_add_u32 v{OA+6}, {R2}, v{OA+2}
    v_add_u32 v{OA+7}, {R2}, v{OA+3}""")
    return its

STEPS = [[(c, n2) for c in range(4) for n2 in range(4)] + [(c, n2) for c in range(4) for n2 in range(4, 8)]] * 2
def piece(i):
    c, n2 = STEPS[i >> 5][i & 31]
    return (c >> 1) + 2 * (n2 >> 2)
def oread(i):
    c, n2 = STEPS[i >> 5][i & 31]
    reg = OQB[piece(i)]; it = []
    for nt in range(2):
        va = OA + (0 if reg < R2 else 4) + 2 * (c & 1) + nt
        for h in range(2):
            o = (reg & 0xffff) + (2 * (n2 & 3) + h) * 4096
            f = WR0 + ((i & 3) * 4 + nt * 2 + h) * 4
            it += [("l", f"ds_read_b64_tr_b16 a[{f}:{f+1}], v{va} offset:{o}"), ("l", f"ds_read_b64_tr_b16 a[{f+2}:{f+3}], v{va} offset:{o+2048}")]
    return it
def oproj_first(g):
    g.run(oread(0) + oread(1))

GW, K0 = 8, 16
P1R, P2R, GA, CB, SB, GB, XR1, XR2, WRR = 128, 192, 160, 168, 176, 184, 32, 36, 40
vPL, vCB, vCF = 44, 45, 46
def pload(T12, dst):
    it = []
    for x in range(8):
        it += [("s", f"s_add_u32 s{sXL}, s{sPC}, {(T12 << 23) + x * 4096}"), ("m", f"buffer_load_dwordx4 {V(dst+4*x)}, v{vPL}, {srd(WS)}, s{sXL} offen {WT}")]
    return it

def oproj(g):
    k = g.k
    M = []
    for i in range(64):
        pas = i >> 5; c, n2 = STEPS[pas][i & 31]
        for nt in range(2):
            for tt in range(2):
                for h in range(2):
                    n = 2 * n2 + h; f = (n >> 2) * 8 + tt * 4 + (n & 3)
                    d = V(OACC + c * 16 + tt * 8 + nt * 4)
                    M.append(MF(d, A(WR0 + ((i & 3) * 4 + nt * 2 + h) * 4), A(X1R(f)) if pas == 0 else V(X2 + 4 * f), "0" if n == 0 else d))
    ph = Phase(k, M); ph.thin = True
    Z0 = 64 + 38
    ph.put("x", g.bar(["wo1"], False), 34)
    ph.put("x", g.bar(["wo2", "wo3"], False), Z0)
    gx = ph.stream(wodma(g, 2), 0, None, step=4)
    gx = ph.stream(wodma(g, 3), max(gx, 34) + 1, None, step=4)
    def epi(pas, c):
        it = []
        for tt in range(2):
            b = OACC + c * 16 + tt * 8
            it += [("v", f"v_cvt_pk_bf16_f32 v{b+i}, v{b+2*i}, v{b+2*i+1}") for i in range(4)]
            it += [("v", f"v_min_u32 v{b+i}, -2, v{b+i}") for i in range(4)]
            it += [("s", f"s_add_u32 s{sPS}, s{sPB}, {(pas << 23) + tt * 131072}"), ("m", f"buffer_store_dwordx4 {V(b)}, v{vPO}, {srd(WS)}, s{sPS} offen offset:{c*256} {WT}", "pst")]
        return it
    CD = int(E_("CD", "80")); CP = int(E_("CP", "60"))
    g1 = ph.stream([("s", f"s_add_u32 s{sCFO}, s{sCFO}, 65536"), ("s", f"s_add_u32 s{sCFP}, s{sCFP}, 65536")] + xc_items(sT2), 4)
    g1 = ph.stream(g.flag_store(sCFO, ["ctx"]), CD)
    g1 = ph.stream([("m", f"buffer_load_dword v3, v4, {srd(WS)}, s{sCFP} offen {WT}")], CD + CP - 30)
    ph.put("x", g.poll_check(3, 4, WS, f"s{sCFP}", "C2"), CD + CP)
    its = []
    for n in range(16):
        for tt in range(2): its += xload(1, (n >> 2) * 8 + tt * 4 + (n & 3))
    g1 = ph.stream(its, CD + CP + 1, None, step=4)
    g2 = ph.stream(items(f"""v_lshrrev_b32 v{vCF}, 2, v2
    v_and_b32 v{vCB}, 3, v2
    v_lshlrev_b32 v{vPL}, 8, v{vCF}
    v_lshl_add_u32 v{vPL}, v{vCB}, 4, v{vPL}
    v_lshlrev_b32 v{vCB}, 3, v{vCB}
    v_lshl_add_u32 v{vCB}, v{vCF}, 6, v{vCB}
    v_lshlrev_b32 v{vCF}, 1, v{vCB}
    s_lshl_b32 s{sPC}, s2, 15
    s_lshl_b32 s{sB}, s{sW}, 6
    s_add_u32 s{sPC}, s{sPC}, s{sB}
    s_add_u32 s{sPC}, s{sPC}, {WS_P}
    s_and_b32 s{sTOK1}, s2, 31
    s_lshl_b32 s{sTOK1}, s{sTOK1}, 2
    s_add_u32 s{sTOK1}, s{sTOK1}, s{sW}
    s_lshl_b32 s{sTOK2}, s{sT2}, 7
    s_add_u32 s{sTOK2}, s{sTOK2}, s{sTOK1}
    s_lshl_b32 s{sB}, s{sT1}, 7
    s_add_u32 s{sTOK1}, s{sTOK1}, s{sB}
    s_lshl_b32 s{sB}, s{sTOK1}, 10
    s_lshl_b32 s{sC}, s{sTOK2}, 10"""), 104, sid=950)
    g2 = ph.stream(items(f"""buffer_load_dwordx2 v[{XR1}:{XR1+1}], v{vCB}, {srd(XS)}, s{sB} offen
    buffer_load_dwordx2 v[{XR1+2}:{XR1+3}], v{vCB}, {srd(XS)}, s{sB} offen offset:32
    buffer_load_dwordx2 v[{XR2}:{XR2+1}], v{vCB}, {srd(XS)}, s{sC} offen
    buffer_load_dwordx2 v[{XR2+2}:{XR2+3}], v{vCB}, {srd(XS)}, s{sC} offen offset:32
    buffer_load_dwordx2 v[{WRR}:{WRR+1}], v{vCB}, {srd(WR_)}, 0 offen
    buffer_load_dwordx2 v[{WRR+2}:{WRR+3}], v{vCB}, {srd(WR_)}, 0 offen offset:32"""), g1 + 1, None, step=4, sid=950)
    its = []
    for (R, seg) in ((GA, 2), (CB, 4), (SB, 3), (GB, 5)):
        its += [("s", f"s_mov_b32 s{sXL}, {WS_MOD + seg*2048}"), ("m", f"buffer_load_dwordx4 {V(R)}, v{vCF}, {srd(WS)}, s{sXL} offen"), ("m", f"buffer_load_dwordx4 {V(R+4)}, v{vCF}, {srd(WS)}, s{sXL} offen offset:64")]
    g2 = ph.stream(its, max(g2 + 1, 386), None, step=3)
    ph.stream(pload(0, P1R), max(g2 + 1, int(E_("P1G", "420"))), None, step=4)
    kk = K(); unpack(kk, 48, WRR, 8)
    for i in range(8): kk(f"v_mul_f32 v{GW+i}, v{48+i}, v{CB+i}")
    kk(f"v_mul_f32 v{K0}, v48, v{SB}")
    for i in range(1, 8): kk(f"v_fmac_f32 v{K0}, v{48+i}, v{SB+i}")
    allred(kk, [K0], tmp=[19])
    gk = items("\n".join(kk.out))
    for c in range(4):
        g3 = ph.stream(epi(0, c), 128 + 32 * (c + 1) + 6); assert g3 < 256 + 32 * c - 2, g3
    for c in range(3): ph.stream(epi(1, c), 384 + 32 * (c + 1) + 6)
    ph.stream(gk, g2 + 36)
    for i in range(2, 64):
        lo = 8 * (i - 3)
        if i < 32 and piece(i) >= 2: lo = max(lo, Z0 + 1)
        if i < 32 and piece(i) == 1: lo = max(lo, 35)
        ph.stream(oread(i), lo, 8 * i - 5)
    if g.TS:
        ph.put("x", g.ts, 255)
        for gp in (E_("TSO") or "").split(","):
            if gp: ph.put("x", lambda k: g.ts(k, True), int(gp))
    ph.emit()
    print("oproj: overloaded placements", ph.over, file=sys.stderr)
    g.run(epi(1, 3))
    g.run(pload(1, P2R))
    g.ts()

def allred(k, regs, op="v_add_f32", tmp=None):
    for pat in ("quad_perm:[1,0,3,2]", "quad_perm:[2,3,0,1]", "row_half_mirror", "row_mirror"):
        for r in regs: k(f"{op}_dpp v{r}, v{r}, v{r} {pat} row_mask:0xf bank_mask:0xf")
    for sw in ("v_permlane16_swap_b32", "v_permlane32_swap_b32"):
        for r, t in zip(regs, tmp): k(f"v_mov_b32 v{t}, v{r}")
        for r, t in zip(regs, tmp): k(f"{sw} v{r}, v{t}")
        for r, t in zip(regs, tmp): k(f"{op} v{r}, v{r}, v{t}")
def unpack(k, dst, src, n):
    for i in range(n // 2):
        k(f"v_lshlrev_b32 v{dst+2*i}, 16, v{src+i}\nv_and_b32 v{dst+2*i+1}, 0xffff0000, v{src+i}")
def pack(k, dst, src, n):
    for i in range(n // 2): k(f"v_cvt_pk_bf16_f32 v{dst+i}, v{src+2*i}, v{src+2*i+1}")
def bf1(k, r): k(f"v_cvt_pk_bf16_f32 v{r}, v{r}, v{r}\nv_and_b32 v{r}, 0xffff0000, v{r}")

def sent_wait(g, regs, reload_items, name, sleep=2):
    k = g.k
    lp, ok = k.lab(name + "_l"), k.lab(name + "_ok")
    k(f"s_mov_b32 s{sD}, 0")
    k.label(lp)
    k("s_waitcnt vmcnt(0)")
    k(f"v_max_u32 v3, v{regs[0]}, v{regs[1]}")
    rest = regs[2:]
    for i in range(0, len(rest) - 1, 2): k(f"v_max3_u32 v3, v3, v{rest[i]}, v{rest[i+1]}")
    k(f"""v_cmp_eq_u32 vcc, -1, v3
    s_add_u32 s{sD}, s{sD}, 1
    s_cbranch_vccz {ok}
    s_cmp_ge_u32 s{sD}, {SPIN}
    s_cbranch_scc1 {ok}
    s_mov_b64 exec, vcc""")
    if sleep: k(f"s_sleep {sleep}")
    g.run(reload_items)
    k(f"s_branch {lp}")
    k.label(ok)
    k("s_mov_b64 exec, -1")
    k.vm = []

def part_wait(g, T12, R):
    k = g.k
    lp, ok = k.lab("P2_l"), k.lab("P2_ok")
    k(f"s_mov_b32 s{sD}, 0")
    k.label(lp)
    k("s_waitcnt vmcnt(0)")
    for x in range(8): k(f"v_max_u32 v{48+x}, v{R+4*x}, v{R+4*x+1}\nv_max3_u32 v{48+x}, v{48+x}, v{R+4*x+2}, v{R+4*x+3}")
    k(f"""v_max3_u32 v3, v48, v49, v50
    v_max3_u32 v3, v3, v51, v52
    v_max3_u32 v3, v3, v53, v54
    v_max_u32 v3, v3, v55
    v_cmp_eq_u32 vcc, -1, v3
    s_add_u32 s{sD}, s{sD}, 1
    s_cbranch_vccz {ok}
    s_cmp_ge_u32 s{sD}, {SPIN}
    s_cbranch_scc1 {ok}
    s_sleep {E_("PSL", "1")}""")
    pl = pload(T12, R)
    for x in range(8):
        sk = k.lab("P2_s")
        k(f"v_cmp_eq_u32 vcc, -1, v{48+x}\ns_cbranch_vccz {sk}\ns_mov_b64 exec, vcc")
        g.run(pl[2 * x:2 * x + 2])
        k("s_mov_b64 exec, -1")
        k.label(sk)
    k(f"s_branch {lp}")
    k.label(ok)
    k.vm = []

def token(g, PR, XR, D, sTOK, key):
    k = g.k; T = 48
    unpack(k, D, PR, 8)
    for x in range(1, 8):
        for i in range(8): k(f"v_dot2c_f32_bf16 v{D+i}, v{PR+4*x+(i>>1)}, v{100+(i&1)}")
    for i in range(0, 8, 2): k(f"v_pk_fma_f32 v[{D+i}:{D+i+1}], v[{D+i}:{D+i+1}], v[{GA+i}:{GA+i+1}], v[{D+8+i}:{D+9+i}]")
    pack(k, XR, D, 8); unpack(k, D, XR, 8)
    k(f"""v_pk_add_f32 v[{T}:{T+1}], v[{D}:{D+1}], v[{D+2}:{D+3}]
    v_pk_add_f32 v[{T+2}:{T+3}], v[{D+4}:{D+5}], v[{D+6}:{D+7}]
    v_pk_add_f32 v[{T}:{T+1}], v[{T}:{T+1}], v[{T+2}:{T+3}]
    v_add_f32 v{T}, v{T}, v{T+1}""")
    allred(k, [T], tmp=[T + 1])
    k(f"v_mul_f32 v{T}, {H(-1/512)}, v{T}")
    for i in range(0, 8, 2): k(f"v_pk_add_f32 v[{D+8+i}:{D+9+i}], v[{D+i}:{D+i+1}], v[{T}:{T+1}] op_sel_hi:[1,0]")
    k(f"v_pk_mul_f32 v[{T+2}:{T+3}], v[{D+8}:{D+9}], v[{D+8}:{D+9}]\nv_pk_mul_f32 v[{T+4}:{T+5}], v[{D+8}:{D+9}], v[{GW}:{GW+1}]")
    for i in range(2, 8, 2):
        k(f"v_pk_fma_f32 v[{T+2}:{T+3}], v[{D+8+i}:{D+9+i}], v[{D+8+i}:{D+9+i}], v[{T+2}:{T+3}]")
        k(f"v_pk_fma_f32 v[{T+4}:{T+5}], v[{D+8+i}:{D+9+i}], v[{GW+i}:{GW+i+1}], v[{T+4}:{T+5}]")
    k(f"v_add_f32 v{T+2}, v{T+2}, v{T+3}\nv_add_f32 v{T+4}, v{T+4}, v{T+5}")
    allred(k, [T + 2, T + 4], tmp=[T + 3, T + 5])
    k(f"""v_mov_b32 v{T}, {H(1e-5)}
    v_fmac_f32 v{T}, {H(1/512)}, v{T+2}
    v_rsq_f32 v{T}, v{T}
    v_fma_f32 v{T+4}, v{T+4}, v{T}, v{K0}
    v_ashrrev_i32 v{T+5}, 31, v{T+4}
    v_or_b32 v{T+5}, 0x80000000, v{T+5}
    v_xor_b32 v{T+5}, v{T+5}, v{T+4}
    v_and_b32 v{T+5}, 0xfffff800, v{T+5}
    v_or_b32 v{key}, s{sTOK}, v{T+5}""")
def token2(g, XR, D, HP, OP):
    k = g.k; T = 48
    for i in range(0, 8, 2): k(f"v_pk_mul_f32 v[{D+8+i}:{D+9+i}], v[{D+8+i}:{D+9+i}], v[{T}:{T+1}] op_sel_hi:[1,0]")
    for i in range(0, 8, 2): k(f"v_pk_fma_f32 v[{D+8+i}:{D+9+i}], v[{D+8+i}:{D+9+i}], v[{CB+i}:{CB+i+1}], v[{SB+i}:{SB+i+1}]")
    pack(k, HP, D + 8, 8)
def token3(g, D, HP, OP):
    k = g.k
    unpack(k, D + 8, HP, 8)
    for i in range(0, 8, 2): k(f"v_pk_mul_f32 v[{D+8+i}:{D+9+i}], v[{D+8+i}:{D+9+i}], v[{GB+i}:{GB+i+1}]")
    pack(k, OP, D + 8, 8); unpack(k, D + 8, OP, 8)
    for i in range(0, 8, 2): k(f"v_pk_add_f32 v[{D+8+i}:{D+9+i}], v[{D+8+i}:{D+9+i}], v[{D+i}:{D+i+1}]")
    pack(k, OP, D + 8, 8)

def tail(g):
    k = g.k
    TT = lambda: g.ts(force=True) if E_('TST') else None
    TT()
    D1, D2, H1, H2, O1, O2, KEY1, KEY2 = 64, 80, 20, 24, 56, 60, 17, 18
    GU, WDF = 160, [192 + i for i in range(64)]
    slow, ok = k.lab("P1_slow"), k.lab("P1_ok")
    def chk(regs):
        t = f"v_max_u32 v3, v{regs[0]}, v{regs[1]}\n"
        for i in range(2, len(regs), 2): t += f"v_max3_u32 v3, v3, v{regs[i]}, v{regs[i+1]}\n"
        return t + "v_cmp_eq_u32 vcc, -1, v3\n"
    k("v_mov_b32 v100, 0x3f80\nv_mov_b32 v101, 0x3f800000")
    unpack(k, D1 + 8, XR1, 8); unpack(k, D2 + 8, XR2, 8)
    r1 = list(range(P1R, P1R + 32))
    k(chk(r1) + f"s_cbranch_vccnz {slow}")
    k.label(ok)
    k2 = K(); k2.nlab = 5000; k2.label(slow); g2 = type("g2", (), dict(k=k2, run=lambda self, its: [k2(it[1]) for it in its]))()
    part_wait(g2, 0, P1R); k2(f"s_branch {ok}")
    g.tail.append("\n".join(k2.out))
    token(g, P1R, XR1, D1, sTOK1, KEY1); token2(g, XR1, D1, H1, O1)
    ml = moe_loads(98, sPF)
    g.run(ml[:7])
    k(f"""s_lshl_b32 s{sB}, s{sW}, 2
    v_mov_b32 v47, s{sB}
    v_mov_b32 v102, 0
    s_lshl_b32 s{sB}, s2, 6
    s_add_u32 s{sB}, s{sB}, {WS_KEY}
    s_lshl_b32 s{sC}, s2, 11
    s_add_u32 s{sC}, s{sC}, {WS_CAND}""")
    g.ts()
    part_wait(g, 1, P2R)
    g.ts(); TT()
    token(g, P2R, XR2, D2, sTOK2, KEY2)
    TT()
    k(f"""v_max3_u32 v19, v{KEY1}, v{KEY2}, 1
    ds_write_b32 v47, v19
    s_waitcnt lgkmcnt(0)
    s_barrier
    ds_read_b128 v[52:55], v102""")
    token2(g, XR2, D2, H2, O2)
    k(f"""v_max_u32 v52, v52, v53
    v_max3_u32 v52, v52, v54, v55
    v_cmp_eq_u32 vcc, v52, v19
    s_cbranch_vccz L_notbest
    buffer_store_dword v19, v5, {srd(WS)}, s{sB} offen {WT}
    v_cmp_gt_u32 vcc, v{KEY1}, v{KEY2}""")
    for i in range(4): k(f"v_cndmask_b32 v{28+i}, v{H2+i}, v{H1+i}, vcc\nv_cndmask_b32 v{40+i}, v{XR2+i}, v{XR1+i}, vcc")
    for i in range(4): k(f"v_min_u32 v{28+i}, -2, v{28+i}\nv_min_u32 v{40+i}, -2, v{40+i}")
    k(f"""buffer_store_dwordx4 v[28:31], v1, {srd(WS)}, s{sC} offen {WT}
    buffer_store_dwordx4 v[40:43], v1, {srd(WS)}, s{sC} offen offset:1024 {WT}""")
    k.vm = k.vm[:-3]
    k.label("L_notbest")
    TT()
    g.run(ml[7:])
    token3(g, D1, H1, O1); token3(g, D2, H2, O2)
    if E_("KS0", "0") != "0": k(f"s_sleep {E_('KS0')}")
    k(f"""v_lshlrev_b32 v4, 6, v0
    s_mov_b32 s{sKEY}, {WS_KEY}
    s_mov_b32 s{sD}, 0""")
    k.label("L_kl")
    k(f"""buffer_load_dword v3, v4, {srd(WS)}, s{sKEY} offen {WT}
    s_add_u32 s{sD}, s{sD}, 1
    s_waitcnt vmcnt(0)
    v_cmp_eq_u32 vcc, 0, v3
    s_cbranch_vccz L_kd
    s_cmp_ge_u32 s{sD}, {SPIN}
    s_cbranch_scc1 L_kd
    s_mov_b64 exec, vcc
    s_sleep {E_("KSL", "2")}
    s_branch L_kl""")
    k.label("L_kd")
    k("s_mov_b64 exec, -1")
    TT()
    allred(k, [3], op="v_max_u32", tmp=[19])
    k(f"""ds_write_b32 v47, v3 offset:64
    s_waitcnt lgkmcnt(0)
    s_barrier
    ds_read_b128 v[52:55], v102 offset:64
    v_lshlrev_b32 v4, 2, v0
    v_max_u32 v52, v52, v53
    v_max3_u32 v52, v52, v54, v55
    v_readfirstlane_b32 s{sKEY}, v52
    s_and_b32 s{sIDX}, s{sKEY}, 2047
    s_lshr_b32 s{sB}, s{sIDX}, 7
    s_sub_u32 s{sC}, 15, s{sB}
    s_min_u32 s{sB}, s{sB}, s{sC}
    s_lshl_b32 s{sB}, s{sB}, 16
    s_and_b32 s{sCND}, s{sIDX}, 124
    s_lshl_b32 s{sCND}, s{sCND}, 9
    s_add_u32 s{sCND}, s{sCND}, s{sB}
    s_add_u32 s{sCND}, s{sCND}, {WS_CAND}""")
    hl = [("m", f"buffer_load_dword v19, v4, {srd(WS)}, s{sCND} offen {WT}")]
    g.run(hl)
    g.ts(); TT()
    for (sT, O) in ((sTOK1, O1), (sTOK2, O2)):
        k(f"""s_lshl_b32 s{sB}, s{sT}, 10
        s_cmp_eq_u32 s{sT}, s{sIDX}
        s_cselect_b32 s{sB}, {OOB}, s{sB}
        buffer_store_dwordx2 v[{O}:{O+1}], v{vCB}, {srd(OUT)}, s{sB} offen {E_("OP", "")}
        buffer_store_dwordx2 v[{O+2}:{O+3}], v{vCB}, {srd(OUT)}, s{sB} offen offset:32 {E_("OP", "")}""")
    k(f"s_cmp_ge_u32 s{sCG}, 224\ns_cbranch_scc1 L_nprod")
    lp, ok = "L_hl", "L_hok"
    unpack(k, GU, MG, 32)
    k(f"s_mov_b32 s{sD}, 0\ns_waitcnt vmcnt(4)")
    k.label(lp)
    k(f"""v_cmp_eq_u32 vcc, -1, v19
    s_add_u32 s{sD}, s{sD}, 1
    s_cbranch_vccz {ok}
    s_cmp_ge_u32 s{sD}, {SPIN}
    s_cbranch_scc1 {ok}""")
    g.run(hl)
    k(f"s_waitcnt vmcnt(0)\ns_branch {lp}")
    k.label(ok)
    TT()
    k(f"v_lshlrev_b32 v48, 16, v19\nv_and_b32 v50, 0xffff0000, v19")
    for m in range(2):
        for i in range(0, 8, 2):
            d = 64 + 8 * m + i
            k(f"v_pk_mul_f32 v[{d}:{d+1}], v[{GU+16*m+i}:{GU+16*m+i+1}], v[48:49] op_sel_hi:[1,0]")
    for m in range(2):
        for i in range(0, 8, 2):
            d = 64 + 8 * m + i
            k(f"v_pk_fma_f32 v[{d}:{d+1}], v[{GU+16*m+8+i}:{GU+16*m+8+i+1}], v[50:51], v[{d}:{d+1}] op_sel_hi:[1,0,1]")
    k(g.red16(64))
    k(f"""v_and_b32 v50, 15, v2
    v_cmp_eq_u32 vcc, 0, v50
    v_mov_b32 v51, 1024
    v_cndmask_b32 v51, v51, v0, vcc
    ds_write_b128 v51, v[64:67] offset:256
    v_lshlrev_b32 v50, 2, v50
    s_waitcnt lgkmcnt(0)
    s_barrier
    s_cmp_lg_u32 s{sW}, 0
    s_cbranch_scc1 L_nprod
    ds_read_b32 v64, v50 offset:256
    ds_read_b32 v65, v50 offset:320
    ds_read_b32 v66, v50 offset:384
    ds_read_b32 v67, v50 offset:448
    v_cmp_gt_u32 vcc, 8, v2
    v_mov_b32 v51, {OOB}
    v_cndmask_b32 v51, v51, v50, vcc
    s_lshl_b32 s{sB}, s{sCG}, 6
    s_add_u32 s{sB}, s{sB}, {WS_ACT}
    v_add_f32 v64, v64, v65
    v_add_f32 v66, v66, v67
    v_add_f32 v64, v64, v66""")
    bf1(k, 64)
    k(f"""v_mov_b32_dpp v65, v64 row_ror:8 row_mask:0xf bank_mask:0xf
    v_mul_f32 v66, {H(-LOG2E)}, v64
    v_exp_f32 v66, v66
    v_add_f32 v66, 1.0, v66
    v_rcp_f32 v66, v66
    v_mul_f32 v64, v64, v66""")
    bf1(k, 64)
    k("v_mul_f32 v64, v64, v65")
    bf1(k, 64)
    k(f"buffer_store_dword v64, v51, {srd(WS)}, s{sB} offen {WT}")
    k.label("L_nprod")
    k.vm = []; k.lg = []
    TT()
    k(f"s_cmp_ge_u32 s{sC2}, 64\ns_cbranch_scc1 L_fin")
    k(f"""v_lshlrev_b32 v4, 6, v0
    v_cmp_gt_u32 vcc, 224, v0
    v_mov_b32 v51, {OOB}
    v_cndmask_b32 v4, v51, v4, vcc
    s_mov_b32 s{sB}, {WS_ACT}
    v_and_b32 v52, 7, v2
    s_lshl_b32 s{sC}, s{sC2}, 3
    v_add_u32 v52, s{sC}, v52            ; column
    v_lshrrev_b32 v53, 5, v52
    v_lshlrev_b32 v53, 6, v53
    v_and_b32 v54, 12, v52
    v_lshl_add_u32 v53, v54, 2, v53
    v_bfe_u32 v54, v52, 4, 1
    v_lshl_add_u32 v53, v54, 3, v53
    v_and_b32 v54, 2, v52
    v_lshl_add_u32 v53, v54, 1, v53
    v_lshlrev_b32 v54, 2, v52
    s_mov_b32 s{sC}, {WS_MOD + 5*2048}
    buffer_load_dword v55, v54, {srd(WS)}, s{sC} offen""")
    al = [("m", f"buffer_load_dwordx4 v[80:83], v4, {srd(WS)}, s{sB} offen {WT}"), ("m", f"buffer_load_dwordx4 v[84:87], v4, {srd(WS)}, s{sB} offen offset:16 {WT}"),
          ("m", f"buffer_load_dword v88, v53, {srd(WS)}, s{sCND} offen {WT}"), ("m", f"buffer_load_dword v89, v53, {srd(WS)}, s{sCND} offen offset:1024 {WT}")]
    g.run(al[2:])
    unpack(k, WDF[0], MD, 64)
    k(f"""s_and_b32 s{sC}, s{sKEY}, 0xfffff800
    s_or_b32 s{sC}, s{sC}, 0x400
    v_mov_b32 v90, s{sC}
    v_not_b32 v91, v90
    v_ashrrev_i32 v91, 31, v91
    v_or_b32 v91, 0x80000000, v91
    v_xor_b32 v90, v90, v91""")
    bf1(k, 90)
    k(f"""v_mul_f32 v90, {H(-LOG2E)}, v90
    v_exp_f32 v90, v90
    v_add_f32 v90, 1.0, v90
    v_rcp_f32 v90, v90""")
    bf1(k, 90)
    sent_wait(g, [88, 89], al[2:], "CND", sleep=1)
    k(f"""v_and_b32 v51, 1, v52
    v_cmp_eq_u32 vcc, 0, v51
    v_lshlrev_b32 v91, 16, v88
    v_and_b32 v88, 0xffff0000, v88
    v_cndmask_b32 v88, v88, v91, vcc
    v_lshlrev_b32 v91, 16, v89
    v_and_b32 v89, 0xffff0000, v89
    v_cndmask_b32 v89, v89, v91, vcc
    v_and_b32 v50, 15, v2
    v_cmp_eq_u32 vcc, 0, v50
    v_lshrrev_b32 v51, 1, v0
    v_mov_b32 v50, 1024
    v_cndmask_b32 v51, v50, v51, vcc
    v_and_b32 v50, 7, v2
    v_lshlrev_b32 v50, 2, v50
    v_cmp_gt_u32 vcc, 8, v2
    v_lshlrev_b32 v52, 1, v52
    v_mov_b32 v53, {OOB}
    v_cndmask_b32 v52, v53, v52, vcc""")
    k(f"""s_cmp_lt_u32 s{sCG}, 224
    s_cbranch_scc1 L_asl
    s_sleep {E_('ASL7', '16')}""")
    k.label("L_asl")
    k(f"s_sleep {E_('ASL', '7')}")
    g.run(al[:2])
    TT()
    sent_wait(g, list(range(80, 88)), al[:2], "ACT", sleep=int(E_("ASL2", "2")))
    TT()
    for r in range(8):
        for i in range(0, 8, 2):
            w = WDF[8 * r + i]; a = 80 + (r & ~1); sel = r & 1
            if r == 0: k(f"v_pk_mul_f32 v[{64+i}:{65+i}], v[{w}:{w+1}], v[{a}:{a+1}] op_sel_hi:[1,0]")
            else: k(f"v_pk_fma_f32 v[{64+i}:{65+i}], v[{w}:{w+1}], v[{a}:{a+1}], v[{64+i}:{65+i}] op_sel:[0,{sel},0] op_sel_hi:[1,{sel},1]")
    for i in range(4): k(f"v_permlane32_swap_b32 v{64+i}, v{68+i}")
    for i in range(4): k(f"v_add_f32 v{64+i}, v{64+i}, v{68+i}")
    for i in range(2): k(f"v_permlane16_swap_b32 v{64+i}, v{66+i}")
    for i in range(2): k(f"v_add_f32 v{64+i}, v{64+i}, v{66+i}")
    for pat in ("quad_perm:[1,0,3,2]", "quad_perm:[2,3,0,1]", "row_half_mirror", "row_mirror"):
        for i in range(2): k(f"v_add_f32_dpp v{64+i}, v{64+i}, v{64+i} {pat} row_mask:0xf bank_mask:0xf")
    k(f"""ds_write_b64 v51, v[64:65] offset:2048
    s_waitcnt lgkmcnt(0)
    s_barrier
    s_cmp_lg_u32 s{sW}, 0
    s_cbranch_scc1 L_fin
    ds_read_b32 v64, v50 offset:2048
    ds_read_b32 v65, v50 offset:2080
    ds_read_b32 v66, v50 offset:2112
    ds_read_b32 v67, v50 offset:2144
    s_lshl_b32 s{sB}, s{sIDX}, 10
    v_add_f32 v64, v64, v65
    v_add_f32 v66, v66, v67
    v_add_f32 v64, v64, v66""")
    bf1(k, 64)
    k("v_mul_f32 v64, v64, v90"); bf1(k, 64)
    k("v_add_f32 v64, v64, v88"); bf1(k, 64)
    k("v_mul_f32 v64, v64, v55"); bf1(k, 64)
    k(f"""v_add_f32 v64, v64, v89
    v_cvt_pk_bf16_f32 v64, v64, v64
    buffer_store_short v64, v52, {srd(OUT)}, s{sB} offen""")

def verify_all(lines):
    tot = 0
    for name, (n1, n2, slow) in {"p0": (0, 15, False), "p3": (3, 12, False), "p1": (1, 14, True), "redo0": (0, 15, False), "redo3": (3, 12, False)}.items():
        def decide(lab, c):
            if lab.endswith("_redo"): return name.startswith("redo")
            if lab.endswith("_max"): return c == 0
            if lab.endswith("_mk"): return n1 == 0
            if lab.endswith("_maxd"): return c >= min(2, n1 if "t1" in lab else n2)
            if lab == "L_t1_zero": return n1 == 0
            if lab == "L_t1_diag": return n1 == 1
            if lab == "L_t2_diag": return name == "p1"
            if lab == "L_t1_loop": return c % 2 < min(n1 - 2, 1)
            if lab == "L_t2_loop": return c % 3 < 2
            if "_slow" in lab and not lab.endswith("_l"): return slow
            if "_ok" in lab or lab in ("L_kd", "L_hok"): return (c >= 2) if slow and ("P2" in lab or "ACT" in lab or "CND" in lab or lab in ("L_kd", "L_hok")) else True
            if lab == "L_notbest": return slow
            return False
        T = trace(lines, decide)
        e = verify(T)
        tot += len(e)
        print(f"verify {name}: {len(T)} instrs, {len(e)} problems", file=sys.stderr)
        for x in e[:12]: print("   ", x, file=sys.stderr)
    assert tot == 0
```

```python
import sys, os
sys.path.insert(0, os.path.dirname(os.path.abspath(__file__)))
from common import *
from gen_attn import *
from gen_tail import *

TSR = list(range(83, 96)) + ([76, 77, 78] if not E_('TSP') else [])
NTS = [dict(k=WUK, v=WUV, q=WQ, o=WO)[c] for c in E_('NTS', 'k')]
class G:
    def __init__(self):
        self.k = K(); self.tail = []
        self.TS = E_("TS"); self.nts = 0
    def ts(self, k=None, force=False):
        if not self.TS: return
        if (E_("TSP") or E_("TSO") or E_("TSA") or E_("TST")) and not force: return
        k = k or self.k
        n = self.nts; self.nts += 1
        assert n < len(TSR)
        k(f"{'s_memrealtime' if self.TS == 'r' else 's_memtime'} vcc\ns_waitcnt lgkmcnt(0)\ns_mov_b32 s{TSR[n]}, vcc_lo")
    def ts0(self):
        if not E_("TS0"): return
        self.n0 = getattr(self, "n0", 0) + 1
        self.k(f"s_memrealtime vcc\ns_waitcnt lgkmcnt(0)\nv_writelane_b32 v255, vcc_lo, {self.n0}")
    def poll_check(self, vreg, vaddr, sr, soff, name, target=None):
        def f(k):
            slow, back = k.lab(name + "_slow"), k.lab(name + "_ok")
            cmp_ = f"v_cmp_ne_u32 vcc, 0, v{vreg}" if target is None else f"v_cmp_le_u32 vcc, {target}, v{vreg}"
            k(f"{cmp_}\ns_cmp_eq_u64 vcc, -1\ns_cbranch_scc0 {slow}")
            k.label(back)
            self.tail.append(f"""{slow}:
    s_mov_b32 s{sD}, 0
{slow}_l:
    s_sleep 4
    buffer_load_dword v{vreg}, v{vaddr}, {srd(sr)}, {soff} offen {WT}
    s_add_u32 s{sD}, s{sD}, 1
    s_waitcnt vmcnt(0)
    {cmp_}
    s_cmp_eq_u64 vcc, -1
    s_cbranch_scc1 {back}
    s_cmp_lt_u32 s{sD}, {SPIN}
    s_cbranch_scc1 {slow}_l
    s_branch {back}""")
        return f
    def dma4(self, sr, voffs, m0, so, tag, xor=False, nt=None):
        it = [("s", f"s_add_u32 m0, s{m0[0]}, {m0[1]}"), ("s", f"{'s_xor_b32' if xor else 's_add_u32'} s{sA}, s{so[0]}, {so[1]}")]
        for i in range(4):
            it.append(("m", f"buffer_load_dwordx4 v{voffs[i]}, {srd(sr)}, s{sA} offen offset:{i*1024} {NT if (sr in NTS if nt is None else nt) else ''} lds", tag))
        return it
    def run(self, its):
        for it in its:
            if callable(it[1]): it[1](self.k)
            else: self.k(it[1], it[2] if len(it) > 2 else None)
    def bar(self, tags, lgkm0=True):
        def f(k):
            k.waitvm(tags, lgkm0); k("s_barrier")
        return f
    def flag_store(self, so, tags):
        return [("x", lambda k: k.waitvm(tags)), ("m", f"buffer_store_dword v6, v5, {srd(WS)}, s{so} offen {WT}", "flag")]

    def startup(self):
        k = self.k
        if self.TS: k(f"{'s_memrealtime' if self.TS == 'r' else 's_memtime'} s[58:59]")
        k(f"""s_cmp_ge_u32 s2, 256
        s_cbranch_scc1 L_end
        s_load_dwordx16 s[64:79], s[0:1], 0
        s_load_dwordx16 s[80:95], s[0:1], 64
        s_getpc_b64 s[{sB}:{sC}]
        L_pf1:
        v_lshrrev_b32 v3, 6, v0
        v_and_b32 v2, 63, v0
        s_lshr_b32 s{sJ}, s2, 3
        s_mul_i32 s{sA}, s{sJ}, 24
        v_min_u32 v5, 5, v2
        v_mad_u32_u24 v5, v3, 6, v5
        v_add_u32 v5, s{sA}, v5
        v_lshlrev_b32 v5, 7, v5
        v_min_u32 v5, L_code_end-L_pf1, v5""")
        k(f"global_load_dword a255, v5, s[{sB}:{sC}]", "pf")
        k(f"""v_readfirstlane_b32 s{sW}, v3
        v_lshlrev_b32 v1, 4, v2
        s_and_b32 s{sX}, s2, 7
        s_and_b32 s{sJ}, s{sJ}, 3
        s_lshr_b32 s{sP}, s2, 5
        s_lshl_b32 s{sH}, s{sX}, 2
        s_add_u32 s{sH}, s{sH}, s{sJ}
        s_mov_b32 s{sT1}, s{sP}
        s_sub_u32 s{sT2}, 15, s{sP}
        v_lshrrev_b32 v3, 3, v2
        v_lshrrev_b32 v4, 4, v2
        v_and_b32 v5, 7, v2
        v_xor_b32 v5, v5, v4
        v_lshlrev_b32 v5, 4, v5
        v_lshl_add_u32 v16, v3, 10, v5
        v_xor_b32 v17, 64, v16
        v_add_u32 v17, {7168}, v17
        v_add_u32 v18, {2*7168}, v16
        v_add_u32 v19, {2*7168}, v17
        ; W (k-major): v20..23
        v_bfe_u32 v5, v2, 1, 3
        v_xor_b32 v5, v5, v4
        v_lshlrev_b32 v5, 5, v5
        v_and_b32 v6, 1, v2
        v_lshl_add_u32 v5, v6, 4, v5
        v_lshl_add_u32 v20, v4, 13, v5
        v_add_u32 v21, {31744}, v20
        v_xor_b32 v22, 128, v20
        v_add_u32 v22, {2*31744}, v22
        v_add_u32 v23, {31744}, v22
        s_lshl_b32 s{sW8}, s{sW}, 13
        s_lshl_b32 s{sW4}, s{sW}, 12
        s_lshl_b32 s{sXB}, s{sP}, 18
        s_lshl_b32 s{sA}, s{sW}, 16
        s_add_u32 s{sXB}, s{sXB}, s{sA}
        s_lshl_b32 s{sWB}, s{sW}, 17
        s_lshl_b32 s{sD}, s{sJ}, {int(E_("RJ", "0"))}
        s_xor_b32 s{sD}, s{sD}, s{sP}
        s_lshl_b32 s{sD}, s{sD}, {int(E_("RS", "3"))}
        s_and_b32 s{sD}, s{sD}, 7
        s_lshl_b32 s{sA}, s{sD}, 7
        s_add_u32 s{sXB}, s{sXB}, s{sA}
        s_lshl_b32 s{sA}, s{sD}, 19
        s_add_u32 s{sWB}, s{sWB}, s{sA}
        v_and_b32 v84, 7, v2
        v_lshrrev_b32 v65, 3, v0
        v_mul_u32_u24 v64, 24576, v65
        v_lshl_add_u32 v64, v84, 4, v64
        v_lshlrev_b32 v65, 3, v65
        v_lshrrev_b32 v85, 3, v2
        v_lshlrev_b32 v86, 10, v84
        v_lshl_add_u32 v86, v85, 4, v86
        s_lshl_b32 s{sB}, s{sH}, 8
        s_waitcnt lgkmcnt(0)""")
        def mk(s, p, n, off=None):
            if off is None: k(f"s_mov_b32 s{s}, s{PTR[p]}\ns_mov_b32 s{s+1}, s{PTR[p]+1}\ns_mov_b32 s{s+2}, {n}\ns_mov_b32 s{s+3}, 0x00020000")
            else: k(f"s_add_u32 s{s}, s{PTR[p]}, s{off}\ns_addc_u32 s{s+1}, s{PTR[p]+1}, 0\ns_sub_u32 s{s+2}, {n}, s{off}\ns_mov_b32 s{s+3}, 0x00020000")
        if E_("TS0"): k("v_writelane_b32 v255, s58, 0")
        self.ts0()
        mk(WUK, "wuk", 0x400000, sB); mk(CKV, "ckv", 2048 * 1024)
        self.run(self.wdma(0)); self.ts0(); self.run(self.xdma(0)); self.ts0()
        T0 = E_("T0", "")
        if "x" in T0:
            k(f"""v_lshlrev_b32 v96, 7, v2
            v_min_u32 v96, {15*128}, v96
            s_lshl_b32 s{sC}, s2, 13
            s_lshl_b32 s{sD}, s{sW}, 11
            s_add_u32 s{sC}, s{sC}, s{sD}""")
            k(f"buffer_load_dword a254, v96, {srd(CKV)}, s{sC} offen", "pf")
        if "k" in T0:
            k(f"""v_bfe_u32 v96, v2, 1, 4
            v_lshlrev_b32 v96, 13, v96
            v_lshl_add_u32 v96, v6, 7, v96
            s_lshl_b32 s{sC}, s{sP}, 19
            s_lshl_b32 s{sD}, s{sW}, 17
            s_add_u32 s{sC}, s{sC}, s{sD}""")
            k(f"buffer_load_dword a253, v96, {srd(WUK)}, s{sC} offen", "pf")
        mk(WM, "wmod", 512 * 6144); mk(CS, "c", 1024); mk(XS, "x", 2048 * 1024)
        mk(WS, "ws", WS_SIZE); mk(WUV, "wuv", 0x400000, sB); mk(WQ, "wq", 0x400000, sB); mk(DBG, "dbg", 256)
        k(f"""s_lshl_b32 s{sB}, s{sX}, 19
        s_lshl_b32 s{sD}, s{sJ}, 8
        s_add_u32 s{sB}, s{sB}, s{sD}""")
        mk(WO, "wo", 0x400000, sB)
        mk(WD_, "wd", 1792 * 1024); mk(OUT, "out", 2048 * 1024)
        k(f"s_mov_b64 s[{sPG}:{sPG+1}], s[{PTR['wg']}:{PTR['wg']+1}]\ns_mov_b64 s[{sPG+2}:{sPG+3}], s[{PTR['wu']}:{PTR['wu']+1}]")
        if self.TS: k(f"s_mov_b32 s{TSR[0]}, s58"); self.nts = 1
        mk(WR_, "wr", 1024)
        if E_("STOUCH", "1") == "1":
            k(f"s_load_dword s90, s[{DBG}:{DBG+1}], 64\ns_load_dword s91, s[{WS}:{WS+1}], 0x3f00")
        k(f"""s_lshl_b32 s{sVB}, s{sW}, 19
        s_and_b32 s{sB}, s{sWB}, {7 << 19}
        s_xor_b32 s{sVB}, s{sVB}, s{sB}
        s_lshr_b32 s{sB}, s{sP}, {int(E_("RV", "1"))}
        s_and_b32 s{sB}, s{sB}, {int(E_("RVM", "0"))}
        s_lshl_b32 s{sVX}, s{sB}, 12                ; column half order of the V projection
        s_lshl_b32 s{sB}, s{sB}, 7
        s_add_u32 s{sVB}, s{sVB}, s{sB}
        s_lshl_b32 s{sB}, s{sJ}, 1
        s_xor_b32 s{sB}, s{sB}, s{sP}
        s_and_b32 s{sB}, s{sB}, {int(E_("RQM", "0"))}
        s_lshl_b32 s{sQR}, s{sB}, 11                ; chunk order of the Q projection
        s_lshl_b32 s{sB}, s{sB}, 19
        s_lshl_b32 s{sQB}, s{sW}, 17
        s_add_u32 s{sQB}, s{sQB}, s{sB}
        s_lshl_b32 s{sKV}, s{sH}, 20
        s_add_u32 s{sKV}, s{sKV}, {WS_KV}
        s_lshl_b32 s{sB}, s{sP}, 17
        s_add_u32 s{sKVST}, s{sKV}, s{sB}
        s_lshr_b32 s{sB}, s{sW}, 1
        s_lshl_b32 s{sB}, s{sB}, 16
        s_add_u32 s{sKVST}, s{sKVST}, s{sB}
        s_and_b32 s{sB}, s{sW}, 1
        s_lshl_b32 s{sB}, s{sB}, 14
        s_add_u32 s{sKVST}, s{sKVST}, s{sB}
        s_add_u32 s{sKV}, s{sKV}, s{sW8}
        s_min_u32 s{sKp}, s{sT1}, 1
        s_lshl_b32 s{sKp}, s{sKp}, 16
        s_add_u32 s{sKp}, s{sKp}, s{sKV}
        s_sub_u32 s{sB}, s{sP}, 2
        s_lshl_b32 s{sEO}, s{sB}, 7
        s_lshl_b32 s{sB}, s{sB}, 3
        s_add_u32 s{sB}, s{sB}, s{sX}
        s_lshl_b32 s{sB}, s{sB}, 8
        s_mul_i32 s{sC}, s{sJ}, 12288
        s_add_u32 s{sB}, s{sB}, s{sC}
        s_add_u32 s{sB}, s{sB}, {WS_MODP}
        s_cmp_ge_u32 s{sP}, 2
        s_cselect_b32 s{sMODO}, s{sB}, {OOB}
        s_cselect_b32 s{sEO}, s{sEO}, {OOB}
        s_cmp_eq_u32 s{sW}, 0
        s_cselect_b32 s{sMODO}, s{sMODO}, {OOB}
        s_lshl_b32 s{sLNP}, s{sW}, 9
        s_add_u32 s{sLNP}, s{sLNP}, {WS_MODP}
        s_lshr_b32 s{sHST}, s2, 1
        s_lshl_b32 s{sHST}, s{sHST}, 14
        s_and_b32 s{sB}, s2, 1
        s_lshl_b32 s{sB}, s{sB}, 7
        s_add_u32 s{sHST}, s{sHST}, s{sB}
        s_add_u32 s{sHST}, s{sHST}, s{sW4}
        s_add_u32 s{sHST}, s{sHST}, {WS_H}
        s_lshl_b32 s{sHFO}, s2, 2
        s_add_u32 s{sHFO}, s{sHFO}, s{sW}
        s_lshl_b32 s{sHFO}, s{sHFO}, 6
        s_add_u32 s{sHFO}, s{sHFO}, {WS_HF}
        s_lshl_b32 s{sKFP}, s{sH}, 11
        s_add_u32 s{sKFP}, s{sKFP}, {WS_KVF}
        s_lshl_b32 s{sKFO}, s{sP}, 2
        s_add_u32 s{sKFO}, s{sKFO}, s{sW}
        s_lshl_b32 s{sKFO}, s{sKFO}, 6
        s_add_u32 s{sKFO}, s{sKFO}, s{sKFP}
        s_lshr_b32 s{sB}, s{sW}, 1
        s_sub_u32 s{sC}, 3, s{sB}
        s_and_b32 s{sA}, s{sW}, 1
        s_cselect_b32 s{sB}, s{sC}, s{sB}          ; row group projected by this wave
        s_lshl_b32 s{sH1}, s{sT1}, 2
        s_add_u32 s{sH1}, s{sH1}, s{sB}
        s_lshl_b32 s{sH2}, s{sT2}, 2
        s_add_u32 s{sH2}, s{sH2}, s{sB}
        s_sub_u32 s{sHFD}, s{sH2}, s{sH1}
        s_lshl_b32 s{sHFD}, s{sHFD}, 10
        s_lshl_b32 s{sHF1}, s{sH1}, 10
        s_add_u32 s{sHF1}, s{sHF1}, {WS_HF - 65536}
        s_lshl_b32 s{sH1}, s{sH1}, 15
        s_add_u32 s{sH1}, s{sH1}, {WS_H}
        s_add_u32 s{sH1}, s{sH1}, s{sQR}
        s_lshl_b32 s{sH2}, s{sH2}, 15
        s_add_u32 s{sH2}, s{sH2}, {WS_H}
        s_add_u32 s{sH2}, s{sH2}, s{sQR}
        s_add_u32 s{sVX}, s{sVX}, s{sKVST}
        s_cmp_eq_u32 s{sW}, 0
        s_cselect_b32 s{sET}, 32, 0
        s_cselect_b32 s{sEP}, 0, {OOB}""")
        k(f"""v_and_b32 v48, 15, v2          ; i16
        v_lshrrev_b32 v49, 4, v2       ; q4
        v_lshrrev_b32 v50, 1, v48
        v_xor_b32 v50, v50, v49
        v_lshlrev_b32 v50, 4, v50
        v_lshl_add_u32 v28, v48, 7, v50
        v_add_u32 v28, s{sW8}, v28
        v_xor_b32 v29, 64, v28
        v_add_u32 v30, 65536, v28
        v_add_u32 v31, 65536, v29
        v_lshrrev_b32 v50, 2, v48     ; r
        v_and_b32 v51, 3, v48         ; c
        v_lshl_add_u32 v52, v49, 3, v50      ; row = 8q4 + r
        v_lshlrev_b32 v53, 8, v52
        v_lshl_add_u32 v53, v51, 3, v53
        v_add_u32 v53, {R3}, v53
        v_and_b32 v54, 1, v49
        v_lshl_add_u32 v54, v54, 2, v50      ; f""")
        for nt in range(8):
            k(f"v_xor_b32 v55, {nt}, v54\nv_lshl_add_u32 v{8+nt}, v55, 5, v53")
        k(f"""v_bfe_u32 v49, v2, 1, 2
        v_bfe_u32 v50, v2, 4, 1
        v_xor_b32 v49, v49, v50
        v_lshlrev_b32 v49, 5, v49
        v_and_b32 v50, 1, v2
        v_lshl_add_u32 v49, v50, 4, v49
        v_lshl_add_u32 v24, v85, 13, v49
        v_xor_b32 v25, 64, v24
        v_add_u32 v25, {64512}, v25
        v_add_u32 v26, {2*64512}, v24
        v_add_u32 v27, {2*64512}, v25
        v_cmp_eq_u32 vcc, 0, v2
        v_mov_b32 v6, {OOB}
        v_cndmask_b32 v5, v6, v2, vcc
        v_cmp_eq_u32 vcc, 0, v0
        v_cndmask_b32 v7, v6, v0, vcc
        v_and_b32 v48, 8, v2
        v_cmp_eq_u32 vcc, 0, v48
        v_lshlrev_b32 v48, 5, v84
        v_lshrrev_b32 v49, 1, v2
        v_and_b32 v49, 24, v49
        v_add_u32 v48, v48, v49
        s_lshl_b32 s{sB}, s{sW}, 8
        s_add_u32 s{sB}, s{sB}, {MISC}
        v_add_u32 v48, s{sB}, v48
        v_mov_b32 v49, {MISC + 1024}
        v_cndmask_b32 v98, v49, v48, vcc
        v_lshlrev_b32 v99, 5, v84
        v_add_u32 v99, {MISC + 2048}, v99
        s_lshl_b32 s{sB}, s{sW}, 3
        v_add_u32 v100, s{sB}, v99
        v_lshlrev_b32 v106, 5, v85
        v_lshlrev_b32 v107, 8, v85
        v_lshl_add_u32 v107, v84, 4, v107
        s_sub_u32 s{sB}, s2, 64
        s_lshl_b32 s{sZO}, s{sB}, 12
        s_add_u32 s{sZO}, s{sZO}, {WS_HF}
        s_cmp_lt_u32 s{sB}, 64
        s_cselect_b32 s{sZO}, s{sZO}, {OOB}
        s_mul_i32 s{sD}, s{sJ}, {128*6144}
        s_sub_u32 s{sSD}, s{sP}, 2
        s_lshl_b32 s{sSD}, s{sSD}, 3
        s_add_u32 s{sSD}, s{sSD}, s{sX}
        s_lshl_b32 s{sSD}, s{sSD}, 7
        s_add_u32 s{sSD}, s{sSD}, s{sD}
        s_cmp_ge_u32 s{sP}, 2
        s_cselect_b32 s{sSD}, s{sSD}, {OOB - 0x10000}
        s_lshl_b32 s{sB}, s{sJ}, 8
        v_add_u32 v65, s{sB}, v65
        v_mov_b32 v6, 1
        v_and_b32 v4, 1, v2
        v_lshlrev_b32 v4, 7, v4""")
        self.ts0()
        if E_("SIDE", "0") == "0": self.run(self.side())
        self.run(self.wdma(1) + self.xdma(1))
        self.ts0()
        if E_("TS0"):
            k.waitvm([("x", 0), ("w", 0)], True); self.ts0()
            k.waitvm(["pf"], True); self.ts0()
            k("s_waitcnt vmcnt(0)"); self.ts0()
            k(f"""s_lshl_b32 s{sB}, s2, 2
            s_add_u32 s{sB}, s{sB}, s{sW}
            s_lshl_b32 s{sB}, s{sB}, 6
            s_add_u32 s{sB}, s{sB}, {WS_TS}
            v_lshlrev_b32 v5, 2, v2
            s_mov_b64 exec, 0xffff
            buffer_store_dword v255, v5, {srd(WS)}, s{sB} offen
            s_endpgm""")

    def side(self):
        return items(f"""buffer_load_dwordx2 v[66:67], v65, {srd(CS)}, 0 offen
        buffer_load_dwordx4 v[68:71], v64, {srd(WM)}, s{sSD} offen {NT}
        s_add_u32 s{sSD}, s{sSD}, 6144
        buffer_load_dwordx4 v[72:75], v64, {srd(WM)}, s{sSD} offen {NT}
        s_add_u32 s{sSD}, s{sSD}, 6144
        buffer_load_dwordx4 v[76:79], v64, {srd(WM)}, s{sSD} offen {NT}
        s_add_u32 s{sSD}, s{sSD}, 6144
        buffer_load_dwordx4 v[80:83], v64, {srd(WM)}, s{sSD} offen {NT}
        s_lshl_b32 s{sSD}, s2, 5
        s_add_u32 s{sSD}, s{sSD}, s{sW}
        s_lshl_b32 s{sSD}, s{sSD}, 8
        buffer_load_dwordx4 v[88:91], v86, {srd(XS)}, s{sSD} offen {NT}
        buffer_load_dwordx4 v[92:95], v86, {srd(XS)}, s{sSD} offen offset:128 {NT}""")
    XR = [R0, R1, R2]
    WSL = [R3, R3 + 16384, R4]
    WQB = [R4, R3, R3 + 16384, MISC, R0, R0 + 16384, R1, R1 + 16384]
    VQB = [R2, R0, R1, R2]
    def xdma(self, s):
        it = []
        for g in range(2):
            it += self.dma4(CKV, [16, 17, 18, 19], (sW8, self.XR[s % 3] + g * 4096), (sXB, s * 128 + g * 32768), ("x", s), True)
        return it
    def wdma(self, s): return self.dma4(WUK, [20, 21, 22, 23], (sW4, self.WSL[s % 3]), (sWB, s * 64 * 8192), ("w", s), True)
    def qdma(self, c): return self.dma4(WQ, [20, 21, 22, 23], (sW4, self.WQB[c]), (sQB, c * 64 * 8192), ("q", c), True)
    def vdma(self, c):
        it = []
        for g in range(2):
            it += self.dma4(WUV, [24, 25, 26, 27], (sW8, self.VQB[c] + g * 4096), (sVB, (c >> 1) * 128 + (c & 1) * 256 * 8192 + g * 4 * 65536), ("v", c), True, c < int(E_("VNT", "0")))
        return it

    def modA(self):
        C, T, AC = 102, 108, 120
        t = f"""v_lshlrev_b32 v{C}, 16, v66
        v_and_b32 v{C+1}, 0xffff0000, v66
        v_lshlrev_b32 v{C+2}, 16, v67
        v_and_b32 v{C+3}, 0xffff0000, v67
        """
        for i in range(4): t += f"v_mul_f32 v{T+i}, {H(-LOG2E)}, v{C+i}\n"
        for i in range(4): t += f"v_exp_f32 v{T+i}, v{T+i}\n"
        for i in range(4): t += f"v_add_f32 v{T+i}, 1.0, v{T+i}\n"
        for i in range(4): t += f"v_rcp_f32 v{T+i}, v{T+i}\n"
        for i in range(4): t += f"v_mul_f32 v{C+i}, v{C+i}, v{T+i}\n"
        t += f"""v_cvt_pk_bf16_f32 v{T}, v{C}, v{C+1}
        v_cvt_pk_bf16_f32 v{T+1}, v{C+2}, v{C+3}
        v_lshlrev_b32 v{C}, 16, v{T}
        v_and_b32 v{C+1}, 0xffff0000, v{T}
        v_lshlrev_b32 v{C+2}, 16, v{T+1}
        v_and_b32 v{C+3}, 0xffff0000, v{T+1}
        """
        for r in range(4):
            for i in range(4):
                a, b = T + 2 * (i & 1), T + 2 * (i & 1) + 1
                op = "v_mul_f32" if r == 0 else "v_fmac_f32"
                t += f"""v_lshlrev_b32 v{a}, 16, v{68+4*r+i}
                v_and_b32 v{b}, 0xffff0000, v{68+4*r+i}
                {op} v{AC+2*i}, v{a}, v{C+r}
                {op} v{AC+2*i+1}, v{b}, v{C+r}
                """
        for i in range(4): t += f"v_permlane32_swap_b32 v{AC+i}, v{AC+4+i}\n"
        for i in range(4): t += f"v_add_f32 v{AC+i}, v{AC+i}, v{AC+4+i}\n"
        for i in range(2): t += f"v_permlane16_swap_b32 v{AC+i}, v{AC+2+i}\n"
        for i in range(2): t += f"v_add_f32 v{AC+i}, v{AC+i}, v{AC+2+i}\n"
        for i in range(2): t += f"v_add_f32_dpp v{AC+i}, v{AC+i}, v{AC+i} row_ror:8 row_mask:0xf bank_mask:0xf\n"
        t += f"ds_write_b64 v98, v[{AC}:{AC+1}]\n"
        return items(t)
    def red16(self, b):
        t = ""
        for i in range(8): t += f"v_permlane32_swap_b32 v{b+i}, v{b+8+i}\n"
        for i in range(8): t += f"v_add_f32 v{b+i}, v{b+i}, v{b+8+i}\n"
        for i in range(4): t += f"v_permlane16_swap_b32 v{b+i}, v{b+4+i}\n"
        for i in range(4): t += f"v_add_f32 v{b+i}, v{b+i}, v{b+4+i}\n"
        for pat in ("quad_perm:[1,0,3,2]", "quad_perm:[2,3,0,1]", "row_half_mirror", "row_mirror"):
            for i in range(4): t += f"v_add_f32_dpp v{b+i}, v{b+i}, v{b+i} {pat} row_mask:0xf bank_mask:0xf\n"
        return t
    def modB(self):
        it = items(f"""v_lshrrev_b32 v87, 2, v1
        v_add_u32 v101, {MISC}, v87
        ds_read_b32 v102, v101
        ds_read_b32 v103, v101 offset:256
        ds_read_b32 v104, v101 offset:512
        ds_read_b32 v105, v101 offset:768""")
        it2 = items(f"""v_add_f32 v102, v102, v103
        v_add_f32 v104, v104, v105
        v_add_f32 v102, v102, v104""")
        it2.append(("m", f"buffer_store_dword v102, v87, {srd(WS)}, s{sMODO} offen {WT}", "mod"))
        return it, it2
    def red8(self, v, t):
        return f"""v_add_f32_dpp v{v}, v{v}, v{v} row_ror:8 row_mask:0xf bank_mask:0xf
        v_mov_b32 v{t}, v{v}
        v_permlane16_swap_b32 v{v}, v{t}
        v_add_f32 v{v}, v{v}, v{t}
        v_mov_b32 v{t}, v{v}
        v_permlane32_swap_b32 v{v}, v{t}
        v_add_f32 v{v}, v{v}, v{t}
        """
    XH = 64
    def lnA(self):
        X = self.XH
        t = ""
        for i in range(8): t += f"v_lshlrev_b32 v{X+2*i}, 16, v{88+i}\nv_and_b32 v{X+2*i+1}, 0xffff0000, v{88+i}\n"
        t += f"v_add_f32 v108, v{X}, v{X+1}\nv_add_f32 v109, v{X+2}, v{X+3}\n"
        for i in range(4, 16, 2): t += f"v_add_f32 v108, v108, v{X+i}\nv_add_f32 v109, v109, v{X+i+1}\n"
        t += "v_add_f32 v108, v108, v109\n" + self.red8(108, 110)
        t += f"v_mul_f32 v108, {H(1/128)}, v108\n"
        t += f"v_sub_f32 v110, v{X}, v108\nv_mul_f32 v109, v110, v110\n"
        for i in range(1, 16): t += f"v_sub_f32 v{110+(i&1)}, v{X+i}, v108\nv_fmac_f32 v109, v{110+(i&1)}, v{110+(i&1)}\n"
        t += self.red8(109, 110)
        t += "ds_write_b64 v100, v[108:109]\n"
        return items(t)
    def lnB(self):
        X = self.XH
        it = items(f"""ds_read_b128 v[88:91], v99
        ds_read_b128 v[92:95], v99 offset:16""")
        t = f"""v_add_f32 v108, v88, v90
        v_add_f32 v109, v92, v94
        v_add_f32 v108, v108, v109
        v_mul_f32 v108, {H(0.25)}, v108
        v_add_f32 v109, v89, v91
        v_add_f32 v110, v93, v95
        v_add_f32 v109, v109, v110
        v_sub_f32 v88, v88, v108
        v_sub_f32 v90, v90, v108
        v_sub_f32 v92, v92, v108
        v_sub_f32 v94, v94, v108
        v_mul_f32 v110, v88, v88
        v_fmac_f32 v110, v90, v90
        v_fmac_f32 v110, v92, v92
        v_fmac_f32 v110, v94, v94
        v_fmac_f32 v109, {H(128.0)}, v110
        v_mov_b32 v110, {H(1e-5)}
        v_fmac_f32 v110, {H(1/512)}, v109
        v_rsq_f32 v110, v110
        """
        for i in range(16): t += f"v_sub_f32 v{X+i}, v{X+i}, v108\n"
        for i in range(16): t += f"v_mul_f32 v{X+i}, v{X+i}, v110\n"
        return it, items(t)
    def lnC_loads(self):
        it = items(f"""v_and_b32 v96, 31, v2
        v_lshlrev_b32 v96, 4, v96
        v_lshrrev_b32 v97, 5, v2
        v_lshl_add_u32 v96, v97, 11, v96""")
        ld = []
        for q in range(4):
            ld += [("m", f"buffer_load_dwordx4 v[{80+4*q}:{83+4*q}], v96, {srd(WS)}, s{sLNP} offen")]
            if q < 3: ld += [("s", f"s_add_u32 s{sLNP}, s{sLNP}, 12288")]
        return it, ld
    def lnC_fin(self):
        t = ""
        for e in range(4): t += f"v_add_f32 v{80+e}, v{80+e}, v{84+e}\nv_add_f32 v{88+e}, v{88+e}, v{92+e}\n"
        for e in range(4): t += f"v_add_f32 v{80+e}, v{80+e}, v{88+e}\n"
        rnd = lambda: "".join(f"v_cvt_pk_bf16_f32 v{84+e}, v{80+2*e}, v{81+2*e}\n" for e in range(2)) + "".join(f"v_lshlrev_b32 v{80+2*e}, 16, v{84+e}\nv_and_b32 v{81+2*e}, 0xffff0000, v{84+e}\n" for e in range(2))
        t += "v_lshrrev_b32 v88, 5, v2\nv_cvt_f32_u32 v88, v88\n" + rnd()
        for e in range(4): t += f"v_add_f32 v{80+e}, v{80+e}, v88\n"
        t += rnd()
        for e in range(4): t += f"v_mul_f32 v{80+e}, {H(QSCALE)}, v{80+e}\n"
        t += f"""s_lshl_b32 s{sLNP}, s{sW}, 10
        s_add_u32 s{sLNP}, s{sLNP}, {MISC + 4096}
        v_add_u32 v88, s{sLNP}, v1
        v_add_u32 v18, s{sLNP}, v18
        ds_write_b128 v88, v[80:83]
        """
        return items(t)
    def lnC_rd(self, i):
        return [("l", f"ds_read_b128 v[{80+seg*8+hf*4}:{83+seg*8+hf*4}], v18 offset:{seg*512 + i*256 + hf*16}") for seg in range(2) for hf in range(2)]
    def lnC(self, i):
        X = self.XH + 8 * i
        t = ""
        for e in range(8): t += f"v_fma_f32 v{X+e}, v{X+e}, v{88+e}, v{80+e}\n"
        t2 = ""
        for e in range(4): t2 += f"v_cvt_pk_bf16_f32 v{X+e}, v{X+2*e}, v{X+2*e+1}\n"
        return items(t), items(t2) + [("m", f"buffer_store_dwordx4 v[{X}:{X+3}], v19, {srd(WS)}, s{sHST} offen offset:{2048*i} {WT}", "hst")]

    WF, VACC, ACC = 32, 64, 128
    def proj(self):
        k = self.k; WF, VACC, ACC = self.WF, self.VACC, self.ACC
        M = []
        def kmajor():
            for n in range(16):
                for dt in range(8):
                    for tt in range(4):
                        d = V(ACC + (tt * 8 + dt) * 4)
                        M.append(MF(d, V(WF + 4 * dt), A((n * 4 + tt) * 4), "0" if n == 0 else d))
        kmajor()
        V0 = len(M)
        VST = [(pc, sh, q) for pc in range(4) for sh in range(2) for q in range(4)]
        for i, (pc, sh, q) in enumerate(VST):
            for nt in range(2):
                for tt in range(4):
                    for h in range(2):
                        n = (pc & 1) * 8 + 2 * q + h
                        d = V(VACC + (1 - sh) * 32 + (nt * 4 + tt) * 4)
                        M.append(MF(d, A((n * 4 + tt) * 4), V(WF + ((i & 1) * 4 + nt * 2 + h) * 4), "0" if n == 0 else d))
        Q0 = len(M)
        kmajor()
        ph = Phase(k, M); N = len(M)
        def wread(base, n, dt):
            o = base + (n & 1) * 8192
            return [("l", f"ds_read_b64_tr_b16 v[{WF+4*dt}:{WF+4*dt+1}], v{8+dt} offset:{o}"),
                    ("l", f"ds_read_b64_tr_b16 v[{WF+4*dt+2}:{WF+4*dt+3}], v{8+dt} offset:{o+1024}")]
        def xread(n, tt):
            s = n >> 1; sl = s % 3
            va = (28 if sl < 2 else 30) + (n & 1)
            return ("l", f"ds_read_b128 {A((n*4+tt)*4)}, v{va} offset:{(sl if sl < 2 else 0)*32768 + tt*2048}")
        def vread(i, nt, h):
            pc, sh, q = VST[i]
            reg = self.VQB[pc]; va = 28 + 2 * sh + nt
            o = (reg if reg < R2 else 0) + (2 * q + h) * 4096
            f = WF + ((i & 1) * 4 + nt * 2 + h) * 4
            return [("l", f"ds_read_b64_tr_b16 v[{f}:{f+1}], v{va} offset:{o}"), ("l", f"ds_read_b64_tr_b16 v[{f+2}:{f+3}], v{va} offset:{o+512}")]
        BOFF = 40
        k.waitvm([("x", 0), ("w", 0)], True); k("s_barrier")
        self.ts()
        for it in wread(self.WSL[0] - R3, 0, 0): k(it[1])
        for tt in range(4): k(xread(0, tt)[1])
        for dt in range(1, 8):
            for it in wread(self.WSL[0] - R3, 0, dt): k(it[1])
        for s in range(7): ph.put("x", self.bar([("x", s + 1), ("w", s + 1)]), 64 * s + BOFF)
        ph.put("x", self.bar([("v", 0)]), 64 * 7 + BOFF)
        BV = [V0 + 128 * c + 110 for c in range(4)]
        for c in range(3): ph.put("x", self.bar([("v", c + 1)]), BV[c])
        ph.put("x", self.bar([("q", i) for i in range(4)]), BV[3])
        BQ = Q0 + 64 * 3 + BOFF
        ph.put("x", self.bar([("q", i) for i in range(4, 8)]), BQ)
        BE = Q0 + 32 * 15 + 10
        ph.put("x", self.bar([]), BE)
        for (G0, bases) in ((0, [self.WSL[s % 3] - R3 for s in range(8)]), (Q0, [b - R3 if b >= R3 else b for b in self.WQB])):
            for n in range(0 if G0 else 1, 16):
                for dt in range(8):
                    lo = G0 + 32 * (n - 1) + 4 * dt + 4
                    if n == 0: lo = max(BV[3] + 1, [Q0 - 24, Q0 - 16, Q0 - 8, Q0][dt >> 1])
                    elif n % 2 == 0 and (G0 == 0 or n == 8): lo = max(lo, G0 + 32 * (n - 2) + BOFF + 1)
                    pre = []
                    if G0 and n == 8: pre = [("v", f"v_subrev_u32 v{8+dt}, {R3}, v{8+dt}")]; lo -= 1
                    g = ph.stream(pre + wread(bases[n >> 1], n, dt), lo, G0 + 32 * n + 4 * dt - 6)
                    if n % 2 == 1 and (G0 == 0 or n in (7, 15)): assert g < (G0 + 32 * (n - 1) + BOFF if n < 15 or not G0 else BE), (n, dt, g)
        for n in range(1, 16):
            lo = 32 * (n - 1) + 2
            if n % 2 == 0: lo = 32 * (n - 2) + BOFF + 1
            gx = ph.stream([xread(n, tt) for tt in range(4)], lo, 32 * n - 6)
        vaddr = items(f"""v_and_b32 v16, 15, v2
        v_lshrrev_b32 v17, 4, v2
        v_lshrrev_b32 v29, 2, v16
        v_and_b32 v16, 3, v16
        v_lshl_add_u32 v28, v17, 3, v29
        v_lshlrev_b32 v28, 7, v28
        v_lshl_add_u32 v28, v16, 3, v28
        v_and_b32 v17, 1, v17
        v_lshrrev_b32 v29, 1, v29
        v_lshl_add_u32 v29, v17, 1, v29
        v_lshl_add_u32 v28, v29, 5, v28
        v_add_u32 v28, 65536, v28
        v_xor_b32 v29, 32, v28
        v_xor_b32 v30, 64, v28
        v_xor_b32 v31, 96, v28
        v_and_b32 v16, 15, v2
        v_lshlrev_b32 v16, 6, v16
        v_add_u32 v16, 65536, v16
        v_mad_i32_i24 v16, v17, s{sHFD}, v16
        v_and_b32 v17, 31, v2
        v_lshlrev_b32 v17, 6, v17""")
        g = ph.stream(vaddr, gx + 1)
        assert g <= 64 * 7 + BOFF + 6, g
        for i, (pc, sh, q) in enumerate(VST):
            g0 = V0 + 16 * i
            for nt in range(2):
                for h in range(2):
                    slot = (i & 1) * 4 + nt * 2 + h
                    if i < 2: lo = max(64 * 7 + BOFF + 1, V0 - 32 + 4 * slot + 4)
                    else: lo = g0 - 32 + 8 * nt + 8
                    if pc > 0: lo = max(lo, BV[pc - 1] + 1)
                    pre = []
                    if q == 0 and h == 0 and pc in (1, 3): pre = [("v", f"v_xor_b32 v{28+2*sh+nt}, 65536, v{28+2*sh+nt}")]; lo -= 1
                    g = ph.stream(pre + vread(i, nt, h), max(lo, gprev + 1) if (h and q == 0) else lo, g0 + 8 * nt - 4)
                    gprev = g
                    assert g < BV[pc], (i, g)
        first = self.wdma(2) + self.xdma(2)
        if E_("SIDE", "0") == "1": first = self.side() + first
        if E_("SIDE", "0") == "2": first = first + self.side()
        ph.stream(first, 0, BOFF - 1, sid=900)
        ph.stream(items("".join(f"s_mov_b32 s{d}, s{p}\ns_mov_b32 s{d+1}, s{p+1}\ns_mov_b32 s{d+2}, {512*3584}\n" for (d, p) in ((WG_, sPG), (WU_, sPG + 2)))), 120)
        for s in range(8):
            its = (self.wdma(s + 3) + self.xdma(s + 3)) if s < 5 else self.vdma(s - 5)
            if s == 7: its += self.qdma(0) + self.qdma(1)
            g = ph.stream(its, 64 * s + BOFF + 1, None, step=2 if s < 5 else 4, sid=900)
            assert g < (64 * (s + 1) + BOFF if s < 7 else BV[0]), (s, g)
        g = ph.stream(self.vdma(3) + self.qdma(2) + self.qdma(3), BV[0] + 1, None, step=5, sid=900); assert g < BV[1]
        ph.stream(self.qdma(4) + self.qdma(5), BV[1] + 1, None, step=6, sid=900)
        ph.stream(self.qdma(6) + self.qdma(7), BV[2] + 1, None, step=6, sid=900)
        m1, m2 = self.modB(); l1, l2 = self.lnB()
        zero = items(f"""v_mov_b32 v112, 0
        v_mov_b32 v113, 0
        v_mov_b32 v114, 0
        v_mov_b32 v115, 0
        v_lshlrev_b32 v116, 4, v0""") + [("m", f"buffer_store_dwordx4 v[112:115], v116, {srd(WS)}, s{sZO} offen {WT}", "zero")] + items(f"""v_min_u32 v116, 496, v116
        s_sub_u32 s{sZO}, s{sZO}, {WS_HF}
        s_lshr_b32 s{sZO}, s{sZO}, 3
        s_add_u32 s{sZO}, s{sZO}, {WS_LF}
        s_cmp_lt_u32 s{sZO}, {WS_LF + 0x8000}
        s_cselect_b32 s{sZO}, s{sZO}, {OOB}
        buffer_store_dwordx4 v[112:115], v116, {srd(WS)}, s{sZO} offen {WT}""", "zero")
        g = ph.stream(items(f"""v_lshlrev_b32 v117, 13, v2
        s_lshl_b32 s{sB}, s{sP}, 19
        s_and_b32 s{sC}, s{sW}, 1
        s_lshl_b32 s{sC}, s{sC}, 7
        s_add_u32 s{sB}, s{sB}, s{sC}"""), 60, sid=904)
        for w, gp in enumerate(int(x) for x in E_("TG", "102,166,230,294").split(",")):
            if E_("TM", "plain") == "none": continue
            first = f"buffer_load_dword a{240+2*w}, v117, {srd(WUV if w < 2 else WQ)}, s{sC} offen nt" if E_("TM", "plain") == "pair" else ""
            ph.put("x", f"""s_cmp_eq_u32 s{sW}, {w}
            s_cselect_b32 s{sC}, s{sB}, {OOB}
            {first}
            buffer_load_dword a{241+2*w}, v117, {srd(WUV if w < 2 else WQ)}, s{sC} offen offset:4""", gp, tag="pf")
        g = ph.stream(zero, BOFF + 10)
        g = ph.stream(self.modA(), int(E_("MG", "41")), sid=901, dense=int(E_("MD", "2")))
        b1 = (g - BOFF) // 64 + 1
        g0 = g
        ph.put("x", lambda k: k.waitvm(["zero"]), 64 * b1 + BOFF - 1)
        g = ph.stream(m1, 64 * b1 + BOFF + 1, sid=901, dense=1)
        g = ph.stream(m2[:-1], g + 6, sid=901)
        g = ph.put("x", m2[-1][1], g, tag="mod")
        g = ph.put("x", lambda k: k.waitvm(["mod"]), g + int(E_("ED", "60")))
        ph.put("x", f"buffer_atomic_add v6, v7, {srd(DBG)}, s{sEO} offen sc1", g, tag="flag")
        gl = ph.stream(self.lnA(), g0 + 1, sid=902)
        b2 = (gl - BOFF) // 64 + 1
        gl = ph.stream(l1, 64 * b2 + BOFF + 1, sid=902)
        gl = ph.stream(l2, gl + 8, sid=902)
        print("mod barrier", b1, "E at", g, "ln barrier", b2, "lnB end", gl, file=sys.stderr)
        a, ld = self.lnC_loads()
        gl = ph.stream(a, gl + 1, sid=902)
        gva = ph.stream(items("v_mov_b32 v18, v106\nv_mov_b32 v19, v107"), 64 * 5 + BOFF + 1, sid=902)
        PB = int(E_("PB", "5"))
        g = 64 * PB + BOFF
        assert gl < g + 30
        ph.put("x", f"buffer_load_dword v3, v4, {srd(DBG)}, s{sEP} offen {WT}", g - int(E_("PL", "50")))
        ph.put("x", self.poll_check(3, 4, DBG, f"s{sEP}", "E", target=f"s{sET}"), g - 1)
        ph.stream(items(f"""s_lshl_b32 s{sZO}, s2, 6
        s_add_u32 s{sZO}, s{sZO}, {WS_LF}
        buffer_store_dword v6, v7, {srd(WS)}, s{sZO} offen {WT}""", "flag"), g + 20)
        g = max(g, gl)
        g = ph.stream(ld, g + 1, sid=902); assert g < V0 - 2
        g = ph.stream(self.lnC_fin(), max(g + int(E_("PL2", "50")), gva + 1), sid=902, dense=int(E_("FD", "1")))
        for i in range(2):
            g = ph.stream(self.lnC_rd(i), g + (6 if i == 0 else 1), sid=902)
            a, b = self.lnC(i)
            g = ph.stream(a, g + 6, sid=902)
            g2 = ph.stream(b, g + 1, sid=902)
        assert g2 < V0 + 60, g2
        print("h stored at", g2, file=sys.stderr)
        g = ph.stream(self.flag_store(sHFO, ["hst"]), g2 + 70)
        def epi(b, off, vtype=False):
            it = [("v", f"v_cvt_pk_bf16_f32 v{b+i}, v{b+2*i}, v{b+2*i+1}") for i in range(4)]
            it.append(("s", f"s_xor_b32 s{sEPI}, s{sVX if vtype else sKVST}, {off & ~4095}"))
            it.append(("m", f"buffer_store_dwordx4 {V(b)}, v1, {srd(WS)}, s{sEPI} offen offset:{off & 4095} {WT}", "kv"))
            return it
        ep = []
        K1, K2, K3 = int(E_("K1", "17")), int(E_("K2", "14")), int(E_("K3", "24"))
        kst = [8 + K1 * i for i in range(11)] + [322 + 22 * i for i in range(5)]
        for tt in range(4):
            for u in range(4): ep.append((V0 + kst[tt * 4 + u], epi(ACC + (tt * 8 + 2 * u) * 4, tt * 4096 + u * 1024), Q0 - 4))
        for c in range(4):
            done = V0 + [192, 256, 448, 512][c]
            for nt in range(2):
                for kbl in range(2):
                    i = nt * 2 + kbl
                    lo = done + 6 + K2 * i if c < 2 else max(done + 6, V0 + 454 + K3 * (4 * (c - 2) + i))
                    ep.append((lo, epi(VACC + (1 - (c & 1)) * 32 + (nt * 4 + 2 * kbl) * 4, 32768 + kbl * 8192 + (2 * c + nt) * 1024, True), done + 62 if c < 2 else Q0 + 148))
        ep.sort(key=lambda e: e[0])
        g = 0
        for (lo, its, dl) in ep:
            g = ph.stream(its, max(lo, g + 1)); assert g < dl
        g = ph.stream(self.flag_store(sKFO, ["kv"]), g + int(E_("KVD", "60")))
        print("kv flag at", g - Q0, file=sys.stderr)
        HG = V0 + 384
        g = ph.stream([("m", f"buffer_load_dword v3, v16, {srd(WS)}, s{sHF1} offen {WT}")], HG - 44)
        ph.put("x", self.poll_check(3, 16, WS, f"s{sHF1}", "H"), HG)
        g = HG + 1
        for n in range(16):
            for tt in range(4):
                lo = max(HG + 64 + 16 * ((n - 8) // 2 + 1) if n >= 8 else 0, HG + 1 + 7 * (n * 4 + tt))
                off = (tt & 1) * 16384 + n * 1024
                g = ph.stream([("s", f"s_xor_b32 s{sHLD}, s{sH1 + (tt >> 1)}, {off & ~2047}"),
                               ("m", f"buffer_load_dwordx4 {A((n*4+tt)*4)}, v1, {srd(WS)}, s{sHLD} offen offset:{off & 2047}")], max(lo, g + 1))
        g = ph.stream(moe_setup(), V0 + 20)
        a, ld = late_mod_loads(self, 112)
        g = ph.stream(a + items(f"""v_and_b32 v119, 3, v2
        v_lshlrev_b32 v119, 9, v119
        s_lshr_b32 s{sEO}, s2, 6
        s_add_u32 s{sEO}, s{sEO}, 4
        s_lshl_b32 s{sEO}, s{sEO}, 5
        s_bfe_u32 s{sET}, s2, {3 | (3 << 16)}
        s_add_u32 s{sEO}, s{sEO}, s{sET}
        s_lshl_b32 s{sEO}, s{sEO}, 6
        s_add_u32 s{sEO}, s{sEO}, {WS_LF}
        buffer_load_dword v118, v119, {srd(WS)}, s{sEO} offen {WT}"""), Q0 + 150, sid=903)
        g = ph.put("x", self.poll_check(118, 119, WS, f"s{sEO}", "E2"), g + 50)
        g = ph.stream(ld, g + 1, sid=903)
        g = ph.stream(late_mod_fin(self, 112), g + 60, sid=903)
        KG = int(E_("KG", "30"))
        g = ph.stream([("m", f"buffer_load_dword v3, v17, {srd(WS)}, s{sKFP} offen {WT}")], BQ + KG - 40)
        ph.put("x", self.poll_check(3, 17, WS, f"s{sKFP}", "KV"), BQ + KG)
        its = []
        for (lds, so, tag) in ((R2, (sKV, 0), "k0"), (R3, (sKV, 32768), "v0"), (R4, (sKp, 0), "k1")):
            for g2 in range(2):
                its += self.dma4(WS, [1, 1, 1, 1], (sW8, lds + g2 * 4096), (so[0], so[1] + g2 * 4096), tag)
        g = ph.stream(its, BQ + KG + 1, None, step=int(E_("KST", "5")), sid=900)
        g2 = ph.stream(attn_setup(self), BQ + KG + 2)
        cl = cold_loads(120, sEPI)
        nf = [i for i, it in enumerate(cl) if it[0] == "m"][0]
        g2 = ph.stream(cl[:nf], g2 + 1, sid=905)
        g = ph.stream(cl[nf:], max(g, g2) + 1, sid=905)
        print("cold loads end at", g, file=sys.stderr)
        if self.TS:
            ph.put("x", self.ts, V0 - 1); ph.put("x", self.ts, Q0 - 1)
            for gp in (E_("TSP") or "").split(","):
                if gp: ph.put("x", lambda k: self.ts(k, True), int(gp))
        ph.emit()
        print("proj: overloaded placements", ph.over, file=sys.stderr)
        self.ts()


def build(stop=None):
    g = G()
    k = g.k
    g.startup(); g.proj()
    if stop != "proj":
        attention(g)
        if stop != "attn":
            oproj(g); tail(g)
    else:
        qdump(g)
    k.label("L_fin")
    if g.TS:
        if E_("TST"): g.ts(force=True)
        k("s_waitcnt vmcnt(0)"); g.ts(force=bool(E_("TST")))
        k(f"""s_lshl_b32 s{sB}, s2, 2
        s_add_u32 s{sB}, s{sB}, s{sW}
        s_lshl_b32 s{sB}, s{sB}, 6
        s_add_u32 s{sB}, s{sB}, {WS_TS}
        v_cmp_eq_u32 vcc, 0, v2
        v_mov_b32 v6, {OOB}
        s_nop 1
        v_cndmask_b32 v5, v6, v2, vcc""")
        for n in range(g.nts):
            k(f"v_mov_b32 v4, s{TSR[n]}\nbuffer_store_dword v4, v5, {srd(WS)}, s{sB} offen offset:{4*n}")
        if E_("TSDBG"):
            k(f"s_cmp_eq_u32 s2, {E_('TSDBG')}\ns_cselect_b32 s{sB}, 0, {OOB}\ns_cmp_eq_u32 s{sW}, 0\ns_cselect_b32 s{sB}, s{sB}, {OOB}")
            for n in range(1, g.nts):
                k(f"s_sub_u32 s{sC}, s{TSR[n]}, s{TSR[0]}\nv_mov_b32 v4, s{sC}\nbuffer_store_dword v4, v5, {srd(DBG)}, s{sB} offen offset:{4*n}")
    if E_("SPINT"):
        n = int(E_("SPINT"))
        if E_("SPINW"): k(f"s_cmp_lg_u32 s2, {E_('SPINW')}\ns_cbranch_scc1 L_end")
        k(f"s_add_u32 s{sC}, s{TSR[n]}, 10000")
        k.label("L_spint")
        k(f"s_memrealtime vcc\ns_waitcnt lgkmcnt(0)\ns_sub_u32 s{sB}, vcc_lo, s{sC}\ns_cmp_lt_i32 s{sB}, 0\ns_cbranch_scc1 L_spint")
    k.label("L_end")
    k("s_endpgm")
    lines = k.out + "\n".join(g.tail).split("\n") + ["L_code_end:", "    s_endpgm"]
    lines, nn = fix_hazards(lines, report=bool(E_("NOPS")))
    print("nops inserted:", nn, file=sys.stderr)
    hdr = open(os.path.join(HERE, "..", NAME + ".s.ref")).read().split("; Override launch geometry")[0]
    kn = NAME + "_kernel"
    text = hdr + f"""; @launch grid=(256,1,1) block=(256,1,1) lds=163840
.amdgcn_target "amdgcn-amd-amdhsa--gfx950"
.text
.globl {kn}
.p2align 8
.type {kn},@function
{kn}:
""" + "\n".join(lines) + f"""
.section .rodata,"a"
.p2align 6
.amdhsa_kernel {kn}
  .amdhsa_next_free_vgpr 512
  .amdhsa_next_free_sgpr 102
  .amdhsa_accum_offset 256
  .amdhsa_group_segment_fixed_size 0
  .amdhsa_kernarg_size 128
  .amdhsa_user_sgpr_count 2
  .amdhsa_user_sgpr_kernarg_segment_ptr 1
  .amdhsa_system_sgpr_workgroup_id_x 1
.end_amdhsa_kernel
"""
    return text, lines

if __name__ == "__main__":
    path = sys.argv[1] if len(sys.argv) > 1 else os.path.join(HERE, "..", NAME + ".s")
    text, lines = build(E_("STOP"))
    verify_all(lines)
    open(path, "w").write(text)
    print("wrote", path, len(text), file=sys.stderr)
```

```python
import re

_REG = re.compile(r"(?<![\w.])([vas])(?:\[(\d+):(\d+)\]|(\d+))(?![\w])|\b(vcc_lo|vcc_hi|vcc|exec_lo|exec_hi|exec|m0|scc)\b")
TRANS = ("v_exp_f32", "v_log_f32", "v_rcp_f32", "v_rsq_f32", "v_sqrt_f32", "v_sin_f32", "v_cos_f32")

def regs_of(tok):
    out = set()
    for m in _REG.finditer(tok):
        if m.group(5):
            r = m.group(5)
            out.add({"vcc_lo": "vcc", "vcc_hi": "vcc", "exec_lo": "exec", "exec_hi": "exec"}.get(r, r))
        elif m.group(4) is not None: out.add(m.group(1) + m.group(4))
        else:
            for i in range(int(m.group(2)), int(m.group(3)) + 1): out.add(m.group(1) + str(i))
    return out

class Ins:
    __slots__ = ("text", "mn", "kind", "dst", "src", "ops", "ab", "c", "dpp", "wide", "data", "target")
    def __init__(self, text):
        self.text = text
        t = text.split(";")[0].strip()
        self.dst = set(); self.src = set(); self.ab = set(); self.c = set(); self.dpp = False; self.wide = False; self.data = set(); self.target = None
        if not t or t.startswith("."): self.kind = "none"; self.mn = ""; self.ops = []; return
        if t.endswith(":"): self.kind = "label"; self.mn = t[:-1]; self.ops = []; return
        sp = t.split(None, 1)
        mn = self.mn = sp[0]
        ops = self.ops = [o.strip() for o in sp[1].split(",")] if len(sp) > 1 else []
        R = [regs_of(o) for o in ops]
        allr = set().union(*R) if R else set()
        if mn.startswith("v_mfma"):
            self.kind = "mfma"; self.dst = R[0]; self.ab = R[1] | R[2]; self.c = R[3]; self.src = self.ab | self.c
        elif mn.startswith("v_"):
            self.kind = "trans" if mn.replace("_e32", "").replace("_e64", "") in TRANS else "valu"
            self.dst = set(R[0]); self.src = set().union(*R[1:]) if len(R) > 1 else set()
            if mn.startswith(("v_fmac", "v_dot2c", "v_writelane", "v_pk_fmac")): self.src |= R[0]
            if mn.startswith("v_permlane"): self.dst |= R[1]; self.src |= R[0]
            if "_dpp" in mn or "row_" in t or "quad_perm" in t: self.dpp = True; self.src |= R[0] if "bound_ctrl" not in t else set()
            if mn.startswith(("v_add_co", "v_sub_co", "v_addc_co", "v_subb_co")): self.dst |= R[1]; self.src = set().union(*R[2:])
            if mn.startswith("v_cndmask") and len(ops) == 3: self.src.add("vcc")
        elif mn.startswith("ds_read") or mn.startswith("ds_bpermute") or mn.startswith("ds_swizzle"):
            self.kind = "lds_r"; self.dst = R[0]; self.src = set().union(*R[1:])
        elif mn.startswith("ds_"):
            self.kind = "lds_w"; self.src = allr
        elif mn.startswith(("buffer_load", "global_load")):
            if re.search(r"\blds\b", t): self.kind = "vm_dma"; self.src = allr | {"m0"}
            else: self.kind = "vm_load"; self.dst = R[0]; self.src = set().union(*R[1:])
        elif mn.startswith(("buffer_store", "global_store")):
            self.kind = "vm_store"; self.src = allr
            self.data = R[0] if mn.startswith("buffer") else R[1]
            self.wide = mn.endswith(("x3", "x4"))
        elif mn.startswith(("buffer_atomic", "global_atomic")):
            self.kind = "vm_store"; self.src = allr
            if " sc0" in t: self.kind = "vm_load"; self.dst = R[0]
        elif mn.startswith(("buffer_wbl2", "buffer_inv")):
            self.kind = "vm_store"
        elif mn == "s_waitcnt": self.kind = "wait"
        elif mn == "s_barrier": self.kind = "bar"
        elif mn == "s_nop": self.kind = "nop"
        elif mn.startswith(("s_load", "s_memtime", "s_memrealtime", "s_buffer_load")):
            self.kind = "smem"; self.dst = R[0]; self.src = set().union(*R[1:]) if len(R) > 1 else set()
        elif mn.startswith(("s_branch", "s_cbranch")):
            self.kind = "branch"; self.target = ops[0]
            if "scc" in mn: self.src = {"scc"}
            if "vcc" in mn: self.src = {"vcc"}
        elif mn in ("s_endpgm", "s_sleep", "s_setprio"): self.kind = "salu"
        elif mn.startswith("s_cmp") or mn.startswith("s_bitcmp"): self.kind = "salu"; self.src = allr; self.dst = {"scc"}
        elif mn.startswith("s_"):
            self.kind = "salu"; self.dst = set(R[0]); self.src = set().union(*R[1:]) if len(R) > 1 else set()
            if "saveexec" in mn: self.dst.add("exec")
            if not mn.startswith(("s_mov", "s_cselect", "s_mul", "s_getpc", "s_getreg", "s_bfm", "s_ff1", "s_brev", "s_sext")): self.dst.add("scc")
            if mn.startswith(("s_cselect", "s_addc", "s_subb")): self.src.add("scc")
        else:
            raise ValueError("cannot parse: " + text)
    def states(self):
        if self.kind in ("none", "label"): return 0
        if self.kind == "nop": return int(self.ops[0], 0) + 1
        return 1

class K:
    def __init__(self):
        self.out = []; self.vm = []; self.lg = []; self.nlab = 0
    def save(self): return (list(self.vm), list(self.lg))
    def restore(self, st): self.vm, self.lg = list(st[0]), list(st[1])
    def lab(self, base):
        self.nlab += 1; return f"L_{base}_{self.nlab}"
    def label(self, l): self.out.append(f"{l}:")
    def need(self, ins):
        touch = ins.src | ins.dst
        vn = ln = None
        for i in range(len(self.vm) - 1, -1, -1):
            if self.vm[i][0] & touch: vn = len(self.vm) - 1 - i; break
        for i in range(len(self.lg) - 1, -1, -1):
            if self.lg[i][0] & touch: ln = len(self.lg) - 1 - i; break
        if ln is not None and any(e[1] == "smem" for e in self.lg): ln = 0
        return vn, ln
    def wait(self, vn=None, ln=None):
        parts = []
        if vn is not None:
            vn = min(vn, 63)
            if vn < len(self.vm): parts.append(f"vmcnt({vn})"); self.vm = self.vm[len(self.vm) - vn:] if vn else []
        if ln is not None:
            ln = min(ln, 15)
            if ln < len(self.lg): parts.append(f"lgkmcnt({ln})"); self.lg = self.lg[len(self.lg) - ln:] if ln else []
        if parts: self.out.append("    s_waitcnt " + " ".join(parts))
        return bool(parts)
    def vmn(self, tags):
        if isinstance(tags, str) or isinstance(tags, tuple): tags = [tags]
        idx = [i for i, e in enumerate(self.vm) if e[1] in tags]
        return None if not idx else len(self.vm) - 1 - max(idx)
    def waitvm(self, tags, lgkm0=False): self.wait(self.vmn(tags), 0 if lgkm0 else None)
    def __call__(self, text, tag=None):
        for ln in text.strip("\n").split("\n"):
            ln = ln.strip()
            if not ln: continue
            ins = Ins(ln)
            if ins.kind == "label": self.out.append(ln); continue
            if ins.kind == "wait":
                m = re.search(r"vmcnt\((\d+)\)", ln)
                if m: n = int(m.group(1)); self.vm = self.vm[max(0, len(self.vm) - n):] if n else []
                m = re.search(r"lgkmcnt\((\d+)\)", ln)
                if m: n = int(m.group(1)); self.lg = self.lg[max(0, len(self.lg) - n):] if n else []
                self.out.append("    " + ln); continue
            vn, lnn = self.need(ins)
            if vn is not None or lnn is not None: self.wait(vn, lnn)
            self.out.append("    " + ln)
            if ins.kind in ("vm_load", "vm_dma", "vm_store"): self.vm.append((ins.dst, tag))
            elif ins.kind in ("lds_r", "lds_w"): self.lg.append((ins.dst, tag))
            elif ins.kind == "smem": self.lg.append((ins.dst, "smem"))

ORDER = {"s": 0, "l": 1, "m": 1, "v": 2, "e": 2, "x": 3}
class Phase:
    def __init__(self, k, mfmas):
        self.k = k; self.M = mfmas; n = len(mfmas)
        self.g = [[] for _ in range(n)]
        self.over = 0; self.sid = 0; self.nsid = 0; self.dense = 0; self.thin = False; self.mspace = 1; self.lat = None; self.batch = 0
    def fits(self, g, kind):
        it = [x[0] for x in self.g[g]]
        if kind == "x": return True
        if self.dense and kind in "vel":
            vec = it.count("l") + it.count("v") + 2 * it.count("e") + 2 * it.count("m")
            return vec + (2 if kind == "e" else 1) <= 2 + self.dense
        if "m" in it: return False
        if self.lat and kind != "e" and (g % self.lat[0] == self.lat[1]) != (kind == "m"): return False
        if kind == "m":
            for d in range(1, self.mspace):
                for h in (g - d, g + d):
                    if 0 <= h < len(self.g) and any(x[0] == "m" for x in self.g[h]): return False
            return not [x for x in it if x != "x"]
        ns = it.count("s"); vec = it.count("l") + it.count("v") + 2 * it.count("e") + max(0, ns - 1)
        if kind == "s": return ns == 0 or (vec < 2 and not self.thin)
        if kind == "l": return "l" not in it and vec < 2
        if kind == "v": return vec < 2 and not (self.thin and "v" in it)
        if kind == "e": return vec == 0
    def put(self, kind, payload, lo, hi=None, tag=None):
        n = len(self.M)
        if hi is None: hi = n - 1
        lo = max(0, min(lo, n - 1)); hi = max(lo, min(hi, n - 1))
        if kind in "sv" and not self.dense:
            for g in range(lo, min(hi, lo + 2) + 1):
                if self.g[g] and self.fits(g, kind): self.g[g].append((kind, payload, tag, self.sid)); return g
        for g in range(lo, hi + 1):
            if self.fits(g, kind): self.g[g].append((kind, payload, tag, self.sid)); return g
        self.over += 1
        g = min(range(lo, hi + 1), key=lambda g: (len(self.g[g]), g))
        self.g[g].append((kind, payload, tag, self.sid)); return g
    def stream(self, items, lo, hi=None, step=0, sid=None, dense=0):
        g = lo; pk = None; lastm = None
        if sid is None: self.nsid += 1; sid = self.nsid
        self.sid = sid; self.dense = dense
        for it in items:
            kind, payload = it[0], it[1]
            tag = it[2] if len(it) > 2 else None
            l = g
            if pk is not None and ORDER[kind] < ORDER[pk]: l = g + 1
            if pk is not None and ORDER[kind] == ORDER[pk] == 1: l = g + 1
            if pk == "s" and kind == "m": l = g + 1
            if len(it) > 3 and it[3] is not None: l = max(l, it[3])
            if step and kind == "m" and lastm is not None: l = max(l, lastm + step)
            if l > len(self.M) - 1:
                g = len(self.M) - 1; self.g[g].append(("x", payload, tag, sid)); pk = "x"; continue
            g = self.put(kind, payload, l, hi, tag); pk = kind
            if kind == "m": lastm = g
        self.sid = 0; self.dense = 0
        return g
    def show(self):
        return " ".join("".join(x[0] for x in sorted(g, key=lambda x: ORDER[x[0]])) or "." for g in self.g)
    def _do(self, payload, tag):
        if callable(payload): payload(self.k)
        else: self.k(payload, tag)
    def emit(self):
        k = self.k; n = len(self.M)
        import os, sys
        if os.environ.get("SHOW"):
            w = self.show().split(" ")
            for i in range(0, n, 32 if n > 40 else 40): print(f"{i:5d}", " ".join(w[i:i + (32 if n > 40 else 40)]), file=sys.stderr)
        lastw = {}; sw = {}; lcount = [0] * n
        def note(lines, sid):
            for ln in lines:
                ins = Ins(ln)
                if sid:
                    for r in ins.src:
                        if (sid, r) in sw and lastw.get(r) is not sw[(sid, r)]:
                            raise RuntimeError(f"stream {sid}: {r} read by '{ln.strip()}' was overwritten by '{lastw[r].text.strip()}'")
                for r in ins.dst:
                    lastw[r] = ins
                    if sid: sw[(sid, r)] = ins
        for i in range(n):
            k(self.M[i]); note([self.M[i]], 0)
            items = sorted(self.g[i], key=lambda x: ORDER[x[0]])
            kinds = [x[0] for x in items]
            if "m" not in kinds:
                j = i + 1; vn = ln = None
                while j < n:
                    a, b = k.need(Ins(self.M[j]))
                    if a is not None: vn = a if vn is None else min(vn, a)
                    if b is not None: ln = b if ln is None else min(ln, b)
                    if any(x[0] == "m" for x in self.g[j]) and j < i + 3: j += 1
                    else: break
                if ln is not None and self.batch and i >= self.batch:
                    young = sum(lcount[max(0, i - self.batch):i])
                    ln = min(ln, max(young, 0))
                k.wait(vn, ln)
            for (kind, payload, tag, sid) in items:
                p0 = len(k.out); self._do(payload, tag); note(k.out[p0:], sid)
                lcount[i] += sum(1 for x in k.out[p0:] if x.strip().startswith("ds_"))

def passes(ins): return 8 if "32x32" in ins.mn else 4
def hazard_need(prev, cur):
    need = 0
    pv = prev.kind in ("valu", "trans"); cv = cur.kind in ("valu", "trans")
    vd = {r for r in prev.dst if r[0] in "va" and r != "vcc"}
    sd = {r for r in prev.dst if (r[0] == "s" and r != "scc") or r == "vcc"}
    mem = cur.kind in ("lds_r", "lds_w", "vm_load", "vm_dma", "vm_store")
    if pv:
        if cur.kind == "mfma" and vd & cur.src: need = max(need, 2)
        if cv and cur.dpp and vd & cur.src: need = max(need, 2)
        if cv and cur.mn.startswith("v_permlane") and vd & cur.src: need = max(need, 2)
        if cv and cur.mn.startswith(("v_readlane", "v_readfirstlane")) and vd & cur.src: need = max(need, 1)
        if prev.kind == "trans" and cur.kind == "valu" and vd & cur.src: need = max(need, 1)
        if prev.kind == "trans" and mem and vd & cur.src: need = max(need, 1)
        if cv and sd & cur.src: need = max(need, 4 if cur.mn.startswith(("v_readlane", "v_writelane")) else 2)
        if cur.kind in ("vm_load", "vm_dma", "vm_store") and sd & cur.src: need = max(need, 5)
        if prev.mn.startswith(("v_dot2", "v_dot4")) and (cv or mem or cur.kind == "mfma") and vd & (cur.src | cur.dst):
            if not (cur.mn == prev.mn and vd & cur.dst and not vd & (regs_of(cur.ops[1]) | regs_of(cur.ops[2]))): need = max(need, 3)
    if prev.kind == "mfma":
        p = passes(prev)
        if cur.kind == "mfma":
            if prev.dst & cur.ab: need = max(need, 8 if p == 4 else 12)
            if prev.dst & cur.c and prev.dst != cur.c: need = max(need, 6 if p == 4 else 10)
        elif cv or mem:
            if prev.dst & (cur.src | cur.dst): need = max(need, 8 if p == 4 else 12)
            if cv and prev.c & cur.dst: need = max(need, 3 if p == 4 else 7)
    if prev.kind == "salu" and "m0" in prev.dst and cur.kind == "vm_dma": need = max(need, 1)
    if prev.kind == "vm_store" and prev.wide and prev.data & cur.dst: need = max(need, 2 if cv else 1)
    return need

def fix_hazards(lines, report=False):
    out = []; win = []
    nn = 0
    for ln in lines:
        ins = Ins(ln)
        if ins.kind in ("none", "label"): out.append(ln); continue
        short = 0
        for (p, d) in win:
            short = max(short, hazard_need(p, ins) - d)
        if short > 0:
            out.append(f"    s_nop {short-1}"); nn += 1
            if report: print("nop", short, "before", ln.strip())
            win = [(p, d + short) for (p, d) in win]
        out.append(ln)
        st = ins.states()
        win = [(p, d + st) for (p, d) in win if d + st < 14]
        win.append((ins, 0))
        if ins.mn == "s_branch" or ins.mn == "s_endpgm": win = []
    return out, nn

def trace(lines, decide, maxn=2000000):
    P = [Ins(l) for l in lines]
    lab = {p.mn: i for i, p in enumerate(P) if p.kind == "label"}
    i = 0; T = []; cnt = {}
    while i < len(P) and len(T) < maxn:
        p = P[i]
        if p.kind not in ("none", "label"): T.append(p)
        if p.mn == "s_endpgm": break
        if p.kind == "branch":
            if p.mn == "s_branch": i = lab[p.target]; continue
            c = cnt.get(p.target, 0); cnt[p.target] = c + 1
            if decide(p.target, c): i = lab[p.target]; continue
        i += 1
    return T

def verify(T):
    errs = []; win = []; vm = []; lg = []
    for n, ins in enumerate(T):
        for (p, d) in win:
            if hazard_need(p, ins) > d: errs.append(f"hazard {hazard_need(p, ins)}>{d}: '{p.text.strip()}' -> '{ins.text.strip()}'")
        if ins.kind == "wait":
            m = re.search(r"vmcnt\((\d+)\)", ins.text)
            if m: c = int(m.group(1)); vm = vm[max(0, len(vm) - c):] if c else []
            m = re.search(r"lgkmcnt\((\d+)\)", ins.text)
            if m:
                c = int(m.group(1))
                if c and any(e[1] for e in lg): pass
                else: lg = lg[max(0, len(lg) - c):] if c else []
        touch = ins.src | ins.dst
        for e in vm:
            if e[0] & touch: errs.append(f"vm not waited: '{e[2].text.strip()}' -> '{ins.text.strip()}'")
        for e in lg:
            if e[0] & touch: errs.append(f"lgkm not waited: '{e[2].text.strip()}' -> '{ins.text.strip()}'")
        if ins.kind in ("vm_load", "vm_dma", "vm_store"): vm.append((ins.dst, False, ins))
        elif ins.kind in ("lds_r", "lds_w"): lg.append((ins.dst, False, ins))
        elif ins.kind == "smem": lg.append((ins.dst, True, ins))
        st = ins.states()
        win = [(p, d + st) for (p, d) in win if d + st < 14]
        win.append((ins, 0))
    return errs
```

```python
import sys, os, struct
HERE = os.path.dirname(os.path.abspath(__file__))
sys.path.insert(0, HERE)
from asm import *
E_ = os.environ.get
NAME = "adaLN_cond__compressed_kv_cla__moe_arch_mod__prompt"
def f2u(f): return struct.unpack("<I", struct.pack("<f", f))[0]
def H(f): return f"{f2u(f):#x}"
LOG2E = 1.4426950408889634
QSCALE = LOG2E / (128.0 ** 0.5)
WT = "sc0 sc1"
NT = E_("NT", "")
WS_MOD, WS_MODP, WS_KEY, WS_ACT, WS_TS = 0x0, 0x4000, 0x10000, 0x14000, 0x20000
WS_HF, WS_KVF, WS_CF, WS_LF, WS_FF, WS_CAND = 0x100000, 0x110000, 0x120000, 0x140000, 0x144000, 0x80000
WS_H, WS_KV, WS_CTX, WS_P, WS_SIZE = 0x200000, 0x1000000, 0x3000000, 0x4000000, 0x10000000
KVS = 65536 + int(E_("KVPAD", "0"))
KVH = 16 * KVS + int(E_("KVPADH", "0"))
if KVH != 1 << 20: WS_KV = 0x6000000
OOB = 0x7ffff000
R0, R1, R2, R3, R4 = 0, 32768, 65536, 98304, 131072
MISC = R4 + 16384
sW, sX, sJ, sP, sH = 3, 4, 5, 6, 7
WS, CKV, WUK, WUV, WQ, WO, XS, DBG, WM, CS = 8, 12, 16, 20, 24, 28, 32, 36, 40, 44
WG_, WU_, WD_, OUT, WR_ = 40, 44, 48, 52, 56
def srd(s): return f"s[{s}:{s+3}]"
PTR = dict(x=64, ckv=66, wq=68, wuk=70, wuv=72, wo=74, wr=78, wg=80, wu=82, wd=84, c=86, wmod=88, out=90, dbg=92, ws=94)
sT1, sT2, sW8, sW4 = 60, 61, 62, 63
sXB, sWB, sA, sD, sB, sC = 96, 97, 98, 99, 100, 101
sVB, sKVST, sMODO, sMODA, sMODS, sEO, sLNP, sHST, sHFO, sKFO, sKFP, sH1, sH2, sHFD, sHF1, sEPI, sHLD, sKV, sKp = range(64, 83)
sE, sN1, sRem, sKm, sVm, sPF, sPB, sVo, sCLO, sCHI, sCFO, sCFP, sXC, sRedo, sRPL, sPO = 12, 13, 14, 15, 16, 17, 18, 19, 20, 21, 22, 23, 24, 25, 26, 27
sZO = 80
sSD, sPG = 79, 92
sMODO2 = 71
sET, sEP = 68, 67
sQB, sVX, sQR = 0, 1, 68
DV = E_("DV", "0") == "1"
sVL, sVFP, sVP, sVT, sVFA = 77, 0, 79, 80, 75
PFK = int(E_("PFK", "0"))
SPIN = 200000
def MF(d, a, b, c): return f"v_mfma_f32_16x16x32_bf16 {d}, {a}, {b}, {c}"
def V(i, n=4): return f"v[{i}:{i+n-1}]"
def A(i, n=4): return f"a[{i}:{i+n-1}]"
KMAP = {"valu": "v", "trans": "e", "salu": "s", "lds_r": "l", "lds_w": "l", "vm_load": "m", "vm_dma": "m", "vm_store": "m", "wait": "s", "nop": "s"}
def items(text, tag=None):
    out = []
    for ln in text.strip("\n").split("\n"):
        ln = ln.strip()
        if not ln or ln.startswith(";"): continue
        ins = Ins(ln)
        if "scc" in ins.src and out and out[-1][0] == "s": out[-1] = ("s", out[-1][1] + "\n" + ln, tag); continue
        out.append((KMAP[ins.kind], ln, tag))
    return out


def code_touch(lab, start, end, v, dst, nper):
    return [("x", f"""s_getpc_b64 s[{sB}:{sC}]
    {lab}:
    s_lshr_b32 s{sD}, s2, 3
    s_lshl_b32 s{sD}, s{sD}, 2
    s_add_u32 s{sD}, s{sD}, s{sW}
    s_mul_i32 s{sD}, s{sD}, {nper}
    v_min_u32 v{v}, {nper - 1}, v2
    v_add_u32 v{v}, s{sD}, v{v}
    v_lshlrev_b32 v{v}, 7, v{v}
    v_add_u32 v{v}, {start}-{lab}, v{v}
    v_min_u32 v{v}, {end}-{lab}, v{v}
    global_load_dword {dst}, v{v}, s[{sB}:{sC}]""", "pf")]
```

```python
from common import *
O_, S_, MK, CI, P_, LA = 128, 96, 80, 64, 48, 32
vMW, vQR, vK, vV0, vV1, vT1, vT2, vPO, vSEN, ONE = 16, 17, 18, 19, 20, 21, 22, 23, 24, 28
Q1, KF, VF, Q2, PRE = 64, 128, 160, 192, 0
BIG = 2.0 ** 100
LLO, LHI = 2.0 ** -64, 2.0 ** 80

def mask_items(dst, thr, grp):
    t = ""
    for qt in range(2):
        for kt in range(2):
            for r in range(4):
                d = dst + 8 * qt + 4 * kt + r
                c = 16 * kt + r - 16 * qt
                t += f"v_add_f32 v{d}, {H(-c * BIG) if c else '0'}, v{thr}\nv_min_f32 v{d}, v{d}, v{CI + (grp*2+qt)*4 + r}\n"
    return items(t)

def attn_setup(g):
    t = f"""s_and_b32 s{sB}, s{sW}, 1
    s_lshr_b32 s{sC}, s{sW}, 1
    s_lshl_b32 s{sVo}, s{sB}, 13
    s_add_u32 s{sVo}, s{sVo}, {R2}
    v_add_u32 v{vK}, s{sVo}, v1
    s_mul_i32 s{sVo}, s{sB}, 12288
    s_add_u32 s{sVo}, s{sVo}, {R3}
    v_add_u32 v{vV0}, s{sVo}, v1
    s_lshl_b32 s{sVo}, s{sB}, 12
    s_add_u32 s{sVo}, s{sVo}, {R3}
    v_add_u32 v{vV1}, s{sVo}, v1
    v_and_b32 v{vPO}, 15, v2
    v_lshrrev_b32 v{vSEN}, 4, v2
    v_lshlrev_b32 v{vSEN+1}, 2, v{vSEN}
    v_sub_u32 v{vSEN+1}, v{vPO}, v{vSEN+1}
    s_sub_i32 s{sVo}, s{sC}, s{sB}
    s_lshl_b32 s{sVo}, s{sVo}, 5
    v_add_u32 v{vT1}, s{sVo}, v{vSEN+1}
    s_add_u32 s{sVo}, s{sC}, s{sB}
    s_sub_i32 s{sVo}, 1, s{sVo}
    s_lshl_b32 s{sVo}, s{sVo}, 5
    v_add_u32 v{vT2}, s{sVo}, v{vSEN+1}
    v_cvt_f32_i32 v{vT1}, v{vT1}
    v_cvt_f32_i32 v{vT2}, v{vT2}
    v_add_f32 v{vT1}, 0.5, v{vT1}
    v_add_f32 v{vT2}, 0.5, v{vT2}
    v_mul_f32 v{vT1}, {H(BIG)}, v{vT1}
    v_mul_f32 v{vT2}, {H(BIG)}, v{vT2}
    v_lshrrev_b32 v{vSEN+1}, 2, v{vPO}
    v_and_b32 v{vPO}, 3, v{vPO}
    v_lshlrev_b32 v{vPO}, 6, v{vPO}
    v_lshl_add_u32 v{vPO}, v{vSEN+1}, 15, v{vPO}
    v_lshl_add_u32 v{vPO}, v{vSEN}, 4, v{vPO}
    s_lshl_b32 s{sPB}, s{sP}, 20
    s_lshl_b32 s{sVo}, s{sW}, 18
    s_add_u32 s{sPB}, s{sPB}, s{sVo}
    s_lshl_b32 s{sVo}, s{sH}, 10
    s_add_u32 s{sPB}, s{sPB}, s{sVo}
    s_add_u32 s{sPB}, s{sPB}, {WS_P}
    s_mov_b32 s{sN1}, s{sT1}
    s_mov_b32 s{sE}, 2
    s_mov_b32 s{sRedo}, 0
    s_mov_b32 s{sRPL}, 28
    s_mov_b32 s64, 128
    s_lshl_b32 s65, s{sJ}, {1 if E_('OROT', '1') == '1' else 31}
    s_and_b32 s65, s65, 7
    s_xor_b32 s65, s65, s{sW}
    s_lshl_b32 s65, s65, 16
    s_add_u32 s{sKm}, s{sW8}, {R2}
    s_add_u32 s{sVm}, s{sW8}, {R0}
    s_lshl_b32 s{sCLO}, s{sH}, 13
    s_lshl_b32 s{sVo}, s{sB}, 11
    s_add_u32 s{sCLO}, s{sCLO}, s{sVo}
    s_add_u32 s{sCLO}, s{sCLO}, {WS_CTX}
    s_sub_u32 s{sVo}, 3, s{sC}
    s_lshl_b32 s{sVo}, s{sVo}, 18
    s_add_u32 s{sCHI}, s{sCLO}, s{sVo}
    s_lshl_b32 s{sVo}, s{sC}, 18
    s_add_u32 s{sCLO}, s{sCLO}, s{sVo}
    s_add_u32 s{sCFO}, s{sHFO}, {WS_CF - WS_HF}
    s_and_b32 s{sCFP}, s2, {0xff & ~24}
    s_lshl_b32 s{sCFP}, s{sCFP}, 8
    s_sub_u32 s{sVo}, 3, s{sW}
    s_min_u32 s{sVo}, s{sVo}, s{sW}
    s_lshl_b32 s{sVo}, s{sVo}, 7
    s_add_u32 s{sCFP}, s{sCFP}, s{sVo}
    s_add_u32 s{sCFP}, s{sCFP}, {WS_CF}
    """
    t2 = f"""v_add_u32 v{vMW}, s{sW8}, v1
    v_and_b32 v{vQR}, {~8192 & 0xffffffff}, v{vMW}
    """
    for i in range(4): t2 += f"v_mov_b32 v{vSEN+i}, -1\nv_mov_b32 v{ONE+i}, 0x3f803f80\n"
    for i in range(16): t2 += f"v_mov_b32 v{CI+i}, 0\n"
    return items(t), items(t2) + first_c(1)

def first_c(tile, redo=False):
    if tile == 2: return mask_items(MK, vT1, 0)
    it = items(f"""s_cmp_eq_u32 s{sT1}, 0
    s_cselect_b32 s{sVo}, 0, {H(BIG*1024)}
    v_add_f32 v3, s{sVo}, v{vT1}""") + mask_items(S_, 3, 0)
    if redo: return it
    return it + items(f"""s_cmp_eq_u32 s{sT1}, 0
    s_cselect_b32 s{sVo}, 1.0, 0
    v_sub_f32 v3, v{vT2}, v{vT1}
    v_fma_f32 v3, s{sVo}, v3, v{vT1}""") + mask_items(MK, 3, 0)

def qk_m(Q, grp, S, C, order="kt"):
    M = []
    tl = [(0, 0), (1, 0), (0, 1), (1, 1)] if order == "kt" else [(0, 0), (0, 1), (1, 0), (1, 1)]
    for (qt, kt) in tl:
        d = S + 8 * qt + 4 * kt
        for u in range(4):
            c = V(d) if u else (V(CI + (grp * 2 + qt) * 4) if C is None else V(C + 8 * qt + 4 * kt))
            M.append(MF(V(d), A(KF + (kt * 4 + u) * 4), A(Q + (grp * 2 + qt) * 16 + u * 4), c))
    return M
def pv_m(grp, P, zero, order=range(8)):
    M = []
    for qt in range(2):
        d = V(LA + (grp * 2 + qt) * 4)
        M.append(MF(d, V(ONE), V(P + 4 * qt), "0" if zero else d))
    for n in order:
        for qt in range(2):
            d = V(O_ + grp * 64 + qt * 32 + n * 4)
            M.append(MF(d, A(VF + 4 * n), V(P + 4 * qt), "0" if zero else d))
    return M
def qread(Q, base, f): return f"ds_read_b128 {A(Q+4*f)}, v{vQR} offset:{base + f*1024}"
def kread(ab, f): return ("l", f"ds_read_b128 {A(KF+4*f)}, v{vK} offset:{ab*16384 + f*1024}")
def vread(ab, n): return ("l", f"ds_read_b128 {A(VF+4*n)}, v{vV0 if n < 4 else vV1} offset:{ab*16384 + n*1024}")
def sm_place(ph, S, P, g0=0, stride=2):
    ge = []
    for j in range(16): ge.append(ph.put("e", f"v_exp_f32 v{S+j}, v{S+j}", g0 + stride * j))
    return ge
def cvt_place(ph, S, P, ge):
    for i in range(8):
        lo = max(ge[2 * i], ge[2 * i + 1])
        if lo + 1 <= len(ph.M) - 1: ph.put("v", f"v_cvt_pk_bf16_f32 v{P+i}, v{S+2*i}, v{S+2*i+1}", lo + 1)
        else: ph.put("x", f"v_cvt_pk_bf16_f32 v{P+i}, v{S+2*i}, v{S+2*i+1}", lo)
def adv_items():
    return items(f"""s_add_u32 s{sVo}, s{sKp}, 32768
    s_sub_u32 s{sKp}, s{sE}, s{sN1}
    s_sub_u32 s{sKp}, s{sKp}, 1
    s_cmp_gt_u32 s{sE}, s{sN1}
    s_cselect_b32 s{sKp}, s{sKp}, s{sE}
    s_lshl_b32 s{sKp}, s{sKp}, 16
    s_add_u32 s{sKp}, s{sKp}, s{sKV}
    s_cmp_ge_u32 s{sE}, 17
    s_cselect_b32 s{sKp}, {OOB - 8192}, s{sKp}
    s_add_u32 s{sE}, s{sE}, 1""")
vL2 = 15
def lin8(sm, so, tog, tag):
    it = []
    for h in range(2):
        it.append(("s", f"s_add_u32 m0, s{sm}, {h*4096}"))
        for i in range(4): it.append(("m", f"buffer_load_dwordx4 v{vL2 if h else 1}, {srd(WS)}, s{so} offen offset:{i*1024} lds", tag))
    return it + [("s", f"s_xor_b32 s{sm}, s{sm}, {tog}")]
def kdma(g): return lin8(sKm, sKp, R2 ^ R4, "kd")
def vdma(g): return lin8(sVm, sVo, R3 ^ R0, "vd")
NPEEL = 8
def prefill_items(i):
    if E_("NOPRE"): return []
    return [("s", f"s_add_u32 s{sPO}, s{sPB}, {((i >> 3) << 23) + (i & 1) * 131072}"),
            ("m", f"buffer_store_dwordx4 {V(vSEN)}, v{vQR if E_('PLIN', '1') == '1' else vPO}, {srd(WS)}, s{sPO} offen offset:{((i >> 1) & 3) * 256} {WT}", "pre")]

DG = {"8": {"c": [3, 7, 11, 15, 19, 23, 27, 31], "d": [3, 7, 11, 15, 19, 23, 27, 31], "a": []},
      "7": {"c": [3, 7, 11, 15, 23, 27, 31], "d": [3, 7, 11, 15, 23, 27, 31], "a": [3, 7]},
      "6": {"c": [3, 7, 15, 19, 27, 31], "d": [0, 7, 11, 19, 23, 31], "a": [3, 7, 15, 19]}}[E_("DG", "7")]
def kv_items(g, name):
    seq = kdma(g) + vdma(g)
    groups = []; pre = []
    for it in seq:
        if it[0] == "m": groups.append([pre, it]); pre = []
        else: pre = pre + [it]
    groups.append([pre, None])
    n0 = {"c": 0, "d": len(DG["c"]), "a": len(DG["c"]) + len(DG["d"])}[name]
    return [(gp, groups[n0 + i][1], groups[n0 + i + 1][0]) for i, gp in enumerate(DG[name])], groups[0][0]
def place_kv(g, ph, name, limit=16):
    lst, first = kv_items(g, name)
    n0 = {"c": 0, "d": len(DG["c"]), "a": len(DG["c"]) + len(DG["d"])}[name]
    if name == "c": ph.stream(first, 0, 1)
    for i, (gp, dma, post) in enumerate(lst):
        if n0 + i >= limit: break
        ph.put("m", dma[1], gp, gp, tag=dma[2])
        ph.stream(post, gp + 1, gp + 2)

def slot(g, Q, name, zero=False, Cm=None, extra=None, dma=True):
    S0, S1, P0, P1 = S_, S_ + 16, P_, P_ + 8
    qk, sm, pv = {"a": ((0, S0), (S1, P1), (0, P0)), "b": ((1, S1), (S0, P0), (1, P1)),
                  "c": ((0, S0), (S1, P1), (0, P0)), "d": ((1, S1), (S0, P0), (1, P1))}[name]
    M = qk_m(Q, qk[0], qk[1], Cm) + pv_m(pv[0], pv[1], zero)
    ph = Phase(g.k, M)
    ge = sm_place(ph, *sm, g0=2 if name != "b" else 0)
    if name in "ac":
        for n, gp in enumerate([0, 1, 5, 9, 13, 17, 21, 25]): ph.put(*vread(1 if name == "a" else 0, n), gp, gp)
    if name == "b":
        for f in range(8): ph.put(*kread(1, f), 9 + 2 * f)
    if name == "d":
        for f in range(8): ph.put(*kread(0, f), 5 + 4 * f, 5 + 4 * f)
    if dma and name != "b": place_kv(g, ph, name)
    cvt_place(ph, *sm, ge)
    if name == "a": ph.stream(items(f"v_xor_b32 v{vV0}, {R3 ^ R0}, v{vV0}\nv_xor_b32 v{vV1}, {R3 ^ R0}, v{vV1}"), 29)
    if name == "b": ph.put("v", f"v_xor_b32 v{vK}, {R2 ^ R4}, v{vK}", 27)
    if extra: extra(ph)
    ph.emit()

def tile(g, T):
    import gen_tail as GT
    k = g.k
    Q = Q1 if T == 1 else Q2
    sT = sT1 if T == 1 else sT2
    S0, S1, P0, P1 = S_, S_ + 16, P_, P_ + 8
    L = f"L_t{T}"
    def prologue(k, first):
        M = qk_m(Q, 0, S0, S0 if T == 1 else None, order="qt") + qk_m(Q, 1, S1, None)
        ph = Phase(k, M)
        if first:
            for f in range(8, 16): ph.put("l", qread(Q1, R0, f), f - 8, f - 8)
            for f in range(16): ph.g[8 + f].append(("l", qread(Q2, R1, f), None, 0))
        ge = []
        for j in range(16):
            gp = 4 * (j // 4) + 8 + (j % 4); ph.g[gp].append(("e", f"v_exp_f32 v{S0+j}, v{S0+j}", None, 0)); ge.append(gp)
        for f in range(8): g1 = ph.put(*kread(1, f), 24 + f, 24 + f)
        ph.put("x", f"v_xor_b32 v{vK}, {R2 ^ R4}, v{vK}", 31)
        if first: ph.put("x", f"""v_lshrrev_b32 v{vQR}, 4, v2
        v_lshlrev_b32 v{vQR}, 15, v{vQR}
        v_and_b32 v14, 255, v1
        v_add_u32 v{vQR}, v{vQR}, v14""", 31)
        ph.stream(adv_items() + items(f"s_sub_u32 s{sRem}, s{sT}, {1 if T == 1 else NPEEL}"), 0)
        cvt_place(ph, S0, P0, ge)
        ph.emit()
    if T == 1:
        k2 = K(); k2.label(L + "_start"); prologue(k2, False); k2(f"s_branch {L}_p1")
        g.tail.append("\n".join(k2.out))
        prologue(k, True); k.label(L + "_p1")
    else:
        k.label(L + "_start"); prologue(k, False)
    k.waitvm(["kd", "vd", "k1", "v0"], True); k("s_barrier")
    if E_("TSA") == "r" and T == 2 or E_("TSA") == "m1" and T == 2: g.ts(force=True)
    if T == 1: k.vm = []
    st_bar = k.save()
    if T == 1:
        k(f"s_cmp_eq_u32 s{sT1}, 0\ns_cbranch_scc1 {L}_zero")
    slot(g, Q, "c", zero=True)
    slot(g, Q, "d", zero=True)
    if T == 2:
        for r in range(1, NPEEL):
            slot(g, Q, "a", extra=lambda ph: GT.peel_a(g, ph, r))
            def fb(ph): ph.stream(adv_items(), 10); GT.peel_b(g, ph, r)
            slot(g, Q, "b", extra=fb)
            k.waitvm(["kd", "vd", "ctx"] + (["pre"] if r == 4 else []), True); k("s_barrier")
            if E_("TSA") == "r": g.ts(force=True)
            if r == 1: g.run(g.flag_store(sCFO, []))
            slot(g, Q, "c")
            slot(g, Q, "d")
        k.vm = [e for e in k.vm if e[1] in ("kd", "vd")]
    if T == 1 or NPEEL == 8: k(f"s_cmp_eq_u32 s{sRem}, 0\ns_cbranch_scc1 {L}_diag")
    st_d = k.save()
    k.out.append(".p2align 3")
    k.label(L + "_loop")
    slot(g, Q, "a")
    slot(g, Q, "b", extra=lambda ph: ph.stream(adv_items(), 10))
    k.waitvm(["kd", "vd"], True); k("s_barrier")
    k.vm = []
    slot(g, Q, "c")
    slot(g, Q, "d", extra=lambda ph: ph.put("s", f"s_sub_u32 s{sRem}, s{sRem}, 1", 26))
    k(f"s_cmp_lg_u32 s{sRem}, 0\ns_cbranch_scc1 {L}_loop")
    assert [e[1] for e in k.vm] == [e[1] for e in st_d[0]] and [e[0] for e in k.lg] == [e[0] for e in st_d[1]]
    k.label(L + "_diag")
    TM = lambda: g.ts(force=True) if E_("TSA") == f"m{T}" or (E_("TSA") == "r" and T == 2) else None
    TM()
    m2 = mask_items(MK, vT2, 1)
    def xa(ph):
        if T == 2: GT.diag_a(g, ph)
        ph.stream(m2[:10], 17)
    slot(g, Q, "a", Cm=MK, extra=xa)
    def xb(ph):
        if T == 1: ph.stream(adv_items(), 10)
        else: GT.diag_b(g, ph)
        ph.stream(m2[10:], 1)
    slot(g, Q, "b", extra=xb)
    k.waitvm(["kd", "vd", "pre"], True); k("s_barrier")
    if T == 1: k.restore(st_bar)
    TM()
    NO = [4, 5, 6, 7, 0, 1, 2, 3]
    snd = lambda grp, va, base: [("l", f"ds_write_b128 v{va}, {V(O_ + grp*64 + (i&1)*32 + 16 + (i>>1)*4)} offset:{base + i*1024}") for i in range(8)]
    rcv = lambda grp, va, base: [("l", f"ds_read_b128 {V(O_ + grp*64 + (i&1)*32 + 16 + (i>>1)*4)}, v{va} offset:{base + i*1024}") for i in range(8)]
    vS, RS = (vMW, R1) if T == 1 else (11, 0)
    def big(k, zero):
        ph = Phase(k, qk_m(Q, 1, S0, MK, order="qt") + pv_m(0, P0, zero, NO) + pv_m(1, P1, zero, NO))
        for i, n in enumerate(NO): ph.put(*vread(0, n), [0, 1, 4, 7, 10, 13, 16, 19][i], [0, 1, 4, 7, 10, 13, 16, 19][i])
        for i, n in enumerate(NO): ph.put(*vread(1, n), min(51, 37 + 2 * i), min(51, 37 + 2 * i))
        for i, it in enumerate(snd(0, vS, RS)): ph.put("l", it[1], [24, 27, 30, 33, 36, 40, 44, 48][i], [24, 27, 30, 33, 36, 40, 44, 48][i])
        ge1 = []
        for j in range(16): ge1.append(ph.put("e", f"v_exp_f32 v{S1+j}, v{S1+j}", (ge1[-1] if ge1 else 1) + 1))
        ge2 = []
        for j, gp in enumerate([25, 26, 28, 29, 31, 32, 34, 35, 37, 38, 39, 41, 42, 43, 45, 46]): ge2.append(ph.put("e", f"v_exp_f32 v{S0+j}, v{S0+j}", gp, gp))
        for i in range(8): ph.put("v", f"v_cvt_pk_bf16_f32 v{P1+i}, v{S1+2*i}, v{S1+2*i+1}", ge1[2 * i + 1] + 1, 30)
        for i in range(8): ph.put("v", f"v_cvt_pk_bf16_f32 v{P0+i}, v{S0+2*i}, v{S0+2*i+1}", [36, 40, 44, 47, 48, 49, 50, 50][i], [36, 40, 44, 47, 48, 49, 50, 50][i])
        lz = f"s_xor_b32 s{sB}, s{sVm}, 8192" if T == 1 else f"s_xor_b32 s{sB}, s{sW8}, {8192 + R0}"
        hz = f"s_xor_b32 s{sC}, s{sVm}, {R3 ^ R0}" if T == 1 else f"s_add_u32 s{sC}, s{sW8}, {R3}"
        ph.stream(items(f"""{lz}
        v_lshrrev_b32 v13, 1, v1
        v_add_u32 v12, s{sB}, v13"""), 0)
        gl = [2, 6, 11, 15, 20, 23, 29, 34]; gi = 0
        for it in (kdma(g) if T == 1 else GT.wodma(g, 1)):
            if it[0] == "m": ph.g[gl[gi]].append(("m", it[1], it[2], 0)); gi += 1
            else: ph.put("s", it[1], gl[gi - 1] + 1 if gi else 0, gl[gi] - 1 if gi < 8 else None)
        ph.put("v", f"v_mov_b32 v{LA+1}, v{LA+4}", 33, 33)
        ph.put("x", f"""ds_write_b64 v12, v[{LA}:{LA+1}]
        {hz}
        v_xor_b32 v12, 8192, v12
        v_add_u32 v9, s{sC}, v1
        v_xor_b32 v8, 8192, v{vS}
        v_xor_b32 v10, 8192, v9""", 51)
        ph.emit()
    if T == 1:
        k2 = K(); k2.label(L + "_zero"); big(k2, True); k2(f"s_branch {L}_join")
        g.tail.append("\n".join(k2.out))
    big(k, False)
    k.label(L + "_join")
    g.ts(); TM()
    k(f"""v_xor_b32 v{vV0}, {R3 ^ R0}, v{vV0}
    v_xor_b32 v{vV1}, {R3 ^ R0}, v{vV1}
    s_waitcnt lgkmcnt(0)
    s_barrier""")
    TM()
    RL = S1
    ph = Phase(k, pv_m(1, P0, False, NO))
    ph.stream([("l", f"ds_read_b64 v[{RL+8}:{RL+9}], v12")] + rcv(0, 8, RS), 0)
    ph.stream(items(f"""s_lshl_b32 s{sB}, s{sT}, 20
    s_add_u32 s{sC}, s{sB}, s{sCHI}
    s_add_u32 s{sB}, s{sB}, s{sCLO}
    v_lshrrev_b32 v11, 4, v2
    v_lshrrev_b32 v13, 2, v1
    v_add_u32 v13, {R1 if T == 1 else R4}, v13
    s_xor_b32 s{sD}, s{sW8}, 8192
    v_add_u32 v14, s{sD}, v13
    v_cmp_eq_u32 vcc, 1, v11
    v_add_f32 v{RL}, v{RL+8}, v{LA}
    v_add_f32 v{RL+2}, v{RL+9}, v{LA+4}
    v_cndmask_b32 v12, v{LA}, v{LA+4}, vcc
    v_rcp_f32 v{RL}, v{RL}
    v_rcp_f32 v{RL+2}, v{RL+2}
    v_cmp_eq_u32 vcc, 2, v11
    v_cmp_eq_u32 s[{sXB}:{sXB+1}], 3, v11"""), 0)
    sn = snd(1, 9, 0)
    for i in range(3): ph.put("l", sn[i][1], 12 + 2 * i, 12 + 2 * i)
    ph.emit()
    TM()
    def fin(grp):
        out = []
        for qt in range(2):
            b = O_ + grp * 64 + qt * 32; r = RL + 2 * (grp * 2 + qt)
            so = sC if grp else sB
            for u in range(2):
                c = b + 8 * u
                for i in range(0, 8, 2): out.append(("v", f"v_pk_add_f32 v[{c+i}:{c+i+1}], v[{c+i}:{c+i+1}], v[{c+16+i}:{c+16+i+1}]"))
                for i in range(0, 8, 2): out.append(("v", f"v_pk_mul_f32 v[{c+i}:{c+i+1}], v[{c+i}:{c+i+1}], v[{r}:{r+1}] op_sel_hi:[1,0]"))
                for i in range(4): out.append(("v", f"v_cvt_pk_bf16_f32 v{c+i}, v{c+2*i}, v{c+2*i+1}"))
                out.append(("m", f"buffer_store_dwordx4 {V(c)}, v{vL2 if qt else 1}, {srd(WS)}, s{so} offen offset:{u*1024} {E_('CXP', WT)}", "ctx"))
        return out
    ex = GT.merge_x(g) if T == 2 else vdma(g)
    lo = fin(0)
    k(f"""v_cndmask_b32 v12, v12, v{LA+8}, vcc
    v_cndmask_b32 v12, v12, v{LA+12}, s[{sXB}:{sXB+1}]""")
    ne = len(ex) // 2 if T == 1 else len(ex)
    for i in range(5):
        g.run([sn[3 + i]] + lo[i * 11:(i + 1) * 11] + ex[i * ne // 5:(i + 1) * ne // 5])
    k(f"""ds_write_b32 v14, v12
    v_and_b32 v14, {~192 & 0xffffffff}, v13
    v_add_u32 v14, s{sW8}, v14""")
    if E_("TSA") != "r": TM()
    k("s_waitcnt lgkmcnt(0)\ns_barrier")
    TM()
    k(f"ds_read_b32 v{RL+4}, v14 offset:128\nds_read_b32 v{RL+6}, v14 offset:192")
    rc = rcv(1, 10, 0)
    g.run([rc[i] for i in (0, 2, 4, 6, 1, 3, 5, 7)])
    for w in range(4): k(f"ds_read_b32 v{RL+8+w}, v13 offset:{w*8192}")
    k(f"""v_add_f32 v{RL+4}, v{RL+4}, v{LA+8}
    v_add_f32 v{RL+6}, v{RL+6}, v{LA+12}
    v_rcp_f32 v{RL+4}, v{RL+4}
    v_rcp_f32 v{RL+6}, v{RL+6}""")
    hi = fin(1); ex = ex[ne:]
    nxt = [kread(0, f) for f in range(8)] if T == 1 else GT.oread(0) + GT.oread(1)
    for i in range(4):
        g.run(hi[i * 13:(i + 1) * 13] + ex[i * len(ex) // 4:(i + 1) * len(ex) // 4])
        if i == 1:
            k(f"""v_add_f32 v{RL+8}, v{RL+8}, v{RL+9}
            v_add_f32 v{RL+10}, v{RL+10}, v{RL+11}
            v_min_f32 v{RL+12}, v{RL+8}, v{RL+10}
            v_add_f32 v{RL+8}, v{RL+8}, v{RL+10}
            v_cmp_le_f32 vcc, {H(LLO)}, v{RL+12}
            s_mov_b64 s[{sXB}:{sXB+1}], vcc
            v_cmp_ge_f32 vcc, {H(LHI)}, v{RL+8}
            s_and_b64 s[{sXB}:{sXB+1}], s[{sXB}:{sXB+1}], vcc
            s_cmp_eq_u64 s[{sXB}:{sXB+1}], -1
            s_cselect_b32 s{sXB}, s{sRedo}, 1
            s_cmp_lg_u32 s{sXB}, 0
            s_cbranch_scc1 {L}_redo""")
            k.label(L + "_safe")
        if i >= 2: g.run(nxt[(i - 2) * len(nxt) // 2:(i - 1) * len(nxt) // 2])
    redo(g, T)
    g.ts(); TM()

def redo(g, T):
    L = f"L_t{T}"
    Q = Q1 if T == 1 else Q2
    sT = sT1 if T == 1 else sT2
    k = K(); S0, S1, MX = S_, S_ + 16, P_
    k.label(L + "_redo")
    k(f"s_cmp_eq_u32 s{sRedo}, 0\ns_cbranch_scc1 {L}_max\ns_mov_b32 s{sRedo}, 0")
    for i in range(16): k(f"v_mov_b32 v{CI+i}, 0")
    k(f"s_nop 1\ns_branch {L}_safe")
    k.label(L + "_max")
    k(f"""s_waitcnt vmcnt(0) lgkmcnt(0)
    s_barrier
    s_mov_b32 s{sRedo}, 1
    s_and_b32 s{sB}, s{sW}, 1
    s_lshl_b32 s{sB}, s{sB}, 13
    s_sub_u32 s{sC}, s{sKV}, s{sW8}
    s_add_u32 s{sC}, s{sC}, s{sB}
    s_mov_b32 s{sRem}, s{sT}""")
    if T == 2:
        k(f"s_mov_b32 s{sRPL}, 0")
        for i in range(4): k(f"v_mov_b32 v{vSEN+i}, -1")
    for t in range(4): k(f"v_mov_b32 v{MX+t}, 0xff800000")
    def kld(ab):
        k(f"s_add_u32 s{sB}, s{sC}, {ab*16384}")
        for f in range(8): k(f"buffer_load_dwordx4 {A(KF+4*f)}, v{vL2 if f >= 4 else 1}, {srd(WS)}, s{sB} offen offset:{(f&3)*1024}")
    def blk(grp, S, C):
        for m in qk_m(Q, grp, S, C): k(m)
    def mx(grp, S):
        for qt in range(2):
            for i in range(0, 8, 2): k(f"v_max3_f32 v{MX+grp*2+qt}, v{MX+grp*2+qt}, v{S+8*qt+i}, v{S+8*qt+i+1}")
    k.label(L + "_maxl")
    k(f"s_cmp_eq_u32 s{sRem}, 0\ns_cbranch_scc1 {L}_maxd")
    for ab in range(2):
        kld(ab); blk(0, S0, None); blk(1, S1, None); mx(0, S0); mx(1, S1)
    k(f"s_add_u32 s{sC}, s{sC}, 65536\ns_sub_u32 s{sRem}, s{sRem}, 1\ns_nop 7\ns_branch {L}_maxl")
    k.label(L + "_maxd")
    kld(0)
    for it in mask_items(MK, vT1, 0): k(it[1])
    blk(0, S0, MK); blk(1, S1, None); mx(0, S0); mx(1, S1)
    kld(1)
    for it in mask_items(MK, vT2, 1): k(it[1])
    blk(1, S0, MK); mx(1, S0)
    for sw in ("v_permlane16_swap_b32", "v_permlane32_swap_b32"):
        for t in range(4): k(f"v_mov_b32 v{MX+4+t}, v{MX+t}")
        for t in range(4): k(f"{sw} v{MX+t}, v{MX+4+t}")
        for t in range(4): k(f"v_max_f32 v{MX+t}, v{MX+t}, v{MX+4+t}")
    k(f"""ds_write_b128 v{vMW}, {V(MX)} offset:{R1}
    v_xor_b32 v8, 8192, v{vMW}
    s_waitcnt lgkmcnt(0)
    s_barrier
    ds_read_b128 {V(MX+4)}, v8 offset:{R1}""")
    for t in range(4): k(f"v_max_f32 v{MX+t}, v{MX+t}, v{MX+4+t}")
    for t in range(4):
        for r in range(4): k(f"v_sub_f32 v{CI+4*t+r}, 0, v{MX+t}")
    k(f"s_mov_b32 s{sE}, 0" if T == 1 else f"s_add_u32 s{sE}, s{sN1}, 1")
    k(f"""s_and_b32 s{sB}, s{sE}, 1
    s_mul_i32 s{sKm}, s{sB}, {R2 ^ R4}
    s_xor_b32 s{sKm}, s{sKm}, {R2}
    s_mul_i32 s{sVm}, s{sB}, {R3 ^ R0}
    s_xor_b32 s{sVm}, s{sVm}, {R3}
    v_and_b32 v{vK}, 0x7fff, v{vK}
    v_or_b32 v{vK}, s{sKm}, v{vK}
    v_and_b32 v{vV0}, 0x7fff, v{vV0}
    v_or_b32 v{vV0}, s{sVm}, v{vV0}
    v_and_b32 v{vV1}, 0x7fff, v{vV1}
    v_or_b32 v{vV1}, s{sVm}, v{vV1}
    s_add_u32 s{sKm}, s{sKm}, s{sW8}
    s_add_u32 s{sVm}, s{sVm}, s{sW8}
    s_add_u32 s{sE}, s{sE}, 2
    s_mov_b32 s{sKp}, s{sKV}
    s_add_u32 s{sVo}, s{sKV}, 32768""")
    for it in kdma(g) + vdma(g): k(it[1])
    k(f"""s_min_u32 s{sKp}, s{sT}, 1
    s_lshl_b32 s{sKp}, s{sKp}, 16
    s_add_u32 s{sKp}, s{sKp}, s{sKV}""")
    for it in kdma(g): k(it[1])
    if T == 1:
        for it in first_c(1, True) + mask_items(MK, vT2, 1): k(it[1])
        k(f"s_cmp_eq_u32 s{sT1}, 0\ns_cbranch_scc1 {L}_mk")
        for it in mask_items(MK, vT1, 0): k(it[1])
        k.label(L + "_mk")
    k("s_waitcnt vmcnt(0) lgkmcnt(0)\ns_barrier")
    for f in range(8): k(kread(0, f)[1])
    k(f"s_waitcnt lgkmcnt(0)\ns_branch {L}_start")
    g.tail.append("\n".join(k.out))

def attention(g):
    k = g.k; ACC = g.ACC
    u, tt = g.qlast
    b = ACC + (tt * 8 + 2 * u) * 4
    k(f"v_add_u32 v{vL2}, 4096, v1")
    for i in range(4): k(f"v_cvt_pk_bf16_f32 v{b+i}, v{b+2*i}, v{b+2*i+1}")
    k(f"ds_write_b128 v{vMW}, {V(b)} offset:{(tt>>1)*R1 + ((tt&1)*4+u)*1024}")
    k.waitvm(["k0"], True); k("s_barrier")
    for f in range(4): k(qread(Q1, R0, f)); k(kread(0, f)[1])
    for f in range(4, 8): k(kread(0, f)[1])
    for f in range(4, 8): k(qread(Q1, R0, f))
    g.ts()
    tile(g, 1)
    tile(g, 2)

def qdump(g):
    k = g.k; ACC = g.ACC
    k(f"s_lshl_b32 s{sB}, s2, 16\ns_lshl_b32 s{sC}, s{sW}, 14\ns_add_u32 s{sB}, s{sB}, s{sC}\ns_add_u32 s{sB}, s{sB}, {WS_CTX}")
    for tt in range(4):
        for u in range(4):
            b = ACC + (tt * 8 + 2 * u) * 4
            for i in range(4): k(f"v_cvt_pk_bf16_f32 v{b+i}, v{b+2*i}, v{b+2*i+1}")
            k(f"buffer_store_dwordx4 {V(b)}, v1, {srd(WS)}, s{sB} offen offset:{u*1024}")
        k(f"s_add_u32 s{sB}, s{sB}, 4096")
```

```python
from common import *
from gen_attn import *
sFO, sWOB, sXL, sPS, sTOK1, sTOK2, sPC, sKEY, sIDX, sCND, sCG, sC2 = 64, 65, 74, 75, 68, 69, 70, 71, 72, 73, 66, 67
CNT = E_("CNT", "")
sPM = 12
ROT = E_("OROT", "1") == "1"
sLM = 70
OQB = [R1, R2, R0, R3]
WOV = 8
OA = 56
WR0, OACC, X2, MW = 192, 64, 128, 128
def X1R(f): return 64 + 4 * f if f < 16 else 4 * (f - 16)
QM = E_("QM", "1") == "1"
PCH, PKH = ([0, 0, 1, 1], [0, 1, 0, 1]) if QM else ([0, 1, 0, 1], [0, 0, 1, 1])
def wodma(g, c, vb=24):
    it = []
    for h in range(2):
        it += g.dma4(WO, [vb + i for i in range(4)], (sW8, OQB[c] + h * 4096), (sWOB, PCH[c] * 128 + PKH[c] * 262144 + h * 32768), f"wo{c}", True)
    return it
def xload(pas, f):
    off = f * 1024
    dst = A(X1R(f)) if pas == 0 else V(X2 + 4 * f)
    return [("s", f"s_xor_b32 s{sXL}, s{sXC}, {off & ~4095}"), ("m", f"buffer_load_dwordx4 {dst}, v1, {srd(WS)}, s{sXL} offen offset:{off & 4095}")]
def xc_items(sT):
    return items(f"""s_lshl_b32 s{sXC}, s{sT}, 2
    s_add_u32 s{sXC}, s{sXC}, s{sW}
    s_lshl_b32 s{sXC}, s{sXC}, 3
    s_add_u32 s{sXC}, s{sXC}, s{sX}
    s_lshl_b32 s{sXC}, s{sXC}, 2
    s_add_u32 s{sXC}, s{sXC}, {f"s{sJ}" if ROT else "0"}
    s_lshl_b32 s{sXC}, s{sXC}, 13
    s_add_u32 s{sXC}, s{sXC}, {WS_CTX}""")

def moe_setup():
    return items(f"""s_lshr_b32 s{sB}, s2, 3
    s_mul_i32 s{sCG}, s{sX}, 28
    s_add_u32 s{sCG}, s{sCG}, s{sB}
    s_cmp_lt_u32 s{sB}, 28
    s_cselect_b32 s{sCG}, s{sCG}, 255
    s_lshl_b32 s{sC2}, s{sX}, 3
    s_add_u32 s{sC2}, s{sC2}, s{sB}
    s_sub_u32 s{sC2}, s{sC2}, 24
    s_cmp_ge_u32 s{sB}, 24
    s_cselect_b32 s{sC2}, s{sC2}, 255""")
WS_GP, WS_UP, WS_DP = 0x400000, 0x600000, 0x800000
RA, RAi, RB, RBi = ("v_lshrrev_b32", 3, "v_and_b32", 7) if E_("RPT", "1") == "0" else ("v_and_b32", 7, "v_lshrrev_b32", 3)
def repack_loads(t0, s0):
    return items(f"""s_lshl_b32 s{s0}, s2, 2
    s_add_u32 s{s0}, s{s0}, s{sW}
    s_and_b32 s{sB}, s{s0}, 31
    s_lshr_b32 s{sC}, s{s0}, 5
    s_sub_u32 s{sC}, s{sC}, 4
    s_and_b32 s{sC}, s{sC}, 31
    {RA} v{t0+1}, {RAi}, v2
    v_and_b32 v{t0}, 4, v{t0+1}
    v_and_b32 v{t0+2}, 2, v{t0+1}
    v_lshl_add_u32 v{t0}, v{t0+2}, 3, v{t0}
    v_and_b32 v{t0+2}, 1, v{t0+1}
    v_lshl_add_u32 v{t0}, v{t0+2}, 1, v{t0}
    v_mul_u32_u24 v{t0}, 3584, v{t0}
    {RB} v{t0+2}, {RBi}, v2
    v_lshl_add_u32 v{t0}, v{t0+2}, 4, v{t0}
    v_lshlrev_b32 v{t0+1}, 13, v{t0+1}
    v_lshl_add_u32 v{t0+1}, v{t0+2}, 4, v{t0+1}
    s_lshr_b32 s{s0}, s{sB}, 1
    s_lshl_b32 s{s0}, s{s0}, 2
    s_and_b32 s{sB}, s{sB}, 1
    s_add_u32 s{s0}, s{s0}, s{sB}
    s_mul_i32 s{s0}, s{s0}, {8*3584}
    s_lshl_b32 s{sB}, s{sC}, 7
    s_add_u32 s{s0}, s{s0}, s{sB}
    s_cmp_lt_u32 s{sC}, 28
    s_cselect_b32 s{s0}, s{s0}, {OOB}
    buffer_load_dwordx4 {A(PRE)}, v{t0}, {srd(WG_)}, s{s0} offen {CNT}
    buffer_load_dwordx4 {A(PRE+4)}, v{t0}, {srd(WG_)}, s{s0} offen offset:3584 {CNT}
    buffer_load_dwordx4 {A(PRE+8)}, v{t0}, {srd(WU_)}, s{s0} offen {CNT}
    buffer_load_dwordx4 {A(PRE+12)}, v{t0}, {srd(WU_)}, s{s0} offen offset:3584 {CNT}
    s_lshl_b32 s{s0}, s{sC}, 16
    s_lshl_b32 s{sB}, s{sW}, 11
    s_add_u32 s{s0}, s{s0}, s{sB}
    s_lshl_b32 s{sB}, s{sX}, 7
    s_add_u32 s{s0}, s{s0}, s{sB}
    buffer_load_dwordx4 {A(PRE+16)}, v{t0+1}, {srd(WD_)}, s{s0} offen {CNT}
    buffer_load_dwordx4 {A(PRE+20)}, v{t0+1}, {srd(WD_)}, s{s0} offen offset:1024 {CNT}""", "ex")
def repack_stores(t0, s0):
    return items(f"""s_lshr_b32 s{sC}, s2, 3
    s_sub_u32 s{sC}, s{sC}, 4
    s_and_b32 s{sC}, s{sC}, 31
    {RA} v{t0+2}, {RAi}, v2
    v_lshlrev_b32 v{t0+2}, 4, v{t0+2}
    {RB} v{t0+1}, {RBi}, v2
    v_lshl_add_u32 v{t0}, v{t0+1}, 13, v{t0+2}
    v_mul_u32_u24 v{t0+1}, 28672, v{t0+1}
    v_add_u32 v{t0+1}, v{t0+1}, v{t0+2}
    s_lshl_b32 s{s0}, s{sX}, 2
    s_add_u32 s{s0}, s{s0}, s{sW}
    s_lshl_b32 s{s0}, s{s0}, 7
    s_lshl_b32 s{sB}, s{sC}, 16
    s_add_u32 s{s0}, s{s0}, s{sB}
    s_add_u32 s{s0}, s{s0}, {WS_GP}
    s_cmp_lt_u32 s{sC}, s{sRPL}
    s_cselect_b32 s{s0}, s{s0}, {OOB - 0x400000}
    buffer_store_dwordx4 {A(PRE)}, v{t0}, {srd(WS)}, s{s0} offen {WT}
    s_add_u32 s{s0}, s{s0}, 4096
    buffer_store_dwordx4 {A(PRE+4)}, v{t0}, {srd(WS)}, s{s0} offen {WT}
    s_add_u32 s{s0}, s{s0}, {WS_UP - WS_GP - 4096}
    buffer_store_dwordx4 {A(PRE+8)}, v{t0}, {srd(WS)}, s{s0} offen {WT}
    s_add_u32 s{s0}, s{s0}, 4096
    buffer_store_dwordx4 {A(PRE+12)}, v{t0}, {srd(WS)}, s{s0} offen {WT}
    s_mul_i32 s{s0}, s{sX}, {8*28672}
    s_mul_i32 s{sB}, s{sW}, {2*3584}
    s_add_u32 s{s0}, s{s0}, s{sB}
    s_lshl_b32 s{sB}, s{sC}, 7
    s_add_u32 s{s0}, s{s0}, s{sB}
    s_add_u32 s{s0}, s{s0}, {WS_DP}
    s_cmp_lt_u32 s{sC}, s{sRPL}
    s_cselect_b32 s{s0}, s{s0}, {OOB}
    buffer_store_dwordx4 {A(PRE+16)}, v{t0+1}, {srd(WS)}, s{s0} offen {WT}
    buffer_store_dwordx4 {A(PRE+20)}, v{t0+1}, {srd(WS)}, s{s0} offen offset:3584 {WT}""", "pre")
MG, MD = 112, 128
def moe_loads(t0, s0):
    t = f"""v_lshlrev_b32 v{t0}, 4, v0
    v_cmp_gt_u32 vcc, 224, v0
    v_mov_b32 v{t0+1}, {OOB}
    v_cndmask_b32 v{t0+1}, v{t0+1}, v{t0}, vcc
    s_lshl_b32 s{s0}, s{sCG}, 13
    s_add_u32 s{s0}, s{s0}, {WS_GP}
    s_cmp_lt_u32 s{sCG}, 224
    s_cselect_b32 s{s0}, s{s0}, {OOB - 0x400000}
    buffer_load_dwordx4 {V(MG)}, v{t0}, {srd(WS)}, s{s0} offen
    s_add_u32 s{s0}, s{s0}, 4096
    buffer_load_dwordx4 {V(MG+4)}, v{t0}, {srd(WS)}, s{s0} offen
    s_add_u32 s{s0}, s{s0}, {WS_UP - WS_GP - 4096}
    buffer_load_dwordx4 {V(MG+8)}, v{t0}, {srd(WS)}, s{s0} offen
    s_add_u32 s{s0}, s{s0}, 4096
    buffer_load_dwordx4 {V(MG+12)}, v{t0}, {srd(WS)}, s{s0} offen
    s_mul_i32 s{s0}, s{sC2}, 28672
    s_add_u32 s{s0}, s{s0}, {WS_DP}
    s_cmp_lt_u32 s{sC2}, 64
    s_cselect_b32 s{s0}, s{s0}, {OOB - 0x400000}
    """
    for r in range(8):
        t += f"buffer_load_dwordx4 {V(MD+4*r)}, v{t0+1}, {srd(WS)}, s{s0} offen offset:{(r&1)*3584}\n"
        if r & 1 and r < 7: t += f"s_add_u32 s{s0}, s{s0}, 7168\n"
    return items(t, "ex")
def merge1_extra(g):
    t = f"""v_lshlrev_b32 v12, 3, v0
    s_lshl_b32 s{sC}, s2, 11
    s_add_u32 s{sC}, s{sC}, {WS_CAND}
    buffer_store_dwordx2 v[{vSEN}:{vSEN+1}], v12, {srd(WS)}, s{sC} offen {WT}
    s_lshl_b32 s{sC}, s2, 6
    s_add_u32 s{sC}, s{sC}, {WS_KEY}
    v_mov_b32 v13, 0
    buffer_store_dword v13, v7, {srd(WS)}, s{sC} offen {WT}
    s_lshl_b32 s{sC}, s{sCG}, 6
    s_add_u32 s{sC}, s{sC}, {WS_ACT}
    buffer_store_dwordx4 {V(vSEN)}, v7, {srd(WS)}, s{sC} offen {WT}
    buffer_store_dwordx4 {V(vSEN)}, v7, {srd(WS)}, s{sC} offen offset:16 {WT}
    """
    return items(t, "pre")
def late_mod_loads(g, b):
    it = items(f"""v_lshlrev_b32 v{b+4}, 2, v0
    v_cmp_gt_u32 vcc, 8, v0
    v_mov_b32 v{b+5}, {OOB}
    v_cndmask_b32 v{b+4}, v{b+5}, v{b+4}, vcc
    s_lshl_b32 s{sLM}, s2, 5
    s_add_u32 s{sLM}, s{sLM}, {WS_MODP + 4096}""")
    ld = []
    for q in range(4):
        ld += [("m", f"buffer_load_dword v{b+q}, v{b+4}, {srd(WS)}, s{sLM} offen"), ("s", f"s_add_u32 s{sLM}, s{sLM}, 12288")]
    return it, ld
def late_mod_fin(g, b):
    return items(f"""v_add_f32 v{b}, v{b}, v{b+1}
    v_add_f32 v{b+2}, v{b+2}, v{b+3}
    v_add_f32 v{b}, v{b}, v{b+2}
    v_cvt_pk_bf16_f32 v{b}, v{b}, v{b}
    v_and_b32 v{b}, 0xffff0000, v{b}
    s_lshr_b32 s{sLM}, s2, 6
    s_cmp_eq_u32 s{sLM}, 2
    s_cselect_b32 s{sLM}, 1.0, 0
    v_add_f32 v{b}, s{sLM}, v{b}
    v_cvt_pk_bf16_f32 v{b}, v{b}, v{b}
    v_and_b32 v{b}, 0xffff0000, v{b}
    s_lshl_b32 s{sLM}, s2, 5
    s_add_u32 s{sLM}, s{sLM}, {WS_MOD + 4096}
    buffer_store_dword v{b}, v{b+4}, {srd(WS)}, s{sLM} offen {WT}""", "ex")
def wo_voff(b):
    return items(f"""v_lshrrev_b32 v{b+1}, 1, v2
    v_lshrrev_b32 v{b+2}, 4, v2
    v_xor_b32 v{b+1}, v{b+1}, v{b+2}
    v_and_b32 v{b+1}, 3, v{b+1}
    v_lshlrev_b32 v{b+1}, 5, v{b+1}
    v_and_b32 v{b+2}, 1, v2
    v_lshl_add_u32 v{b+1}, v{b+2}, 4, v{b+1}
    v_lshrrev_b32 v{b}, 3, v2
    v_lshl_add_u32 v{b}, v{b}, 10, v{b+1}
    v_bfe_u32 v4, v2, 1, 2
    v_lshlrev_b32 v4, 11, v4
    v_lshl_add_u32 v4, v{b+2}, 6, v4
    v_add_u32 v{b+1}, 7168, v{b}
    v_add_u32 v{b+2}, {2*7168}, v{b}
    v_add_u32 v{b+3}, {3*7168}, v{b}""")
def cold_loads(t0, s0):
    return repack_loads(t0, s0) + items(f"""
    v_lshrrev_b32 v{t0+1}, 1, v2
    v_and_b32 v{t0+1}, 15, v{t0+1}
    v_lshlrev_b32 v{t0+1}, 10, v{t0+1}
    v_and_b32 v{t0+2}, 1, v2
    v_lshl_add_u32 v{t0+1}, v{t0+2}, 7, v{t0+1}
    s_lshl_b32 s{s0}, s{sP}, 2
    s_add_u32 s{s0}, s{s0}, s{sW}
    s_lshl_b32 s{s0}, s{s0}, 14
    buffer_load_dword a60, v{t0+1}, {srd(WO)}, s{s0} offen""", "ex")
def split_m(its, n):
    c = 0
    for i, it in enumerate(its):
        if it[0] == "m":
            c += 1
            if c == n: return its[:i + 1], its[i + 1:]
    return its, []
def peel_plan(g):
    pf = lambda a, b: sum((prefill_items(i) for i in range(a, b)), [])
    rs = []; rest = repack_stores(12, sPF)
    for i in range(6):
        a, rest = split_m(rest, 1); rs.append(a)
    wo = wodma(g, 0, 8)
    xl = lambda a, b: sum((xload(0, f) for f in range(a, b)), [])
    fsig = items(f"""s_lshl_b32 s{sFO}, s2, 6
    s_add_u32 s{sFO}, s{sFO}, {WS_FF}
    buffer_store_dword v6, v7, {srd(WS)}, s{sFO} offen {WT}""", "flag")
    cpoll = [("m", f"buffer_load_dword v3, v4, {srd(WS)}, s{sCFP} offen {WT}")]
    fc = first_c(2); wv = wo_voff(8)
    return [([pf(0, 2), rs[0]], [rs[1] + pf(2, 7), wv[:8]]),
            ([rs[2] + pf(7, 10)], [rs[3] + pf(10, 14), wv[8:]]),
            ([rs[4] + pf(14, 16) + cpoll], [rs[5] + merge1_extra(g), fc[:6]]),
            ([xc_items(sT1) + [("x", g.poll_check(3, 4, WS, f"s{sCFP}", "C1"))] + xl(0, 5)], [wo[:6] + xl(5, 8), fc[6:12]]),
            ([fsig + xl(8, 13)], [wo[6:] + xl(13, 16), fc[12:18]]),
            ([xl(16, 22)], [xl(22, 28), fc[18:26]]),
            ([xl(28, 32), fc[26:]], [])]
def peel_a(g, ph, r):
    for st in peel_plan(g)[r - 1][0]: ph.stream(st, 8 if any(it[0] == "m" for it in st[:3]) else 0)
def peel_b(g, ph, r):
    for st in peel_plan(g)[r - 1][1]: ph.stream(st, 0)
def diag_a(g, ph):
    ph.stream(items("".join(f"v_mov_b32 v{24+i}, v{8+i}\n" for i in range(4)) + f"""v_add_u32 v11, {R4}, v{vMW}
    v_lshlrev_b32 v12, 6, v0
    s_mov_b32 s{sKEY}, {WS_FF}
    buffer_load_dword v3, v12, {srd(WS)}, s{sKEY} offen {WT}
    v_bfe_u32 v13, v2, 1, 4
    v_lshlrev_b32 v13, 10, v13
    v_and_b32 v14, 1, v2
    v_lshl_add_u32 v13, v14, 7, v13
    s_lshl_b32 s{sXL}, s{sP}, 2
    s_add_u32 s{sXL}, s{sXL}, s{sW}
    s_lshl_b32 s{sXL}, s{sXL}, 14
    {f"buffer_load_dword v14, v13, {srd(WO)}, s{sXL} offen" if E_("WOT", "1") == "1" else ""}"""), 0, dense=1)
def diag_b(g, ph):
    if "3" in E_("CT", "123"): ph.stream(code_touch("L_ct3", "L_ct3", "L_end", 13, "v13", 2), 1)
    ph.put("x", g.poll_check(3, 12, WS, f"s{sKEY}", "F"), 31)
def merge_x(g):
    its = items(f"""v_lshrrev_b32 v{OA+2}, 2, v2
    v_and_b32 v{OA+1}, 3, v2
    v_lshlrev_b32 v{OA}, 7, v{OA+2}
    v_lshl_add_u32 v{OA}, v{OA+1}, 3, v{OA}
    v_bfe_u32 v{OA+1}, v2, 3, 2
    v_lshl_add_u32 v{OA}, v{OA+1}, 5, v{OA}
    v_xor_b32 v{OA+1}, 32, v{OA}
    v_xor_b32 v{OA+2}, 64, v{OA}
    v_xor_b32 v{OA+3}, 96, v{OA}
    v_add_u32 v{OA+4}, {R2}, v{OA}
    v_add_u32 v{OA+5}, {R2}, v{OA+1}
    v_add_u32 v{OA+6}, {R2}, v{OA+2}
    v_add_u32 v{OA+7}, {R2}, v{OA+3}""")
    return its

STEPS = [[(c, n2) for c in range(4) for n2 in range(4)] + [(c, n2) for c in range(4) for n2 in range(4, 8)]] * 2
if QM: STEPS[0] = [(c, n2) for c in range(2) for n2 in range(4)] + [(c, n2) for c in range(2) for n2 in range(4, 8)] + [(c, n2) for c in (2, 3) for n2 in range(8)]
def piece(i):
    c, n2 = STEPS[i >> 5][i & 31]
    return [q for q in range(4) if PCH[q] == c >> 1 and PKH[q] == n2 >> 2][0]
def oread(i):
    c, n2 = STEPS[i >> 5][i & 31]
    reg = OQB[piece(i)]; it = []
    for nt in range(2):
        va = OA + (0 if reg < R2 else 4) + 2 * (c & 1) + nt
        for h in range(2):
            o = (reg & 0xffff) + (2 * (n2 & 3) + h) * 4096
            f = WR0 + ((i & 3) * 4 + nt * 2 + h) * 4
            it += [("l", f"ds_read_b64_tr_b16 a[{f}:{f+1}], v{va} offset:{o}"), ("l", f"ds_read_b64_tr_b16 a[{f+2}:{f+3}], v{va} offset:{o+2048}")]
    return it
def oproj_first(g):
    g.run(oread(0) + oread(1))

GW, K0 = 8, 16
P1R, P2R, GA, CB, SB, GB, XR1, XR2, WRR = 128, 192, 160, 168, 176, 184, 32, 36, 40
vPL, vCB, vCF = 44, 45, 46
def pload(T12, dst):
    it = []
    for x in range(8):
        it += [("s", f"s_add_u32 s{sXL}, s{sPC}, {(T12 << 23) + x * 4096}"), ("m", f"buffer_load_dwordx4 {V(dst+4*x)}, v{vPL}, {srd(WS)}, s{sXL} offen {WT}")]
    return it

def oproj(g):
    k = g.k
    M = []
    for i in range(64):
        pas = i >> 5; c, n2 = STEPS[pas][i & 31]
        for nt in range(2):
            for tt in range(2):
                for h in range(2):
                    n = 2 * n2 + h; f = (n >> 2) * 8 + tt * 4 + (n & 3)
                    d = V(OACC + c * 16 + tt * 8 + nt * 4)
                    M.append(MF(d, A(WR0 + ((i & 3) * 4 + nt * 2 + h) * 4), A(X1R(f)) if pas == 0 else V(X2 + 4 * f), "0" if n == 0 else d))
    ph = Phase(k, M); ph.thin = True; ph.batch = int(E_('BATO', '9'))
    Z0 = int(E_("Z0", "92"))
    ph.put("x", g.bar(["wo1"], False), 34)
    ph.put("x", g.bar(["wo2", "wo3", "ctx"], False), Z0)
    gx = ph.stream(wodma(g, 2), 0, None, step=4)
    gx = ph.stream(wodma(g, 3), max(gx, 34) + 1, None, step=4)
    def epi(pas, c):
        it = []
        for tt in range(2):
            b = OACC + c * 16 + tt * 8
            it += [("v", f"v_cvt_pk_bf16_f32 v{b+i}, v{b+2*i}, v{b+2*i+1}") for i in range(4)]
            it += [("v", f"v_min_u32 v{b+i}, -2, v{b+i}") for i in range(4)]
            it += [("s", f"s_add_u32 s{sPS}, s{sPB}, {(pas << 23) + tt * 131072}"), ("m", f"buffer_store_dwordx4 {V(b)}, v{vPO}, {srd(WS)}, s{sPS} offen offset:{c*256} {WT}", "pst")]
        return it
    CD = int(E_("CD", "80")); CP = int(E_("CP", "80"))
    g1 = ph.stream([("s", f"s_add_u32 s{sCFO}, s{sCFO}, 65536"), ("s", f"s_add_u32 s{sCFP}, s{sCFP}, 65536")] + xc_items(sT2), 4)
    g1 = ph.stream(g.flag_store(sCFO, ["ctx"]), CD)
    g1 = ph.stream([("m", f"buffer_load_dword v3, v4, {srd(WS)}, s{sCFP} offen {WT}")], CD + CP - 30)
    ph.put("x", g.poll_check(3, 4, WS, f"s{sCFP}", "C2"), CD + CP)
    xl2 = lambda a, b: sum((xload(1, (n >> 2) * 8 + tt * 4 + (n & 3)) for n in range(a, b) for tt in range(2)), [])
    XST = int(E_("XST", "4"))
    if ROT:
        g1 = ph.stream(xl2(0, 4), Z0 + 1, None, step=3, sid=951)
        g1 = ph.stream(xl2(4, 16), max(g1, CD + CP) + 1, None, step=XST, sid=951)
    else: g1 = ph.stream(xl2(0, 16), CD + CP + 1, None, step=XST)
    g2 = ph.stream(items(f"""v_lshrrev_b32 v{vCF}, 2, v2
    v_and_b32 v{vCB}, 3, v2
    v_lshlrev_b32 v{vPL}, 8, v{vCF}
    v_lshl_add_u32 v{vPL}, v{vCB}, 4, v{vPL}
    v_lshlrev_b32 v{vCB}, 3, v{vCB}
    v_lshl_add_u32 v{vCB}, v{vCF}, 6, v{vCB}
    v_lshlrev_b32 v{vCF}, 1, v{vCB}
    s_lshl_b32 s{sPC}, s2, 15
    s_lshl_b32 s{sB}, s{sW}, 6
    s_add_u32 s{sPC}, s{sPC}, s{sB}
    s_add_u32 s{sPC}, s{sPC}, {WS_P}
    s_and_b32 s{sTOK1}, s2, 31
    s_lshl_b32 s{sTOK1}, s{sTOK1}, 2
    s_add_u32 s{sTOK1}, s{sTOK1}, s{sW}
    s_lshl_b32 s{sTOK2}, s{sT2}, 7
    s_add_u32 s{sTOK2}, s{sTOK2}, s{sTOK1}
    s_lshl_b32 s{sB}, s{sT1}, 7
    s_add_u32 s{sTOK1}, s{sTOK1}, s{sB}
    s_lshl_b32 s{sB}, s{sTOK1}, 10
    s_lshl_b32 s{sC}, s{sTOK2}, 10"""), 104, sid=950)
    g2 = ph.stream(items(f"""buffer_load_dwordx2 v[{XR1}:{XR1+1}], v{vCB}, {srd(XS)}, s{sB} offen
    buffer_load_dwordx2 v[{XR1+2}:{XR1+3}], v{vCB}, {srd(XS)}, s{sB} offen offset:32
    buffer_load_dwordx2 v[{XR2}:{XR2+1}], v{vCB}, {srd(XS)}, s{sC} offen
    buffer_load_dwordx2 v[{XR2+2}:{XR2+3}], v{vCB}, {srd(XS)}, s{sC} offen offset:32
    buffer_load_dwordx2 v[{WRR}:{WRR+1}], v{vCB}, {srd(WR_)}, 0 offen
    buffer_load_dwordx2 v[{WRR+2}:{WRR+3}], v{vCB}, {srd(WR_)}, 0 offen offset:32"""), g1 + 1, None, step=4, sid=950)
    its = []
    for (R, seg) in ((GA, 2), (CB, 4), (SB, 3), (GB, 5)):
        its += [("s", f"s_mov_b32 s{sXL}, {WS_MOD + seg*2048}"), ("m", f"buffer_load_dwordx4 {V(R)}, v{vCF}, {srd(WS)}, s{sXL} offen"), ("m", f"buffer_load_dwordx4 {V(R+4)}, v{vCF}, {srd(WS)}, s{sXL} offen offset:64")]
    g2 = ph.stream(its, max(g2 + 1, 386), None, step=3)
    ph.stream(pload(0, P1R), max(g2 + 1, int(E_("P1G", "472"))), None, step=4)
    kk = K(); unpack(kk, 48, WRR, 8)
    for i in range(8): kk(f"v_mul_f32 v{GW+i}, v{48+i}, v{CB+i}")
    kk(f"v_mul_f32 v{K0}, v48, v{SB}")
    for i in range(1, 8): kk(f"v_fmac_f32 v{K0}, v{48+i}, v{SB+i}")
    allred(kk, [K0], tmp=[19])
    gk = items("\n".join(kk.out))
    for c in range(4):
        done = 8 * max(i for i in range(32) if STEPS[0][i][0] == c) + 8
        g3 = ph.stream(epi(0, c), done + 6); assert g3 < 256 + 32 * c - 2, g3
    for c in range(3): ph.stream(epi(1, c), 384 + 32 * (c + 1) + 6)
    ph.stream(gk, g2 + 36)
    for i in range(2, 64):
        lo = 8 * (i - 3)
        if i < 32 and piece(i) >= 2: lo = max(lo, Z0 + 1)
        if i < 32 and piece(i) == 1: lo = max(lo, 35)
        ph.stream(oread(i), lo, 8 * i - 5)
    if g.TS:
        ph.put("x", g.ts, 255)
        for gp in (E_("TSO") or "").split(","):
            if gp: ph.put("x", lambda k: g.ts(k, True), int(gp))
    ph.emit()
    print("oproj: overloaded placements", ph.over, file=sys.stderr)
    g.run(epi(1, 3))
    if E_("TSO"): g.ts(force=True)
    if E_("XW"): k("s_waitcnt vmcnt(0)"); g.ts(force=True)
    pm = 0xf << (4 * int(E_("PQC", "1"))); pm |= pm << 16
    k(f"s_mov_b32 s{sPM}, {pm:#x}\ns_mov_b32 s{sPM+1}, {pm:#x}")
    if E_("P2D"): return
    if E_("PROBE", "1") == "1":
        for i in range(0, 32, 2): k(f"v_mov_b64 v[{P2R+i}:{P2R+i+1}], -1")
        k(f"s_mov_b64 exec, s[{sPM}:{sPM+1}]")
    g.run(pload(1, P2R))
    k("s_mov_b64 exec, -1")
    g.ts(force=bool(E_("TSO")))
    if E_("XW"): k("s_waitcnt vmcnt(0)"); g.ts(force=True)

def allred(k, regs, op="v_add_f32", tmp=None):
    for pat in ("quad_perm:[1,0,3,2]", "quad_perm:[2,3,0,1]", "row_half_mirror", "row_mirror"):
        for r in regs: k(f"{op}_dpp v{r}, v{r}, v{r} {pat} row_mask:0xf bank_mask:0xf")
    for sw in ("v_permlane16_swap_b32", "v_permlane32_swap_b32"):
        for r, t in zip(regs, tmp): k(f"v_mov_b32 v{t}, v{r}")
        for r, t in zip(regs, tmp): k(f"{sw} v{r}, v{t}")
        for r, t in zip(regs, tmp): k(f"{op} v{r}, v{r}, v{t}")
def unpack(k, dst, src, n):
    for i in range(n // 2):
        k(f"v_lshlrev_b32 v{dst+2*i}, 16, v{src+i}\nv_and_b32 v{dst+2*i+1}, 0xffff0000, v{src+i}")
def pack(k, dst, src, n):
    for i in range(n // 2): k(f"v_cvt_pk_bf16_f32 v{dst+i}, v{src+2*i}, v{src+2*i+1}")
def bf1(k, r): k(f"v_cvt_pk_bf16_f32 v{r}, v{r}, v{r}\nv_and_b32 v{r}, 0xffff0000, v{r}")

def sent_wait(g, regs, reload_items, name, sleep=2):
    k = g.k
    lp, ok = k.lab(name + "_l"), k.lab(name + "_ok")
    k(f"s_mov_b32 s{sD}, 0")
    k.label(lp)
    k("s_waitcnt vmcnt(0)")
    k(f"v_max_u32 v3, v{regs[0]}, v{regs[1]}")
    rest = regs[2:]
    for i in range(0, len(rest) - 1, 2): k(f"v_max3_u32 v3, v3, v{rest[i]}, v{rest[i+1]}")
    k(f"""v_cmp_eq_u32 vcc, -1, v3
    s_add_u32 s{sD}, s{sD}, 1
    s_cbranch_vccz {ok}
    s_cmp_ge_u32 s{sD}, {SPIN}
    s_cbranch_scc1 {ok}
    s_mov_b64 exec, vcc""")
    if sleep: k(f"s_sleep {sleep}")
    g.run(reload_items)
    k(f"s_branch {lp}")
    k.label(ok)
    k("s_mov_b64 exec, -1")
    k.vm = []

def part_wait(g, T12, R):
    k = g.k
    lp, ok = k.lab("P2_l"), k.lab("P2_ok")
    k(f"s_mov_b32 s{sD}, 0")
    k.label(lp)
    k("s_waitcnt vmcnt(0)")
    for x in range(8): k(f"v_max_u32 v{48+x}, v{R+4*x}, v{R+4*x+1}\nv_max3_u32 v{48+x}, v{48+x}, v{R+4*x+2}, v{R+4*x+3}")
    k(f"""v_max3_u32 v3, v48, v49, v50
    v_max3_u32 v3, v3, v51, v52
    v_max3_u32 v3, v3, v53, v54
    v_max_u32 v3, v3, v55
    v_cmp_eq_u32 vcc, -1, v3
    s_add_u32 s{sD}, s{sD}, 1
    s_cbranch_vccz {ok}
    s_cmp_ge_u32 s{sD}, {SPIN}
    s_cbranch_scc1 {ok}
    s_sleep {E_("PSL", "1")}""")
    pl = pload(T12, R)
    for x in range(8):
        sk = k.lab("P2_s")
        k(f"v_cmp_eq_u32 vcc, -1, v{48+x}\ns_cbranch_vccz {sk}\ns_and_b64 s[{sXB}:{sXB+1}], vcc, s[{sPM}:{sPM+1}]\ns_cselect_b64 exec, s[{sXB}:{sXB+1}], vcc")
        g.run(pl[2 * x:2 * x + 2])
        k("s_mov_b64 exec, -1")
        k.label(sk)
    k(f"s_branch {lp}")
    k.label(ok)
    k.vm = []

def token(g, PR, XR, D, sTOK, key):
    k = g.k; T = 48
    unpack(k, D, PR, 8)
    for x in range(1, 8):
        for i in range(8): k(f"v_dot2c_f32_bf16 v{D+i}, v{PR+4*x+(i>>1)}, v{100+(i&1)}")
    for i in range(0, 8, 2): k(f"v_pk_fma_f32 v[{D+i}:{D+i+1}], v[{D+i}:{D+i+1}], v[{GA+i}:{GA+i+1}], v[{D+8+i}:{D+9+i}]")
    pack(k, XR, D, 8); unpack(k, D, XR, 8)
    k(f"""v_pk_add_f32 v[{T}:{T+1}], v[{D}:{D+1}], v[{D+2}:{D+3}]
    v_pk_add_f32 v[{T+2}:{T+3}], v[{D+4}:{D+5}], v[{D+6}:{D+7}]
    v_pk_add_f32 v[{T}:{T+1}], v[{T}:{T+1}], v[{T+2}:{T+3}]
    v_add_f32 v{T}, v{T}, v{T+1}""")
    allred(k, [T], tmp=[T + 1])
    k(f"v_mul_f32 v{T}, {H(-1/512)}, v{T}")
    for i in range(0, 8, 2): k(f"v_pk_add_f32 v[{D+8+i}:{D+9+i}], v[{D+i}:{D+i+1}], v[{T}:{T+1}] op_sel_hi:[1,0]")
    k(f"v_pk_mul_f32 v[{T+2}:{T+3}], v[{D+8}:{D+9}], v[{D+8}:{D+9}]\nv_pk_mul_f32 v[{T+4}:{T+5}], v[{D+8}:{D+9}], v[{GW}:{GW+1}]")
    for i in range(2, 8, 2):
        k(f"v_pk_fma_f32 v[{T+2}:{T+3}], v[{D+8+i}:{D+9+i}], v[{D+8+i}:{D+9+i}], v[{T+2}:{T+3}]")
        k(f"v_pk_fma_f32 v[{T+4}:{T+5}], v[{D+8+i}:{D+9+i}], v[{GW+i}:{GW+i+1}], v[{T+4}:{T+5}]")
    k(f"v_add_f32 v{T+2}, v{T+2}, v{T+3}\nv_add_f32 v{T+4}, v{T+4}, v{T+5}")
    allred(k, [T + 2, T + 4], tmp=[T + 3, T + 5])
    k(f"""v_mov_b32 v{T}, {H(1e-5)}
    v_fmac_f32 v{T}, {H(1/512)}, v{T+2}
    v_rsq_f32 v{T}, v{T}
    v_fma_f32 v{T+4}, v{T+4}, v{T}, v{K0}
    v_ashrrev_i32 v{T+5}, 31, v{T+4}
    v_or_b32 v{T+5}, 0x80000000, v{T+5}
    v_xor_b32 v{T+5}, v{T+5}, v{T+4}
    v_and_b32 v{T+5}, 0xfffff800, v{T+5}
    v_or_b32 v{key}, s{sTOK}, v{T+5}""")
def token2(g, XR, D, HP, OP):
    k = g.k; T = 48
    for i in range(0, 8, 2): k(f"v_pk_mul_f32 v[{D+8+i}:{D+9+i}], v[{D+8+i}:{D+9+i}], v[{T}:{T+1}] op_sel_hi:[1,0]")
    for i in range(0, 8, 2): k(f"v_pk_fma_f32 v[{D+8+i}:{D+9+i}], v[{D+8+i}:{D+9+i}], v[{CB+i}:{CB+i+1}], v[{SB+i}:{SB+i+1}]")
    pack(k, HP, D + 8, 8)
def token3(g, D, HP, OP):
    k = g.k
    unpack(k, D + 8, HP, 8)
    for i in range(0, 8, 2): k(f"v_pk_mul_f32 v[{D+8+i}:{D+9+i}], v[{D+8+i}:{D+9+i}], v[{GB+i}:{GB+i+1}]")
    pack(k, OP, D + 8, 8); unpack(k, D + 8, OP, 8)
    for i in range(0, 8, 2): k(f"v_pk_add_f32 v[{D+8+i}:{D+9+i}], v[{D+8+i}:{D+9+i}], v[{D+i}:{D+i+1}]")
    pack(k, OP, D + 8, 8)

def tail(g):
    k = g.k
    TT = lambda: g.ts(force=True) if E_('TST') else None
    TT()
    D1, D2, H1, H2, O1, O2, KEY1, KEY2 = 64, 80, 20, 24, 56, 60, 17, 18
    GU, WDF = 160, [192 + i for i in range(64)]
    slow, ok = k.lab("P1_slow"), k.lab("P1_ok")
    def chk(regs):
        t = f"v_max_u32 v3, v{regs[0]}, v{regs[1]}\n"
        for i in range(2, len(regs), 2): t += f"v_max3_u32 v3, v3, v{regs[i]}, v{regs[i+1]}\n"
        return t + "v_cmp_eq_u32 vcc, -1, v3\n"
    k("v_mov_b32 v100, 0x3f80\nv_mov_b32 v101, 0x3f800000")
    unpack(k, D1 + 8, XR1, 8); unpack(k, D2 + 8, XR2, 8)
    r1 = list(range(P1R, P1R + 32))
    k(chk(r1) + f"s_cbranch_vccnz {slow}")
    k.label(ok)
    k2 = K(); k2.nlab = 5000; k2.label(slow); g2 = type("g2", (), dict(k=k2, run=lambda self, its: [k2(it[1]) for it in its]))()
    part_wait(g2, 0, P1R); k2(f"s_branch {ok}")
    g.tail.append("\n".join(k2.out))
    token(g, P1R, XR1, D1, sTOK1, KEY1); token2(g, XR1, D1, H1, O1)
    ml = moe_loads(98, sPF)
    g.run(ml[:7])
    k(f"""s_lshl_b32 s{sB}, s{sW}, 2
    v_mov_b32 v47, s{sB}
    v_mov_b32 v102, 0
    s_lshl_b32 s{sB}, s2, 6
    s_add_u32 s{sB}, s{sB}, {WS_KEY}
    s_lshl_b32 s{sC}, s2, 11
    s_add_u32 s{sC}, s{sC}, {WS_CAND}""")
    g.ts()
    if E_("P2D"): g.run(pload(1, P2R))
    part_wait(g, 1, P2R)
    g.ts(); TT()
    token(g, P2R, XR2, D2, sTOK2, KEY2)
    TT()
    k(f"""v_max3_u32 v19, v{KEY1}, v{KEY2}, 1
    ds_write_b32 v47, v19
    s_waitcnt lgkmcnt(0)
    s_barrier
    ds_read_b128 v[52:55], v102""")
    token2(g, XR2, D2, H2, O2)
    k(f"""v_max_u32 v52, v52, v53
    v_max3_u32 v52, v52, v54, v55
    v_cmp_eq_u32 vcc, v52, v19
    s_cbranch_vccz L_notbest
    buffer_store_dword v19, v5, {srd(WS)}, s{sB} offen {WT}
    v_cmp_gt_u32 vcc, v{KEY1}, v{KEY2}""")
    for i in range(4): k(f"v_cndmask_b32 v{28+i}, v{H2+i}, v{H1+i}, vcc\nv_cndmask_b32 v{40+i}, v{XR2+i}, v{XR1+i}, vcc")
    for i in range(4): k(f"v_min_u32 v{28+i}, -2, v{28+i}\nv_min_u32 v{40+i}, -2, v{40+i}")
    k(f"""buffer_store_dwordx4 v[28:31], v1, {srd(WS)}, s{sC} offen {WT}
    buffer_store_dwordx4 v[40:43], v1, {srd(WS)}, s{sC} offen offset:1024 {WT}""")
    k.vm = k.vm[:-3]
    k.label("L_notbest")
    TT()
    g.run(ml[7:])
    token3(g, D1, H1, O1); token3(g, D2, H2, O2)
    if E_("KS0", "0") != "0": k(f"s_sleep {E_('KS0')}")
    k(f"""v_lshlrev_b32 v4, 6, v0
    s_mov_b32 s{sKEY}, {WS_KEY}
    s_mov_b32 s{sD}, 0""")
    k.label("L_kl")
    k(f"""buffer_load_dword v3, v4, {srd(WS)}, s{sKEY} offen {WT}
    s_add_u32 s{sD}, s{sD}, 1
    s_waitcnt vmcnt(0)
    v_cmp_eq_u32 vcc, 0, v3
    s_cbranch_vccz L_kd
    s_cmp_ge_u32 s{sD}, {SPIN}
    s_cbranch_scc1 L_kd
    s_mov_b64 exec, vcc
    s_sleep {E_("KSL", "2")}
    s_branch L_kl""")
    k.label("L_kd")
    k("s_mov_b64 exec, -1")
    TT()
    allred(k, [3], op="v_max_u32", tmp=[19])
    k(f"""ds_write_b32 v47, v3 offset:64
    s_waitcnt lgkmcnt(0)
    s_barrier
    ds_read_b128 v[52:55], v102 offset:64
    v_lshlrev_b32 v4, 2, v0
    v_max_u32 v52, v52, v53
    v_max3_u32 v52, v52, v54, v55
    v_readfirstlane_b32 s{sKEY}, v52
    s_and_b32 s{sIDX}, s{sKEY}, 2047
    s_lshr_b32 s{sB}, s{sIDX}, 7
    s_sub_u32 s{sC}, 15, s{sB}
    s_min_u32 s{sB}, s{sB}, s{sC}
    s_lshl_b32 s{sB}, s{sB}, 16
    s_and_b32 s{sCND}, s{sIDX}, 124
    s_lshl_b32 s{sCND}, s{sCND}, 9
    s_add_u32 s{sCND}, s{sCND}, s{sB}
    s_add_u32 s{sCND}, s{sCND}, {WS_CAND}""")
    hl = [("m", f"buffer_load_dword v19, v4, {srd(WS)}, s{sCND} offen {WT}")]
    g.run(hl)
    g.ts(); TT()
    for (sT, O) in ((sTOK1, O1), (sTOK2, O2)):
        k(f"""s_lshl_b32 s{sB}, s{sT}, 10
        s_cmp_eq_u32 s{sT}, s{sIDX}
        s_cselect_b32 s{sB}, {OOB}, s{sB}
        buffer_store_dwordx2 v[{O}:{O+1}], v{vCB}, {srd(OUT)}, s{sB} offen {E_("OP", "")}
        buffer_store_dwordx2 v[{O+2}:{O+3}], v{vCB}, {srd(OUT)}, s{sB} offen offset:32 {E_("OP", "")}""")
    k(f"s_cmp_ge_u32 s{sCG}, 224\ns_cbranch_scc1 L_nprod")
    lp, ok = "L_hl", "L_hok"
    unpack(k, GU, MG, 32)
    k(f"s_mov_b32 s{sD}, 0\ns_waitcnt vmcnt(4)")
    k.label(lp)
    k(f"""v_cmp_eq_u32 vcc, -1, v19
    s_add_u32 s{sD}, s{sD}, 1
    s_cbranch_vccz {ok}
    s_cmp_ge_u32 s{sD}, {SPIN}
    s_cbranch_scc1 {ok}""")
    g.run(hl)
    k(f"s_waitcnt vmcnt(0)\ns_branch {lp}")
    k.label(ok)
    TT()
    k(f"v_lshlrev_b32 v48, 16, v19\nv_and_b32 v50, 0xffff0000, v19")
    for m in range(2):
        for i in range(0, 8, 2):
            d = 64 + 8 * m + i
            k(f"v_pk_mul_f32 v[{d}:{d+1}], v[{GU+16*m+i}:{GU+16*m+i+1}], v[48:49] op_sel_hi:[1,0]")
    for m in range(2):
        for i in range(0, 8, 2):
            d = 64 + 8 * m + i
            k(f"v_pk_fma_f32 v[{d}:{d+1}], v[{GU+16*m+8+i}:{GU+16*m+8+i+1}], v[50:51], v[{d}:{d+1}] op_sel_hi:[1,0,1]")
    k(g.red16(64))
    k(f"""v_and_b32 v50, 15, v2
    v_cmp_eq_u32 vcc, 0, v50
    v_mov_b32 v51, 1024
    v_cndmask_b32 v51, v51, v0, vcc
    ds_write_b128 v51, v[64:67] offset:256
    v_lshlrev_b32 v50, 2, v50
    s_waitcnt lgkmcnt(0)
    s_barrier
    s_cmp_lg_u32 s{sW}, 0
    s_cbranch_scc1 L_nprod
    ds_read_b32 v64, v50 offset:256
    ds_read_b32 v65, v50 offset:320
    ds_read_b32 v66, v50 offset:384
    ds_read_b32 v67, v50 offset:448
    v_cmp_gt_u32 vcc, 8, v2
    v_mov_b32 v51, {OOB}
    v_cndmask_b32 v51, v51, v50, vcc
    s_lshl_b32 s{sB}, s{sCG}, 6
    s_add_u32 s{sB}, s{sB}, {WS_ACT}
    v_add_f32 v64, v64, v65
    v_add_f32 v66, v66, v67
    v_add_f32 v64, v64, v66""")
    bf1(k, 64)
    k(f"""v_mov_b32_dpp v65, v64 row_ror:8 row_mask:0xf bank_mask:0xf
    v_mul_f32 v66, {H(-LOG2E)}, v64
    v_exp_f32 v66, v66
    v_add_f32 v66, 1.0, v66
    v_rcp_f32 v66, v66
    v_mul_f32 v64, v64, v66""")
    bf1(k, 64)
    k("v_mul_f32 v64, v64, v65")
    bf1(k, 64)
    k(f"buffer_store_dword v64, v51, {srd(WS)}, s{sB} offen {WT}")
    k.label("L_nprod")
    k.vm = []; k.lg = []
    TT()
    k(f"s_cmp_ge_u32 s{sC2}, 64\ns_cbranch_scc1 L_fin")
    k(f"""v_lshlrev_b32 v4, 6, v0
    v_cmp_gt_u32 vcc, 224, v0
    v_mov_b32 v51, {OOB}
    v_cndmask_b32 v4, v51, v4, vcc
    s_mov_b32 s{sB}, {WS_ACT}
    v_and_b32 v52, 7, v2
    s_lshl_b32 s{sC}, s{sC2}, 3
    v_add_u32 v52, s{sC}, v52            ; column
    v_lshrrev_b32 v53, 5, v52
    v_lshlrev_b32 v53, 6, v53
    v_and_b32 v54, 12, v52
    v_lshl_add_u32 v53, v54, 2, v53
    v_bfe_u32 v54, v52, 4, 1
    v_lshl_add_u32 v53, v54, 3, v53
    v_and_b32 v54, 2, v52
    v_lshl_add_u32 v53, v54, 1, v53
    v_lshlrev_b32 v54, 2, v52
    s_mov_b32 s{sC}, {WS_MOD + 5*2048}
    buffer_load_dword v55, v54, {srd(WS)}, s{sC} offen""")
    al = [("m", f"buffer_load_dwordx4 v[80:83], v4, {srd(WS)}, s{sB} offen {WT}"), ("m", f"buffer_load_dwordx4 v[84:87], v4, {srd(WS)}, s{sB} offen offset:16 {WT}"),
          ("m", f"buffer_load_dword v88, v53, {srd(WS)}, s{sCND} offen {WT}"), ("m", f"buffer_load_dword v89, v53, {srd(WS)}, s{sCND} offen offset:1024 {WT}")]
    g.run(al[2:])
    unpack(k, WDF[0], MD, 64)
    k(f"""s_and_b32 s{sC}, s{sKEY}, 0xfffff800
    s_or_b32 s{sC}, s{sC}, 0x400
    v_mov_b32 v90, s{sC}
    v_not_b32 v91, v90
    v_ashrrev_i32 v91, 31, v91
    v_or_b32 v91, 0x80000000, v91
    v_xor_b32 v90, v90, v91""")
    bf1(k, 90)
    k(f"""v_mul_f32 v90, {H(-LOG2E)}, v90
    v_exp_f32 v90, v90
    v_add_f32 v90, 1.0, v90
    v_rcp_f32 v90, v90""")
    bf1(k, 90)
    sent_wait(g, [88, 89], al[2:], "CND", sleep=1)
    k(f"""v_and_b32 v51, 1, v52
    v_cmp_eq_u32 vcc, 0, v51
    v_lshlrev_b32 v91, 16, v88
    v_and_b32 v88, 0xffff0000, v88
    v_cndmask_b32 v88, v88, v91, vcc
    v_lshlrev_b32 v91, 16, v89
    v_and_b32 v89, 0xffff0000, v89
    v_cndmask_b32 v89, v89, v91, vcc
    v_and_b32 v50, 15, v2
    v_cmp_eq_u32 vcc, 0, v50
    v_lshrrev_b32 v51, 1, v0
    v_mov_b32 v50, 1024
    v_cndmask_b32 v51, v50, v51, vcc
    v_and_b32 v50, 7, v2
    v_lshlrev_b32 v50, 2, v50
    v_cmp_gt_u32 vcc, 8, v2
    v_lshlrev_b32 v52, 1, v52
    v_mov_b32 v53, {OOB}
    v_cndmask_b32 v52, v53, v52, vcc""")
    k(f"""s_cmp_lt_u32 s{sCG}, 224
    s_cbranch_scc1 L_asl
    s_sleep {E_('ASL7', '16')}""")
    k.label("L_asl")
    k(f"s_sleep {E_('ASL', '7')}")
    g.run(al[:2])
    TT()
    sent_wait(g, list(range(80, 88)), al[:2], "ACT", sleep=int(E_("ASL2", "2")))
    TT()
    for r in range(8):
        for i in range(0, 8, 2):
            w = WDF[8 * r + i]; a = 80 + (r & ~1); sel = r & 1
            if r == 0: k(f"v_pk_mul_f32 v[{64+i}:{65+i}], v[{w}:{w+1}], v[{a}:{a+1}] op_sel_hi:[1,0]")
            else: k(f"v_pk_fma_f32 v[{64+i}:{65+i}], v[{w}:{w+1}], v[{a}:{a+1}], v[{64+i}:{65+i}] op_sel:[0,{sel},0] op_sel_hi:[1,{sel},1]")
    for i in range(4): k(f"v_permlane32_swap_b32 v{64+i}, v{68+i}")
    for i in range(4): k(f"v_add_f32 v{64+i}, v{64+i}, v{68+i}")
    for i in range(2): k(f"v_permlane16_swap_b32 v{64+i}, v{66+i}")
    for i in range(2): k(f"v_add_f32 v{64+i}, v{64+i}, v{66+i}")
    for pat in ("quad_perm:[1,0,3,2]", "quad_perm:[2,3,0,1]", "row_half_mirror", "row_mirror"):
        for i in range(2): k(f"v_add_f32_dpp v{64+i}, v{64+i}, v{64+i} {pat} row_mask:0xf bank_mask:0xf")
    k(f"""ds_write_b64 v51, v[64:65] offset:2048
    s_waitcnt lgkmcnt(0)
    s_barrier
    s_cmp_lg_u32 s{sW}, 0
    s_cbranch_scc1 L_fin
    ds_read_b32 v64, v50 offset:2048
    ds_read_b32 v65, v50 offset:2080
    ds_read_b32 v66, v50 offset:2112
    ds_read_b32 v67, v50 offset:2144
    s_lshl_b32 s{sB}, s{sIDX}, 10
    v_add_f32 v64, v64, v65
    v_add_f32 v66, v66, v67
    v_add_f32 v64, v64, v66""")
    bf1(k, 64)
    k("v_mul_f32 v64, v64, v90"); bf1(k, 64)
    k("v_add_f32 v64, v64, v88"); bf1(k, 64)
    k("v_mul_f32 v64, v64, v55"); bf1(k, 64)
    k(f"""v_add_f32 v64, v64, v89
    v_cvt_pk_bf16_f32 v64, v64, v64
    buffer_store_short v64, v52, {srd(OUT)}, s{sB} offen""")

def verify_all(lines):
    tot = 0
    for name, (n1, n2, slow) in {"p0": (0, 15, False), "p3": (3, 12, False), "p1": (1, 14, True), "redo0": (0, 15, False), "redo3": (3, 12, False)}.items():
        def decide(lab, c):
            if lab.endswith("_redo"): return name.startswith("redo")
            if lab.endswith("_max"): return c == 0
            if lab.endswith("_mk"): return n1 == 0
            if lab.endswith("_maxd"): return c >= min(2, n1 if "t1" in lab else n2)
            if lab == "L_t1_zero": return n1 == 0
            if lab == "L_t1_diag": return n1 == 1
            if lab == "L_t2_diag": return name == "p1"
            if lab == "L_t1_loop": return c % 2 < min(n1 - 2, 1)
            if lab == "L_t2_loop": return c % 3 < 2
            if "_slow" in lab and not lab.endswith("_l"): return slow
            if "_ok" in lab or lab in ("L_kd", "L_hok"): return (c >= 2) if slow and ("P2" in lab or "ACT" in lab or "CND" in lab or lab in ("L_kd", "L_hok")) else True
            if lab == "L_notbest": return slow
            return False
        T = trace(lines, decide)
        e = verify(T)
        tot += len(e)
        print(f"verify {name}: {len(T)} instrs, {len(e)} problems", file=sys.stderr)
        for x in e[:12]: print("   ", x, file=sys.stderr)
    assert tot == 0
```

```python
import sys, os
sys.path.insert(0, os.path.dirname(os.path.abspath(__file__)))
from common import *
from gen_attn import *
from gen_tail import *

TSR = list(range(83, 96)) + ([76, 77, 78] if not E_('TSP') else [])
NTS = [dict(k=WUK, v=WUV, q=WQ, o=WO)[c] for c in E_('NTS', 'k')]
class G:
    def __init__(self):
        self.k = K(); self.tail = []
        self.TS = E_("TS"); self.nts = 0
    def ts(self, k=None, force=False):
        if not self.TS: return
        if (E_("TSP") or E_("TSO") or E_("TSA") or E_("TST")) and not force: return
        k = k or self.k
        n = self.nts; self.nts += 1
        assert n < len(TSR)
        k(f"{'s_memrealtime' if self.TS == 'r' else 's_memtime'} vcc\ns_waitcnt lgkmcnt(0)\ns_mov_b32 s{TSR[n]}, vcc_lo")
    def ts0(self):
        if not E_("TS0"): return
        self.n0 = getattr(self, "n0", 0) + 1
        self.k(f"s_memrealtime vcc\ns_waitcnt lgkmcnt(0)\nv_writelane_b32 v255, vcc_lo, {self.n0}")
    def poll_check(self, vreg, vaddr, sr, soff, name, target=None):
        def f(k):
            slow, back = k.lab(name + "_slow"), k.lab(name + "_ok")
            cmp_ = f"v_cmp_ne_u32 vcc, 0, v{vreg}" if target is None else f"v_cmp_le_u32 vcc, {target}, v{vreg}"
            k(f"{cmp_}\ns_cmp_eq_u64 vcc, -1\ns_cbranch_scc0 {slow}")
            k.label(back)
            self.tail.append(f"""{slow}:
    s_mov_b32 s{sD}, 0
{slow}_l:
    s_sleep 4
    buffer_load_dword v{vreg}, v{vaddr}, {srd(sr)}, {soff} offen {WT}
    s_add_u32 s{sD}, s{sD}, 1
    s_waitcnt vmcnt(0)
    {cmp_}
    s_cmp_eq_u64 vcc, -1
    s_cbranch_scc1 {back}
    s_cmp_lt_u32 s{sD}, {SPIN}
    s_cbranch_scc1 {slow}_l
    s_branch {back}""")
        return f
    def dma4(self, sr, voffs, m0, so, tag, xor=False, nt=None):
        it = [("s", f"s_add_u32 m0, s{m0[0]}, {m0[1]}"), ("s", f"{'s_xor_b32' if xor else 's_add_u32'} s{sA}, s{so[0]}, {so[1]}")]
        for i in range(4):
            it.append(("m", f"buffer_load_dwordx4 v{voffs[i]}, {srd(sr)}, s{sA} offen offset:{i*1024} {NT if (sr in NTS if nt is None else nt) else ''} lds", tag))
        return it
    def run(self, its):
        for it in its:
            if callable(it[1]): it[1](self.k)
            else: self.k(it[1], it[2] if len(it) > 2 else None)
    def bar(self, tags, lgkm0=True):
        def f(k):
            k.waitvm(tags, lgkm0)
            if not E_("NOBAR"): k("s_barrier")
        return f
    def flag_store(self, so, tags):
        return [("x", lambda k: k.waitvm(tags)), ("m", f"buffer_store_dword v6, v5, {srd(WS)}, s{so} offen {WT}", "flag")]

    def startup(self):
        k = self.k
        if self.TS: k(f"{'s_memrealtime' if self.TS == 'r' else 's_memtime'} s[58:59]")
        k(f"""s_cmp_ge_u32 s2, 256
        s_cbranch_scc1 L_end
        s_load_dwordx16 s[64:79], s[0:1], 0
        s_load_dwordx16 s[80:95], s[0:1], 64
        s_getpc_b64 s[{sB}:{sC}]
        L_pf1:
        v_lshrrev_b32 v3, 6, v0
        v_and_b32 v2, 63, v0
        s_lshr_b32 s{sJ}, s2, 3
        s_mul_i32 s{sA}, s{sJ}, 24
        v_min_u32 v5, 5, v2
        v_mad_u32_u24 v5, v3, 6, v5
        v_add_u32 v5, s{sA}, v5
        v_lshlrev_b32 v5, 7, v5
        v_min_u32 v5, L_code_end-L_pf1, v5""")
        k(f"global_load_dword a255, v5, s[{sB}:{sC}]", "pf")
        k(f"""v_readfirstlane_b32 s{sW}, v3
        v_lshlrev_b32 v1, 4, v2
        s_and_b32 s{sX}, s2, 7
        s_and_b32 s{sJ}, s{sJ}, 3
        s_lshr_b32 s{sP}, s2, 5
        s_lshl_b32 s{sH}, s{sX}, 2
        s_add_u32 s{sH}, s{sH}, s{sJ}
        s_mov_b32 s{sT1}, s{sP}
        s_sub_u32 s{sT2}, 15, s{sP}
        v_lshrrev_b32 v3, 3, v2
        v_lshrrev_b32 v4, 4, v2
        v_and_b32 v5, 7, v2
        v_xor_b32 v5, v5, v4
        v_lshlrev_b32 v5, 4, v5
        v_lshl_add_u32 v16, v3, 10, v5
        v_xor_b32 v17, 64, v16
        v_add_u32 v17, {7168}, v17
        v_add_u32 v18, {2*7168}, v16
        v_add_u32 v19, {2*7168}, v17
        ; W (k-major): v20..23
        v_bfe_u32 v5, v2, 1, 3
        v_xor_b32 v5, v5, v4
        v_lshlrev_b32 v5, 5, v5
        v_and_b32 v6, 1, v2
        v_lshl_add_u32 v5, v6, 4, v5
        v_lshl_add_u32 v20, v4, 13, v5
        v_add_u32 v21, {31744}, v20
        v_xor_b32 v22, 128, v20
        v_add_u32 v22, {2*31744}, v22
        v_add_u32 v23, {31744}, v22
        s_lshl_b32 s{sW8}, s{sW}, 13
        s_lshl_b32 s{sW4}, s{sW}, 12
        s_lshl_b32 s{sXB}, s{sP}, 18
        s_lshl_b32 s{sA}, s{sW}, 16
        s_add_u32 s{sXB}, s{sXB}, s{sA}
        s_lshl_b32 s{sWB}, s{sW}, 17
        s_lshl_b32 s{sD}, s{sJ}, {int(E_("RJ", "0"))}
        s_xor_b32 s{sD}, s{sD}, s{sP}
        s_lshl_b32 s{sD}, s{sD}, {int(E_("RS", "3"))}
        s_and_b32 s{sD}, s{sD}, 7
        s_lshl_b32 s{sA}, s{sD}, 7
        s_add_u32 s{sXB}, s{sXB}, s{sA}
        s_lshl_b32 s{sA}, s{sD}, 19
        s_add_u32 s{sWB}, s{sWB}, s{sA}
        v_and_b32 v84, 7, v2
        v_lshrrev_b32 v65, 3, v0
        v_mul_u32_u24 v64, 24576, v65
        v_lshl_add_u32 v64, v84, 4, v64
        v_lshlrev_b32 v65, 3, v65
        v_lshrrev_b32 v85, 3, v2
        v_lshlrev_b32 v86, 10, v84
        v_lshl_add_u32 v86, v85, 4, v86
        s_lshl_b32 s{sB}, s{sH}, 8
        s_waitcnt lgkmcnt(0)""")
        def mk(s, p, n, off=None):
            if off is None: k(f"s_mov_b32 s{s}, s{PTR[p]}\ns_mov_b32 s{s+1}, s{PTR[p]+1}\ns_mov_b32 s{s+2}, {n}\ns_mov_b32 s{s+3}, 0x00020000")
            else: k(f"s_add_u32 s{s}, s{PTR[p]}, s{off}\ns_addc_u32 s{s+1}, s{PTR[p]+1}, 0\ns_sub_u32 s{s+2}, {n}, s{off}\ns_mov_b32 s{s+3}, 0x00020000")
        if E_("TS0"): k("v_writelane_b32 v255, s58, 0")
        self.ts0()
        mk(WUK, "wuk", 0x400000, sB); mk(CKV, "ckv", 2048 * 1024)
        self.run(self.wdma(0)); self.ts0(); self.run(self.xdma(0)); self.ts0()
        T0 = E_("T0", "")
        if "x" in T0:
            k(f"""v_lshlrev_b32 v96, 7, v2
            v_min_u32 v96, {15*128}, v96
            s_lshl_b32 s{sC}, s2, 13
            s_lshl_b32 s{sD}, s{sW}, 11
            s_add_u32 s{sC}, s{sC}, s{sD}""")
            k(f"buffer_load_dword a254, v96, {srd(CKV)}, s{sC} offen", "pf")
        if "k" in T0:
            k(f"""v_bfe_u32 v96, v2, 1, 4
            v_lshlrev_b32 v96, 13, v96
            v_lshl_add_u32 v96, v6, 7, v96
            s_lshl_b32 s{sC}, s{sP}, 19
            s_lshl_b32 s{sD}, s{sW}, 17
            s_add_u32 s{sC}, s{sC}, s{sD}""")
            k(f"buffer_load_dword a253, v96, {srd(WUK)}, s{sC} offen", "pf")
        mk(WM, "wmod", 512 * 6144); mk(CS, "c", 1024); mk(XS, "x", 2048 * 1024)
        mk(WS, "ws", WS_SIZE); mk(WUV, "wuv", 0x400000, sB); mk(WQ, "wq", 0x400000, sB); mk(DBG, "dbg", 256)
        k(f"""s_lshl_b32 s{sB}, s{sX}, 19
        s_lshl_b32 s{sD}, s{sJ}, 8
        s_add_u32 s{sB}, s{sB}, s{sD}""")
        mk(WO, "wo", 0x400000, sB)
        mk(WD_, "wd", 1792 * 1024); mk(OUT, "out", 2048 * 1024)
        k(f"s_mov_b64 s[{sPG}:{sPG+1}], s[{PTR['wg']}:{PTR['wg']+1}]\ns_mov_b64 s[{sPG+2}:{sPG+3}], s[{PTR['wu']}:{PTR['wu']+1}]")
        if self.TS: k(f"s_mov_b32 s{TSR[0]}, s58"); self.nts = 1
        mk(WR_, "wr", 1024)
        if E_("STOUCH", "1") == "1":
            k(f"s_load_dword s90, s[{DBG}:{DBG+1}], 64\ns_load_dword s91, s[{WS}:{WS+1}], 0x3f00")
        k(f"""s_lshl_b32 s{sVB}, s{sW}, 19
        s_and_b32 s{sB}, s{sWB}, {7 << 19}
        s_xor_b32 s{sVB}, s{sVB}, s{sB}
        s_lshr_b32 s{sB}, s{sP}, {int(E_("RV", "1"))}
        s_and_b32 s{sB}, s{sB}, {int(E_("RVM", "0"))}
        s_lshl_b32 s{sVX}, s{sB}, 12                ; column half order of the V projection
        s_lshl_b32 s{sB}, s{sB}, 7
        s_add_u32 s{sVB}, s{sVB}, s{sB}
        s_lshl_b32 s{sB}, s{sJ}, 1
        s_xor_b32 s{sB}, s{sB}, s{sP}
        s_and_b32 s{sB}, s{sB}, {int(E_("RQM", "0"))}
        s_lshl_b32 s{sQR}, s{sB}, 11                ; chunk order of the Q projection
        s_lshl_b32 s{sB}, s{sB}, 19
        s_lshl_b32 s{sQB}, s{sW}, 17
        s_add_u32 s{sQB}, s{sQB}, s{sB}
        s_lshl_b32 s{sKV}, s{sH}, 20
        s_add_u32 s{sKV}, s{sKV}, {WS_KV}
        s_lshl_b32 s{sB}, s{sP}, 17
        s_add_u32 s{sKVST}, s{sKV}, s{sB}
        s_lshr_b32 s{sB}, s{sW}, 1
        s_lshl_b32 s{sB}, s{sB}, 16
        s_add_u32 s{sKVST}, s{sKVST}, s{sB}
        s_and_b32 s{sB}, s{sW}, 1
        s_lshl_b32 s{sB}, s{sB}, 14
        s_add_u32 s{sKVST}, s{sKVST}, s{sB}
        s_add_u32 s{sKV}, s{sKV}, s{sW8}
        s_min_u32 s{sKp}, s{sT1}, 1
        s_lshl_b32 s{sKp}, s{sKp}, 16
        s_add_u32 s{sKp}, s{sKp}, s{sKV}
        s_sub_u32 s{sB}, s{sP}, 2
        s_lshl_b32 s{sEO}, s{sB}, 7
        s_lshl_b32 s{sB}, s{sB}, 3
        s_add_u32 s{sB}, s{sB}, s{sX}
        s_lshl_b32 s{sB}, s{sB}, 8
        s_mul_i32 s{sC}, s{sJ}, 12288
        s_add_u32 s{sB}, s{sB}, s{sC}
        s_add_u32 s{sB}, s{sB}, {WS_MODP}
        s_cmp_ge_u32 s{sP}, 2
        s_cselect_b32 s{sMODO}, s{sB}, {OOB}
        s_cselect_b32 s{sEO}, s{sEO}, {OOB}
        s_cmp_eq_u32 s{sW}, 0
        s_cselect_b32 s{sMODO}, s{sMODO}, {OOB}
        s_lshl_b32 s{sLNP}, s{sW}, 9
        s_add_u32 s{sLNP}, s{sLNP}, {WS_MODP}
        s_lshr_b32 s{sHST}, s2, 1
        s_lshl_b32 s{sHST}, s{sHST}, 14
        s_and_b32 s{sB}, s2, 1
        s_lshl_b32 s{sB}, s{sB}, 7
        s_add_u32 s{sHST}, s{sHST}, s{sB}
        s_add_u32 s{sHST}, s{sHST}, s{sW4}
        s_add_u32 s{sHST}, s{sHST}, {WS_H}
        s_lshl_b32 s{sHFO}, s2, 2
        s_add_u32 s{sHFO}, s{sHFO}, s{sW}
        s_lshl_b32 s{sHFO}, s{sHFO}, 6
        s_add_u32 s{sHFO}, s{sHFO}, {WS_HF}
        s_lshl_b32 s{sKFP}, s{sH}, 11
        s_add_u32 s{sKFP}, s{sKFP}, {WS_KVF}
        s_lshl_b32 s{sKFO}, s{sP}, 2
        s_add_u32 s{sKFO}, s{sKFO}, s{sW}
        s_lshl_b32 s{sKFO}, s{sKFO}, 6
        s_add_u32 s{sKFO}, s{sKFO}, s{sKFP}
        s_lshr_b32 s{sB}, s{sW}, 1
        s_sub_u32 s{sC}, 3, s{sB}
        s_and_b32 s{sA}, s{sW}, 1
        s_cselect_b32 s{sB}, s{sC}, s{sB}          ; row group projected by this wave
        s_lshl_b32 s{sH1}, s{sT1}, 2
        s_add_u32 s{sH1}, s{sH1}, s{sB}
        s_lshl_b32 s{sH2}, s{sT2}, 2
        s_add_u32 s{sH2}, s{sH2}, s{sB}
        s_sub_u32 s{sHFD}, s{sH2}, s{sH1}
        s_lshl_b32 s{sHFD}, s{sHFD}, 10
        s_lshl_b32 s{sHF1}, s{sH1}, 10
        s_add_u32 s{sHF1}, s{sHF1}, {WS_HF - 65536}
        s_lshl_b32 s{sH1}, s{sH1}, 15
        s_add_u32 s{sH1}, s{sH1}, {WS_H}
        s_add_u32 s{sH1}, s{sH1}, s{sQR}
        s_lshl_b32 s{sH2}, s{sH2}, 15
        s_add_u32 s{sH2}, s{sH2}, {WS_H}
        s_add_u32 s{sH2}, s{sH2}, s{sQR}
        s_add_u32 s{sVX}, s{sVX}, s{sKVST}
        {f"s_mov_b32 s{sVX}, 0x70000000" if E_("NOST") else ""}
        {f"s_mov_b32 s{sKVST}, 0x70000000" if E_("NOST") else ""}
        {f"s_mov_b32 s{sH1}, {WS_H}" if E_("NOH") else ""}
        {f"s_mov_b32 s{sH2}, {WS_H}" if E_("NOH") else ""}
        s_cmp_eq_u32 s{sW}, 0
        s_cselect_b32 s{sET}, 32, 0
        s_cselect_b32 s{sEP}, 0, {OOB}""")
        k(f"""v_and_b32 v48, 15, v2          ; i16
        v_lshrrev_b32 v49, 4, v2       ; q4
        v_lshrrev_b32 v50, 1, v48
        v_xor_b32 v50, v50, v49
        v_lshlrev_b32 v50, 4, v50
        v_lshl_add_u32 v28, v48, 7, v50
        v_add_u32 v28, s{sW8}, v28
        v_xor_b32 v29, 64, v28
        v_add_u32 v30, 65536, v28
        v_add_u32 v31, 65536, v29
        v_lshrrev_b32 v50, 2, v48     ; r
        v_and_b32 v51, 3, v48         ; c
        v_lshl_add_u32 v52, v49, 3, v50      ; row = 8q4 + r
        v_lshlrev_b32 v53, 8, v52
        v_lshl_add_u32 v53, v51, 3, v53
        v_add_u32 v53, {R3}, v53
        v_and_b32 v54, 1, v49
        v_lshl_add_u32 v54, v54, 2, v50      ; f""")
        for nt in range(8):
            k(f"v_xor_b32 v55, {nt}, v54\nv_lshl_add_u32 v{8+nt}, v55, 5, v53")
        k(f"""v_bfe_u32 v49, v2, 1, 2
        v_bfe_u32 v50, v2, 4, 1
        v_xor_b32 v49, v49, v50
        v_lshlrev_b32 v49, 5, v49
        v_and_b32 v50, 1, v2
        v_lshl_add_u32 v49, v50, 4, v49
        v_lshl_add_u32 v24, v85, 13, v49
        v_xor_b32 v25, 64, v24
        v_add_u32 v25, {64512}, v25
        v_add_u32 v26, {2*64512}, v24
        v_add_u32 v27, {2*64512}, v25
        v_cmp_eq_u32 vcc, 0, v2
        v_mov_b32 v6, {OOB}
        v_cndmask_b32 v5, v6, v2, vcc
        v_cmp_eq_u32 vcc, 0, v0
        v_cndmask_b32 v7, v6, v0, vcc
        v_and_b32 v48, 8, v2
        v_cmp_eq_u32 vcc, 0, v48
        v_lshlrev_b32 v48, 5, v84
        v_lshrrev_b32 v49, 1, v2
        v_and_b32 v49, 24, v49
        v_add_u32 v48, v48, v49
        s_lshl_b32 s{sB}, s{sW}, 8
        s_add_u32 s{sB}, s{sB}, {MISC}
        v_add_u32 v48, s{sB}, v48
        v_mov_b32 v49, {MISC + 1024}
        v_cndmask_b32 v98, v49, v48, vcc
        v_lshlrev_b32 v99, 5, v84
        v_add_u32 v99, {MISC + 2048}, v99
        s_lshl_b32 s{sB}, s{sW}, 3
        v_add_u32 v100, s{sB}, v99
        v_lshlrev_b32 v106, 5, v85
        v_lshlrev_b32 v107, 8, v85
        v_lshl_add_u32 v107, v84, 4, v107
        s_sub_u32 s{sB}, s2, 64
        s_lshl_b32 s{sZO}, s{sB}, 12
        s_add_u32 s{sZO}, s{sZO}, {WS_HF}
        s_cmp_lt_u32 s{sB}, 64
        s_cselect_b32 s{sZO}, s{sZO}, {OOB}
        s_mul_i32 s{sD}, s{sJ}, {128*6144}
        s_sub_u32 s{sSD}, s{sP}, 2
        s_lshl_b32 s{sSD}, s{sSD}, 3
        s_add_u32 s{sSD}, s{sSD}, s{sX}
        s_lshl_b32 s{sSD}, s{sSD}, 7
        s_add_u32 s{sSD}, s{sSD}, s{sD}
        s_cmp_ge_u32 s{sP}, 2
        s_cselect_b32 s{sSD}, s{sSD}, {OOB - 0x10000}
        {f"s_cmp_lt_u32 s{sP}, 4" if E_("NOLATE") else ""}
        {f"s_cselect_b32 s{sSD}, s{sSD}, {OOB - 0x10000}" if E_("NOLATE") else ""}
        s_lshl_b32 s{sB}, s{sJ}, 8
        v_add_u32 v65, s{sB}, v65
        v_mov_b32 v6, 1
        v_and_b32 v4, 1, v2
        v_lshlrev_b32 v4, 7, v4""")
        self.ts0()
        if E_("SIDE", "0") == "0": self.run(self.side())
        self.run(self.wdma(1) + self.xdma(1))
        self.ts0()
        if E_("TS0"):
            k.waitvm([("x", 0), ("w", 0)], True); self.ts0()
            k.waitvm(["pf"], True); self.ts0()
            k("s_waitcnt vmcnt(0)"); self.ts0()
            k(f"""s_lshl_b32 s{sB}, s2, 2
            s_add_u32 s{sB}, s{sB}, s{sW}
            s_lshl_b32 s{sB}, s{sB}, 6
            s_add_u32 s{sB}, s{sB}, {WS_TS}
            v_lshlrev_b32 v5, 2, v2
            s_mov_b64 exec, 0xffff
            buffer_store_dword v255, v5, {srd(WS)}, s{sB} offen
            s_endpgm""")

    def side(self):
        return items(f"""buffer_load_dwordx2 v[66:67], v65, {srd(CS)}, 0 offen
        buffer_load_dwordx4 v[68:71], v64, {srd(WM)}, s{sSD} offen {NT}
        s_add_u32 s{sSD}, s{sSD}, 6144
        buffer_load_dwordx4 v[72:75], v64, {srd(WM)}, s{sSD} offen {NT}
        s_add_u32 s{sSD}, s{sSD}, 6144
        buffer_load_dwordx4 v[76:79], v64, {srd(WM)}, s{sSD} offen {NT}
        s_add_u32 s{sSD}, s{sSD}, 6144
        buffer_load_dwordx4 v[80:83], v64, {srd(WM)}, s{sSD} offen {NT}
        s_lshl_b32 s{sSD}, s2, 5
        s_add_u32 s{sSD}, s{sSD}, s{sW}
        s_lshl_b32 s{sSD}, s{sSD}, 8
        buffer_load_dwordx4 v[88:91], v86, {srd(XS)}, s{sSD} offen {NT}
        buffer_load_dwordx4 v[92:95], v86, {srd(XS)}, s{sSD} offen offset:128 {NT}""")
    XR = [R0, R1, R2]
    WSL = [R3, R3 + 16384, R4]
    WQB = [R4, R3, R3 + 16384, MISC, R0, R0 + 16384, R1, R1 + 16384]
    VQB = [R2, R0, R1, R2]
    def xdma(self, s):
        it = []
        for g in range(2):
            it += self.dma4(CKV, [16, 17, 18, 19], (sW8, self.XR[s % 3] + g * 4096), (sXB, s * 128 + g * 32768), ("x", s), True)
        return it
    def wdma(self, s): return self.dma4(WUK, [20, 21, 22, 23], (sW4, self.WSL[s % 3]), (sWB, s * 64 * 8192), ("w", s), True)
    def qdma(self, c): return self.dma4(WQ, [20, 21, 22, 23], (sW4, self.WQB[c]), (sQB, c * 64 * 8192), ("q", c), True)
    def vdma(self, c):
        it = []
        for g in range(2):
            it += self.dma4(WUV, [24, 25, 26, 27], (sW8, self.VQB[c] + g * 4096), (sVB, (c >> 1) * 128 + (c & 1) * 256 * 8192 + g * 4 * 65536), ("v", c), True, c < int(E_("VNT", "0")))
        return it

    def modA(self):
        C, T, AC = 102, 108, 120
        t = f"""v_lshlrev_b32 v{C}, 16, v66
        v_and_b32 v{C+1}, 0xffff0000, v66
        v_lshlrev_b32 v{C+2}, 16, v67
        v_and_b32 v{C+3}, 0xffff0000, v67
        """
        for i in range(4): t += f"v_mul_f32 v{T+i}, {H(-LOG2E)}, v{C+i}\n"
        for i in range(4): t += f"v_exp_f32 v{T+i}, v{T+i}\n"
        for i in range(4): t += f"v_add_f32 v{T+i}, 1.0, v{T+i}\n"
        for i in range(4): t += f"v_rcp_f32 v{T+i}, v{T+i}\n"
        for i in range(4): t += f"v_mul_f32 v{C+i}, v{C+i}, v{T+i}\n"
        t += f"""v_cvt_pk_bf16_f32 v{T}, v{C}, v{C+1}
        v_cvt_pk_bf16_f32 v{T+1}, v{C+2}, v{C+3}
        v_lshlrev_b32 v{C}, 16, v{T}
        v_and_b32 v{C+1}, 0xffff0000, v{T}
        v_lshlrev_b32 v{C+2}, 16, v{T+1}
        v_and_b32 v{C+3}, 0xffff0000, v{T+1}
        """
        for r in range(4):
            for i in range(4):
                a, b = T + 2 * (i & 1), T + 2 * (i & 1) + 1
                op = "v_mul_f32" if r == 0 else "v_fmac_f32"
                t += f"""v_lshlrev_b32 v{a}, 16, v{68+4*r+i}
                v_and_b32 v{b}, 0xffff0000, v{68+4*r+i}
                {op} v{AC+2*i}, v{a}, v{C+r}
                {op} v{AC+2*i+1}, v{b}, v{C+r}
                """
        for i in range(4): t += f"v_permlane32_swap_b32 v{AC+i}, v{AC+4+i}\n"
        for i in range(4): t += f"v_add_f32 v{AC+i}, v{AC+i}, v{AC+4+i}\n"
        for i in range(2): t += f"v_permlane16_swap_b32 v{AC+i}, v{AC+2+i}\n"
        for i in range(2): t += f"v_add_f32 v{AC+i}, v{AC+i}, v{AC+2+i}\n"
        for i in range(2): t += f"v_add_f32_dpp v{AC+i}, v{AC+i}, v{AC+i} row_ror:8 row_mask:0xf bank_mask:0xf\n"
        t += f"ds_write_b64 v98, v[{AC}:{AC+1}]\n"
        return items(t)
    def red16(self, b):
        t = ""
        for i in range(8): t += f"v_permlane32_swap_b32 v{b+i}, v{b+8+i}\n"
        for i in range(8): t += f"v_add_f32 v{b+i}, v{b+i}, v{b+8+i}\n"
        for i in range(4): t += f"v_permlane16_swap_b32 v{b+i}, v{b+4+i}\n"
        for i in range(4): t += f"v_add_f32 v{b+i}, v{b+i}, v{b+4+i}\n"
        for pat in ("quad_perm:[1,0,3,2]", "quad_perm:[2,3,0,1]", "row_half_mirror", "row_mirror"):
            for i in range(4): t += f"v_add_f32_dpp v{b+i}, v{b+i}, v{b+i} {pat} row_mask:0xf bank_mask:0xf\n"
        return t
    def modB(self):
        it = items(f"""v_lshrrev_b32 v87, 2, v1
        v_add_u32 v101, {MISC}, v87
        ds_read_b32 v102, v101
        ds_read_b32 v103, v101 offset:256
        ds_read_b32 v104, v101 offset:512
        ds_read_b32 v105, v101 offset:768""")
        it2 = items(f"""v_add_f32 v102, v102, v103
        v_add_f32 v104, v104, v105
        v_add_f32 v102, v102, v104""")
        it2.append(("m", f"buffer_store_dword v102, v87, {srd(WS)}, s{sMODO} offen {WT}", "mod"))
        return it, it2
    def red8(self, v, t):
        return f"""v_add_f32_dpp v{v}, v{v}, v{v} row_ror:8 row_mask:0xf bank_mask:0xf
        v_mov_b32 v{t}, v{v}
        v_permlane16_swap_b32 v{v}, v{t}
        v_add_f32 v{v}, v{v}, v{t}
        v_mov_b32 v{t}, v{v}
        v_permlane32_swap_b32 v{v}, v{t}
        v_add_f32 v{v}, v{v}, v{t}
        """
    XH = 64
    def lnA(self):
        X = self.XH
        t = ""
        for i in range(8): t += f"v_lshlrev_b32 v{X+2*i}, 16, v{88+i}\nv_and_b32 v{X+2*i+1}, 0xffff0000, v{88+i}\n"
        t += f"v_add_f32 v108, v{X}, v{X+1}\nv_add_f32 v109, v{X+2}, v{X+3}\n"
        for i in range(4, 16, 2): t += f"v_add_f32 v108, v108, v{X+i}\nv_add_f32 v109, v109, v{X+i+1}\n"
        t += "v_add_f32 v108, v108, v109\n" + self.red8(108, 110)
        t += f"v_mul_f32 v108, {H(1/128)}, v108\n"
        t += f"v_sub_f32 v110, v{X}, v108\nv_mul_f32 v109, v110, v110\n"
        for i in range(1, 16): t += f"v_sub_f32 v{110+(i&1)}, v{X+i}, v108\nv_fmac_f32 v109, v{110+(i&1)}, v{110+(i&1)}\n"
        t += self.red8(109, 110)
        t += "ds_write_b64 v100, v[108:109]\n"
        return items(t)
    def lnB(self):
        X = self.XH
        it = items(f"""ds_read_b128 v[88:91], v99
        ds_read_b128 v[92:95], v99 offset:16""")
        t = f"""v_add_f32 v108, v88, v90
        v_add_f32 v109, v92, v94
        v_add_f32 v108, v108, v109
        v_mul_f32 v108, {H(0.25)}, v108
        v_add_f32 v109, v89, v91
        v_add_f32 v110, v93, v95
        v_add_f32 v109, v109, v110
        v_sub_f32 v88, v88, v108
        v_sub_f32 v90, v90, v108
        v_sub_f32 v92, v92, v108
        v_sub_f32 v94, v94, v108
        v_mul_f32 v110, v88, v88
        v_fmac_f32 v110, v90, v90
        v_fmac_f32 v110, v92, v92
        v_fmac_f32 v110, v94, v94
        v_fmac_f32 v109, {H(128.0)}, v110
        v_mov_b32 v110, {H(1e-5)}
        v_fmac_f32 v110, {H(1/512)}, v109
        v_rsq_f32 v110, v110
        """
        for i in range(16): t += f"v_sub_f32 v{X+i}, v{X+i}, v108\n"
        for i in range(16): t += f"v_mul_f32 v{X+i}, v{X+i}, v110\n"
        return it, items(t)
    def lnC_loads(self):
        it = items(f"""v_and_b32 v96, 31, v2
        v_lshlrev_b32 v96, 4, v96
        v_lshrrev_b32 v97, 5, v2
        v_lshl_add_u32 v96, v97, 11, v96""")
        ld = []
        for q in range(4):
            ld += [("m", f"buffer_load_dwordx4 v[{80+4*q}:{83+4*q}], v96, {srd(WS)}, s{sLNP} offen")]
            if q < 3: ld += [("s", f"s_add_u32 s{sLNP}, s{sLNP}, 12288")]
        return it, ld
    def lnC_fin(self):
        t = ""
        for e in range(4): t += f"v_add_f32 v{80+e}, v{80+e}, v{84+e}\nv_add_f32 v{88+e}, v{88+e}, v{92+e}\n"
        for e in range(4): t += f"v_add_f32 v{80+e}, v{80+e}, v{88+e}\n"
        rnd = lambda: "".join(f"v_cvt_pk_bf16_f32 v{84+e}, v{80+2*e}, v{81+2*e}\n" for e in range(2)) + "".join(f"v_lshlrev_b32 v{80+2*e}, 16, v{84+e}\nv_and_b32 v{81+2*e}, 0xffff0000, v{84+e}\n" for e in range(2))
        t += "v_lshrrev_b32 v88, 5, v2\nv_cvt_f32_u32 v88, v88\n" + rnd()
        for e in range(4): t += f"v_add_f32 v{80+e}, v{80+e}, v88\n"
        t += rnd()
        for e in range(4): t += f"v_mul_f32 v{80+e}, {H(QSCALE)}, v{80+e}\n"
        t += f"""s_lshl_b32 s{sLNP}, s{sW}, 10
        s_add_u32 s{sLNP}, s{sLNP}, {MISC + 4096}
        v_add_u32 v88, s{sLNP}, v1
        v_add_u32 v18, s{sLNP}, v18
        ds_write_b128 v88, v[80:83]
        """
        return items(t)
    def lnC_rd(self, i):
        return [("l", f"ds_read_b128 v[{80+seg*8+hf*4}:{83+seg*8+hf*4}], v18 offset:{seg*512 + i*256 + hf*16}") for seg in range(2) for hf in range(2)]
    def lnC(self, i):
        X = self.XH + 8 * i
        t = ""
        for e in range(8): t += f"v_fma_f32 v{X+e}, v{X+e}, v{88+e}, v{80+e}\n"
        t2 = ""
        for e in range(4): t2 += f"v_cvt_pk_bf16_f32 v{X+e}, v{X+2*e}, v{X+2*e+1}\n"
        return items(t), items(t2) + [("m", f"buffer_store_dwordx4 v[{X}:{X+3}], v19, {srd(WS)}, s{sHST} offen offset:{2048*i} {WT}", "hst")]

    WF, VACC, ACC = 32, 64, 128
    def proj(self):
        k = self.k; WF, VACC, ACC = self.WF, self.VACC, self.ACC
        M = []
        def kmajor(nk=16):
            for n in range(nk):
                for dt in range(8):
                    for tt in range(4):
                        d = V(ACC + (tt * 8 + dt) * 4)
                        M.append(MF(d, V(WF + 4 * dt), A((n * 4 + tt) * 4), "0" if n == 0 else d))
        kmajor()
        V0 = len(M)
        VST = [(pc, sh, q) for pc in range(4) for sh in range(2) for q in range(4)]
        for i, (pc, sh, q) in enumerate(VST):
            for nt in range(2):
                for tt in range(4):
                    for h in range(2):
                        n = (pc & 1) * 8 + 2 * q + h
                        d = V(VACC + (1 - sh) * 32 + (nt * 4 + tt) * 4)
                        M.append(MF(d, A((n * 4 + tt) * 4), V(WF + ((i & 1) * 4 + nt * 2 + h) * 4), "0" if n == 0 else d))
        Q0 = len(M)
        kmajor(13)
        QL = len(M); WX = {14: 24, 15: 64}
        QORD = [(u, tt) for u in range(4) for tt in (2, 3, 0, 1)]
        for (u, tt) in QORD:
            for dt in (2 * u, 2 * u + 1):
                for n in (13, 14, 15):
                    d = V(ACC + (tt * 8 + dt) * 4)
                    M.append(MF(d, V(WF + 4 * dt) if n == 13 else A(WX[n] + 4 * dt), A((n * 4 + tt) * 4), d))
        ph = Phase(k, M); N = len(M); ph.mspace = int(E_('MSP', '1')); ph.batch = int(E_('BAT', '9'))
        if E_('LAT', '0') == '1': ph.lat = (4, 2)
        def wread(base, n, dt, ag=None):
            o = base + (n & 1) * 8192
            if ag is not None:
                return [("l", f"ds_read_b64_tr_b16 a[{ag+4*dt}:{ag+4*dt+1}], v{8+dt} offset:{o}"),
                        ("l", f"ds_read_b64_tr_b16 a[{ag+4*dt+2}:{ag+4*dt+3}], v{8+dt} offset:{o+1024}")]
            return [("l", f"ds_read_b64_tr_b16 v[{WF+4*dt}:{WF+4*dt+1}], v{8+dt} offset:{o}"),
                    ("l", f"ds_read_b64_tr_b16 v[{WF+4*dt+2}:{WF+4*dt+3}], v{8+dt} offset:{o+1024}")]
        def xread(n, tt):
            s = n >> 1; sl = s % 3
            va = (28 if sl < 2 else 30) + (n & 1)
            return ("l", f"ds_read_b128 {A((n*4+tt)*4)}, v{va} offset:{(sl if sl < 2 else 0)*32768 + tt*2048}")
        def vread(i, nt, h):
            pc, sh, q = VST[i]
            reg = self.VQB[pc]; va = 28 + 2 * sh + nt
            o = (reg if reg < R2 else 0) + (2 * q + h) * 4096
            f = WF + ((i & 1) * 4 + nt * 2 + h) * 4
            return [("l", f"ds_read_b64_tr_b16 v[{f}:{f+1}], v{va} offset:{o}"), ("l", f"ds_read_b64_tr_b16 v[{f+2}:{f+3}], v{va} offset:{o+512}")]
        BOFF = 40
        k.waitvm([("x", 0), ("w", 0)], True); k("s_barrier")
        self.ts()
        for it in wread(self.WSL[0] - R3, 0, 0): k(it[1])
        for tt in range(4): k(xread(0, tt)[1])
        for dt in range(1, 8):
            for it in wread(self.WSL[0] - R3, 0, dt): k(it[1])
        for s in range(7): ph.put("x", self.bar([("x", s + 1), ("w", s + 1)]), 64 * s + BOFF)
        ph.put("x", self.bar([("v", 0)]), 64 * 7 + BOFF)
        BV = [V0 + 128 * c + 110 for c in range(4)]
        for c in range(3): ph.put("x", self.bar([("v", c + 1)]), BV[c])
        ph.put("x", self.bar([("q", i) for i in range(4)]), BV[3])
        BQ = Q0 + 64 * 3 + BOFF
        ph.put("x", self.bar([("q", i) for i in range(4, 8)]), BQ)
        BE = QL + 7
        ph.put("x", self.bar([]), BE)
        for (G0, bases) in ((0, [self.WSL[s % 3] - R3 for s in range(8)]), (Q0, [b - R3 if b >= R3 else b for b in self.WQB])):
            for n in range(0 if G0 else 1, 14 if G0 else 16):
                for dt in range(8):
                    lo = G0 + 32 * (n - 1) + 4 * dt + 4
                    if n == 0: lo = max(BV[3] + 1, [Q0 - 24, Q0 - 16, Q0 - 8, Q0][dt >> 1])
                    elif n % 2 == 0 and (G0 == 0 or n == 8): lo = max(lo, G0 + 32 * (n - 2) + BOFF + 1)
                    pre = []
                    if G0 and n == 8: pre = [("v", f"v_subrev_u32 v{8+dt}, {R3}, v{8+dt}")]; lo -= 1
                    g = ph.stream(pre + wread(bases[n >> 1], n, dt), lo, G0 + 32 * n + 4 * dt - 6)
                    if n % 2 == 1 and (G0 == 0 or n in (7, 13)): assert g < (G0 + 32 * (n - 1) + BOFF if n < 13 or not G0 else BE), (n, dt, g)
        gq = Q0 + 32 * 9 + 4
        for n in (14, 15):
            for dt in range(8):
                for it in wread(self.WQB[7], n, dt, WX[n]): gq = ph.put(it[0], it[1], gq + 3)
        assert gq < BE - 4, gq
        for i, (u, tt) in enumerate(QORD[:-1]):
            b = ACC + (tt * 8 + 2 * u) * 4
            g = ph.stream([("v", f"v_cvt_pk_bf16_f32 v{b+e}, v{b+2*e}, v{b+2*e+1}") for e in range(4)], QL + 6 * i + 9)
            ph.put("l", f"ds_write_b128 v{vMW}, {V(b)} offset:{(tt>>1)*R1 + ((tt&1)*4+u)*1024}", g + 1)
        self.qlast = QORD[-1]
        for n in range(1, 16):
            lo = 32 * (n - 1) + 2
            if n % 2 == 0: lo = 32 * (n - 2) + BOFF + 1
            gx = ph.stream([xread(n, tt) for tt in range(4)], lo, 32 * n - 6)
        vaddr = items(f"""v_and_b32 v16, 15, v2
        v_lshrrev_b32 v17, 4, v2
        v_lshrrev_b32 v29, 2, v16
        v_and_b32 v16, 3, v16
        v_lshl_add_u32 v28, v17, 3, v29
        v_lshlrev_b32 v28, 7, v28
        v_lshl_add_u32 v28, v16, 3, v28
        v_and_b32 v17, 1, v17
        v_lshrrev_b32 v29, 1, v29
        v_lshl_add_u32 v29, v17, 1, v29
        v_lshl_add_u32 v28, v29, 5, v28
        v_add_u32 v28, 65536, v28
        v_xor_b32 v29, 32, v28
        v_xor_b32 v30, 64, v28
        v_xor_b32 v31, 96, v28
        v_and_b32 v16, 15, v2
        v_lshlrev_b32 v16, 6, v16
        v_add_u32 v16, 65536, v16
        v_mad_i32_i24 v16, v17, s{sHFD}, v16
        v_and_b32 v17, 31, v2
        v_lshlrev_b32 v17, 6, v17""")
        g = ph.stream(vaddr, gx + 1)
        assert g <= 64 * 7 + BOFF + 6, g
        for i, (pc, sh, q) in enumerate(VST):
            g0 = V0 + 16 * i
            for nt in range(2):
                for h in range(2):
                    slot = (i & 1) * 4 + nt * 2 + h
                    if i < 2: lo = max(64 * 7 + BOFF + 1, V0 - 32 + 4 * slot + 4)
                    else: lo = g0 - 32 + 8 * nt + 8
                    if pc > 0: lo = max(lo, BV[pc - 1] + 1)
                    pre = []
                    if q == 0 and h == 0 and pc in (1, 3): pre = [("v", f"v_xor_b32 v{28+2*sh+nt}, 65536, v{28+2*sh+nt}")]; lo -= 1
                    g = ph.stream(pre + vread(i, nt, h), max(lo, gprev + 1) if (h and q == 0) else lo, g0 + 8 * nt - 4)
                    gprev = g
                    assert g < BV[pc], (i, g)
        first = self.wdma(2) + self.xdma(2)
        if E_("SIDE", "0") == "1": first = self.side() + first
        if E_("SIDE", "0") == "2": first = first + self.side()
        ph.stream(first, 0, BOFF - 1, sid=900)
        ph.stream(items("".join(f"s_mov_b32 s{d}, s{p}\ns_mov_b32 s{d+1}, s{p+1}\ns_mov_b32 s{d+2}, {512*3584}\n" for (d, p) in ((WG_, sPG), (WU_, sPG + 2)))), 120)
        for s in range(8):
            its = (self.wdma(s + 3) + self.xdma(s + 3)) if s < 5 else self.vdma(s - 5)
            if s == 7: its += self.qdma(0) + self.qdma(1)
            g = ph.stream(its, 64 * s + BOFF + 1, None, step=2 if s < 5 else 4, sid=900)
            assert g < (64 * (s + 1) + BOFF if s < 7 else BV[0]), (s, g)
        g = ph.stream(self.vdma(3) + self.qdma(2) + self.qdma(3), BV[0] + 1, None, step=5, sid=900); assert g < BV[1]
        ph.stream(self.qdma(4) + self.qdma(5), BV[1] + 1, None, step=6, sid=900)
        ph.stream(self.qdma(6) + self.qdma(7), BV[2] + 1, None, step=6, sid=900)
        m1, m2 = self.modB(); l1, l2 = self.lnB()
        zero = items(f"""v_mov_b32 v112, 0
        v_mov_b32 v113, 0
        v_mov_b32 v114, 0
        v_mov_b32 v115, 0
        v_lshlrev_b32 v116, 4, v0""") + [("m", f"buffer_store_dwordx4 v[112:115], v116, {srd(WS)}, s{sZO} offen {WT}", "zero")] + items(f"""v_min_u32 v116, 496, v116
        s_sub_u32 s{sZO}, s{sZO}, {WS_HF}
        s_lshr_b32 s{sZO}, s{sZO}, 3
        s_add_u32 s{sZO}, s{sZO}, {WS_LF}
        s_cmp_lt_u32 s{sZO}, {WS_LF + 0x8000}
        s_cselect_b32 s{sZO}, s{sZO}, {OOB}
        buffer_store_dwordx4 v[112:115], v116, {srd(WS)}, s{sZO} offen {WT}""", "zero")
        g = ph.stream(items(f"""v_lshlrev_b32 v117, 13, v2
        s_lshl_b32 s{sB}, s{sP}, 19
        s_and_b32 s{sC}, s{sW}, 1
        s_lshl_b32 s{sC}, s{sC}, 7
        s_add_u32 s{sB}, s{sB}, s{sC}"""), 60, sid=904)
        for w, gp in enumerate(int(x) for x in E_("TG", "102,166,230,294").split(",")):
            if E_("TM", "plain") == "none": continue
            first = f"buffer_load_dword a{240+2*w}, v117, {srd(WUV if w < 2 else WQ)}, s{sC} offen nt" if E_("TM", "plain") == "pair" else ""
            ph.put("x", f"""s_cmp_eq_u32 s{sW}, {w}
            s_cselect_b32 s{sC}, s{sB}, {OOB}
            {first}
            buffer_load_dword a{241+2*w}, v117, {srd(WUV if w < 2 else WQ)}, s{sC} offen offset:4""", gp, tag="pf")
        g = ph.stream(zero, BOFF + 10)
        g = ph.stream(self.modA(), int(E_("MG", "41")), sid=901, dense=int(E_("MD", "2")))
        b1 = (g - BOFF) // 64 + 1
        g0 = g
        ph.put("x", lambda k: k.waitvm(["zero"]), 64 * b1 + BOFF - 1)
        g = ph.stream(m1, 64 * b1 + BOFF + 1, sid=901, dense=1)
        g = ph.stream(m2[:-1], g + 6, sid=901)
        g = ph.put("x", m2[-1][1], g, tag="mod")
        g = ph.put("x", lambda k: k.waitvm(["mod"]), g + int(E_("ED", "60")))
        ph.put("x", f"buffer_atomic_add v6, v7, {srd(DBG)}, s{sEO} offen sc1", g, tag="flag")
        gl = ph.stream(self.lnA(), g0 + 1, sid=902)
        b2 = (gl - BOFF) // 64 + 1
        gl = ph.stream(l1, 64 * b2 + BOFF + 1, sid=902)
        gl = ph.stream(l2, gl + 8, sid=902)
        print("mod barrier", b1, "E at", g, "ln barrier", b2, "lnB end", gl, file=sys.stderr)
        a, ld = self.lnC_loads()
        gl = ph.stream(a, gl + 1, sid=902)
        gva = ph.stream(items("v_mov_b32 v18, v106\nv_mov_b32 v19, v107"), 64 * 5 + BOFF + 1, sid=902)
        PB = int(E_("PB", "5"))
        g = 64 * PB + BOFF
        assert gl < g + 30
        ph.put("x", f"buffer_load_dword v3, v4, {srd(DBG)}, s{sEP} offen {WT}", g - int(E_("PL", "50")))
        ph.put("x", self.poll_check(3, 4, DBG, f"s{sEP}", "E", target=f"s{sET}"), g - 1)
        ph.stream(items(f"""s_lshl_b32 s{sZO}, s2, 6
        s_add_u32 s{sZO}, s{sZO}, {WS_LF}
        buffer_store_dword v6, v7, {srd(WS)}, s{sZO} offen {WT}""", "flag"), g + 20)
        g = max(g, gl)
        g = ph.stream(ld, g + 1, sid=902); assert g < V0 - 2
        g = ph.stream(self.lnC_fin(), max(g + int(E_("PL2", "50")), gva + 1), sid=902, dense=int(E_("FD", "1")))
        for i in range(2):
            g = ph.stream(self.lnC_rd(i), g + (6 if i == 0 else 1), sid=902)
            a, b = self.lnC(i)
            g = ph.stream(a, g + 6, sid=902)
            g2 = ph.stream(b, g + 1, sid=902)
        assert g2 < V0 + 60, g2
        print("h stored at", g2, file=sys.stderr)
        g = ph.stream(self.flag_store(sHFO, ["hst"]), g2 + 70)
        def epi(b, off, vtype=False):
            it = [("v", f"v_cvt_pk_bf16_f32 v{b+i}, v{b+2*i}, v{b+2*i+1}") for i in range(4)]
            it.append(("s", f"s_xor_b32 s{sEPI}, s{sVX if vtype else sKVST}, {off & ~4095}"))
            it.append(("m", f"buffer_store_dwordx4 {V(b)}, v1, {srd(WS)}, s{sEPI} offen offset:{off & 4095} {E_('KVP', WT)}", "kv"))
            return it
        ep = []
        K1, K2, K3 = int(E_("K1", "17")), int(E_("K2", "14")), int(E_("K3", "16"))
        kst = [8 + K1 * i for i in range(11)] + [322 + 22 * i for i in range(5)]
        for tt in range(4):
            for u in range(4): ep.append((V0 + kst[tt * 4 + u], epi(ACC + (tt * 8 + 2 * u) * 4, tt * 4096 + u * 1024), Q0 - 4))
        for c in range(4):
            done = V0 + [192, 256, 448, 512][c]
            for nt in range(2):
                for kbl in range(2):
                    i = nt * 2 + kbl
                    lo = done + 6 + K2 * i if c < 2 else max(done + 6, V0 + 454 + K3 * (4 * (c - 2) + i))
                    ep.append((lo, epi(VACC + (1 - (c & 1)) * 32 + (nt * 4 + 2 * kbl) * 4, 32768 + kbl * 8192 + (2 * c + nt) * 1024, True), done + 62 if c < 2 else Q0 + 148))
        ep.sort(key=lambda e: e[0])
        g = 0
        for (lo, its, dl) in ep:
            g = ph.stream(its, max(lo, g + 1)); assert g < dl
        g = ph.stream(self.flag_store(sKFO, ["kv"]), g + int(E_("KVD", "60")))
        print("kv flag at", g - Q0, file=sys.stderr)
        HG = V0 + 384
        g = ph.stream([("m", f"buffer_load_dword v3, v16, {srd(WS)}, s{sHF1} offen {WT}")], HG - 44)
        ph.put("x", self.poll_check(3, 16, WS, f"s{sHF1}", "H"), HG)
        g = HG + 1
        for n in range(16):
            for tt in range(4):
                lo = max(HG + 64 + 16 * ((n - 8) // 2 + 1) if n >= 8 else 0, HG + 1 + 7 * (n * 4 + tt))
                off = (tt & 1) * 16384 + n * 1024
                g = ph.stream([("s", f"s_xor_b32 s{sHLD}, s{sH1 + (tt >> 1)}, {off & ~2047}"),
                               ("m", f"buffer_load_dwordx4 {A((n*4+tt)*4)}, v1, {srd(WS)}, s{sHLD} offen offset:{off & 2047}")], max(lo, g + 1))
        g = ph.stream(moe_setup(), V0 + 20)
        a, ld = late_mod_loads(self, 112)
        g = ph.stream(a + items(f"""v_and_b32 v119, 3, v2
        v_lshlrev_b32 v119, 9, v119
        s_lshr_b32 s{sEO}, s2, 6
        s_add_u32 s{sEO}, s{sEO}, 4
        s_lshl_b32 s{sEO}, s{sEO}, 5
        s_bfe_u32 s{sET}, s2, {3 | (3 << 16)}
        s_add_u32 s{sEO}, s{sEO}, s{sET}
        s_lshl_b32 s{sEO}, s{sEO}, 6
        s_add_u32 s{sEO}, s{sEO}, {WS_LF}
        buffer_load_dword v118, v119, {srd(WS)}, s{sEO} offen {WT}"""), Q0 + 150, sid=903)
        g = ph.put("x", self.poll_check(118, 119, WS, f"s{sEO}", "E2"), g + 50)
        g = ph.stream(ld, g + 1, sid=903)
        g = ph.stream(late_mod_fin(self, 112), g + 60, sid=903)
        KG = int(E_("KG", "50"))
        g = ph.stream([("m", f"buffer_load_dword v3, v17, {srd(WS)}, s{sKFP} offen {WT}")], BQ + KG - 40)
        ph.put("x", self.poll_check(3, 17, WS, f"s{sKFP}", "KV"), BQ + KG)
        its = []
        for (lds, so, tag) in ((R2, (sKV, 0), "k0"), (R3, (sKV, 32768), "v0"), (R4, (sKp, 0), "k1")):
            for g2 in range(2):
                its += self.dma4(WS, [1, 1, 1, 1], (sW8, lds + g2 * 4096), (so[0], so[1] + g2 * 4096), tag)
        g = ph.stream(its, BQ + KG + 1, None, step=int(E_("KST", "4")), sid=900)
        as1, as2 = attn_setup(self)
        g2 = ph.stream(as1, Q0 + 160, sid=906)
        g3 = ph.stream(as2, max(g2, BQ + KG) + 1, sid=906)
        print("setup ends", g2, g3, file=sys.stderr)
        cl = cold_loads(120, sMODO2)
        nf = [i for i, it in enumerate(cl) if it[0] == "m"][0]
        g2 = ph.stream(cl[:nf], g2 + 1, sid=905)
        g = ph.stream(cl[nf:], max(g, g2) + 1, sid=905)
        print("cold loads end at", g, file=sys.stderr)
        CT = E_("CT", "123")
        if "2" in CT: ph.stream(code_touch("L_ct2", "L_attn", "L_code_end", 123, "a61", 4), g + 2)
        if "1" in CT: ph.stream(code_touch("L_ct1", "L_ct1", "L_attn", 119, "v119", 2), 418)
        if self.TS:
            ph.put("x", self.ts, V0 - 1); ph.put("x", self.ts, Q0 - 1)
            for gp in (E_("TSP") or "").split(","):
                if gp: ph.put("x", lambda k: self.ts(k, True), int(gp))
        ph.emit()
        print("proj: overloaded placements", ph.over, file=sys.stderr)
        self.ts()


def build(stop=None):
    g = G()
    k = g.k
    g.startup(); g.proj()
    k.label("L_attn")
    if stop != "proj":
        attention(g)
        if stop != "attn":
            oproj(g); tail(g)
    else:
        qdump(g)
    k.label("L_fin")
    if g.TS:
        if E_("TST"): g.ts(force=True)
        k("s_waitcnt vmcnt(0)"); g.ts(force=bool(E_("TST")))
        k(f"""s_lshl_b32 s{sB}, s2, 2
        s_add_u32 s{sB}, s{sB}, s{sW}
        s_lshl_b32 s{sB}, s{sB}, 6
        s_add_u32 s{sB}, s{sB}, {WS_TS}
        v_cmp_eq_u32 vcc, 0, v2
        v_mov_b32 v6, {OOB}
        s_nop 1
        v_cndmask_b32 v5, v6, v2, vcc""")
        for n in range(g.nts):
            k(f"v_mov_b32 v4, s{TSR[n]}\nbuffer_store_dword v4, v5, {srd(WS)}, s{sB} offen offset:{4*n}")
        if E_("TSDBG"):
            k(f"s_cmp_eq_u32 s2, {E_('TSDBG')}\ns_cselect_b32 s{sB}, 0, {OOB}\ns_cmp_eq_u32 s{sW}, 0\ns_cselect_b32 s{sB}, s{sB}, {OOB}")
            for n in range(1, g.nts):
                k(f"s_sub_u32 s{sC}, s{TSR[n]}, s{TSR[0]}\nv_mov_b32 v4, s{sC}\nbuffer_store_dword v4, v5, {srd(DBG)}, s{sB} offen offset:{4*n}")
    if E_("SPINT"):
        n = int(E_("SPINT"))
        if E_("SPINW"): k(f"s_cmp_lg_u32 s2, {E_('SPINW')}\ns_cbranch_scc1 L_end")
        k(f"s_add_u32 s{sC}, s{TSR[n]}, 10000")
        k.label("L_spint")
        k(f"s_memrealtime vcc\ns_waitcnt lgkmcnt(0)\ns_sub_u32 s{sB}, vcc_lo, s{sC}\ns_cmp_lt_i32 s{sB}, 0\ns_cbranch_scc1 L_spint")
    k.label("L_end")
    k("s_endpgm")
    lines = k.out + "\n".join(g.tail).split("\n") + ["L_code_end:", "    s_endpgm"]
    lines, nn = fix_hazards(lines, report=bool(E_("NOPS")))
    print("nops inserted:", nn, file=sys.stderr)
    hdr = open(os.path.join(HERE, "..", NAME + ".s.ref")).read().split("; Override launch geometry")[0]
    kn = NAME + "_kernel"
    text = hdr + f"""; @launch grid=(256,1,1) block=(256,1,1) lds=163840
.amdgcn_target "amdgcn-amd-amdhsa--gfx950"
.text
.globl {kn}
.p2align 8
.type {kn},@function
{kn}:
""" + "\n".join(lines) + f"""
.section .rodata,"a"
.p2align 6
.amdhsa_kernel {kn}
  .amdhsa_next_free_vgpr 512
  .amdhsa_next_free_sgpr 102
  .amdhsa_accum_offset 256
  .amdhsa_group_segment_fixed_size 0
  .amdhsa_kernarg_size 128
  .amdhsa_user_sgpr_count 2
  .amdhsa_user_sgpr_kernarg_segment_ptr 1
  .amdhsa_system_sgpr_workgroup_id_x 1
.end_amdhsa_kernel
"""
    return text, lines

if __name__ == "__main__":
    path = sys.argv[1] if len(sys.argv) > 1 else os.path.join(HERE, "..", NAME + ".s")
    text, lines = build(E_("STOP"))
    verify_all(lines)
    open(path, "w").write(text)
    print("wrote", path, len(text), file=sys.stderr)
```

```python
from common import *
O_, S_, MK, CI, P_, LA = 128, 96, 80, 64, 48, 32
vMW, vQR, vK, vV0, vV1, vT1, vT2, vPO, vSEN, ONE = 16, 17, 18, 19, 20, 21, 22, 23, 24, 28
Q1, KF, VF, Q2, PRE = 64, 128, 160, 192, 0
BIG = 2.0 ** 100
LLO, LHI = 2.0 ** -64, 2.0 ** 80

def mask_items(dst, thr, grp):
    t = ""
    for qt in range(2):
        for kt in range(2):
            for r in range(4):
                d = dst + 8 * qt + 4 * kt + r
                c = 16 * kt + r - 16 * qt
                t += f"v_add_f32 v{d}, {H(-c * BIG) if c else '0'}, v{thr}\nv_min_f32 v{d}, v{d}, v{CI + (grp*2+qt)*4 + r}\n"
    return items(t)

def attn_setup(g):
    t = f"""s_and_b32 s{sB}, s{sW}, 1
    s_lshr_b32 s{sC}, s{sW}, 1
    s_lshl_b32 s{sVo}, s{sB}, 13
    s_add_u32 s{sVo}, s{sVo}, {R2}
    v_add_u32 v{vK}, s{sVo}, v1
    s_mul_i32 s{sVo}, s{sB}, 12288
    s_add_u32 s{sVo}, s{sVo}, {R3}
    v_add_u32 v{vV0}, s{sVo}, v1
    s_lshl_b32 s{sVo}, s{sB}, 12
    s_add_u32 s{sVo}, s{sVo}, {R3}
    v_add_u32 v{vV1}, s{sVo}, v1
    v_and_b32 v{vPO}, 15, v2
    v_lshrrev_b32 v{vSEN}, 4, v2
    v_lshlrev_b32 v{vSEN+1}, 2, v{vSEN}
    v_sub_u32 v{vSEN+1}, v{vPO}, v{vSEN+1}
    s_sub_i32 s{sVo}, s{sC}, s{sB}
    s_lshl_b32 s{sVo}, s{sVo}, 5
    v_add_u32 v{vT1}, s{sVo}, v{vSEN+1}
    s_add_u32 s{sVo}, s{sC}, s{sB}
    s_sub_i32 s{sVo}, 1, s{sVo}
    s_lshl_b32 s{sVo}, s{sVo}, 5
    v_add_u32 v{vT2}, s{sVo}, v{vSEN+1}
    v_cvt_f32_i32 v{vT1}, v{vT1}
    v_cvt_f32_i32 v{vT2}, v{vT2}
    v_add_f32 v{vT1}, 0.5, v{vT1}
    v_add_f32 v{vT2}, 0.5, v{vT2}
    v_mul_f32 v{vT1}, {H(BIG)}, v{vT1}
    v_mul_f32 v{vT2}, {H(BIG)}, v{vT2}
    v_lshrrev_b32 v{vSEN+1}, 2, v{vPO}
    v_and_b32 v{vPO}, 3, v{vPO}
    v_lshlrev_b32 v{vPO}, 6, v{vPO}
    v_lshl_add_u32 v{vPO}, v{vSEN+1}, 15, v{vPO}
    v_lshl_add_u32 v{vPO}, v{vSEN}, 4, v{vPO}
    s_lshl_b32 s{sPB}, s{sP}, 20
    s_lshl_b32 s{sVo}, s{sW}, 18
    s_add_u32 s{sPB}, s{sPB}, s{sVo}
    s_lshl_b32 s{sVo}, s{sH}, 10
    s_add_u32 s{sPB}, s{sPB}, s{sVo}
    s_add_u32 s{sPB}, s{sPB}, {WS_P}
    s_mov_b32 s{sN1}, s{sT1}
    s_mov_b32 s{sE}, 2
    s_mov_b32 s{sRedo}, 0
    s_mov_b32 s{sRPL}, 28
    s_mov_b32 s64, 128
    s_lshl_b32 s65, s{sJ}, {1 if E_('OROT', '1') == '1' else 31}
    s_and_b32 s65, s65, 7
    s_xor_b32 s65, s65, s{sW}
    s_lshl_b32 s65, s65, 16
    s_add_u32 s{sKm}, s{sW8}, {R2}
    s_add_u32 s{sVm}, s{sW8}, {R0}
    s_lshl_b32 s{sCLO}, s{sH}, 13
    s_lshl_b32 s{sVo}, s{sB}, 11
    s_add_u32 s{sCLO}, s{sCLO}, s{sVo}
    s_add_u32 s{sCLO}, s{sCLO}, {WS_CTX}
    s_sub_u32 s{sVo}, 3, s{sC}
    s_lshl_b32 s{sVo}, s{sVo}, 18
    s_add_u32 s{sCHI}, s{sCLO}, s{sVo}
    s_lshl_b32 s{sVo}, s{sC}, 18
    s_add_u32 s{sCLO}, s{sCLO}, s{sVo}
    s_add_u32 s{sCFO}, s{sHFO}, {WS_CF - WS_HF}
    s_and_b32 s{sCFP}, s2, {0xff & ~24}
    s_lshl_b32 s{sCFP}, s{sCFP}, 8
    s_sub_u32 s{sVo}, 3, s{sW}
    s_min_u32 s{sVo}, s{sVo}, s{sW}
    s_lshl_b32 s{sVo}, s{sVo}, 7
    s_add_u32 s{sCFP}, s{sCFP}, s{sVo}
    s_add_u32 s{sCFP}, s{sCFP}, {WS_CF}
    """
    t2 = f"""v_add_u32 v{vMW}, s{sW8}, v1
    v_and_b32 v{vQR}, {~8192 & 0xffffffff}, v{vMW}
    """
    for i in range(4): t2 += f"v_mov_b32 v{vSEN+i}, -1\nv_mov_b32 v{ONE+i}, 0x3f803f80\n"
    for i in range(16): t2 += f"v_mov_b32 v{CI+i}, 0\n"
    return items(t), items(t2) + first_c(1)

def first_c(tile, redo=False):
    if tile == 2: return mask_items(MK, vT1, 0)
    it = items(f"""s_cmp_eq_u32 s{sT1}, 0
    s_cselect_b32 s{sVo}, 0, {H(BIG*1024)}
    v_add_f32 v3, s{sVo}, v{vT1}""") + mask_items(S_, 3, 0)
    if redo: return it
    return it + items(f"""s_cmp_eq_u32 s{sT1}, 0
    s_cselect_b32 s{sVo}, 1.0, 0
    v_sub_f32 v3, v{vT2}, v{vT1}
    v_fma_f32 v3, s{sVo}, v3, v{vT1}""") + mask_items(MK, 3, 0)

def qk_m(Q, grp, S, C, order="kt"):
    M = []
    tl = [(0, 0), (1, 0), (0, 1), (1, 1)] if order == "kt" else [(0, 0), (0, 1), (1, 0), (1, 1)]
    for (qt, kt) in tl:
        d = S + 8 * qt + 4 * kt
        for u in range(4):
            c = V(d) if u else (V(CI + (grp * 2 + qt) * 4) if C is None else V(C + 8 * qt + 4 * kt))
            M.append(MF(V(d), A(KF + (kt * 4 + u) * 4), A(Q + (grp * 2 + qt) * 16 + u * 4), c))
    return M
def pv_m(grp, P, zero, order=range(8), lsum=True):
    M = []
    for qt in range(2 if lsum else 0):
        d = V(LA + (grp * 2 + qt) * 4)
        M.append(MF(d, V(ONE), V(P + 4 * qt), "0" if zero else d))
    for n in order:
        for qt in range(2):
            d = V(O_ + grp * 64 + qt * 32 + n * 4)
            M.append(MF(d, A(VF + 4 * n), V(P + 4 * qt), "0" if zero else d))
    return M
def qread(Q, base, f): return f"ds_read_b128 {A(Q+4*f)}, v{vQR} offset:{base + f*1024}"
def kread(ab, f): return ("l", f"ds_read_b128 {A(KF+4*f)}, v{vK} offset:{ab*16384 + f*1024}")
def vread(ab, n): return ("l", f"ds_read_b128 {A(VF+4*n)}, v{vV0 if n < 4 else vV1} offset:{ab*16384 + n*1024}")
def sm_place(ph, S, P, g0=0, stride=2):
    ge = []
    for j in range(16): ge.append(ph.put("e", f"v_exp_f32 v{S+j}, v{S+j}", g0 + stride * j))
    return ge
def cvt_place(ph, S, P, ge):
    for i in range(8):
        lo = max(ge[2 * i], ge[2 * i + 1])
        if lo + 1 <= len(ph.M) - 1: ph.put("v", f"v_cvt_pk_bf16_f32 v{P+i}, v{S+2*i}, v{S+2*i+1}", lo + 1)
        else: ph.put("x", f"v_cvt_pk_bf16_f32 v{P+i}, v{S+2*i}, v{S+2*i+1}", lo)
def adv_items():
    return items(f"""s_add_u32 s{sVo}, s{sKp}, 32768
    s_sub_u32 s{sKp}, s{sE}, s{sN1}
    s_sub_u32 s{sKp}, s{sKp}, 1
    s_cmp_gt_u32 s{sE}, s{sN1}
    s_cselect_b32 s{sKp}, s{sKp}, s{sE}
    s_lshl_b32 s{sKp}, s{sKp}, 16
    s_add_u32 s{sKp}, s{sKp}, s{sKV}
    s_cmp_ge_u32 s{sE}, 17
    s_cselect_b32 s{sKp}, {OOB - 8192}, s{sKp}
    s_add_u32 s{sE}, s{sE}, 1""")
vL2 = 15
def lin8(sm, so, tog, tag):
    it = []
    for h in range(2):
        it.append(("s", f"s_add_u32 m0, s{sm}, {h*4096}"))
        for i in range(4): it.append(("m", f"buffer_load_dwordx4 v{vL2 if h else 1}, {srd(WS)}, s{so} offen offset:{i*1024} lds", tag))
    return it + [("s", f"s_xor_b32 s{sm}, s{sm}, {tog}")]
def kdma(g): return lin8(sKm, sKp, R2 ^ R4, "kd")
def vdma(g): return lin8(sVm, sVo, R3 ^ R0, "vd")
NPEEL = 8
def prefill_items(i):
    if E_("NOPRE"): return []
    return [("s", f"s_add_u32 s{sPO}, s{sPB}, {((i >> 3) << 23) + (i & 1) * 131072}"),
            ("m", f"buffer_store_dwordx4 {V(vSEN)}, v{vQR if E_('PLIN', '1') == '1' else vPO}, {srd(WS)}, s{sPO} offen offset:{((i >> 1) & 3) * 256} {WT}", "pre")]

DG = {"8": {"c": [3, 7, 11, 15, 19, 23, 27, 31], "d": [3, 7, 11, 15, 19, 23, 27, 31], "a": []},
      "7": {"c": [3, 7, 11, 15, 23, 27, 31], "d": [3, 7, 11, 15, 23, 27, 31], "a": [3, 7]},
      "9": {"c": [3, 7, 11, 15, 23, 27, 31], "d": [3, 7, 11, 15, 19, 23, 27, 31], "a": [3]},
      "6": {"c": [3, 7, 15, 19, 27, 31], "d": [0, 7, 11, 19, 23, 31], "a": [3, 7, 15, 19]}}[E_("DG", "7")]
def kv_items(g, name):
    seq = kdma(g) + vdma(g)
    groups = []; pre = []
    for it in seq:
        if it[0] == "m": groups.append([pre, it]); pre = []
        else: pre = pre + [it]
    groups.append([pre, None])
    n0 = {"c": 0, "d": len(DG["c"]), "a": len(DG["c"]) + len(DG["d"])}[name]
    return [(gp, groups[n0 + i][1], groups[n0 + i + 1][0]) for i, gp in enumerate(DG[name])], groups[0][0]
def place_kv(g, ph, name, limit=16):
    lst, first = kv_items(g, name)
    n0 = {"c": 0, "d": len(DG["c"]), "a": len(DG["c"]) + len(DG["d"])}[name]
    if name == "c": ph.stream(first, 0, 1)
    for i, (gp, dma, post) in enumerate(lst):
        if n0 + i >= limit: break
        ph.put("m", dma[1], gp, gp, tag=dma[2])
        ph.stream(post, gp + 1, gp + 2)

def slot_lv(g, Q, name, extra=None):
    S0, S1, P0, P1 = S_, S_ + 16, P_, P_ + 8
    qk, sm, pv = {"a": ((0, S0), (S1, P1), (0, P0)), "b": ((1, S1), (S0, P0), (1, P1)),
                  "c": ((0, S0), (S1, P1), (0, P0)), "d": ((1, S1), (S0, P0), (1, P1))}[name]
    M = qk_m(Q, qk[0], qk[1], None) + pv_m(pv[0], pv[1], False, lsum=name not in "bc")
    ph = Phase(g.k, M)
    seq = kdma(g) + vdma(g); grp = []; pre = []
    for it in seq:
        if it[0] == "m": grp.append([pre, it]); pre = []
        else: pre = pre + [it]
    grp.append([pre, None])
    if name == "c":
        ge = sm_place(ph, *sm, g0=0)
        for n, gp in enumerate([1, 3, 5, 9, 13, 17, 21, 23]): ph.put(*vread(0, n), gp, gp)
        dl, n0 = [7, 11, 15, 19, 25, 29], 0
        ph.stream(grp[0][0], 0, 1)
    if name == "d":
        ge = sm_place(ph, *sm, g0=2)
        for f in range(8): ph.put(*kread(0, f), 5 + 4 * f, 5 + 4 * f)
        dl, n0 = [0, 3, 7, 11, 15, 19, 23, 27, 31], 6
    if name == "a":
        ge = sm_place(ph, *sm, g0=0)
        for n, gp in enumerate([1, 5, 7, 9, 13, 17, 21, 25]): ph.put(*vread(1, n), gp, gp)
        dl, n0 = [3], 15
    if name == "b":
        ge = sm_place(ph, *sm, g0=0)
        for f in range(8): ph.put(*kread(1, f), 9 + 2 * f)
        dl, n0 = [], 0
    for i, gp in enumerate(dl):
        ph.put("m", grp[n0 + i][1][1], gp, gp, tag=grp[n0 + i][1][2]); ph.stream(grp[n0 + i + 1][0], gp + 1, gp + 2)
    vq = [(ge[2 * i + 1] + 1, f"v_cvt_pk_bf16_f32 v{sm[1]+i}, v{sm[0]+2*i}, v{sm[0]+2*i+1}") for i in range(8)]
    if name in "ab": vq += [(ge[j] + 1, f"v_add_f32 v{12+(j>>3)}, v{12+(j>>3)}, v{sm[0]+j}") for j in range(16)]
    if name == "a": vq += [(26, f"v_xor_b32 v{vV0}, {R3 ^ R0}, v{vV0}"), (26, f"v_xor_b32 v{vV1}, {R3 ^ R0}, v{vV1}")]
    if name == "c": vq += [(0, f"v_xor_b32 v{vK}, {R2 ^ R4}, v{vK}")]
    vq.sort(key=lambda x: x[0])
    n = len(M)
    for (lo, t) in vq:
        lo = min(lo, n - 1)
        ok = [gp for gp in range(lo, n) if ph.fits(gp, "v")]
        if ok and ok[0] <= lo + 6: ph.put("v", t, ok[0], ok[0])
        else: ph.g[lo].append(("v", t, None, 0))
    if extra: extra(ph)
    ph.emit()

def slot(g, Q, name, zero=False, Cm=None, extra=None, dma=True):
    S0, S1, P0, P1 = S_, S_ + 16, P_, P_ + 8
    qk, sm, pv = {"a": ((0, S0), (S1, P1), (0, P0)), "b": ((1, S1), (S0, P0), (1, P1)),
                  "c": ((0, S0), (S1, P1), (0, P0)), "d": ((1, S1), (S0, P0), (1, P1))}[name]
    M = qk_m(Q, qk[0], qk[1], Cm) + pv_m(pv[0], pv[1], zero)
    ph = Phase(g.k, M)
    ge = sm_place(ph, *sm, g0=2 if name != "b" else 0)
    if name in "ac":
        for n, gp in enumerate([0, 1, 5, 9, 13, 17, 21, 25]): ph.put(*vread(1 if name == "a" else 0, n), gp, gp)
    if name == "b":
        for f in range(8): ph.put(*kread(1, f), 9 + 2 * f)
    if name == "d":
        for f in range(8): ph.put(*kread(0, f), 5 + 4 * f, 5 + 4 * f)
    if dma and name != "b": place_kv(g, ph, name)
    cvt_place(ph, *sm, ge)
    if name == "a": ph.stream(items(f"v_xor_b32 v{vV0}, {R3 ^ R0}, v{vV0}\nv_xor_b32 v{vV1}, {R3 ^ R0}, v{vV1}"), 29)
    if name == "b": ph.put("v", f"v_xor_b32 v{vK}, {R2 ^ R4}, v{vK}", 27)
    if extra: extra(ph)
    ph.emit()

def tile(g, T):
    import gen_tail as GT
    k = g.k
    Q = Q1 if T == 1 else Q2
    sT = sT1 if T == 1 else sT2
    S0, S1, P0, P1 = S_, S_ + 16, P_, P_ + 8
    L = f"L_t{T}"
    def prologue(k, first):
        M = qk_m(Q, 0, S0, S0 if T == 1 else None, order="qt") + qk_m(Q, 1, S1, None)
        ph = Phase(k, M)
        if first:
            for f in range(8, 16): ph.put("l", qread(Q1, R0, f), f - 8, f - 8)
            for f in range(16): ph.g[8 + f].append(("l", qread(Q2, R1, f), None, 0))
        ge = []
        for j in range(16):
            gp = 4 * (j // 4) + 8 + (j % 4); ph.g[gp].append(("e", f"v_exp_f32 v{S0+j}, v{S0+j}", None, 0)); ge.append(gp)
        for f in range(8): g1 = ph.put(*kread(1, f), 24 + f, 24 + f)
        ph.put("x", f"v_xor_b32 v{vK}, {R2 ^ R4}, v{vK}", 31)
        if first: ph.put("x", f"""v_lshrrev_b32 v{vQR}, 4, v2
        v_lshlrev_b32 v{vQR}, 15, v{vQR}
        v_and_b32 v14, 255, v1
        v_add_u32 v{vQR}, v{vQR}, v14""", 31)
        ph.stream(adv_items() + items(f"s_sub_u32 s{sRem}, s{sT}, {1 if T == 1 else NPEEL}"), 0)
        cvt_place(ph, S0, P0, ge)
        ph.emit()
    if T == 1:
        k2 = K(); k2.label(L + "_start"); prologue(k2, False); k2(f"s_branch {L}_p1")
        g.tail.append("\n".join(k2.out))
        prologue(k, True); k.label(L + "_p1")
    else:
        k.label(L + "_start"); prologue(k, False)
    k.waitvm(["kd", "vd", "k1", "v0"], True); k("s_barrier")
    if E_("TSA") == "r" and T == 2 or E_("TSA") == "m1" and T == 2: g.ts(force=True)
    if T == 1: k.vm = []
    st_bar = k.save()
    if T == 1:
        k(f"s_cmp_eq_u32 s{sT1}, 0\ns_cbranch_scc1 {L}_zero")
    slot(g, Q, "c", zero=True)
    slot(g, Q, "d", zero=True)
    if T == 2:
        for r in range(1, NPEEL):
            slot(g, Q, "a", extra=lambda ph: GT.peel_a(g, ph, r))
            def fb(ph): ph.stream(adv_items(), 10); GT.peel_b(g, ph, r)
            slot(g, Q, "b", extra=fb)
            k.waitvm(["kd", "vd", "ctx"] + (["pre"] if r == 4 else []), True); k("s_barrier")
            if E_("TSA") == "r": g.ts(force=True)
            if r == 1: g.run(g.flag_store(sCFO, []))
            slot(g, Q, "c")
            slot(g, Q, "d")
        k.vm = [e for e in k.vm if e[1] in ("kd", "vd")]
    if T == 1 or NPEEL == 8: k(f"s_cmp_eq_u32 s{sRem}, 0\ns_cbranch_scc1 {L}_diag")
    st_d = k.save()
    k.out.append(".p2align 3")
    k.label(L + "_loop")
    sl = slot_lv if E_("LV") else slot
    sl(g, Q, "a")
    sl(g, Q, "b", extra=lambda ph: ph.stream(adv_items(), 10))
    k.waitvm(["kd", "vd"], True); k("s_barrier")
    k.vm = []
    sl(g, Q, "c")
    sl(g, Q, "d", extra=lambda ph: ph.put("s", f"s_sub_u32 s{sRem}, s{sRem}, 1", 26))
    k(f"s_cmp_lg_u32 s{sRem}, 0\ns_cbranch_scc1 {L}_loop")
    assert [e[1] for e in k.vm] == [e[1] for e in st_d[0]] and [e[0] for e in k.lg] == [e[0] for e in st_d[1]]
    k.label(L + "_diag")
    TM = lambda: g.ts(force=True) if E_("TSA") == f"m{T}" or (E_("TSA") == "r" and T == 2) else None
    TM()
    m2 = mask_items(MK, vT2, 1)
    def xa(ph):
        if T == 2: GT.diag_a(g, ph)
        ph.stream(m2[:10], 17)
    slot(g, Q, "a", Cm=MK, extra=xa)
    def xb(ph):
        if T == 1: ph.stream(adv_items(), 10)
        else: GT.diag_b(g, ph)
        ph.stream(m2[10:], 1)
    slot(g, Q, "b", extra=xb)
    k.waitvm(["kd", "vd", "pre"], True); k("s_barrier")
    if T == 1: k.restore(st_bar)
    TM()
    NO = [4, 5, 6, 7, 0, 1, 2, 3]
    snd = lambda grp, va, base: [("l", f"ds_write_b128 v{va}, {V(O_ + grp*64 + (i&1)*32 + 16 + (i>>1)*4)} offset:{base + i*1024}") for i in range(8)]
    rcv = lambda grp, va, base: [("l", f"ds_read_b128 {V(O_ + grp*64 + (i&1)*32 + 16 + (i>>1)*4)}, v{va} offset:{base + i*1024}") for i in range(8)]
    vS, RS = (vMW, R1) if T == 1 else (11, 0)
    def big(k, zero):
        ph = Phase(k, qk_m(Q, 1, S0, MK, order="qt") + pv_m(0, P0, zero, NO) + pv_m(1, P1, zero, NO))
        for i, n in enumerate(NO): ph.put(*vread(0, n), [0, 1, 4, 7, 10, 13, 16, 19][i], [0, 1, 4, 7, 10, 13, 16, 19][i])
        for i, n in enumerate(NO): ph.put(*vread(1, n), min(51, 37 + 2 * i), min(51, 37 + 2 * i))
        for i, it in enumerate(snd(0, vS, RS)): ph.put("l", it[1], [24, 27, 30, 33, 36, 40, 44, 48][i], [24, 27, 30, 33, 36, 40, 44, 48][i])
        ge1 = []
        for j in range(16): ge1.append(ph.put("e", f"v_exp_f32 v{S1+j}, v{S1+j}", (ge1[-1] if ge1 else 1) + 1))
        ge2 = []
        for j, gp in enumerate([25, 26, 28, 29, 31, 32, 34, 35, 37, 38, 39, 41, 42, 43, 45, 46]): ge2.append(ph.put("e", f"v_exp_f32 v{S0+j}, v{S0+j}", gp, gp))
        for i in range(8): ph.put("v", f"v_cvt_pk_bf16_f32 v{P1+i}, v{S1+2*i}, v{S1+2*i+1}", ge1[2 * i + 1] + 1, 30)
        for i in range(8): ph.put("v", f"v_cvt_pk_bf16_f32 v{P0+i}, v{S0+2*i}, v{S0+2*i+1}", [36, 40, 44, 47, 48, 49, 50, 50][i], [36, 40, 44, 47, 48, 49, 50, 50][i])
        lz = f"s_xor_b32 s{sB}, s{sVm}, 8192" if T == 1 else f"s_xor_b32 s{sB}, s{sW8}, {8192 + R0}"
        hz = f"s_xor_b32 s{sC}, s{sVm}, {R3 ^ R0}" if T == 1 else f"s_add_u32 s{sC}, s{sW8}, {R3}"
        ph.stream(items(f"""{lz}
        v_lshrrev_b32 v13, 1, v1
        v_add_u32 v12, s{sB}, v13"""), 0)
        gl = [2, 6, 11, 15, 20, 23, 29, 34]; gi = 0
        for it in (kdma(g) if T == 1 else GT.wodma(g, 1)):
            if it[0] == "m": ph.g[gl[gi]].append(("m", it[1], it[2], 0)); gi += 1
            else: ph.put("s", it[1], gl[gi - 1] + 1 if gi else 0, gl[gi] - 1 if gi < 8 else None)
        ph.put("v", f"v_mov_b32 v{LA+1}, v{LA+4}", 33, 33)
        ph.put("x", f"""ds_write_b64 v12, v[{LA}:{LA+1}]
        {hz}
        v_xor_b32 v12, 8192, v12
        v_add_u32 v9, s{sC}, v1
        v_xor_b32 v8, 8192, v{vS}
        v_xor_b32 v10, 8192, v9""", 51)
        ph.emit()
    if T == 1:
        k2 = K(); k2.label(L + "_zero"); big(k2, True); k2(f"s_branch {L}_join")
        g.tail.append("\n".join(k2.out))
    big(k, False)
    k.label(L + "_join")
    g.ts(); TM()
    k(f"""v_xor_b32 v{vV0}, {R3 ^ R0}, v{vV0}
    v_xor_b32 v{vV1}, {R3 ^ R0}, v{vV1}
    s_waitcnt lgkmcnt(0)
    s_barrier""")
    TM()
    RL = S1
    ph = Phase(k, pv_m(1, P0, False, NO))
    ph.stream([("l", f"ds_read_b64 v[{RL+8}:{RL+9}], v12")] + rcv(0, 8, RS), 0)
    ph.stream(items(f"""s_lshl_b32 s{sB}, s{sT}, 20
    s_add_u32 s{sC}, s{sB}, s{sCHI}
    s_add_u32 s{sB}, s{sB}, s{sCLO}
    v_lshrrev_b32 v11, 4, v2
    v_lshrrev_b32 v13, 2, v1
    v_add_u32 v13, {R1 if T == 1 else R4}, v13
    s_xor_b32 s{sD}, s{sW8}, 8192
    v_add_u32 v14, s{sD}, v13
    v_cmp_eq_u32 vcc, 1, v11
    v_add_f32 v{RL}, v{RL+8}, v{LA}
    v_add_f32 v{RL+2}, v{RL+9}, v{LA+4}
    v_cndmask_b32 v12, v{LA}, v{LA+4}, vcc
    v_rcp_f32 v{RL}, v{RL}
    v_rcp_f32 v{RL+2}, v{RL+2}
    v_cmp_eq_u32 vcc, 2, v11
    v_cmp_eq_u32 s[{sXB}:{sXB+1}], 3, v11"""), 0)
    sn = snd(1, 9, 0)
    for i in range(3): ph.put("l", sn[i][1], 12 + 2 * i, 12 + 2 * i)
    ph.emit()
    TM()
    def fin(grp):
        out = []
        for qt in range(2):
            b = O_ + grp * 64 + qt * 32; r = RL + 2 * (grp * 2 + qt)
            so = sC if grp else sB
            for u in range(2):
                c = b + 8 * u
                for i in range(0, 8, 2): out.append(("v", f"v_pk_add_f32 v[{c+i}:{c+i+1}], v[{c+i}:{c+i+1}], v[{c+16+i}:{c+16+i+1}]"))
                for i in range(0, 8, 2): out.append(("v", f"v_pk_mul_f32 v[{c+i}:{c+i+1}], v[{c+i}:{c+i+1}], v[{r}:{r+1}] op_sel_hi:[1,0]"))
                for i in range(4): out.append(("v", f"v_cvt_pk_bf16_f32 v{c+i}, v{c+2*i}, v{c+2*i+1}"))
                out.append(("m", f"buffer_store_dwordx4 {V(c)}, v{vL2 if qt else 1}, {srd(WS)}, s{so} offen offset:{u*1024} {E_('CXP', WT)}", "ctx"))
        return out
    ex = GT.merge_x(g) if T == 2 else vdma(g)
    lo = fin(0)
    k(f"""v_cndmask_b32 v12, v12, v{LA+8}, vcc
    v_cndmask_b32 v12, v12, v{LA+12}, s[{sXB}:{sXB+1}]""")
    ne = len(ex) // 2 if T == 1 else len(ex)
    for i in range(5):
        g.run([sn[3 + i]] + lo[i * 11:(i + 1) * 11] + ex[i * ne // 5:(i + 1) * ne // 5])
    k(f"""ds_write_b32 v14, v12
    v_and_b32 v14, {~192 & 0xffffffff}, v13
    v_add_u32 v14, s{sW8}, v14""")
    if E_("TSA") != "r": TM()
    k("s_waitcnt lgkmcnt(0)\ns_barrier")
    TM()
    k(f"ds_read_b32 v{RL+4}, v14 offset:128\nds_read_b32 v{RL+6}, v14 offset:192")
    rc = rcv(1, 10, 0)
    g.run([rc[i] for i in (0, 2, 4, 6, 1, 3, 5, 7)])
    for w in range(4): k(f"ds_read_b32 v{RL+8+w}, v13 offset:{w*8192}")
    k(f"""v_add_f32 v{RL+4}, v{RL+4}, v{LA+8}
    v_add_f32 v{RL+6}, v{RL+6}, v{LA+12}
    v_rcp_f32 v{RL+4}, v{RL+4}
    v_rcp_f32 v{RL+6}, v{RL+6}""")
    hi = fin(1); ex = ex[ne:]
    nxt = [kread(0, f) for f in range(8)] if T == 1 else GT.oread(0) + GT.oread(1)
    for i in range(4):
        g.run(hi[i * 13:(i + 1) * 13] + ex[i * len(ex) // 4:(i + 1) * len(ex) // 4])
        if i == 1:
            k(f"""v_add_f32 v{RL+8}, v{RL+8}, v{RL+9}
            v_add_f32 v{RL+10}, v{RL+10}, v{RL+11}
            v_min_f32 v{RL+12}, v{RL+8}, v{RL+10}
            v_add_f32 v{RL+8}, v{RL+8}, v{RL+10}
            v_cmp_le_f32 vcc, {H(LLO)}, v{RL+12}
            s_mov_b64 s[{sXB}:{sXB+1}], vcc
            v_cmp_ge_f32 vcc, {H(LHI)}, v{RL+8}
            s_and_b64 s[{sXB}:{sXB+1}], s[{sXB}:{sXB+1}], vcc
            s_cmp_eq_u64 s[{sXB}:{sXB+1}], -1
            s_cselect_b32 s{sXB}, s{sRedo}, 1
            s_cmp_lg_u32 s{sXB}, 0
            s_cbranch_scc1 {L}_redo""")
            k.label(L + "_safe")
        if i >= 2: g.run(nxt[(i - 2) * len(nxt) // 2:(i - 1) * len(nxt) // 2])
    redo(g, T)
    g.ts(); TM()

def redo(g, T):
    L = f"L_t{T}"
    Q = Q1 if T == 1 else Q2
    sT = sT1 if T == 1 else sT2
    k = K(); S0, S1, MX = S_, S_ + 16, P_
    k.label(L + "_redo")
    k(f"s_cmp_eq_u32 s{sRedo}, 0\ns_cbranch_scc1 {L}_max\ns_mov_b32 s{sRedo}, 0")
    for i in range(16): k(f"v_mov_b32 v{CI+i}, 0")
    k(f"s_nop 1\ns_branch {L}_safe")
    k.label(L + "_max")
    k(f"""s_waitcnt vmcnt(0) lgkmcnt(0)
    s_barrier
    s_mov_b32 s{sRedo}, 1
    s_and_b32 s{sB}, s{sW}, 1
    s_lshl_b32 s{sB}, s{sB}, 13
    s_sub_u32 s{sC}, s{sKV}, s{sW8}
    s_add_u32 s{sC}, s{sC}, s{sB}
    s_mov_b32 s{sRem}, s{sT}""")
    if T == 2:
        k(f"s_mov_b32 s{sRPL}, 0")
        for i in range(4): k(f"v_mov_b32 v{vSEN+i}, -1")
    for t in range(4): k(f"v_mov_b32 v{MX+t}, 0xff800000")
    def kld(ab):
        k(f"s_add_u32 s{sB}, s{sC}, {ab*16384}")
        for f in range(8): k(f"buffer_load_dwordx4 {A(KF+4*f)}, v{vL2 if f >= 4 else 1}, {srd(WS)}, s{sB} offen offset:{(f&3)*1024}")
    def blk(grp, S, C):
        for m in qk_m(Q, grp, S, C): k(m)
    def mx(grp, S):
        for qt in range(2):
            for i in range(0, 8, 2): k(f"v_max3_f32 v{MX+grp*2+qt}, v{MX+grp*2+qt}, v{S+8*qt+i}, v{S+8*qt+i+1}")
    k.label(L + "_maxl")
    k(f"s_cmp_eq_u32 s{sRem}, 0\ns_cbranch_scc1 {L}_maxd")
    for ab in range(2):
        kld(ab); blk(0, S0, None); blk(1, S1, None); mx(0, S0); mx(1, S1)
    k(f"s_add_u32 s{sC}, s{sC}, 65536\ns_sub_u32 s{sRem}, s{sRem}, 1\ns_nop 7\ns_branch {L}_maxl")
    k.label(L + "_maxd")
    kld(0)
    for it in mask_items(MK, vT1, 0): k(it[1])
    blk(0, S0, MK); blk(1, S1, None); mx(0, S0); mx(1, S1)
    kld(1)
    for it in mask_items(MK, vT2, 1): k(it[1])
    blk(1, S0, MK); mx(1, S0)
    for sw in ("v_permlane16_swap_b32", "v_permlane32_swap_b32"):
        for t in range(4): k(f"v_mov_b32 v{MX+4+t}, v{MX+t}")
        for t in range(4): k(f"{sw} v{MX+t}, v{MX+4+t}")
        for t in range(4): k(f"v_max_f32 v{MX+t}, v{MX+t}, v{MX+4+t}")
    k(f"""ds_write_b128 v{vMW}, {V(MX)} offset:{R1}
    v_xor_b32 v8, 8192, v{vMW}
    s_waitcnt lgkmcnt(0)
    s_barrier
    ds_read_b128 {V(MX+4)}, v8 offset:{R1}""")
    for t in range(4): k(f"v_max_f32 v{MX+t}, v{MX+t}, v{MX+4+t}")
    for t in range(4):
        for r in range(4): k(f"v_sub_f32 v{CI+4*t+r}, 0, v{MX+t}")
    k(f"s_mov_b32 s{sE}, 0" if T == 1 else f"s_add_u32 s{sE}, s{sN1}, 1")
    k(f"""s_and_b32 s{sB}, s{sE}, 1
    s_mul_i32 s{sKm}, s{sB}, {R2 ^ R4}
    s_xor_b32 s{sKm}, s{sKm}, {R2}
    s_mul_i32 s{sVm}, s{sB}, {R3 ^ R0}
    s_xor_b32 s{sVm}, s{sVm}, {R3}
    v_and_b32 v{vK}, 0x7fff, v{vK}
    v_or_b32 v{vK}, s{sKm}, v{vK}
    v_and_b32 v{vV0}, 0x7fff, v{vV0}
    v_or_b32 v{vV0}, s{sVm}, v{vV0}
    v_and_b32 v{vV1}, 0x7fff, v{vV1}
    v_or_b32 v{vV1}, s{sVm}, v{vV1}
    s_add_u32 s{sKm}, s{sKm}, s{sW8}
    s_add_u32 s{sVm}, s{sVm}, s{sW8}
    s_add_u32 s{sE}, s{sE}, 2
    s_mov_b32 s{sKp}, s{sKV}
    s_add_u32 s{sVo}, s{sKV}, 32768""")
    for it in kdma(g) + vdma(g): k(it[1])
    k(f"""s_min_u32 s{sKp}, s{sT}, 1
    s_lshl_b32 s{sKp}, s{sKp}, 16
    s_add_u32 s{sKp}, s{sKp}, s{sKV}""")
    for it in kdma(g): k(it[1])
    if T == 1:
        for it in first_c(1, True) + mask_items(MK, vT2, 1): k(it[1])
        k(f"s_cmp_eq_u32 s{sT1}, 0\ns_cbranch_scc1 {L}_mk")
        for it in mask_items(MK, vT1, 0): k(it[1])
        k.label(L + "_mk")
    k("s_waitcnt vmcnt(0) lgkmcnt(0)\ns_barrier")
    for f in range(8): k(kread(0, f)[1])
    k(f"s_waitcnt lgkmcnt(0)\ns_branch {L}_start")
    g.tail.append("\n".join(k.out))

def attention(g):
    k = g.k; ACC = g.ACC
    u, tt = g.qlast
    b = ACC + (tt * 8 + 2 * u) * 4
    k(f"v_add_u32 v{vL2}, 4096, v1")
    for i in range(4): k(f"v_cvt_pk_bf16_f32 v{b+i}, v{b+2*i}, v{b+2*i+1}")
    k(f"ds_write_b128 v{vMW}, {V(b)} offset:{(tt>>1)*R1 + ((tt&1)*4+u)*1024}")
    k.waitvm(["k0"], True); k("s_barrier")
    for f in range(4): k(qread(Q1, R0, f)); k(kread(0, f)[1])
    for f in range(4, 8): k(kread(0, f)[1])
    for f in range(4, 8): k(qread(Q1, R0, f))
    g.ts()
    tile(g, 1)
    tile(g, 2)

def qdump(g):
    k = g.k; ACC = g.ACC
    k(f"s_lshl_b32 s{sB}, s2, 16\ns_lshl_b32 s{sC}, s{sW}, 14\ns_add_u32 s{sB}, s{sB}, s{sC}\ns_add_u32 s{sB}, s{sB}, {WS_CTX}")
    for tt in range(4):
        for u in range(4):
            b = ACC + (tt * 8 + 2 * u) * 4
            for i in range(4): k(f"v_cvt_pk_bf16_f32 v{b+i}, v{b+2*i}, v{b+2*i+1}")
            k(f"buffer_store_dwordx4 {V(b)}, v1, {srd(WS)}, s{sB} offen offset:{u*1024}")
        k(f"s_add_u32 s{sB}, s{sB}, 4096")
```

```python
import re

_REG = re.compile(r"(?<![\w.])([vas])(?:\[(\d+):(\d+)\]|(\d+))(?![\w])|\b(vcc_lo|vcc_hi|vcc|exec_lo|exec_hi|exec|m0|scc)\b")
TRANS = ("v_exp_f32", "v_log_f32", "v_rcp_f32", "v_rsq_f32", "v_sqrt_f32", "v_sin_f32", "v_cos_f32")

def regs_of(tok):
    out = set()
    for m in _REG.finditer(tok):
        if m.group(5):
            r = m.group(5)
            out.add({"vcc_lo": "vcc", "vcc_hi": "vcc", "exec_lo": "exec", "exec_hi": "exec"}.get(r, r))
        elif m.group(4) is not None: out.add(m.group(1) + m.group(4))
        else:
            for i in range(int(m.group(2)), int(m.group(3)) + 1): out.add(m.group(1) + str(i))
    return out

class Ins:
    __slots__ = ("text", "mn", "kind", "dst", "src", "ops", "ab", "c", "dpp", "wide", "data", "target")
    def __init__(self, text):
        self.text = text
        t = text.split(";")[0].strip()
        self.dst = set(); self.src = set(); self.ab = set(); self.c = set(); self.dpp = False; self.wide = False; self.data = set(); self.target = None
        if not t or t.startswith("."): self.kind = "none"; self.mn = ""; self.ops = []; return
        if t.endswith(":"): self.kind = "label"; self.mn = t[:-1]; self.ops = []; return
        sp = t.split(None, 1)
        mn = self.mn = sp[0]
        ops = self.ops = [o.strip() for o in sp[1].split(",")] if len(sp) > 1 else []
        R = [regs_of(o) for o in ops]
        allr = set().union(*R) if R else set()
        if mn.startswith("v_mfma"):
            self.kind = "mfma"; self.dst = R[0]; self.ab = R[1] | R[2]; self.c = R[3]; self.src = self.ab | self.c
        elif mn.startswith("v_"):
            self.kind = "trans" if mn.replace("_e32", "").replace("_e64", "") in TRANS else "valu"
            self.dst = set(R[0]); self.src = set().union(*R[1:]) if len(R) > 1 else set()
            if mn.startswith(("v_fmac", "v_dot2c", "v_writelane", "v_pk_fmac")): self.src |= R[0]
            if mn.startswith(("v_permlane", "v_swap")): self.dst |= R[1]; self.src |= R[0]
            if "_dpp" in mn or "row_" in t or "quad_perm" in t: self.dpp = True; self.src |= R[0] if "bound_ctrl" not in t else set()
            if mn.startswith(("v_add_co", "v_sub_co", "v_addc_co", "v_subb_co")): self.dst |= R[1]; self.src = set().union(*R[2:])
            if mn.startswith("v_cndmask") and len(ops) == 3: self.src.add("vcc")
        elif mn.startswith("ds_read") or mn.startswith("ds_bpermute") or mn.startswith("ds_swizzle"):
            self.kind = "lds_r"; self.dst = R[0]; self.src = set().union(*R[1:])
        elif mn.startswith("ds_"):
            self.kind = "lds_w"; self.src = allr
        elif mn.startswith(("buffer_load", "global_load")):
            if re.search(r"\blds\b", t): self.kind = "vm_dma"; self.src = allr | {"m0"}
            else: self.kind = "vm_load"; self.dst = R[0]; self.src = set().union(*R[1:])
        elif mn.startswith(("buffer_store", "global_store")):
            self.kind = "vm_store"; self.src = allr
            self.data = R[0] if mn.startswith("buffer") else R[1]
            self.wide = mn.endswith(("x3", "x4"))
        elif mn.startswith(("buffer_atomic", "global_atomic")):
            self.kind = "vm_store"; self.src = allr
            if " sc0" in t: self.kind = "vm_load"; self.dst = R[0]
        elif mn.startswith(("buffer_wbl2", "buffer_inv")):
            self.kind = "vm_store"
        elif mn == "s_waitcnt": self.kind = "wait"
        elif mn == "s_barrier": self.kind = "bar"
        elif mn == "s_nop": self.kind = "nop"
        elif mn.startswith(("s_load", "s_memtime", "s_memrealtime", "s_buffer_load")):
            self.kind = "smem"; self.dst = R[0]; self.src = set().union(*R[1:]) if len(R) > 1 else set()
        elif mn.startswith(("s_branch", "s_cbranch")):
            self.kind = "branch"; self.target = ops[0]
            if "scc" in mn: self.src = {"scc"}
            if "vcc" in mn: self.src = {"vcc"}
        elif mn in ("s_endpgm", "s_sleep", "s_setprio"): self.kind = "salu"
        elif mn.startswith("s_cmp") or mn.startswith("s_bitcmp"): self.kind = "salu"; self.src = allr; self.dst = {"scc"}
        elif mn.startswith("s_"):
            self.kind = "salu"; self.dst = set(R[0]); self.src = set().union(*R[1:]) if len(R) > 1 else set()
            if "saveexec" in mn: self.dst.add("exec")
            if not mn.startswith(("s_mov", "s_cselect", "s_mul", "s_getpc", "s_getreg", "s_bfm", "s_ff1", "s_brev", "s_sext")): self.dst.add("scc")
            if mn.startswith(("s_cselect", "s_addc", "s_subb")): self.src.add("scc")
        else:
            raise ValueError("cannot parse: " + text)
    def states(self):
        if self.kind in ("none", "label"): return 0
        if self.kind == "nop": return int(self.ops[0], 0) + 1
        return 1

class K:
    def __init__(self):
        self.out = []; self.vm = []; self.lg = []; self.nlab = 0
    def save(self): return (list(self.vm), list(self.lg))
    def restore(self, st): self.vm, self.lg = list(st[0]), list(st[1])
    def lab(self, base):
        self.nlab += 1; return f"L_{base}_{self.nlab}"
    def label(self, l): self.out.append(f"{l}:")
    def need(self, ins):
        touch = ins.src | ins.dst
        vn = ln = None
        for i in range(len(self.vm) - 1, -1, -1):
            if self.vm[i][0] & touch: vn = len(self.vm) - 1 - i; break
        for i in range(len(self.lg) - 1, -1, -1):
            if self.lg[i][0] & touch: ln = len(self.lg) - 1 - i; break
        if ln is not None and any(e[1] == "smem" for e in self.lg): ln = 0
        return vn, ln
    def wait(self, vn=None, ln=None):
        parts = []
        if vn is not None:
            vn = min(vn, 63)
            if vn < len(self.vm): parts.append(f"vmcnt({vn})"); self.vm = self.vm[len(self.vm) - vn:] if vn else []
        if ln is not None:
            ln = min(ln, 15)
            if ln < len(self.lg): parts.append(f"lgkmcnt({ln})"); self.lg = self.lg[len(self.lg) - ln:] if ln else []
        if parts: self.out.append("    s_waitcnt " + " ".join(parts))
        return bool(parts)
    def vmn(self, tags):
        if isinstance(tags, str) or isinstance(tags, tuple): tags = [tags]
        idx = [i for i, e in enumerate(self.vm) if e[1] in tags]
        return None if not idx else len(self.vm) - 1 - max(idx)
    def waitvm(self, tags, lgkm0=False): self.wait(self.vmn(tags), 0 if lgkm0 else None)
    def __call__(self, text, tag=None):
        for ln in text.strip("\n").split("\n"):
            ln = ln.strip()
            if not ln: continue
            ins = Ins(ln)
            if ins.kind == "label": self.out.append(ln); continue
            if ins.kind == "wait":
                m = re.search(r"vmcnt\((\d+)\)", ln)
                if m: n = int(m.group(1)); self.vm = self.vm[max(0, len(self.vm) - n):] if n else []
                m = re.search(r"lgkmcnt\((\d+)\)", ln)
                if m: n = int(m.group(1)); self.lg = self.lg[max(0, len(self.lg) - n):] if n else []
                self.out.append("    " + ln); continue
            vn, lnn = self.need(ins)
            if vn is not None or lnn is not None: self.wait(vn, lnn)
            self.out.append("    " + ln)
            if ins.kind in ("vm_load", "vm_dma", "vm_store"): self.vm.append((ins.dst, tag))
            elif ins.kind in ("lds_r", "lds_w"): self.lg.append((ins.dst, tag))
            elif ins.kind == "smem": self.lg.append((ins.dst, "smem"))

ORDER = {"s": 0, "l": 1, "m": 1, "v": 2, "e": 2, "x": 3}
class Phase:
    def __init__(self, k, mfmas):
        self.k = k; self.M = mfmas; n = len(mfmas)
        self.g = [[] for _ in range(n)]
        self.over = 0; self.sid = 0; self.nsid = 0; self.dense = 0; self.thin = False; self.mspace = 1; self.lat = None; self.batch = 0; self.livein = set()
    def fits(self, g, kind):
        it = [x[0] for x in self.g[g]]
        if kind == "x": return True
        if self.dense and kind in "vel":
            vec = it.count("l") + it.count("v") + 2 * it.count("e") + 2 * it.count("m")
            return vec + (2 if kind == "e" else 1) <= 2 + self.dense
        if "m" in it: return False
        if self.lat and kind != "e" and (g % self.lat[0] == self.lat[1]) != (kind == "m"): return False
        if kind == "m":
            for d in range(1, self.mspace):
                for h in (g - d, g + d):
                    if 0 <= h < len(self.g) and any(x[0] == "m" for x in self.g[h]): return False
            return not [x for x in it if x != "x"]
        ns = it.count("s"); vec = it.count("l") + it.count("v") + 2 * it.count("e") + max(0, ns - 1)
        if kind == "s": return ns == 0 or (vec < 2 and not self.thin)
        if kind == "l": return "l" not in it and vec < 2
        if kind == "v": return vec < 2 and not (self.thin and "v" in it)
        if kind == "e": return vec == 0
    def put(self, kind, payload, lo, hi=None, tag=None):
        n = len(self.M)
        if hi is None: hi = n - 1
        lo = max(0, min(lo, n - 1)); hi = max(lo, min(hi, n - 1))
        if kind in "sv" and not self.dense:
            for g in range(lo, min(hi, lo + 2) + 1):
                if self.g[g] and self.fits(g, kind): self.g[g].append((kind, payload, tag, self.sid)); return g
        for g in range(lo, hi + 1):
            if self.fits(g, kind): self.g[g].append((kind, payload, tag, self.sid)); return g
        self.over += 1
        g = min(range(lo, hi + 1), key=lambda g: (len(self.g[g]), g))
        self.g[g].append((kind, payload, tag, self.sid)); return g
    def stream(self, items, lo, hi=None, step=0, sid=None, dense=0):
        g = lo; pk = None; lastm = None
        if sid is None: self.nsid += 1; sid = self.nsid
        self.sid = sid; self.dense = dense
        for it in items:
            kind, payload = it[0], it[1]
            tag = it[2] if len(it) > 2 else None
            l = g
            if pk is not None and ORDER[kind] < ORDER[pk]: l = g + 1
            if pk is not None and ORDER[kind] == ORDER[pk] == 1: l = g + 1
            if pk == "s" and kind == "m": l = g + 1
            if len(it) > 3 and it[3] is not None: l = max(l, it[3])
            if step and kind == "m" and lastm is not None: l = max(l, lastm + step)
            if l > len(self.M) - 1:
                g = len(self.M) - 1; self.g[g].append(("x", payload, tag, sid)); pk = "x"; continue
            g = self.put(kind, payload, l, hi, tag); pk = kind
            if kind == "m": lastm = g
        self.sid = 0; self.dense = 0
        return g
    def show(self):
        return " ".join("".join(x[0] for x in sorted(g, key=lambda x: ORDER[x[0]])) or "." for g in self.g)
    def _do(self, payload, tag):
        if callable(payload): payload(self.k)
        else: self.k(payload, tag)
    def emit(self):
        k = self.k; n = len(self.M)
        import os, sys
        if os.environ.get("SHOW"):
            w = self.show().split(" ")
            for i in range(0, n, 32 if n > 40 else 40): print(f"{i:5d}", " ".join(w[i:i + (32 if n > 40 else 40)]), file=sys.stderr)
        lastw = {}; sw = {}; lcount = [0] * n; early = {}
        def note(lines, sid):
            for ln in lines:
                ins = Ins(ln)
                if sid:
                    for r in ins.src:
                        if (sid, r) in sw and lastw.get(r) is not sw[(sid, r)]:
                            raise RuntimeError(f"stream {sid}: {r} read by '{ln.strip()}' was overwritten by '{lastw[r].text.strip()}'")
                if ins.kind in ("valu", "trans"):
                    for r in ins.src:
                        if r not in lastw: early.setdefault(r, ln.strip())
                if ins.kind == "vm_load":
                    for r in ins.dst:
                        if r in early and r not in lastw and r not in self.livein: raise RuntimeError(f"{r} read by '{early[r]}' before its load '{ln.strip()}'")
                for r in ins.dst:
                    lastw[r] = ins
                    if sid: sw[(sid, r)] = ins
        for i in range(n):
            k(self.M[i]); note([self.M[i]], 0)
            items = sorted(self.g[i], key=lambda x: ORDER[x[0]])
            kinds = [x[0] for x in items]
            if "m" not in kinds:
                j = i + 1; vn = ln = None
                while j < n:
                    a, b = k.need(Ins(self.M[j]))
                    if a is not None: vn = a if vn is None else min(vn, a)
                    if b is not None: ln = b if ln is None else min(ln, b)
                    if any(x[0] == "m" for x in self.g[j]) and j < i + 3: j += 1
                    else: break
                if ln is not None and self.batch and i >= self.batch:
                    young = sum(lcount[max(0, i - self.batch):i])
                    ln = min(ln, max(young, 0))
                k.wait(vn, ln)
            for (kind, payload, tag, sid) in items:
                p0 = len(k.out); self._do(payload, tag); note(k.out[p0:], sid)
                lcount[i] += sum(1 for x in k.out[p0:] if x.strip().startswith("ds_"))

def passes(ins): return 8 if "32x32" in ins.mn else 4
def hazard_need(prev, cur):
    need = 0
    pv = prev.kind in ("valu", "trans"); cv = cur.kind in ("valu", "trans")
    vd = {r for r in prev.dst if r[0] in "va" and r != "vcc"}
    sd = {r for r in prev.dst if (r[0] == "s" and r != "scc") or r == "vcc"}
    mem = cur.kind in ("lds_r", "lds_w", "vm_load", "vm_dma", "vm_store")
    if pv:
        if cur.kind == "mfma" and vd & cur.src: need = max(need, 2)
        if cv and cur.dpp and vd & cur.src: need = max(need, 2)
        if cv and cur.mn.startswith("v_permlane") and vd & cur.src: need = max(need, 2)
        if cv and cur.mn.startswith(("v_readlane", "v_readfirstlane")) and vd & cur.src: need = max(need, 1)
        if prev.kind == "trans" and cur.kind == "valu" and vd & cur.src: need = max(need, 1)
        if prev.kind == "trans" and mem and vd & cur.src: need = max(need, 1)
        if cv and sd & cur.src: need = max(need, 4 if cur.mn.startswith(("v_readlane", "v_writelane")) else 2)
        if cur.kind in ("vm_load", "vm_dma", "vm_store") and sd & cur.src: need = max(need, 5)
        if prev.mn.startswith(("v_dot2", "v_dot4")) and (cv or mem or cur.kind == "mfma") and vd & (cur.src | cur.dst):
            if not (cur.mn == prev.mn and vd & cur.dst and not vd & (regs_of(cur.ops[1]) | regs_of(cur.ops[2]))): need = max(need, 3)
    if prev.kind == "mfma":
        p = passes(prev)
        if cur.kind == "mfma":
            if prev.dst & cur.ab: need = max(need, 8 if p == 4 else 12)
            if prev.dst & cur.c and prev.dst != cur.c: need = max(need, 6 if p == 4 else 10)
        elif cv or mem:
            if prev.dst & (cur.src | cur.dst): need = max(need, 8 if p == 4 else 12)
            if cv and prev.c & cur.dst: need = max(need, 3 if p == 4 else 7)
    if prev.kind == "salu" and "m0" in prev.dst and cur.kind == "vm_dma": need = max(need, 1)
    if prev.kind == "vm_store" and prev.wide and prev.data & cur.dst: need = max(need, 2 if cv else 1)
    return need

def fix_hazards(lines, report=False):
    out = []; win = []
    nn = 0
    for ln in lines:
        ins = Ins(ln)
        if ins.kind in ("none", "label"): out.append(ln); continue
        short = 0
        for (p, d) in win:
            short = max(short, hazard_need(p, ins) - d)
        if short > 0:
            out.append(f"    s_nop {short-1}"); nn += 1
            if report: print("nop", short, "before", ln.strip())
            win = [(p, d + short) for (p, d) in win]
        out.append(ln)
        st = ins.states()
        win = [(p, d + st) for (p, d) in win if d + st < 14]
        win.append((ins, 0))
        if ins.mn == "s_branch" or ins.mn == "s_endpgm": win = []
    return out, nn

def trace(lines, decide, maxn=2000000):
    P = [Ins(l) for l in lines]
    lab = {p.mn: i for i, p in enumerate(P) if p.kind == "label"}
    i = 0; T = []; cnt = {}
    while i < len(P) and len(T) < maxn:
        p = P[i]
        if p.kind not in ("none", "label"): T.append(p)
        if p.mn == "s_endpgm": break
        if p.kind == "branch":
            if p.mn == "s_branch": i = lab[p.target]; continue
            c = cnt.get(p.target, 0); cnt[p.target] = c + 1
            if decide(p.target, c): i = lab[p.target]; continue
        i += 1
    return T

def verify(T):
    errs = []; win = []; vm = []; lg = []
    for n, ins in enumerate(T):
        for (p, d) in win:
            if hazard_need(p, ins) > d: errs.append(f"hazard {hazard_need(p, ins)}>{d}: '{p.text.strip()}' -> '{ins.text.strip()}'")
        if ins.kind == "wait":
            m = re.search(r"vmcnt\((\d+)\)", ins.text)
            if m: c = int(m.group(1)); vm = vm[max(0, len(vm) - c):] if c else []
            m = re.search(r"lgkmcnt\((\d+)\)", ins.text)
            if m:
                c = int(m.group(1))
                if c and any(e[1] for e in lg): pass
                else: lg = lg[max(0, len(lg) - c):] if c else []
        touch = ins.src | ins.dst
        for e in vm:
            if e[0] & touch: errs.append(f"vm not waited: '{e[2].text.strip()}' -> '{ins.text.strip()}'")
        for e in lg:
            if e[0] & touch: errs.append(f"lgkm not waited: '{e[2].text.strip()}' -> '{ins.text.strip()}'")
        if ins.kind in ("vm_load", "vm_dma", "vm_store"): vm.append((ins.dst, False, ins))
        elif ins.kind in ("lds_r", "lds_w"): lg.append((ins.dst, False, ins))
        elif ins.kind == "smem": lg.append((ins.dst, True, ins))
        st = ins.states()
        win = [(p, d + st) for (p, d) in win if d + st < 14]
        win.append((ins, 0))
    return errs

def sizes_of(lines):
    import subprocess, tempfile, os
    src = '.amdgcn_target "amdgcn-amd-amdhsa--gfx950"\n.text\n' + "\n".join(l for l in lines if not l.strip().startswith(".")) + "\n"
    d = tempfile.mkdtemp()
    open(d + "/a.s", "w").write(src)
    r = subprocess.run(["clang", "-c", "-x", "assembler", "-target", "amdgcn-amd-amdhsa", "-mcpu=gfx950", d + "/a.s", "-o", d + "/a.o"], capture_output=True, text=True)
    assert r.returncode == 0, r.stderr[:2000]
    o = subprocess.run(["llvm-objdump", "-d", "--mcpu=gfx950", d + "/a.o"], capture_output=True, text=True).stdout
    sz = [len(m.group(1).split()) * 4 for m in re.finditer(r"// [0-9A-F]+: ((?:[0-9A-F]{8} ?)+)", o)]
    out = []; i = 0
    for l in lines:
        if Ins(l).kind in ("none", "label"): out.append(0)
        else: out.append(sz[i]); i += 1
    assert i == len(sz), (i, len(sz))
    return out

NO_E64 = ("v_readfirstlane", "v_fmac", "v_dot2c", "v_permlane", "v_accvgpr", "v_mov_b64", "v_nop")
def align8(lines, nops=False):
    sz = sizes_of(lines)
    out = list(lines); par = 0; cand = None; n = 0; left = 0; extra = {}
    for i, l in enumerate(lines):
        t = l.strip()
        if t.startswith(".p2align"): par = 0; cand = None; continue
        if sz[i] == 0: continue
        if sz[i] == 4:
            ins = Ins(l)
            if ins.kind in ("valu", "trans") and not ins.mn.startswith(NO_E64) and not ins.mn.endswith(("_e32", "_e64")): cand = i
            par ^= 1
        else:
            if par:
                if cand is not None:
                    ins = Ins(lines[cand])
                    out[cand] = lines[cand].replace(ins.mn, ins.mn + "_e64", 1); par = 0; n += 1
                else: left += 1
            cand = None
    return out, n, left
```

```python
from common import *
O_, S_, MK, CI, P_, LA = 128, 96, 80, 64, 48, 32
vMW, vQR, vK, vV0, vV1, vT1, vT2, vPO, vSEN, ONE = 16, 17, 18, 19, 20, 21, 22, 23, 24, 28
Q1, KF, VF, Q2, PRE = 64, 128, 160, 192, 0
BIG = 2.0 ** 100
LLO, LHI = 2.0 ** -64, 2.0 ** 80

def mask_items(dst, thr, grp):
    t = ""
    for qt in range(2):
        for kt in range(2):
            for r in range(4):
                d = dst + 8 * qt + 4 * kt + r
                c = 16 * kt + r - 16 * qt
                t += f"v_add_f32 v{d}, {H(-c * BIG) if c else '0'}, v{thr}\nv_min_f32 v{d}, v{d}, v{CI + (grp*2+qt)*4 + r}\n"
    return items(t)

def attn_setup(g):
    t = f"""s_and_b32 s{sB}, s{sW}, 1
    s_lshr_b32 s{sC}, s{sW}, 1
    s_lshl_b32 s{sVo}, s{sB}, 13
    s_add_u32 s{sVo}, s{sVo}, {R2}
    v_add_u32 v{vK}, s{sVo}, v1
    s_mul_i32 s{sVo}, s{sB}, 12288
    s_add_u32 s{sVo}, s{sVo}, {R3}
    v_add_u32 v{vV0}, s{sVo}, v1
    s_lshl_b32 s{sVo}, s{sB}, 12
    s_add_u32 s{sVo}, s{sVo}, {R3}
    v_add_u32 v{vV1}, s{sVo}, v1
    v_and_b32 v{vPO}, 15, v2
    v_lshrrev_b32 v{vSEN}, 4, v2
    v_lshlrev_b32 v{vSEN+1}, 2, v{vSEN}
    v_sub_u32 v{vSEN+1}, v{vPO}, v{vSEN+1}
    s_sub_i32 s{sVo}, s{sC}, s{sB}
    s_lshl_b32 s{sVo}, s{sVo}, 5
    v_add_u32 v{vT1}, s{sVo}, v{vSEN+1}
    s_add_u32 s{sVo}, s{sC}, s{sB}
    s_sub_i32 s{sVo}, 1, s{sVo}
    s_lshl_b32 s{sVo}, s{sVo}, 5
    v_add_u32 v{vT2}, s{sVo}, v{vSEN+1}
    v_cvt_f32_i32 v{vT1}, v{vT1}
    v_cvt_f32_i32 v{vT2}, v{vT2}
    v_add_f32 v{vT1}, 0.5, v{vT1}
    v_add_f32 v{vT2}, 0.5, v{vT2}
    v_mul_f32 v{vT1}, {H(BIG)}, v{vT1}
    v_mul_f32 v{vT2}, {H(BIG)}, v{vT2}
    v_lshrrev_b32 v{vSEN+1}, 2, v{vPO}
    v_and_b32 v{vPO}, 3, v{vPO}
    v_lshlrev_b32 v{vPO}, 6, v{vPO}
    v_lshl_add_u32 v{vPO}, v{vSEN+1}, 15, v{vPO}
    v_lshl_add_u32 v{vPO}, v{vSEN}, 4, v{vPO}
    s_lshl_b32 s{sPB}, s{sP}, 20
    s_lshl_b32 s{sVo}, s{sW}, 18
    s_add_u32 s{sPB}, s{sPB}, s{sVo}
    s_lshl_b32 s{sVo}, s{sH}, 10
    s_add_u32 s{sPB}, s{sPB}, s{sVo}
    s_add_u32 s{sPB}, s{sPB}, {WS_P}
    s_mov_b32 s{sN1}, s{sT1}
    s_mov_b32 s{sE}, 2
    s_mov_b32 s{sRedo}, 0
    s_mov_b32 s{sRPL}, 28
    s_mov_b32 s64, 128
    s_lshl_b32 s65, s{sJ}, {1 if E_('OROT', '1') == '1' else 31}
    s_and_b32 s65, s65, 7
    s_xor_b32 s65, s65, s{sW}
    s_lshl_b32 s65, s65, 16
    s_add_u32 s{sKm}, s{sW8}, {R2}
    s_add_u32 s{sVm}, s{sW8}, {R0}
    s_lshl_b32 s{sCLO}, s{sH}, 13
    s_lshl_b32 s{sVo}, s{sB}, 11
    s_add_u32 s{sCLO}, s{sCLO}, s{sVo}
    s_add_u32 s{sCLO}, s{sCLO}, {WS_CTX}
    s_sub_u32 s{sVo}, 3, s{sC}
    s_lshl_b32 s{sVo}, s{sVo}, 18
    s_add_u32 s{sCHI}, s{sCLO}, s{sVo}
    s_lshl_b32 s{sVo}, s{sC}, 18
    s_add_u32 s{sCLO}, s{sCLO}, s{sVo}
    s_add_u32 s{sCFO}, s{sHFO}, {WS_CF - WS_HF}
    s_and_b32 s{sCFP}, s2, {0xff & ~24}
    s_lshl_b32 s{sCFP}, s{sCFP}, 8
    s_sub_u32 s{sVo}, 3, s{sW}
    s_min_u32 s{sVo}, s{sVo}, s{sW}
    s_lshl_b32 s{sVo}, s{sVo}, 7
    s_add_u32 s{sCFP}, s{sCFP}, s{sVo}
    s_add_u32 s{sCFP}, s{sCFP}, {WS_CF}
    """
    t2 = f"""v_add_u32 v{vMW}, s{sW8}, v1
    v_and_b32 v{vQR}, {~8192 & 0xffffffff}, v{vMW}
    """
    for i in range(4): t2 += f"v_mov_b32 v{vSEN+i}, -1\nv_mov_b32 v{ONE+i}, 0x3f803f80\n"
    for i in range(16): t2 += f"v_mov_b32 v{CI+i}, 0\n"
    return items(t), items(t2) + first_c(1)

def first_c(tile, redo=False):
    if tile == 2: return mask_items(MK, vT1, 0)
    it = items(f"""s_cmp_eq_u32 s{sT1}, 0
    s_cselect_b32 s{sVo}, 0, {H(BIG*1024)}
    v_add_f32 v3, s{sVo}, v{vT1}""") + mask_items(S_, 3, 0)
    if redo: return it
    return it + items(f"""s_cmp_eq_u32 s{sT1}, 0
    s_cselect_b32 s{sVo}, 1.0, 0
    v_sub_f32 v3, v{vT2}, v{vT1}
    v_fma_f32 v3, s{sVo}, v3, v{vT1}""") + mask_items(MK, 3, 0)

def qk_m(Q, grp, S, C, order="kt"):
    M = []
    tl = [(0, 0), (1, 0), (0, 1), (1, 1)] if order == "kt" else [(0, 0), (0, 1), (1, 0), (1, 1)]
    for (qt, kt) in tl:
        d = S + 8 * qt + 4 * kt
        for u in range(4):
            c = V(d) if u else (V(CI + (grp * 2 + qt) * 4) if C is None else "0" if C == 0 else V(C + 8 * qt + 4 * kt))
            M.append(MF(V(d), A(KF + (kt * 4 + u) * 4), A(Q + (grp * 2 + qt) * 16 + u * 4), c))
    return M
def pv_m(grp, P, zero, order=range(8), lsum=True):
    M = []
    for qt in range(2 if lsum else 0):
        d = V(LA + (grp * 2 + qt) * 4)
        M.append(MF(d, V(ONE), V(P + 4 * qt), "0" if zero else d))
    for n in order:
        for qt in range(2):
            d = V(O_ + grp * 64 + qt * 32 + n * 4)
            M.append(MF(d, A(VF + 4 * n), V(P + 4 * qt), "0" if zero else d))
    return M
def qread(Q, base, f): return f"ds_read_b128 {A(Q+4*f)}, v{vQR} offset:{base + f*1024}"
def kread(ab, f): return ("l", f"ds_read_b128 {A(KF+4*f)}, v{vK} offset:{ab*16384 + f*1024}")
def vread(ab, n): return ("l", f"ds_read_b128 {A(VF+4*n)}, v{vV0 if n < 4 else vV1} offset:{ab*16384 + n*1024}")
def sm_place(ph, S, P, g0=0, stride=2):
    ge = []
    for j in range(16): ge.append(ph.put("e", f"v_exp_f32 v{S+j}, v{S+j}", g0 + stride * j))
    return ge
def cvt_place(ph, S, P, ge):
    for i in range(8):
        lo = max(ge[2 * i], ge[2 * i + 1])
        if lo + 1 <= len(ph.M) - 1: ph.put("v", f"v_cvt_pk_bf16_f32 v{P+i}, v{S+2*i}, v{S+2*i+1}", lo + 1)
        else: ph.put("x", f"v_cvt_pk_bf16_f32 v{P+i}, v{S+2*i}, v{S+2*i+1}", lo)
def adv_items():
    return items(f"""s_add_u32 s{sVo}, s{sKp}, 32768
    s_sub_u32 s{sKp}, s{sE}, s{sN1}
    s_sub_u32 s{sKp}, s{sKp}, 1
    s_cmp_gt_u32 s{sE}, s{sN1}
    s_cselect_b32 s{sKp}, s{sKp}, s{sE}
    s_lshl_b32 s{sKp}, s{sKp}, 16
    s_add_u32 s{sKp}, s{sKp}, s{sKV}
    s_cmp_ge_u32 s{sE}, 17
    s_cselect_b32 s{sKp}, {OOB - 8192}, s{sKp}
    s_add_u32 s{sE}, s{sE}, 1""")
vL2 = 15
def lin8(sm, so, tog, tag):
    it = []
    for h in range(2):
        it.append(("s", f"s_add_u32 m0, s{sm}, {h*4096}"))
        for i in range(4): it.append(("m", f"buffer_load_dwordx4 v{vL2 if h else 1}, {srd(WS)}, s{so} offen offset:{i*1024} {E_('KVL', '')} lds", tag))
    return it + [("s", f"s_xor_b32 s{sm}, s{sm}, {tog}")]
def kdma(g): return lin8(sKm, sKp, R2 ^ R4, "kd")
def vdma(g): return lin8(sVm, sVo, R3 ^ R0, "vd")
NPEEL = 8
FUSE = E_("FUSE", "0") == "1"
def prefill_items(i):
    if E_("NOPRE"): return []
    return [("s", f"s_add_u32 s{sPO}, s{sPB}, {((i >> 3) << 23) + (i & 1) * 131072}"),
            ("m", f"buffer_store_dwordx4 {V(vSEN)}, v{vQR if E_('PLIN', '1') == '1' else vPO}, {srd(WS)}, s{sPO} offen offset:{((i >> 1) & 3) * 256} {WT}", "pre")]

DG = {"8": {"c": [3, 7, 11, 15, 19, 23, 27, 31], "d": [3, 7, 11, 15, 19, 23, 27, 31], "a": []},
      "7": {"c": [3, 7, 11, 15, 23, 27, 31], "d": [3, 7, 11, 15, 23, 27, 31], "a": [3, 7]},
      "9": {"c": [3, 7, 11, 15, 23, 27, 31], "d": [3, 7, 11, 15, 19, 23, 27, 31], "a": [3]},
      "6": {"c": [3, 7, 15, 19, 27, 31], "d": [0, 7, 11, 19, 23, 31], "a": [3, 7, 15, 19]}}[E_("DG", "7")]
def kv_items(g, name):
    seq = kdma(g) + vdma(g)
    groups = []; pre = []
    for it in seq:
        if it[0] == "m": groups.append([pre, it]); pre = []
        else: pre = pre + [it]
    groups.append([pre, None])
    n0 = {"c": 0, "d": len(DG["c"]), "a": len(DG["c"]) + len(DG["d"])}[name]
    return [(gp, groups[n0 + i][1], groups[n0 + i + 1][0]) for i, gp in enumerate(DG[name])], groups[0][0]
def place_kv(g, ph, name, limit=16):
    lst, first = kv_items(g, name)
    n0 = {"c": 0, "d": len(DG["c"]), "a": len(DG["c"]) + len(DG["d"])}[name]
    if name == "c": ph.stream(first, 0, 1)
    for i, (gp, dma, post) in enumerate(lst):
        if n0 + i >= limit: break
        ph.put("m", dma[1], gp, gp, tag=dma[2])
        ph.stream(post, gp + 1, gp + 2)

def slot_lv(g, Q, name, extra=None):
    S0, S1, P0, P1 = S_, S_ + 16, P_, P_ + 8
    qk, sm, pv = {"a": ((0, S0), (S1, P1), (0, P0)), "b": ((1, S1), (S0, P0), (1, P1)),
                  "c": ((0, S0), (S1, P1), (0, P0)), "d": ((1, S1), (S0, P0), (1, P1))}[name]
    M = qk_m(Q, qk[0], qk[1], None) + pv_m(pv[0], pv[1], False, lsum=name not in "bc")
    ph = Phase(g.k, M)
    seq = kdma(g) + vdma(g); grp = []; pre = []
    for it in seq:
        if it[0] == "m": grp.append([pre, it]); pre = []
        else: pre = pre + [it]
    grp.append([pre, None])
    if name == "c":
        ge = sm_place(ph, *sm, g0=0)
        for n, gp in enumerate([1, 3, 5, 9, 13, 17, 21, 23]): ph.put(*vread(0, n), gp, gp)
        dl, n0 = [7, 11, 15, 19, 25, 29], 0
        ph.stream(grp[0][0], 0, 1)
    if name == "d":
        ge = sm_place(ph, *sm, g0=2)
        for f in range(8): ph.put(*kread(0, f), 5 + 4 * f, 5 + 4 * f)
        dl, n0 = [0, 3, 7, 11, 15, 19, 23, 27, 31], 6
    if name == "a":
        ge = sm_place(ph, *sm, g0=0)
        for n, gp in enumerate([1, 5, 7, 9, 13, 17, 21, 25]): ph.put(*vread(1, n), gp, gp)
        dl, n0 = [3], 15
    if name == "b":
        ge = sm_place(ph, *sm, g0=0)
        for f in range(8): ph.put(*kread(1, f), 9 + 2 * f)
        dl, n0 = [], 0
    for i, gp in enumerate(dl):
        ph.put("m", grp[n0 + i][1][1], gp, gp, tag=grp[n0 + i][1][2]); ph.stream(grp[n0 + i + 1][0], gp + 1, gp + 2)
    vq = [(ge[2 * i + 1] + 1, f"v_cvt_pk_bf16_f32 v{sm[1]+i}, v{sm[0]+2*i}, v{sm[0]+2*i+1}") for i in range(8)]
    if name in "ab": vq += [(ge[j] + 1, f"v_add_f32 v{12+(j>>3)}, v{12+(j>>3)}, v{sm[0]+j}") for j in range(16)]
    if name == "a": vq += [(26, f"v_xor_b32 v{vV0}, {R3 ^ R0}, v{vV0}"), (26, f"v_xor_b32 v{vV1}, {R3 ^ R0}, v{vV1}")]
    if name == "c": vq += [(0, f"v_xor_b32 v{vK}, {R2 ^ R4}, v{vK}")]
    vq.sort(key=lambda x: x[0])
    n = len(M)
    for (lo, t) in vq:
        lo = min(lo, n - 1)
        ok = [gp for gp in range(lo, n) if ph.fits(gp, "v")]
        if ok and ok[0] <= lo + 6: ph.put("v", t, ok[0], ok[0])
        else: ph.g[lo].append(("v", t, None, 0))
    if extra: extra(ph)
    ph.emit()

def slot(g, Q, name, zero=False, Cm=None, extra=None, dma=True, k=None):
    S0, S1, P0, P1 = S_, S_ + 16, P_, P_ + 8
    qk, sm, pv = {"a": ((0, S0), (S1, P1), (0, P0)), "b": ((1, S1), (S0, P0), (1, P1)),
                  "c": ((0, S0), (S1, P1), (0, P0)), "d": ((1, S1), (S0, P0), (1, P1))}[name]
    M = qk_m(Q, qk[0], qk[1], Cm) + pv_m(pv[0], pv[1], zero)
    ph = Phase(k or g.k, M)
    ge = sm_place(ph, *sm, g0=2 if name != "b" else 0)
    if name in "ac":
        for n, gp in enumerate([0, 1, 5, 9, 13, 17, 21, 25]): ph.put(*vread(1 if name == "a" else 0, n), gp, gp)
    if name == "b":
        for f in range(8): ph.put(*kread(1, f), 9 + 2 * f)
    if name == "d":
        for f in range(8): ph.put(*kread(0, f), 5 + 4 * f, 5 + 4 * f)
    if dma and name != "b": place_kv(g, ph, name)
    cvt_place(ph, *sm, ge)
    if name == "a": ph.stream(items(f"v_xor_b32 v{vV0}, {R3 ^ R0}, v{vV0}\nv_xor_b32 v{vV1}, {R3 ^ R0}, v{vV1}"), 29)
    if name == "b": ph.put("v", f"v_xor_b32 v{vK}, {R2 ^ R4}, v{vK}", 27)
    if extra: extra(ph)
    ph.emit()

def tile(g, T):
    import gen_tail as GT
    k = g.k
    Q = Q1 if T == 1 else Q2
    sT = sT1 if T == 1 else sT2
    S0, S1, P0, P1 = S_, S_ + 16, P_, P_ + 8
    L = f"L_t{T}"
    def prologue(k, first):
        M = qk_m(Q, 0, S0, S0 if T == 1 else None, order="qt") + qk_m(Q, 1, S1, None)
        ph = Phase(k, M)
        if first:
            for f in range(8, 16): ph.put("l", qread(Q1, R0, f), f - 8, f - 8)
            for f in range(16): ph.g[8 + f].append(("l", qread(Q2, R1, f), None, 0))
        ge = []
        for j in range(16):
            gp = 4 * (j // 4) + 8 + (j % 4); ph.g[gp].append(("e", f"v_exp_f32 v{S0+j}, v{S0+j}", None, 0)); ge.append(gp)
        for f in range(8): g1 = ph.put(*kread(1, f), 24 + f, 24 + f)
        ph.put("x", f"v_xor_b32 v{vK}, {R2 ^ R4}, v{vK}", 31)
        if first: ph.put("x", f"""v_lshrrev_b32 v{vQR}, 4, v2
        v_lshlrev_b32 v{vQR}, 15, v{vQR}
        v_and_b32 v14, 255, v1
        v_add_u32 v{vQR}, v{vQR}, v14
        {f"s_and_b32 s{sD}, s2, 1" if E_("ODDX") else ""}
        {f"s_lshl_b32 s{sD}, s{sD}, 30" if E_("ODDX") else ""}
        {f"v_or_b32 v{vQR}, s{sD}, v{vQR}" if E_("ODDX") else ""}""", 31)
        ph.stream(adv_items() + items(f"s_sub_u32 s{sRem}, s{sT}, {1 if T == 1 else NPEEL}"), 0)
        cvt_place(ph, S0, P0, ge)
        ph.emit()
    if T == 1:
        k2 = K(); k2.label(L + "_start"); prologue(k2, False); k2(f"s_branch {L}_p1")
        g.tail.append("\n".join(k2.out))
        prologue(k, True); k.label(L + "_p1")
    elif FUSE:
        k2 = K(); k2.label(L + "_start"); prologue(k2, False); k2("s_waitcnt lgkmcnt(0)\ns_barrier")
        slot(g, Q, "c", zero=True, k=k2); slot(g, Q, "d", zero=True, k=k2); k2(f"s_branch {L}_p1")
        assert g.TS or [e[0] for e in k2.lg] == [e[0] for e in k.lg]
        k.lg = list(k2.lg)
        g.tail.append("\n".join(k2.out))
        k.label(L + "_p1")
    else:
        k.label(L + "_start"); prologue(k, False)
    if not (T == 2 and FUSE): k.waitvm(["kd", "vd", "k1", "v0"], True); k("s_barrier")
    if E_("TSA") == "r" and T == 2 or E_("TSA") == "m1" and T == 2: g.ts(force=True)
    if T == 1: k.vm = []
    st_bar = k.save()
    if T == 1:
        k(f"s_cmp_eq_u32 s{sT1}, 0\ns_cbranch_scc1 {L}_zero")
    if not (T == 2 and FUSE):
        slot(g, Q, "c", zero=True)
        slot(g, Q, "d", zero=True)
    if T == 2:
        for r in range(1, NPEEL):
            slot(g, Q, "a", extra=lambda ph: GT.peel_a(g, ph, r))
            def fb(ph): ph.stream(adv_items(), 10); GT.peel_b(g, ph, r)
            slot(g, Q, "b", extra=fb)
            k.waitvm(["kd", "vd", "ctx"] + (["pre"] if r == 4 else []), True); k("s_barrier")
            if E_("TSA") == "r": g.ts(force=True)
            if r == 1: g.run(g.flag_store(sCFO, []))
            slot(g, Q, "c")
            slot(g, Q, "d")
        k.vm = [e for e in k.vm if e[1] in ("kd", "vd")]
    if T == 1 or NPEEL == 8: k(f"s_cmp_eq_u32 s{sRem}, 0\ns_cbranch_scc1 {L}_diag")
    st_d = k.save()
    k.out.append(".p2align 3")
    k.label(L + "_loop")
    sl = slot_lv if E_("LV") else slot
    sl(g, Q, "a")
    sl(g, Q, "b", extra=lambda ph: ph.stream(adv_items(), 10))
    k.waitvm(["kd", "vd"], True); k("s_barrier")
    k.vm = []
    sl(g, Q, "c")
    sl(g, Q, "d", extra=lambda ph: ph.put("s", f"s_sub_u32 s{sRem}, s{sRem}, 1", 26))
    k(f"s_cmp_lg_u32 s{sRem}, 0\ns_cbranch_scc1 {L}_loop")
    assert [e[1] for e in k.vm] == [e[1] for e in st_d[0]] and [e[0] for e in k.lg] == [e[0] for e in st_d[1]]
    k.label(L + "_diag")
    TM = lambda: g.ts(force=True) if E_("TSA") == f"m{T}" or (E_("TSA") == "r" and T == 2) else None
    TM()
    m2 = mask_items(MK, vT2, 1)
    def xa(ph):
        if T == 2: GT.diag_a(g, ph)
        ph.stream(m2[:10], 17)
    slot(g, Q, "a", Cm=MK, extra=xa)
    def xb(ph):
        if T == 1: ph.stream(adv_items(), 10)
        else: GT.diag_b(g, ph)
        ph.stream(m2[10:], 1)
    slot(g, Q, "b", extra=xb)
    k.waitvm(["kd", "vd", "pre"], True); k("s_barrier")
    if T == 1: k.restore(st_bar)
    TM()
    NO = [4, 5, 6, 7, 0, 1, 2, 3]
    snd = lambda grp, va, base: [("l", f"ds_write_b128 v{va}, {V(O_ + grp*64 + (i&1)*32 + 16 + (i>>1)*4)} offset:{base + i*1024}") for i in range(8)]
    rcv = lambda grp, va, base: [("l", f"ds_read_b128 {V(O_ + grp*64 + (i&1)*32 + 16 + (i>>1)*4)}, v{va} offset:{base + i*1024}") for i in range(8)]
    vS, RS = (vMW, R1) if T == 1 else (11, 0)
    def big(k, zero):
        ph = Phase(k, qk_m(Q, 1, S0, MK, order="qt") + pv_m(0, P0, zero, NO) + pv_m(1, P1, zero, NO))
        for i, n in enumerate(NO): ph.put(*vread(0, n), [0, 1, 4, 7, 10, 13, 16, 19][i], [0, 1, 4, 7, 10, 13, 16, 19][i])
        for i, n in enumerate(NO): ph.put(*vread(1, n), min(51, 37 + 2 * i), min(51, 37 + 2 * i))
        for i, it in enumerate(snd(0, vS, RS)): ph.put("l", it[1], [24, 27, 30, 33, 36, 40, 44, 48][i], [24, 27, 30, 33, 36, 40, 44, 48][i])
        ge1 = []
        for j in range(16): ge1.append(ph.put("e", f"v_exp_f32 v{S1+j}, v{S1+j}", (ge1[-1] if ge1 else 1) + 1))
        ge2 = []
        for j, gp in enumerate([25, 26, 28, 29, 31, 32, 34, 35, 37, 38, 39, 41, 42, 43, 45, 46]): ge2.append(ph.put("e", f"v_exp_f32 v{S0+j}, v{S0+j}", gp, gp))
        for i in range(8): ph.put("v", f"v_cvt_pk_bf16_f32 v{P1+i}, v{S1+2*i}, v{S1+2*i+1}", ge1[2 * i + 1] + 1, 30)
        for i in range(8): ph.put("v", f"v_cvt_pk_bf16_f32 v{P0+i}, v{S0+2*i}, v{S0+2*i+1}", [36, 40, 44, 47, 48, 49, 50, 50][i], [36, 40, 44, 47, 48, 49, 50, 50][i])
        lz = f"s_xor_b32 s{sB}, s{sVm}, 8192" if T == 1 else f"s_xor_b32 s{sB}, s{sW8}, {8192 + R0}"
        hz = f"s_xor_b32 s{sC}, s{sVm}, {R3 ^ R0}" if T == 1 else f"s_add_u32 s{sC}, s{sW8}, {R3}"
        ph.stream(items(f"""{lz}
        v_lshrrev_b32 v13, 1, v1
        v_add_u32 v12, s{sB}, v13"""), 0)
        gl = [2, 6, 11, 15, 20, 23, 29, 34]; gi = 0
        for it in (kdma(g) if T == 1 else GT.wodma(g, 1)):
            if it[0] == "m": ph.g[gl[gi]].append(("m", it[1], it[2], 0)); gi += 1
            else: ph.put("s", it[1], gl[gi - 1] + 1 if gi else 0, gl[gi] - 1 if gi < 8 else None)
        ph.put("v", f"v_mov_b32 v{LA+1}, v{LA+4}", 33, 33)
        if T == 2 and GT.TK < 32: ph.put("x", f"v_readfirstlane_b32 s{GT.sCND}, v10", 50)
        ph.put("x", f"""ds_write_b64 v12, v[{LA}:{LA+1}]
        {hz}
        v_xor_b32 v12, 8192, v12
        v_add_u32 v9, s{sC}, v1
        v_xor_b32 v8, 8192, v{vS}
        v_xor_b32 v10, 8192, v9""", 51)
        ph.emit()
    if T == 1:
        k2 = K(); k2.label(L + "_zero"); big(k2, True); k2(f"s_branch {L}_join")
        g.tail.append("\n".join(k2.out))
    big(k, False)
    k.label(L + "_join")
    g.ts(); TM()
    k(f"""v_xor_b32 v{vV0}, {R3 ^ R0}, v{vV0}
    v_xor_b32 v{vV1}, {R3 ^ R0}, v{vV1}
    s_waitcnt lgkmcnt(0)
    s_barrier""")
    TM()
    def check_txt(RL):
        return f"""v_cmp_le_f32 vcc, {H(LLO)}, v{RL+12}
            s_mov_b64 s[{sXB}:{sXB+1}], vcc
            v_cmp_ge_f32 vcc, {H(LHI)}, v{RL+8}
            s_and_b64 s[{sXB}:{sXB+1}], s[{sXB}:{sXB+1}], vcc
            s_cmp_eq_u64 s[{sXB}:{sXB+1}], -1
            s_cselect_b32 s{sXB}, s{sRedo}, 1
            s_cmp_lg_u32 s{sXB}, 0
            s_cbranch_scc1 {L}_redo
            {L}_safe:"""
    if T == 1 and FUSE:
        RL = MK
        def fins(grp):
            out = []
            for qt in range(2):
                b = O_ + grp * 64 + qt * 32; r = RL + 2 * (grp * 2 + qt)
                for u in range(2):
                    c = b + 8 * u
                    for i in range(8): out.append(("v", f"v_add_f32 v{c+i}, v{c+i}, v{c+16+i}"))
                    for i in range(8): out.append(("v", f"v_mul_f32 v{c+i}, v{c+i}, v{r}"))
                    for i in range(4): out.append(("v", f"v_cvt_pk_bf16_f32 v{c+i}, v{c+2*i}, v{c+2*i+1}"))
                    out.append(("x", f"buffer_store_dwordx4 {V(c)}, v{vL2 if qt else 1}, {srd(WS)}, s{sC if grp else sB} offen offset:{u*1024} {WT}", "ctx"))
            return out
        ph = Phase(k, pv_m(1, P0, False, NO) + qk_m(Q2, 0, S0, 0, order="qt") + qk_m(Q2, 1, S1, 0))
        rc = rcv(0, 8, RS); rc = [rc[i] for i in (0, 2, 4, 6, 1, 3, 5, 7)]
        for i, it in enumerate([("l", f"ds_read_b64 v[{RL+8}:{RL+9}], v12")] + rc[:4] + [kread(0, f) for f in range(4)] + rc[4:] + [kread(0, f) for f in range(4, 8)]): ph.put("l", it[1], i, i)
        for i, it in enumerate(snd(1, 10, 0)): ph.g[17 + 3 * i].append(("l", it[1], None, 0))
        ge = []
        for j, gp in enumerate([27, 28, 30, 31, 33, 34, 36, 37, 39, 40, 41, 42, 43, 44, 45, 46]): ph.g[gp].append(("e", f"v_exp_f32 v{S0+j}, v{S0+j}", None, 0)); ge.append(gp)
        for f in range(8): ph.g[42 + f].append(kread(1, f) + (None, 0))
        g1 = ph.stream(items(f"""s_lshl_b32 s{sB}, s{sT}, 20
        s_add_u32 s{sC}, s{sB}, s{sCHI}
        s_add_u32 s{sB}, s{sB}, s{sCLO}
        v_lshrrev_b32 v11, 4, v2
        v_lshrrev_b32 v13, 2, v1
        v_add_u32 v13, {R1}, v13
        s_xor_b32 s{sD}, s{sW8}, 8192
        v_add_u32 v14, s{sD}, v13
        v_cmp_eq_u32 vcc, 1, v11
        v_add_f32 v{RL}, v{RL+8}, v{LA}
        v_add_f32 v{RL+2}, v{RL+9}, v{LA+4}
        v_cndmask_b32 v12, v{LA}, v{LA+4}, vcc
        v_rcp_f32 v{RL}, v{RL}
        v_rcp_f32 v{RL+2}, v{RL+2}
        v_cmp_eq_u32 vcc, 2, v11
        v_cmp_eq_u32 s[{sXB}:{sXB+1}], 3, v11"""), 2, dense=1, sid=960)
        gv = g1
        f0 = fins(0); st0 = [it for it in f0 if it[0] == "x"]
        g1 = ph.stream([it for it in f0 if it[0] != "x"] + items(f"""v_cndmask_b32 v12, v12, v{LA+8}, vcc
        v_cndmask_b32 v12, v12, v{LA+12}, s[{sXB}:{sXB+1}]""") + [("x", "ds_write_b32 v14, v12")] + items(f"""v_and_b32 v14, {~192 & 0xffffffff}, v13
        v_add_u32 v14, s{sW8}, v14"""), g1 + 1, dense=int(E_("FDN", "2")), sid=960)
        print("fused lo ends", g1, file=sys.stderr)
        gp = gv - 2
        for it in vdma(g):
            ph.put("x", it[1], gp, tag=it[2] if len(it) > 2 else None)
            if it[0] == "m": gp += 3
        for i, it in enumerate(st0): ph.put("x", it[1], max(gp + 4 * i, g1 if i == 3 else 0), tag="ctx")
        ph.stream(adv_items() + items(f"s_sub_u32 s{sRem}, s{sT2}, {NPEEL}"), gp + 1)
        for i in range(8): ph.g[min(49, ge[2 * i + 1] + 2)].append(("v", f"v_cvt_pk_bf16_f32 v{P0+i}, v{S0+2*i}, v{S0+2*i+1}", None, 0))
        ph.put("x", f"v_xor_b32 v{vK}, {R2 ^ R4}, v{vK}", 49)
        ph.emit()
        TM()
        k.waitvm(["kd", "vd"], True); k("s_barrier")
        TM()
        hi = fins(1); NH = int(E_("FNH", "63"))
        def xc(ph):
            rc = rcv(1, 9, 0); rc = [rc[i] for i in (0, 2, 4, 6, 1, 3, 5, 7)]
            rd = [f"ds_read_b32 v{RL+4}, v14 offset:128", f"ds_read_b32 v{RL+6}, v14 offset:192"] + [it[1] for it in rc] + [f"ds_read_b32 v{RL+8+w}, v13 offset:{w*8192}" for w in range(4)]
            for i, t in enumerate(rd): ph.g[[0, 1, 2, 4, 6, 8, 10, 12, 14, 16, 18, 19, 20, 22][i]].append(("l", t, None, 0))
            ph.stream(items(f"""v_add_f32 v{RL+4}, v{RL+4}, v{LA+8}
            v_add_f32 v{RL+6}, v{RL+6}, v{LA+12}
            v_rcp_f32 v{RL+4}, v{RL+4}
            v_rcp_f32 v{RL+6}, v{RL+6}""") + hi[:NH], 7, dense=3)
        slot(g, Q2, "c", zero=True, Cm=0, extra=xc)
        def xd(ph):
            g2 = ph.stream(hi[NH:] + items(f"""v_add_f32 v{RL+8}, v{RL+8}, v{RL+9}
            v_add_f32 v{RL+10}, v{RL+10}, v{RL+11}
            v_min_f32 v{RL+12}, v{RL+8}, v{RL+10}
            v_add_f32 v{RL+8}, v{RL+8}, v{RL+10}"""), 0, dense=2)
            assert g2 < 14, g2
            ph.put("x", check_txt(RL), g2 + 1)
        slot(g, Q2, "d", zero=True, Cm=0, extra=xd)
        redo(g, T)
        g.ts(); TM()
        return
    RL = S1
    ph = Phase(k, pv_m(1, P0, False, NO))
    ph.stream([("l", f"ds_read_b64 v[{RL+8}:{RL+9}], v12")] + rcv(0, 8, RS), 0)
    ph.stream(items(f"""s_lshl_b32 s{sB}, s{sT}, 20
    s_add_u32 s{sC}, s{sB}, s{sCHI}
    s_add_u32 s{sB}, s{sB}, s{sCLO}
    v_lshrrev_b32 v11, 4, v2
    v_lshrrev_b32 v13, 2, v1
    v_add_u32 v13, {R1 if T == 1 else R4}, v13
    s_xor_b32 s{sD}, s{sW8}, 8192
    v_add_u32 v14, s{sD}, v13
    v_cmp_eq_u32 vcc, 1, v11
    v_add_f32 v{RL}, v{RL+8}, v{LA}
    v_add_f32 v{RL+2}, v{RL+9}, v{LA+4}
    v_cndmask_b32 v12, v{LA}, v{LA+4}, vcc
    v_rcp_f32 v{RL}, v{RL}
    v_rcp_f32 v{RL+2}, v{RL+2}
    v_cmp_eq_u32 vcc, 2, v11
    v_cmp_eq_u32 s[{sXB}:{sXB+1}], 3, v11"""), 0)
    sn = snd(1, 9, 0)
    for i in range(3): ph.put("l", sn[i][1], 12 + 2 * i, 12 + 2 * i)
    ph.emit()
    TM()
    def fin(grp):
        out = []
        for qt in range(2):
            b = O_ + grp * 64 + qt * 32; r = RL + 2 * (grp * 2 + qt)
            so = sC if grp else sB
            for u in range(2):
                c = b + 8 * u
                for i in range(0, 8, 2): out.append(("v", f"v_pk_add_f32 v[{c+i}:{c+i+1}], v[{c+i}:{c+i+1}], v[{c+16+i}:{c+16+i+1}]"))
                for i in range(0, 8, 2): out.append(("v", f"v_pk_mul_f32 v[{c+i}:{c+i+1}], v[{c+i}:{c+i+1}], v[{r}:{r+1}] op_sel_hi:[1,0]"))
                for i in range(4): out.append(("v", f"v_cvt_pk_bf16_f32 v{c+i}, v{c+2*i}, v{c+2*i+1}"))
                out.append(("m", f"buffer_store_dwordx4 {V(c)}, v{vL2 if qt else 1}, {srd(WS)}, s{so} offen offset:{u*1024} {E_('CXP', WT)}", "ctx"))
        return out
    ex = GT.merge_x(g) if T == 2 else vdma(g)
    lo = fin(0)
    k(f"""v_cndmask_b32 v12, v12, v{LA+8}, vcc
    v_cndmask_b32 v12, v12, v{LA+12}, s[{sXB}:{sXB+1}]""")
    ne = len(ex) // 2 if T == 1 else len(ex)
    for i in range(5):
        g.run([sn[3 + i]] + lo[i * 11:(i + 1) * 11] + ex[i * ne // 5:(i + 1) * ne // 5])
    k(f"""ds_write_b32 v14, v12
    v_and_b32 v14, {~192 & 0xffffffff}, v13
    v_add_u32 v14, s{sW8}, v14""")
    if E_("TSA") != "r": TM()
    k("s_waitcnt lgkmcnt(0)\ns_barrier")
    TM()
    k(f"ds_read_b32 v{RL+4}, v14 offset:128\nds_read_b32 v{RL+6}, v14 offset:192")
    rc = rcv(1, 10, 0)
    g.run([rc[i] for i in (0, 2, 4, 6, 1, 3, 5, 7)])
    for w in range(4): k(f"ds_read_b32 v{RL+8+w}, v13 offset:{w*8192}")
    k(f"""v_add_f32 v{RL+4}, v{RL+4}, v{LA+8}
    v_add_f32 v{RL+6}, v{RL+6}, v{LA+12}
    v_rcp_f32 v{RL+4}, v{RL+4}
    v_rcp_f32 v{RL+6}, v{RL+6}""")
    hi = fin(1); ex = ex[ne:]
    nxt = [kread(0, f) for f in range(8)] if T == 1 else GT.oread(0) + GT.oread(1)
    for i in range(4):
        g.run(hi[i * 13:(i + 1) * 13] + ex[i * len(ex) // 4:(i + 1) * len(ex) // 4])
        if i == 1:
            k(f"""v_add_f32 v{RL+8}, v{RL+8}, v{RL+9}
            v_add_f32 v{RL+10}, v{RL+10}, v{RL+11}
            v_min_f32 v{RL+12}, v{RL+8}, v{RL+10}
            v_add_f32 v{RL+8}, v{RL+8}, v{RL+10}
            v_cmp_le_f32 vcc, {H(LLO)}, v{RL+12}
            s_mov_b64 s[{sXB}:{sXB+1}], vcc
            v_cmp_ge_f32 vcc, {H(LHI)}, v{RL+8}
            s_and_b64 s[{sXB}:{sXB+1}], s[{sXB}:{sXB+1}], vcc
            s_cmp_eq_u64 s[{sXB}:{sXB+1}], -1
            s_cselect_b32 s{sXB}, s{sRedo}, 1
            s_cmp_lg_u32 s{sXB}, 0
            s_cbranch_scc1 {L}_redo""")
            k.label(L + "_safe")
        if i >= 2: g.run(nxt[(i - 2) * len(nxt) // 2:(i - 1) * len(nxt) // 2])
    redo(g, T)
    g.ts(); TM()

def redo(g, T):
    L = f"L_t{T}"
    Q = Q1 if T == 1 else Q2
    sT = sT1 if T == 1 else sT2
    k = K(); S0, S1, MX = S_, S_ + 16, P_
    k.label(L + "_redo")
    k(f"s_cmp_eq_u32 s{sRedo}, 0\ns_cbranch_scc1 {L}_max\ns_mov_b32 s{sRedo}, 0")
    for i in range(16): k(f"v_mov_b32 v{CI+i}, 0")
    k(f"s_nop 1\ns_branch {L}_safe")
    k.label(L + "_max")
    k(f"""s_waitcnt vmcnt(0) lgkmcnt(0)
    s_barrier
    s_mov_b32 s{sRedo}, 1
    s_and_b32 s{sB}, s{sW}, 1
    s_lshl_b32 s{sB}, s{sB}, 13
    s_sub_u32 s{sC}, s{sKV}, s{sW8}
    s_add_u32 s{sC}, s{sC}, s{sB}
    s_mov_b32 s{sRem}, s{sT}""")
    if T == 2:
        k(f"s_mov_b32 s{sRPL}, 0")
        for i in range(4): k(f"v_mov_b32 v{vSEN+i}, -1")
    for t in range(4): k(f"v_mov_b32 v{MX+t}, 0xff800000")
    def kld(ab):
        k(f"s_add_u32 s{sB}, s{sC}, {ab*16384}")
        for f in range(8): k(f"buffer_load_dwordx4 {A(KF+4*f)}, v{vL2 if f >= 4 else 1}, {srd(WS)}, s{sB} offen offset:{(f&3)*1024}")
    def blk(grp, S, C):
        for m in qk_m(Q, grp, S, C): k(m)
    def mx(grp, S):
        for qt in range(2):
            for i in range(0, 8, 2): k(f"v_max3_f32 v{MX+grp*2+qt}, v{MX+grp*2+qt}, v{S+8*qt+i}, v{S+8*qt+i+1}")
    k.label(L + "_maxl")
    k(f"s_cmp_eq_u32 s{sRem}, 0\ns_cbranch_scc1 {L}_maxd")
    for ab in range(2):
        kld(ab); blk(0, S0, None); blk(1, S1, None); mx(0, S0); mx(1, S1)
    k(f"s_add_u32 s{sC}, s{sC}, 65536\ns_sub_u32 s{sRem}, s{sRem}, 1\ns_nop 7\ns_branch {L}_maxl")
    k.label(L + "_maxd")
    kld(0)
    for it in mask_items(MK, vT1, 0): k(it[1])
    blk(0, S0, MK); blk(1, S1, None); mx(0, S0); mx(1, S1)
    kld(1)
    for it in mask_items(MK, vT2, 1): k(it[1])
    blk(1, S0, MK); mx(1, S0)
    for sw in ("v_permlane16_swap_b32", "v_permlane32_swap_b32"):
        for t in range(4): k(f"v_mov_b32 v{MX+4+t}, v{MX+t}")
        for t in range(4): k(f"{sw} v{MX+t}, v{MX+4+t}")
        for t in range(4): k(f"v_max_f32 v{MX+t}, v{MX+t}, v{MX+4+t}")
    k(f"""ds_write_b128 v{vMW}, {V(MX)} offset:{R1}
    v_xor_b32 v8, 8192, v{vMW}
    s_waitcnt lgkmcnt(0)
    s_barrier
    ds_read_b128 {V(MX+4)}, v8 offset:{R1}""")
    for t in range(4): k(f"v_max_f32 v{MX+t}, v{MX+t}, v{MX+4+t}")
    for t in range(4):
        for r in range(4): k(f"v_sub_f32 v{CI+4*t+r}, 0, v{MX+t}")
    k(f"s_mov_b32 s{sE}, 0" if T == 1 else f"s_add_u32 s{sE}, s{sN1}, 1")
    k(f"""s_and_b32 s{sB}, s{sE}, 1
    s_mul_i32 s{sKm}, s{sB}, {R2 ^ R4}
    s_xor_b32 s{sKm}, s{sKm}, {R2}
    s_mul_i32 s{sVm}, s{sB}, {R3 ^ R0}
    s_xor_b32 s{sVm}, s{sVm}, {R3}
    v_and_b32 v{vK}, 0x7fff, v{vK}
    v_or_b32 v{vK}, s{sKm}, v{vK}
    v_and_b32 v{vV0}, 0x7fff, v{vV0}
    v_or_b32 v{vV0}, s{sVm}, v{vV0}
    v_and_b32 v{vV1}, 0x7fff, v{vV1}
    v_or_b32 v{vV1}, s{sVm}, v{vV1}
    s_add_u32 s{sKm}, s{sKm}, s{sW8}
    s_add_u32 s{sVm}, s{sVm}, s{sW8}
    s_add_u32 s{sE}, s{sE}, 2
    s_mov_b32 s{sKp}, s{sKV}
    s_add_u32 s{sVo}, s{sKV}, 32768""")
    for it in kdma(g) + vdma(g): k(it[1])
    k(f"""s_min_u32 s{sKp}, s{sT}, 1
    s_lshl_b32 s{sKp}, s{sKp}, 16
    s_add_u32 s{sKp}, s{sKp}, s{sKV}""")
    for it in kdma(g): k(it[1])
    if T == 1:
        for it in first_c(1, True) + mask_items(MK, vT2, 1): k(it[1])
        k(f"s_cmp_eq_u32 s{sT1}, 0\ns_cbranch_scc1 {L}_mk")
        for it in mask_items(MK, vT1, 0): k(it[1])
        k.label(L + "_mk")
    k("s_waitcnt vmcnt(0) lgkmcnt(0)\ns_barrier")
    for f in range(8): k(kread(0, f)[1])
    k(f"s_waitcnt lgkmcnt(0)\ns_branch {L}_start")
    g.tail.append("\n".join(k.out))

def attention(g):
    k = g.k; ACC = g.ACC
    u, tt = g.qlast
    b = ACC + (tt * 8 + 2 * u) * 4
    k(f"v_add_u32 v{vL2}, 4096, v1")
    for i in range(4): k(f"v_cvt_pk_bf16_f32 v{b+i}, v{b+2*i}, v{b+2*i+1}")
    k(f"ds_write_b128 v{vMW}, {V(b)} offset:{(tt>>1)*R1 + ((tt&1)*4+u)*1024}")
    k.waitvm(["k0"], True); k("s_barrier")
    for f in range(4): k(qread(Q1, R0, f)); k(kread(0, f)[1])
    for f in range(4, 8): k(kread(0, f)[1])
    for f in range(4, 8): k(qread(Q1, R0, f))
    g.ts()
    tile(g, 1)
    tile(g, 2)

def qdump(g):
    k = g.k; ACC = g.ACC
    k(f"s_lshl_b32 s{sB}, s2, 16\ns_lshl_b32 s{sC}, s{sW}, 14\ns_add_u32 s{sB}, s{sB}, s{sC}\ns_add_u32 s{sB}, s{sB}, {WS_CTX}")
    for tt in range(4):
        for u in range(4):
            b = ACC + (tt * 8 + 2 * u) * 4
            for i in range(4): k(f"v_cvt_pk_bf16_f32 v{b+i}, v{b+2*i}, v{b+2*i+1}")
            k(f"buffer_store_dwordx4 {V(b)}, v1, {srd(WS)}, s{sB} offen offset:{u*1024}")
        k(f"s_add_u32 s{sB}, s{sB}, 4096")
```

```python
from common import *
from gen_attn import *
sFO, sWOB, sXL, sPS, sTOK1, sTOK2, sPC, sKEY, sIDX, sCND, sCG, sC2 = 64, 65, 74, 75, 68, 69, 70, 71, 72, 73, 66, 67
CNT = E_("CNT", "")
sPM = 12
ROT = E_("OROT", "1") == "1"
sLM = 70
OQB = [R1, R2, R0, R3]
WOV = 8
OA = 56
WR0, OACC, X2, MW = 192, 64, 128, 128
def X1R(f): return 64 + 4 * f if f < 16 else 4 * (f - 16)
QM = E_("QM", "1") == "1"
PCH, PKH = ([0, 0, 1, 1], [0, 1, 0, 1]) if QM else ([0, 1, 0, 1], [0, 0, 1, 1])
def wodma(g, c, vb=24):
    it = []
    for h in range(2):
        it += g.dma4(WO, [vb + i for i in range(4)], (sW8, OQB[c] + h * 4096), (sWOB, PCH[c] * 128 + PKH[c] * 262144 + h * 32768), f"wo{c}", True)
    return it
def xload(pas, f):
    off = f * 1024
    dst = A(X1R(f)) if pas == 0 else V(X2 + 4 * f)
    return [("s", f"s_xor_b32 s{sXL}, s{sXC}, {off & ~4095}"), ("m", f"buffer_load_dwordx4 {dst}, v1, {srd(WS)}, s{sXL} offen offset:{off & 4095}")]
def xc_items(sT):
    return items(f"""s_lshl_b32 s{sXC}, s{sT}, 2
    s_add_u32 s{sXC}, s{sXC}, s{sW}
    s_lshl_b32 s{sXC}, s{sXC}, 3
    s_add_u32 s{sXC}, s{sXC}, s{sX}
    s_lshl_b32 s{sXC}, s{sXC}, 2
    s_add_u32 s{sXC}, s{sXC}, {f"s{sJ}" if ROT else "0"}
    s_lshl_b32 s{sXC}, s{sXC}, 13
    s_add_u32 s{sXC}, s{sXC}, {WS_CTX}""")

def moe_setup():
    return items(f"""s_lshr_b32 s{sB}, s2, 3
    s_mul_i32 s{sCG}, s{sX}, 28
    s_add_u32 s{sCG}, s{sCG}, s{sB}
    s_cmp_lt_u32 s{sB}, 28
    s_cselect_b32 s{sCG}, s{sCG}, 255
    s_lshl_b32 s{sC2}, s{sX}, 3
    s_add_u32 s{sC2}, s{sC2}, s{sB}
    s_sub_u32 s{sC2}, s{sC2}, 24
    s_cmp_ge_u32 s{sB}, 24
    s_cselect_b32 s{sC2}, s{sC2}, 255""")
WS_GP, WS_UP, WS_DP = 0x400000, 0x600000, 0x800000
RA, RAi, RB, RBi = ("v_lshrrev_b32", 3, "v_and_b32", 7) if E_("RPT", "1") == "0" else ("v_and_b32", 7, "v_lshrrev_b32", 3)
def repack_loads(t0, s0):
    return items(f"""s_lshl_b32 s{s0}, s2, 2
    s_add_u32 s{s0}, s{s0}, s{sW}
    s_and_b32 s{sB}, s{s0}, 31
    s_lshr_b32 s{sC}, s{s0}, 5
    s_sub_u32 s{sC}, s{sC}, 4
    s_and_b32 s{sC}, s{sC}, 31
    {f"s_bitcmp1_b32 s2, 0" if E_("ODDX") else ""}
    {f"s_cselect_b32 s{sC}, 31, s{sC}" if E_("ODDX") else ""}
    {RA} v{t0+1}, {RAi}, v2
    v_and_b32 v{t0}, 4, v{t0+1}
    v_and_b32 v{t0+2}, 2, v{t0+1}
    v_lshl_add_u32 v{t0}, v{t0+2}, 3, v{t0}
    v_and_b32 v{t0+2}, 1, v{t0+1}
    v_lshl_add_u32 v{t0}, v{t0+2}, 1, v{t0}
    v_mul_u32_u24 v{t0}, 3584, v{t0}
    {RB} v{t0+2}, {RBi}, v2
    v_lshl_add_u32 v{t0}, v{t0+2}, 4, v{t0}
    v_lshlrev_b32 v{t0+1}, 13, v{t0+1}
    v_lshl_add_u32 v{t0+1}, v{t0+2}, 4, v{t0+1}
    s_lshr_b32 s{s0}, s{sB}, 1
    s_lshl_b32 s{s0}, s{s0}, 2
    s_and_b32 s{sB}, s{sB}, 1
    s_add_u32 s{s0}, s{s0}, s{sB}
    s_mul_i32 s{s0}, s{s0}, {8*3584}
    s_lshl_b32 s{sB}, s{sC}, 7
    s_add_u32 s{s0}, s{s0}, s{sB}
    s_cmp_lt_u32 s{sC}, 28
    s_cselect_b32 s{s0}, s{s0}, {OOB}
    buffer_load_dwordx4 {A(PRE)}, v{t0}, {srd(WG_)}, s{s0} offen {CNT}
    buffer_load_dwordx4 {A(PRE+4)}, v{t0}, {srd(WG_)}, s{s0} offen offset:3584 {CNT}
    buffer_load_dwordx4 {A(PRE+8)}, v{t0}, {srd(WU_)}, s{s0} offen {CNT}
    buffer_load_dwordx4 {A(PRE+12)}, v{t0}, {srd(WU_)}, s{s0} offen offset:3584 {CNT}
    s_lshl_b32 s{s0}, s{sC}, 16
    s_lshl_b32 s{sB}, s{sW}, 11
    s_add_u32 s{s0}, s{s0}, s{sB}
    s_lshl_b32 s{sB}, s{sX}, 7
    s_add_u32 s{s0}, s{s0}, s{sB}
    buffer_load_dwordx4 {A(PRE+16)}, v{t0+1}, {srd(WD_)}, s{s0} offen {CNT}
    buffer_load_dwordx4 {A(PRE+20)}, v{t0+1}, {srd(WD_)}, s{s0} offen offset:1024 {CNT}""", "ex")
def repack_stores(t0, s0):
    return items(f"""s_lshr_b32 s{sC}, s2, 3
    s_sub_u32 s{sC}, s{sC}, 4
    s_and_b32 s{sC}, s{sC}, 31
    {f"s_bitcmp1_b32 s2, 0" if E_("ODDX") else ""}
    {f"s_cselect_b32 s{sC}, 31, s{sC}" if E_("ODDX") else ""}
    {RA} v{t0+2}, {RAi}, v2
    v_lshlrev_b32 v{t0+2}, 4, v{t0+2}
    {RB} v{t0+1}, {RBi}, v2
    v_lshl_add_u32 v{t0}, v{t0+1}, 13, v{t0+2}
    v_mul_u32_u24 v{t0+1}, 28672, v{t0+1}
    v_add_u32 v{t0+1}, v{t0+1}, v{t0+2}
    s_lshl_b32 s{s0}, s{sX}, 2
    s_add_u32 s{s0}, s{s0}, s{sW}
    s_lshl_b32 s{s0}, s{s0}, 7
    s_lshl_b32 s{sB}, s{sC}, 16
    s_add_u32 s{s0}, s{s0}, s{sB}
    s_add_u32 s{s0}, s{s0}, {WS_GP}
    s_cmp_lt_u32 s{sC}, s{sRPL}
    s_cselect_b32 s{s0}, s{s0}, {OOB - 0x400000}
    buffer_store_dwordx4 {A(PRE)}, v{t0}, {srd(WS)}, s{s0} offen {WT}
    s_add_u32 s{s0}, s{s0}, 4096
    buffer_store_dwordx4 {A(PRE+4)}, v{t0}, {srd(WS)}, s{s0} offen {WT}
    s_add_u32 s{s0}, s{s0}, {WS_UP - WS_GP - 4096}
    buffer_store_dwordx4 {A(PRE+8)}, v{t0}, {srd(WS)}, s{s0} offen {WT}
    s_add_u32 s{s0}, s{s0}, 4096
    buffer_store_dwordx4 {A(PRE+12)}, v{t0}, {srd(WS)}, s{s0} offen {WT}
    s_mul_i32 s{s0}, s{sX}, {8*28672}
    s_mul_i32 s{sB}, s{sW}, {2*3584}
    s_add_u32 s{s0}, s{s0}, s{sB}
    s_lshl_b32 s{sB}, s{sC}, 7
    s_add_u32 s{s0}, s{s0}, s{sB}
    s_add_u32 s{s0}, s{s0}, {WS_DP}
    s_cmp_lt_u32 s{sC}, s{sRPL}
    s_cselect_b32 s{s0}, s{s0}, {OOB}
    buffer_store_dwordx4 {A(PRE+16)}, v{t0+1}, {srd(WS)}, s{s0} offen {WT}
    buffer_store_dwordx4 {A(PRE+20)}, v{t0+1}, {srd(WS)}, s{s0} offen offset:3584 {WT}""", "pre")
MG, MD = 112, 128
def moe_loads(t0, s0):
    t = f"""v_lshlrev_b32 v{t0}, 4, v0
    v_cmp_gt_u32 vcc, 224, v0
    v_mov_b32 v{t0+1}, {OOB}
    v_cndmask_b32 v{t0+1}, v{t0+1}, v{t0}, vcc
    s_lshl_b32 s{s0}, s{sCG}, 13
    s_add_u32 s{s0}, s{s0}, {WS_GP}
    s_cmp_lt_u32 s{sCG}, 224
    s_cselect_b32 s{s0}, s{s0}, {OOB - 0x400000}
    buffer_load_dwordx4 {V(MG)}, v{t0}, {srd(WS)}, s{s0} offen
    s_add_u32 s{s0}, s{s0}, 4096
    buffer_load_dwordx4 {V(MG+4)}, v{t0}, {srd(WS)}, s{s0} offen
    s_add_u32 s{s0}, s{s0}, {WS_UP - WS_GP - 4096}
    buffer_load_dwordx4 {V(MG+8)}, v{t0}, {srd(WS)}, s{s0} offen
    s_add_u32 s{s0}, s{s0}, 4096
    buffer_load_dwordx4 {V(MG+12)}, v{t0}, {srd(WS)}, s{s0} offen
    s_mul_i32 s{s0}, s{sC2}, 28672
    s_add_u32 s{s0}, s{s0}, {WS_DP}
    s_cmp_lt_u32 s{sC2}, 64
    s_cselect_b32 s{s0}, s{s0}, {OOB - 0x400000}
    """
    for r in range(8):
        t += f"buffer_load_dwordx4 {V(MD+4*r)}, v{t0+1}, {srd(WS)}, s{s0} offen offset:{(r&1)*3584}\n"
        if r & 1 and r < 7: t += f"s_add_u32 s{s0}, s{s0}, 7168\n"
    return items(t, "ex")
def merge1_extra(g):
    t = f"""v_lshlrev_b32 v12, 3, v0
    s_lshl_b32 s{sC}, s2, 11
    s_add_u32 s{sC}, s{sC}, {WS_CAND}
    buffer_store_dwordx2 v[{vSEN}:{vSEN+1}], v12, {srd(WS)}, s{sC} offen {WT}
    s_lshl_b32 s{sC}, s2, 6
    s_add_u32 s{sC}, s{sC}, {WS_KEY}
    v_mov_b32 v13, 0
    buffer_store_dword v13, v7, {srd(WS)}, s{sC} offen {WT}
    s_lshl_b32 s{sC}, s{sCG}, 6
    s_add_u32 s{sC}, s{sC}, {WS_ACT}
    buffer_store_dwordx4 {V(vSEN)}, v7, {srd(WS)}, s{sC} offen {WT}
    buffer_store_dwordx4 {V(vSEN)}, v7, {srd(WS)}, s{sC} offen offset:16 {WT}
    """
    return items(t, "pre")
def late_mod_loads(g, b):
    it = items(f"""v_lshlrev_b32 v{b+4}, 2, v0
    v_cmp_gt_u32 vcc, 8, v0
    v_mov_b32 v{b+5}, {OOB}
    v_cndmask_b32 v{b+4}, v{b+5}, v{b+4}, vcc
    s_lshl_b32 s{sLM}, s2, 5
    s_add_u32 s{sLM}, s{sLM}, {WS_MODP + 4096}""")
    ld = []
    for q in range(4):
        ld += [("m", f"buffer_load_dword v{b+q}, v{b+4}, {srd(WS)}, s{sLM} offen"), ("s", f"s_add_u32 s{sLM}, s{sLM}, 12288")]
    return it, ld
def late_mod_fin(g, b):
    return items(f"""v_add_f32 v{b}, v{b}, v{b+1}
    v_add_f32 v{b+2}, v{b+2}, v{b+3}
    v_add_f32 v{b}, v{b}, v{b+2}
    v_cvt_pk_bf16_f32 v{b}, v{b}, v{b}
    v_and_b32 v{b}, 0xffff0000, v{b}
    s_lshr_b32 s{sLM}, s2, 6
    s_cmp_eq_u32 s{sLM}, 2
    s_cselect_b32 s{sLM}, 1.0, 0
    v_add_f32 v{b}, s{sLM}, v{b}
    v_cvt_pk_bf16_f32 v{b}, v{b}, v{b}
    v_and_b32 v{b}, 0xffff0000, v{b}
    s_lshl_b32 s{sLM}, s2, 5
    s_add_u32 s{sLM}, s{sLM}, {WS_MOD + 4096}
    buffer_store_dword v{b}, v{b+4}, {srd(WS)}, s{sLM} offen {WT}""", "ex")
def wo_voff(b):
    return items(f"""v_lshrrev_b32 v{b+1}, 1, v2
    v_lshrrev_b32 v{b+2}, 4, v2
    v_xor_b32 v{b+1}, v{b+1}, v{b+2}
    v_and_b32 v{b+1}, 3, v{b+1}
    v_lshlrev_b32 v{b+1}, 5, v{b+1}
    v_and_b32 v{b+2}, 1, v2
    v_lshl_add_u32 v{b+1}, v{b+2}, 4, v{b+1}
    v_lshrrev_b32 v{b}, 3, v2
    v_lshl_add_u32 v{b}, v{b}, 10, v{b+1}
    v_bfe_u32 v4, v2, 1, 2
    v_lshlrev_b32 v4, 11, v4
    v_lshl_add_u32 v4, v{b+2}, 6, v4
    v_add_u32 v{b+1}, 7168, v{b}
    v_add_u32 v{b+2}, {2*7168}, v{b}
    v_add_u32 v{b+3}, {3*7168}, v{b}""")
def cold_loads(t0, s0):
    return repack_loads(t0, s0) + items(f"""
    v_lshrrev_b32 v{t0+1}, 1, v2
    v_and_b32 v{t0+1}, 15, v{t0+1}
    v_lshlrev_b32 v{t0+1}, 10, v{t0+1}
    v_and_b32 v{t0+2}, 1, v2
    v_lshl_add_u32 v{t0+1}, v{t0+2}, 7, v{t0+1}
    s_lshl_b32 s{s0}, s{sP}, 2
    s_add_u32 s{s0}, s{s0}, s{sW}
    s_lshl_b32 s{s0}, s{s0}, 14
    buffer_load_dword a60, v{t0+1}, {srd(WO)}, s{s0} offen""", "ex")
def split_m(its, n):
    c = 0
    for i, it in enumerate(its):
        if it[0] == "m":
            c += 1
            if c == n: return its[:i + 1], its[i + 1:]
    return its, []
def peel_plan(g):
    pf = lambda a, b: sum((prefill_items(i) for i in range(a, b)), [])
    rs = []; rest = repack_stores(12, sPF)
    for i in range(6):
        a, rest = split_m(rest, 1); rs.append(a)
    wo = wodma(g, 0, 8)
    xl = lambda a, b: sum((xload(0, f) for f in range(a, b)), [])
    fsig = items(f"""s_lshl_b32 s{sFO}, s2, 6
    s_add_u32 s{sFO}, s{sFO}, {WS_FF}
    buffer_store_dword v6, v7, {srd(WS)}, s{sFO} offen {WT}""", "flag")
    cpoll = [("m", f"buffer_load_dword v3, v4, {srd(WS)}, s{sCFP} offen {WT}")]
    fc = first_c(2); wv = wo_voff(8)
    return [([pf(0, 2), rs[0]], [rs[1] + pf(2, 7), wv[:8]]),
            ([rs[2] + pf(7, 10)], [rs[3] + pf(10, 14), wv[8:]]),
            ([rs[4] + pf(14, 16) + cpoll], [rs[5] + merge1_extra(g), fc[:6]]),
            ([xc_items(sT1) + [("x", g.poll_check(3, 4, WS, f"s{sCFP}", "C1"))] + xl(0, 5)], [wo[:6] + xl(5, 8), fc[6:12]]),
            ([fsig + xl(8, 13)], [wo[6:] + xl(13, 16), fc[12:18]]),
            ([xl(16, 22)], [xl(22, 28), fc[18:26]]),
            ([xl(28, 32), fc[26:]], [])]
def peel_a(g, ph, r):
    for st in peel_plan(g)[r - 1][0]: ph.stream(st, 8 if any(it[0] == "m" for it in st[:3]) else 0)
def peel_b(g, ph, r):
    for st in peel_plan(g)[r - 1][1]: ph.stream(st, 0)
def diag_a(g, ph):
    ph.stream(items("".join(f"v_mov_b32 v{24+i}, v{8+i}\n" for i in range(4)) + f"""v_add_u32 v11, {R4}, v{vMW}
    v_lshlrev_b32 v12, 6, v0
    s_mov_b32 s{sKEY}, {WS_FF}
    buffer_load_dword v3, v12, {srd(WS)}, s{sKEY} offen {WT}
    v_bfe_u32 v13, v2, 1, 4
    v_lshlrev_b32 v13, 10, v13
    v_and_b32 v14, 1, v2
    v_lshl_add_u32 v13, v14, 7, v13
    s_lshl_b32 s{sXL}, s{sP}, 2
    s_add_u32 s{sXL}, s{sXL}, s{sW}
    s_lshl_b32 s{sXL}, s{sXL}, 14
    {f"buffer_load_dword v14, v13, {srd(WO)}, s{sXL} offen" if E_("WOT", "1") == "1" else ""}"""), 0, dense=1)
def diag_b(g, ph):
    if "3" in E_("CT", "123"): ph.stream(code_touch("L_ct3", "L_ct3", "L_end", 13, "v13", 3), 1)
    ph.put("x", g.poll_check(3, 12, WS, f"s{sKEY}", "F"), 31)
def merge_x(g):
    its = items(f"""v_lshrrev_b32 v{OA+2}, 2, v2
    v_and_b32 v{OA+1}, 3, v2
    v_lshlrev_b32 v{OA}, 7, v{OA+2}
    v_lshl_add_u32 v{OA}, v{OA+1}, 3, v{OA}
    v_bfe_u32 v{OA+1}, v2, 3, 2
    v_lshl_add_u32 v{OA}, v{OA+1}, 5, v{OA}
    v_xor_b32 v{OA+1}, 32, v{OA}
    v_xor_b32 v{OA+2}, 64, v{OA}
    v_xor_b32 v{OA+3}, 96, v{OA}
    v_add_u32 v{OA+4}, {R2}, v{OA}
    v_add_u32 v{OA+5}, {R2}, v{OA+1}
    v_add_u32 v{OA+6}, {R2}, v{OA+2}
    v_add_u32 v{OA+7}, {R2}, v{OA+3}""")
    return its

STEPS = [[(c, n2) for c in range(4) for n2 in range(4)] + [(c, n2) for c in range(4) for n2 in range(4, 8)]] * 2
if QM: STEPS[0] = [(c, n2) for c in range(2) for n2 in range(4)] + [(c, n2) for c in range(2) for n2 in range(4, 8)] + [(c, n2) for c in (2, 3) for n2 in range(8)]
def piece(i):
    c, n2 = STEPS[i >> 5][i & 31]
    return [q for q in range(4) if PCH[q] == c >> 1 and PKH[q] == n2 >> 2][0]
def oread(i):
    c, n2 = STEPS[i >> 5][i & 31]
    reg = OQB[piece(i)]; it = []
    for nt in range(2):
        va = OA + (0 if reg < R2 else 4) + 2 * (c & 1) + nt
        for h in range(2):
            o = (reg & 0xffff) + (2 * (n2 & 3) + h) * 4096
            f = WR0 + ((i & 3) * 4 + nt * 2 + h) * 4
            it += [("l", f"ds_read_b64_tr_b16 a[{f}:{f+1}], v{va} offset:{o}"), ("l", f"ds_read_b64_tr_b16 a[{f+2}:{f+3}], v{va} offset:{o+2048}")]
    return it
def oproj_first(g):
    g.run(oread(0) + oread(1))

GW, K0 = 8, 16
P1R, P2R, GA, CB, SB, GB, XR1, XR2, WRR = 128, 192, 160, 168, 176, 184, 32, 36, 40
vPL, vCB, vCF = 44, 45, 46
def pload(T12, dst):
    it = []
    for x in range(8):
        it += [("s", f"s_add_u32 s{sXL}, s{sPC}, {(T12 << 23) + x * 4096}"), ("m", f"buffer_load_dwordx4 {V(dst+4*x)}, v{vPL}, {srd(WS)}, s{sXL} offen {WT}")]
    return it

def oproj(g):
    k = g.k
    M = []
    for i in range(64):
        pas = i >> 5; c, n2 = STEPS[pas][i & 31]
        for nt in range(2):
            for tt in range(2):
                for h in range(2):
                    n = 2 * n2 + h; f = (n >> 2) * 8 + tt * 4 + (n & 3)
                    d = V(OACC + c * 16 + tt * 8 + nt * 4)
                    M.append(MF(d, A(WR0 + ((i & 3) * 4 + nt * 2 + h) * 4), A(X1R(f)) if pas == 0 else V(X2 + 4 * f), "0" if n == 0 else d))
    ph = Phase(k, M); ph.thin = True; ph.batch = int(E_('BATO', '9'))
    Z0 = int(E_("Z0", "102"))
    ph.put("x", g.bar(["wo1"], False), 34)
    ph.put("x", g.bar(["wo2", "wo3", "ctx"], False), Z0)
    gx = ph.stream(wodma(g, 2), 0, None, step=4)
    gx = ph.stream(wodma(g, 3), max(gx, 34) + 1, None, step=4)
    def epi(pas, c):
        it = []
        for tt in range(2):
            b = OACC + c * 16 + tt * 8
            it += [("v", f"v_cvt_pk_bf16_f32 v{b+i}, v{b+2*i}, v{b+2*i+1}") for i in range(4)]
            it += [("v", f"v_min_u32 v{b+i}, -2, v{b+i}") for i in range(4)]
            it += [("s", f"s_add_u32 s{sPS}, s{sPB}, {(pas << 23) + tt * 131072}"), ("m", f"buffer_store_dwordx4 {V(b)}, v{vPO}, {srd(WS)}, s{sPS} offen offset:{c*256} {WT}", "pst")]
        return it
    CD = int(E_("CD", "90")); CP = int(E_("CP", "110"))
    g1 = ph.stream([("s", f"s_add_u32 s{sCFO}, s{sCFO}, 65536"), ("s", f"s_add_u32 s{sCFP}, s{sCFP}, 65536")] + xc_items(sT2), 4)
    g1 = ph.stream(g.flag_store(sCFO, ["ctx"]), CD)
    g1 = ph.stream([("m", f"buffer_load_dword v3, v4, {srd(WS)}, s{sCFP} offen {WT}")], CD + CP - 30)
    ph.put("x", g.poll_check(3, 4, WS, f"s{sCFP}", "C2"), CD + CP)
    xl2 = lambda a, b: sum((xload(1, (n >> 2) * 8 + tt * 4 + (n & 3)) for n in range(a, b) for tt in range(2)), [])
    XST = int(E_("XST", "4"))
    if ROT:
        g1 = ph.stream(xl2(0, 4), Z0 + 1, None, step=3, sid=951)
        g1 = ph.stream(xl2(4, 8), max(g1, CD + CP) + 1, None, step=XST, sid=951)
        g1 = ph.stream(xl2(8, 16), max(g1 + 1, int(E_("X2B", "250"))), None, step=int(E_("XST2", "5")), sid=951)
    else: g1 = ph.stream(xl2(0, 16), CD + CP + 1, None, step=XST)
    TK = int(E_("TK", "32"))
    if TK < 32:
        gt = ph.stream(items(f"""v_mov_b32 v22, 1
        s_lshl_b32 s{sCND}, s{sP}, 2
        s_add_u32 s{sCND}, s{sCND}, s{sW}
        s_lshl_b32 s{sCND}, s{sCND}, 6
        s_add_u32 s{sCND}, s{sCND}, {WS_LF + 32}
        buffer_atomic_add v22, v5, {srd(WS)}, s{sCND} offen sc0 sc1"""), 66, sid=953)
        ph.stream(items(f"v_readfirstlane_b32 s{sCND}, v22"), 360, sid=953)
    g2 = ph.stream(items(f"""v_lshrrev_b32 v{vCF}, 2, v2
    v_and_b32 v{vCB}, 3, v2
    v_lshlrev_b32 v{vPL}, 8, v{vCF}
    v_lshl_add_u32 v{vPL}, v{vCB}, 4, v{vPL}
    v_lshlrev_b32 v{vCB}, 3, v{vCB}
    v_lshl_add_u32 v{vCB}, v{vCF}, 6, v{vCB}
    v_lshlrev_b32 v{vCF}, 1, v{vCB}
    s_lshl_b32 s{sPC}, s2, 15
    s_lshl_b32 s{sB}, s{sW}, 6
    s_add_u32 s{sPC}, s{sPC}, s{sB}
    s_add_u32 s{sPC}, s{sPC}, {WS_P}
    s_and_b32 s{sTOK1}, s2, 31
    s_lshl_b32 s{sTOK1}, s{sTOK1}, 2
    s_add_u32 s{sTOK1}, s{sTOK1}, s{sW}
    s_lshl_b32 s{sTOK2}, s{sT2}, 7
    s_add_u32 s{sTOK2}, s{sTOK2}, s{sTOK1}
    s_lshl_b32 s{sB}, s{sT1}, 7
    s_add_u32 s{sTOK1}, s{sTOK1}, s{sB}
    s_lshl_b32 s{sB}, s{sTOK1}, 10
    s_lshl_b32 s{sC}, s{sTOK2}, 10"""), 104, sid=950)
    g2 = ph.stream(items(f"""buffer_load_dwordx2 v[{XR1}:{XR1+1}], v{vCB}, {srd(XS)}, s{sB} offen
    buffer_load_dwordx2 v[{XR1+2}:{XR1+3}], v{vCB}, {srd(XS)}, s{sB} offen offset:32
    buffer_load_dwordx2 v[{XR2}:{XR2+1}], v{vCB}, {srd(XS)}, s{sC} offen
    buffer_load_dwordx2 v[{XR2+2}:{XR2+3}], v{vCB}, {srd(XS)}, s{sC} offen offset:32
    buffer_load_dwordx2 v[{WRR}:{WRR+1}], v{vCB}, {srd(WR_)}, 0 offen
    buffer_load_dwordx2 v[{WRR+2}:{WRR+3}], v{vCB}, {srd(WR_)}, 0 offen offset:32"""), g1 + 1, None, step=4, sid=950)
    gwr = g2
    its = []
    for (R, seg) in ((CB, 4), (SB, 3), (GA, 2), (GB, 5)):
        its += [("s", f"s_mov_b32 s{sXL}, {WS_MOD + seg*2048}"), ("m", f"buffer_load_dwordx4 {V(R)}, v{vCF}, {srd(WS)}, s{sXL} offen"), ("m", f"buffer_load_dwordx4 {V(R+4)}, v{vCF}, {srd(WS)}, s{sXL} offen offset:64")]
    g2 = ph.stream(its, max(g2 + 1, 386), None, step=3)
    ph.stream(pload(0, P1R), max(g2 + 1, int(E_("P1G", "472"))), None, step=4)
    PP = 24
    if E_("EPR", "0") == "1":
        pq = int(E_("PQ2", "2"))
        its = items(f"""v_bfe_u32 v47, v2, 2, 2
        v_cmp_eq_u32 vcc, {pq}, v47
        v_mov_b32 v47, {OOB}
        v_cndmask_b32 v47, v47, v{vPL}, vcc""")
        gp = ph.stream(its, 300)
        its = []
        for x in range(8): its += [("s", f"s_add_u32 s{sPF}, s{sPC}, {(1 << 23) + x * 4096}"), ("m", f"buffer_load_dword v{PP+x}, v47, {srd(WS)}, s{sPF} offen {WT}")]
        ph.stream(its, int(E_("EPG", "450")), None, step=2)
    kk = K(); unpack(kk, 48, WRR, 8)
    for i in range(8): kk(f"v_mul_f32 v{GW+i}, v{48+i}, v{CB+i}")
    kk(f"v_mul_f32 v{K0}, v48, v{SB}")
    for i in range(1, 8): kk(f"v_fmac_f32 v{K0}, v{48+i}, v{SB+i}")
    allred(kk, [K0], tmp=[19])
    gk = items("\n".join(kk.out))
    for c in range(4):
        done = 8 * max(i for i in range(32) if STEPS[0][i][0] == c) + 8
        g3 = ph.stream(epi(0, c), done + 6); assert g3 < 256 + 32 * c - 2, g3
    for c in range(3): ph.stream(epi(1, c), 384 + 32 * (c + 1) + 6)
    ph.stream(gk[:8], gwr + 40, sid=952)
    ph.stream(gk[8:], g2 + 30, 500, sid=952)
    for i in range(2, 64):
        lo = 8 * (i - 3)
        if i < 32 and piece(i) >= 2: lo = max(lo, Z0 + 1)
        if i < 32 and piece(i) == 1: lo = max(lo, 35)
        ph.stream(oread(i), lo, 8 * i - 5)
    if g.TS:
        ph.put("x", g.ts, 255)
        for gp in (E_("TSO") or "").split(","):
            if gp: ph.put("x", lambda k: g.ts(k, True), int(gp))
    ph.emit()
    print("oproj: overloaded placements", ph.over, file=sys.stderr)
    g.run(epi(1, 3))
    if E_("TSO"): g.ts(force=True)
    if E_("XW"): k("s_waitcnt vmcnt(0)"); g.ts(force=True)
    pm = 0xf << (4 * int(E_("PQC", "1"))); pm |= pm << 16
    k(f"s_mov_b32 s{sPM}, {pm:#x}\ns_mov_b32 s{sPM+1}, {pm:#x}")
    if E_("PM1"): k(f"s_lshl_b32 s{sB}, s{sJ}, 4\ns_lshl_b64 s[{sPM}:{sPM+1}], {pm & 0xffff}, s{sB}")
    if E_("P2D"): return
    for i in range(0, 32, 2): k(f"v_mov_b64 v[{P2R+i}:{P2R+i+1}], -1")
    pl = pload(1, P2R)
    if E_("EPR", "0") == "1":
        for x in range(8): k(f"v_cmp_eq_u32 s[{14+2*x}:{15+2*x}], -1, v{PP+x}")
        for x in range(8):
            g.run(pl[2 * x:2 * x + 1])
            k(f"s_cmp_eq_u64 s[{14+2*x}:{15+2*x}], 0\ns_cselect_b64 exec, -1, s[{sPM}:{sPM+1}]")
            g.run(pl[2 * x + 1:2 * x + 2])
    else:
        if TK < 32: k(f"s_cmp_ge_u32 s{sCND}, {TK}\ns_cselect_b64 exec, -1, s[{sPM}:{sPM+1}]")
        else: k(f"s_mov_b64 exec, s[{sPM}:{sPM+1}]")
        g.run(pl)
    k("s_mov_b64 exec, -1")
    g.ts(force=bool(E_("TSO")))
    if E_("XW"): k("s_waitcnt vmcnt(0)"); g.ts(force=True)

def allred(k, regs, op="v_add_f32", tmp=None):
    for pat in ("quad_perm:[1,0,3,2]", "quad_perm:[2,3,0,1]", "row_half_mirror", "row_mirror"):
        for r in regs: k(f"{op}_dpp v{r}, v{r}, v{r} {pat} row_mask:0xf bank_mask:0xf")
    for sw in ("v_permlane16_swap_b32", "v_permlane32_swap_b32"):
        for r, t in zip(regs, tmp): k(f"v_mov_b32 v{t}, v{r}")
        for r, t in zip(regs, tmp): k(f"{sw} v{r}, v{t}")
        for r, t in zip(regs, tmp): k(f"{op} v{r}, v{r}, v{t}")
def unpack(k, dst, src, n):
    for i in range(n // 2):
        k(f"v_lshlrev_b32 v{dst+2*i}, 16, v{src+i}\nv_and_b32 v{dst+2*i+1}, 0xffff0000, v{src+i}")
def pack(k, dst, src, n):
    for i in range(n // 2): k(f"v_cvt_pk_bf16_f32 v{dst+i}, v{src+2*i}, v{src+2*i+1}")
def bf1(k, r): k(f"v_cvt_pk_bf16_f32 v{r}, v{r}, v{r}\nv_and_b32 v{r}, 0xffff0000, v{r}")

def sent_wait(g, regs, reload_items, name, sleep=2):
    k = g.k
    lp, ok = k.lab(name + "_l"), k.lab(name + "_ok")
    k(f"s_mov_b32 s{sD}, 0")
    k.label(lp)
    k("s_waitcnt vmcnt(0)")
    k(f"v_max_u32 v3, v{regs[0]}, v{regs[1]}")
    rest = regs[2:]
    for i in range(0, len(rest) - 1, 2): k(f"v_max3_u32 v3, v3, v{rest[i]}, v{rest[i+1]}")
    k(f"""v_cmp_eq_u32 vcc, -1, v3
    s_add_u32 s{sD}, s{sD}, 1
    s_cbranch_vccz {ok}
    s_cmp_ge_u32 s{sD}, {SPIN}
    s_cbranch_scc1 {ok}
    s_mov_b64 exec, vcc""")
    if sleep: k(f"s_sleep {sleep}")
    g.run(reload_items)
    k(f"s_branch {lp}")
    k.label(ok)
    k("s_mov_b64 exec, -1")
    k.vm = []

def part_wait(g, T12, R):
    k = g.k
    lp, ok = k.lab("P2_l"), k.lab("P2_ok")
    k(f"s_mov_b32 s{sD}, 0")
    k.label(lp)
    k("s_waitcnt vmcnt(0)")
    for x in range(8): k(f"v_max_u32 v{48+x}, v{R+4*x}, v{R+4*x+1}\nv_max3_u32 v{48+x}, v{48+x}, v{R+4*x+2}, v{R+4*x+3}")
    k(f"""v_max3_u32 v3, v48, v49, v50
    v_max3_u32 v3, v3, v51, v52
    v_max3_u32 v3, v3, v53, v54
    v_max_u32 v3, v3, v55
    v_cmp_eq_u32 vcc, -1, v3
    s_add_u32 s{sD}, s{sD}, 1
    s_cbranch_vccz {ok}
    s_cmp_ge_u32 s{sD}, {SPIN}
    s_cbranch_scc1 {ok}
    s_sleep {E_("PSL", "1")}""")
    pl = pload(T12, R)
    for x in range(8):
        sk = k.lab("P2_s")
        k(f"v_cmp_eq_u32 vcc, -1, v{48+x}\ns_cbranch_vccz {sk}\ns_and_b64 s[{sXB}:{sXB+1}], vcc, s[{sPM}:{sPM+1}]\ns_cselect_b64 exec, s[{sXB}:{sXB+1}], vcc")
        g.run(pl[2 * x:2 * x + 2])
        k("s_mov_b64 exec, -1")
        k.label(sk)
    k(f"s_branch {lp}")
    k.label(ok)
    k.vm = []

def token(g, PR, XR, D, sTOK, key):
    k = g.k; T = 48
    unpack(k, D, PR, 8)
    for x in range(1, 8):
        for i in range(8): k(f"v_dot2c_f32_bf16 v{D+i}, v{PR+4*x+(i>>1)}, v{100+(i&1)}")
    for i in range(0, 8, 2): k(f"v_pk_fma_f32 v[{D+i}:{D+i+1}], v[{D+i}:{D+i+1}], v[{GA+i}:{GA+i+1}], v[{D+8+i}:{D+9+i}]")
    pack(k, XR, D, 8); unpack(k, D, XR, 8)
    k(f"""v_pk_add_f32 v[{T}:{T+1}], v[{D}:{D+1}], v[{D+2}:{D+3}]
    v_pk_add_f32 v[{T+2}:{T+3}], v[{D+4}:{D+5}], v[{D+6}:{D+7}]
    v_pk_add_f32 v[{T}:{T+1}], v[{T}:{T+1}], v[{T+2}:{T+3}]
    v_add_f32 v{T}, v{T}, v{T+1}""")
    allred(k, [T], tmp=[T + 1])
    k(f"v_mul_f32 v{T}, {H(-1/512)}, v{T}")
    for i in range(0, 8, 2): k(f"v_pk_add_f32 v[{D+8+i}:{D+9+i}], v[{D+i}:{D+i+1}], v[{T}:{T+1}] op_sel_hi:[1,0]")
    k(f"v_pk_mul_f32 v[{T+2}:{T+3}], v[{D+8}:{D+9}], v[{D+8}:{D+9}]\nv_pk_mul_f32 v[{T+4}:{T+5}], v[{D+8}:{D+9}], v[{GW}:{GW+1}]")
    for i in range(2, 8, 2):
        k(f"v_pk_fma_f32 v[{T+2}:{T+3}], v[{D+8+i}:{D+9+i}], v[{D+8+i}:{D+9+i}], v[{T+2}:{T+3}]")
        k(f"v_pk_fma_f32 v[{T+4}:{T+5}], v[{D+8+i}:{D+9+i}], v[{GW+i}:{GW+i+1}], v[{T+4}:{T+5}]")
    k(f"v_add_f32 v{T+2}, v{T+2}, v{T+3}\nv_add_f32 v{T+4}, v{T+4}, v{T+5}")
    allred(k, [T + 2, T + 4], tmp=[T + 3, T + 5])
    k(f"""v_mov_b32 v{T}, {H(1e-5)}
    v_fmac_f32 v{T}, {H(1/512)}, v{T+2}
    v_rsq_f32 v{T}, v{T}
    v_fma_f32 v{T+4}, v{T+4}, v{T}, v{K0}
    v_ashrrev_i32 v{T+5}, 31, v{T+4}
    v_or_b32 v{T+5}, 0x80000000, v{T+5}
    v_xor_b32 v{T+5}, v{T+5}, v{T+4}
    v_and_b32 v{T+5}, 0xfffff800, v{T+5}
    v_or_b32 v{key}, s{sTOK}, v{T+5}""")
def token2(g, XR, D, HP, OP):
    k = g.k; T = 48
    for i in range(0, 8, 2): k(f"v_pk_mul_f32 v[{D+8+i}:{D+9+i}], v[{D+8+i}:{D+9+i}], v[{T}:{T+1}] op_sel_hi:[1,0]")
    for i in range(0, 8, 2): k(f"v_pk_fma_f32 v[{D+8+i}:{D+9+i}], v[{D+8+i}:{D+9+i}], v[{CB+i}:{CB+i+1}], v[{SB+i}:{SB+i+1}]")
    pack(k, HP, D + 8, 8)
def token3(g, D, HP, OP):
    k = g.k
    unpack(k, D + 8, HP, 8)
    for i in range(0, 8, 2): k(f"v_pk_mul_f32 v[{D+8+i}:{D+9+i}], v[{D+8+i}:{D+9+i}], v[{GB+i}:{GB+i+1}]")
    pack(k, OP, D + 8, 8); unpack(k, D + 8, OP, 8)
    for i in range(0, 8, 2): k(f"v_pk_add_f32 v[{D+8+i}:{D+9+i}], v[{D+8+i}:{D+9+i}], v[{D+i}:{D+i+1}]")
    pack(k, OP, D + 8, 8)

def tail(g):
    k = g.k
    TT = lambda: g.ts(force=True) if E_('TST') else None
    TT()
    D1, D2, H1, H2, O1, O2, KEY1, KEY2 = 64, 80, 20, 24, 56, 60, 17, 18
    GU, WDF = 160, [192 + i for i in range(64)]
    slow, ok = k.lab("P1_slow"), k.lab("P1_ok")
    def chk(regs):
        t = f"v_max_u32 v3, v{regs[0]}, v{regs[1]}\n"
        for i in range(2, len(regs), 2): t += f"v_max3_u32 v3, v3, v{regs[i]}, v{regs[i+1]}\n"
        return t + "v_cmp_eq_u32 vcc, -1, v3\n"
    k("v_mov_b32 v100, 0x3f80\nv_mov_b32 v101, 0x3f800000")
    unpack(k, D1 + 8, XR1, 8); unpack(k, D2 + 8, XR2, 8)
    r1 = list(range(P1R, P1R + 32))
    k(chk(r1) + f"s_cbranch_vccnz {slow}")
    k.label(ok)
    k2 = K(); k2.nlab = 5000; k2.label(slow); g2 = type("g2", (), dict(k=k2, run=lambda self, its: [k2(it[1]) for it in its]))()
    part_wait(g2, 0, P1R); k2(f"s_branch {ok}")
    g.tail.append("\n".join(k2.out))
    token(g, P1R, XR1, D1, sTOK1, KEY1); token2(g, XR1, D1, H1, O1)
    ml = moe_loads(98, sPF)
    g.run(ml[:7])
    k(f"""s_lshl_b32 s{sB}, s{sW}, 2
    v_mov_b32 v47, s{sB}
    v_mov_b32 v102, 0
    s_lshl_b32 s{sB}, s2, 6
    s_add_u32 s{sB}, s{sB}, {WS_KEY}
    s_lshl_b32 s{sC}, s2, 11
    s_add_u32 s{sC}, s{sC}, {WS_CAND}""")
    g.ts()
    if E_("P2D"): g.run(pload(1, P2R))
    g.page("a")
    part_wait(g, 1, P2R)
    g.ts(); TT()
    token(g, P2R, XR2, D2, sTOK2, KEY2)
    TT()
    k(f"""v_max3_u32 v19, v{KEY1}, v{KEY2}, 1
    ds_write_b32 v47, v19
    s_waitcnt lgkmcnt(0)
    s_barrier
    ds_read_b128 v[52:55], v102""")
    token2(g, XR2, D2, H2, O2)
    k(f"""v_max_u32 v52, v52, v53
    v_max3_u32 v52, v52, v54, v55
    v_cmp_eq_u32 vcc, v52, v19
    s_cbranch_vccz L_notbest
    buffer_store_dword v19, v5, {srd(WS)}, s{sB} offen {WT}
    v_cmp_gt_u32 vcc, v{KEY1}, v{KEY2}""")
    for i in range(4): k(f"v_cndmask_b32 v{28+i}, v{H2+i}, v{H1+i}, vcc\nv_cndmask_b32 v{40+i}, v{XR2+i}, v{XR1+i}, vcc")
    for i in range(4): k(f"v_min_u32 v{28+i}, -2, v{28+i}\nv_min_u32 v{40+i}, -2, v{40+i}")
    k(f"""buffer_store_dwordx4 v[28:31], v1, {srd(WS)}, s{sC} offen {WT}
    buffer_store_dwordx4 v[40:43], v1, {srd(WS)}, s{sC} offen offset:1024 {WT}""")
    k.vm = k.vm[:-3]
    k.label("L_notbest")
    TT()
    g.run(ml[7:])
    token3(g, D1, H1, O1); token3(g, D2, H2, O2)
    EO = E_("EO")
    if EO is not None:
        k(f"v_readfirstlane_b32 s{sIDX}, v52\ns_and_b32 s{sCND}, s{sIDX}, 2047")
        for (sT, O) in ((sTOK1, O1), (sTOK2, O2)):
            k(f"""s_lshl_b32 s{sB}, s{sT}, 10
            s_cmp_eq_u32 s{sT}, s{sCND}
            s_cselect_b32 s{sB}, {OOB}, s{sB}
            s_cselect_b32 s{sT}, s{sT}, {OOB >> 10}
            buffer_store_dwordx2 v[{O}:{O+1}], v{vCB}, {srd(OUT)}, s{sB} offen {EO}
            buffer_store_dwordx2 v[{O+2}:{O+3}], v{vCB}, {srd(OUT)}, s{sB} offen offset:32 {EO}""")
    if E_("KS0", "0") != "0": k(f"s_sleep {E_('KS0')}")
    k(f"""v_lshlrev_b32 v4, 6, v0
    s_mov_b32 s{sKEY}, {WS_KEY}
    s_mov_b32 s{sD}, 0""")
    g.page("b")
    k.label("L_kl")
    k(f"""buffer_load_dword v3, v4, {srd(WS)}, s{sKEY} offen {WT}
    s_add_u32 s{sD}, s{sD}, 1
    s_waitcnt vmcnt(0)
    v_cmp_eq_u32 vcc, 0, v3
    s_cbranch_vccz L_kd
    s_cmp_ge_u32 s{sD}, {SPIN}
    s_cbranch_scc1 L_kd
    s_mov_b64 exec, vcc
    s_sleep {E_("KSL", "2")}
    s_branch L_kl""")
    k.label("L_kd")
    k("s_mov_b64 exec, -1")
    TT()
    allred(k, [3], op="v_max_u32", tmp=[19])
    k(f"""ds_write_b32 v47, v3 offset:64
    s_waitcnt lgkmcnt(0)
    s_barrier
    ds_read_b128 v[52:55], v102 offset:64
    v_lshlrev_b32 v4, 2, v0
    v_max_u32 v52, v52, v53
    v_max3_u32 v52, v52, v54, v55
    v_readfirstlane_b32 s{sKEY}, v52
    s_and_b32 s{sIDX}, s{sKEY}, 2047
    s_lshr_b32 s{sB}, s{sIDX}, 7
    s_sub_u32 s{sC}, 15, s{sB}
    s_min_u32 s{sB}, s{sB}, s{sC}
    s_lshl_b32 s{sB}, s{sB}, 16
    s_and_b32 s{sCND}, s{sIDX}, 124
    s_lshl_b32 s{sCND}, s{sCND}, 9
    s_add_u32 s{sCND}, s{sCND}, s{sB}
    s_add_u32 s{sCND}, s{sCND}, {WS_CAND}""")
    hl = [("m", f"buffer_load_dword v19, v4, {srd(WS)}, s{sCND} offen {WT}")]
    g.run(hl)
    g.ts(); TT()
    for (sT, O) in ((sTOK1, O1), (sTOK2, O2)):
        k(f"""s_lshl_b32 s{sB}, s{sT}, 10
        s_cmp_eq_u32 s{sT}, s{sIDX}
        s_cselect_b32 s{sB}, {OOB}, s{sB}
        buffer_store_dwordx2 v[{O}:{O+1}], v{vCB}, {srd(OUT)}, s{sB} offen {E_("OP", "")}
        buffer_store_dwordx2 v[{O+2}:{O+3}], v{vCB}, {srd(OUT)}, s{sB} offen offset:32 {E_("OP", "")}""")
    k(f"s_cmp_ge_u32 s{sCG}, 224\ns_cbranch_scc1 L_nprod")
    lp, ok = "L_hl", "L_hok"
    unpack(k, GU, MG, 32)
    k(f"s_mov_b32 s{sD}, 0\ns_waitcnt vmcnt(4)")
    k.label(lp)
    k(f"""v_cmp_eq_u32 vcc, -1, v19
    s_add_u32 s{sD}, s{sD}, 1
    s_cbranch_vccz {ok}
    s_cmp_ge_u32 s{sD}, {SPIN}
    s_cbranch_scc1 {ok}""")
    g.run(hl)
    k(f"s_waitcnt vmcnt(0)\ns_branch {lp}")
    k.label(ok)
    TT()
    k(f"v_lshlrev_b32 v48, 16, v19\nv_and_b32 v50, 0xffff0000, v19")
    for m in range(2):
        for i in range(0, 8, 2):
            d = 64 + 8 * m + i
            k(f"v_pk_mul_f32 v[{d}:{d+1}], v[{GU+16*m+i}:{GU+16*m+i+1}], v[48:49] op_sel_hi:[1,0]")
    for m in range(2):
        for i in range(0, 8, 2):
            d = 64 + 8 * m + i
            k(f"v_pk_fma_f32 v[{d}:{d+1}], v[{GU+16*m+8+i}:{GU+16*m+8+i+1}], v[50:51], v[{d}:{d+1}] op_sel_hi:[1,0,1]")
    k(g.red16(64))
    k(f"""v_and_b32 v50, 15, v2
    v_cmp_eq_u32 vcc, 0, v50
    v_mov_b32 v51, 1024
    v_cndmask_b32 v51, v51, v0, vcc
    ds_write_b128 v51, v[64:67] offset:256
    v_lshlrev_b32 v50, 2, v50
    s_waitcnt lgkmcnt(0)
    s_barrier
    s_cmp_lg_u32 s{sW}, 0
    s_cbranch_scc1 L_nprod
    ds_read_b32 v64, v50 offset:256
    ds_read_b32 v65, v50 offset:320
    ds_read_b32 v66, v50 offset:384
    ds_read_b32 v67, v50 offset:448
    v_cmp_gt_u32 vcc, 8, v2
    v_mov_b32 v51, {OOB}
    v_cndmask_b32 v51, v51, v50, vcc
    s_lshl_b32 s{sB}, s{sCG}, 6
    s_add_u32 s{sB}, s{sB}, {WS_ACT}
    v_add_f32 v64, v64, v65
    v_add_f32 v66, v66, v67
    v_add_f32 v64, v64, v66""")
    bf1(k, 64)
    k(f"""v_mov_b32_dpp v65, v64 row_ror:8 row_mask:0xf bank_mask:0xf
    v_mul_f32 v66, {H(-LOG2E)}, v64
    v_exp_f32 v66, v66
    v_add_f32 v66, 1.0, v66
    v_rcp_f32 v66, v66
    v_mul_f32 v64, v64, v66""")
    bf1(k, 64)
    k("v_mul_f32 v64, v64, v65")
    bf1(k, 64)
    k(f"buffer_store_dword v64, v51, {srd(WS)}, s{sB} offen {WT}")
    k.label("L_nprod")
    k.vm = []; k.lg = []
    TT()
    k(f"s_cmp_ge_u32 s{sC2}, 64\ns_cbranch_scc1 L_fin")
    k(f"""v_lshlrev_b32 v4, 6, v0
    v_cmp_gt_u32 vcc, 224, v0
    v_mov_b32 v51, {OOB}
    v_cndmask_b32 v4, v51, v4, vcc
    s_mov_b32 s{sB}, {WS_ACT}
    v_and_b32 v52, 7, v2
    s_lshl_b32 s{sC}, s{sC2}, 3
    v_add_u32 v52, s{sC}, v52            ; column
    v_lshrrev_b32 v53, 5, v52
    v_lshlrev_b32 v53, 6, v53
    v_and_b32 v54, 12, v52
    v_lshl_add_u32 v53, v54, 2, v53
    v_bfe_u32 v54, v52, 4, 1
    v_lshl_add_u32 v53, v54, 3, v53
    v_and_b32 v54, 2, v52
    v_lshl_add_u32 v53, v54, 1, v53
    v_lshlrev_b32 v54, 2, v52
    s_mov_b32 s{sC}, {WS_MOD + 5*2048}
    buffer_load_dword v55, v54, {srd(WS)}, s{sC} offen""")
    al = [("m", f"buffer_load_dwordx4 v[80:83], v4, {srd(WS)}, s{sB} offen {WT}"), ("m", f"buffer_load_dwordx4 v[84:87], v4, {srd(WS)}, s{sB} offen offset:16 {WT}"),
          ("m", f"buffer_load_dword v88, v53, {srd(WS)}, s{sCND} offen {WT}"), ("m", f"buffer_load_dword v89, v53, {srd(WS)}, s{sCND} offen offset:1024 {WT}")]
    g.run(al[2:])
    unpack(k, WDF[0], MD, 64)
    k(f"""s_and_b32 s{sC}, s{sKEY}, 0xfffff800
    s_or_b32 s{sC}, s{sC}, 0x400
    v_mov_b32 v90, s{sC}
    v_not_b32 v91, v90
    v_ashrrev_i32 v91, 31, v91
    v_or_b32 v91, 0x80000000, v91
    v_xor_b32 v90, v90, v91""")
    bf1(k, 90)
    k(f"""v_mul_f32 v90, {H(-LOG2E)}, v90
    v_exp_f32 v90, v90
    v_add_f32 v90, 1.0, v90
    v_rcp_f32 v90, v90""")
    bf1(k, 90)
    sent_wait(g, [88, 89], al[2:], "CND", sleep=1)
    k(f"""v_and_b32 v51, 1, v52
    v_cmp_eq_u32 vcc, 0, v51
    v_lshlrev_b32 v91, 16, v88
    v_and_b32 v88, 0xffff0000, v88
    v_cndmask_b32 v88, v88, v91, vcc
    v_lshlrev_b32 v91, 16, v89
    v_and_b32 v89, 0xffff0000, v89
    v_cndmask_b32 v89, v89, v91, vcc
    v_and_b32 v50, 15, v2
    v_cmp_eq_u32 vcc, 0, v50
    v_lshrrev_b32 v51, 1, v0
    v_mov_b32 v50, 1024
    v_cndmask_b32 v51, v50, v51, vcc
    v_and_b32 v50, 7, v2
    v_lshlrev_b32 v50, 2, v50
    v_cmp_gt_u32 vcc, 8, v2
    v_lshlrev_b32 v52, 1, v52
    v_mov_b32 v53, {OOB}
    v_cndmask_b32 v52, v53, v52, vcc""")
    k(f"""s_cmp_lt_u32 s{sCG}, 224
    s_cbranch_scc1 L_asl
    s_sleep {E_('ASL7', '16')}""")
    k.label("L_asl")
    k(f"s_sleep {E_('ASL', '7')}")
    g.run(al[:2])
    TT()
    sent_wait(g, list(range(80, 88)), al[:2], "ACT", sleep=int(E_("ASL2", "2")))
    TT()
    for r in range(8):
        for i in range(0, 8, 2):
            w = WDF[8 * r + i]; a = 80 + (r & ~1); sel = r & 1
            if r == 0: k(f"v_pk_mul_f32 v[{64+i}:{65+i}], v[{w}:{w+1}], v[{a}:{a+1}] op_sel_hi:[1,0]")
            else: k(f"v_pk_fma_f32 v[{64+i}:{65+i}], v[{w}:{w+1}], v[{a}:{a+1}], v[{64+i}:{65+i}] op_sel:[0,{sel},0] op_sel_hi:[1,{sel},1]")
    for i in range(4): k(f"v_permlane32_swap_b32 v{64+i}, v{68+i}")
    for i in range(4): k(f"v_add_f32 v{64+i}, v{64+i}, v{68+i}")
    for i in range(2): k(f"v_permlane16_swap_b32 v{64+i}, v{66+i}")
    for i in range(2): k(f"v_add_f32 v{64+i}, v{64+i}, v{66+i}")
    for pat in ("quad_perm:[1,0,3,2]", "quad_perm:[2,3,0,1]", "row_half_mirror", "row_mirror"):
        for i in range(2): k(f"v_add_f32_dpp v{64+i}, v{64+i}, v{64+i} {pat} row_mask:0xf bank_mask:0xf")
    k(f"""ds_write_b64 v51, v[64:65] offset:2048
    s_waitcnt lgkmcnt(0)
    s_barrier
    s_cmp_lg_u32 s{sW}, 0
    s_cbranch_scc1 L_fin
    ds_read_b32 v64, v50 offset:2048
    ds_read_b32 v65, v50 offset:2080
    ds_read_b32 v66, v50 offset:2112
    ds_read_b32 v67, v50 offset:2144
    s_lshl_b32 s{sB}, s{sIDX}, 10
    v_add_f32 v64, v64, v65
    v_add_f32 v66, v66, v67
    v_add_f32 v64, v64, v66""")
    bf1(k, 64)
    k("v_mul_f32 v64, v64, v90"); bf1(k, 64)
    k("v_add_f32 v64, v64, v88"); bf1(k, 64)
    k("v_mul_f32 v64, v64, v55"); bf1(k, 64)
    k(f"""v_add_f32 v64, v64, v89
    v_cvt_pk_bf16_f32 v64, v64, v64
    buffer_store_short v64, v52, {srd(OUT)}, s{sB} offen""")

def verify_all(lines):
    tot = 0
    for name, (n1, n2, slow) in {"p0": (0, 15, False), "p3": (3, 12, False), "p1": (1, 14, True), "redo0": (0, 15, False), "redo3": (3, 12, False)}.items():
        def decide(lab, c):
            if lab.endswith("_redo"): return name.startswith("redo")
            if lab.endswith("_max"): return c == 0
            if lab.endswith("_mk"): return n1 == 0
            if lab.endswith("_maxd"): return c >= min(2, n1 if "t1" in lab else n2)
            if lab == "L_t1_zero": return n1 == 0
            if lab == "L_t1_diag": return n1 == 1
            if lab == "L_t2_diag": return name == "p1"
            if lab == "L_t1_loop": return c % 2 < min(n1 - 2, 1)
            if lab == "L_t2_loop": return c % 3 < 2
            if "_slow" in lab and not lab.endswith("_l"): return slow
            if "_ok" in lab or lab in ("L_kd", "L_hok"): return (c >= 2) if slow and ("P2" in lab or "ACT" in lab or "CND" in lab or lab in ("L_kd", "L_hok")) else True
            if lab == "L_notbest": return slow
            return False
        T = trace(lines, decide)
        e = verify(T)
        tot += len(e)
        print(f"verify {name}: {len(T)} instrs, {len(e)} problems", file=sys.stderr)
        for x in e[:12]: print("   ", x, file=sys.stderr)
    assert tot == 0
```

```python
import sys, os
sys.path.insert(0, os.path.dirname(os.path.abspath(__file__)))
from common import *
from gen_attn import *
from gen_tail import *

TSR = list(range(83, 96)) + ([76, 77, 78] if not E_('TSP') else [])
NTS = [dict(k=WUK, v=WUV, q=WQ, o=WO)[c] for c in E_('NTS', 'k')]
class G:
    def __init__(self):
        self.k = K(); self.tail = []
        self.TS = E_("TS"); self.nts = 0
    def ts(self, k=None, force=False):
        if not self.TS: return
        if (E_("TSP") or E_("TSO") or E_("TSA") or E_("TST")) and not force: return
        k = k or self.k
        n = self.nts; self.nts += 1
        assert n < len(TSR)
        k(f"{'s_memrealtime' if self.TS == 'r' else 's_memtime'} vcc\ns_waitcnt lgkmcnt(0)\ns_mov_b32 s{TSR[n]}, vcc_lo")
    def ts0(self):
        if not E_("TS0"): return
        self.n0 = getattr(self, "n0", 0) + 1
        self.k(f"s_memrealtime vcc\ns_waitcnt lgkmcnt(0)\nv_writelane_b32 v255, vcc_lo, {self.n0}")
    def poll_check(self, vreg, vaddr, sr, soff, name, target=None):
        def f(k):
            slow, back = k.lab(name + "_slow"), k.lab(name + "_ok")
            cmp_ = f"v_cmp_ne_u32 vcc, 0, v{vreg}" if target is None else f"v_cmp_le_u32 vcc, {target}, v{vreg}"
            k(f"{cmp_}\ns_cmp_eq_u64 vcc, -1\ns_cbranch_scc0 {slow}")
            k.label(back)
            self.tail.append(f"""{slow}:
    s_mov_b32 s{sD}, 0
{slow}_l:
    s_sleep 4
    buffer_load_dword v{vreg}, v{vaddr}, {srd(sr)}, {soff} offen {WT}
    s_add_u32 s{sD}, s{sD}, 1
    s_waitcnt vmcnt(0)
    {cmp_}
    s_cmp_eq_u64 vcc, -1
    s_cbranch_scc1 {back}
    s_cmp_lt_u32 s{sD}, {SPIN}
    s_cbranch_scc1 {slow}_l
    s_branch {back}""")
        return f
    def dma4(self, sr, voffs, m0, so, tag, xor=False, nt=None):
        it = [("s", f"s_add_u32 m0, s{m0[0]}, {m0[1]}"), ("s", f"{'s_xor_b32' if xor else 's_add_u32'} s{sA}, s{so[0]}, {so[1]}")]
        for i in range(4):
            it.append(("m", f"buffer_load_dwordx4 v{voffs[i]}, {srd(sr)}, s{sA} offen offset:{i*1024} {NT if (sr in NTS if nt is None else nt) else ''} {E_('PJL', '')} lds", tag))
        return it
    def run(self, its):
        for it in its:
            if callable(it[1]): it[1](self.k)
            else: self.k(it[1], it[2] if len(it) > 2 else None)
    def bar(self, tags, lgkm0=True):
        def f(k):
            k.waitvm(tags, lgkm0)
            if not E_("NOBAR"): k("s_barrier")
        return f
    def page(self, key):
        if key not in E_("PG4", "ab"): return
        l = self.k.lab("pg")
        self.k(f"s_branch {l}"); self.k.out.append(".p2align 12"); self.k.label(l)
    def flag_store(self, so, tags):
        return [("x", lambda k: k.waitvm(tags)), ("m", f"buffer_store_dword v6, v5, {srd(WS)}, s{so} offen {WT}", "flag")]

    def startup(self):
        k = self.k
        if self.TS: k(f"{'s_memrealtime' if self.TS == 'r' else 's_memtime'} s[58:59]")
        k(f"""s_cmp_ge_u32 s2, 256
        s_cbranch_scc1 L_end
        s_load_dwordx16 s[64:79], s[0:1], 0
        s_load_dwordx16 s[80:95], s[0:1], 64
        s_getpc_b64 s[{sB}:{sC}]
        L_pf1:
        v_lshrrev_b32 v3, 6, v0
        v_and_b32 v2, 63, v0
        s_lshr_b32 s{sJ}, s2, 3
        s_mul_i32 s{sA}, s{sJ}, 24
        v_min_u32 v5, 5, v2
        v_mad_u32_u24 v5, v3, 6, v5
        v_add_u32 v5, s{sA}, v5
        v_lshlrev_b32 v5, 7, v5
        v_min_u32 v5, L_code_end-L_pf1, v5""")
        k(f"global_load_dword a255, v5, s[{sB}:{sC}]", "pf")
        k(f"""v_readfirstlane_b32 s{sW}, v3
        v_lshlrev_b32 v1, 4, v2
        s_and_b32 s{sX}, s2, 7
        s_and_b32 s{sJ}, s{sJ}, 3
        s_lshr_b32 s{sP}, s2, 5
        s_lshl_b32 s{sH}, s{sX}, 2
        s_add_u32 s{sH}, s{sH}, s{sJ}
        s_mov_b32 s{sT1}, s{sP}
        s_sub_u32 s{sT2}, 15, s{sP}
        v_lshrrev_b32 v3, 3, v2
        v_lshrrev_b32 v4, 4, v2
        v_and_b32 v5, 7, v2
        v_xor_b32 v5, v5, v4
        v_lshlrev_b32 v5, 4, v5
        v_lshl_add_u32 v16, v3, 10, v5
        v_xor_b32 v17, 64, v16
        v_add_u32 v17, {7168}, v17
        v_add_u32 v18, {2*7168}, v16
        v_add_u32 v19, {2*7168}, v17
        ; W (k-major): v20..23
        v_bfe_u32 v5, v2, 1, 3
        v_xor_b32 v5, v5, v4
        v_lshlrev_b32 v5, 5, v5
        v_and_b32 v6, 1, v2
        v_lshl_add_u32 v5, v6, 4, v5
        v_lshl_add_u32 v20, v4, 13, v5
        v_add_u32 v21, {31744}, v20
        v_xor_b32 v22, 128, v20
        v_add_u32 v22, {2*31744}, v22
        v_add_u32 v23, {31744}, v22
        s_lshl_b32 s{sW8}, s{sW}, 13
        s_lshl_b32 s{sW4}, s{sW}, 12
        s_lshl_b32 s{sXB}, s{sP}, 18
        s_lshl_b32 s{sA}, s{sW}, 16
        s_add_u32 s{sXB}, s{sXB}, s{sA}
        s_lshl_b32 s{sWB}, s{sW}, 17
        s_lshl_b32 s{sD}, s{sJ}, {int(E_("RJ", "0"))}
        s_xor_b32 s{sD}, s{sD}, s{sP}
        s_lshl_b32 s{sD}, s{sD}, {int(E_("RS", "3"))}
        s_and_b32 s{sD}, s{sD}, 7
        s_lshl_b32 s{sA}, s{sD}, 7
        s_add_u32 s{sXB}, s{sXB}, s{sA}
        s_lshl_b32 s{sA}, s{sD}, 19
        s_add_u32 s{sWB}, s{sWB}, s{sA}
        v_and_b32 v84, 7, v2
        v_lshrrev_b32 v65, 3, v0
        v_mul_u32_u24 v64, 24576, v65
        v_lshl_add_u32 v64, v84, 4, v64
        v_lshlrev_b32 v65, 3, v65
        v_lshrrev_b32 v85, 3, v2
        v_lshlrev_b32 v86, 10, v84
        v_lshl_add_u32 v86, v85, 4, v86
        s_lshl_b32 s{sB}, s{sH}, 8
        s_waitcnt lgkmcnt(0)""")
        def mk(s, p, n, off=None):
            if off is None: k(f"s_mov_b32 s{s}, s{PTR[p]}\ns_mov_b32 s{s+1}, s{PTR[p]+1}\ns_mov_b32 s{s+2}, {n}\ns_mov_b32 s{s+3}, 0x00020000")
            else: k(f"s_add_u32 s{s}, s{PTR[p]}, s{off}\ns_addc_u32 s{s+1}, s{PTR[p]+1}, 0\ns_sub_u32 s{s+2}, {n}, s{off}\ns_mov_b32 s{s+3}, 0x00020000")
        if E_("TS0"): k("v_writelane_b32 v255, s58, 0")
        self.ts0()
        mk(WUK, "wuk", 0x400000, sB); mk(CKV, "ckv", 2048 * 1024)
        self.run(self.wdma(0)); self.ts0(); self.run(self.xdma(0)); self.ts0()
        T0 = E_("T0", "")
        if "x" in T0:
            k(f"""v_lshlrev_b32 v96, 7, v2
            v_min_u32 v96, {15*128}, v96
            s_lshl_b32 s{sC}, s2, 13
            s_lshl_b32 s{sD}, s{sW}, 11
            s_add_u32 s{sC}, s{sC}, s{sD}""")
            k(f"buffer_load_dword a254, v96, {srd(CKV)}, s{sC} offen", "pf")
        if "k" in T0:
            k(f"""v_bfe_u32 v96, v2, 1, 4
            v_lshlrev_b32 v96, 13, v96
            v_lshl_add_u32 v96, v6, 7, v96
            s_lshl_b32 s{sC}, s{sP}, 19
            s_lshl_b32 s{sD}, s{sW}, 17
            s_add_u32 s{sC}, s{sC}, s{sD}""")
            k(f"buffer_load_dword a253, v96, {srd(WUK)}, s{sC} offen", "pf")
        mk(WM, "wmod", 512 * 6144); mk(CS, "c", 1024); mk(XS, "x", 2048 * 1024)
        mk(WS, "ws", WS_SIZE); mk(WUV, "wuv", 0x400000, sB); mk(WQ, "wq", 0x400000, sB); mk(DBG, "dbg", 256)
        k(f"""s_lshl_b32 s{sB}, s{sX}, 19
        s_lshl_b32 s{sD}, s{sJ}, 8
        s_add_u32 s{sB}, s{sB}, s{sD}""")
        mk(WO, "wo", 0x400000, sB)
        mk(WD_, "wd", 1792 * 1024); mk(OUT, "out", 2048 * 1024)
        k(f"s_mov_b64 s[{sPG}:{sPG+1}], s[{PTR['wg']}:{PTR['wg']+1}]\ns_mov_b64 s[{sPG+2}:{sPG+3}], s[{PTR['wu']}:{PTR['wu']+1}]")
        if self.TS: k(f"s_mov_b32 s{TSR[0]}, s58"); self.nts = 1
        mk(WR_, "wr", 1024)
        if E_("STOUCH", "1") == "1":
            k(f"s_load_dword s90, s[{DBG}:{DBG+1}], 64\ns_load_dword s91, s[{WS}:{WS+1}], 0x3f00")
        k(f"""s_lshl_b32 s{sVB}, s{sW}, 19
        s_and_b32 s{sB}, s{sWB}, {7 << 19}
        s_xor_b32 s{sVB}, s{sVB}, s{sB}
        s_lshr_b32 s{sB}, s{sP}, {int(E_("RV", "1"))}
        s_and_b32 s{sB}, s{sB}, {int(E_("RVM", "0"))}
        s_lshl_b32 s{sVX}, s{sB}, 12                ; column half order of the V projection
        s_lshl_b32 s{sB}, s{sB}, 7
        s_add_u32 s{sVB}, s{sVB}, s{sB}
        s_lshl_b32 s{sB}, s{sJ}, 1
        s_xor_b32 s{sB}, s{sB}, s{sP}
        s_and_b32 s{sB}, s{sB}, {int(E_("RQM", "0"))}
        s_lshl_b32 s{sQR}, s{sB}, 11                ; chunk order of the Q projection
        s_lshl_b32 s{sB}, s{sB}, 19
        s_lshl_b32 s{sQB}, s{sW}, 17
        s_add_u32 s{sQB}, s{sQB}, s{sB}
        s_lshl_b32 s{sKV}, s{sH}, 20
        s_add_u32 s{sKV}, s{sKV}, {WS_KV}
        s_lshl_b32 s{sB}, s{sP}, 17
        s_add_u32 s{sKVST}, s{sKV}, s{sB}
        s_lshr_b32 s{sB}, s{sW}, 1
        s_lshl_b32 s{sB}, s{sB}, 16
        s_add_u32 s{sKVST}, s{sKVST}, s{sB}
        s_and_b32 s{sB}, s{sW}, 1
        s_lshl_b32 s{sB}, s{sB}, 14
        s_add_u32 s{sKVST}, s{sKVST}, s{sB}
        s_add_u32 s{sKV}, s{sKV}, s{sW8}
        s_min_u32 s{sKp}, s{sT1}, 1
        s_lshl_b32 s{sKp}, s{sKp}, 16
        s_add_u32 s{sKp}, s{sKp}, s{sKV}
        s_sub_u32 s{sB}, s{sP}, 2
        s_lshl_b32 s{sEO}, s{sB}, 7
        s_lshl_b32 s{sB}, s{sB}, 3
        s_add_u32 s{sB}, s{sB}, s{sX}
        s_lshl_b32 s{sB}, s{sB}, 8
        s_mul_i32 s{sC}, s{sJ}, 12288
        s_add_u32 s{sB}, s{sB}, s{sC}
        s_add_u32 s{sB}, s{sB}, {WS_MODP}
        s_cmp_ge_u32 s{sP}, 2
        s_cselect_b32 s{sMODO}, s{sB}, {OOB}
        s_cselect_b32 s{sEO}, s{sEO}, {OOB}
        s_cmp_eq_u32 s{sW}, 0
        s_cselect_b32 s{sMODO}, s{sMODO}, {OOB}
        s_lshl_b32 s{sLNP}, s{sW}, 9
        s_add_u32 s{sLNP}, s{sLNP}, {WS_MODP}
        s_lshr_b32 s{sHST}, s2, 1
        s_lshl_b32 s{sHST}, s{sHST}, 14
        s_and_b32 s{sB}, s2, 1
        s_lshl_b32 s{sB}, s{sB}, 7
        s_add_u32 s{sHST}, s{sHST}, s{sB}
        s_add_u32 s{sHST}, s{sHST}, s{sW4}
        s_add_u32 s{sHST}, s{sHST}, {WS_H}
        s_lshl_b32 s{sHFO}, s2, 2
        s_add_u32 s{sHFO}, s{sHFO}, s{sW}
        s_lshl_b32 s{sHFO}, s{sHFO}, 6
        s_add_u32 s{sHFO}, s{sHFO}, {WS_HF}
        s_lshl_b32 s{sKFP}, s{sH}, 11
        s_add_u32 s{sKFP}, s{sKFP}, {WS_KVF}
        s_lshl_b32 s{sKFO}, s{sP}, 2
        s_add_u32 s{sKFO}, s{sKFO}, s{sW}
        s_lshl_b32 s{sKFO}, s{sKFO}, 6
        s_add_u32 s{sKFO}, s{sKFO}, s{sKFP}
        s_lshr_b32 s{sB}, s{sW}, 1
        s_sub_u32 s{sC}, 3, s{sB}
        s_and_b32 s{sA}, s{sW}, 1
        s_cselect_b32 s{sB}, s{sC}, s{sB}          ; row group projected by this wave
        s_lshl_b32 s{sH1}, s{sT1}, 2
        s_add_u32 s{sH1}, s{sH1}, s{sB}
        s_lshl_b32 s{sH2}, s{sT2}, 2
        s_add_u32 s{sH2}, s{sH2}, s{sB}
        s_sub_u32 s{sHFD}, s{sH2}, s{sH1}
        s_lshl_b32 s{sHFD}, s{sHFD}, 10
        s_lshl_b32 s{sHF1}, s{sH1}, 10
        s_add_u32 s{sHF1}, s{sHF1}, {WS_HF - 65536}
        s_lshl_b32 s{sH1}, s{sH1}, 15
        s_add_u32 s{sH1}, s{sH1}, {WS_H}
        s_add_u32 s{sH1}, s{sH1}, s{sQR}
        s_lshl_b32 s{sH2}, s{sH2}, 15
        s_add_u32 s{sH2}, s{sH2}, {WS_H}
        s_add_u32 s{sH2}, s{sH2}, s{sQR}
        s_add_u32 s{sVX}, s{sVX}, s{sKVST}
        {f"s_mov_b32 s{sVX}, 0x70000000" if E_("NOST") else ""}
        {f"s_mov_b32 s{sKVST}, 0x70000000" if E_("NOST") else ""}
        {f"s_mov_b32 s{sH1}, {WS_H}" if E_("NOH") else ""}
        {f"s_mov_b32 s{sH2}, {WS_H}" if E_("NOH") else ""}
        s_cmp_eq_u32 s{sW}, 0
        s_cselect_b32 s{sET}, 32, 0
        s_cselect_b32 s{sEP}, 0, {OOB}""")
        k(f"""v_and_b32 v48, 15, v2          ; i16
        v_lshrrev_b32 v49, 4, v2       ; q4
        v_lshrrev_b32 v50, 1, v48
        v_xor_b32 v50, v50, v49
        v_lshlrev_b32 v50, 4, v50
        v_lshl_add_u32 v28, v48, 7, v50
        v_add_u32 v28, s{sW8}, v28
        v_xor_b32 v29, 64, v28
        v_add_u32 v30, 65536, v28
        v_add_u32 v31, 65536, v29
        v_lshrrev_b32 v50, 2, v48     ; r
        v_and_b32 v51, 3, v48         ; c
        v_lshl_add_u32 v52, v49, 3, v50      ; row = 8q4 + r
        v_lshlrev_b32 v53, 8, v52
        v_lshl_add_u32 v53, v51, 3, v53
        v_add_u32 v53, {R3}, v53
        v_and_b32 v54, 1, v49
        v_lshl_add_u32 v54, v54, 2, v50      ; f""")
        for nt in range(8):
            k(f"v_xor_b32 v55, {nt}, v54\nv_lshl_add_u32 v{8+nt}, v55, 5, v53")
        k(f"""v_bfe_u32 v49, v2, 1, 2
        v_bfe_u32 v50, v2, 4, 1
        v_xor_b32 v49, v49, v50
        v_lshlrev_b32 v49, 5, v49
        v_and_b32 v50, 1, v2
        v_lshl_add_u32 v49, v50, 4, v49
        v_lshl_add_u32 v24, v85, 13, v49
        v_xor_b32 v25, 64, v24
        v_add_u32 v25, {64512}, v25
        v_add_u32 v26, {2*64512}, v24
        v_add_u32 v27, {2*64512}, v25
        v_cmp_eq_u32 vcc, 0, v2
        v_mov_b32 v6, {OOB}
        v_cndmask_b32 v5, v6, v2, vcc
        v_cmp_eq_u32 vcc, 0, v0
        v_cndmask_b32 v7, v6, v0, vcc
        v_and_b32 v48, 8, v2
        v_cmp_eq_u32 vcc, 0, v48
        v_lshlrev_b32 v48, 5, v84
        v_lshrrev_b32 v49, 1, v2
        v_and_b32 v49, 24, v49
        v_add_u32 v48, v48, v49
        s_lshl_b32 s{sB}, s{sW}, 8
        s_add_u32 s{sB}, s{sB}, {MISC}
        v_add_u32 v48, s{sB}, v48
        v_mov_b32 v49, {MISC + 1024}
        v_cndmask_b32 v98, v49, v48, vcc
        v_lshlrev_b32 v99, 5, v84
        v_add_u32 v99, {MISC + 2048}, v99
        s_lshl_b32 s{sB}, s{sW}, 3
        v_add_u32 v100, s{sB}, v99
        v_lshlrev_b32 v106, 5, v85
        v_lshlrev_b32 v107, 8, v85
        v_lshl_add_u32 v107, v84, 4, v107
        s_sub_u32 s{sB}, s2, 64
        s_lshl_b32 s{sZO}, s{sB}, 12
        s_add_u32 s{sZO}, s{sZO}, {WS_HF}
        s_cmp_lt_u32 s{sB}, 64
        s_cselect_b32 s{sZO}, s{sZO}, {OOB}
        s_mul_i32 s{sD}, s{sJ}, {128*6144}
        s_sub_u32 s{sSD}, s{sP}, 2
        s_lshl_b32 s{sSD}, s{sSD}, 3
        s_add_u32 s{sSD}, s{sSD}, s{sX}
        s_lshl_b32 s{sSD}, s{sSD}, 7
        s_add_u32 s{sSD}, s{sSD}, s{sD}
        s_cmp_ge_u32 s{sP}, 2
        s_cselect_b32 s{sSD}, s{sSD}, {OOB - 0x10000}
        {f"s_cmp_lt_u32 s{sP}, 4" if E_("NOLATE") else ""}
        {f"s_cselect_b32 s{sSD}, s{sSD}, {OOB - 0x10000}" if E_("NOLATE") else ""}
        s_lshl_b32 s{sB}, s{sJ}, 8
        v_add_u32 v65, s{sB}, v65
        v_mov_b32 v6, 1
        v_and_b32 v4, 1, v2
        v_lshlrev_b32 v4, 7, v4""")
        self.ts0()
        if E_("SIDE", "0") == "0": self.run(self.side())
        self.run(self.wdma(1) + self.xdma(1))
        self.ts0()
        if E_("TS0"):
            k.waitvm([("x", 0), ("w", 0)], True); self.ts0()
            k.waitvm(["pf"], True); self.ts0()
            k("s_waitcnt vmcnt(0)"); self.ts0()
            k(f"""s_lshl_b32 s{sB}, s2, 2
            s_add_u32 s{sB}, s{sB}, s{sW}
            s_lshl_b32 s{sB}, s{sB}, 6
            s_add_u32 s{sB}, s{sB}, {WS_TS}
            v_lshlrev_b32 v5, 2, v2
            s_mov_b64 exec, 0xffff
            buffer_store_dword v255, v5, {srd(WS)}, s{sB} offen
            s_endpgm""")

    def side(self):
        return items(f"""buffer_load_dwordx2 v[66:67], v65, {srd(CS)}, 0 offen
        buffer_load_dwordx4 v[68:71], v64, {srd(WM)}, s{sSD} offen {NT}
        s_add_u32 s{sSD}, s{sSD}, 6144
        buffer_load_dwordx4 v[72:75], v64, {srd(WM)}, s{sSD} offen {NT}
        s_add_u32 s{sSD}, s{sSD}, 6144
        buffer_load_dwordx4 v[76:79], v64, {srd(WM)}, s{sSD} offen {NT}
        s_add_u32 s{sSD}, s{sSD}, 6144
        buffer_load_dwordx4 v[80:83], v64, {srd(WM)}, s{sSD} offen {NT}
        s_lshl_b32 s{sSD}, s2, 5
        s_add_u32 s{sSD}, s{sSD}, s{sW}
        s_lshl_b32 s{sSD}, s{sSD}, 8
        buffer_load_dwordx4 v[88:91], v86, {srd(XS)}, s{sSD} offen {NT}
        buffer_load_dwordx4 v[92:95], v86, {srd(XS)}, s{sSD} offen offset:128 {NT}""")
    XR = [R0, R1, R2]
    WSL = [R3, R3 + 16384, R4]
    WQB = [R4, R3, R3 + 16384, MISC, R0, R0 + 16384, R1, R1 + 16384]
    VQB = [R2, R0, R1, R2]
    def xdma(self, s):
        it = []
        for g in range(2):
            it += self.dma4(CKV, [16, 17, 18, 19], (sW8, self.XR[s % 3] + g * 4096), (sXB, s * 128 + g * 32768), ("x", s), True)
        return it
    def wdma(self, s): return self.dma4(WUK, [20, 21, 22, 23], (sW4, self.WSL[s % 3]), (sWB, s * 64 * 8192), ("w", s), True)
    def qdma(self, c): return self.dma4(WQ, [20, 21, 22, 23], (sW4, self.WQB[c]), (sQB, c * 64 * 8192), ("q", c), True)
    def vdma(self, c):
        it = []
        for g in range(2):
            it += self.dma4(WUV, [24, 25, 26, 27], (sW8, self.VQB[c] + g * 4096), (sVB, (c >> 1) * 128 + (c & 1) * 256 * 8192 + g * 4 * 65536), ("v", c), True, c < int(E_("VNT", "0")))
        return it

    def modA(self):
        C, T, AC = 102, 108, 120
        t = f"""v_lshlrev_b32 v{C}, 16, v66
        v_and_b32 v{C+1}, 0xffff0000, v66
        v_lshlrev_b32 v{C+2}, 16, v67
        v_and_b32 v{C+3}, 0xffff0000, v67
        """
        for i in range(4): t += f"v_mul_f32 v{T+i}, {H(-LOG2E)}, v{C+i}\n"
        for i in range(4): t += f"v_exp_f32 v{T+i}, v{T+i}\n"
        for i in range(4): t += f"v_add_f32 v{T+i}, 1.0, v{T+i}\n"
        for i in range(4): t += f"v_rcp_f32 v{T+i}, v{T+i}\n"
        for i in range(4): t += f"v_mul_f32 v{C+i}, v{C+i}, v{T+i}\n"
        t += f"""v_cvt_pk_bf16_f32 v{T}, v{C}, v{C+1}
        v_cvt_pk_bf16_f32 v{T+1}, v{C+2}, v{C+3}
        v_lshlrev_b32 v{C}, 16, v{T}
        v_and_b32 v{C+1}, 0xffff0000, v{T}
        v_lshlrev_b32 v{C+2}, 16, v{T+1}
        v_and_b32 v{C+3}, 0xffff0000, v{T+1}
        """
        for r in range(4):
            for i in range(4):
                a, b = T + 2 * (i & 1), T + 2 * (i & 1) + 1
                op = "v_mul_f32" if r == 0 else "v_fmac_f32"
                t += f"""v_lshlrev_b32 v{a}, 16, v{68+4*r+i}
                v_and_b32 v{b}, 0xffff0000, v{68+4*r+i}
                {op} v{AC+2*i}, v{a}, v{C+r}
                {op} v{AC+2*i+1}, v{b}, v{C+r}
                """
        for i in range(4): t += f"v_permlane32_swap_b32 v{AC+i}, v{AC+4+i}\n"
        for i in range(4): t += f"v_add_f32 v{AC+i}, v{AC+i}, v{AC+4+i}\n"
        for i in range(2): t += f"v_permlane16_swap_b32 v{AC+i}, v{AC+2+i}\n"
        for i in range(2): t += f"v_add_f32 v{AC+i}, v{AC+i}, v{AC+2+i}\n"
        for i in range(2): t += f"v_add_f32_dpp v{AC+i}, v{AC+i}, v{AC+i} row_ror:8 row_mask:0xf bank_mask:0xf\n"
        t += f"ds_write_b64 v98, v[{AC}:{AC+1}]\n"
        return items(t)
    def red16(self, b):
        t = ""
        for i in range(8): t += f"v_permlane32_swap_b32 v{b+i}, v{b+8+i}\n"
        for i in range(8): t += f"v_add_f32 v{b+i}, v{b+i}, v{b+8+i}\n"
        for i in range(4): t += f"v_permlane16_swap_b32 v{b+i}, v{b+4+i}\n"
        for i in range(4): t += f"v_add_f32 v{b+i}, v{b+i}, v{b+4+i}\n"
        for pat in ("quad_perm:[1,0,3,2]", "quad_perm:[2,3,0,1]", "row_half_mirror", "row_mirror"):
            for i in range(4): t += f"v_add_f32_dpp v{b+i}, v{b+i}, v{b+i} {pat} row_mask:0xf bank_mask:0xf\n"
        return t
    def modB(self):
        it = items(f"""v_lshrrev_b32 v87, 2, v1
        v_add_u32 v101, {MISC}, v87
        ds_read_b32 v102, v101
        ds_read_b32 v103, v101 offset:256
        ds_read_b32 v104, v101 offset:512
        ds_read_b32 v105, v101 offset:768""")
        it2 = items(f"""v_add_f32 v102, v102, v103
        v_add_f32 v104, v104, v105
        v_add_f32 v102, v102, v104""")
        it2.append(("m", f"buffer_store_dword v102, v87, {srd(WS)}, s{sMODO} offen {WT}", "mod"))
        return it, it2
    def red8(self, v, t):
        return f"""v_add_f32_dpp v{v}, v{v}, v{v} row_ror:8 row_mask:0xf bank_mask:0xf
        v_mov_b32 v{t}, v{v}
        v_permlane16_swap_b32 v{v}, v{t}
        v_add_f32 v{v}, v{v}, v{t}
        v_mov_b32 v{t}, v{v}
        v_permlane32_swap_b32 v{v}, v{t}
        v_add_f32 v{v}, v{v}, v{t}
        """
    XH = 64
    def lnA(self):
        X = self.XH
        t = ""
        for i in range(8): t += f"v_lshlrev_b32 v{X+2*i}, 16, v{88+i}\nv_and_b32 v{X+2*i+1}, 0xffff0000, v{88+i}\n"
        t += f"v_add_f32 v108, v{X}, v{X+1}\nv_add_f32 v109, v{X+2}, v{X+3}\n"
        for i in range(4, 16, 2): t += f"v_add_f32 v108, v108, v{X+i}\nv_add_f32 v109, v109, v{X+i+1}\n"
        t += "v_add_f32 v108, v108, v109\n" + self.red8(108, 110)
        t += f"v_mul_f32 v108, {H(1/128)}, v108\n"
        t += f"v_sub_f32 v110, v{X}, v108\nv_mul_f32 v109, v110, v110\n"
        for i in range(1, 16): t += f"v_sub_f32 v{110+(i&1)}, v{X+i}, v108\nv_fmac_f32 v109, v{110+(i&1)}, v{110+(i&1)}\n"
        t += self.red8(109, 110)
        t += "ds_write_b64 v100, v[108:109]\n"
        return items(t)
    def lnB(self):
        X = self.XH
        it = items(f"""ds_read_b128 v[88:91], v99
        ds_read_b128 v[92:95], v99 offset:16""")
        t = f"""v_add_f32 v108, v88, v90
        v_add_f32 v109, v92, v94
        v_add_f32 v108, v108, v109
        v_mul_f32 v108, {H(0.25)}, v108
        v_add_f32 v109, v89, v91
        v_add_f32 v110, v93, v95
        v_add_f32 v109, v109, v110
        v_sub_f32 v88, v88, v108
        v_sub_f32 v90, v90, v108
        v_sub_f32 v92, v92, v108
        v_sub_f32 v94, v94, v108
        v_mul_f32 v110, v88, v88
        v_fmac_f32 v110, v90, v90
        v_fmac_f32 v110, v92, v92
        v_fmac_f32 v110, v94, v94
        v_fmac_f32 v109, {H(128.0)}, v110
        v_mov_b32 v110, {H(1e-5)}
        v_fmac_f32 v110, {H(1/512)}, v109
        v_rsq_f32 v110, v110
        """
        for i in range(16): t += f"v_sub_f32 v{X+i}, v{X+i}, v108\n"
        for i in range(16): t += f"v_mul_f32 v{X+i}, v{X+i}, v110\n"
        return it, items(t)
    def lnC_loads(self):
        it = items(f"""v_and_b32 v96, 31, v2
        v_lshlrev_b32 v96, 4, v96
        v_lshrrev_b32 v97, 5, v2
        v_lshl_add_u32 v96, v97, 11, v96""")
        ld = []
        for q in range(4):
            ld += [("m", f"buffer_load_dwordx4 v[{80+4*q}:{83+4*q}], v96, {srd(WS)}, s{sLNP} offen")]
            if q < 3: ld += [("s", f"s_add_u32 s{sLNP}, s{sLNP}, 12288")]
        return it, ld
    def lnC_fin(self):
        t = ""
        for e in range(4): t += f"v_add_f32 v{80+e}, v{80+e}, v{84+e}\nv_add_f32 v{88+e}, v{88+e}, v{92+e}\n"
        for e in range(4): t += f"v_add_f32 v{80+e}, v{80+e}, v{88+e}\n"
        rnd = lambda: "".join(f"v_cvt_pk_bf16_f32 v{84+e}, v{80+2*e}, v{81+2*e}\n" for e in range(2)) + "".join(f"v_lshlrev_b32 v{80+2*e}, 16, v{84+e}\nv_and_b32 v{81+2*e}, 0xffff0000, v{84+e}\n" for e in range(2))
        t += "v_lshrrev_b32 v88, 5, v2\nv_cvt_f32_u32 v88, v88\n" + rnd()
        for e in range(4): t += f"v_add_f32 v{80+e}, v{80+e}, v88\n"
        t += rnd()
        for e in range(4): t += f"v_mul_f32 v{80+e}, {H(QSCALE)}, v{80+e}\n"
        t += f"""s_lshl_b32 s{sLNP}, s{sW}, 10
        s_add_u32 s{sLNP}, s{sLNP}, {MISC + 4096}
        v_add_u32 v88, s{sLNP}, v1
        v_add_u32 v18, s{sLNP}, v18
        ds_write_b128 v88, v[80:83]
        """
        return items(t)
    def lnC_rd(self, i):
        return [("l", f"ds_read_b128 v[{80+seg*8+hf*4}:{83+seg*8+hf*4}], v18 offset:{seg*512 + i*256 + hf*16}") for seg in range(2) for hf in range(2)]
    def lnC(self, i):
        X = self.XH + 8 * i
        t = ""
        for e in range(8): t += f"v_fma_f32 v{X+e}, v{X+e}, v{88+e}, v{80+e}\n"
        t2 = ""
        for e in range(4): t2 += f"v_cvt_pk_bf16_f32 v{X+e}, v{X+2*e}, v{X+2*e+1}\n"
        return items(t), items(t2) + [("m", f"buffer_store_dwordx4 v[{X}:{X+3}], v19, {srd(WS)}, s{sHST} offen offset:{2048*i} {WT}", "hst")]

    WF, VACC, ACC = 32, 64, 128
    def proj(self):
        k = self.k; WF, VACC, ACC = self.WF, self.VACC, self.ACC
        M = []
        def kmajor(nk=16):
            for n in range(nk):
                for dt in range(8):
                    for tt in range(4):
                        d = V(ACC + (tt * 8 + dt) * 4)
                        M.append(MF(d, V(WF + 4 * dt), A((n * 4 + tt) * 4), "0" if n == 0 else d))
        kmajor()
        V0 = len(M)
        VST = [(pc, sh, q) for pc in range(4) for sh in range(2) for q in range(4)]
        for i, (pc, sh, q) in enumerate(VST):
            for nt in range(2):
                for tt in range(4):
                    for h in range(2):
                        n = (pc & 1) * 8 + 2 * q + h
                        d = V(VACC + (1 - sh) * 32 + (nt * 4 + tt) * 4)
                        M.append(MF(d, A((n * 4 + tt) * 4), V(WF + ((i & 1) * 4 + nt * 2 + h) * 4), "0" if n == 0 else d))
        Q0 = len(M)
        kmajor(13)
        QL = len(M); WX = {14: 24, 15: 64}
        QORD = [(u, tt) for u in range(4) for tt in (2, 3, 0, 1)]
        for (u, tt) in QORD:
            for dt in (2 * u, 2 * u + 1):
                for n in (13, 14, 15):
                    d = V(ACC + (tt * 8 + dt) * 4)
                    M.append(MF(d, V(WF + 4 * dt) if n == 13 else A(WX[n] + 4 * dt), A((n * 4 + tt) * 4), d))
        ph = Phase(k, M); N = len(M); ph.mspace = int(E_('MSP', '1')); ph.batch = int(E_('BAT', '9'))
        if E_('LAT', '0') == '1': ph.lat = (4, 2)
        ph.livein = {f'v{i}' for i in range(64, 96)}
        def wread(base, n, dt, ag=None):
            o = base + (n & 1) * 8192
            if ag is not None:
                return [("l", f"ds_read_b64_tr_b16 a[{ag+4*dt}:{ag+4*dt+1}], v{8+dt} offset:{o}"),
                        ("l", f"ds_read_b64_tr_b16 a[{ag+4*dt+2}:{ag+4*dt+3}], v{8+dt} offset:{o+1024}")]
            return [("l", f"ds_read_b64_tr_b16 v[{WF+4*dt}:{WF+4*dt+1}], v{8+dt} offset:{o}"),
                    ("l", f"ds_read_b64_tr_b16 v[{WF+4*dt+2}:{WF+4*dt+3}], v{8+dt} offset:{o+1024}")]
        def xread(n, tt):
            s = n >> 1; sl = s % 3
            va = (28 if sl < 2 else 30) + (n & 1)
            return ("l", f"ds_read_b128 {A((n*4+tt)*4)}, v{va} offset:{(sl if sl < 2 else 0)*32768 + tt*2048}")
        def vread(i, nt, h):
            pc, sh, q = VST[i]
            reg = self.VQB[pc]; va = 28 + 2 * sh + nt
            o = (reg if reg < R2 else 0) + (2 * q + h) * 4096
            f = WF + ((i & 1) * 4 + nt * 2 + h) * 4
            return [("l", f"ds_read_b64_tr_b16 v[{f}:{f+1}], v{va} offset:{o}"), ("l", f"ds_read_b64_tr_b16 v[{f+2}:{f+3}], v{va} offset:{o+512}")]
        BOFF = 40
        MPRE = E_("MPRE", "0")
        if MPRE != "0": self.run(self.modA())
        if MPRE == "2": self.run(self.lnA())
        k.waitvm([("x", 0), ("w", 0)], True); k("s_barrier")
        self.ts()
        for it in wread(self.WSL[0] - R3, 0, 0): k(it[1])
        for tt in range(4): k(xread(0, tt)[1])
        for dt in range(1, 8):
            for it in wread(self.WSL[0] - R3, 0, dt): k(it[1])
        for s in range(7): ph.put("x", self.bar([("x", s + 1), ("w", s + 1)]), 64 * s + BOFF)
        ph.put("x", self.bar([("v", 0)]), 64 * 7 + BOFF)
        BV = [V0 + 128 * c + 110 for c in range(4)]
        for c in range(3): ph.put("x", self.bar([("v", c + 1)]), BV[c])
        ph.put("x", self.bar([("q", i) for i in range(4)]), BV[3])
        BQ = Q0 + 64 * 3 + BOFF
        ph.put("x", self.bar([("q", i) for i in range(4, 8)]), BQ)
        BE = QL + 7
        ph.put("x", self.bar([]), BE)
        for (G0, bases) in ((0, [self.WSL[s % 3] - R3 for s in range(8)]), (Q0, [b - R3 if b >= R3 else b for b in self.WQB])):
            for n in range(0 if G0 else 1, 14 if G0 else 16):
                for dt in range(8):
                    lo = G0 + 32 * (n - 1) + 4 * dt + 4
                    if n == 0: lo = max(BV[3] + 1, [Q0 - 24, Q0 - 16, Q0 - 8, Q0][dt >> 1])
                    elif n % 2 == 0 and (G0 == 0 or n == 8): lo = max(lo, G0 + 32 * (n - 2) + BOFF + 1)
                    pre = []
                    if G0 and n == 8: pre = [("v", f"v_subrev_u32 v{8+dt}, {R3}, v{8+dt}")]; lo -= 1
                    g = ph.stream(pre + wread(bases[n >> 1], n, dt), lo, G0 + 32 * n + 4 * dt - 6)
                    if n % 2 == 1 and (G0 == 0 or n in (7, 13)): assert g < (G0 + 32 * (n - 1) + BOFF if n < 13 or not G0 else BE), (n, dt, g)
        gq = Q0 + 32 * 9 + 4
        for n in (14, 15):
            for dt in range(8):
                for it in wread(self.WQB[7], n, dt, WX[n]): gq = ph.put(it[0], it[1], gq + 3)
        assert gq < BE - 4, gq
        for i, (u, tt) in enumerate(QORD[:-1]):
            b = ACC + (tt * 8 + 2 * u) * 4
            g = ph.stream([("v", f"v_cvt_pk_bf16_f32 v{b+e}, v{b+2*e}, v{b+2*e+1}") for e in range(4)], QL + 6 * i + 9)
            ph.put("l", f"ds_write_b128 v{vMW}, {V(b)} offset:{(tt>>1)*R1 + ((tt&1)*4+u)*1024}", g + 1)
        self.qlast = QORD[-1]
        for n in range(1, 16):
            lo = 32 * (n - 1) + 2
            if n % 2 == 0: lo = 32 * (n - 2) + BOFF + 1
            gx = ph.stream([xread(n, tt) for tt in range(4)], lo, 32 * n - 6)
        vaddr = items(f"""v_and_b32 v16, 15, v2
        v_lshrrev_b32 v17, 4, v2
        v_lshrrev_b32 v29, 2, v16
        v_and_b32 v16, 3, v16
        v_lshl_add_u32 v28, v17, 3, v29
        v_lshlrev_b32 v28, 7, v28
        v_lshl_add_u32 v28, v16, 3, v28
        v_and_b32 v17, 1, v17
        v_lshrrev_b32 v29, 1, v29
        v_lshl_add_u32 v29, v17, 1, v29
        v_lshl_add_u32 v28, v29, 5, v28
        v_add_u32 v28, 65536, v28
        v_xor_b32 v29, 32, v28
        v_xor_b32 v30, 64, v28
        v_xor_b32 v31, 96, v28
        v_and_b32 v16, 15, v2
        v_lshlrev_b32 v16, 6, v16
        v_add_u32 v16, 65536, v16
        v_mad_i32_i24 v16, v17, s{sHFD}, v16
        v_and_b32 v17, 31, v2
        v_lshlrev_b32 v17, 6, v17""")
        g = ph.stream(vaddr, gx + 1)
        assert g <= 64 * 7 + BOFF + 6, g
        for i, (pc, sh, q) in enumerate(VST):
            g0 = V0 + 16 * i
            for nt in range(2):
                for h in range(2):
                    slot = (i & 1) * 4 + nt * 2 + h
                    if i < 2: lo = max(64 * 7 + BOFF + 1, V0 - 32 + 4 * slot + 4)
                    else: lo = g0 - 32 + 8 * nt + 8
                    if pc > 0: lo = max(lo, BV[pc - 1] + 1)
                    pre = []
                    if q == 0 and h == 0 and pc in (1, 3): pre = [("v", f"v_xor_b32 v{28+2*sh+nt}, 65536, v{28+2*sh+nt}")]; lo -= 1
                    g = ph.stream(pre + vread(i, nt, h), max(lo, gprev + 1) if (h and q == 0) else lo, g0 + 8 * nt - 4)
                    gprev = g
                    assert g < BV[pc], (i, g)
        first = self.wdma(2) + self.xdma(2)
        if E_("SIDE", "0") == "1": first = self.side() + first
        if E_("SIDE", "0") == "2": first = first + self.side()
        ph.stream(first, 0, BOFF - 1, sid=900)
        ph.stream(items("".join(f"s_mov_b32 s{d}, s{p}\ns_mov_b32 s{d+1}, s{p+1}\ns_mov_b32 s{d+2}, {512*3584}\n" for (d, p) in ((WG_, sPG), (WU_, sPG + 2)))), 120)
        for s in range(8):
            its = (self.wdma(s + 3) + self.xdma(s + 3)) if s < 5 else self.vdma(s - 5)
            if s == 7: its += self.qdma(0) + self.qdma(1)
            g = ph.stream(its, 64 * s + BOFF + 1, None, step=2 if s < 5 else 4, sid=900)
            assert g < (64 * (s + 1) + BOFF if s < 7 else BV[0]), (s, g)
        g = ph.stream(self.vdma(3) + self.qdma(2) + self.qdma(3), BV[0] + 1, None, step=5, sid=900); assert g < BV[1]
        ph.stream(self.qdma(4) + self.qdma(5), BV[1] + 1, None, step=6, sid=900)
        ph.stream(self.qdma(6) + self.qdma(7), BV[2] + 1, None, step=6, sid=900)
        m1, m2 = self.modB(); l1, l2 = self.lnB()
        zero = items(f"""v_mov_b32 v112, 0
        v_mov_b32 v113, 0
        v_mov_b32 v114, 0
        v_mov_b32 v115, 0
        v_lshlrev_b32 v116, 4, v0""") + [("m", f"buffer_store_dwordx4 v[112:115], v116, {srd(WS)}, s{sZO} offen {WT}", "zero")] + items(f"""v_min_u32 v116, 496, v116
        s_sub_u32 s{sZO}, s{sZO}, {WS_HF}
        s_lshr_b32 s{sZO}, s{sZO}, 3
        s_add_u32 s{sZO}, s{sZO}, {WS_LF}
        s_cmp_lt_u32 s{sZO}, {WS_LF + 0x8000}
        s_cselect_b32 s{sZO}, s{sZO}, {OOB}
        buffer_store_dwordx4 v[112:115], v116, {srd(WS)}, s{sZO} offen {WT}""", "zero")
        g = ph.stream(items(f"""v_lshlrev_b32 v117, 13, v2
        s_lshl_b32 s{sB}, s{sP}, 19
        s_and_b32 s{sC}, s{sW}, 1
        s_lshl_b32 s{sC}, s{sC}, 7
        s_add_u32 s{sB}, s{sB}, s{sC}"""), int(E_("TGS", "60")), sid=904)
        for w, gp in enumerate(int(x) for x in E_("TG", "102,166,230,294").split(",")):
            if E_("TM", "plain") == "none": continue
            first = f"buffer_load_dword a{240+2*w}, v117, {srd(WUV if w < 2 else WQ)}, s{sC} offen nt" if E_("TM", "plain") == "pair" else ""
            ph.put("x", f"""s_cmp_eq_u32 s{sW}, {w}
            s_cselect_b32 s{sC}, s{sB}, {OOB}
            {first}
            buffer_load_dword a{241+2*w}, v117, {srd(WUV if w < 2 else WQ)}, s{sC} offen offset:4""", gp, tag="pf")
        g = ph.stream(zero, BOFF + 10)
        if MPRE == "0":
            g = ph.stream(self.modA(), int(E_("MG", "41")), sid=901, dense=int(E_("MD", "2")))
            b1 = (g - BOFF) // 64 + 1
            g0 = g
            g = ph.stream(m1, 64 * b1 + BOFF + 1, sid=901, dense=1)
        else:
            b1 = 1; g0 = BOFF + 30
            g = ph.stream(m1, 0, sid=901, dense=1)
        ph.put("x", lambda k: k.waitvm(["zero"]), 64 * b1 + BOFF - 1)
        g = ph.stream(m2[:-1], g + 6, sid=901)
        g = ph.put("x", m2[-1][1], g, tag="mod")
        g = ph.put("x", lambda k: k.waitvm(["mod"]), max(g + int(E_("ED", "60")), 64 * b1 + BOFF + 1))
        ph.put("x", f"buffer_atomic_add v6, v7, {srd(DBG)}, s{sEO} offen sc1", g, tag="flag")
        if MPRE == "2": gl = ph.stream(l1, 30, sid=902); b2 = -1
        else:
            gl = ph.stream(self.lnA(), g0 + 1, sid=902)
            b2 = (gl - BOFF) // 64 + 1
            gl = ph.stream(l1, 64 * b2 + BOFF + 1, sid=902)
        gl = ph.stream(l2, gl + 8, sid=902)
        print("mod barrier", b1, "E at", g, "ln barrier", b2, "lnB end", gl, file=sys.stderr)
        a, ld = self.lnC_loads()
        gl = ph.stream(a, gl + 1, sid=902)
        gva = ph.stream(items("v_mov_b32 v18, v106\nv_mov_b32 v19, v107"), 64 * 5 + BOFF + 1, sid=902)
        PB = int(E_("PB", "5"))
        g = 64 * PB + BOFF
        assert gl < g + 30
        ph.put("x", f"buffer_load_dword v3, v4, {srd(DBG)}, s{sEP} offen {WT}", g - int(E_("PL", "50")))
        ph.put("x", self.poll_check(3, 4, DBG, f"s{sEP}", "E", target=f"s{sET}"), g - 1)
        ph.stream(items(f"""s_lshl_b32 s{sZO}, s2, 6
        s_add_u32 s{sZO}, s{sZO}, {WS_LF}
        buffer_store_dword v6, v7, {srd(WS)}, s{sZO} offen {WT}""", "flag"), g + 20)
        g = max(g, gl)
        g = ph.stream(ld, g + 1, sid=902); assert g < V0 - 2
        g = ph.stream(self.lnC_fin(), max(g + int(E_("PL2", "50")), gva + 1), sid=902, dense=int(E_("FD", "1")))
        for i in range(2):
            g = ph.stream(self.lnC_rd(i), g + (6 if i == 0 else 1), sid=902)
            a, b = self.lnC(i)
            g = ph.stream(a, g + 6, sid=902)
            g2 = ph.stream(b, g + 1, sid=902)
        assert g2 < V0 + 60, g2
        print("h stored at", g2, file=sys.stderr)
        g = ph.stream(self.flag_store(sHFO, ["hst"]), g2 + 70)
        def epi(b, off, vtype=False):
            it = [("v", f"v_cvt_pk_bf16_f32 v{b+i}, v{b+2*i}, v{b+2*i+1}") for i in range(4)]
            it.append(("s", f"s_xor_b32 s{sEPI}, s{sVX if vtype else sKVST}, {off & ~4095}"))
            it.append(("m", f"buffer_store_dwordx4 {V(b)}, v1, {srd(WS)}, s{sEPI} offen offset:{off & 4095} {E_('KVP', WT)}", "kv"))
            return it
        ep = []
        K1, K2, K3 = int(E_("K1", "17")), int(E_("K2", "14")), int(E_("K3", "16"))
        kst = [8 + K1 * i for i in range(11)] + [322 + 22 * i for i in range(5)]
        for tt in range(4):
            for u in range(4): ep.append((V0 + kst[tt * 4 + u], epi(ACC + (tt * 8 + 2 * u) * 4, tt * 4096 + u * 1024), Q0 - 4))
        for c in range(4):
            done = V0 + [192, 256, 448, 512][c]
            for nt in range(2):
                for kbl in range(2):
                    i = nt * 2 + kbl
                    lo = done + 6 + K2 * i if c < 2 else max(done + 6, V0 + 454 + K3 * (4 * (c - 2) + i))
                    ep.append((lo, epi(VACC + (1 - (c & 1)) * 32 + (nt * 4 + 2 * kbl) * 4, 32768 + kbl * 8192 + (2 * c + nt) * 1024, True), done + 62 if c < 2 else Q0 + 148))
        if E_("DROPV"): ph.put("x", f"s_cmp_ge_u32 s{sP}, 2\ns_cselect_b32 s{sVX}, 0x70000000, s{sVX}", V0 + 400)
        ep.sort(key=lambda e: e[0])
        g = 0
        for (lo, its, dl) in ep:
            g = ph.stream(its, max(lo, g + 1)); assert g < dl
        g = ph.stream(self.flag_store(sKFO, ["kv"]), g + int(E_("KVD", "60")))
        print("kv flag at", g - Q0, file=sys.stderr)
        HG = V0 + 384
        g = ph.stream([("m", f"buffer_load_dword v3, v16, {srd(WS)}, s{sHF1} offen {WT}")], HG - 44)
        ph.put("x", self.poll_check(3, 16, WS, f"s{sHF1}", "H"), HG)
        g = HG + 1
        for n in range(16):
            for tt in range(4):
                lo = max(HG + 64 + 16 * ((n - 8) // 2 + 1) if n >= 8 else 0, HG + 1 + 7 * (n * 4 + tt))
                off = (tt & 1) * 16384 + n * 1024
                g = ph.stream([("s", f"s_xor_b32 s{sHLD}, s{sH1 + (tt >> 1)}, {off & ~2047}"),
                               ("m", f"buffer_load_dwordx4 {A((n*4+tt)*4)}, v1, {srd(WS)}, s{sHLD} offen offset:{off & 2047}")], max(lo, g + 1))
        g = ph.stream(moe_setup(), V0 + 20)
        a, ld = late_mod_loads(self, 112)
        g = ph.stream(a + items(f"""v_and_b32 v119, 3, v2
        v_lshlrev_b32 v119, 9, v119
        s_lshr_b32 s{sEO}, s2, 6
        s_add_u32 s{sEO}, s{sEO}, 4
        s_lshl_b32 s{sEO}, s{sEO}, 5
        s_bfe_u32 s{sET}, s2, {3 | (3 << 16)}
        s_add_u32 s{sEO}, s{sEO}, s{sET}
        s_lshl_b32 s{sEO}, s{sEO}, 6
        s_add_u32 s{sEO}, s{sEO}, {WS_LF}
        buffer_load_dword v118, v119, {srd(WS)}, s{sEO} offen {WT}"""), Q0 + 150, sid=903)
        g = ph.put("x", self.poll_check(118, 119, WS, f"s{sEO}", "E2"), g + 50)
        g = ph.stream(ld, g + 1, sid=903)
        g = ph.stream(late_mod_fin(self, 112), g + 60, sid=903)
        KG = int(E_("KG", "50"))
        g = ph.stream([("m", f"buffer_load_dword v3, v17, {srd(WS)}, s{sKFP} offen {WT}")], BQ + KG - 40)
        ph.put("x", self.poll_check(3, 17, WS, f"s{sKFP}", "KV"), BQ + KG)
        its = []
        for (lds, so, tag) in ((R2, (sKV, 0), "k0"), (R3, (sKV, 32768), "v0"), (R4, (sKp, 0), "k1")):
            for g2 in range(2):
                its += self.dma4(WS, [1, 1, 1, 1], (sW8, lds + g2 * 4096), (so[0], so[1] + g2 * 4096), tag)
        g = ph.stream(its, BQ + KG + 1, None, step=int(E_("KST", "4")), sid=900)
        as1, as2 = attn_setup(self)
        g2 = ph.stream(as1, Q0 + 160, sid=906)
        g3 = ph.stream(as2, max(g2, BQ + KG) + 1, sid=906)
        print("setup ends", g2, g3, file=sys.stderr)
        cl = cold_loads(120, sMODO2)
        nf = [i for i, it in enumerate(cl) if it[0] == "m"][0]
        g2 = ph.stream(cl[:nf], g2 + 1, sid=905)
        g = ph.stream(cl[nf:], max(g, g2) + 1, sid=905)
        print("cold loads end at", g, file=sys.stderr)
        CT = E_("CT", "123")
        if "2" in CT: ph.stream(code_touch("L_ct2", "L_attn", "L_code_end", 123, "a61", 5), g + 2)
        if "1" in CT: ph.stream(code_touch("L_ct1", "L_ct1", "L_attn", 119, "v119", 2), 418)
        if self.TS:
            ph.put("x", self.ts, V0 - 1); ph.put("x", self.ts, Q0 - 1)
            for gp in (E_("TSP") or "").split(","):
                if gp: ph.put("x", lambda k: self.ts(k, True), int(gp))
        ph.emit()
        print("proj: overloaded placements", ph.over, file=sys.stderr)
        self.ts()


def build(stop=None):
    g = G()
    k = g.k
    g.startup(); g.proj()
    k.label("L_attn")
    if stop != "proj":
        attention(g)
        if stop != "attn":
            oproj(g); tail(g)
    else:
        qdump(g)
    k.label("L_fin")
    if g.TS:
        if E_("TST"): g.ts(force=True)
        k("s_waitcnt vmcnt(0)"); g.ts(force=bool(E_("TST")))
        k(f"""s_lshl_b32 s{sB}, s2, 2
        s_add_u32 s{sB}, s{sB}, s{sW}
        s_lshl_b32 s{sB}, s{sB}, 6
        s_add_u32 s{sB}, s{sB}, {WS_TS}
        v_cmp_eq_u32 vcc, 0, v2
        v_mov_b32 v6, {OOB}
        s_nop 1
        v_cndmask_b32 v5, v6, v2, vcc""")
        for n in range(g.nts):
            k(f"v_mov_b32 v4, s{TSR[n]}\nbuffer_store_dword v4, v5, {srd(WS)}, s{sB} offen offset:{4*n}")
        if E_("TSDBG"):
            k(f"s_cmp_eq_u32 s2, {E_('TSDBG')}\ns_cselect_b32 s{sB}, 0, {OOB}\ns_cmp_eq_u32 s{sW}, 0\ns_cselect_b32 s{sB}, s{sB}, {OOB}")
            for n in range(1, g.nts):
                k(f"s_sub_u32 s{sC}, s{TSR[n]}, s{TSR[0]}\nv_mov_b32 v4, s{sC}\nbuffer_store_dword v4, v5, {srd(DBG)}, s{sB} offen offset:{4*n}")
    if E_("SPINT"):
        n = int(E_("SPINT"))
        if E_("SPINW"): k(f"s_cmp_lg_u32 s2, {E_('SPINW')}\ns_cbranch_scc1 L_end")
        k(f"s_add_u32 s{sC}, s{TSR[n]}, 10000")
        k.label("L_spint")
        k(f"s_memrealtime vcc\ns_waitcnt lgkmcnt(0)\ns_sub_u32 s{sB}, vcc_lo, s{sC}\ns_cmp_lt_i32 s{sB}, 0\ns_cbranch_scc1 L_spint")
    k.label("L_end")
    k("s_endpgm")
    lines = k.out + "\n".join(g.tail).split("\n") + ["L_code_end:", "    s_endpgm"]
    lines, nn = fix_hazards(lines, report=bool(E_("NOPS")))
    print("nops inserted:", nn, file=sys.stderr)
    if E_("AL8", "0") == "1":
        lines, na, left = align8(lines)
        print("widened", na, "still misaligned", left, file=sys.stderr)
    hdr = open(os.path.join(HERE, "..", NAME + ".s.ref")).read().split("; Override launch geometry")[0]
    kn = NAME + "_kernel"
    text = hdr + f"""; @launch grid=(256,1,1) block=(256,1,1) lds=163840
.amdgcn_target "amdgcn-amd-amdhsa--gfx950"
.text
.globl {kn}
.p2align 8
.type {kn},@function
{kn}:
""" + "\n".join(lines) + f"""
.section .rodata,"a"
.p2align 6
.amdhsa_kernel {kn}
  .amdhsa_next_free_vgpr 512
  .amdhsa_next_free_sgpr 102
  .amdhsa_accum_offset 256
  .amdhsa_group_segment_fixed_size 0
  .amdhsa_kernarg_size 128
  .amdhsa_user_sgpr_count 2
  .amdhsa_user_sgpr_kernarg_segment_ptr 1
  .amdhsa_system_sgpr_workgroup_id_x 1
.end_amdhsa_kernel
"""
    return text, lines

if __name__ == "__main__":
    path = sys.argv[1] if len(sys.argv) > 1 else os.path.join(HERE, "..", NAME + ".s")
    text, lines = build(E_("STOP"))
    verify_all(lines)
    open(path, "w").write(text)
    print("wrote", path, len(text), file=sys.stderr)
```

```python
from common import *
from gen_attn import *
sFO, sWOB, sXL, sPS, sTOK1, sTOK2, sPC, sKEY, sIDX, sCND, sCG, sC2 = 64, 65, 74, 75, 68, 69, 70, 71, 72, 73, 66, 67
CNT = E_("CNT", "")
sPM = 12
ROT = E_("OROT", "1") == "1"
sLM = 70
OQB = [R1, R2, R0, R3]
WOV = 8
OA = 56
WR0, OACC, X2, MW = 192, 64, 128, 128
def X1R(f): return 64 + 4 * f if f < 16 else 4 * (f - 16)
QM = E_("QM", "1") == "1"
PCH, PKH = ([0, 0, 1, 1], [0, 1, 0, 1]) if QM else ([0, 1, 0, 1], [0, 0, 1, 1])
def wodma(g, c, vb=24):
    it = []
    for h in range(2):
        it += g.dma4(WO, [vb + i for i in range(4)], (sW8, OQB[c] + h * 4096), (sWOB, PCH[c] * 128 + PKH[c] * 262144 + h * 32768), f"wo{c}", True)
    return it
def xload(pas, f):
    off = f * 1024
    dst = A(X1R(f)) if pas == 0 else V(X2 + 4 * f)
    return [("s", f"s_xor_b32 s{sXL}, s{sXC}, {off & ~4095}"), ("m", f"buffer_load_dwordx4 {dst}, v1, {srd(WS)}, s{sXL} offen offset:{off & 4095}")]
def xc_items(sT):
    return items(f"""s_lshl_b32 s{sXC}, s{sT}, 2
    s_add_u32 s{sXC}, s{sXC}, s{sW}
    s_lshl_b32 s{sXC}, s{sXC}, 3
    s_add_u32 s{sXC}, s{sXC}, s{sX}
    s_lshl_b32 s{sXC}, s{sXC}, 2
    s_add_u32 s{sXC}, s{sXC}, {f"s{sJ}" if ROT else "0"}
    s_lshl_b32 s{sXC}, s{sXC}, 13
    s_add_u32 s{sXC}, s{sXC}, {WS_CTX}""")

def moe_setup():
    return items(f"""s_lshr_b32 s{sB}, s2, 3
    s_mul_i32 s{sCG}, s{sX}, 28
    s_add_u32 s{sCG}, s{sCG}, s{sB}
    s_cmp_lt_u32 s{sB}, 28
    s_cselect_b32 s{sCG}, s{sCG}, 255
    s_lshl_b32 s{sC2}, s{sX}, 3
    s_add_u32 s{sC2}, s{sC2}, s{sB}
    s_sub_u32 s{sC2}, s{sC2}, 24
    s_cmp_ge_u32 s{sB}, 24
    s_cselect_b32 s{sC2}, s{sC2}, 255""")
WS_GP, WS_UP, WS_DP = 0x400000, 0x600000, 0x800000
RA, RAi, RB, RBi = ("v_lshrrev_b32", 3, "v_and_b32", 7) if E_("RPT", "1") == "0" else ("v_and_b32", 7, "v_lshrrev_b32", 3)
def repack_loads(t0, s0):
    return items(f"""s_lshl_b32 s{s0}, s2, 2
    s_add_u32 s{s0}, s{s0}, s{sW}
    s_and_b32 s{sB}, s{s0}, 31
    s_lshr_b32 s{sC}, s{s0}, 5
    s_sub_u32 s{sC}, s{sC}, 4
    s_and_b32 s{sC}, s{sC}, 31
    {f"s_bitcmp1_b32 s2, 0" if E_("ODDX") else ""}
    {f"s_cselect_b32 s{sC}, 31, s{sC}" if E_("ODDX") else ""}
    {RA} v{t0+1}, {RAi}, v2
    v_and_b32 v{t0}, 4, v{t0+1}
    v_and_b32 v{t0+2}, 2, v{t0+1}
    v_lshl_add_u32 v{t0}, v{t0+2}, 3, v{t0}
    v_and_b32 v{t0+2}, 1, v{t0+1}
    v_lshl_add_u32 v{t0}, v{t0+2}, 1, v{t0}
    v_mul_u32_u24 v{t0}, 3584, v{t0}
    {RB} v{t0+2}, {RBi}, v2
    v_lshl_add_u32 v{t0}, v{t0+2}, 4, v{t0}
    v_lshlrev_b32 v{t0+1}, 13, v{t0+1}
    v_lshl_add_u32 v{t0+1}, v{t0+2}, 4, v{t0+1}
    s_lshr_b32 s{s0}, s{sB}, 1
    s_lshl_b32 s{s0}, s{s0}, 2
    s_and_b32 s{sB}, s{sB}, 1
    s_add_u32 s{s0}, s{s0}, s{sB}
    s_mul_i32 s{s0}, s{s0}, {8*3584}
    s_lshl_b32 s{sB}, s{sC}, 7
    s_add_u32 s{s0}, s{s0}, s{sB}
    s_cmp_lt_u32 s{sC}, 28
    s_cselect_b32 s{s0}, s{s0}, {OOB}
    buffer_load_dwordx4 {A(PRE)}, v{t0}, {srd(WG_)}, s{s0} offen {CNT}
    buffer_load_dwordx4 {A(PRE+4)}, v{t0}, {srd(WG_)}, s{s0} offen offset:3584 {CNT}
    buffer_load_dwordx4 {A(PRE+8)}, v{t0}, {srd(WU_)}, s{s0} offen {CNT}
    buffer_load_dwordx4 {A(PRE+12)}, v{t0}, {srd(WU_)}, s{s0} offen offset:3584 {CNT}
    s_lshl_b32 s{s0}, s{sC}, 16
    s_lshl_b32 s{sB}, s{sW}, 11
    s_add_u32 s{s0}, s{s0}, s{sB}
    s_lshl_b32 s{sB}, s{sX}, 7
    s_add_u32 s{s0}, s{s0}, s{sB}
    buffer_load_dwordx4 {A(PRE+16)}, v{t0+1}, {srd(WD_)}, s{s0} offen {CNT}
    buffer_load_dwordx4 {A(PRE+20)}, v{t0+1}, {srd(WD_)}, s{s0} offen offset:1024 {CNT}""", "ex")
def repack_stores(t0, s0):
    return items(f"""s_lshr_b32 s{sC}, s2, 3
    s_sub_u32 s{sC}, s{sC}, 4
    s_and_b32 s{sC}, s{sC}, 31
    {f"s_bitcmp1_b32 s2, 0" if E_("ODDX") else ""}
    {f"s_cselect_b32 s{sC}, 31, s{sC}" if E_("ODDX") else ""}
    {RA} v{t0+2}, {RAi}, v2
    v_lshlrev_b32 v{t0+2}, 4, v{t0+2}
    {RB} v{t0+1}, {RBi}, v2
    v_lshl_add_u32 v{t0}, v{t0+1}, 13, v{t0+2}
    v_mul_u32_u24 v{t0+1}, 28672, v{t0+1}
    v_add_u32 v{t0+1}, v{t0+1}, v{t0+2}
    s_lshl_b32 s{s0}, s{sX}, 2
    s_add_u32 s{s0}, s{s0}, s{sW}
    s_lshl_b32 s{s0}, s{s0}, 7
    s_lshl_b32 s{sB}, s{sC}, 16
    s_add_u32 s{s0}, s{s0}, s{sB}
    s_add_u32 s{s0}, s{s0}, {WS_GP}
    s_cmp_lt_u32 s{sC}, s{sRPL}
    s_cselect_b32 s{s0}, s{s0}, {OOB - 0x400000}
    buffer_store_dwordx4 {A(PRE)}, v{t0}, {srd(WS)}, s{s0} offen {WT}
    s_add_u32 s{s0}, s{s0}, 4096
    buffer_store_dwordx4 {A(PRE+4)}, v{t0}, {srd(WS)}, s{s0} offen {WT}
    s_add_u32 s{s0}, s{s0}, {WS_UP - WS_GP - 4096}
    buffer_store_dwordx4 {A(PRE+8)}, v{t0}, {srd(WS)}, s{s0} offen {WT}
    s_add_u32 s{s0}, s{s0}, 4096
    buffer_store_dwordx4 {A(PRE+12)}, v{t0}, {srd(WS)}, s{s0} offen {WT}
    s_mul_i32 s{s0}, s{sX}, {8*28672}
    s_mul_i32 s{sB}, s{sW}, {2*3584}
    s_add_u32 s{s0}, s{s0}, s{sB}
    s_lshl_b32 s{sB}, s{sC}, 7
    s_add_u32 s{s0}, s{s0}, s{sB}
    s_add_u32 s{s0}, s{s0}, {WS_DP}
    s_cmp_lt_u32 s{sC}, s{sRPL}
    s_cselect_b32 s{s0}, s{s0}, {OOB}
    buffer_store_dwordx4 {A(PRE+16)}, v{t0+1}, {srd(WS)}, s{s0} offen {WT}
    buffer_store_dwordx4 {A(PRE+20)}, v{t0+1}, {srd(WS)}, s{s0} offen offset:3584 {WT}""", "pre")
MG, MD = 112, 128
def moe_loads(t0, s0):
    t = f"""v_lshlrev_b32 v{t0}, 4, v0
    v_cmp_gt_u32 vcc, 224, v0
    v_mov_b32 v{t0+1}, {OOB}
    v_cndmask_b32 v{t0+1}, v{t0+1}, v{t0}, vcc
    s_lshl_b32 s{s0}, s{sCG}, 13
    s_add_u32 s{s0}, s{s0}, {WS_GP}
    s_cmp_lt_u32 s{sCG}, 224
    s_cselect_b32 s{s0}, s{s0}, {OOB - 0x400000}
    buffer_load_dwordx4 {V(MG)}, v{t0}, {srd(WS)}, s{s0} offen
    s_add_u32 s{s0}, s{s0}, 4096
    buffer_load_dwordx4 {V(MG+4)}, v{t0}, {srd(WS)}, s{s0} offen
    s_add_u32 s{s0}, s{s0}, {WS_UP - WS_GP - 4096}
    buffer_load_dwordx4 {V(MG+8)}, v{t0}, {srd(WS)}, s{s0} offen
    s_add_u32 s{s0}, s{s0}, 4096
    buffer_load_dwordx4 {V(MG+12)}, v{t0}, {srd(WS)}, s{s0} offen
    s_mul_i32 s{s0}, s{sC2}, 28672
    s_add_u32 s{s0}, s{s0}, {WS_DP}
    s_cmp_lt_u32 s{sC2}, 64
    s_cselect_b32 s{s0}, s{s0}, {OOB - 0x400000}
    """
    for r in range(8):
        t += f"buffer_load_dwordx4 {V(MD+4*r)}, v{t0+1}, {srd(WS)}, s{s0} offen offset:{(r&1)*3584}\n"
        if r & 1 and r < 7: t += f"s_add_u32 s{s0}, s{s0}, 7168\n"
    return items(t, "ex")
def merge1_extra(g):
    t = f"""v_lshlrev_b32 v12, 3, v0
    s_lshl_b32 s{sC}, s2, 11
    s_add_u32 s{sC}, s{sC}, {WS_CAND}
    buffer_store_dwordx2 v[{vSEN}:{vSEN+1}], v12, {srd(WS)}, s{sC} offen {WT}
    s_lshl_b32 s{sC}, s2, 6
    s_add_u32 s{sC}, s{sC}, {WS_KEY}
    v_mov_b32 v13, 0
    buffer_store_dword v13, v7, {srd(WS)}, s{sC} offen {WT}
    s_lshl_b32 s{sC}, s{sCG}, 6
    s_add_u32 s{sC}, s{sC}, {WS_ACT}
    buffer_store_dwordx4 {V(vSEN)}, v7, {srd(WS)}, s{sC} offen {WT}
    buffer_store_dwordx4 {V(vSEN)}, v7, {srd(WS)}, s{sC} offen offset:16 {WT}
    """
    return items(t, "pre")
def late_mod_loads(g, b):
    it = items(f"""v_lshlrev_b32 v{b+4}, 2, v0
    v_cmp_gt_u32 vcc, 8, v0
    v_mov_b32 v{b+5}, {OOB}
    v_cndmask_b32 v{b+4}, v{b+5}, v{b+4}, vcc
    s_lshl_b32 s{sLM}, s2, 5
    s_add_u32 s{sLM}, s{sLM}, {WS_MODP + 4096}""")
    ld = []
    for q in range(4):
        ld += [("m", f"buffer_load_dword v{b+q}, v{b+4}, {srd(WS)}, s{sLM} offen"), ("s", f"s_add_u32 s{sLM}, s{sLM}, 12288")]
    return it, ld
def late_mod_fin(g, b):
    return items(f"""v_add_f32 v{b}, v{b}, v{b+1}
    v_add_f32 v{b+2}, v{b+2}, v{b+3}
    v_add_f32 v{b}, v{b}, v{b+2}
    v_cvt_pk_bf16_f32 v{b}, v{b}, v{b}
    v_and_b32 v{b}, 0xffff0000, v{b}
    s_lshr_b32 s{sLM}, s2, 6
    s_cmp_eq_u32 s{sLM}, 2
    s_cselect_b32 s{sLM}, 1.0, 0
    v_add_f32 v{b}, s{sLM}, v{b}
    v_cvt_pk_bf16_f32 v{b}, v{b}, v{b}
    v_and_b32 v{b}, 0xffff0000, v{b}
    s_lshl_b32 s{sLM}, s2, 5
    s_add_u32 s{sLM}, s{sLM}, {WS_MOD + 4096}
    buffer_store_dword v{b}, v{b+4}, {srd(WS)}, s{sLM} offen {WT}""", "ex")
def wo_voff(b):
    return items(f"""v_lshrrev_b32 v{b+1}, 1, v2
    v_lshrrev_b32 v{b+2}, 4, v2
    v_xor_b32 v{b+1}, v{b+1}, v{b+2}
    v_and_b32 v{b+1}, 3, v{b+1}
    v_lshlrev_b32 v{b+1}, 5, v{b+1}
    v_and_b32 v{b+2}, 1, v2
    v_lshl_add_u32 v{b+1}, v{b+2}, 4, v{b+1}
    v_lshrrev_b32 v{b}, 3, v2
    v_lshl_add_u32 v{b}, v{b}, 10, v{b+1}
    v_bfe_u32 v4, v2, 1, 2
    v_lshlrev_b32 v4, 11, v4
    v_lshl_add_u32 v4, v{b+2}, 6, v4
    v_add_u32 v{b+1}, 7168, v{b}
    v_add_u32 v{b+2}, {2*7168}, v{b}
    v_add_u32 v{b+3}, {3*7168}, v{b}""")
def cold_loads(t0, s0):
    return repack_loads(t0, s0) + items(f"""
    v_lshrrev_b32 v{t0+1}, 1, v2
    v_and_b32 v{t0+1}, 15, v{t0+1}
    v_lshlrev_b32 v{t0+1}, 10, v{t0+1}
    v_and_b32 v{t0+2}, 1, v2
    v_lshl_add_u32 v{t0+1}, v{t0+2}, 7, v{t0+1}
    s_lshl_b32 s{s0}, s{sP}, 2
    s_add_u32 s{s0}, s{s0}, s{sW}
    s_lshl_b32 s{s0}, s{s0}, 14
    buffer_load_dword a60, v{t0+1}, {srd(WO)}, s{s0} offen""", "ex")
def split_m(its, n):
    c = 0
    for i, it in enumerate(its):
        if it[0] == "m":
            c += 1
            if c == n: return its[:i + 1], its[i + 1:]
    return its, []
def peel_plan(g):
    pf = lambda a, b: sum((prefill_items(i) for i in range(a, b)), [])
    rs = []; rest = repack_stores(12, sPF)
    for i in range(6):
        a, rest = split_m(rest, 1); rs.append(a)
    wo = wodma(g, 0, 8)
    xl = lambda a, b: sum((xload(0, f) for f in range(a, b)), [])
    fsig = items(f"""s_lshl_b32 s{sFO}, s2, 6
    s_add_u32 s{sFO}, s{sFO}, {WS_FF}
    buffer_store_dword v6, v7, {srd(WS)}, s{sFO} offen {WT}""", "flag")
    cpoll = [("m", f"buffer_load_dword v3, v4, {srd(WS)}, s{sCFP} offen {WT}")]
    fc = first_c(2); wv = wo_voff(8)
    return [([pf(0, 2), rs[0]], [rs[1] + pf(2, 7), wv[:8]]),
            ([rs[2] + pf(7, 10)], [rs[3] + pf(10, 14), wv[8:]]),
            ([rs[4] + pf(14, 16) + cpoll], [rs[5] + merge1_extra(g), fc[:6]]),
            ([xc_items(sT1) + [("x", g.poll_check(3, 4, WS, f"s{sCFP}", "C1"))] + xl(0, 5)], [wo[:6] + xl(5, 8), fc[6:12]]),
            ([fsig + xl(8, 13)], [wo[6:] + xl(13, 16), fc[12:18]]),
            ([xl(16, 22)], [xl(22, 28), fc[18:26]]),
            ([xl(28, 32), fc[26:]], [])]
def peel_a(g, ph, r):
    for st in peel_plan(g)[r - 1][0]: ph.stream(st, 8 if any(it[0] == "m" for it in st[:3]) else 0)
def peel_b(g, ph, r):
    for st in peel_plan(g)[r - 1][1]: ph.stream(st, 0)
def diag_a(g, ph):
    if TK < 32:
        ph.stream(items(f"""v_mov_b32 v10, 1
        s_lshl_b32 s{sCND}, s{sP}, 2
        s_add_u32 s{sCND}, s{sCND}, s{sW}
        s_lshl_b32 s{sCND}, s{sCND}, 6
        s_add_u32 s{sCND}, s{sCND}, {WS_LF + 32}"""), 8)
    ph.stream(items("".join(f"v_mov_b32 v{24+i}, v{8+i}\n" for i in range(4)) + f"""v_add_u32 v11, {R4}, v{vMW}
    v_lshlrev_b32 v12, 6, v0
    s_mov_b32 s{sKEY}, {WS_FF}
    buffer_load_dword v3, v12, {srd(WS)}, s{sKEY} offen {WT}
    v_bfe_u32 v13, v2, 1, 4
    v_lshlrev_b32 v13, 10, v13
    v_and_b32 v14, 1, v2
    v_lshl_add_u32 v13, v14, 7, v13
    s_lshl_b32 s{sXL}, s{sP}, 2
    s_add_u32 s{sXL}, s{sXL}, s{sW}
    s_lshl_b32 s{sXL}, s{sXL}, 14
    {f"buffer_load_dword v14, v13, {srd(WO)}, s{sXL} offen" if E_("WOT", "1") == "1" else ""}"""), 0, dense=1)
def diag_b(g, ph):
    if TK < 32: ph.put("x", f"buffer_atomic_add v10, v5, {srd(WS)}, s{sCND} offen sc0 sc1", 3)
    if "3" in E_("CT", "123"): ph.stream(code_touch("L_ct3", "L_ct3", "L_end", 13, "v13", 4), 1)
    ph.put("x", g.poll_check(3, 12, WS, f"s{sKEY}", "F"), 31)
def merge_x(g):
    its = items(f"""v_lshrrev_b32 v{OA+2}, 2, v2
    v_and_b32 v{OA+1}, 3, v2
    v_lshlrev_b32 v{OA}, 7, v{OA+2}
    v_lshl_add_u32 v{OA}, v{OA+1}, 3, v{OA}
    v_bfe_u32 v{OA+1}, v2, 3, 2
    v_lshl_add_u32 v{OA}, v{OA+1}, 5, v{OA}
    v_xor_b32 v{OA+1}, 32, v{OA}
    v_xor_b32 v{OA+2}, 64, v{OA}
    v_xor_b32 v{OA+3}, 96, v{OA}
    v_add_u32 v{OA+4}, {R2}, v{OA}
    v_add_u32 v{OA+5}, {R2}, v{OA+1}
    v_add_u32 v{OA+6}, {R2}, v{OA+2}
    v_add_u32 v{OA+7}, {R2}, v{OA+3}""")
    return its

KS = int(E_("KS", "0"))
XE, OE = 128, 8
def steps(var):
    top = 8 - KS if var == "odd" else 8
    ex = list(range(8, 8 + KS)) if var == "even" else []
    s0 = [(c, n2) for c in range(2) for n2 in range(4)] + [(c, n2) for c in range(2) for n2 in range(4, top)] + [(c, n2) for c in range(2) for n2 in ex]
    s0 += [(c, n2) for c in (2, 3) for n2 in list(range(top)) + ex]
    s1 = [(c, n2) for c in range(4) for n2 in range(4)] + [(c, n2) for c in range(4) for n2 in range(4, 8)]
    return [(0,) + s for s in s0] + [(1,) + s for s in s1]
def piece(st):
    _, c, n2 = st
    return 4 if n2 >= 8 else [q for q in range(4) if PCH[q] == c >> 1 and PKH[q] == n2 >> 2][0]
def oread(i, ST=None):
    st = (ST or steps("even"))[i]; _, c, n2 = st
    it = []
    for nt in range(2):
        for h in range(2):
            if n2 >= 8: va = OE + 2 * (c & 1) + nt; o = (c >> 1) * 16384 + (2 * (n2 - 6 - KS) + h) * 4096
            else:
                reg = OQB[piece(st)]
                va = OA + (0 if reg < R2 else 4) + 2 * (c & 1) + nt; o = (reg & 0xffff) + (2 * (n2 & 3) + h) * 4096
            f = WR0 + ((i & 3) * 4 + nt * 2 + h) * 4
            it += [("l", f"ds_read_b64_tr_b16 a[{f}:{f+1}], v{va} offset:{o}"), ("l", f"ds_read_b64_tr_b16 a[{f+2}:{f+3}], v{va} offset:{o+2048}")]
    return it
def oproj_first(g):
    g.run(oread(0) + oread(1))

GW, K0 = 8, 16
P1R, P2R, GA, CB, SB, GB, XR1, XR2, WRR = 128, 192, 160, 168, 176, 184, 32, 36, 40
vPL, vCB, vCF = 44, 45, 46
SV = int(E_("SV", "0"))
XRB, P1B = 28, 224
def pload(T12, dst, nb=0, base=None):
    it = []
    for x in range(8):
        it += [("s", f"s_add_u32 s{sXL}, s{base or sPC}, {(T12 << 23) + nb * 32768 + x * 4096}"), ("m", f"buffer_load_dwordx4 {V(dst+4*x)}, v{vPL}, {srd(WS)}, s{sXL} offen {WT}")]
    return it

def epi(pas, c):
    it = []
    for tt in range(2):
        b = OACC + c * 16 + tt * 8
        it += [("v", f"v_cvt_pk_bf16_f32 v{b+i}, v{b+2*i}, v{b+2*i+1}") for i in range(4)]
        it += [("v", f"v_min_u32 v{b+i}, -2, v{b+i}") for i in range(4)]
        it += [("s", f"s_add_u32 s{sPS}, s{sPB}, {(pas << 23) + tt * 131072}"), ("m", f"buffer_store_dwordx4 {V(b)}, v{vPO}, {srd(WS)}, s{sPS} offen offset:{c*256} {WT}", "pst")]
    return it

def oproj_phase(g, var):
    k = g.k
    ST = steps(var); PB = 8 * (len(ST) - 32)
    EV = lambda key, d: int(E_(key + "_" + var, E_(key, str(d))))
    M = []
    for i, (pas, c, n2) in enumerate(ST):
        for nt in range(2):
            for tt in range(2):
                for h in range(2):
                    n = 2 * n2 + h; f = (n >> 2) * 8 + tt * 4 + (n & 3)
                    x = A(XE + 4 * (tt * 4 + 2 * (n2 - 6 - KS) + h)) if n2 >= 8 else A(X1R(f)) if pas == 0 else V(X2 + 4 * f)
                    d = V(OACC + c * 16 + tt * 8 + nt * 4)
                    M.append(MF(d, A(WR0 + ((i & 3) * 4 + nt * 2 + h) * 4), x, "0" if n == 0 else d))
    ph = Phase(k, M); ph.thin = True; ph.batch = 9
    first2 = 8 * min(i for i, st in enumerate(ST) if piece(st) >= 2)
    Z0 = min(EV("Z0", 102), first2 - 14)
    short = var == "odd" and KS > 0
    ZC = EV("ZC", 92 if short else 102)
    ph.put("x", g.bar(["wo1"], False), 34)
    if ZC == Z0: ph.put("x", g.bar(["wo2", "wo3", "wo4", "ctx"], False), Z0)
    else: ph.put("x", g.bar(["wo2"], False), Z0); ph.put("x", g.bar(["wo3", "ctx"], False), ZC)
    st4 = 3 if var == "even" and KS else 4
    gx = ph.stream(wodma(g, 2), 0, None, step=4, sid=940)
    gxe = 4
    if var == "even" and KS:
        gxe = ph.stream(items(f"""s_add_u32 s{sKEY}, s{sXC}, {4 << 13}
        s_xor_b32 s{sKEY}, s{sKEY}, {3 << 13}
        s_xor_b32 s{sIDX}, s{sJ}, 3
        s_lshl_b32 s{sIDX}, s{sIDX}, 1
        s_and_b32 s{sB}, s{sW}, 1
        s_add_u32 s{sIDX}, s{sIDX}, s{sB}
        s_lshl_b32 s{sIDX}, s{sIDX}, 16
        s_lshr_b32 s{sB}, s{sW}, 1
        s_lshl_b32 s{sB}, s{sB}, 7
        s_add_u32 s{sIDX}, s{sIDX}, s{sB}""" + "".join(f"\nv_add_u32 v{OE+q}, {R4}, v{OA+q}" for q in range(4))), 0, sid=941)
        w4 = []
        for h in range(2): w4 += g.dma4(WO, [24, 25, 26, 27], (sW8, R4 + h * 4096), (sIDX, 524288 + h * 32768), "wo4")
        gx = ph.stream(w4, max(gx, 34) + 1, None, step=st4, sid=940)
        xe = []
        for u in range(4 - 2 * KS, 4):
            for tt in range(2): xe.append(("m", f"buffer_load_dwordx4 {A(XE + 4*(tt*4+u))}, v{vL2 if tt else 1}, {srd(WS)}, s{sKEY} offen offset:{u*1024}"))
        ph.stream(xe, gxe + 1, None, step=4, sid=941)
    gx = ph.stream(wodma(g, 3), max(gx, 34) + 1, None, step=st4, sid=940)
    CD = EV("CD", 80 if short else 90); CK = PB - EV("CK", 56 - 10 * KS if short else 56)
    g1 = ph.stream([("s", f"s_add_u32 s{sCFO}, s{sCFO}, 65536"), ("s", f"s_add_u32 s{sCFP}, s{sCFP}, 65536")] + xc_items(sT2), gxe + 1)
    g1 = ph.stream(g.flag_store(sCFO, ["ctx"]), CD)
    g1 = ph.stream([("m", f"buffer_load_dword v3, v4, {srd(WS)}, s{sCFP} offen {WT}")], CK - 30)
    ph.put("x", g.poll_check(3, 4, WS, f"s{sCFP}", "C2"), CK)
    xl2 = lambda a, b: sum((xload(1, (n >> 2) * 8 + tt * 4 + (n & 3)) for n in range(a, b) for tt in range(2)), [])
    g1 = ph.stream(xl2(0, 4), ZC + 1, None, step=3, sid=951)
    g1 = ph.stream(xl2(4, 8), max(g1, CK) + 1, None, step=EV("XST", 4), sid=951)
    g1 = ph.stream(xl2(8, 16), max(g1 + 1, PB - 6), None, step=5, sid=951)
    g2 = ph.stream(items(f"""v_lshrrev_b32 v{vCF}, 2, v2
    v_and_b32 v{vCB}, 3, v2
    v_lshlrev_b32 v{vPL}, 8, v{vCF}
    v_lshl_add_u32 v{vPL}, v{vCB}, 4, v{vPL}
    v_lshlrev_b32 v{vCB}, 3, v{vCB}
    v_lshl_add_u32 v{vCB}, v{vCF}, 6, v{vCB}
    v_lshlrev_b32 v{vCF}, 1, v{vCB}
    s_lshl_b32 s{sPC}, s2, 15
    s_lshl_b32 s{sB}, s{sW}, 6
    s_add_u32 s{sPC}, s{sPC}, s{sB}
    s_add_u32 s{sPC}, s{sPC}, {WS_P}
    s_and_b32 s{sTOK1}, s2, 31
    s_lshl_b32 s{sTOK1}, s{sTOK1}, 2
    s_add_u32 s{sTOK1}, s{sTOK1}, s{sW}
    s_lshl_b32 s{sTOK2}, s{sT2}, 7
    s_add_u32 s{sTOK2}, s{sTOK2}, s{sTOK1}
    s_lshl_b32 s{sB}, s{sT1}, 7
    s_add_u32 s{sTOK1}, s{sTOK1}, s{sB}
    s_lshl_b32 s{sB}, s{sTOK1}, 10
    s_lshl_b32 s{sC}, s{sTOK2}, 10"""), 60, sid=950)
    x1l = f"""buffer_load_dwordx2 v[{XR1}:{XR1+1}], v{vCB}, {srd(XS)}, s{sB} offen
    buffer_load_dwordx2 v[{XR1+2}:{XR1+3}], v{vCB}, {srd(XS)}, s{sB} offen offset:32
    """
    if SV == 1 and var == "odd": x1l = ""
    if SV and var == "even": x1l += f"""s_add_u32 s{sB}, s{sB}, 4096
    buffer_load_dwordx2 v[{XRB}:{XRB+1}], v{vCB}, {srd(XS)}, s{sB} offen
    buffer_load_dwordx2 v[{XRB+2}:{XRB+3}], v{vCB}, {srd(XS)}, s{sB} offen offset:32
    """
    g2 = ph.stream(items(x1l + f"""buffer_load_dwordx2 v[{XR2}:{XR2+1}], v{vCB}, {srd(XS)}, s{sC} offen
    buffer_load_dwordx2 v[{XR2+2}:{XR2+3}], v{vCB}, {srd(XS)}, s{sC} offen offset:32
    buffer_load_dwordx2 v[{WRR}:{WRR+1}], v{vCB}, {srd(WR_)}, 0 offen
    buffer_load_dwordx2 v[{WRR+2}:{WRR+3}], v{vCB}, {srd(WR_)}, 0 offen offset:32"""), max(g1 + 1, PB + 84), None, step=4, sid=950)
    gwr = g2
    its = []
    for (R, seg) in ((CB, 4), (SB, 3), (GA, 2), (GB, 5)):
        its += [("s", f"s_mov_b32 s{sXL}, {WS_MOD + seg*2048}"), ("m", f"buffer_load_dwordx4 {V(R)}, v{vCF}, {srd(WS)}, s{sXL} offen"), ("m", f"buffer_load_dwordx4 {V(R+4)}, v{vCF}, {srd(WS)}, s{sXL} offen offset:64")]
    if TK < 32 and var == "odd": its = its[:6] + pload(0, P1R) + its[6:]
    g2 = ph.stream(its, max(g2 + 1, PB + 130), None, step=3)
    if TK < 32 and var == "odd": g2 -= 24
    if SV == 2 and var == "odd":
        ph.stream(items(f"s_cmp_lt_u32 s{sW}, 2\ns_cselect_b32 s{sCND}, s{sPC}, {OOB - 0x100000}") + pload(0, P1R, 0, sCND), max(g2 + 1, PB + EV("P1G", 216)), None, step=4)
    elif not ((SV or TK < 32) and var == "odd"): ph.stream(pload(0, P1R), max(g2 + 1, PB + EV("P1G", 216)), None, step=4)
    kk = K(); unpack(kk, 48, WRR, 8)
    for i in range(8): kk(f"v_mul_f32 v{GW+i}, v{48+i}, v{CB+i}")
    kk(f"v_mul_f32 v{K0}, v48, v{SB}")
    for i in range(1, 8): kk(f"v_fmac_f32 v{K0}, v{48+i}, v{SB+i}")
    allred(kk, [K0], tmp=[19])
    gk = items("\n".join(kk.out))
    g3 = 0
    for c in range(4):
        done = 8 * max(i for i, st in enumerate(ST) if st[0] == 0 and st[1] == c) + 8
        g3 = ph.stream(epi(0, c), max(done + 6, g3 + 1)); assert g3 < PB + 32 * c - 2, g3
    for c in range(3): ph.stream(epi(1, c), PB + 128 + 32 * (c + 1) + 6)
    ph.stream(gk[:8], gwr + 40, sid=952)
    ph.stream(gk[8:], g2 + 30, PB + 244, sid=952)
    for i in range(2, len(ST)):
        lo = 8 * (i - 3)
        if ST[i][0] == 0:
            pc = piece(ST[i])
            lo = max(lo, [0, 35, Z0 + 1, ZC + 1, Z0 + 1][pc])
        ph.stream(oread(i, ST), lo, 8 * i - 5)
    if g.TS:
        n0 = g.nts
        ph.put("x", g.ts, PB - 1)
        for gp in (E_("TSO") or "").split(","):
            if gp: ph.put("x", lambda k: g.ts(k, True), int(gp))
    ph.emit()
    print("oproj", var, ": overloaded placements", ph.over, file=sys.stderr)

TK = int(E_("TK", "32"))
def oproj(g):
    k = g.k
    if KS or SV or TK < 32:
        st = k.save(); n0 = g.nts
        if TK < 32: k(f"s_cmp_ge_u32 s{sCND}, {TK}\ns_cbranch_scc1 L_op_odd")
        else: k("s_bitcmp1_b32 s2, 0\ns_cbranch_scc1 L_op_odd")
        oproj_phase(g, "even"); after(g, "even")
        k("s_branch L_op_join")
        k.restore(st); g.nts = n0
        k.label("L_op_odd")
        oproj_phase(g, "odd"); after(g, "odd")
        g.page("a")
        k.label("L_op_join")
    else: oproj_phase(g, "all"); after(g, "all"); g.page("a")

D1, D2, H1, H2, O1, O2, KEY1, KEY2 = 64, 80, 20, 24, 56, 60, 17, 18
def after(g, var):
    k = g.k
    TT = lambda: g.ts(force=True) if E_('TST') else None
    g.run(epi(1, 3))
    if E_("TSO"): g.ts(force=True)
    pm = 0xf << (4 * int(E_("PQC", "1"))); pm |= pm << 16
    k(f"s_mov_b32 s{sPM}, {pm:#x}\ns_mov_b32 s{sPM+1}, {pm:#x}")
    two = SV and var == "even"
    if two and SV == 2: k(f"s_cmp_ge_u32 s{sW}, 2\ns_cselect_b32 s{sCND}, s{sPC}, {OOB - 0x100000}"); g.run(pload(0, P1B, 1, sCND))
    elif two: g.run(pload(0, P1B, 1))
    for i in range(0, 32, 2): k(f"v_mov_b64 v[{P2R+i}:{P2R+i+1}], -1")
    k(f"s_mov_b64 exec, s[{sPM}:{sPM+1}]")
    g.run(pload(1, P2R))
    k("s_mov_b64 exec, -1")
    g.ts(force=bool(E_("TSO"))); TT()
    k("v_mov_b32 v100, 0x3f80\nv_mov_b32 v101, 0x3f800000")
    unpack(k, D2 + 8, XR2, 8)
    if SV == 1 and var == "odd":
        k(f"v_mov_b32 v{KEY1}, 0\ns_mov_b32 s{sTOK1}, {OOB >> 10}")
    else:
        slow, ok = k.lab("P1_slow"), k.lab("P1_ok")
        unpack(k, D1 + 8, XR1, 8)
        t = f"v_max_u32 v3, v{P1R}, v{P1R+1}\n"
        for i in range(2, 32, 2): t += f"v_max3_u32 v3, v3, v{P1R+i}, v{P1R+i+1}\n"
        k(t + f"v_cmp_eq_u32 vcc, -1, v3\ns_cbranch_vccnz {slow}")
        k.label(ok)
        k2 = K(); k2.nlab = 5000 + k.nlab * 20; k2.label(slow); g2 = type("g2", (), dict(k=k2, run=lambda self, its: [k2(it[1]) for it in its]))()
        part_wait(g2, 0, P1R); k2(f"s_branch {ok}")
        g.tail.append("\n".join(k2.out))
        token(g, P1R, XR1, D1, sTOK1, KEY1); token2(g, XR1, D1, H1, O1)
    if SV == 2 and var == "odd":
        token3(g, D1, H1, O1)
        k(f"""s_cmp_lt_u32 s{sW}, 2
        s_cselect_b32 s{sTOK1}, s{sTOK1}, {OOB >> 10}
        s_cselect_b32 s{sB}, -1, 0
        v_and_b32 v{KEY1}, s{sB}, v{KEY1}""")
    if two:
        HB, OB, KB = 104, 108, 103
        token3(g, D1, H1, O1)
        if SV == 2: k(f"s_cmp_lt_u32 s{sW}, 2\ns_cbranch_scc1 L_one")
        unpack(k, D1 + 8, XRB, 8)
        k(f"s_add_u32 s{sIDX}, s{sTOK1}, 4")
        part_wait(g, 0, P1B, 1)
        token(g, P1B, XRB, D1, sIDX, KB); token2(g, XRB, D1, HB, OB); token3(g, D1, HB, OB)
        k(f"v_cmp_gt_u32 vcc, v{KB}, v{KEY1}\ns_cbranch_vccz L_keep")
        k(f"v_mov_b32 v{KEY1}, v{KB}\ns_mov_b32 s{sB}, s{sTOK1}\ns_mov_b32 s{sTOK1}, s{sIDX}\ns_mov_b32 s{sIDX}, s{sB}")
        for i in range(4): k(f"v_mov_b32 v{H1+i}, v{HB+i}\nv_mov_b32 v{XR1+i}, v{XRB+i}\nv_swap_b32 v{O1+i}, v{OB+i}")
        k.label("L_keep")
        k(f"""s_lshl_b32 s{sB}, s{sIDX}, 10
        buffer_store_dwordx2 v[{OB}:{OB+1}], v{vCB}, {srd(OUT)}, s{sB} offen
        buffer_store_dwordx2 v[{OB+2}:{OB+3}], v{vCB}, {srd(OUT)}, s{sB} offen offset:32""")
        k.label("L_one")
    g.run(moe_loads(98, sPF)[:7])
    k(f"""s_lshl_b32 s{sB}, s{sW}, 2
    v_mov_b32 v47, s{sB}
    v_mov_b32 v102, 0
    s_lshl_b32 s{sB}, s2, 6
    s_add_u32 s{sB}, s{sB}, {WS_KEY}
    s_lshl_b32 s{sC}, s2, 11
    s_add_u32 s{sC}, s{sC}, {WS_CAND}""")
    g.ts()

def allred(k, regs, op="v_add_f32", tmp=None):
    for pat in ("quad_perm:[1,0,3,2]", "quad_perm:[2,3,0,1]", "row_half_mirror", "row_mirror"):
        for r in regs: k(f"{op}_dpp v{r}, v{r}, v{r} {pat} row_mask:0xf bank_mask:0xf")
    for sw in ("v_permlane16_swap_b32", "v_permlane32_swap_b32"):
        for r, t in zip(regs, tmp): k(f"v_mov_b32 v{t}, v{r}")
        for r, t in zip(regs, tmp): k(f"{sw} v{r}, v{t}")
        for r, t in zip(regs, tmp): k(f"{op} v{r}, v{r}, v{t}")
def unpack(k, dst, src, n):
    for i in range(n // 2):
        k(f"v_lshlrev_b32 v{dst+2*i}, 16, v{src+i}\nv_and_b32 v{dst+2*i+1}, 0xffff0000, v{src+i}")
def pack(k, dst, src, n):
    for i in range(n // 2): k(f"v_cvt_pk_bf16_f32 v{dst+i}, v{src+2*i}, v{src+2*i+1}")
def bf1(k, r): k(f"v_cvt_pk_bf16_f32 v{r}, v{r}, v{r}\nv_and_b32 v{r}, 0xffff0000, v{r}")

def sent_wait(g, regs, reload_items, name, sleep=2):
    k = g.k
    lp, ok = k.lab(name + "_l"), k.lab(name + "_ok")
    k(f"s_mov_b32 s{sD}, 0")
    k.label(lp)
    k("s_waitcnt vmcnt(0)")
    k(f"v_max_u32 v3, v{regs[0]}, v{regs[1]}")
    rest = regs[2:]
    for i in range(0, len(rest) - 1, 2): k(f"v_max3_u32 v3, v3, v{rest[i]}, v{rest[i+1]}")
    k(f"""v_cmp_eq_u32 vcc, -1, v3
    s_add_u32 s{sD}, s{sD}, 1
    s_cbranch_vccz {ok}
    s_cmp_ge_u32 s{sD}, {SPIN}
    s_cbranch_scc1 {ok}
    s_mov_b64 exec, vcc""")
    if sleep: k(f"s_sleep {sleep}")
    g.run(reload_items)
    k(f"s_branch {lp}")
    k.label(ok)
    k("s_mov_b64 exec, -1")
    k.vm = []

def part_wait(g, T12, R, nb=0):
    k = g.k
    lp, ok = k.lab("P2_l"), k.lab("P2_ok")
    k(f"s_mov_b32 s{sD}, 0")
    k.label(lp)
    k("s_waitcnt vmcnt(0)")
    for x in range(8): k(f"v_max_u32 v{48+x}, v{R+4*x}, v{R+4*x+1}\nv_max3_u32 v{48+x}, v{48+x}, v{R+4*x+2}, v{R+4*x+3}")
    k(f"""v_max3_u32 v3, v48, v49, v50
    v_max3_u32 v3, v3, v51, v52
    v_max3_u32 v3, v3, v53, v54
    v_max_u32 v3, v3, v55
    v_cmp_eq_u32 vcc, -1, v3
    s_add_u32 s{sD}, s{sD}, 1
    s_cbranch_vccz {ok}
    s_cmp_ge_u32 s{sD}, {SPIN}
    s_cbranch_scc1 {ok}
    s_sleep {E_("PSL", "1")}""")
    pl = pload(T12, R, nb)
    for x in range(8):
        sk = k.lab("P2_s")
        k(f"v_cmp_eq_u32 vcc, -1, v{48+x}\ns_cbranch_vccz {sk}\ns_and_b64 s[{sXB}:{sXB+1}], vcc, s[{sPM}:{sPM+1}]\ns_cselect_b64 exec, s[{sXB}:{sXB+1}], vcc")
        g.run(pl[2 * x:2 * x + 2])
        k("s_mov_b64 exec, -1")
        k.label(sk)
    k(f"s_branch {lp}")
    k.label(ok)
    k.vm = []

def token(g, PR, XR, D, sTOK, key):
    k = g.k; T = 48
    unpack(k, D, PR, 8)
    for x in range(1, 8):
        for i in range(8): k(f"v_dot2c_f32_bf16 v{D+i}, v{PR+4*x+(i>>1)}, v{100+(i&1)}")
    for i in range(0, 8, 2): k(f"v_pk_fma_f32 v[{D+i}:{D+i+1}], v[{D+i}:{D+i+1}], v[{GA+i}:{GA+i+1}], v[{D+8+i}:{D+9+i}]")
    pack(k, XR, D, 8); unpack(k, D, XR, 8)
    k(f"""v_pk_add_f32 v[{T}:{T+1}], v[{D}:{D+1}], v[{D+2}:{D+3}]
    v_pk_add_f32 v[{T+2}:{T+3}], v[{D+4}:{D+5}], v[{D+6}:{D+7}]
    v_pk_add_f32 v[{T}:{T+1}], v[{T}:{T+1}], v[{T+2}:{T+3}]
    v_add_f32 v{T}, v{T}, v{T+1}""")
    allred(k, [T], tmp=[T + 1])
    k(f"v_mul_f32 v{T}, {H(-1/512)}, v{T}")
    for i in range(0, 8, 2): k(f"v_pk_add_f32 v[{D+8+i}:{D+9+i}], v[{D+i}:{D+i+1}], v[{T}:{T+1}] op_sel_hi:[1,0]")
    k(f"v_pk_mul_f32 v[{T+2}:{T+3}], v[{D+8}:{D+9}], v[{D+8}:{D+9}]\nv_pk_mul_f32 v[{T+4}:{T+5}], v[{D+8}:{D+9}], v[{GW}:{GW+1}]")
    for i in range(2, 8, 2):
        k(f"v_pk_fma_f32 v[{T+2}:{T+3}], v[{D+8+i}:{D+9+i}], v[{D+8+i}:{D+9+i}], v[{T+2}:{T+3}]")
        k(f"v_pk_fma_f32 v[{T+4}:{T+5}], v[{D+8+i}:{D+9+i}], v[{GW+i}:{GW+i+1}], v[{T+4}:{T+5}]")
    k(f"v_add_f32 v{T+2}, v{T+2}, v{T+3}\nv_add_f32 v{T+4}, v{T+4}, v{T+5}")
    allred(k, [T + 2, T + 4], tmp=[T + 3, T + 5])
    k(f"""v_mov_b32 v{T}, {H(1e-5)}
    v_fmac_f32 v{T}, {H(1/512)}, v{T+2}
    v_rsq_f32 v{T}, v{T}
    v_fma_f32 v{T+4}, v{T+4}, v{T}, v{K0}
    v_ashrrev_i32 v{T+5}, 31, v{T+4}
    v_or_b32 v{T+5}, 0x80000000, v{T+5}
    v_xor_b32 v{T+5}, v{T+5}, v{T+4}
    v_and_b32 v{T+5}, 0xfffff800, v{T+5}
    v_or_b32 v{key}, s{sTOK}, v{T+5}""")
def token2(g, XR, D, HP, OP):
    k = g.k; T = 48
    for i in range(0, 8, 2): k(f"v_pk_mul_f32 v[{D+8+i}:{D+9+i}], v[{D+8+i}:{D+9+i}], v[{T}:{T+1}] op_sel_hi:[1,0]")
    for i in range(0, 8, 2): k(f"v_pk_fma_f32 v[{D+8+i}:{D+9+i}], v[{D+8+i}:{D+9+i}], v[{CB+i}:{CB+i+1}], v[{SB+i}:{SB+i+1}]")
    pack(k, HP, D + 8, 8)
def token3(g, D, HP, OP):
    k = g.k
    unpack(k, D + 8, HP, 8)
    for i in range(0, 8, 2): k(f"v_pk_mul_f32 v[{D+8+i}:{D+9+i}], v[{D+8+i}:{D+9+i}], v[{GB+i}:{GB+i+1}]")
    pack(k, OP, D + 8, 8); unpack(k, D + 8, OP, 8)
    for i in range(0, 8, 2): k(f"v_pk_add_f32 v[{D+8+i}:{D+9+i}], v[{D+8+i}:{D+9+i}], v[{D+i}:{D+i+1}]")
    pack(k, OP, D + 8, 8)

def tail(g):
    k = g.k
    TT = lambda: g.ts(force=True) if E_('TST') else None
    GU, WDF = 160, [192 + i for i in range(64)]
    ml = moe_loads(98, sPF)
    part_wait(g, 1, P2R)
    g.ts(); TT()
    token(g, P2R, XR2, D2, sTOK2, KEY2)
    TT()
    k(f"""v_max3_u32 v19, v{KEY1}, v{KEY2}, 1
    ds_write_b32 v47, v19
    s_waitcnt lgkmcnt(0)
    s_barrier
    ds_read_b128 v[52:55], v102""")
    token2(g, XR2, D2, H2, O2)
    k(f"""v_max_u32 v52, v52, v53
    v_max3_u32 v52, v52, v54, v55
    v_cmp_eq_u32 vcc, v52, v19
    s_cbranch_vccz L_notbest
    buffer_store_dword v19, v5, {srd(WS)}, s{sB} offen {WT}
    v_cmp_gt_u32 vcc, v{KEY1}, v{KEY2}""")
    for i in range(4): k(f"v_cndmask_b32 v{28+i}, v{H2+i}, v{H1+i}, vcc\nv_cndmask_b32 v{40+i}, v{XR2+i}, v{XR1+i}, vcc")
    for i in range(4): k(f"v_min_u32 v{28+i}, -2, v{28+i}\nv_min_u32 v{40+i}, -2, v{40+i}")
    k(f"""buffer_store_dwordx4 v[28:31], v1, {srd(WS)}, s{sC} offen {WT}
    buffer_store_dwordx4 v[40:43], v1, {srd(WS)}, s{sC} offen offset:1024 {WT}""")
    k.vm = k.vm[:-3]
    k.label("L_notbest")
    TT()
    g.run(ml[7:])
    if not SV: token3(g, D1, H1, O1)
    token3(g, D2, H2, O2)
    k(f"""v_lshlrev_b32 v4, 6, v0
    s_mov_b32 s{sKEY}, {WS_KEY}
    s_mov_b32 s{sD}, 0""")
    g.page("b")
    k.label("L_kl")
    k(f"""buffer_load_dword v3, v4, {srd(WS)}, s{sKEY} offen {WT}
    s_add_u32 s{sD}, s{sD}, 1
    s_waitcnt vmcnt(0)
    v_cmp_eq_u32 vcc, 0, v3
    s_cbranch_vccz L_kd
    s_cmp_ge_u32 s{sD}, {SPIN}
    s_cbranch_scc1 L_kd
    s_mov_b64 exec, vcc
    s_sleep {E_("KSL", "2")}
    s_branch L_kl""")
    k.label("L_kd")
    k("s_mov_b64 exec, -1")
    TT()
    allred(k, [3], op="v_max_u32", tmp=[19])
    k(f"""ds_write_b32 v47, v3 offset:64
    s_waitcnt lgkmcnt(0)
    s_barrier
    ds_read_b128 v[52:55], v102 offset:64
    v_lshlrev_b32 v4, 2, v0
    v_max_u32 v52, v52, v53
    v_max3_u32 v52, v52, v54, v55
    v_readfirstlane_b32 s{sKEY}, v52
    s_and_b32 s{sIDX}, s{sKEY}, 2047
    s_lshr_b32 s{sB}, s{sIDX}, 7
    s_sub_u32 s{sC}, 15, s{sB}
    s_min_u32 s{sB}, s{sB}, s{sC}
    s_lshl_b32 s{sB}, s{sB}, 16
    s_and_b32 s{sC}, s{sIDX}, {1026 if SV == 2 else 1024}
    s_cmp_eq_u32 s{sC}, {2 if SV == 2 else 0}
    s_cselect_b32 s{sCND}, {30 if SV else 31}, 31
    s_lshr_b32 s{sC}, s{sIDX}, 2
    s_and_b32 s{sCND}, s{sCND}, s{sC}
    s_lshl_b32 s{sCND}, s{sCND}, 2
    s_lshl_b32 s{sCND}, s{sCND}, 9
    s_add_u32 s{sCND}, s{sCND}, s{sB}
    s_add_u32 s{sCND}, s{sCND}, {WS_CAND}""")
    hl = [("m", f"buffer_load_dword v19, v4, {srd(WS)}, s{sCND} offen {WT}")]
    g.run(hl)
    g.ts(); TT()
    for (sT, O) in ((sTOK1, O1), (sTOK2, O2)):
        k(f"""s_lshl_b32 s{sB}, s{sT}, 10
        s_cmp_eq_u32 s{sT}, s{sIDX}
        s_cselect_b32 s{sB}, {OOB}, s{sB}
        buffer_store_dwordx2 v[{O}:{O+1}], v{vCB}, {srd(OUT)}, s{sB} offen {E_("OP", "")}
        buffer_store_dwordx2 v[{O+2}:{O+3}], v{vCB}, {srd(OUT)}, s{sB} offen offset:32 {E_("OP", "")}""")
    k(f"s_cmp_ge_u32 s{sCG}, 224\ns_cbranch_scc1 L_nprod")
    lp, ok = "L_hl", "L_hok"
    unpack(k, GU, MG, 32)
    k(f"s_mov_b32 s{sD}, 0\ns_waitcnt vmcnt(4)")
    k.label(lp)
    k(f"""v_cmp_eq_u32 vcc, -1, v19
    s_add_u32 s{sD}, s{sD}, 1
    s_cbranch_vccz {ok}
    s_cmp_ge_u32 s{sD}, {SPIN}
    s_cbranch_scc1 {ok}""")
    g.run(hl)
    k(f"s_waitcnt vmcnt(0)\ns_branch {lp}")
    k.label(ok)
    TT()
    k(f"v_lshlrev_b32 v48, 16, v19\nv_and_b32 v50, 0xffff0000, v19")
    for m in range(2):
        for i in range(0, 8, 2):
            d = 64 + 8 * m + i
            k(f"v_pk_mul_f32 v[{d}:{d+1}], v[{GU+16*m+i}:{GU+16*m+i+1}], v[48:49] op_sel_hi:[1,0]")
    for m in range(2):
        for i in range(0, 8, 2):
            d = 64 + 8 * m + i
            k(f"v_pk_fma_f32 v[{d}:{d+1}], v[{GU+16*m+8+i}:{GU+16*m+8+i+1}], v[50:51], v[{d}:{d+1}] op_sel_hi:[1,0,1]")
    k(g.red16(64))
    k(f"""v_and_b32 v50, 15, v2
    v_cmp_eq_u32 vcc, 0, v50
    v_mov_b32 v51, 1024
    v_cndmask_b32 v51, v51, v0, vcc
    ds_write_b128 v51, v[64:67] offset:256
    v_lshlrev_b32 v50, 2, v50
    s_waitcnt lgkmcnt(0)
    s_barrier
    s_cmp_lg_u32 s{sW}, 0
    s_cbranch_scc1 L_nprod
    ds_read_b32 v64, v50 offset:256
    ds_read_b32 v65, v50 offset:320
    ds_read_b32 v66, v50 offset:384
    ds_read_b32 v67, v50 offset:448
    v_cmp_gt_u32 vcc, 8, v2
    v_mov_b32 v51, {OOB}
    v_cndmask_b32 v51, v51, v50, vcc
    s_lshl_b32 s{sB}, s{sCG}, 6
    s_add_u32 s{sB}, s{sB}, {WS_ACT}
    v_add_f32 v64, v64, v65
    v_add_f32 v66, v66, v67
    v_add_f32 v64, v64, v66""")
    bf1(k, 64)
    k(f"""v_mov_b32_dpp v65, v64 row_ror:8 row_mask:0xf bank_mask:0xf
    v_mul_f32 v66, {H(-LOG2E)}, v64
    v_exp_f32 v66, v66
    v_add_f32 v66, 1.0, v66
    v_rcp_f32 v66, v66
    v_mul_f32 v64, v64, v66""")
    bf1(k, 64)
    k("v_mul_f32 v64, v64, v65")
    bf1(k, 64)
    k(f"buffer_store_dword v64, v51, {srd(WS)}, s{sB} offen {WT}")
    k.label("L_nprod")
    k.vm = []; k.lg = []
    TT()
    k(f"s_cmp_ge_u32 s{sC2}, 64\ns_cbranch_scc1 L_fin")
    k(f"""v_lshlrev_b32 v4, 6, v0
    v_cmp_gt_u32 vcc, 224, v0
    v_mov_b32 v51, {OOB}
    v_cndmask_b32 v4, v51, v4, vcc
    s_mov_b32 s{sB}, {WS_ACT}
    v_and_b32 v52, 7, v2
    s_lshl_b32 s{sC}, s{sC2}, 3
    v_add_u32 v52, s{sC}, v52            ; column
    v_lshrrev_b32 v53, 5, v52
    v_lshlrev_b32 v53, 6, v53
    v_and_b32 v54, 12, v52
    v_lshl_add_u32 v53, v54, 2, v53
    v_bfe_u32 v54, v52, 4, 1
    v_lshl_add_u32 v53, v54, 3, v53
    v_and_b32 v54, 2, v52
    v_lshl_add_u32 v53, v54, 1, v53
    v_lshlrev_b32 v54, 2, v52
    s_mov_b32 s{sC}, {WS_MOD + 5*2048}
    buffer_load_dword v55, v54, {srd(WS)}, s{sC} offen""")
    al = [("m", f"buffer_load_dwordx4 v[80:83], v4, {srd(WS)}, s{sB} offen {WT}"), ("m", f"buffer_load_dwordx4 v[84:87], v4, {srd(WS)}, s{sB} offen offset:16 {WT}"),
          ("m", f"buffer_load_dword v88, v53, {srd(WS)}, s{sCND} offen {WT}"), ("m", f"buffer_load_dword v89, v53, {srd(WS)}, s{sCND} offen offset:1024 {WT}")]
    g.run(al[2:])
    unpack(k, WDF[0], MD, 64)
    k(f"""s_and_b32 s{sC}, s{sKEY}, 0xfffff800
    s_or_b32 s{sC}, s{sC}, 0x400
    v_mov_b32 v90, s{sC}
    v_not_b32 v91, v90
    v_ashrrev_i32 v91, 31, v91
    v_or_b32 v91, 0x80000000, v91
    v_xor_b32 v90, v90, v91""")
    bf1(k, 90)
    k(f"""v_mul_f32 v90, {H(-LOG2E)}, v90
    v_exp_f32 v90, v90
    v_add_f32 v90, 1.0, v90
    v_rcp_f32 v90, v90""")
    bf1(k, 90)
    sent_wait(g, [88, 89], al[2:], "CND", sleep=1)
    k(f"""v_and_b32 v51, 1, v52
    v_cmp_eq_u32 vcc, 0, v51
    v_lshlrev_b32 v91, 16, v88
    v_and_b32 v88, 0xffff0000, v88
    v_cndmask_b32 v88, v88, v91, vcc
    v_lshlrev_b32 v91, 16, v89
    v_and_b32 v89, 0xffff0000, v89
    v_cndmask_b32 v89, v89, v91, vcc
    v_and_b32 v50, 15, v2
    v_cmp_eq_u32 vcc, 0, v50
    v_lshrrev_b32 v51, 1, v0
    v_mov_b32 v50, 1024
    v_cndmask_b32 v51, v50, v51, vcc
    v_and_b32 v50, 7, v2
    v_lshlrev_b32 v50, 2, v50
    v_cmp_gt_u32 vcc, 8, v2
    v_lshlrev_b32 v52, 1, v52
    v_mov_b32 v53, {OOB}
    v_cndmask_b32 v52, v53, v52, vcc""")
    k(f"""s_cmp_lt_u32 s{sCG}, 224
    s_cbranch_scc1 L_asl
    s_sleep {E_('ASL7', '16')}""")
    k.label("L_asl")
    k(f"s_sleep {E_('ASL', '7')}")
    g.run(al[:2])
    TT()
    sent_wait(g, list(range(80, 88)), al[:2], "ACT", sleep=int(E_("ASL2", "2")))
    TT()
    for r in range(8):
        for i in range(0, 8, 2):
            w = WDF[8 * r + i]; a = 80 + (r & ~1); sel = r & 1
            if r == 0: k(f"v_pk_mul_f32 v[{64+i}:{65+i}], v[{w}:{w+1}], v[{a}:{a+1}] op_sel_hi:[1,0]")
            else: k(f"v_pk_fma_f32 v[{64+i}:{65+i}], v[{w}:{w+1}], v[{a}:{a+1}], v[{64+i}:{65+i}] op_sel:[0,{sel},0] op_sel_hi:[1,{sel},1]")
    for i in range(4): k(f"v_permlane32_swap_b32 v{64+i}, v{68+i}")
    for i in range(4): k(f"v_add_f32 v{64+i}, v{64+i}, v{68+i}")
    for i in range(2): k(f"v_permlane16_swap_b32 v{64+i}, v{66+i}")
    for i in range(2): k(f"v_add_f32 v{64+i}, v{64+i}, v{66+i}")
    for pat in ("quad_perm:[1,0,3,2]", "quad_perm:[2,3,0,1]", "row_half_mirror", "row_mirror"):
        for i in range(2): k(f"v_add_f32_dpp v{64+i}, v{64+i}, v{64+i} {pat} row_mask:0xf bank_mask:0xf")
    k(f"""ds_write_b64 v51, v[64:65] offset:2048
    s_waitcnt lgkmcnt(0)
    s_barrier
    s_cmp_lg_u32 s{sW}, 0
    s_cbranch_scc1 L_fin
    ds_read_b32 v64, v50 offset:2048
    ds_read_b32 v65, v50 offset:2080
    ds_read_b32 v66, v50 offset:2112
    ds_read_b32 v67, v50 offset:2144
    s_lshl_b32 s{sB}, s{sIDX}, 10
    v_add_f32 v64, v64, v65
    v_add_f32 v66, v66, v67
    v_add_f32 v64, v64, v66""")
    bf1(k, 64)
    k("v_mul_f32 v64, v64, v90"); bf1(k, 64)
    k("v_add_f32 v64, v64, v88"); bf1(k, 64)
    k("v_mul_f32 v64, v64, v55"); bf1(k, 64)
    k(f"""v_add_f32 v64, v64, v89
    v_cvt_pk_bf16_f32 v64, v64, v64
    buffer_store_short v64, v52, {srd(OUT)}, s{sB} offen""")

def verify_all(lines):
    tot = 0
    for name, (n1, n2, slow) in {"p0": (0, 15, False), "p3": (3, 12, False), "p1": (1, 14, True), "redo0": (0, 15, False), "redo3": (3, 12, False)}.items():
        def decide(lab, c):
            if lab == "L_op_odd": return name in ("p3", "p1")
            if lab.endswith("_redo"): return name.startswith("redo")
            if lab.endswith("_max"): return c == 0
            if lab.endswith("_mk"): return n1 == 0
            if lab.endswith("_maxd"): return c >= min(2, n1 if "t1" in lab else n2)
            if lab == "L_t1_zero": return n1 == 0
            if lab == "L_t1_diag": return n1 == 1
            if lab == "L_t2_diag": return name == "p1"
            if lab == "L_t1_loop": return c % 2 < min(n1 - 2, 1)
            if lab == "L_t2_loop": return c % 3 < 2
            if "_slow" in lab and not lab.endswith("_l"): return slow
            if "_ok" in lab or lab in ("L_kd", "L_hok"): return (c >= 2) if slow and ("P2" in lab or "ACT" in lab or "CND" in lab or lab in ("L_kd", "L_hok")) else True
            if lab == "L_notbest": return slow
            if lab == "L_keep": return name == "p0"
            return False
        T = trace(lines, decide)
        e = verify(T)
        tot += len(e)
        print(f"verify {name}: {len(T)} instrs, {len(e)} problems", file=sys.stderr)
        for x in e[:12]: print("   ", x, file=sys.stderr)
    assert tot == 0
```

```python
import sys, os
sys.path.insert(0, os.path.dirname(os.path.abspath(__file__)))
from common import *
from gen_attn import *
from gen_tail import *

TSR = list(range(83, 96)) + ([76, 77, 78] if not E_('TSP') else [])
NTS = [dict(k=WUK, v=WUV, q=WQ, o=WO)[c] for c in E_('NTS', 'k')]
class G:
    def __init__(self):
        self.k = K(); self.tail = []
        self.TS = E_("TS"); self.nts = 0
    def ts(self, k=None, force=False):
        if not self.TS: return
        if (E_("TSP") or E_("TSO") or E_("TSA") or E_("TST")) and not force: return
        k = k or self.k
        n = self.nts; self.nts += 1
        assert n < len(TSR)
        k(f"{'s_memrealtime' if self.TS == 'r' else 's_memtime'} vcc\ns_waitcnt lgkmcnt(0)\ns_mov_b32 s{TSR[n]}, vcc_lo")
    def ts0(self):
        if not E_("TS0"): return
        self.n0 = getattr(self, "n0", 0) + 1
        self.k(f"s_memrealtime vcc\ns_waitcnt lgkmcnt(0)\nv_writelane_b32 v255, vcc_lo, {self.n0}")
    def poll_check(self, vreg, vaddr, sr, soff, name, target=None, sleep=4):
        def f(k):
            slow, back = k.lab(name + "_slow"), k.lab(name + "_ok")
            cmp_ = f"v_cmp_ne_u32 vcc, 0, v{vreg}" if target is None else f"v_cmp_le_u32 vcc, {target}, v{vreg}"
            k(f"{cmp_}\ns_cmp_eq_u64 vcc, -1\ns_cbranch_scc0 {slow}")
            k.label(back)
            self.tail.append(f"""{slow}:
    s_mov_b32 s{sD}, 0
{slow}_l:
    s_sleep {sleep}
    buffer_load_dword v{vreg}, v{vaddr}, {srd(sr)}, {soff} offen {WT}
    s_add_u32 s{sD}, s{sD}, 1
    s_waitcnt vmcnt(0)
    {cmp_}
    s_cmp_eq_u64 vcc, -1
    s_cbranch_scc1 {back}
    s_cmp_lt_u32 s{sD}, {SPIN}
    s_cbranch_scc1 {slow}_l
    s_branch {back}""")
        return f
    def dma4(self, sr, voffs, m0, so, tag, xor=False, nt=None):
        it = [("s", f"s_add_u32 m0, s{m0[0]}, {m0[1]}"), ("s", f"{'s_xor_b32' if xor else 's_add_u32'} s{sA}, s{so[0]}, {so[1]}")]
        for i in range(4):
            it.append(("m", f"buffer_load_dwordx4 v{voffs[i]}, {srd(sr)}, s{sA} offen offset:{i*1024} {NT if (sr in NTS if nt is None else nt) else ''} {E_('PJL', '')} lds", tag))
        return it
    def run(self, its):
        for it in its:
            if callable(it[1]): it[1](self.k)
            else: self.k(it[1], it[2] if len(it) > 2 else None)
    def bar(self, tags, lgkm0=True):
        def f(k):
            k.waitvm(tags, lgkm0)
            if not E_("NOBAR"): k("s_barrier")
        return f
    def page(self, key):
        if key not in E_("PG4", "ab"): return
        l = self.k.lab("pg")
        self.k(f"s_branch {l}"); self.k.out.append(".p2align 12"); self.k.label(l)
    def flag_store(self, so, tags):
        return [("x", lambda k: k.waitvm(tags)), ("m", f"buffer_store_dword v6, v5, {srd(WS)}, s{so} offen {WT}", "flag")]

    def startup(self):
        k = self.k
        if self.TS: k(f"{'s_memrealtime' if self.TS == 'r' else 's_memtime'} s[58:59]")
        k(f"""s_cmp_ge_u32 s2, 256
        s_cbranch_scc1 L_end
        s_load_dwordx16 s[64:79], s[0:1], 0
        s_load_dwordx16 s[80:95], s[0:1], 64
        s_getpc_b64 s[{sB}:{sC}]
        L_pf1:
        v_lshrrev_b32 v3, 6, v0
        v_and_b32 v2, 63, v0
        s_lshr_b32 s{sJ}, s2, 3
        s_mul_i32 s{sA}, s{sJ}, 24
        v_min_u32 v5, 5, v2
        v_mad_u32_u24 v5, v3, 6, v5
        v_add_u32 v5, s{sA}, v5
        v_lshlrev_b32 v5, 7, v5
        v_min_u32 v5, L_code_end-L_pf1, v5""")
        k(f"global_load_dword a255, v5, s[{sB}:{sC}]", "pf")
        k(f"""v_readfirstlane_b32 s{sW}, v3
        v_lshlrev_b32 v1, 4, v2
        s_and_b32 s{sX}, s2, 7
        s_and_b32 s{sJ}, s{sJ}, 3
        s_lshr_b32 s{sP}, s2, 5
        s_lshl_b32 s{sH}, s{sX}, 2
        s_add_u32 s{sH}, s{sH}, s{sJ}
        s_mov_b32 s{sT1}, s{sP}
        s_sub_u32 s{sT2}, 15, s{sP}
        v_lshrrev_b32 v3, 3, v2
        v_lshrrev_b32 v4, 4, v2
        v_and_b32 v5, 7, v2
        v_xor_b32 v5, v5, v4
        v_lshlrev_b32 v5, 4, v5
        v_lshl_add_u32 v16, v3, 10, v5
        v_xor_b32 v17, 64, v16
        v_add_u32 v17, {7168}, v17
        v_add_u32 v18, {2*7168}, v16
        v_add_u32 v19, {2*7168}, v17
        ; W (k-major): v20..23
        v_bfe_u32 v5, v2, 1, 3
        v_xor_b32 v5, v5, v4
        v_lshlrev_b32 v5, 5, v5
        v_and_b32 v6, 1, v2
        v_lshl_add_u32 v5, v6, 4, v5
        v_lshl_add_u32 v20, v4, 13, v5
        v_add_u32 v21, {31744}, v20
        v_xor_b32 v22, 128, v20
        v_add_u32 v22, {2*31744}, v22
        v_add_u32 v23, {31744}, v22
        s_lshl_b32 s{sW8}, s{sW}, 13
        s_lshl_b32 s{sW4}, s{sW}, 12
        s_lshl_b32 s{sXB}, s{sP}, 18
        s_lshl_b32 s{sA}, s{sW}, 16
        s_add_u32 s{sXB}, s{sXB}, s{sA}
        s_lshl_b32 s{sWB}, s{sW}, 17
        s_lshl_b32 s{sD}, s{sJ}, {int(E_("RJ", "0"))}
        s_xor_b32 s{sD}, s{sD}, s{sP}
        s_lshl_b32 s{sD}, s{sD}, {int(E_("RS", "3"))}
        s_and_b32 s{sD}, s{sD}, 7
        s_lshl_b32 s{sA}, s{sD}, 7
        s_add_u32 s{sXB}, s{sXB}, s{sA}
        s_lshl_b32 s{sA}, s{sD}, 19
        s_add_u32 s{sWB}, s{sWB}, s{sA}
        v_and_b32 v84, 7, v2
        v_lshrrev_b32 v65, 3, v0
        v_mul_u32_u24 v64, 24576, v65
        v_lshl_add_u32 v64, v84, 4, v64
        v_lshlrev_b32 v65, 3, v65
        v_lshrrev_b32 v85, 3, v2
        v_lshlrev_b32 v86, 10, v84
        v_lshl_add_u32 v86, v85, 4, v86
        s_lshl_b32 s{sB}, s{sH}, 8
        s_waitcnt lgkmcnt(0)""")
        def mk(s, p, n, off=None):
            if off is None: k(f"s_mov_b32 s{s}, s{PTR[p]}\ns_mov_b32 s{s+1}, s{PTR[p]+1}\ns_mov_b32 s{s+2}, {n}\ns_mov_b32 s{s+3}, 0x00020000")
            else: k(f"s_add_u32 s{s}, s{PTR[p]}, s{off}\ns_addc_u32 s{s+1}, s{PTR[p]+1}, 0\ns_sub_u32 s{s+2}, {n}, s{off}\ns_mov_b32 s{s+3}, 0x00020000")
        if E_("TS0"): k("v_writelane_b32 v255, s58, 0")
        self.ts0()
        mk(WUK, "wuk", 0x400000, sB); mk(CKV, "ckv", 2048 * 1024)
        self.run(self.wdma(0)); self.ts0(); self.run(self.xdma(0)); self.ts0()
        T0 = E_("T0", "")
        if "x" in T0:
            k(f"""v_lshlrev_b32 v96, 7, v2
            v_min_u32 v96, {15*128}, v96
            s_lshl_b32 s{sC}, s2, 13
            s_lshl_b32 s{sD}, s{sW}, 11
            s_add_u32 s{sC}, s{sC}, s{sD}""")
            k(f"buffer_load_dword a254, v96, {srd(CKV)}, s{sC} offen", "pf")
        if "k" in T0:
            k(f"""v_bfe_u32 v96, v2, 1, 4
            v_lshlrev_b32 v96, 13, v96
            v_lshl_add_u32 v96, v6, 7, v96
            s_lshl_b32 s{sC}, s{sP}, 19
            s_lshl_b32 s{sD}, s{sW}, 17
            s_add_u32 s{sC}, s{sC}, s{sD}""")
            k(f"buffer_load_dword a253, v96, {srd(WUK)}, s{sC} offen", "pf")
        mk(WM, "wmod", 512 * 6144); mk(CS, "c", 1024); mk(XS, "x", 2048 * 1024)
        mk(WS, "ws", WS_SIZE); mk(WUV, "wuv", 0x400000, sB); mk(WQ, "wq", 0x400000, sB); mk(DBG, "dbg", 256)
        k(f"""s_lshl_b32 s{sB}, s{sX}, 19
        s_lshl_b32 s{sD}, s{sJ}, 8
        s_add_u32 s{sB}, s{sB}, s{sD}""")
        mk(WO, "wo", 0x400000, sB)
        mk(WD_, "wd", 1792 * 1024); mk(OUT, "out", 2048 * 1024)
        k(f"s_mov_b64 s[{sPG}:{sPG+1}], s[{PTR['wg']}:{PTR['wg']+1}]\ns_mov_b64 s[{sPG+2}:{sPG+3}], s[{PTR['wu']}:{PTR['wu']+1}]")
        if self.TS: k(f"s_mov_b32 s{TSR[0]}, s58"); self.nts = 1
        mk(WR_, "wr", 1024)
        if E_("STOUCH", "1") == "1":
            k(f"s_load_dword s90, s[{DBG}:{DBG+1}], 64\ns_load_dword s91, s[{WS}:{WS+1}], 0x3f00")
        k(f"""s_lshl_b32 s{sVB}, s{sW}, 19
        s_and_b32 s{sB}, s{sWB}, {7 << 19}
        s_xor_b32 s{sVB}, s{sVB}, s{sB}
        s_lshr_b32 s{sB}, s{sP}, {int(E_("RV", "1"))}
        s_and_b32 s{sB}, s{sB}, {int(E_("RVM", "0"))}
        s_lshl_b32 s{sVX}, s{sB}, 12                ; column half order of the V projection
        s_lshl_b32 s{sB}, s{sB}, 7
        s_add_u32 s{sVB}, s{sVB}, s{sB}
        s_lshl_b32 s{sB}, s{sJ}, 1
        s_xor_b32 s{sB}, s{sB}, s{sP}
        s_and_b32 s{sB}, s{sB}, {int(E_("RQM", "0"))}
        s_lshl_b32 s{sQR}, s{sB}, 11                ; chunk order of the Q projection
        s_lshl_b32 s{sB}, s{sB}, 19
        s_lshl_b32 s{sQB}, s{sW}, 17
        s_add_u32 s{sQB}, s{sQB}, s{sB}
        s_lshl_b32 s{sKV}, s{sH}, 20
        s_add_u32 s{sKV}, s{sKV}, {WS_KV}
        s_lshl_b32 s{sB}, s{sP}, 17
        s_add_u32 s{sKVST}, s{sKV}, s{sB}
        s_lshr_b32 s{sB}, s{sW}, 1
        s_lshl_b32 s{sB}, s{sB}, 16
        s_add_u32 s{sKVST}, s{sKVST}, s{sB}
        s_and_b32 s{sB}, s{sW}, 1
        s_lshl_b32 s{sB}, s{sB}, 14
        s_add_u32 s{sKVST}, s{sKVST}, s{sB}
        s_add_u32 s{sKV}, s{sKV}, s{sW8}
        s_min_u32 s{sKp}, s{sT1}, 1
        s_lshl_b32 s{sKp}, s{sKp}, 16
        s_add_u32 s{sKp}, s{sKp}, s{sKV}
        s_sub_u32 s{sB}, s{sP}, 2
        s_lshl_b32 s{sEO}, s{sB}, 7
        s_lshl_b32 s{sB}, s{sB}, 3
        s_add_u32 s{sB}, s{sB}, s{sX}
        s_lshl_b32 s{sB}, s{sB}, 8
        s_mul_i32 s{sC}, s{sJ}, 12288
        s_add_u32 s{sB}, s{sB}, s{sC}
        s_add_u32 s{sB}, s{sB}, {WS_MODP}
        s_cmp_ge_u32 s{sP}, 2
        s_cselect_b32 s{sMODO}, s{sB}, {OOB}
        s_cselect_b32 s{sEO}, s{sEO}, {OOB}
        s_cmp_eq_u32 s{sW}, 0
        s_cselect_b32 s{sMODO}, s{sMODO}, {OOB}
        s_lshl_b32 s{sLNP}, s{sW}, 9
        s_add_u32 s{sLNP}, s{sLNP}, {WS_MODP}
        s_lshr_b32 s{sHST}, s2, 1
        s_lshl_b32 s{sHST}, s{sHST}, 14
        s_and_b32 s{sB}, s2, 1
        s_lshl_b32 s{sB}, s{sB}, 7
        s_add_u32 s{sHST}, s{sHST}, s{sB}
        s_add_u32 s{sHST}, s{sHST}, s{sW4}
        s_add_u32 s{sHST}, s{sHST}, {WS_H}
        s_lshl_b32 s{sHFO}, s2, 2
        s_add_u32 s{sHFO}, s{sHFO}, s{sW}
        s_lshl_b32 s{sHFO}, s{sHFO}, 6
        s_add_u32 s{sHFO}, s{sHFO}, {WS_HF}
        s_lshl_b32 s{sKFP}, s{sH}, 11
        s_add_u32 s{sKFP}, s{sKFP}, {WS_KVF}
        s_lshl_b32 s{sKFO}, s{sP}, 2
        s_add_u32 s{sKFO}, s{sKFO}, s{sW}
        s_lshl_b32 s{sKFO}, s{sKFO}, 6
        s_add_u32 s{sKFO}, s{sKFO}, s{sKFP}
        s_lshr_b32 s{sB}, s{sW}, 1
        s_sub_u32 s{sC}, 3, s{sB}
        s_and_b32 s{sA}, s{sW}, 1
        s_cselect_b32 s{sB}, s{sC}, s{sB}          ; row group projected by this wave
        s_lshl_b32 s{sH1}, s{sT1}, 2
        s_add_u32 s{sH1}, s{sH1}, s{sB}
        s_lshl_b32 s{sH2}, s{sT2}, 2
        s_add_u32 s{sH2}, s{sH2}, s{sB}
        s_sub_u32 s{sHFD}, s{sH2}, s{sH1}
        s_lshl_b32 s{sHFD}, s{sHFD}, 10
        s_lshl_b32 s{sHF1}, s{sH1}, 10
        s_add_u32 s{sHF1}, s{sHF1}, {WS_HF - 65536}
        s_lshl_b32 s{sH1}, s{sH1}, 15
        s_add_u32 s{sH1}, s{sH1}, {WS_H}
        s_add_u32 s{sH1}, s{sH1}, s{sQR}
        s_lshl_b32 s{sH2}, s{sH2}, 15
        s_add_u32 s{sH2}, s{sH2}, {WS_H}
        s_add_u32 s{sH2}, s{sH2}, s{sQR}
        s_add_u32 s{sVX}, s{sVX}, s{sKVST}
        {f"s_mov_b32 s{sVX}, 0x70000000" if E_("NOST") else ""}
        {f"s_mov_b32 s{sKVST}, 0x70000000" if E_("NOST") else ""}
        {f"s_mov_b32 s{sH1}, {WS_H}" if E_("NOH") else ""}
        {f"s_mov_b32 s{sH2}, {WS_H}" if E_("NOH") else ""}
        s_cmp_eq_u32 s{sW}, 0
        s_cselect_b32 s{sET}, 32, 0
        s_cselect_b32 s{sEP}, 0, {OOB}""")
        k(f"""v_and_b32 v48, 15, v2          ; i16
        v_lshrrev_b32 v49, 4, v2       ; q4
        v_lshrrev_b32 v50, 1, v48
        v_xor_b32 v50, v50, v49
        v_lshlrev_b32 v50, 4, v50
        v_lshl_add_u32 v28, v48, 7, v50
        v_add_u32 v28, s{sW8}, v28
        v_xor_b32 v29, 64, v28
        v_add_u32 v30, 65536, v28
        v_add_u32 v31, 65536, v29
        v_lshrrev_b32 v50, 2, v48     ; r
        v_and_b32 v51, 3, v48         ; c
        v_lshl_add_u32 v52, v49, 3, v50      ; row = 8q4 + r
        v_lshlrev_b32 v53, 8, v52
        v_lshl_add_u32 v53, v51, 3, v53
        v_add_u32 v53, {R3}, v53
        v_and_b32 v54, 1, v49
        v_lshl_add_u32 v54, v54, 2, v50      ; f""")
        for nt in range(8):
            k(f"v_xor_b32 v55, {nt}, v54\nv_lshl_add_u32 v{8+nt}, v55, 5, v53")
        k(f"""v_bfe_u32 v49, v2, 1, 2
        v_bfe_u32 v50, v2, 4, 1
        v_xor_b32 v49, v49, v50
        v_lshlrev_b32 v49, 5, v49
        v_and_b32 v50, 1, v2
        v_lshl_add_u32 v49, v50, 4, v49
        v_lshl_add_u32 v24, v85, 13, v49
        v_xor_b32 v25, 64, v24
        v_add_u32 v25, {64512}, v25
        v_add_u32 v26, {2*64512}, v24
        v_add_u32 v27, {2*64512}, v25
        v_cmp_eq_u32 vcc, 0, v2
        v_mov_b32 v6, {OOB}
        v_cndmask_b32 v5, v6, v2, vcc
        v_cmp_eq_u32 vcc, 0, v0
        v_cndmask_b32 v7, v6, v0, vcc
        v_and_b32 v48, 8, v2
        v_cmp_eq_u32 vcc, 0, v48
        v_lshlrev_b32 v48, 5, v84
        v_lshrrev_b32 v49, 1, v2
        v_and_b32 v49, 24, v49
        v_add_u32 v48, v48, v49
        s_lshl_b32 s{sB}, s{sW}, 8
        s_add_u32 s{sB}, s{sB}, {MISC}
        v_add_u32 v48, s{sB}, v48
        v_mov_b32 v49, {MISC + 1024}
        v_cndmask_b32 v98, v49, v48, vcc
        v_lshlrev_b32 v99, 5, v84
        v_add_u32 v99, {MISC + 2048}, v99
        s_lshl_b32 s{sB}, s{sW}, 3
        v_add_u32 v100, s{sB}, v99
        v_lshlrev_b32 v106, 5, v85
        v_lshlrev_b32 v107, 8, v85
        v_lshl_add_u32 v107, v84, 4, v107
        s_sub_u32 s{sB}, s2, 64
        s_lshl_b32 s{sZO}, s{sB}, 12
        s_add_u32 s{sZO}, s{sZO}, {WS_HF}
        s_cmp_lt_u32 s{sB}, 64
        s_cselect_b32 s{sZO}, s{sZO}, {OOB}
        s_mul_i32 s{sD}, s{sJ}, {128*6144}
        s_sub_u32 s{sSD}, s{sP}, 2
        s_lshl_b32 s{sSD}, s{sSD}, 3
        s_add_u32 s{sSD}, s{sSD}, s{sX}
        s_lshl_b32 s{sSD}, s{sSD}, 7
        s_add_u32 s{sSD}, s{sSD}, s{sD}
        s_cmp_ge_u32 s{sP}, 2
        s_cselect_b32 s{sSD}, s{sSD}, {OOB - 0x10000}
        {f"s_cmp_lt_u32 s{sP}, 4" if E_("NOLATE") else ""}
        {f"s_cselect_b32 s{sSD}, s{sSD}, {OOB - 0x10000}" if E_("NOLATE") else ""}
        s_lshl_b32 s{sB}, s{sJ}, 8
        v_add_u32 v65, s{sB}, v65
        v_mov_b32 v6, 1
        v_and_b32 v4, 1, v2
        v_lshlrev_b32 v4, 7, v4""")
        self.ts0()
        if E_("SIDE", "0") == "0": self.run(self.side())
        self.run(self.wdma(1) + self.xdma(1))
        self.ts0()
        if E_("TS0"):
            k.waitvm([("x", 0), ("w", 0)], True); self.ts0()
            k.waitvm(["pf"], True); self.ts0()
            k("s_waitcnt vmcnt(0)"); self.ts0()
            k(f"""s_lshl_b32 s{sB}, s2, 2
            s_add_u32 s{sB}, s{sB}, s{sW}
            s_lshl_b32 s{sB}, s{sB}, 6
            s_add_u32 s{sB}, s{sB}, {WS_TS}
            v_lshlrev_b32 v5, 2, v2
            s_mov_b64 exec, 0xffff
            buffer_store_dword v255, v5, {srd(WS)}, s{sB} offen
            s_endpgm""")

    def side(self):
        return items(f"""buffer_load_dwordx2 v[66:67], v65, {srd(CS)}, 0 offen
        buffer_load_dwordx4 v[68:71], v64, {srd(WM)}, s{sSD} offen {NT}
        s_add_u32 s{sSD}, s{sSD}, 6144
        buffer_load_dwordx4 v[72:75], v64, {srd(WM)}, s{sSD} offen {NT}
        s_add_u32 s{sSD}, s{sSD}, 6144
        buffer_load_dwordx4 v[76:79], v64, {srd(WM)}, s{sSD} offen {NT}
        s_add_u32 s{sSD}, s{sSD}, 6144
        buffer_load_dwordx4 v[80:83], v64, {srd(WM)}, s{sSD} offen {NT}
        s_lshl_b32 s{sSD}, s2, 5
        s_add_u32 s{sSD}, s{sSD}, s{sW}
        s_lshl_b32 s{sSD}, s{sSD}, 8
        buffer_load_dwordx4 v[88:91], v86, {srd(XS)}, s{sSD} offen {NT}
        buffer_load_dwordx4 v[92:95], v86, {srd(XS)}, s{sSD} offen offset:128 {NT}""")
    XR = [R0, R1, R2]
    WSL = [R3, R3 + 16384, R4]
    WQB = [R4, R3, R3 + 16384, MISC, R0, R0 + 16384, R1, R1 + 16384]
    VQB = [R2, R0, R1, R2]
    def xdma(self, s):
        it = []
        for g in range(2):
            it += self.dma4(CKV, [16, 17, 18, 19], (sW8, self.XR[s % 3] + g * 4096), (sXB, s * 128 + g * 32768), ("x", s), True)
        return it
    def wdma(self, s): return self.dma4(WUK, [20, 21, 22, 23], (sW4, self.WSL[s % 3]), (sWB, s * 64 * 8192), ("w", s), True)
    def qdma(self, c): return self.dma4(WQ, [20, 21, 22, 23], (sW4, self.WQB[c]), (sQB, c * 64 * 8192), ("q", c), True)
    def vdma(self, c):
        it = []
        for g in range(2):
            it += self.dma4(WUV, [24, 25, 26, 27], (sW8, self.VQB[c] + g * 4096), (sVB, (c >> 1) * 128 + (c & 1) * 256 * 8192 + g * 4 * 65536), ("v", c), True, c < int(E_("VNT", "0")))
        return it

    def modA(self):
        C, T, AC = 102, 108, 120
        t = f"""v_lshlrev_b32 v{C}, 16, v66
        v_and_b32 v{C+1}, 0xffff0000, v66
        v_lshlrev_b32 v{C+2}, 16, v67
        v_and_b32 v{C+3}, 0xffff0000, v67
        """
        for i in range(4): t += f"v_mul_f32 v{T+i}, {H(-LOG2E)}, v{C+i}\n"
        for i in range(4): t += f"v_exp_f32 v{T+i}, v{T+i}\n"
        for i in range(4): t += f"v_add_f32 v{T+i}, 1.0, v{T+i}\n"
        for i in range(4): t += f"v_rcp_f32 v{T+i}, v{T+i}\n"
        for i in range(4): t += f"v_mul_f32 v{C+i}, v{C+i}, v{T+i}\n"
        t += f"""v_cvt_pk_bf16_f32 v{T}, v{C}, v{C+1}
        v_cvt_pk_bf16_f32 v{T+1}, v{C+2}, v{C+3}
        v_lshlrev_b32 v{C}, 16, v{T}
        v_and_b32 v{C+1}, 0xffff0000, v{T}
        v_lshlrev_b32 v{C+2}, 16, v{T+1}
        v_and_b32 v{C+3}, 0xffff0000, v{T+1}
        """
        for r in range(4):
            for i in range(4):
                a, b = T + 2 * (i & 1), T + 2 * (i & 1) + 1
                op = "v_mul_f32" if r == 0 else "v_fmac_f32"
                t += f"""v_lshlrev_b32 v{a}, 16, v{68+4*r+i}
                v_and_b32 v{b}, 0xffff0000, v{68+4*r+i}
                {op} v{AC+2*i}, v{a}, v{C+r}
                {op} v{AC+2*i+1}, v{b}, v{C+r}
                """
        for i in range(4): t += f"v_permlane32_swap_b32 v{AC+i}, v{AC+4+i}\n"
        for i in range(4): t += f"v_add_f32 v{AC+i}, v{AC+i}, v{AC+4+i}\n"
        for i in range(2): t += f"v_permlane16_swap_b32 v{AC+i}, v{AC+2+i}\n"
        for i in range(2): t += f"v_add_f32 v{AC+i}, v{AC+i}, v{AC+2+i}\n"
        for i in range(2): t += f"v_add_f32_dpp v{AC+i}, v{AC+i}, v{AC+i} row_ror:8 row_mask:0xf bank_mask:0xf\n"
        t += f"ds_write_b64 v98, v[{AC}:{AC+1}]\n"
        return items(t)
    def red16(self, b):
        t = ""
        for i in range(8): t += f"v_permlane32_swap_b32 v{b+i}, v{b+8+i}\n"
        for i in range(8): t += f"v_add_f32 v{b+i}, v{b+i}, v{b+8+i}\n"
        for i in range(4): t += f"v_permlane16_swap_b32 v{b+i}, v{b+4+i}\n"
        for i in range(4): t += f"v_add_f32 v{b+i}, v{b+i}, v{b+4+i}\n"
        for pat in ("quad_perm:[1,0,3,2]", "quad_perm:[2,3,0,1]", "row_half_mirror", "row_mirror"):
            for i in range(4): t += f"v_add_f32_dpp v{b+i}, v{b+i}, v{b+i} {pat} row_mask:0xf bank_mask:0xf\n"
        return t
    def modB(self):
        it = items(f"""v_lshrrev_b32 v87, 2, v1
        v_add_u32 v101, {MISC}, v87
        ds_read_b32 v102, v101
        ds_read_b32 v103, v101 offset:256
        ds_read_b32 v104, v101 offset:512
        ds_read_b32 v105, v101 offset:768""")
        it2 = items(f"""v_add_f32 v102, v102, v103
        v_add_f32 v104, v104, v105
        v_add_f32 v102, v102, v104""")
        it2.append(("m", f"buffer_store_dword v102, v87, {srd(WS)}, s{sMODO} offen {WT}", "mod"))
        return it, it2
    def red8(self, v, t):
        return f"""v_add_f32_dpp v{v}, v{v}, v{v} row_ror:8 row_mask:0xf bank_mask:0xf
        v_mov_b32 v{t}, v{v}
        v_permlane16_swap_b32 v{v}, v{t}
        v_add_f32 v{v}, v{v}, v{t}
        v_mov_b32 v{t}, v{v}
        v_permlane32_swap_b32 v{v}, v{t}
        v_add_f32 v{v}, v{v}, v{t}
        """
    XH = 64
    def lnA(self):
        X = self.XH
        t = ""
        for i in range(8): t += f"v_lshlrev_b32 v{X+2*i}, 16, v{88+i}\nv_and_b32 v{X+2*i+1}, 0xffff0000, v{88+i}\n"
        t += f"v_add_f32 v108, v{X}, v{X+1}\nv_add_f32 v109, v{X+2}, v{X+3}\n"
        for i in range(4, 16, 2): t += f"v_add_f32 v108, v108, v{X+i}\nv_add_f32 v109, v109, v{X+i+1}\n"
        t += "v_add_f32 v108, v108, v109\n" + self.red8(108, 110)
        t += f"v_mul_f32 v108, {H(1/128)}, v108\n"
        t += f"v_sub_f32 v110, v{X}, v108\nv_mul_f32 v109, v110, v110\n"
        for i in range(1, 16): t += f"v_sub_f32 v{110+(i&1)}, v{X+i}, v108\nv_fmac_f32 v109, v{110+(i&1)}, v{110+(i&1)}\n"
        t += self.red8(109, 110)
        t += "ds_write_b64 v100, v[108:109]\n"
        return items(t)
    def lnB(self):
        X = self.XH
        it = items(f"""ds_read_b128 v[88:91], v99
        ds_read_b128 v[92:95], v99 offset:16""")
        t = f"""v_add_f32 v108, v88, v90
        v_add_f32 v109, v92, v94
        v_add_f32 v108, v108, v109
        v_mul_f32 v108, {H(0.25)}, v108
        v_add_f32 v109, v89, v91
        v_add_f32 v110, v93, v95
        v_add_f32 v109, v109, v110
        v_sub_f32 v88, v88, v108
        v_sub_f32 v90, v90, v108
        v_sub_f32 v92, v92, v108
        v_sub_f32 v94, v94, v108
        v_mul_f32 v110, v88, v88
        v_fmac_f32 v110, v90, v90
        v_fmac_f32 v110, v92, v92
        v_fmac_f32 v110, v94, v94
        v_fmac_f32 v109, {H(128.0)}, v110
        v_mov_b32 v110, {H(1e-5)}
        v_fmac_f32 v110, {H(1/512)}, v109
        v_rsq_f32 v110, v110
        """
        for i in range(16): t += f"v_sub_f32 v{X+i}, v{X+i}, v108\n"
        for i in range(16): t += f"v_mul_f32 v{X+i}, v{X+i}, v110\n"
        return it, items(t)
    def lnC_loads(self):
        it = items(f"""v_and_b32 v96, 31, v2
        v_lshlrev_b32 v96, 4, v96
        v_lshrrev_b32 v97, 5, v2
        v_lshl_add_u32 v96, v97, 11, v96""")
        ld = []
        for q in range(4):
            ld += [("m", f"buffer_load_dwordx4 v[{80+4*q}:{83+4*q}], v96, {srd(WS)}, s{sLNP} offen")]
            if q < 3: ld += [("s", f"s_add_u32 s{sLNP}, s{sLNP}, 12288")]
        return it, ld
    def lnC_fin(self):
        t = ""
        for e in range(4): t += f"v_add_f32 v{80+e}, v{80+e}, v{84+e}\nv_add_f32 v{88+e}, v{88+e}, v{92+e}\n"
        for e in range(4): t += f"v_add_f32 v{80+e}, v{80+e}, v{88+e}\n"
        rnd = lambda: "".join(f"v_cvt_pk_bf16_f32 v{84+e}, v{80+2*e}, v{81+2*e}\n" for e in range(2)) + "".join(f"v_lshlrev_b32 v{80+2*e}, 16, v{84+e}\nv_and_b32 v{81+2*e}, 0xffff0000, v{84+e}\n" for e in range(2))
        t += "v_lshrrev_b32 v88, 5, v2\nv_cvt_f32_u32 v88, v88\n" + rnd()
        for e in range(4): t += f"v_add_f32 v{80+e}, v{80+e}, v88\n"
        t += rnd()
        for e in range(4): t += f"v_mul_f32 v{80+e}, {H(QSCALE)}, v{80+e}\n"
        t += f"""s_lshl_b32 s{sLNP}, s{sW}, 10
        s_add_u32 s{sLNP}, s{sLNP}, {MISC + 4096}
        v_add_u32 v88, s{sLNP}, v1
        v_add_u32 v18, s{sLNP}, v18
        ds_write_b128 v88, v[80:83]
        """
        return items(t)
    def lnC_rd(self, i):
        return [("l", f"ds_read_b128 v[{80+seg*8+hf*4}:{83+seg*8+hf*4}], v18 offset:{seg*512 + i*256 + hf*16}") for seg in range(2) for hf in range(2)]
    def lnC(self, i):
        X = self.XH + 8 * i
        t = ""
        for e in range(8): t += f"v_fma_f32 v{X+e}, v{X+e}, v{88+e}, v{80+e}\n"
        t2 = ""
        for e in range(4): t2 += f"v_cvt_pk_bf16_f32 v{X+e}, v{X+2*e}, v{X+2*e+1}\n"
        return items(t), items(t2) + [("m", f"buffer_store_dwordx4 v[{X}:{X+3}], v19, {srd(WS)}, s{sHST} offen offset:{2048*i} {WT}", "hst")]

    WF, VACC, ACC = 32, 64, 128
    def proj(self):
        k = self.k; WF, VACC, ACC = self.WF, self.VACC, self.ACC
        M = []
        def kmajor(nk=16):
            for n in range(nk):
                for dt in range(8):
                    for tt in range(4):
                        d = V(ACC + (tt * 8 + dt) * 4)
                        M.append(MF(d, V(WF + 4 * dt), A((n * 4 + tt) * 4), "0" if n == 0 else d))
        kmajor()
        V0 = len(M)
        VST = [(pc, sh, q) for pc in range(4) for sh in range(2) for q in range(4)]
        for i, (pc, sh, q) in enumerate(VST):
            for nt in range(2):
                for tt in range(4):
                    for h in range(2):
                        n = (pc & 1) * 8 + 2 * q + h
                        d = V(VACC + (1 - sh) * 32 + (nt * 4 + tt) * 4)
                        M.append(MF(d, A((n * 4 + tt) * 4), V(WF + ((i & 1) * 4 + nt * 2 + h) * 4), "0" if n == 0 else d))
        Q0 = len(M)
        kmajor(13)
        QL = len(M); WX = {14: 24, 15: 64}
        QORD = [(u, tt) for u in range(4) for tt in (2, 3, 0, 1)]
        for (u, tt) in QORD:
            for dt in (2 * u, 2 * u + 1):
                for n in (13, 14, 15):
                    d = V(ACC + (tt * 8 + dt) * 4)
                    M.append(MF(d, V(WF + 4 * dt) if n == 13 else A(WX[n] + 4 * dt), A((n * 4 + tt) * 4), d))
        ph = Phase(k, M); N = len(M); ph.mspace = int(E_('MSP', '1')); ph.batch = int(E_('BAT', '9'))
        if E_('LAT', '0') == '1': ph.lat = (4, 2)
        ph.livein = {f'v{i}' for i in range(64, 96)}
        def wread(base, n, dt, ag=None):
            o = base + (n & 1) * 8192
            if ag is not None:
                return [("l", f"ds_read_b64_tr_b16 a[{ag+4*dt}:{ag+4*dt+1}], v{8+dt} offset:{o}"),
                        ("l", f"ds_read_b64_tr_b16 a[{ag+4*dt+2}:{ag+4*dt+3}], v{8+dt} offset:{o+1024}")]
            return [("l", f"ds_read_b64_tr_b16 v[{WF+4*dt}:{WF+4*dt+1}], v{8+dt} offset:{o}"),
                    ("l", f"ds_read_b64_tr_b16 v[{WF+4*dt+2}:{WF+4*dt+3}], v{8+dt} offset:{o+1024}")]
        def xread(n, tt):
            s = n >> 1; sl = s % 3
            va = (28 if sl < 2 else 30) + (n & 1)
            return ("l", f"ds_read_b128 {A((n*4+tt)*4)}, v{va} offset:{(sl if sl < 2 else 0)*32768 + tt*2048}")
        def vread(i, nt, h):
            pc, sh, q = VST[i]
            reg = self.VQB[pc]; va = 28 + 2 * sh + nt
            o = (reg if reg < R2 else 0) + (2 * q + h) * 4096
            f = WF + ((i & 1) * 4 + nt * 2 + h) * 4
            return [("l", f"ds_read_b64_tr_b16 v[{f}:{f+1}], v{va} offset:{o}"), ("l", f"ds_read_b64_tr_b16 v[{f+2}:{f+3}], v{va} offset:{o+512}")]
        BOFF = 40
        MPRE = E_("MPRE", "0")
        if MPRE != "0": self.run(self.modA())
        if MPRE == "2": self.run(self.lnA())
        k.waitvm([("x", 0), ("w", 0)], True); k("s_barrier")
        self.ts()
        for it in wread(self.WSL[0] - R3, 0, 0): k(it[1])
        for tt in range(4): k(xread(0, tt)[1])
        for dt in range(1, 8):
            for it in wread(self.WSL[0] - R3, 0, dt): k(it[1])
        for s in range(7): ph.put("x", self.bar([("x", s + 1), ("w", s + 1)]), 64 * s + BOFF)
        ph.put("x", self.bar([("v", 0)]), 64 * 7 + BOFF)
        BV = [V0 + 128 * c + 110 for c in range(4)]
        for c in range(3): ph.put("x", self.bar([("v", c + 1)]), BV[c])
        ph.put("x", self.bar([("q", i) for i in range(4)]), BV[3])
        BQ = Q0 + 64 * 3 + BOFF
        ph.put("x", self.bar([("q", i) for i in range(4, 8)]), BQ)
        BE = QL + 7
        ph.put("x", self.bar([]), BE)
        for (G0, bases) in ((0, [self.WSL[s % 3] - R3 for s in range(8)]), (Q0, [b - R3 if b >= R3 else b for b in self.WQB])):
            for n in range(0 if G0 else 1, 14 if G0 else 16):
                for dt in range(8):
                    lo = G0 + 32 * (n - 1) + 4 * dt + 4
                    if n == 0: lo = max(BV[3] + 1, [Q0 - 24, Q0 - 16, Q0 - 8, Q0][dt >> 1])
                    elif n % 2 == 0 and (G0 == 0 or n == 8): lo = max(lo, G0 + 32 * (n - 2) + BOFF + 1)
                    pre = []
                    if G0 and n == 8: pre = [("v", f"v_subrev_u32 v{8+dt}, {R3}, v{8+dt}")]; lo -= 1
                    g = ph.stream(pre + wread(bases[n >> 1], n, dt), lo, G0 + 32 * n + 4 * dt - 6)
                    if n % 2 == 1 and (G0 == 0 or n in (7, 13)): assert g < (G0 + 32 * (n - 1) + BOFF if n < 13 or not G0 else BE), (n, dt, g)
        gq = Q0 + 32 * 9 + 4
        for n in (14, 15):
            for dt in range(8):
                for it in wread(self.WQB[7], n, dt, WX[n]): gq = ph.put(it[0], it[1], gq + 3)
        assert gq < BE - 4, gq
        for i, (u, tt) in enumerate(QORD[:-1]):
            b = ACC + (tt * 8 + 2 * u) * 4
            g = ph.stream([("v", f"v_cvt_pk_bf16_f32 v{b+e}, v{b+2*e}, v{b+2*e+1}") for e in range(4)], QL + 6 * i + 9)
            ph.put("l", f"ds_write_b128 v{vMW}, {V(b)} offset:{(tt>>1)*R1 + ((tt&1)*4+u)*1024}", g + 1)
        self.qlast = QORD[-1]
        for n in range(1, 16):
            lo = 32 * (n - 1) + 2
            if n % 2 == 0: lo = 32 * (n - 2) + BOFF + 1
            gx = ph.stream([xread(n, tt) for tt in range(4)], lo, 32 * n - 6)
        vaddr = items(f"""v_and_b32 v16, 15, v2
        v_lshrrev_b32 v17, 4, v2
        v_lshrrev_b32 v29, 2, v16
        v_and_b32 v16, 3, v16
        v_lshl_add_u32 v28, v17, 3, v29
        v_lshlrev_b32 v28, 7, v28
        v_lshl_add_u32 v28, v16, 3, v28
        v_and_b32 v17, 1, v17
        v_lshrrev_b32 v29, 1, v29
        v_lshl_add_u32 v29, v17, 1, v29
        v_lshl_add_u32 v28, v29, 5, v28
        v_add_u32 v28, 65536, v28
        v_xor_b32 v29, 32, v28
        v_xor_b32 v30, 64, v28
        v_xor_b32 v31, 96, v28
        v_and_b32 v16, 15, v2
        v_lshlrev_b32 v16, 6, v16
        v_add_u32 v16, 65536, v16
        v_mad_i32_i24 v16, v17, s{sHFD}, v16
        v_and_b32 v17, 31, v2
        v_lshlrev_b32 v17, 6, v17""")
        g = ph.stream(vaddr, gx + 1)
        assert g <= 64 * 7 + BOFF + 6, g
        for i, (pc, sh, q) in enumerate(VST):
            g0 = V0 + 16 * i
            for nt in range(2):
                for h in range(2):
                    slot = (i & 1) * 4 + nt * 2 + h
                    if i < 2: lo = max(64 * 7 + BOFF + 1, V0 - 32 + 4 * slot + 4)
                    else: lo = g0 - 32 + 8 * nt + 8
                    if pc > 0: lo = max(lo, BV[pc - 1] + 1)
                    pre = []
                    if q == 0 and h == 0 and pc in (1, 3): pre = [("v", f"v_xor_b32 v{28+2*sh+nt}, 65536, v{28+2*sh+nt}")]; lo -= 1
                    g = ph.stream(pre + vread(i, nt, h), max(lo, gprev + 1) if (h and q == 0) else lo, g0 + 8 * nt - 4)
                    gprev = g
                    assert g < BV[pc], (i, g)
        first = self.wdma(2) + self.xdma(2)
        if E_("SIDE", "0") == "1": first = self.side() + first
        if E_("SIDE", "0") == "2": first = first + self.side()
        ph.stream(first, 0, BOFF - 1, sid=900)
        ph.stream(items("".join(f"s_mov_b32 s{d}, s{p}\ns_mov_b32 s{d+1}, s{p+1}\ns_mov_b32 s{d+2}, {512*3584}\n" for (d, p) in ((WG_, sPG), (WU_, sPG + 2)))), 120)
        for s in range(8):
            its = (self.wdma(s + 3) + self.xdma(s + 3)) if s < 5 else self.vdma(s - 5)
            if s == 7: its += self.qdma(0) + self.qdma(1)
            g = ph.stream(its, 64 * s + BOFF + 1, None, step=2 if s < 5 else 4, sid=900)
            assert g < (64 * (s + 1) + BOFF if s < 7 else BV[0]), (s, g)
        g = ph.stream(self.vdma(3) + self.qdma(2) + self.qdma(3), BV[0] + 1, None, step=5, sid=900); assert g < BV[1]
        ph.stream(self.qdma(4) + self.qdma(5), BV[1] + 1, None, step=6, sid=900)
        ph.stream(self.qdma(6) + self.qdma(7), BV[2] + 1, None, step=6, sid=900)
        m1, m2 = self.modB(); l1, l2 = self.lnB()
        zero = items(f"""v_mov_b32 v112, 0
        v_mov_b32 v113, 0
        v_mov_b32 v114, 0
        v_mov_b32 v115, 0
        v_lshlrev_b32 v116, 4, v0""") + [("m", f"buffer_store_dwordx4 v[112:115], v116, {srd(WS)}, s{sZO} offen {WT}", "zero")] + items(f"""v_min_u32 v116, 496, v116
        s_sub_u32 s{sZO}, s{sZO}, {WS_HF}
        s_lshr_b32 s{sZO}, s{sZO}, 3
        s_add_u32 s{sZO}, s{sZO}, {WS_LF}
        s_cmp_lt_u32 s{sZO}, {WS_LF + 0x8000}
        s_cselect_b32 s{sZO}, s{sZO}, {OOB}
        buffer_store_dwordx4 v[112:115], v116, {srd(WS)}, s{sZO} offen {WT}""", "zero")
        g = ph.stream(items(f"""v_lshlrev_b32 v117, 13, v2
        s_lshl_b32 s{sB}, s{sP}, 19
        s_and_b32 s{sC}, s{sW}, 1
        s_lshl_b32 s{sC}, s{sC}, 7
        s_add_u32 s{sB}, s{sB}, s{sC}"""), int(E_("TGS", "60")), sid=904)
        for w, gp in enumerate(int(x) for x in E_("TG", "102,166,230,294").split(",")):
            if E_("TM", "plain") == "none": continue
            first = f"buffer_load_dword a{240+2*w}, v117, {srd(WUV if w < 2 else WQ)}, s{sC} offen nt" if E_("TM", "plain") == "pair" else ""
            ph.put("x", f"""s_cmp_eq_u32 s{sW}, {w}
            s_cselect_b32 s{sC}, s{sB}, {OOB}
            {first}
            buffer_load_dword a{241+2*w}, v117, {srd(WUV if w < 2 else WQ)}, s{sC} offen offset:4""", gp, tag="pf")
        g = ph.stream(zero, BOFF + 10)
        if MPRE == "0":
            g = ph.stream(self.modA(), int(E_("MG", "41")), sid=901, dense=int(E_("MD", "2")))
            b1 = (g - BOFF) // 64 + 1
            g0 = g
            g = ph.stream(m1, 64 * b1 + BOFF + 1, sid=901, dense=1)
        else:
            b1 = 1; g0 = BOFF + 30
            g = ph.stream(m1, 0, sid=901, dense=1)
        ph.put("x", lambda k: k.waitvm(["zero"]), 64 * b1 + BOFF - 1)
        g = ph.stream(m2[:-1], g + 6, sid=901)
        g = ph.put("x", m2[-1][1], g, tag="mod")
        g = ph.put("x", lambda k: k.waitvm(["mod"]), max(g + int(E_("ED", "60")), 64 * b1 + BOFF + 1))
        ph.put("x", f"buffer_atomic_add v6, v7, {srd(DBG)}, s{sEO} offen sc1", g, tag="flag")
        if MPRE == "2": gl = ph.stream(l1, 30, sid=902); b2 = -1
        else:
            gl = ph.stream(self.lnA(), g0 + 1, sid=902)
            b2 = (gl - BOFF) // 64 + 1
            gl = ph.stream(l1, 64 * b2 + BOFF + 1, sid=902)
        gl = ph.stream(l2, gl + 8, sid=902)
        print("mod barrier", b1, "E at", g, "ln barrier", b2, "lnB end", gl, file=sys.stderr)
        a, ld = self.lnC_loads()
        gl = ph.stream(a, gl + 1, sid=902)
        gva = ph.stream(items("v_mov_b32 v18, v106\nv_mov_b32 v19, v107"), 64 * 5 + BOFF + 1, sid=902)
        PB = int(E_("PB", "5"))
        g = 64 * PB + BOFF
        assert gl < g + 30
        ph.put("x", f"buffer_load_dword v3, v4, {srd(DBG)}, s{sEP} offen {WT}", g - int(E_("PL", "50")))
        ph.put("x", self.poll_check(3, 4, DBG, f"s{sEP}", "E", target=f"s{sET}", sleep=int(E_("ESL", "20"))), g - 1)
        ph.stream(items(f"""s_lshl_b32 s{sZO}, s2, 6
        s_add_u32 s{sZO}, s{sZO}, {WS_LF}
        buffer_store_dword v6, v7, {srd(WS)}, s{sZO} offen {WT}""", "flag"), g + 20)
        g = max(g, gl)
        g = ph.stream(ld, g + 1, sid=902); assert g < V0 - 2
        g = ph.stream(self.lnC_fin(), max(g + int(E_("PL2", "50")), gva + 1), sid=902, dense=int(E_("FD", "1")))
        for i in range(2):
            g = ph.stream(self.lnC_rd(i), g + (6 if i == 0 else 1), sid=902)
            a, b = self.lnC(i)
            g = ph.stream(a, g + 6, sid=902)
            g2 = ph.stream(b, g + 1, sid=902)
        assert g2 < V0 + 60, g2
        print("h stored at", g2, file=sys.stderr)
        g = ph.stream(self.flag_store(sHFO, ["hst"]), g2 + 70)
        def epi(b, off, vtype=False):
            it = [("v", f"v_cvt_pk_bf16_f32 v{b+i}, v{b+2*i}, v{b+2*i+1}") for i in range(4)]
            it.append(("s", f"s_xor_b32 s{sEPI}, s{sVX if vtype else sKVST}, {off & ~4095}"))
            it.append(("m", f"buffer_store_dwordx4 {V(b)}, v1, {srd(WS)}, s{sEPI} offen offset:{off & 4095} {E_('KVP', WT)}", "kv"))
            return it
        ep = []
        K1, K2, K3 = int(E_("K1", "17")), int(E_("K2", "14")), int(E_("K3", "16"))
        kst = [8 + K1 * i for i in range(11)] + [322 + 22 * i for i in range(5)]
        for tt in range(4):
            for u in range(4): ep.append((V0 + kst[tt * 4 + u], epi(ACC + (tt * 8 + 2 * u) * 4, tt * 4096 + u * 1024), Q0 - 4))
        for c in range(4):
            done = V0 + [192, 256, 448, 512][c]
            for nt in range(2):
                for kbl in range(2):
                    i = nt * 2 + kbl
                    lo = done + 6 + K2 * i if c < 2 else max(done + 6, V0 + 454 + K3 * (4 * (c - 2) + i))
                    ep.append((lo, epi(VACC + (1 - (c & 1)) * 32 + (nt * 4 + 2 * kbl) * 4, 32768 + kbl * 8192 + (2 * c + nt) * 1024, True), done + 62 if c < 2 else Q0 + 148))
        if E_("DROPV"): ph.put("x", f"s_cmp_ge_u32 s{sP}, 2\ns_cselect_b32 s{sVX}, 0x70000000, s{sVX}", V0 + 400)
        ep.sort(key=lambda e: e[0])
        g = 0
        for (lo, its, dl) in ep:
            g = ph.stream(its, max(lo, g + 1)); assert g < dl
        g = ph.stream(self.flag_store(sKFO, ["kv"]), g + int(E_("KVD", "60")))
        print("kv flag at", g - Q0, file=sys.stderr)
        HG = V0 + 384
        g = ph.stream([("m", f"buffer_load_dword v3, v16, {srd(WS)}, s{sHF1} offen {WT}")], HG - 44)
        ph.put("x", self.poll_check(3, 16, WS, f"s{sHF1}", "H"), HG)
        g = HG + 1
        for n in range(16):
            for tt in range(4):
                lo = max(HG + 64 + 16 * ((n - 8) // 2 + 1) if n >= 8 else 0, HG + 1 + 7 * (n * 4 + tt))
                off = (tt & 1) * 16384 + n * 1024
                g = ph.stream([("s", f"s_xor_b32 s{sHLD}, s{sH1 + (tt >> 1)}, {off & ~2047}"),
                               ("m", f"buffer_load_dwordx4 {A((n*4+tt)*4)}, v1, {srd(WS)}, s{sHLD} offen offset:{off & 2047}")], max(lo, g + 1))
        g = ph.stream(moe_setup(), V0 + 20)
        a, ld = late_mod_loads(self, 112)
        g = ph.stream(a + items(f"""v_and_b32 v119, 3, v2
        v_lshlrev_b32 v119, 9, v119
        s_lshr_b32 s{sEO}, s2, 6
        s_add_u32 s{sEO}, s{sEO}, 4
        s_lshl_b32 s{sEO}, s{sEO}, 5
        s_bfe_u32 s{sET}, s2, {3 | (3 << 16)}
        s_add_u32 s{sEO}, s{sEO}, s{sET}
        s_lshl_b32 s{sEO}, s{sEO}, 6
        s_add_u32 s{sEO}, s{sEO}, {WS_LF}
        buffer_load_dword v118, v119, {srd(WS)}, s{sEO} offen {WT}"""), Q0 + 150, sid=903)
        g = ph.put("x", self.poll_check(118, 119, WS, f"s{sEO}", "E2"), g + 50)
        g = ph.stream(ld, g + 1, sid=903)
        g = ph.stream(late_mod_fin(self, 112), g + 60, sid=903)
        KG = int(E_("KG", "50"))
        g = ph.stream([("m", f"buffer_load_dword v3, v17, {srd(WS)}, s{sKFP} offen {WT}")], BQ + KG - 40)
        ph.put("x", self.poll_check(3, 17, WS, f"s{sKFP}", "KV"), BQ + KG)
        its = []
        for (lds, so, tag) in ((R2, (sKV, 0), "k0"), (R3, (sKV, 32768), "v0"), (R4, (sKp, 0), "k1")):
            for g2 in range(2):
                its += self.dma4(WS, [1, 1, 1, 1], (sW8, lds + g2 * 4096), (so[0], so[1] + g2 * 4096), tag)
        g = ph.stream(its, BQ + KG + 1, None, step=int(E_("KST", "4")), sid=900)
        as1, as2 = attn_setup(self)
        g2 = ph.stream(as1, Q0 + 160, sid=906)
        g3 = ph.stream(as2, max(g2, BQ + KG) + 1, sid=906)
        print("setup ends", g2, g3, file=sys.stderr)
        cl = cold_loads(120, sMODO2)
        nf = [i for i, it in enumerate(cl) if it[0] == "m"][0]
        g2 = ph.stream(cl[:nf], g2 + 1, sid=905)
        g = ph.stream(cl[nf:], max(g, g2) + 1, sid=905)
        print("cold loads end at", g, file=sys.stderr)
        CT = E_("CT", "123")
        if "2" in CT: ph.stream(code_touch("L_ct2", "L_attn", "L_code_end", 123, "a61", 6), g + 2)
        if "1" in CT: ph.stream(code_touch("L_ct1", "L_ct1", "L_attn", 119, "v119", 2), 418)
        if self.TS:
            ph.put("x", self.ts, V0 - 1); ph.put("x", self.ts, Q0 - 1)
            for gp in (E_("TSP") or "").split(","):
                if gp: ph.put("x", lambda k: self.ts(k, True), int(gp))
        ph.emit()
        print("proj: overloaded placements", ph.over, file=sys.stderr)
        self.ts()


def build(stop=None):
    g = G()
    k = g.k
    g.startup(); g.proj()
    k.label("L_attn")
    if stop != "proj":
        attention(g)
        if stop != "attn":
            oproj(g); tail(g)
    else:
        qdump(g)
    k.label("L_fin")
    if g.TS:
        if E_("TST"): g.ts(force=True)
        k("s_waitcnt vmcnt(0)"); g.ts(force=bool(E_("TST")))
        k(f"""s_lshl_b32 s{sB}, s2, 2
        s_add_u32 s{sB}, s{sB}, s{sW}
        s_lshl_b32 s{sB}, s{sB}, 6
        s_add_u32 s{sB}, s{sB}, {WS_TS}
        v_cmp_eq_u32 vcc, 0, v2
        v_mov_b32 v6, {OOB}
        s_nop 1
        v_cndmask_b32 v5, v6, v2, vcc""")
        if E_("TSX"): k(f"s_getreg_b32 s{TSR[12]}, hwreg(HW_REG_XCC_ID, 0, 4)\ns_getreg_b32 s{TSR[11]}, hwreg(HW_REG_HW_ID)")
        for n in range(g.nts):
            k(f"v_mov_b32 v4, s{TSR[n]}\nbuffer_store_dword v4, v5, {srd(WS)}, s{sB} offen offset:{4*n}")
        if E_("TSDBG"):
            k(f"s_cmp_eq_u32 s2, {E_('TSDBG')}\ns_cselect_b32 s{sB}, 0, {OOB}\ns_cmp_eq_u32 s{sW}, 0\ns_cselect_b32 s{sB}, s{sB}, {OOB}")
            for n in range(1, g.nts):
                k(f"s_sub_u32 s{sC}, s{TSR[n]}, s{TSR[0]}\nv_mov_b32 v4, s{sC}\nbuffer_store_dword v4, v5, {srd(DBG)}, s{sB} offen offset:{4*n}")
    if E_("SPINT"):
        n = int(E_("SPINT"))
        if E_("SPINW"): k(f"s_cmp_lg_u32 s2, {E_('SPINW')}\ns_cbranch_scc1 L_end")
        k(f"s_add_u32 s{sC}, s{TSR[n]}, 10000")
        k.label("L_spint")
        k(f"s_memrealtime vcc\ns_waitcnt lgkmcnt(0)\ns_sub_u32 s{sB}, vcc_lo, s{sC}\ns_cmp_lt_i32 s{sB}, 0\ns_cbranch_scc1 L_spint")
    k.label("L_end")
    k("s_endpgm")
    lines = k.out + "\n".join(g.tail).split("\n") + ["L_code_end:", "    s_endpgm"]
    lines, nn = fix_hazards(lines, report=bool(E_("NOPS")))
    print("nops inserted:", nn, file=sys.stderr)
    if E_("AL8", "0") == "1":
        lines, na, left = align8(lines)
        print("widened", na, "still misaligned", left, file=sys.stderr)
    hdr = open(os.path.join(HERE, "..", NAME + ".s.ref")).read().split("; Override launch geometry")[0]
    kn = NAME + "_kernel"
    text = hdr + f"""; @launch grid=(256,1,1) block=(256,1,1) lds=163840
.amdgcn_target "amdgcn-amd-amdhsa--gfx950"
.text
.globl {kn}
.p2align 8
.type {kn},@function
{kn}:
""" + "\n".join(lines) + f"""
.section .rodata,"a"
.p2align 6
.amdhsa_kernel {kn}
  .amdhsa_next_free_vgpr 512
  .amdhsa_next_free_sgpr 102
  .amdhsa_accum_offset 256
  .amdhsa_group_segment_fixed_size 0
  .amdhsa_kernarg_size 128
  .amdhsa_user_sgpr_count 2
  .amdhsa_user_sgpr_kernarg_segment_ptr 1
  .amdhsa_system_sgpr_workgroup_id_x 1
.end_amdhsa_kernel
"""
    return text, lines

if __name__ == "__main__":
    path = sys.argv[1] if len(sys.argv) > 1 else os.path.join(HERE, "..", NAME + ".s")
    text, lines = build(E_("STOP"))
    verify_all(lines)
    open(path, "w").write(text)
    print("wrote", path, len(text), file=sys.stderr)
```

```python
from common import *
O_, S_, MK, CI, P_, LA = 128, 96, 80, 64, 48, 32
vMW, vQR, vK, vV0, vV1, vT1, vT2, vPO, vSEN, ONE = 16, 17, 18, 19, 20, 21, 22, 23, 24, 28
Q1, KF, VF, Q2, PRE = 64, 128, 160, 192, 0
DESC = E_("DESC", "0") == "1"
BIG = 2.0 ** 100
LLO, LHI = 2.0 ** -64, 2.0 ** 80

def mask_items(dst, thr, grp):
    t = ""
    for qt in range(2):
        for kt in range(2):
            for r in range(4):
                d = dst + 8 * qt + 4 * kt + r
                c = 16 * kt + r - 16 * qt
                t += f"v_add_f32 v{d}, {H(-c * BIG) if c else '0'}, v{thr}\nv_min_f32 v{d}, v{d}, v{CI + (grp*2+qt)*4 + r}\n"
    return items(t)

def attn_setup(g):
    t = f"""s_and_b32 s{sB}, s{sW}, 1
    s_lshr_b32 s{sC}, s{sW}, 1
    s_lshl_b32 s{sVo}, s{sB}, 13
    s_add_u32 s{sVo}, s{sVo}, {R2}
    v_add_u32 v{vK}, s{sVo}, v1
    s_mul_i32 s{sVo}, s{sB}, 12288
    s_add_u32 s{sVo}, s{sVo}, {R3}
    v_add_u32 v{vV0}, s{sVo}, v1
    s_lshl_b32 s{sVo}, s{sB}, 12
    s_add_u32 s{sVo}, s{sVo}, {R3}
    v_add_u32 v{vV1}, s{sVo}, v1
    v_and_b32 v{vPO}, 15, v2
    v_lshrrev_b32 v{vSEN}, 4, v2
    v_lshlrev_b32 v{vSEN+1}, 2, v{vSEN}
    v_sub_u32 v{vSEN+1}, v{vPO}, v{vSEN+1}
    s_sub_i32 s{sVo}, s{sC}, s{sB}
    s_lshl_b32 s{sVo}, s{sVo}, 5
    v_add_u32 v{vT1}, s{sVo}, v{vSEN+1}
    s_add_u32 s{sVo}, s{sC}, s{sB}
    s_sub_i32 s{sVo}, 1, s{sVo}
    s_lshl_b32 s{sVo}, s{sVo}, 5
    v_add_u32 v{vT2}, s{sVo}, v{vSEN+1}
    v_cvt_f32_i32 v{vT1}, v{vT1}
    v_cvt_f32_i32 v{vT2}, v{vT2}
    v_add_f32 v{vT1}, 0.5, v{vT1}
    v_add_f32 v{vT2}, 0.5, v{vT2}
    v_mul_f32 v{vT1}, {H(BIG)}, v{vT1}
    v_mul_f32 v{vT2}, {H(BIG)}, v{vT2}
    v_lshrrev_b32 v{vSEN+1}, 2, v{vPO}
    v_and_b32 v{vPO}, 3, v{vPO}
    v_lshlrev_b32 v{vPO}, 6, v{vPO}
    v_lshl_add_u32 v{vPO}, v{vSEN+1}, 15, v{vPO}
    v_lshl_add_u32 v{vPO}, v{vSEN}, 4, v{vPO}
    s_lshl_b32 s{sPB}, s{sP}, 20
    s_lshl_b32 s{sVo}, s{sW}, 18
    s_add_u32 s{sPB}, s{sPB}, s{sVo}
    s_lshl_b32 s{sVo}, s{sH}, 10
    s_add_u32 s{sPB}, s{sPB}, s{sVo}
    s_add_u32 s{sPB}, s{sPB}, {WS_P}
    s_mov_b32 s{sN1}, s{sT1}
    s_mov_b32 s{sE}, 2
    s_mov_b32 s{sRedo}, 0
    s_mov_b32 s{sRPL}, 28
    s_mov_b32 s64, 128
    s_lshl_b32 s65, s{sJ}, {1 if E_('OROT', '1') == '1' else 31}
    s_and_b32 s65, s65, 7
    s_xor_b32 s65, s65, s{sW}
    s_lshl_b32 s65, s65, 16
    s_add_u32 s{sKm}, s{sW8}, {R2}
    s_add_u32 s{sVm}, s{sW8}, {R0}
    s_lshl_b32 s{sCLO}, s{sH}, 13
    s_lshl_b32 s{sVo}, s{sB}, 11
    s_add_u32 s{sCLO}, s{sCLO}, s{sVo}
    s_add_u32 s{sCLO}, s{sCLO}, {WS_CTX}
    s_sub_u32 s{sVo}, 3, s{sC}
    s_lshl_b32 s{sVo}, s{sVo}, 18
    s_add_u32 s{sCHI}, s{sCLO}, s{sVo}
    s_lshl_b32 s{sVo}, s{sC}, 18
    s_add_u32 s{sCLO}, s{sCLO}, s{sVo}
    s_add_u32 s{sCFO}, s{sHFO}, {WS_CF - WS_HF}
    s_and_b32 s{sCFP}, s2, {0xff & ~24}
    s_lshl_b32 s{sCFP}, s{sCFP}, 8
    s_sub_u32 s{sVo}, 3, s{sW}
    s_min_u32 s{sVo}, s{sVo}, s{sW}
    s_lshl_b32 s{sVo}, s{sVo}, 7
    s_add_u32 s{sCFP}, s{sCFP}, s{sVo}
    s_add_u32 s{sCFP}, s{sCFP}, {WS_CF}
    """
    t2 = f"""v_add_u32 v{vMW}, s{sW8}, v1
    v_and_b32 v{vQR}, {~8192 & 0xffffffff}, v{vMW}
    """
    for i in range(4): t2 += f"v_mov_b32 v{vSEN+i}, -1\nv_mov_b32 v{ONE+i}, 0x3f803f80\n"
    for i in range(16): t2 += f"v_mov_b32 v{CI+i}, 0\n"
    return items(t), items(t2) + first_c(1)

def first_c(tile, redo=False):
    if tile == 2: return mask_items(MK, vT1, 0)
    it = items(f"""s_cmp_eq_u32 s{sT1}, 0
    s_cselect_b32 s{sVo}, 0, {H(BIG*1024)}
    v_add_f32 v3, s{sVo}, v{vT1}""") + mask_items(S_, 3, 0)
    if redo: return it
    return it + items(f"""s_cmp_eq_u32 s{sT1}, 0
    s_cselect_b32 s{sVo}, 1.0, 0
    v_sub_f32 v3, v{vT2}, v{vT1}
    v_fma_f32 v3, s{sVo}, v3, v{vT1}""") + mask_items(MK, 3, 0)

def qk_m(Q, grp, S, C, order="kt"):
    M = []
    tl = [(0, 0), (1, 0), (0, 1), (1, 1)] if order == "kt" else [(0, 0), (0, 1), (1, 0), (1, 1)]
    for (qt, kt) in tl:
        d = S + 8 * qt + 4 * kt
        for u in range(4):
            c = V(d) if u else (V(CI + (grp * 2 + qt) * 4) if C is None else "0" if C == 0 else V(C + 8 * qt + 4 * kt))
            M.append(MF(V(d), A(KF + (kt * 4 + u) * 4), A(Q + (grp * 2 + qt) * 16 + u * 4), c))
    return M
def pv_m(grp, P, zero, order=range(8), lsum=True):
    M = []
    for qt in range(2 if lsum else 0):
        d = V(LA + (grp * 2 + qt) * 4)
        M.append(MF(d, V(ONE), V(P + 4 * qt), "0" if zero else d))
    for n in order:
        for qt in range(2):
            d = V(O_ + grp * 64 + qt * 32 + n * 4)
            M.append(MF(d, A(VF + 4 * n), V(P + 4 * qt), "0" if zero else d))
    return M
def qread(Q, base, f): return f"ds_read_b128 {A(Q+4*f)}, v{vQR} offset:{base + f*1024}"
def kread(ab, f): return ("l", f"ds_read_b128 {A(KF+4*f)}, v{vK} offset:{ab*16384 + f*1024}")
def vread(ab, n): return ("l", f"ds_read_b128 {A(VF+4*n)}, v{vV0 if n < 4 else vV1} offset:{ab*16384 + n*1024}")
def sm_place(ph, S, P, g0=0, stride=2):
    ge = []
    for j in range(16): ge.append(ph.put("e", f"v_exp_f32 v{S+j}, v{S+j}", g0 + stride * j))
    return ge
def cvt_place(ph, S, P, ge):
    for i in range(8):
        lo = max(ge[2 * i], ge[2 * i + 1])
        if lo + 1 <= len(ph.M) - 1: ph.put("v", f"v_cvt_pk_bf16_f32 v{P+i}, v{S+2*i}, v{S+2*i+1}", lo + 1)
        else: ph.put("x", f"v_cvt_pk_bf16_f32 v{P+i}, v{S+2*i}, v{S+2*i+1}", lo)
def adv_items():
    if DESC: return items(f"""s_add_u32 s{sVo}, s{sKp}, 32768
    s_sub_u32 s{sKp}, 15, s{sE}
    s_cmp_eq_u32 s{sE}, 16
    s_cselect_b32 s{sKp}, s{sT2}, s{sKp}
    s_cmp_gt_u32 s{sE}, s{sN1}
    s_cselect_b32 s{sKp}, s{sKp}, s{sE}
    s_lshl_b32 s{sKp}, s{sKp}, 16
    s_add_u32 s{sKp}, s{sKp}, s{sKV}
    s_cmp_ge_u32 s{sE}, 17
    s_cselect_b32 s{sKp}, {OOB - 8192}, s{sKp}
    s_add_u32 s{sE}, s{sE}, 1""")
    return items(f"""s_add_u32 s{sVo}, s{sKp}, 32768
    s_sub_u32 s{sKp}, s{sE}, s{sN1}
    s_sub_u32 s{sKp}, s{sKp}, 1
    s_cmp_gt_u32 s{sE}, s{sN1}
    s_cselect_b32 s{sKp}, s{sKp}, s{sE}
    s_lshl_b32 s{sKp}, s{sKp}, 16
    s_add_u32 s{sKp}, s{sKp}, s{sKV}
    s_cmp_ge_u32 s{sE}, 17
    s_cselect_b32 s{sKp}, {OOB - 8192}, s{sKp}
    s_add_u32 s{sE}, s{sE}, 1""")
vL2 = 15
def lin8(sm, so, tog, tag):
    it = []
    for h in range(2):
        it.append(("s", f"s_add_u32 m0, s{sm}, {h*4096}"))
        for i in range(4): it.append(("m", f"buffer_load_dwordx4 v{vL2 if h else 1}, {srd(WS)}, s{so} offen offset:{i*1024} {E_('KVL', '')} lds", tag))
    return it + [("s", f"s_xor_b32 s{sm}, s{sm}, {tog}")]
def kdma(g): return lin8(sKm, sKp, R2 ^ R4, "kd")
def vdma(g): return lin8(sVm, sVo, R3 ^ R0, "vd")
NPEEL = 8
FUSE = E_("FUSE", "0") == "1"
def prefill_items(i):
    if E_("NOPRE"): return []
    return [("s", f"s_add_u32 s{sPO}, s{sPB}, {((i >> 3) << 23) + (i & 1) * 131072}"),
            ("m", f"buffer_store_dwordx4 {V(vSEN)}, v{vQR if E_('PLIN', '1') == '1' else vPO}, {srd(WS)}, s{sPO} offen offset:{((i >> 1) & 3) * 256} {WT}", "pre")]

DG = {"8": {"c": [3, 7, 11, 15, 19, 23, 27, 31], "d": [3, 7, 11, 15, 19, 23, 27, 31], "a": []},
      "7": {"c": [3, 7, 11, 15, 23, 27, 31], "d": [3, 7, 11, 15, 23, 27, 31], "a": [3, 7]},
      "9": {"c": [3, 7, 11, 15, 23, 27, 31], "d": [3, 7, 11, 15, 19, 23, 27, 31], "a": [3]},
      "6": {"c": [3, 7, 15, 19, 27, 31], "d": [0, 7, 11, 19, 23, 31], "a": [3, 7, 15, 19]}}[E_("DG", "7")]
def kv_items(g, name):
    seq = kdma(g) + vdma(g)
    groups = []; pre = []
    for it in seq:
        if it[0] == "m": groups.append([pre, it]); pre = []
        else: pre = pre + [it]
    groups.append([pre, None])
    n0 = {"c": 0, "d": len(DG["c"]), "a": len(DG["c"]) + len(DG["d"])}[name]
    return [(gp, groups[n0 + i][1], groups[n0 + i + 1][0]) for i, gp in enumerate(DG[name])], groups[0][0]
def place_kv(g, ph, name, limit=16):
    lst, first = kv_items(g, name)
    n0 = {"c": 0, "d": len(DG["c"]), "a": len(DG["c"]) + len(DG["d"])}[name]
    if name == "c": ph.stream(first, 0, 1)
    for i, (gp, dma, post) in enumerate(lst):
        if n0 + i >= limit: break
        ph.put("m", dma[1], gp, gp, tag=dma[2])
        ph.stream(post, gp + 1, gp + 2)

def slot_lv(g, Q, name, extra=None):
    S0, S1, P0, P1 = S_, S_ + 16, P_, P_ + 8
    qk, sm, pv = {"a": ((0, S0), (S1, P1), (0, P0)), "b": ((1, S1), (S0, P0), (1, P1)),
                  "c": ((0, S0), (S1, P1), (0, P0)), "d": ((1, S1), (S0, P0), (1, P1))}[name]
    M = qk_m(Q, qk[0], qk[1], None) + pv_m(pv[0], pv[1], False, lsum=name not in "bc")
    ph = Phase(g.k, M)
    seq = kdma(g) + vdma(g); grp = []; pre = []
    for it in seq:
        if it[0] == "m": grp.append([pre, it]); pre = []
        else: pre = pre + [it]
    grp.append([pre, None])
    if name == "c":
        ge = sm_place(ph, *sm, g0=0)
        for n, gp in enumerate([1, 3, 5, 9, 13, 17, 21, 23]): ph.put(*vread(0, n), gp, gp)
        dl, n0 = [7, 11, 15, 19, 25, 29], 0
        ph.stream(grp[0][0], 0, 1)
    if name == "d":
        ge = sm_place(ph, *sm, g0=2)
        for f in range(8): ph.put(*kread(0, f), 5 + 4 * f, 5 + 4 * f)
        dl, n0 = [0, 3, 7, 11, 15, 19, 23, 27, 31], 6
    if name == "a":
        ge = sm_place(ph, *sm, g0=0)
        for n, gp in enumerate([1, 5, 7, 9, 13, 17, 21, 25]): ph.put(*vread(1, n), gp, gp)
        dl, n0 = [3], 15
    if name == "b":
        ge = sm_place(ph, *sm, g0=0)
        for f in range(8): ph.put(*kread(1, f), 9 + 2 * f)
        dl, n0 = [], 0
    for i, gp in enumerate(dl):
        ph.put("m", grp[n0 + i][1][1], gp, gp, tag=grp[n0 + i][1][2]); ph.stream(grp[n0 + i + 1][0], gp + 1, gp + 2)
    vq = [(ge[2 * i + 1] + 1, f"v_cvt_pk_bf16_f32 v{sm[1]+i}, v{sm[0]+2*i}, v{sm[0]+2*i+1}") for i in range(8)]
    if name in "ab": vq += [(ge[j] + 1, f"v_add_f32 v{12+(j>>3)}, v{12+(j>>3)}, v{sm[0]+j}") for j in range(16)]
    if name == "a": vq += [(26, f"v_xor_b32 v{vV0}, {R3 ^ R0}, v{vV0}"), (26, f"v_xor_b32 v{vV1}, {R3 ^ R0}, v{vV1}")]
    if name == "c": vq += [(0, f"v_xor_b32 v{vK}, {R2 ^ R4}, v{vK}")]
    vq.sort(key=lambda x: x[0])
    n = len(M)
    for (lo, t) in vq:
        lo = min(lo, n - 1)
        ok = [gp for gp in range(lo, n) if ph.fits(gp, "v")]
        if ok and ok[0] <= lo + 6: ph.put("v", t, ok[0], ok[0])
        else: ph.g[lo].append(("v", t, None, 0))
    if extra: extra(ph)
    ph.emit()

def slot(g, Q, name, zero=False, Cm=None, extra=None, dma=True, k=None):
    S0, S1, P0, P1 = S_, S_ + 16, P_, P_ + 8
    qk, sm, pv = {"a": ((0, S0), (S1, P1), (0, P0)), "b": ((1, S1), (S0, P0), (1, P1)),
                  "c": ((0, S0), (S1, P1), (0, P0)), "d": ((1, S1), (S0, P0), (1, P1))}[name]
    M = qk_m(Q, qk[0], qk[1], Cm) + pv_m(pv[0], pv[1], zero)
    ph = Phase(k or g.k, M)
    ge = sm_place(ph, *sm, g0=2 if name != "b" else 0)
    if name in "ac":
        for n, gp in enumerate([0, 1, 5, 9, 13, 17, 21, 25]): ph.put(*vread(1 if name == "a" else 0, n), gp, gp)
    if name == "b":
        for f in range(8): ph.put(*kread(1, f), 9 + 2 * f)
    if name == "d":
        for f in range(8): ph.put(*kread(0, f), 5 + 4 * f, 5 + 4 * f)
    if dma and name != "b": place_kv(g, ph, name)
    cvt_place(ph, *sm, ge)
    if name == "a": ph.stream(items(f"v_xor_b32 v{vV0}, {R3 ^ R0}, v{vV0}\nv_xor_b32 v{vV1}, {R3 ^ R0}, v{vV1}"), 29)
    if name == "b": ph.put("v", f"v_xor_b32 v{vK}, {R2 ^ R4}, v{vK}", 27)
    if extra: extra(ph)
    ph.emit()

def tile(g, T):
    import gen_tail as GT
    k = g.k
    Q = Q1 if T == 1 else Q2
    sT = sT1 if T == 1 else sT2
    S0, S1, P0, P1 = S_, S_ + 16, P_, P_ + 8
    L = f"L_t{T}"
    def prologue(k, first):
        M = qk_m(Q, 0, S0, S0 if T == 1 else None, order="qt") + qk_m(Q, 1, S1, None)
        ph = Phase(k, M)
        if first:
            for f in range(8, 16): ph.put("l", qread(Q1, R0, f), f - 8, f - 8)
            for f in range(16): ph.g[8 + f].append(("l", qread(Q2, R1, f), None, 0))
        ge = []
        for j in range(16):
            gp = 4 * (j // 4) + 8 + (j % 4); ph.g[gp].append(("e", f"v_exp_f32 v{S0+j}, v{S0+j}", None, 0)); ge.append(gp)
        for f in range(8): g1 = ph.put(*kread(1, f), 24 + f, 24 + f)
        ph.put("x", f"v_xor_b32 v{vK}, {R2 ^ R4}, v{vK}", 31)
        if first: ph.put("x", f"""v_lshrrev_b32 v{vQR}, 4, v2
        v_lshlrev_b32 v{vQR}, 15, v{vQR}
        v_and_b32 v14, 255, v1
        v_add_u32 v{vQR}, v{vQR}, v14
        {f"s_and_b32 s{sD}, s2, 1" if E_("ODDX") else ""}
        {f"s_lshl_b32 s{sD}, s{sD}, 30" if E_("ODDX") else ""}
        {f"v_or_b32 v{vQR}, s{sD}, v{vQR}" if E_("ODDX") else ""}""", 31)
        ph.stream(adv_items() + items(f"s_sub_u32 s{sRem}, s{sT}, {1 if T == 1 else NPEEL}"), 0)
        cvt_place(ph, S0, P0, ge)
        ph.emit()
    if T == 1:
        k2 = K(); k2.label(L + "_start"); prologue(k2, False); k2(f"s_branch {L}_p1")
        g.tail.append("\n".join(k2.out))
        prologue(k, True); k.label(L + "_p1")
    elif FUSE:
        k2 = K(); k2.label(L + "_start"); prologue(k2, False); k2("s_waitcnt lgkmcnt(0)\ns_barrier")
        slot(g, Q, "c", zero=True, k=k2); slot(g, Q, "d", zero=True, k=k2); k2(f"s_branch {L}_p1")
        assert g.TS or [e[0] for e in k2.lg] == [e[0] for e in k.lg]
        k.lg = list(k2.lg)
        g.tail.append("\n".join(k2.out))
        k.label(L + "_p1")
    else:
        k.label(L + "_start"); prologue(k, False)
    if not (T == 2 and FUSE): k.waitvm(["kd", "vd", "k1", "v0"], True); k("s_barrier")
    if E_("TSA") == "r" and T == 2 or E_("TSA") == "m1" and T == 2: g.ts(force=True)
    if T == 1: k.vm = []
    st_bar = k.save()
    if T == 1:
        k(f"s_cmp_eq_u32 s{sT1}, 0\ns_cbranch_scc1 {L}_zero")
    if not (T == 2 and FUSE):
        slot(g, Q, "c", zero=True)
        slot(g, Q, "d", zero=True)
    if T == 2:
        for r in range(1, NPEEL):
            slot(g, Q, "a", extra=lambda ph: GT.peel_a(g, ph, r))
            def fb(ph): ph.stream(adv_items(), 10); GT.peel_b(g, ph, r)
            slot(g, Q, "b", extra=fb)
            k.waitvm(["kd", "vd", "ctx"] + (["pre"] if r == 4 else []), True); k("s_barrier")
            if E_("TSA") == "r": g.ts(force=True)
            if r == 1: g.run(g.flag_store(sCFO, []))
            slot(g, Q, "c")
            slot(g, Q, "d")
        k.vm = [e for e in k.vm if e[1] in ("kd", "vd")]
    if T == 1 or NPEEL == 8: k(f"s_cmp_eq_u32 s{sRem}, 0\ns_cbranch_scc1 {L}_diag")
    st_d = k.save()
    k.out.append(".p2align 3")
    k.label(L + "_loop")
    sl = slot_lv if E_("LV") else slot
    sl(g, Q, "a")
    sl(g, Q, "b", extra=lambda ph: ph.stream(adv_items(), 10))
    k.waitvm(["kd", "vd"], True); k("s_barrier")
    k.vm = []
    sl(g, Q, "c")
    sl(g, Q, "d", extra=lambda ph: ph.put("s", f"s_sub_u32 s{sRem}, s{sRem}, 1", 26))
    k(f"s_cmp_lg_u32 s{sRem}, 0\ns_cbranch_scc1 {L}_loop")
    assert [e[1] for e in k.vm] == [e[1] for e in st_d[0]] and [e[0] for e in k.lg] == [e[0] for e in st_d[1]]
    k.label(L + "_diag")
    TM = lambda: g.ts(force=True) if E_("TSA") == f"m{T}" or (E_("TSA") == "r" and T == 2) else None
    TM()
    m2 = mask_items(MK, vT2, 1)
    def xa(ph):
        if T == 2: GT.diag_a(g, ph)
        ph.stream(m2[:10], 17)
    slot(g, Q, "a", Cm=MK, extra=xa)
    def xb(ph):
        if T == 1: ph.stream(adv_items(), 10)
        else: GT.diag_b(g, ph)
        ph.stream(m2[10:], 1)
    slot(g, Q, "b", extra=xb)
    k.waitvm(["kd", "vd", "pre"], True); k("s_barrier")
    if T == 1: k.restore(st_bar)
    TM()
    NO = [4, 5, 6, 7, 0, 1, 2, 3]
    snd = lambda grp, va, base: [("l", f"ds_write_b128 v{va}, {V(O_ + grp*64 + (i&1)*32 + 16 + (i>>1)*4)} offset:{base + i*1024}") for i in range(8)]
    rcv = lambda grp, va, base: [("l", f"ds_read_b128 {V(O_ + grp*64 + (i&1)*32 + 16 + (i>>1)*4)}, v{va} offset:{base + i*1024}") for i in range(8)]
    vS, RS = (vMW, R1) if T == 1 else (11, 0)
    def big(k, zero):
        ph = Phase(k, qk_m(Q, 1, S0, MK, order="qt") + pv_m(0, P0, zero, NO) + pv_m(1, P1, zero, NO))
        for i, n in enumerate(NO): ph.put(*vread(0, n), [0, 1, 4, 7, 10, 13, 16, 19][i], [0, 1, 4, 7, 10, 13, 16, 19][i])
        for i, n in enumerate(NO): ph.put(*vread(1, n), min(51, 37 + 2 * i), min(51, 37 + 2 * i))
        for i, it in enumerate(snd(0, vS, RS)): ph.put("l", it[1], [24, 27, 30, 33, 36, 40, 44, 48][i], [24, 27, 30, 33, 36, 40, 44, 48][i])
        ge1 = []
        for j in range(16): ge1.append(ph.put("e", f"v_exp_f32 v{S1+j}, v{S1+j}", (ge1[-1] if ge1 else 1) + 1))
        ge2 = []
        for j, gp in enumerate([25, 26, 28, 29, 31, 32, 34, 35, 37, 38, 39, 41, 42, 43, 45, 46]): ge2.append(ph.put("e", f"v_exp_f32 v{S0+j}, v{S0+j}", gp, gp))
        for i in range(8): ph.put("v", f"v_cvt_pk_bf16_f32 v{P1+i}, v{S1+2*i}, v{S1+2*i+1}", ge1[2 * i + 1] + 1, 30)
        for i in range(8): ph.put("v", f"v_cvt_pk_bf16_f32 v{P0+i}, v{S0+2*i}, v{S0+2*i+1}", [36, 40, 44, 47, 48, 49, 50, 50][i], [36, 40, 44, 47, 48, 49, 50, 50][i])
        lz = f"s_xor_b32 s{sB}, s{sVm}, 8192" if T == 1 else f"s_xor_b32 s{sB}, s{sW8}, {8192 + R0}"
        hz = f"s_xor_b32 s{sC}, s{sVm}, {R3 ^ R0}" if T == 1 else f"s_add_u32 s{sC}, s{sW8}, {R3}"
        ph.stream(items(f"""{lz}
        v_lshrrev_b32 v13, 1, v1
        v_add_u32 v12, s{sB}, v13"""), 0)
        gl = [2, 6, 11, 15, 20, 23, 29, 34]; gi = 0
        for it in (kdma(g) if T == 1 else GT.wodma(g, 1)):
            if it[0] == "m": ph.g[gl[gi]].append(("m", it[1], it[2], 0)); gi += 1
            else: ph.put("s", it[1], gl[gi - 1] + 1 if gi else 0, gl[gi] - 1 if gi < 8 else None)
        ph.put("v", f"v_mov_b32 v{LA+1}, v{LA+4}", 33, 33)
        if T == 2 and GT.TK < 32: ph.put("x", f"v_readfirstlane_b32 s{GT.sCND}, v10", 50)
        ph.put("x", f"""ds_write_b64 v12, v[{LA}:{LA+1}]
        {hz}
        v_xor_b32 v12, 8192, v12
        v_add_u32 v9, s{sC}, v1
        v_xor_b32 v8, 8192, v{vS}
        v_xor_b32 v10, 8192, v9""", 51)
        ph.emit()
    if T == 1:
        k2 = K(); k2.label(L + "_zero"); big(k2, True); k2(f"s_branch {L}_join")
        g.tail.append("\n".join(k2.out))
    big(k, False)
    k.label(L + "_join")
    g.ts(); TM()
    k(f"""v_xor_b32 v{vV0}, {R3 ^ R0}, v{vV0}
    v_xor_b32 v{vV1}, {R3 ^ R0}, v{vV1}
    s_waitcnt lgkmcnt(0)
    s_barrier""")
    TM()
    def check_txt(RL):
        return f"""v_cmp_le_f32 vcc, {H(LLO)}, v{RL+12}
            s_mov_b64 s[{sXB}:{sXB+1}], vcc
            v_cmp_ge_f32 vcc, {H(LHI)}, v{RL+8}
            s_and_b64 s[{sXB}:{sXB+1}], s[{sXB}:{sXB+1}], vcc
            s_cmp_eq_u64 s[{sXB}:{sXB+1}], -1
            s_cselect_b32 s{sXB}, s{sRedo}, 1
            s_cmp_lg_u32 s{sXB}, 0
            s_cbranch_scc1 {L}_redo
            {L}_safe:"""
    if T == 1 and FUSE:
        RL = MK
        def fins(grp):
            out = []
            for qt in range(2):
                b = O_ + grp * 64 + qt * 32; r = RL + 2 * (grp * 2 + qt)
                for u in range(2):
                    c = b + 8 * u
                    for i in range(8): out.append(("v", f"v_add_f32 v{c+i}, v{c+i}, v{c+16+i}"))
                    for i in range(8): out.append(("v", f"v_mul_f32 v{c+i}, v{c+i}, v{r}"))
                    for i in range(4): out.append(("v", f"v_cvt_pk_bf16_f32 v{c+i}, v{c+2*i}, v{c+2*i+1}"))
                    out.append(("x", f"buffer_store_dwordx4 {V(c)}, v{vL2 if qt else 1}, {srd(WS)}, s{sC if grp else sB} offen offset:{u*1024} {WT}", "ctx"))
            return out
        ph = Phase(k, pv_m(1, P0, False, NO) + qk_m(Q2, 0, S0, 0, order="qt") + qk_m(Q2, 1, S1, 0))
        rc = rcv(0, 8, RS); rc = [rc[i] for i in (0, 2, 4, 6, 1, 3, 5, 7)]
        for i, it in enumerate([("l", f"ds_read_b64 v[{RL+8}:{RL+9}], v12")] + rc[:4] + [kread(0, f) for f in range(4)] + rc[4:] + [kread(0, f) for f in range(4, 8)]): ph.put("l", it[1], i, i)
        for i, it in enumerate(snd(1, 10, 0)): ph.g[17 + 3 * i].append(("l", it[1], None, 0))
        ge = []
        for j, gp in enumerate([27, 28, 30, 31, 33, 34, 36, 37, 39, 40, 41, 42, 43, 44, 45, 46]): ph.g[gp].append(("e", f"v_exp_f32 v{S0+j}, v{S0+j}", None, 0)); ge.append(gp)
        for f in range(8): ph.g[42 + f].append(kread(1, f) + (None, 0))
        g1 = ph.stream(items(f"""s_lshl_b32 s{sB}, s{sT}, 20
        s_add_u32 s{sC}, s{sB}, s{sCHI}
        s_add_u32 s{sB}, s{sB}, s{sCLO}
        v_lshrrev_b32 v11, 4, v2
        v_lshrrev_b32 v13, 2, v1
        v_add_u32 v13, {R1}, v13
        s_xor_b32 s{sD}, s{sW8}, 8192
        v_add_u32 v14, s{sD}, v13
        v_cmp_eq_u32 vcc, 1, v11
        v_add_f32 v{RL}, v{RL+8}, v{LA}
        v_add_f32 v{RL+2}, v{RL+9}, v{LA+4}
        v_cndmask_b32 v12, v{LA}, v{LA+4}, vcc
        v_rcp_f32 v{RL}, v{RL}
        v_rcp_f32 v{RL+2}, v{RL+2}
        v_cmp_eq_u32 vcc, 2, v11
        v_cmp_eq_u32 s[{sXB}:{sXB+1}], 3, v11"""), 2, dense=1, sid=960)
        gv = g1
        f0 = fins(0); st0 = [it for it in f0 if it[0] == "x"]
        g1 = ph.stream([it for it in f0 if it[0] != "x"] + items(f"""v_cndmask_b32 v12, v12, v{LA+8}, vcc
        v_cndmask_b32 v12, v12, v{LA+12}, s[{sXB}:{sXB+1}]""") + [("x", "ds_write_b32 v14, v12")] + items(f"""v_and_b32 v14, {~192 & 0xffffffff}, v13
        v_add_u32 v14, s{sW8}, v14"""), g1 + 1, dense=int(E_("FDN", "2")), sid=960)
        print("fused lo ends", g1, file=sys.stderr)
        gp = gv - 2
        for it in vdma(g):
            ph.put("x", it[1], gp, tag=it[2] if len(it) > 2 else None)
            if it[0] == "m": gp += 3
        for i, it in enumerate(st0): ph.put("x", it[1], max(gp + 4 * i, g1 if i == 3 else 0), tag="ctx")
        ph.stream(adv_items() + items(f"s_sub_u32 s{sRem}, s{sT2}, {NPEEL}"), gp + 1)
        for i in range(8): ph.g[min(49, ge[2 * i + 1] + 2)].append(("v", f"v_cvt_pk_bf16_f32 v{P0+i}, v{S0+2*i}, v{S0+2*i+1}", None, 0))
        ph.put("x", f"v_xor_b32 v{vK}, {R2 ^ R4}, v{vK}", 49)
        ph.emit()
        TM()
        k.waitvm(["kd", "vd"], True); k("s_barrier")
        TM()
        hi = fins(1); NH = int(E_("FNH", "63"))
        def xc(ph):
            rc = rcv(1, 9, 0); rc = [rc[i] for i in (0, 2, 4, 6, 1, 3, 5, 7)]
            rd = [f"ds_read_b32 v{RL+4}, v14 offset:128", f"ds_read_b32 v{RL+6}, v14 offset:192"] + [it[1] for it in rc] + [f"ds_read_b32 v{RL+8+w}, v13 offset:{w*8192}" for w in range(4)]
            for i, t in enumerate(rd): ph.g[[0, 1, 2, 4, 6, 8, 10, 12, 14, 16, 18, 19, 20, 22][i]].append(("l", t, None, 0))
            ph.stream(items(f"""v_add_f32 v{RL+4}, v{RL+4}, v{LA+8}
            v_add_f32 v{RL+6}, v{RL+6}, v{LA+12}
            v_rcp_f32 v{RL+4}, v{RL+4}
            v_rcp_f32 v{RL+6}, v{RL+6}""") + hi[:NH], 7, dense=3)
        slot(g, Q2, "c", zero=True, Cm=0, extra=xc)
        def xd(ph):
            g2 = ph.stream(hi[NH:] + items(f"""v_add_f32 v{RL+8}, v{RL+8}, v{RL+9}
            v_add_f32 v{RL+10}, v{RL+10}, v{RL+11}
            v_min_f32 v{RL+12}, v{RL+8}, v{RL+10}
            v_add_f32 v{RL+8}, v{RL+8}, v{RL+10}"""), 0, dense=2)
            assert g2 < 14, g2
            ph.put("x", check_txt(RL), g2 + 1)
        slot(g, Q2, "d", zero=True, Cm=0, extra=xd)
        redo(g, T)
        g.ts(); TM()
        return
    RL = S1
    ph = Phase(k, pv_m(1, P0, False, NO))
    ph.stream([("l", f"ds_read_b64 v[{RL+8}:{RL+9}], v12")] + rcv(0, 8, RS), 0)
    ph.stream(items(f"""s_lshl_b32 s{sB}, s{sT}, 20
    s_add_u32 s{sC}, s{sB}, s{sCHI}
    s_add_u32 s{sB}, s{sB}, s{sCLO}
    v_lshrrev_b32 v11, 4, v2
    v_lshrrev_b32 v13, 2, v1
    v_add_u32 v13, {R1 if T == 1 else R4}, v13
    s_xor_b32 s{sD}, s{sW8}, 8192
    v_add_u32 v14, s{sD}, v13
    v_cmp_eq_u32 vcc, 1, v11
    v_add_f32 v{RL}, v{RL+8}, v{LA}
    v_add_f32 v{RL+2}, v{RL+9}, v{LA+4}
    v_cndmask_b32 v12, v{LA}, v{LA+4}, vcc
    v_rcp_f32 v{RL}, v{RL}
    v_rcp_f32 v{RL+2}, v{RL+2}
    v_cmp_eq_u32 vcc, 2, v11
    v_cmp_eq_u32 s[{sXB}:{sXB+1}], 3, v11"""), 0)
    sn = snd(1, 9, 0)
    for i in range(3): ph.put("l", sn[i][1], 12 + 2 * i, 12 + 2 * i)
    ph.emit()
    TM()
    def fin(grp):
        out = []
        for qt in range(2):
            b = O_ + grp * 64 + qt * 32; r = RL + 2 * (grp * 2 + qt)
            so = sC if grp else sB
            for u in range(2):
                c = b + 8 * u
                for i in range(0, 8, 2): out.append(("v", f"v_pk_add_f32 v[{c+i}:{c+i+1}], v[{c+i}:{c+i+1}], v[{c+16+i}:{c+16+i+1}]"))
                for i in range(0, 8, 2): out.append(("v", f"v_pk_mul_f32 v[{c+i}:{c+i+1}], v[{c+i}:{c+i+1}], v[{r}:{r+1}] op_sel_hi:[1,0]"))
                for i in range(4): out.append(("v", f"v_cvt_pk_bf16_f32 v{c+i}, v{c+2*i}, v{c+2*i+1}"))
                out.append(("m", f"buffer_store_dwordx4 {V(c)}, v{vL2 if qt else 1}, {srd(WS)}, s{so} offen offset:{u*1024} {E_('CXP', WT)}", "ctx"))
        return out
    ex = GT.merge_x(g) if T == 2 else vdma(g)
    lo = fin(0)
    k(f"""v_cndmask_b32 v12, v12, v{LA+8}, vcc
    v_cndmask_b32 v12, v12, v{LA+12}, s[{sXB}:{sXB+1}]""")
    ne = len(ex) // 2 if T == 1 else len(ex)
    for i in range(5):
        g.run([sn[3 + i]] + lo[i * 11:(i + 1) * 11] + ex[i * ne // 5:(i + 1) * ne // 5])
    k(f"""ds_write_b32 v14, v12
    v_and_b32 v14, {~192 & 0xffffffff}, v13
    v_add_u32 v14, s{sW8}, v14""")
    if E_("TSA") != "r": TM()
    k("s_waitcnt lgkmcnt(0)\ns_barrier")
    TM()
    k(f"ds_read_b32 v{RL+4}, v14 offset:128\nds_read_b32 v{RL+6}, v14 offset:192")
    rc = rcv(1, 10, 0)
    g.run([rc[i] for i in (0, 2, 4, 6, 1, 3, 5, 7)])
    for w in range(4): k(f"ds_read_b32 v{RL+8+w}, v13 offset:{w*8192}")
    k(f"""v_add_f32 v{RL+4}, v{RL+4}, v{LA+8}
    v_add_f32 v{RL+6}, v{RL+6}, v{LA+12}
    v_rcp_f32 v{RL+4}, v{RL+4}
    v_rcp_f32 v{RL+6}, v{RL+6}""")
    hi = fin(1); ex = ex[ne:]
    nxt = [kread(0, f) for f in range(8)] if T == 1 else GT.oread(0) + GT.oread(1)
    for i in range(4):
        g.run(hi[i * 13:(i + 1) * 13] + ex[i * len(ex) // 4:(i + 1) * len(ex) // 4])
        if i == 1:
            k(f"""v_add_f32 v{RL+8}, v{RL+8}, v{RL+9}
            v_add_f32 v{RL+10}, v{RL+10}, v{RL+11}
            v_min_f32 v{RL+12}, v{RL+8}, v{RL+10}
            v_add_f32 v{RL+8}, v{RL+8}, v{RL+10}
            v_cmp_le_f32 vcc, {H(LLO)}, v{RL+12}
            s_mov_b64 s[{sXB}:{sXB+1}], vcc
            v_cmp_ge_f32 vcc, {H(LHI)}, v{RL+8}
            s_and_b64 s[{sXB}:{sXB+1}], s[{sXB}:{sXB+1}], vcc
            s_cmp_eq_u64 s[{sXB}:{sXB+1}], -1
            s_cselect_b32 s{sXB}, s{sRedo}, 1
            s_cmp_lg_u32 s{sXB}, 0
            s_cbranch_scc1 {L}_redo""")
            k.label(L + "_safe")
        if i >= 2: g.run(nxt[(i - 2) * len(nxt) // 2:(i - 1) * len(nxt) // 2])
    redo(g, T)
    g.ts(); TM()

def redo(g, T):
    L = f"L_t{T}"
    Q = Q1 if T == 1 else Q2
    sT = sT1 if T == 1 else sT2
    k = K(); S0, S1, MX = S_, S_ + 16, P_
    k.label(L + "_redo")
    k(f"s_cmp_eq_u32 s{sRedo}, 0\ns_cbranch_scc1 {L}_max\ns_mov_b32 s{sRedo}, 0")
    for i in range(16): k(f"v_mov_b32 v{CI+i}, 0")
    k(f"s_nop 1\ns_branch {L}_safe")
    k.label(L + "_max")
    k(f"""s_waitcnt vmcnt(0) lgkmcnt(0)
    s_barrier
    s_mov_b32 s{sRedo}, 1
    s_and_b32 s{sB}, s{sW}, 1
    s_lshl_b32 s{sB}, s{sB}, 13
    s_sub_u32 s{sC}, s{sKV}, s{sW8}
    s_add_u32 s{sC}, s{sC}, s{sB}
    s_mov_b32 s{sRem}, s{sT}""")
    if T == 2:
        k(f"s_mov_b32 s{sRPL}, 0")
        for i in range(4): k(f"v_mov_b32 v{vSEN+i}, -1")
    for t in range(4): k(f"v_mov_b32 v{MX+t}, 0xff800000")
    def kld(ab):
        k(f"s_add_u32 s{sB}, s{sC}, {ab*16384}")
        for f in range(8): k(f"buffer_load_dwordx4 {A(KF+4*f)}, v{vL2 if f >= 4 else 1}, {srd(WS)}, s{sB} offen offset:{(f&3)*1024}")
    def blk(grp, S, C):
        for m in qk_m(Q, grp, S, C): k(m)
    def mx(grp, S):
        for qt in range(2):
            for i in range(0, 8, 2): k(f"v_max3_f32 v{MX+grp*2+qt}, v{MX+grp*2+qt}, v{S+8*qt+i}, v{S+8*qt+i+1}")
    k.label(L + "_maxl")
    k(f"s_cmp_eq_u32 s{sRem}, 0\ns_cbranch_scc1 {L}_maxd")
    for ab in range(2):
        kld(ab); blk(0, S0, None); blk(1, S1, None); mx(0, S0); mx(1, S1)
    k(f"s_add_u32 s{sC}, s{sC}, 65536\ns_sub_u32 s{sRem}, s{sRem}, 1\ns_nop 7\ns_branch {L}_maxl")
    k.label(L + "_maxd")
    kld(0)
    for it in mask_items(MK, vT1, 0): k(it[1])
    blk(0, S0, MK); blk(1, S1, None); mx(0, S0); mx(1, S1)
    kld(1)
    for it in mask_items(MK, vT2, 1): k(it[1])
    blk(1, S0, MK); mx(1, S0)
    for sw in ("v_permlane16_swap_b32", "v_permlane32_swap_b32"):
        for t in range(4): k(f"v_mov_b32 v{MX+4+t}, v{MX+t}")
        for t in range(4): k(f"{sw} v{MX+t}, v{MX+4+t}")
        for t in range(4): k(f"v_max_f32 v{MX+t}, v{MX+t}, v{MX+4+t}")
    k(f"""ds_write_b128 v{vMW}, {V(MX)} offset:{R1}
    v_xor_b32 v8, 8192, v{vMW}
    s_waitcnt lgkmcnt(0)
    s_barrier
    ds_read_b128 {V(MX+4)}, v8 offset:{R1}""")
    for t in range(4): k(f"v_max_f32 v{MX+t}, v{MX+t}, v{MX+4+t}")
    for t in range(4):
        for r in range(4): k(f"v_sub_f32 v{CI+4*t+r}, 0, v{MX+t}")
    k(f"s_mov_b32 s{sE}, 0" if T == 1 else f"s_add_u32 s{sE}, s{sN1}, 1")
    k(f"""s_and_b32 s{sB}, s{sE}, 1
    s_mul_i32 s{sKm}, s{sB}, {R2 ^ R4}
    s_xor_b32 s{sKm}, s{sKm}, {R2}
    s_mul_i32 s{sVm}, s{sB}, {R3 ^ R0}
    s_xor_b32 s{sVm}, s{sVm}, {R3}
    v_and_b32 v{vK}, 0x7fff, v{vK}
    v_or_b32 v{vK}, s{sKm}, v{vK}
    v_and_b32 v{vV0}, 0x7fff, v{vV0}
    v_or_b32 v{vV0}, s{sVm}, v{vV0}
    v_and_b32 v{vV1}, 0x7fff, v{vV1}
    v_or_b32 v{vV1}, s{sVm}, v{vV1}
    s_add_u32 s{sKm}, s{sKm}, s{sW8}
    s_add_u32 s{sVm}, s{sVm}, s{sW8}
    s_add_u32 s{sE}, s{sE}, 2
    s_mov_b32 s{sKp}, s{sKV}""")
    if DESC and T == 2: k(f"s_sub_u32 s{sKp}, s{sT2}, 1\ns_lshl_b32 s{sKp}, s{sKp}, 16\ns_add_u32 s{sKp}, s{sKp}, s{sKV}")
    k(f"s_add_u32 s{sVo}, s{sKp}, 32768")
    for it in kdma(g) + vdma(g): k(it[1])
    if DESC and T == 2: k(f"s_sub_u32 s{sKp}, s{sKp}, 65536")
    else:
        k(f"""s_cmp_eq_u32 s{sT}, 0
        s_cselect_b32 s{sKp}, {14 if DESC else 0}, 1
        s_lshl_b32 s{sKp}, s{sKp}, 16
        s_add_u32 s{sKp}, s{sKp}, s{sKV}""")
    for it in kdma(g): k(it[1])
    if T == 1:
        for it in first_c(1, True) + mask_items(MK, vT2, 1): k(it[1])
        k(f"s_cmp_eq_u32 s{sT1}, 0\ns_cbranch_scc1 {L}_mk")
        for it in mask_items(MK, vT1, 0): k(it[1])
        k.label(L + "_mk")
    k("s_waitcnt vmcnt(0) lgkmcnt(0)\ns_barrier")
    for f in range(8): k(kread(0, f)[1])
    k(f"s_waitcnt lgkmcnt(0)\ns_branch {L}_start")
    g.tail.append("\n".join(k.out))

def attention(g):
    k = g.k; ACC = g.ACC
    u, tt = g.qlast
    b = ACC + (tt * 8 + 2 * u) * 4
    k(f"v_add_u32 v{vL2}, 4096, v1")
    for i in range(4): k(f"v_cvt_pk_bf16_f32 v{b+i}, v{b+2*i}, v{b+2*i+1}")
    k(f"ds_write_b128 v{vMW}, {V(b)} offset:{(tt>>1)*R1 + ((tt&1)*4+u)*1024}")
    k.waitvm(["k0"], True); k("s_barrier")
    for f in range(4): k(qread(Q1, R0, f)); k(kread(0, f)[1])
    for f in range(4, 8): k(kread(0, f)[1])
    for f in range(4, 8): k(qread(Q1, R0, f))
    g.ts()
    tile(g, 1)
    tile(g, 2)

def qdump(g):
    k = g.k; ACC = g.ACC
    k(f"s_lshl_b32 s{sB}, s2, 16\ns_lshl_b32 s{sC}, s{sW}, 14\ns_add_u32 s{sB}, s{sB}, s{sC}\ns_add_u32 s{sB}, s{sB}, {WS_CTX}")
    for tt in range(4):
        for u in range(4):
            b = ACC + (tt * 8 + 2 * u) * 4
            for i in range(4): k(f"v_cvt_pk_bf16_f32 v{b+i}, v{b+2*i}, v{b+2*i+1}")
            k(f"buffer_store_dwordx4 {V(b)}, v1, {srd(WS)}, s{sB} offen offset:{u*1024}")
        k(f"s_add_u32 s{sB}, s{sB}, 4096")
```

```python
from common import *
from gen_attn import *
sFO, sWOB, sXL, sPS, sTOK1, sTOK2, sPC, sKEY, sIDX, sCND, sCG, sC2 = 64, 65, 74, 75, 68, 69, 70, 71, 72, 73, 66, 67
CNT = E_("CNT", "")
sPM = 12
ROT = E_("OROT", "1") == "1"
sLM = 70
OQB = [R1, R2, R0, R3]
WOV = 8
OA = 56
WR0, OACC, X2, MW = 192, 64, 128, 128
def X1R(f): return 64 + 4 * f if f < 16 else 4 * (f - 16)
QM = E_("QM", "1") == "1"
PCH, PKH = ([0, 0, 1, 1], [0, 1, 0, 1]) if QM else ([0, 1, 0, 1], [0, 0, 1, 1])
def wodma(g, c, vb=24):
    it = []
    for h in range(2):
        it += g.dma4(WO, [vb + i for i in range(4)], (sW8, OQB[c] + h * 4096), (sWOB, PCH[c] * 128 + PKH[c] * 262144 + h * 32768), f"wo{c}", True)
    return it
def xload(pas, f):
    off = f * 1024
    dst = A(X1R(f)) if pas == 0 else V(X2 + 4 * f)
    return [("s", f"s_xor_b32 s{sXL}, s{sXC}, {off & ~4095}"), ("m", f"buffer_load_dwordx4 {dst}, v1, {srd(WS)}, s{sXL} offen offset:{off & 4095}")]
def xc_items(sT):
    return items(f"""s_lshl_b32 s{sXC}, s{sT}, 2
    s_add_u32 s{sXC}, s{sXC}, s{sW}
    s_lshl_b32 s{sXC}, s{sXC}, 3
    s_add_u32 s{sXC}, s{sXC}, s{sX}
    s_lshl_b32 s{sXC}, s{sXC}, 2
    s_add_u32 s{sXC}, s{sXC}, {f"s{sJ}" if ROT else "0"}
    s_lshl_b32 s{sXC}, s{sXC}, 13
    s_add_u32 s{sXC}, s{sXC}, {WS_CTX}""")

def moe_setup():
    return items(f"""s_lshr_b32 s{sB}, s2, 3
    s_mul_i32 s{sCG}, s{sX}, 28
    s_add_u32 s{sCG}, s{sCG}, s{sB}
    s_cmp_lt_u32 s{sB}, 28
    s_cselect_b32 s{sCG}, s{sCG}, 255
    s_lshl_b32 s{sC2}, s{sX}, 3
    s_add_u32 s{sC2}, s{sC2}, s{sB}
    s_sub_u32 s{sC2}, s{sC2}, 24
    s_cmp_ge_u32 s{sB}, 24
    s_cselect_b32 s{sC2}, s{sC2}, 255""")
WS_GP, WS_UP, WS_DP = 0x400000, 0x600000, 0x800000
RA, RAi, RB, RBi = ("v_lshrrev_b32", 3, "v_and_b32", 7) if E_("RPT", "1") == "0" else ("v_and_b32", 7, "v_lshrrev_b32", 3)
def repack_loads(t0, s0):
    return items(f"""s_lshl_b32 s{s0}, s2, 2
    s_add_u32 s{s0}, s{s0}, s{sW}
    s_and_b32 s{sB}, s{s0}, 31
    s_lshr_b32 s{sC}, s{s0}, 5
    s_sub_u32 s{sC}, s{sC}, 4
    s_and_b32 s{sC}, s{sC}, 31
    {f"s_bitcmp1_b32 s2, 0" if E_("ODDX") else ""}
    {f"s_cselect_b32 s{sC}, 31, s{sC}" if E_("ODDX") else ""}
    {RA} v{t0+1}, {RAi}, v2
    v_and_b32 v{t0}, 4, v{t0+1}
    v_and_b32 v{t0+2}, 2, v{t0+1}
    v_lshl_add_u32 v{t0}, v{t0+2}, 3, v{t0}
    v_and_b32 v{t0+2}, 1, v{t0+1}
    v_lshl_add_u32 v{t0}, v{t0+2}, 1, v{t0}
    v_mul_u32_u24 v{t0}, 3584, v{t0}
    {RB} v{t0+2}, {RBi}, v2
    v_lshl_add_u32 v{t0}, v{t0+2}, 4, v{t0}
    v_lshlrev_b32 v{t0+1}, 13, v{t0+1}
    v_lshl_add_u32 v{t0+1}, v{t0+2}, 4, v{t0+1}
    s_lshr_b32 s{s0}, s{sB}, 1
    s_lshl_b32 s{s0}, s{s0}, 2
    s_and_b32 s{sB}, s{sB}, 1
    s_add_u32 s{s0}, s{s0}, s{sB}
    s_mul_i32 s{s0}, s{s0}, {8*3584}
    s_lshl_b32 s{sB}, s{sC}, 7
    s_add_u32 s{s0}, s{s0}, s{sB}
    s_cmp_lt_u32 s{sC}, 28
    s_cselect_b32 s{s0}, s{s0}, {OOB}
    buffer_load_dwordx4 {A(PRE)}, v{t0}, {srd(WG_)}, s{s0} offen {CNT}
    buffer_load_dwordx4 {A(PRE+4)}, v{t0}, {srd(WG_)}, s{s0} offen offset:3584 {CNT}
    buffer_load_dwordx4 {A(PRE+8)}, v{t0}, {srd(WU_)}, s{s0} offen {CNT}
    buffer_load_dwordx4 {A(PRE+12)}, v{t0}, {srd(WU_)}, s{s0} offen offset:3584 {CNT}
    s_lshl_b32 s{s0}, s{sC}, 16
    s_lshl_b32 s{sB}, s{sW}, 11
    s_add_u32 s{s0}, s{s0}, s{sB}
    s_lshl_b32 s{sB}, s{sX}, 7
    s_add_u32 s{s0}, s{s0}, s{sB}
    buffer_load_dwordx4 {A(PRE+16)}, v{t0+1}, {srd(WD_)}, s{s0} offen {CNT}
    buffer_load_dwordx4 {A(PRE+20)}, v{t0+1}, {srd(WD_)}, s{s0} offen offset:1024 {CNT}""", "ex")
def repack_stores(t0, s0):
    return items(f"""s_lshr_b32 s{sC}, s2, 3
    s_sub_u32 s{sC}, s{sC}, 4
    s_and_b32 s{sC}, s{sC}, 31
    {f"s_bitcmp1_b32 s2, 0" if E_("ODDX") else ""}
    {f"s_cselect_b32 s{sC}, 31, s{sC}" if E_("ODDX") else ""}
    {RA} v{t0+2}, {RAi}, v2
    v_lshlrev_b32 v{t0+2}, 4, v{t0+2}
    {RB} v{t0+1}, {RBi}, v2
    v_lshl_add_u32 v{t0}, v{t0+1}, 13, v{t0+2}
    v_mul_u32_u24 v{t0+1}, 28672, v{t0+1}
    v_add_u32 v{t0+1}, v{t0+1}, v{t0+2}
    s_lshl_b32 s{s0}, s{sX}, 2
    s_add_u32 s{s0}, s{s0}, s{sW}
    s_lshl_b32 s{s0}, s{s0}, 7
    s_lshl_b32 s{sB}, s{sC}, 16
    s_add_u32 s{s0}, s{s0}, s{sB}
    s_add_u32 s{s0}, s{s0}, {WS_GP}
    s_cmp_lt_u32 s{sC}, s{sRPL}
    s_cselect_b32 s{s0}, s{s0}, {OOB - 0x400000}
    buffer_store_dwordx4 {A(PRE)}, v{t0}, {srd(WS)}, s{s0} offen {WT}
    s_add_u32 s{s0}, s{s0}, 4096
    buffer_store_dwordx4 {A(PRE+4)}, v{t0}, {srd(WS)}, s{s0} offen {WT}
    s_add_u32 s{s0}, s{s0}, {WS_UP - WS_GP - 4096}
    buffer_store_dwordx4 {A(PRE+8)}, v{t0}, {srd(WS)}, s{s0} offen {WT}
    s_add_u32 s{s0}, s{s0}, 4096
    buffer_store_dwordx4 {A(PRE+12)}, v{t0}, {srd(WS)}, s{s0} offen {WT}
    s_mul_i32 s{s0}, s{sX}, {8*28672}
    s_mul_i32 s{sB}, s{sW}, {2*3584}
    s_add_u32 s{s0}, s{s0}, s{sB}
    s_lshl_b32 s{sB}, s{sC}, 7
    s_add_u32 s{s0}, s{s0}, s{sB}
    s_add_u32 s{s0}, s{s0}, {WS_DP}
    s_cmp_lt_u32 s{sC}, s{sRPL}
    s_cselect_b32 s{s0}, s{s0}, {OOB}
    buffer_store_dwordx4 {A(PRE+16)}, v{t0+1}, {srd(WS)}, s{s0} offen {WT}
    buffer_store_dwordx4 {A(PRE+20)}, v{t0+1}, {srd(WS)}, s{s0} offen offset:3584 {WT}""", "pre")
MG, MD = 112, 128
def moe_loads(t0, s0):
    t = f"""v_lshlrev_b32 v{t0}, 4, v0
    v_cmp_gt_u32 vcc, 224, v0
    v_mov_b32 v{t0+1}, {OOB}
    v_cndmask_b32 v{t0+1}, v{t0+1}, v{t0}, vcc
    s_lshl_b32 s{s0}, s{sCG}, 13
    s_add_u32 s{s0}, s{s0}, {WS_GP}
    s_cmp_lt_u32 s{sCG}, 224
    s_cselect_b32 s{s0}, s{s0}, {OOB - 0x400000}
    buffer_load_dwordx4 {V(MG)}, v{t0}, {srd(WS)}, s{s0} offen
    s_add_u32 s{s0}, s{s0}, 4096
    buffer_load_dwordx4 {V(MG+4)}, v{t0}, {srd(WS)}, s{s0} offen
    s_add_u32 s{s0}, s{s0}, {WS_UP - WS_GP - 4096}
    buffer_load_dwordx4 {V(MG+8)}, v{t0}, {srd(WS)}, s{s0} offen
    s_add_u32 s{s0}, s{s0}, 4096
    buffer_load_dwordx4 {V(MG+12)}, v{t0}, {srd(WS)}, s{s0} offen
    s_mul_i32 s{s0}, s{sC2}, 28672
    s_add_u32 s{s0}, s{s0}, {WS_DP}
    s_cmp_lt_u32 s{sC2}, 64
    s_cselect_b32 s{s0}, s{s0}, {OOB - 0x400000}
    """
    for r in range(8):
        t += f"buffer_load_dwordx4 {V(MD+4*r)}, v{t0+1}, {srd(WS)}, s{s0} offen offset:{(r&1)*3584}\n"
        if r & 1 and r < 7: t += f"s_add_u32 s{s0}, s{s0}, 7168\n"
    return items(t, "ex")
def merge1_extra(g):
    t = f"""v_lshlrev_b32 v12, 3, v0
    s_lshl_b32 s{sC}, s2, 11
    s_add_u32 s{sC}, s{sC}, {WS_CAND}
    buffer_store_dwordx2 v[{vSEN}:{vSEN+1}], v12, {srd(WS)}, s{sC} offen {WT}
    s_lshl_b32 s{sC}, s2, 6
    s_add_u32 s{sC}, s{sC}, {WS_KEY}
    v_mov_b32 v13, 0
    buffer_store_dword v13, v7, {srd(WS)}, s{sC} offen {WT}
    s_lshl_b32 s{sC}, s{sCG}, 6
    s_add_u32 s{sC}, s{sC}, {WS_ACT}
    buffer_store_dwordx4 {V(vSEN)}, v7, {srd(WS)}, s{sC} offen {WT}
    buffer_store_dwordx4 {V(vSEN)}, v7, {srd(WS)}, s{sC} offen offset:16 {WT}
    """
    return items(t, "pre")
def late_mod_loads(g, b):
    it = items(f"""v_lshlrev_b32 v{b+4}, 2, v0
    v_cmp_gt_u32 vcc, 8, v0
    v_mov_b32 v{b+5}, {OOB}
    v_cndmask_b32 v{b+4}, v{b+5}, v{b+4}, vcc
    s_lshl_b32 s{sLM}, s2, 5
    s_add_u32 s{sLM}, s{sLM}, {WS_MODP + 4096}""")
    ld = []
    for q in range(4):
        ld += [("m", f"buffer_load_dword v{b+q}, v{b+4}, {srd(WS)}, s{sLM} offen"), ("s", f"s_add_u32 s{sLM}, s{sLM}, 12288")]
    return it, ld
def late_mod_fin(g, b):
    return items(f"""v_add_f32 v{b}, v{b}, v{b+1}
    v_add_f32 v{b+2}, v{b+2}, v{b+3}
    v_add_f32 v{b}, v{b}, v{b+2}
    v_cvt_pk_bf16_f32 v{b}, v{b}, v{b}
    v_and_b32 v{b}, 0xffff0000, v{b}
    s_lshr_b32 s{sLM}, s2, 6
    s_cmp_eq_u32 s{sLM}, 2
    s_cselect_b32 s{sLM}, 1.0, 0
    v_add_f32 v{b}, s{sLM}, v{b}
    v_cvt_pk_bf16_f32 v{b}, v{b}, v{b}
    v_and_b32 v{b}, 0xffff0000, v{b}
    s_lshl_b32 s{sLM}, s2, 5
    s_add_u32 s{sLM}, s{sLM}, {WS_MOD + 4096}
    buffer_store_dword v{b}, v{b+4}, {srd(WS)}, s{sLM} offen {WT}""", "ex")
def wo_voff(b):
    return items(f"""v_lshrrev_b32 v{b+1}, 1, v2
    v_lshrrev_b32 v{b+2}, 4, v2
    v_xor_b32 v{b+1}, v{b+1}, v{b+2}
    v_and_b32 v{b+1}, 3, v{b+1}
    v_lshlrev_b32 v{b+1}, 5, v{b+1}
    v_and_b32 v{b+2}, 1, v2
    v_lshl_add_u32 v{b+1}, v{b+2}, 4, v{b+1}
    v_lshrrev_b32 v{b}, 3, v2
    v_lshl_add_u32 v{b}, v{b}, 10, v{b+1}
    v_bfe_u32 v4, v2, 1, 2
    v_lshlrev_b32 v4, 11, v4
    v_lshl_add_u32 v4, v{b+2}, 6, v4
    v_add_u32 v{b+1}, 7168, v{b}
    v_add_u32 v{b+2}, {2*7168}, v{b}
    v_add_u32 v{b+3}, {3*7168}, v{b}""")
def cold_loads(t0, s0):
    return repack_loads(t0, s0) + items(f"""
    v_lshrrev_b32 v{t0+1}, 1, v2
    v_and_b32 v{t0+1}, 15, v{t0+1}
    v_lshlrev_b32 v{t0+1}, 10, v{t0+1}
    v_and_b32 v{t0+2}, 1, v2
    v_lshl_add_u32 v{t0+1}, v{t0+2}, 7, v{t0+1}
    s_lshl_b32 s{s0}, s{sP}, 2
    s_add_u32 s{s0}, s{s0}, s{sW}
    s_lshl_b32 s{s0}, s{s0}, 14
    buffer_load_dword a60, v{t0+1}, {srd(WO)}, s{s0} offen""", "ex")
def split_m(its, n):
    c = 0
    for i, it in enumerate(its):
        if it[0] == "m":
            c += 1
            if c == n: return its[:i + 1], its[i + 1:]
    return its, []
def peel_plan(g):
    pf = lambda a, b: sum((prefill_items(i) for i in range(a, b)), [])
    rs = []; rest = repack_stores(12, sPF)
    for i in range(6):
        a, rest = split_m(rest, 1); rs.append(a)
    wo = wodma(g, 0, 8)
    xl = lambda a, b: sum((xload(0, f) for f in range(a, b)), [])
    fsig = items(f"""s_lshl_b32 s{sFO}, s2, 6
    s_add_u32 s{sFO}, s{sFO}, {WS_FF}
    buffer_store_dword v6, v7, {srd(WS)}, s{sFO} offen {WT}""", "flag")
    cpoll = [("m", f"buffer_load_dword v3, v4, {srd(WS)}, s{sCFP} offen {WT}")]
    fc = first_c(2); wv = wo_voff(8)
    return [([pf(0, 2), rs[0]], [rs[1] + pf(2, 7), wv[:8]]),
            ([rs[2] + pf(7, 10)], [rs[3] + pf(10, 14), wv[8:]]),
            ([rs[4] + pf(14, 16) + cpoll], [rs[5] + merge1_extra(g), fc[:6]]),
            ([xc_items(sT1) + [("x", g.poll_check(3, 4, WS, f"s{sCFP}", "C1"))] + xl(0, 5)], [wo[:6] + xl(5, 8), fc[6:12]]),
            ([fsig + xl(8, 13)], [wo[6:] + xl(13, 16), fc[12:18]]),
            ([xl(16, 22)], [xl(22, 28), fc[18:26]]),
            ([xl(28, 32), fc[26:]], [])]
def peel_a(g, ph, r):
    for st in peel_plan(g)[r - 1][0]: ph.stream(st, 8 if any(it[0] == "m" for it in st[:3]) else 0)
def peel_b(g, ph, r):
    for st in peel_plan(g)[r - 1][1]: ph.stream(st, 0)
def diag_a(g, ph):
    if TK < 32:
        ph.stream(items(f"""v_mov_b32 v10, 1
        s_lshl_b32 s{sCND}, s{sP}, 2
        s_add_u32 s{sCND}, s{sCND}, s{sW}
        s_lshl_b32 s{sCND}, s{sCND}, 6
        s_add_u32 s{sCND}, s{sCND}, {WS_LF + 32}"""), 8)
    ph.stream(items("".join(f"v_mov_b32 v{24+i}, v{8+i}\n" for i in range(4)) + f"""v_add_u32 v11, {R4}, v{vMW}
    v_lshlrev_b32 v12, 6, v0
    s_mov_b32 s{sKEY}, {WS_FF}
    buffer_load_dword v3, v12, {srd(WS)}, s{sKEY} offen {WT}
    v_bfe_u32 v13, v2, 1, 4
    v_lshlrev_b32 v13, 10, v13
    v_and_b32 v14, 1, v2
    v_lshl_add_u32 v13, v14, 7, v13
    s_lshl_b32 s{sXL}, s{sP}, 2
    s_add_u32 s{sXL}, s{sXL}, s{sW}
    s_lshl_b32 s{sXL}, s{sXL}, 14
    {f"buffer_load_dword v14, v13, {srd(WO)}, s{sXL} offen" if E_("WOT", "1") == "1" else ""}"""), 0, dense=1)
def diag_b(g, ph):
    if E_("XT", "1") == "1":
        ph.stream(items(f"""s_and_b32 s{sTOK1}, s2, 31
        s_lshl_b32 s{sTOK1}, s{sTOK1}, 2
        s_add_u32 s{sTOK1}, s{sTOK1}, s{sW}
        s_lshl_b32 s{sTOK2}, s{sT1}, 7
        s_add_u32 s{sTOK1}, s{sTOK1}, s{sTOK2}
        s_lshl_b32 s{sTOK1}, s{sTOK1}, 10
        s_sub_u32 s{sTOK2}, s{sT2}, s{sT1}
        s_lshl_b32 s{sTOK2}, s{sTOK2}, 17
        v_bfe_u32 v9, v2, 3, 1
        v_mul_lo_u32 v9, v9, s{sTOK2}
        v_and_b32 v8, 7, v2
        v_lshl_add_u32 v9, v8, 7, v9
        buffer_load_dword v8, v9, {srd(XS)}, s{sTOK1} offen""", "pf"), 2)
    if TK < 32: ph.put("x", f"buffer_atomic_add v10, v5, {srd(WS)}, s{sCND} offen sc0 sc1", 3)
    if "3" in E_("CT", "123"): ph.stream(code_touch("L_ct3", "L_ct3", "L_end", 13, "v13", 4), 1)
    ph.put("x", g.poll_check(3, 12, WS, f"s{sKEY}", "F"), 31)
def merge_x(g):
    its = items(f"""v_lshrrev_b32 v{OA+2}, 2, v2
    v_and_b32 v{OA+1}, 3, v2
    v_lshlrev_b32 v{OA}, 7, v{OA+2}
    v_lshl_add_u32 v{OA}, v{OA+1}, 3, v{OA}
    v_bfe_u32 v{OA+1}, v2, 3, 2
    v_lshl_add_u32 v{OA}, v{OA+1}, 5, v{OA}
    v_xor_b32 v{OA+1}, 32, v{OA}
    v_xor_b32 v{OA+2}, 64, v{OA}
    v_xor_b32 v{OA+3}, 96, v{OA}
    v_add_u32 v{OA+4}, {R2}, v{OA}
    v_add_u32 v{OA+5}, {R2}, v{OA+1}
    v_add_u32 v{OA+6}, {R2}, v{OA+2}
    v_add_u32 v{OA+7}, {R2}, v{OA+3}""")
    return its

KS = int(E_("KS", "0"))
OC4 = E_("OC4", "0") == "1" and KS == 0
XE, OE = 128, 8
def steps(var):
    top = 8 - KS if var == "odd" else 8
    ex = list(range(8, 8 + KS)) if var == "even" else []
    s0 = [(c, n2) for c in range(2) for n2 in range(4)] + [(c, n2) for c in range(2) for n2 in range(4, top)] + [(c, n2) for c in range(2) for n2 in ex]
    s0 += [(c, n2) for c in (2, 3) for n2 in list(range(top)) + ex]
    s1 = [(c, n2) for c in range(4) for n2 in range(4)] + [(c, n2) for c in range(4) for n2 in range(4, 8)]
    return [(0,) + s for s in s0] + [(1,) + s for s in s1]
def piece(st):
    _, c, n2 = st
    return 4 if n2 >= 8 else [q for q in range(4) if PCH[q] == c >> 1 and PKH[q] == n2 >> 2][0]
def oread(i, ST=None):
    st = (ST or steps("even"))[i]; _, c, n2 = st
    it = []
    for nt in range(2):
        for h in range(2):
            if n2 >= 8: va = OE + 2 * (c & 1) + nt; o = (c >> 1) * 16384 + (2 * (n2 - 6 - KS) + h) * 4096
            else:
                reg = OQB[piece(st)]
                va = OA + (0 if reg < R2 else 4) + 2 * (c & 1) + nt; o = (reg & 0xffff) + (2 * (n2 & 3) + h) * 4096
                if OC4: va = OA + (0 if reg < R2 else 4) + 2 * (c & 1) + (n2 & 1); o = (reg & 0xffff) + (2 * (n2 & 2) + nt * 2 + h) * 4096
            f = WR0 + ((i & 3) * 4 + nt * 2 + h) * 4
            it += [("l", f"ds_read_b64_tr_b16 a[{f}:{f+1}], v{va} offset:{o}"), ("l", f"ds_read_b64_tr_b16 a[{f+2}:{f+3}], v{va} offset:{o+2048}")]
    return it
def oproj_first(g):
    g.run(oread(0) + oread(1))

GW, K0 = 8, 16
P1R, P2R, GA, CB, SB, GB, XR1, XR2, WRR = 128, 192, 160, 168, 176, 184, 32, 36, 40
vPL, vCB, vCF = 44, 45, 46
SV = int(E_("SV", "0"))
XRB, P1B = 28, 224
def pload(T12, dst, nb=0, base=None):
    it = []
    for x in range(8):
        it += [("s", f"s_add_u32 s{sXL}, s{base or sPC}, {(T12 << 23) + nb * 32768 + x * 4096}"), ("m", f"buffer_load_dwordx4 {V(dst+4*x)}, v{vPL}, {srd(WS)}, s{sXL} offen {WT}")]
    return it

def epi(pas, c):
    it = []
    for tt in range(2):
        b = OACC + c * 16 + tt * 8
        it += [("v", f"v_cvt_pk_bf16_f32 v{b+i}, v{b+2*i}, v{b+2*i+1}") for i in range(4)]
        it += [("v", f"v_min_u32 v{b+i}, -2, v{b+i}") for i in range(4)]
        it += [("s", f"s_add_u32 s{sPS}, s{sPB}, {(pas << 23) + tt * 131072}"), ("m", f"buffer_store_dwordx4 {V(b)}, v{vPO}, {srd(WS)}, s{sPS} offen offset:{c*256} {WT}", "pst")]
    return it

def oproj_phase(g, var):
    k = g.k
    ST = steps(var); PB = 8 * (len(ST) - 32)
    EV = lambda key, d: int(E_(key + "_" + var, E_(key, str(d))))
    M = []
    for i, (pas, c, n2) in enumerate(ST):
        if OC4:
            for tt in range(2):
                for h in range(4):
                    n = 4 * (n2 >> 1) + h; f = (n >> 2) * 8 + tt * 4 + h
                    d = V(OACC + c * 16 + tt * 8 + (n2 & 1) * 4)
                    M.append(MF(d, A(WR0 + ((i & 3) * 4 + h) * 4), A(X1R(f)) if pas == 0 else V(X2 + 4 * f), "0" if n == 0 else d))
            continue
        oc = E_("OC1", "0")
        seq = {"0": [(nt, tt, h) for nt in range(2) for tt in range(2) for h in range(2)],
               "1": [(nt, tt, h) for h in range(2) for nt in range(2) for tt in range(2)],
               "2": [(nt, tt, h) for nt in range(2) for h in range(2) for tt in range(2)]}[oc]
        for (nt, tt, h) in seq:
            if True:
                if True:
                    n = 2 * n2 + h; f = (n >> 2) * 8 + tt * 4 + (n & 3)
                    x = A(XE + 4 * (tt * 4 + 2 * (n2 - 6 - KS) + h)) if n2 >= 8 else A(X1R(f)) if pas == 0 else V(X2 + 4 * f)
                    d = V(OACC + c * 16 + tt * 8 + nt * 4)
                    M.append(MF(d, A(WR0 + ((i & 3) * 4 + nt * 2 + h) * 4), x, "0" if n == 0 else d))
    ph = Phase(k, M); ph.thin = True; ph.batch = int(E_('BATO', '9'))
    first2 = 8 * min(i for i, st in enumerate(ST) if piece(st) >= 2)
    Z0 = min(EV("Z0", 102), first2 - 14)
    short = var == "odd" and KS > 0
    ZC = EV("ZC", 92 if short else 102)
    ph.put("x", g.bar(["wo1"], False), 34)
    if ZC == Z0: ph.put("x", g.bar(["wo2", "wo3", "wo4", "ctx"], False), Z0)
    else: ph.put("x", g.bar(["wo2"], False), Z0); ph.put("x", g.bar(["wo3", "ctx"], False), ZC)
    st4 = 3 if var == "even" and KS else 4
    gx = ph.stream(wodma(g, 2), 0, None, step=4, sid=940)
    gxe = 4
    if var == "even" and KS:
        gxe = ph.stream(items(f"""s_add_u32 s{sKEY}, s{sXC}, {4 << 13}
        s_xor_b32 s{sKEY}, s{sKEY}, {3 << 13}
        s_xor_b32 s{sIDX}, s{sJ}, 3
        s_lshl_b32 s{sIDX}, s{sIDX}, 1
        s_and_b32 s{sB}, s{sW}, 1
        s_add_u32 s{sIDX}, s{sIDX}, s{sB}
        s_lshl_b32 s{sIDX}, s{sIDX}, 16
        s_lshr_b32 s{sB}, s{sW}, 1
        s_lshl_b32 s{sB}, s{sB}, 7
        s_add_u32 s{sIDX}, s{sIDX}, s{sB}""" + "".join(f"\nv_add_u32 v{OE+q}, {R4}, v{OA+q}" for q in range(4))), 0, sid=941)
        w4 = []
        for h in range(2): w4 += g.dma4(WO, [24, 25, 26, 27], (sW8, R4 + h * 4096), (sIDX, 524288 + h * 32768), "wo4")
        gx = ph.stream(w4, max(gx, 34) + 1, None, step=st4, sid=940)
        xe = []
        for u in range(4 - 2 * KS, 4):
            for tt in range(2): xe.append(("m", f"buffer_load_dwordx4 {A(XE + 4*(tt*4+u))}, v{vL2 if tt else 1}, {srd(WS)}, s{sKEY} offen offset:{u*1024}"))
        ph.stream(xe, gxe + 1, None, step=4, sid=941)
    gx = ph.stream(wodma(g, 3), max(gx, 34) + 1, None, step=st4, sid=940)
    CD = EV("CD", 80 if short else 90); CK = PB - EV("CK", 56 - 10 * KS if short else 56)
    g1 = ph.stream([("s", f"s_add_u32 s{sCFO}, s{sCFO}, 65536"), ("s", f"s_add_u32 s{sCFP}, s{sCFP}, 65536")] + xc_items(sT2), gxe + 1)
    g1 = ph.stream(g.flag_store(sCFO, ["ctx"]), CD)
    gpl = g1 = ph.stream([("m", f"buffer_load_dword v3, v4, {srd(WS)}, s{sCFP} offen {WT}")], CK - EV("CL", 45))
    ph.put("x", g.poll_check(3, 4, WS, f"s{sCFP}", "C2"), CK)
    xl2 = lambda a, b: sum((xload(1, (n >> 2) * 8 + tt * 4 + (n & 3)) for n in range(a, b) for tt in range(2)), [])
    g1 = ph.stream(xl2(0, 4), ZC + 1, None, step=3, sid=951)
    g1 = ph.stream(xl2(4, 8), max(g1, CK) + 1, None, step=EV("XST", 4), sid=951)
    g1 = ph.stream(xl2(8, 16), max(g1 + 1, PB - 6), None, step=5, sid=951)
    g2 = ph.stream(items(f"""v_lshrrev_b32 v{vCF}, 2, v2
    v_and_b32 v{vCB}, 3, v2
    v_lshlrev_b32 v{vPL}, 8, v{vCF}
    v_lshl_add_u32 v{vPL}, v{vCB}, 4, v{vPL}
    v_lshlrev_b32 v{vCB}, 3, v{vCB}
    v_lshl_add_u32 v{vCB}, v{vCF}, 6, v{vCB}
    v_lshlrev_b32 v{vCF}, 1, v{vCB}
    s_lshl_b32 s{sPC}, s2, 15
    s_lshl_b32 s{sB}, s{sW}, 6
    s_add_u32 s{sPC}, s{sPC}, s{sB}
    s_add_u32 s{sPC}, s{sPC}, {WS_P}
    s_and_b32 s{sTOK1}, s2, 31
    s_lshl_b32 s{sTOK1}, s{sTOK1}, 2
    s_add_u32 s{sTOK1}, s{sTOK1}, s{sW}
    s_lshl_b32 s{sTOK2}, s{sT2}, 7
    s_add_u32 s{sTOK2}, s{sTOK2}, s{sTOK1}
    s_lshl_b32 s{sB}, s{sT1}, 7
    s_add_u32 s{sTOK1}, s{sTOK1}, s{sB}
    s_lshl_b32 s{sB}, s{sTOK1}, 10
    s_lshl_b32 s{sC}, s{sTOK2}, 10"""), 60, sid=950)
    x1l = f"""buffer_load_dwordx2 v[{XR1}:{XR1+1}], v{vCB}, {srd(XS)}, s{sB} offen
    buffer_load_dwordx2 v[{XR1+2}:{XR1+3}], v{vCB}, {srd(XS)}, s{sB} offen offset:32
    """
    if SV == 1 and var == "odd": x1l = ""
    if SV and var == "even": x1l += f"""s_add_u32 s{sB}, s{sB}, 4096
    buffer_load_dwordx2 v[{XRB}:{XRB+1}], v{vCB}, {srd(XS)}, s{sB} offen
    buffer_load_dwordx2 v[{XRB+2}:{XRB+3}], v{vCB}, {srd(XS)}, s{sB} offen offset:32
    """
    g2 = ph.stream(items(x1l + f"""buffer_load_dwordx2 v[{XR2}:{XR2+1}], v{vCB}, {srd(XS)}, s{sC} offen
    buffer_load_dwordx2 v[{XR2+2}:{XR2+3}], v{vCB}, {srd(XS)}, s{sC} offen offset:32
    buffer_load_dwordx2 v[{WRR}:{WRR+1}], v{vCB}, {srd(WR_)}, 0 offen
    buffer_load_dwordx2 v[{WRR+2}:{WRR+3}], v{vCB}, {srd(WR_)}, 0 offen offset:32"""), max(g1 + 1, PB + 84), None, step=4, sid=950)
    gwr = g2
    its = []
    for (R, seg) in ((CB, 4), (SB, 3), (GA, 2), (GB, 5)):
        its += [("s", f"s_mov_b32 s{sXL}, {WS_MOD + seg*2048}"), ("m", f"buffer_load_dwordx4 {V(R)}, v{vCF}, {srd(WS)}, s{sXL} offen"), ("m", f"buffer_load_dwordx4 {V(R+4)}, v{vCF}, {srd(WS)}, s{sXL} offen offset:64")]
    if TK < 32 and var == "odd": its = its[:6] + pload(0, P1R) + its[6:]
    g2 = ph.stream(its, max(g2 + 1, PB + 130), None, step=3)
    if TK < 32 and var == "odd": g2 -= 24
    if SV == 2 and var == "odd":
        ph.stream(items(f"s_cmp_lt_u32 s{sW}, 2\ns_cselect_b32 s{sCND}, s{sPC}, {OOB - 0x100000}") + pload(0, P1R, 0, sCND), max(g2 + 1, PB + EV("P1G", 216)), None, step=4)
    elif E_("NOP1") and var != "odd":
        ph.stream(items("".join(f"v_mov_b32 v{P1R+i}, -1\n" for i in range(32))), PB + 134)
    elif not ((SV or TK < 32) and var == "odd"): ph.stream(pload(0, P1R), max(g2 + 1, PB + EV("P1G", 216)), None, step=EV("P1S", 4))
    kk = K(); unpack(kk, 48, WRR, 8)
    for i in range(8): kk(f"v_mul_f32 v{GW+i}, v{48+i}, v{CB+i}")
    kk(f"v_mul_f32 v{K0}, v48, v{SB}")
    for i in range(1, 8): kk(f"v_fmac_f32 v{K0}, v{48+i}, v{SB+i}")
    allred(kk, [K0], tmp=[19])
    gk = items("\n".join(kk.out))
    g3 = 0
    for c in range(4):
        done = 8 * max(i for i, st in enumerate(ST) if st[0] == 0 and st[1] == c) + 8
        g3 = ph.stream(epi(0, c), max(done + 6, g3 + 1, gpl - 7 if c == 1 and E_("CFX", "1") == "1" else 0)); assert g3 < PB + 32 * c - 2, g3
    for c in range(3): ph.stream(epi(1, c), PB + 128 + 32 * (c + 1) + 6)
    ph.stream(gk[:8], gwr + 40, sid=952)
    ph.stream(gk[8:], g2 + 30, PB + 244, sid=952)
    for i in range(2, len(ST)):
        lo = 8 * (i - 3)
        if ST[i][0] == 0:
            pc = piece(ST[i])
            lo = max(lo, [0, 35, Z0 + 1, ZC + 1, Z0 + 1][pc])
        ph.stream(oread(i, ST), lo, 8 * i - int(E_('ODL', '13')))
    if g.TS:
        n0 = g.nts
        ph.put("x", g.ts, PB - 1)
        for gp in (E_("TSO") or "").split(","):
            if gp: ph.put("x", lambda k: g.ts(k, True), int(gp))
    ph.emit()
    print("oproj", var, ": overloaded placements", ph.over, file=sys.stderr)

TK = int(E_("TK", "32"))
def oproj(g):
    k = g.k
    if KS or SV or TK < 32:
        st = k.save(); n0 = g.nts
        if TK < 32: k(f"s_cmp_ge_u32 s{sCND}, {TK}\ns_cbranch_scc1 L_op_odd")
        else: k("s_bitcmp1_b32 s2, 0\ns_cbranch_scc1 L_op_odd")
        oproj_phase(g, "even"); after(g, "even")
        k("s_branch L_op_join")
        k.restore(st); g.nts = n0
        k.label("L_op_odd")
        oproj_phase(g, "odd"); after(g, "odd")
        g.page("a")
        k.label("L_op_join")
    else: oproj_phase(g, "all"); after(g, "all"); g.page("a")

D1, D2, H1, H2, O1, O2, KEY1, KEY2 = 64, 80, 20, 24, 56, 60, 17, 18
def after(g, var):
    k = g.k
    TT = lambda: g.ts(force=True) if E_('TST') else None
    g.run(epi(1, 3))
    if E_("TSO"): g.ts(force=True)
    pm = 0xf << (4 * int(E_("PQC", "1"))); pm |= pm << 16
    k(f"s_mov_b32 s{sPM}, {pm:#x}\ns_mov_b32 s{sPM+1}, {pm:#x}")
    two = SV and var == "even"
    if two and SV == 2: k(f"s_cmp_ge_u32 s{sW}, 2\ns_cselect_b32 s{sCND}, s{sPC}, {OOB - 0x100000}"); g.run(pload(0, P1B, 1, sCND))
    elif two: g.run(pload(0, P1B, 1))
    for i in range(0, 32, 2): k(f"v_mov_b64 v[{P2R+i}:{P2R+i+1}], -1")
    k(f"s_mov_b64 exec, s[{sPM}:{sPM+1}]")
    g.run(pload(1, P2R))
    k("s_mov_b64 exec, -1")
    g.ts(force=bool(E_("TSO"))); TT()
    k("v_mov_b32 v100, 0x3f80\nv_mov_b32 v101, 0x3f800000")
    unpack(k, D2 + 8, XR2, 8)
    if SV == 1 and var == "odd":
        k(f"v_mov_b32 v{KEY1}, 0\ns_mov_b32 s{sTOK1}, {OOB >> 10}")
    else:
        slow, ok = k.lab("P1_slow"), k.lab("P1_ok")
        unpack(k, D1 + 8, XR1, 8)
        t = f"v_max_u32 v3, v{P1R}, v{P1R+1}\n"
        for i in range(2, 32, 2): t += f"v_max3_u32 v3, v3, v{P1R+i}, v{P1R+i+1}\n"
        k(t + f"v_cmp_eq_u32 vcc, -1, v3\ns_cbranch_vccnz {slow}")
        k.label(ok)
        k2 = K(); k2.nlab = 5000 + k.nlab * 20; k2.label(slow); g2 = type("g2", (), dict(k=k2, run=lambda self, its: [k2(it[1]) for it in its]))()
        p1 = 0xf << (4 * int(E_("PQ1", "3"))); p1 |= p1 << 16
        k2(f"s_mov_b32 s14, {p1:#x}\ns_mov_b32 s15, {p1:#x}")
        part_wait(g2, 0, P1R, pmask=14); k2(f"s_branch {ok}")
        g.tail.append("\n".join(k2.out))
        token(g, P1R, XR1, D1, sTOK1, KEY1); token2(g, XR1, D1, H1, O1)
    if SV == 2 and var == "odd":
        token3(g, D1, H1, O1)
        k(f"""s_cmp_lt_u32 s{sW}, 2
        s_cselect_b32 s{sTOK1}, s{sTOK1}, {OOB >> 10}
        s_cselect_b32 s{sB}, -1, 0
        v_and_b32 v{KEY1}, s{sB}, v{KEY1}""")
    if two:
        HB, OB, KB = 104, 108, 103
        token3(g, D1, H1, O1)
        if SV == 2: k(f"s_cmp_lt_u32 s{sW}, 2\ns_cbranch_scc1 L_one")
        unpack(k, D1 + 8, XRB, 8)
        k(f"s_add_u32 s{sIDX}, s{sTOK1}, 4")
        part_wait(g, 0, P1B, 1)
        token(g, P1B, XRB, D1, sIDX, KB); token2(g, XRB, D1, HB, OB); token3(g, D1, HB, OB)
        k(f"v_cmp_gt_u32 vcc, v{KB}, v{KEY1}\ns_cbranch_vccz L_keep")
        k(f"v_mov_b32 v{KEY1}, v{KB}\ns_mov_b32 s{sB}, s{sTOK1}\ns_mov_b32 s{sTOK1}, s{sIDX}\ns_mov_b32 s{sIDX}, s{sB}")
        for i in range(4): k(f"v_mov_b32 v{H1+i}, v{HB+i}\nv_mov_b32 v{XR1+i}, v{XRB+i}\nv_swap_b32 v{O1+i}, v{OB+i}")
        k.label("L_keep")
        k(f"""s_lshl_b32 s{sB}, s{sIDX}, 10
        buffer_store_dwordx2 v[{OB}:{OB+1}], v{vCB}, {srd(OUT)}, s{sB} offen
        buffer_store_dwordx2 v[{OB+2}:{OB+3}], v{vCB}, {srd(OUT)}, s{sB} offen offset:32""")
        k.label("L_one")
    g.run(moe_loads(98, sPF)[:7])
    k(f"""s_lshl_b32 s{sB}, s{sW}, 2
    v_mov_b32 v47, s{sB}
    v_mov_b32 v102, 0
    s_lshl_b32 s{sB}, s2, 6
    s_add_u32 s{sB}, s{sB}, {WS_KEY}
    s_lshl_b32 s{sC}, s2, 11
    s_add_u32 s{sC}, s{sC}, {WS_CAND}""")
    g.ts()

def allred(k, regs, op="v_add_f32", tmp=None):
    for pat in ("quad_perm:[1,0,3,2]", "quad_perm:[2,3,0,1]", "row_half_mirror", "row_mirror"):
        for r in regs: k(f"{op}_dpp v{r}, v{r}, v{r} {pat} row_mask:0xf bank_mask:0xf")
    for sw in ("v_permlane16_swap_b32", "v_permlane32_swap_b32"):
        for r, t in zip(regs, tmp): k(f"v_mov_b32 v{t}, v{r}")
        for r, t in zip(regs, tmp): k(f"{sw} v{r}, v{t}")
        for r, t in zip(regs, tmp): k(f"{op} v{r}, v{r}, v{t}")
def unpack(k, dst, src, n):
    for i in range(n // 2):
        k(f"v_lshlrev_b32 v{dst+2*i}, 16, v{src+i}\nv_and_b32 v{dst+2*i+1}, 0xffff0000, v{src+i}")
def pack(k, dst, src, n):
    for i in range(n // 2): k(f"v_cvt_pk_bf16_f32 v{dst+i}, v{src+2*i}, v{src+2*i+1}")
def bf1(k, r): k(f"v_cvt_pk_bf16_f32 v{r}, v{r}, v{r}\nv_and_b32 v{r}, 0xffff0000, v{r}")

def sent_wait(g, regs, reload_items, name, sleep=2):
    k = g.k
    lp, ok = k.lab(name + "_l"), k.lab(name + "_ok")
    k(f"s_mov_b32 s{sD}, 0")
    k.label(lp)
    k("s_waitcnt vmcnt(0)")
    k(f"v_max_u32 v3, v{regs[0]}, v{regs[1]}")
    rest = regs[2:]
    for i in range(0, len(rest) - 1, 2): k(f"v_max3_u32 v3, v3, v{rest[i]}, v{rest[i+1]}")
    k(f"""v_cmp_eq_u32 vcc, -1, v3
    s_add_u32 s{sD}, s{sD}, 1
    s_cbranch_vccz {ok}
    s_cmp_ge_u32 s{sD}, {SPIN}
    s_cbranch_scc1 {ok}
    s_mov_b64 exec, vcc""")
    if sleep: k(f"s_sleep {sleep}")
    g.run(reload_items)
    k(f"s_branch {lp}")
    k.label(ok)
    k("s_mov_b64 exec, -1")
    k.vm = []

def part_wait(g, T12, R, nb=0, pmask=None):
    k = g.k
    lp, ok = k.lab("P2_l"), k.lab("P2_ok")
    k(f"s_mov_b32 s{sD}, 0")
    k.label(lp)
    k("s_waitcnt vmcnt(0)")
    for x in range(8): k(f"v_max_u32 v{48+x}, v{R+4*x}, v{R+4*x+1}\nv_max3_u32 v{48+x}, v{48+x}, v{R+4*x+2}, v{R+4*x+3}")
    k(f"""v_max3_u32 v3, v48, v49, v50
    v_max3_u32 v3, v3, v51, v52
    v_max3_u32 v3, v3, v53, v54
    v_max_u32 v3, v3, v55
    v_cmp_eq_u32 vcc, -1, v3
    s_add_u32 s{sD}, s{sD}, 1
    s_cbranch_vccz {ok}
    s_cmp_ge_u32 s{sD}, {SPIN}
    s_cbranch_scc1 {ok}
    s_sleep {E_("PSL", "1")}""")
    pl = pload(T12, R, nb)
    for x in range(8):
        sk = k.lab("P2_s")
        k(f"v_cmp_eq_u32 vcc, -1, v{48+x}\ns_cbranch_vccz {sk}\ns_and_b64 s[{sXB}:{sXB+1}], vcc, s[{pmask or sPM}:{(pmask or sPM)+1}]\ns_cselect_b64 exec, s[{sXB}:{sXB+1}], vcc")
        g.run(pl[2 * x:2 * x + 2])
        k("s_mov_b64 exec, -1")
        k.label(sk)
    k(f"s_branch {lp}")
    k.label(ok)
    k.vm = []

def token(g, PR, XR, D, sTOK, key):
    k = g.k; T = 48
    unpack(k, D, PR, 8)
    for x in range(1, 8):
        for i in range(8): k(f"v_dot2c_f32_bf16 v{D+i}, v{PR+4*x+(i>>1)}, v{100+(i&1)}")
    for i in range(0, 8, 2): k(f"v_pk_fma_f32 v[{D+i}:{D+i+1}], v[{D+i}:{D+i+1}], v[{GA+i}:{GA+i+1}], v[{D+8+i}:{D+9+i}]")
    pack(k, XR, D, 8); unpack(k, D, XR, 8)
    k(f"""v_pk_add_f32 v[{T}:{T+1}], v[{D}:{D+1}], v[{D+2}:{D+3}]
    v_pk_add_f32 v[{T+2}:{T+3}], v[{D+4}:{D+5}], v[{D+6}:{D+7}]
    v_pk_add_f32 v[{T}:{T+1}], v[{T}:{T+1}], v[{T+2}:{T+3}]
    v_add_f32 v{T}, v{T}, v{T+1}""")
    allred(k, [T], tmp=[T + 1])
    k(f"v_mul_f32 v{T}, {H(-1/512)}, v{T}")
    for i in range(0, 8, 2): k(f"v_pk_add_f32 v[{D+8+i}:{D+9+i}], v[{D+i}:{D+i+1}], v[{T}:{T+1}] op_sel_hi:[1,0]")
    k(f"v_pk_mul_f32 v[{T+2}:{T+3}], v[{D+8}:{D+9}], v[{D+8}:{D+9}]\nv_pk_mul_f32 v[{T+4}:{T+5}], v[{D+8}:{D+9}], v[{GW}:{GW+1}]")
    for i in range(2, 8, 2):
        k(f"v_pk_fma_f32 v[{T+2}:{T+3}], v[{D+8+i}:{D+9+i}], v[{D+8+i}:{D+9+i}], v[{T+2}:{T+3}]")
        k(f"v_pk_fma_f32 v[{T+4}:{T+5}], v[{D+8+i}:{D+9+i}], v[{GW+i}:{GW+i+1}], v[{T+4}:{T+5}]")
    k(f"v_add_f32 v{T+2}, v{T+2}, v{T+3}\nv_add_f32 v{T+4}, v{T+4}, v{T+5}")
    allred(k, [T + 2, T + 4], tmp=[T + 3, T + 5])
    k(f"""v_mov_b32 v{T}, {H(1e-5)}
    v_fmac_f32 v{T}, {H(1/512)}, v{T+2}
    v_rsq_f32 v{T}, v{T}
    v_fma_f32 v{T+4}, v{T+4}, v{T}, v{K0}
    v_ashrrev_i32 v{T+5}, 31, v{T+4}
    v_or_b32 v{T+5}, 0x80000000, v{T+5}
    v_xor_b32 v{T+5}, v{T+5}, v{T+4}
    v_and_b32 v{T+5}, 0xfffff800, v{T+5}
    v_or_b32 v{key}, s{sTOK}, v{T+5}""")
def token2(g, XR, D, HP, OP):
    k = g.k; T = 48
    for i in range(0, 8, 2): k(f"v_pk_mul_f32 v[{D+8+i}:{D+9+i}], v[{D+8+i}:{D+9+i}], v[{T}:{T+1}] op_sel_hi:[1,0]")
    for i in range(0, 8, 2): k(f"v_pk_fma_f32 v[{D+8+i}:{D+9+i}], v[{D+8+i}:{D+9+i}], v[{CB+i}:{CB+i+1}], v[{SB+i}:{SB+i+1}]")
    pack(k, HP, D + 8, 8)
def token3(g, D, HP, OP):
    k = g.k
    unpack(k, D + 8, HP, 8)
    for i in range(0, 8, 2): k(f"v_pk_mul_f32 v[{D+8+i}:{D+9+i}], v[{D+8+i}:{D+9+i}], v[{GB+i}:{GB+i+1}]")
    pack(k, OP, D + 8, 8); unpack(k, D + 8, OP, 8)
    for i in range(0, 8, 2): k(f"v_pk_add_f32 v[{D+8+i}:{D+9+i}], v[{D+8+i}:{D+9+i}], v[{D+i}:{D+i+1}]")
    pack(k, OP, D + 8, 8)

def tail(g):
    k = g.k
    TT = lambda: g.ts(force=True) if E_('TST') else None
    GU, WDF = 160, [192 + i for i in range(64)]
    ml = moe_loads(98, sPF)
    part_wait(g, 1, P2R)
    g.ts(); TT()
    token(g, P2R, XR2, D2, sTOK2, KEY2)
    TT()
    k(f"""v_max3_u32 v19, v{KEY1}, v{KEY2}, 1
    ds_write_b32 v47, v19
    s_waitcnt lgkmcnt(0)
    s_barrier
    ds_read_b128 v[52:55], v102""")
    token2(g, XR2, D2, H2, O2)
    k(f"""v_max_u32 v52, v52, v53
    v_max3_u32 v52, v52, v54, v55
    v_cmp_eq_u32 vcc, v52, v19
    s_cbranch_vccz L_notbest
    buffer_store_dword v19, v5, {srd(WS)}, s{sB} offen {WT}
    v_cmp_gt_u32 vcc, v{KEY1}, v{KEY2}""")
    for i in range(4): k(f"v_cndmask_b32 v{28+i}, v{H2+i}, v{H1+i}, vcc\nv_cndmask_b32 v{40+i}, v{XR2+i}, v{XR1+i}, vcc")
    for i in range(4): k(f"v_min_u32 v{28+i}, -2, v{28+i}\nv_min_u32 v{40+i}, -2, v{40+i}")
    k(f"""buffer_store_dwordx4 v[28:31], v1, {srd(WS)}, s{sC} offen {WT}
    buffer_store_dwordx4 v[40:43], v1, {srd(WS)}, s{sC} offen offset:1024 {WT}""")
    k.vm = k.vm[:-3]
    k.label("L_notbest")
    TT()
    g.run(ml[7:])
    if not SV: token3(g, D1, H1, O1)
    token3(g, D2, H2, O2)
    k(f"""v_lshlrev_b32 v4, 6, v0
    s_mov_b32 s{sKEY}, {WS_KEY}
    s_mov_b32 s{sD}, 0""")
    g.page("b")
    k.label("L_kl")
    k(f"""buffer_load_dword v3, v4, {srd(WS)}, s{sKEY} offen {WT}
    s_add_u32 s{sD}, s{sD}, 1
    s_waitcnt vmcnt(0)
    v_cmp_eq_u32 vcc, 0, v3
    s_cbranch_vccz L_kd
    s_cmp_ge_u32 s{sD}, {SPIN}
    s_cbranch_scc1 L_kd
    s_mov_b64 exec, vcc
    s_sleep {E_("KSL", "2")}
    s_branch L_kl""")
    k.label("L_kd")
    k("s_mov_b64 exec, -1")
    TT()
    allred(k, [3], op="v_max_u32", tmp=[19])
    k(f"""ds_write_b32 v47, v3 offset:64
    s_waitcnt lgkmcnt(0)
    s_barrier
    ds_read_b128 v[52:55], v102 offset:64
    v_lshlrev_b32 v4, 2, v0
    v_max_u32 v52, v52, v53
    v_max3_u32 v52, v52, v54, v55
    v_readfirstlane_b32 s{sKEY}, v52
    s_and_b32 s{sIDX}, s{sKEY}, 2047
    s_lshr_b32 s{sB}, s{sIDX}, 7
    s_sub_u32 s{sC}, 15, s{sB}
    s_min_u32 s{sB}, s{sB}, s{sC}
    s_lshl_b32 s{sB}, s{sB}, 16
    s_and_b32 s{sC}, s{sIDX}, {1026 if SV == 2 else 1024}
    s_cmp_eq_u32 s{sC}, {2 if SV == 2 else 0}
    s_cselect_b32 s{sCND}, {30 if SV else 31}, 31
    s_lshr_b32 s{sC}, s{sIDX}, 2
    s_and_b32 s{sCND}, s{sCND}, s{sC}
    s_lshl_b32 s{sCND}, s{sCND}, 2
    s_lshl_b32 s{sCND}, s{sCND}, 9
    s_add_u32 s{sCND}, s{sCND}, s{sB}
    s_add_u32 s{sCND}, s{sCND}, {WS_CAND}""")
    hl = [("m", f"buffer_load_dword v19, v4, {srd(WS)}, s{sCND} offen {WT}")]
    g.run(hl)
    g.ts(); TT()
    for (sT, O) in ((sTOK1, O1), (sTOK2, O2)):
        k(f"""s_lshl_b32 s{sB}, s{sT}, 10
        s_cmp_eq_u32 s{sT}, s{sIDX}
        s_cselect_b32 s{sB}, {OOB}, s{sB}
        buffer_store_dwordx2 v[{O}:{O+1}], v{vCB}, {srd(OUT)}, s{sB} offen {E_("OP", "")}
        buffer_store_dwordx2 v[{O+2}:{O+3}], v{vCB}, {srd(OUT)}, s{sB} offen offset:32 {E_("OP", "")}""")
    k(f"s_cmp_ge_u32 s{sCG}, 224\ns_cbranch_scc1 L_nprod")
    lp, ok = "L_hl", "L_hok"
    unpack(k, GU, MG, 32)
    k(f"s_mov_b32 s{sD}, 0\ns_waitcnt vmcnt(4)")
    k.label(lp)
    k(f"""v_cmp_eq_u32 vcc, -1, v19
    s_add_u32 s{sD}, s{sD}, 1
    s_cbranch_vccz {ok}
    s_cmp_ge_u32 s{sD}, {SPIN}
    s_cbranch_scc1 {ok}""")
    g.run(hl)
    k(f"s_waitcnt vmcnt(0)\ns_branch {lp}")
    k.label(ok)
    TT()
    k(f"v_lshlrev_b32 v48, 16, v19\nv_and_b32 v50, 0xffff0000, v19")
    for m in range(2):
        for i in range(0, 8, 2):
            d = 64 + 8 * m + i
            k(f"v_pk_mul_f32 v[{d}:{d+1}], v[{GU+16*m+i}:{GU+16*m+i+1}], v[48:49] op_sel_hi:[1,0]")
    for m in range(2):
        for i in range(0, 8, 2):
            d = 64 + 8 * m + i
            k(f"v_pk_fma_f32 v[{d}:{d+1}], v[{GU+16*m+8+i}:{GU+16*m+8+i+1}], v[50:51], v[{d}:{d+1}] op_sel_hi:[1,0,1]")
    k(g.red16(64))
    k(f"""v_and_b32 v50, 15, v2
    v_cmp_eq_u32 vcc, 0, v50
    v_mov_b32 v51, 1024
    v_cndmask_b32 v51, v51, v0, vcc
    ds_write_b128 v51, v[64:67] offset:256
    v_lshlrev_b32 v50, 2, v50
    s_waitcnt lgkmcnt(0)
    s_barrier
    s_cmp_lg_u32 s{sW}, 0
    s_cbranch_scc1 L_nprod
    ds_read_b32 v64, v50 offset:256
    ds_read_b32 v65, v50 offset:320
    ds_read_b32 v66, v50 offset:384
    ds_read_b32 v67, v50 offset:448
    v_cmp_gt_u32 vcc, 8, v2
    v_mov_b32 v51, {OOB}
    v_cndmask_b32 v51, v51, v50, vcc
    s_lshl_b32 s{sB}, s{sCG}, 6
    s_add_u32 s{sB}, s{sB}, {WS_ACT}
    v_add_f32 v64, v64, v65
    v_add_f32 v66, v66, v67
    v_add_f32 v64, v64, v66""")
    bf1(k, 64)
    k(f"""v_mov_b32_dpp v65, v64 row_ror:8 row_mask:0xf bank_mask:0xf
    v_mul_f32 v66, {H(-LOG2E)}, v64
    v_exp_f32 v66, v66
    v_add_f32 v66, 1.0, v66
    v_rcp_f32 v66, v66
    v_mul_f32 v64, v64, v66""")
    bf1(k, 64)
    k("v_mul_f32 v64, v64, v65")
    bf1(k, 64)
    k(f"buffer_store_dword v64, v51, {srd(WS)}, s{sB} offen {WT}")
    k.label("L_nprod")
    k.vm = []; k.lg = []
    TT()
    k(f"s_cmp_ge_u32 s{sC2}, 64\ns_cbranch_scc1 L_fin")
    k(f"""v_lshlrev_b32 v4, 6, v0
    v_cmp_gt_u32 vcc, 224, v0
    v_mov_b32 v51, {OOB}
    v_cndmask_b32 v4, v51, v4, vcc
    s_mov_b32 s{sB}, {WS_ACT}
    v_and_b32 v52, 7, v2
    s_lshl_b32 s{sC}, s{sC2}, 3
    v_add_u32 v52, s{sC}, v52            ; column
    v_lshrrev_b32 v53, 5, v52
    v_lshlrev_b32 v53, 6, v53
    v_and_b32 v54, 12, v52
    v_lshl_add_u32 v53, v54, 2, v53
    v_bfe_u32 v54, v52, 4, 1
    v_lshl_add_u32 v53, v54, 3, v53
    v_and_b32 v54, 2, v52
    v_lshl_add_u32 v53, v54, 1, v53
    v_lshlrev_b32 v54, 2, v52
    s_mov_b32 s{sC}, {WS_MOD + 5*2048}
    buffer_load_dword v55, v54, {srd(WS)}, s{sC} offen""")
    al = [("m", f"buffer_load_dwordx4 v[80:83], v4, {srd(WS)}, s{sB} offen {WT}"), ("m", f"buffer_load_dwordx4 v[84:87], v4, {srd(WS)}, s{sB} offen offset:16 {WT}"),
          ("m", f"buffer_load_dword v88, v53, {srd(WS)}, s{sCND} offen {WT}"), ("m", f"buffer_load_dword v89, v53, {srd(WS)}, s{sCND} offen offset:1024 {WT}")]
    g.run(al[2:])
    unpack(k, WDF[0], MD, 64)
    k(f"""s_and_b32 s{sC}, s{sKEY}, 0xfffff800
    s_or_b32 s{sC}, s{sC}, 0x400
    v_mov_b32 v90, s{sC}
    v_not_b32 v91, v90
    v_ashrrev_i32 v91, 31, v91
    v_or_b32 v91, 0x80000000, v91
    v_xor_b32 v90, v90, v91""")
    bf1(k, 90)
    k(f"""v_mul_f32 v90, {H(-LOG2E)}, v90
    v_exp_f32 v90, v90
    v_add_f32 v90, 1.0, v90
    v_rcp_f32 v90, v90""")
    bf1(k, 90)
    sent_wait(g, [88, 89], al[2:], "CND", sleep=1)
    k(f"""v_and_b32 v51, 1, v52
    v_cmp_eq_u32 vcc, 0, v51
    v_lshlrev_b32 v91, 16, v88
    v_and_b32 v88, 0xffff0000, v88
    v_cndmask_b32 v88, v88, v91, vcc
    v_lshlrev_b32 v91, 16, v89
    v_and_b32 v89, 0xffff0000, v89
    v_cndmask_b32 v89, v89, v91, vcc
    v_and_b32 v50, 15, v2
    v_cmp_eq_u32 vcc, 0, v50
    v_lshrrev_b32 v51, 1, v0
    v_mov_b32 v50, 1024
    v_cndmask_b32 v51, v50, v51, vcc
    v_and_b32 v50, 7, v2
    v_lshlrev_b32 v50, 2, v50
    v_cmp_gt_u32 vcc, 8, v2
    v_lshlrev_b32 v52, 1, v52
    v_mov_b32 v53, {OOB}
    v_cndmask_b32 v52, v53, v52, vcc""")
    k(f"""s_cmp_lt_u32 s{sCG}, 224
    s_cbranch_scc1 L_asl
    s_sleep {E_('ASL7', '16')}""")
    k.label("L_asl")
    k(f"s_sleep {E_('ASL', '7')}")
    g.run(al[:2])
    TT()
    sent_wait(g, list(range(80, 88)), al[:2], "ACT", sleep=int(E_("ASL2", "2")))
    TT()
    for r in range(8):
        for i in range(0, 8, 2):
            w = WDF[8 * r + i]; a = 80 + (r & ~1); sel = r & 1
            if r == 0: k(f"v_pk_mul_f32 v[{64+i}:{65+i}], v[{w}:{w+1}], v[{a}:{a+1}] op_sel_hi:[1,0]")
            else: k(f"v_pk_fma_f32 v[{64+i}:{65+i}], v[{w}:{w+1}], v[{a}:{a+1}], v[{64+i}:{65+i}] op_sel:[0,{sel},0] op_sel_hi:[1,{sel},1]")
    for i in range(4): k(f"v_permlane32_swap_b32 v{64+i}, v{68+i}")
    for i in range(4): k(f"v_add_f32 v{64+i}, v{64+i}, v{68+i}")
    for i in range(2): k(f"v_permlane16_swap_b32 v{64+i}, v{66+i}")
    for i in range(2): k(f"v_add_f32 v{64+i}, v{64+i}, v{66+i}")
    for pat in ("quad_perm:[1,0,3,2]", "quad_perm:[2,3,0,1]", "row_half_mirror", "row_mirror"):
        for i in range(2): k(f"v_add_f32_dpp v{64+i}, v{64+i}, v{64+i} {pat} row_mask:0xf bank_mask:0xf")
    k(f"""ds_write_b64 v51, v[64:65] offset:2048
    s_waitcnt lgkmcnt(0)
    s_barrier
    s_cmp_lg_u32 s{sW}, 0
    s_cbranch_scc1 L_fin
    ds_read_b32 v64, v50 offset:2048
    ds_read_b32 v65, v50 offset:2080
    ds_read_b32 v66, v50 offset:2112
    ds_read_b32 v67, v50 offset:2144
    s_lshl_b32 s{sB}, s{sIDX}, 10
    v_add_f32 v64, v64, v65
    v_add_f32 v66, v66, v67
    v_add_f32 v64, v64, v66""")
    bf1(k, 64)
    k("v_mul_f32 v64, v64, v90"); bf1(k, 64)
    k("v_add_f32 v64, v64, v88"); bf1(k, 64)
    k("v_mul_f32 v64, v64, v55"); bf1(k, 64)
    k(f"""v_add_f32 v64, v64, v89
    v_cvt_pk_bf16_f32 v64, v64, v64
    buffer_store_short v64, v52, {srd(OUT)}, s{sB} offen""")

def verify_all(lines):
    tot = 0
    for name, (n1, n2, slow) in {"p0": (0, 15, False), "p3": (3, 12, False), "p1": (1, 14, True), "redo0": (0, 15, False), "redo3": (3, 12, False)}.items():
        def decide(lab, c):
            if lab == "L_op_odd": return name in ("p3", "p1")
            if lab.endswith("_redo"): return name.startswith("redo")
            if lab.endswith("_max"): return c == 0
            if lab.endswith("_mk"): return n1 == 0
            if lab.endswith("_maxd"): return c >= min(2, n1 if "t1" in lab else n2)
            if lab == "L_t1_zero": return n1 == 0
            if lab == "L_t1_diag": return n1 == 1
            if lab == "L_t2_diag": return name == "p1"
            if lab == "L_t1_loop": return c % 2 < min(n1 - 2, 1)
            if lab == "L_t2_loop": return c % 3 < 2
            if "_slow" in lab and not lab.endswith("_l"): return slow
            if "_ok" in lab or lab in ("L_kd", "L_hok"): return (c >= 2) if slow and ("P2" in lab or "ACT" in lab or "CND" in lab or lab in ("L_kd", "L_hok")) else True
            if lab == "L_notbest": return slow
            if lab == "L_keep": return name == "p0"
            return False
        T = trace(lines, decide)
        e = verify(T)
        tot += len(e)
        print(f"verify {name}: {len(T)} instrs, {len(e)} problems", file=sys.stderr)
        for x in e[:12]: print("   ", x, file=sys.stderr)
    assert tot == 0
```

```python
import sys, os
sys.path.insert(0, os.path.dirname(os.path.abspath(__file__)))
from common import *
from gen_attn import *
from gen_tail import *

TSR = list(range(83, 96)) + ([76, 77, 78] if not E_('TSP') else [])
NTS = [dict(k=WUK, v=WUV, q=WQ, o=WO)[c] for c in E_('NTS', 'k')]
class G:
    def __init__(self):
        self.k = K(); self.tail = []
        self.TS = E_("TS"); self.nts = 0
    def ts(self, k=None, force=False):
        if not self.TS: return
        if (E_("TSP") or E_("TSO") or E_("TSA") or E_("TST")) and not force: return
        k = k or self.k
        n = self.nts; self.nts += 1
        assert n < len(TSR)
        k(f"{'s_memrealtime' if self.TS == 'r' else 's_memtime'} vcc\ns_waitcnt lgkmcnt(0)\ns_mov_b32 s{TSR[n]}, vcc_lo")
    def ts0(self):
        if not E_("TS0"): return
        self.n0 = getattr(self, "n0", 0) + 1
        self.k(f"s_memrealtime vcc\ns_waitcnt lgkmcnt(0)\nv_writelane_b32 v255, vcc_lo, {self.n0}")
    def poll_check(self, vreg, vaddr, sr, soff, name, target=None, sleep=4):
        def f(k):
            slow, back = k.lab(name + "_slow"), k.lab(name + "_ok")
            cmp_ = f"v_cmp_ne_u32 vcc, 0, v{vreg}" if target is None else f"v_cmp_le_u32 vcc, {target}, v{vreg}"
            k(f"{cmp_}\ns_cmp_eq_u64 vcc, -1\ns_cbranch_scc0 {slow}")
            k.label(back)
            self.tail.append(f"""{slow}:
    s_mov_b32 s{sD}, 0
{slow}_l:
    s_sleep {sleep}
    buffer_load_dword v{vreg}, v{vaddr}, {srd(sr)}, {soff} offen {WT}
    s_add_u32 s{sD}, s{sD}, 1
    s_waitcnt vmcnt(0)
    {cmp_}
    s_cmp_eq_u64 vcc, -1
    s_cbranch_scc1 {back}
    s_cmp_lt_u32 s{sD}, {SPIN}
    s_cbranch_scc1 {slow}_l
    s_branch {back}""")
        return f
    def dma4(self, sr, voffs, m0, so, tag, xor=False, nt=None):
        it = [("s", f"s_add_u32 m0, s{m0[0]}, {m0[1]}"), ("s", f"{'s_xor_b32' if xor else 's_add_u32'} s{sA}, s{so[0]}, {so[1]}")]
        for i in range(4):
            it.append(("m", f"buffer_load_dwordx4 v{voffs[i]}, {srd(sr)}, s{sA} offen offset:{i*1024} {NT if (sr in NTS if nt is None else nt) else ''} {E_('PJL', '')} lds", tag))
        return it
    def run(self, its):
        for it in its:
            if callable(it[1]): it[1](self.k)
            else: self.k(it[1], it[2] if len(it) > 2 else None)
    def bar(self, tags, lgkm0=True):
        def f(k):
            k.waitvm(tags, lgkm0)
            if not E_("NOBAR"): k("s_barrier")
        return f
    def page(self, key):
        if key not in E_("PG4", "ab"): return
        l = self.k.lab("pg")
        self.k(f"s_branch {l}"); self.k.out.append(".p2align 12"); self.k.label(l)
    def flag_store(self, so, tags):
        return [("x", lambda k: k.waitvm(tags)), ("m", f"buffer_store_dword v6, v5, {srd(WS)}, s{so} offen {WT}", "flag")]

    def startup(self):
        k = self.k
        if self.TS: k(f"{'s_memrealtime' if self.TS == 'r' else 's_memtime'} s[58:59]")
        k(f"""s_cmp_ge_u32 s2, 256
        s_cbranch_scc1 L_end
        s_load_dwordx16 s[64:79], s[0:1], 0
        s_load_dwordx16 s[80:95], s[0:1], 64
        s_getpc_b64 s[{sB}:{sC}]
        L_pf1:
        v_lshrrev_b32 v3, 6, v0
        v_and_b32 v2, 63, v0
        s_lshr_b32 s{sJ}, s2, 3
        s_mul_i32 s{sA}, s{sJ}, 24
        v_min_u32 v5, 5, v2
        v_mad_u32_u24 v5, v3, 6, v5
        v_add_u32 v5, s{sA}, v5
        v_lshlrev_b32 v5, 7, v5
        v_min_u32 v5, L_code_end-L_pf1, v5""")
        k(f"global_load_dword a255, v5, s[{sB}:{sC}]", "pf")
        k(f"""v_readfirstlane_b32 s{sW}, v3
        v_lshlrev_b32 v1, 4, v2
        s_and_b32 s{sX}, s2, 7
        s_and_b32 s{sJ}, s{sJ}, 3
        s_lshr_b32 s{sP}, s2, 5
        s_lshl_b32 s{sH}, s{sX}, 2
        s_add_u32 s{sH}, s{sH}, s{sJ}
        s_mov_b32 s{sT1}, s{sP}
        s_sub_u32 s{sT2}, 15, s{sP}
        v_lshrrev_b32 v3, 3, v2
        v_lshrrev_b32 v4, 4, v2
        v_and_b32 v5, 7, v2
        v_xor_b32 v5, v5, v4
        v_lshlrev_b32 v5, 4, v5
        v_lshl_add_u32 v16, v3, 10, v5
        v_xor_b32 v17, 64, v16
        v_add_u32 v17, {7168}, v17
        v_add_u32 v18, {2*7168}, v16
        v_add_u32 v19, {2*7168}, v17
        ; W (k-major): v20..23
        v_bfe_u32 v5, v2, 1, 3
        v_xor_b32 v5, v5, v4
        v_lshlrev_b32 v5, 5, v5
        v_and_b32 v6, 1, v2
        v_lshl_add_u32 v5, v6, 4, v5
        v_lshl_add_u32 v20, v4, 13, v5
        v_add_u32 v21, {31744}, v20
        v_xor_b32 v22, 128, v20
        v_add_u32 v22, {2*31744}, v22
        v_add_u32 v23, {31744}, v22
        s_lshl_b32 s{sW8}, s{sW}, 13
        s_lshl_b32 s{sW4}, s{sW}, 12
        s_lshl_b32 s{sXB}, s{sP}, 18
        s_lshl_b32 s{sA}, s{sW}, 16
        s_add_u32 s{sXB}, s{sXB}, s{sA}
        s_lshl_b32 s{sWB}, s{sW}, 17
        s_lshl_b32 s{sD}, s{sJ}, {int(E_("RJ", "0"))}
        s_xor_b32 s{sD}, s{sD}, s{sP}
        s_lshl_b32 s{sD}, s{sD}, {int(E_("RS", "3"))}
        s_and_b32 s{sD}, s{sD}, 7
        s_lshl_b32 s{sA}, s{sD}, 7
        s_add_u32 s{sXB}, s{sXB}, s{sA}
        s_lshl_b32 s{sA}, s{sD}, 19
        s_add_u32 s{sWB}, s{sWB}, s{sA}
        v_and_b32 v84, 7, v2
        v_lshrrev_b32 v65, 3, v0
        v_mul_u32_u24 v64, 24576, v65
        v_lshl_add_u32 v64, v84, 4, v64
        v_lshlrev_b32 v65, 3, v65
        v_lshrrev_b32 v85, 3, v2
        v_lshlrev_b32 v86, 10, v84
        v_lshl_add_u32 v86, v85, 4, v86
        s_lshl_b32 s{sB}, s{sH}, 8
        s_waitcnt lgkmcnt(0)""")
        def mk(s, p, n, off=None):
            if off is None: k(f"s_mov_b32 s{s}, s{PTR[p]}\ns_mov_b32 s{s+1}, s{PTR[p]+1}\ns_mov_b32 s{s+2}, {n}\ns_mov_b32 s{s+3}, 0x00020000")
            else: k(f"s_add_u32 s{s}, s{PTR[p]}, s{off}\ns_addc_u32 s{s+1}, s{PTR[p]+1}, 0\ns_sub_u32 s{s+2}, {n}, s{off}\ns_mov_b32 s{s+3}, 0x00020000")
        if E_("TS0"): k("v_writelane_b32 v255, s58, 0")
        self.ts0()
        mk(WUK, "wuk", 0x400000, sB); mk(CKV, "ckv", 2048 * 1024)
        self.run(self.wdma(0)); self.ts0(); self.run(self.xdma(0)); self.ts0()
        T0 = E_("T0", "")
        if "x" in T0:
            k(f"""v_lshlrev_b32 v96, 7, v2
            v_min_u32 v96, {15*128}, v96
            s_lshl_b32 s{sC}, s2, 13
            s_lshl_b32 s{sD}, s{sW}, 11
            s_add_u32 s{sC}, s{sC}, s{sD}""")
            k(f"buffer_load_dword a254, v96, {srd(CKV)}, s{sC} offen", "pf")
        if "k" in T0:
            k(f"""v_bfe_u32 v96, v2, 1, 4
            v_lshlrev_b32 v96, 13, v96
            v_lshl_add_u32 v96, v6, 7, v96
            s_lshl_b32 s{sC}, s{sP}, 19
            s_lshl_b32 s{sD}, s{sW}, 17
            s_add_u32 s{sC}, s{sC}, s{sD}""")
            k(f"buffer_load_dword a253, v96, {srd(WUK)}, s{sC} offen", "pf")
        mk(WM, "wmod", 512 * 6144); mk(CS, "c", 1024); mk(XS, "x", 2048 * 1024)
        mk(WS, "ws", WS_SIZE); mk(WUV, "wuv", 0x400000, sB); mk(WQ, "wq", 0x400000, sB); mk(DBG, "dbg", 256)
        k(f"""s_lshl_b32 s{sB}, s{sX}, 19
        s_lshl_b32 s{sD}, s{sJ}, 8
        s_add_u32 s{sB}, s{sB}, s{sD}""")
        mk(WO, "wo", 0x400000, sB)
        mk(WD_, "wd", 1792 * 1024); mk(OUT, "out", 2048 * 1024)
        k(f"s_mov_b64 s[{sPG}:{sPG+1}], s[{PTR['wg']}:{PTR['wg']+1}]\ns_mov_b64 s[{sPG+2}:{sPG+3}], s[{PTR['wu']}:{PTR['wu']+1}]")
        if self.TS: k(f"s_mov_b32 s{TSR[0]}, s58"); self.nts = 1
        mk(WR_, "wr", 1024)
        if E_("STOUCH", "1") == "1":
            k(f"s_load_dword s90, s[{DBG}:{DBG+1}], 64\ns_load_dword s91, s[{WS}:{WS+1}], 0x3f00")
        k(f"""s_lshl_b32 s{sVB}, s{sW}, 19
        s_and_b32 s{sB}, s{sWB}, {7 << 19}
        s_xor_b32 s{sVB}, s{sVB}, s{sB}
        s_lshr_b32 s{sB}, s{sP}, {int(E_("RV", "1"))}
        s_and_b32 s{sB}, s{sB}, {int(E_("RVM", "0"))}
        s_lshl_b32 s{sVX}, s{sB}, 12                ; column half order of the V projection
        s_lshl_b32 s{sB}, s{sB}, 7
        s_add_u32 s{sVB}, s{sVB}, s{sB}
        s_lshl_b32 s{sB}, s{sJ}, 1
        s_xor_b32 s{sB}, s{sB}, s{sP}
        s_and_b32 s{sB}, s{sB}, {int(E_("RQM", "0"))}
        s_lshl_b32 s{sQR}, s{sB}, 11                ; chunk order of the Q projection
        s_lshl_b32 s{sB}, s{sB}, 19
        s_lshl_b32 s{sQB}, s{sW}, 17
        s_add_u32 s{sQB}, s{sQB}, s{sB}
        s_lshl_b32 s{sKV}, s{sH}, 20
        s_add_u32 s{sKV}, s{sKV}, {WS_KV}
        s_lshl_b32 s{sB}, s{sP}, 17
        s_add_u32 s{sKVST}, s{sKV}, s{sB}
        s_lshr_b32 s{sB}, s{sW}, 1
        s_lshl_b32 s{sB}, s{sB}, 16
        s_add_u32 s{sKVST}, s{sKVST}, s{sB}
        s_and_b32 s{sB}, s{sW}, 1
        s_lshl_b32 s{sB}, s{sB}, 14
        s_add_u32 s{sKVST}, s{sKVST}, s{sB}
        s_add_u32 s{sKV}, s{sKV}, s{sW8}
        s_cmp_eq_u32 s{sT1}, 0
        s_cselect_b32 s{sKp}, {14 if DESC else 0}, 1
        s_lshl_b32 s{sKp}, s{sKp}, 16
        s_add_u32 s{sKp}, s{sKp}, s{sKV}
        s_sub_u32 s{sB}, s{sP}, 2
        s_lshl_b32 s{sEO}, s{sB}, 7
        s_lshl_b32 s{sB}, s{sB}, 3
        s_add_u32 s{sB}, s{sB}, s{sX}
        s_lshl_b32 s{sB}, s{sB}, 8
        s_mul_i32 s{sC}, s{sJ}, 12288
        s_add_u32 s{sB}, s{sB}, s{sC}
        s_add_u32 s{sB}, s{sB}, {WS_MODP}
        s_cmp_ge_u32 s{sP}, 2
        s_cselect_b32 s{sMODO}, s{sB}, {OOB}
        s_cselect_b32 s{sEO}, s{sEO}, {OOB}
        s_cmp_eq_u32 s{sW}, 0
        s_cselect_b32 s{sMODO}, s{sMODO}, {OOB}
        s_lshl_b32 s{sLNP}, s{sW}, 9
        s_add_u32 s{sLNP}, s{sLNP}, {WS_MODP}
        s_lshr_b32 s{sHST}, s2, 1
        s_lshl_b32 s{sHST}, s{sHST}, 14
        s_and_b32 s{sB}, s2, 1
        s_lshl_b32 s{sB}, s{sB}, 7
        s_add_u32 s{sHST}, s{sHST}, s{sB}
        s_add_u32 s{sHST}, s{sHST}, s{sW4}
        s_add_u32 s{sHST}, s{sHST}, {WS_H}
        s_lshl_b32 s{sHFO}, s2, 2
        s_add_u32 s{sHFO}, s{sHFO}, s{sW}
        s_lshl_b32 s{sHFO}, s{sHFO}, 6
        s_add_u32 s{sHFO}, s{sHFO}, {WS_HF}
        s_lshl_b32 s{sKFP}, s{sH}, 11
        s_add_u32 s{sKFP}, s{sKFP}, {WS_KVF}
        s_lshl_b32 s{sKFO}, s{sP}, 2
        s_add_u32 s{sKFO}, s{sKFO}, s{sW}
        s_lshl_b32 s{sKFO}, s{sKFO}, 6
        s_add_u32 s{sKFO}, s{sKFO}, s{sKFP}
        s_lshr_b32 s{sB}, s{sW}, 1
        s_sub_u32 s{sC}, 3, s{sB}
        s_and_b32 s{sA}, s{sW}, 1
        s_cselect_b32 s{sB}, s{sC}, s{sB}          ; row group projected by this wave
        s_lshl_b32 s{sH1}, s{sT1}, 2
        s_add_u32 s{sH1}, s{sH1}, s{sB}
        s_lshl_b32 s{sH2}, s{sT2}, 2
        s_add_u32 s{sH2}, s{sH2}, s{sB}
        s_sub_u32 s{sHFD}, s{sH2}, s{sH1}
        s_lshl_b32 s{sHFD}, s{sHFD}, 10
        s_lshl_b32 s{sHF1}, s{sH1}, 10
        s_add_u32 s{sHF1}, s{sHF1}, {WS_HF - 65536}
        s_lshl_b32 s{sH1}, s{sH1}, 15
        s_add_u32 s{sH1}, s{sH1}, {WS_H}
        s_add_u32 s{sH1}, s{sH1}, s{sQR}
        s_lshl_b32 s{sH2}, s{sH2}, 15
        s_add_u32 s{sH2}, s{sH2}, {WS_H}
        s_add_u32 s{sH2}, s{sH2}, s{sQR}
        s_add_u32 s{sVX}, s{sVX}, s{sKVST}
        {f"s_mov_b32 s{sVX}, 0x70000000" if E_("NOST") else ""}
        {f"s_mov_b32 s{sKVST}, 0x70000000" if E_("NOST") else ""}
        {f"s_mov_b32 s{sH1}, {WS_H}" if E_("NOH") else ""}
        {f"s_mov_b32 s{sH2}, {WS_H}" if E_("NOH") else ""}
        s_cmp_eq_u32 s{sW}, 0
        s_cselect_b32 s{sET}, 32, 0
        s_cselect_b32 s{sEP}, 0, {OOB}""")
        k(f"""v_and_b32 v48, 15, v2          ; i16
        v_lshrrev_b32 v49, 4, v2       ; q4
        v_lshrrev_b32 v50, 1, v48
        v_xor_b32 v50, v50, v49
        v_lshlrev_b32 v50, 4, v50
        v_lshl_add_u32 v28, v48, 7, v50
        v_add_u32 v28, s{sW8}, v28
        v_xor_b32 v29, 64, v28
        v_add_u32 v30, 65536, v28
        v_add_u32 v31, 65536, v29
        v_lshrrev_b32 v50, 2, v48     ; r
        v_and_b32 v51, 3, v48         ; c
        v_lshl_add_u32 v52, v49, 3, v50      ; row = 8q4 + r
        v_lshlrev_b32 v53, 8, v52
        v_lshl_add_u32 v53, v51, 3, v53
        v_add_u32 v53, {R3}, v53
        v_and_b32 v54, 1, v49
        v_lshl_add_u32 v54, v54, 2, v50      ; f""")
        for nt in range(8):
            k(f"v_xor_b32 v55, {nt}, v54\nv_lshl_add_u32 v{8+nt}, v55, 5, v53")
        k(f"""v_bfe_u32 v49, v2, 1, 2
        v_bfe_u32 v50, v2, 4, 1
        v_xor_b32 v49, v49, v50
        v_lshlrev_b32 v49, 5, v49
        v_and_b32 v50, 1, v2
        v_lshl_add_u32 v49, v50, 4, v49
        v_lshl_add_u32 v24, v85, 13, v49
        v_xor_b32 v25, 64, v24
        v_add_u32 v25, {64512}, v25
        v_add_u32 v26, {2*64512}, v24
        v_add_u32 v27, {2*64512}, v25
        v_cmp_eq_u32 vcc, 0, v2
        v_mov_b32 v6, {OOB}
        v_cndmask_b32 v5, v6, v2, vcc
        v_cmp_eq_u32 vcc, 0, v0
        v_cndmask_b32 v7, v6, v0, vcc
        v_and_b32 v48, 8, v2
        v_cmp_eq_u32 vcc, 0, v48
        v_lshlrev_b32 v48, 5, v84
        v_lshrrev_b32 v49, 1, v2
        v_and_b32 v49, 24, v49
        v_add_u32 v48, v48, v49
        s_lshl_b32 s{sB}, s{sW}, 8
        s_add_u32 s{sB}, s{sB}, {MISC}
        v_add_u32 v48, s{sB}, v48
        v_mov_b32 v49, {MISC + 1024}
        v_cndmask_b32 v98, v49, v48, vcc
        v_lshlrev_b32 v99, 5, v84
        v_add_u32 v99, {MISC + 2048}, v99
        s_lshl_b32 s{sB}, s{sW}, 3
        v_add_u32 v100, s{sB}, v99
        v_lshlrev_b32 v106, 5, v85
        v_lshlrev_b32 v107, 8, v85
        v_lshl_add_u32 v107, v84, 4, v107
        s_sub_u32 s{sB}, s2, 64
        s_lshl_b32 s{sZO}, s{sB}, 12
        s_add_u32 s{sZO}, s{sZO}, {WS_HF}
        s_cmp_lt_u32 s{sB}, 64
        s_cselect_b32 s{sZO}, s{sZO}, {OOB}
        s_mul_i32 s{sD}, s{sJ}, {128*6144}
        s_sub_u32 s{sSD}, s{sP}, 2
        s_lshl_b32 s{sSD}, s{sSD}, 3
        s_add_u32 s{sSD}, s{sSD}, s{sX}
        s_lshl_b32 s{sSD}, s{sSD}, 7
        s_add_u32 s{sSD}, s{sSD}, s{sD}
        s_cmp_ge_u32 s{sP}, 2
        s_cselect_b32 s{sSD}, s{sSD}, {OOB - 0x10000}
        {f"s_cmp_lt_u32 s{sP}, 4" if E_("NOLATE") else ""}
        {f"s_cselect_b32 s{sSD}, s{sSD}, {OOB - 0x10000}" if E_("NOLATE") else ""}
        s_lshl_b32 s{sB}, s{sJ}, 8
        v_add_u32 v65, s{sB}, v65
        v_mov_b32 v6, 1
        v_and_b32 v4, 1, v2
        v_lshlrev_b32 v4, 7, v4""")
        self.ts0()
        if E_("SIDE", "0") == "0": self.run(self.side())
        self.run(self.wdma(1) + self.xdma(1))
        self.ts0()
        if E_("TS0"):
            k.waitvm([("x", 0), ("w", 0)], True); self.ts0()
            k.waitvm(["pf"], True); self.ts0()
            k("s_waitcnt vmcnt(0)"); self.ts0()
            k(f"""s_lshl_b32 s{sB}, s2, 2
            s_add_u32 s{sB}, s{sB}, s{sW}
            s_lshl_b32 s{sB}, s{sB}, 6
            s_add_u32 s{sB}, s{sB}, {WS_TS}
            v_lshlrev_b32 v5, 2, v2
            s_mov_b64 exec, 0xffff
            buffer_store_dword v255, v5, {srd(WS)}, s{sB} offen
            s_endpgm""")

    def side(self):
        return items(f"""buffer_load_dwordx2 v[66:67], v65, {srd(CS)}, 0 offen
        buffer_load_dwordx4 v[68:71], v64, {srd(WM)}, s{sSD} offen {NT}
        s_add_u32 s{sSD}, s{sSD}, 6144
        buffer_load_dwordx4 v[72:75], v64, {srd(WM)}, s{sSD} offen {NT}
        s_add_u32 s{sSD}, s{sSD}, 6144
        buffer_load_dwordx4 v[76:79], v64, {srd(WM)}, s{sSD} offen {NT}
        s_add_u32 s{sSD}, s{sSD}, 6144
        buffer_load_dwordx4 v[80:83], v64, {srd(WM)}, s{sSD} offen {NT}
        s_lshl_b32 s{sSD}, s2, 5
        s_add_u32 s{sSD}, s{sSD}, s{sW}
        s_lshl_b32 s{sSD}, s{sSD}, 8
        buffer_load_dwordx4 v[88:91], v86, {srd(XS)}, s{sSD} offen {NT}
        buffer_load_dwordx4 v[92:95], v86, {srd(XS)}, s{sSD} offen offset:128 {NT}""")
    XR = [R0, R1, R2]
    WSL = [R3, R3 + 16384, R4]
    WQB = [R4, R3, R3 + 16384, MISC, R0, R0 + 16384, R1, R1 + 16384]
    VQB = [R2, R0, R1, R2]
    def xdma(self, s):
        it = []
        for g in range(2):
            it += self.dma4(CKV, [16, 17, 18, 19], (sW8, self.XR[s % 3] + g * 4096), (sXB, s * 128 + g * 32768), ("x", s), True)
        return it
    def wdma(self, s): return self.dma4(WUK, [20, 21, 22, 23], (sW4, self.WSL[s % 3]), (sWB, s * 64 * 8192), ("w", s), True)
    def qdma(self, c): return self.dma4(WQ, [20, 21, 22, 23], (sW4, self.WQB[c]), (sQB, c * 64 * 8192), ("q", c), True)
    def vdma(self, c):
        it = []
        for g in range(2):
            it += self.dma4(WUV, [24, 25, 26, 27], (sW8, self.VQB[c] + g * 4096), (sVB, (c >> 1) * 128 + (c & 1) * 256 * 8192 + g * 4 * 65536), ("v", c), True, c < int(E_("VNT", "0")))
        return it

    def modA(self):
        C, T, AC = 102, 108, 120
        t = f"""v_lshlrev_b32 v{C}, 16, v66
        v_and_b32 v{C+1}, 0xffff0000, v66
        v_lshlrev_b32 v{C+2}, 16, v67
        v_and_b32 v{C+3}, 0xffff0000, v67
        """
        for i in range(4): t += f"v_mul_f32 v{T+i}, {H(-LOG2E)}, v{C+i}\n"
        for i in range(4): t += f"v_exp_f32 v{T+i}, v{T+i}\n"
        for i in range(4): t += f"v_add_f32 v{T+i}, 1.0, v{T+i}\n"
        for i in range(4): t += f"v_rcp_f32 v{T+i}, v{T+i}\n"
        for i in range(4): t += f"v_mul_f32 v{C+i}, v{C+i}, v{T+i}\n"
        t += f"""v_cvt_pk_bf16_f32 v{T}, v{C}, v{C+1}
        v_cvt_pk_bf16_f32 v{T+1}, v{C+2}, v{C+3}
        v_lshlrev_b32 v{C}, 16, v{T}
        v_and_b32 v{C+1}, 0xffff0000, v{T}
        v_lshlrev_b32 v{C+2}, 16, v{T+1}
        v_and_b32 v{C+3}, 0xffff0000, v{T+1}
        """
        for r in range(4):
            for i in range(4):
                a, b = T + 2 * (i & 1), T + 2 * (i & 1) + 1
                op = "v_mul_f32" if r == 0 else "v_fmac_f32"
                t += f"""v_lshlrev_b32 v{a}, 16, v{68+4*r+i}
                v_and_b32 v{b}, 0xffff0000, v{68+4*r+i}
                {op} v{AC+2*i}, v{a}, v{C+r}
                {op} v{AC+2*i+1}, v{b}, v{C+r}
                """
        for i in range(4): t += f"v_permlane32_swap_b32 v{AC+i}, v{AC+4+i}\n"
        for i in range(4): t += f"v_add_f32 v{AC+i}, v{AC+i}, v{AC+4+i}\n"
        for i in range(2): t += f"v_permlane16_swap_b32 v{AC+i}, v{AC+2+i}\n"
        for i in range(2): t += f"v_add_f32 v{AC+i}, v{AC+i}, v{AC+2+i}\n"
        for i in range(2): t += f"v_add_f32_dpp v{AC+i}, v{AC+i}, v{AC+i} row_ror:8 row_mask:0xf bank_mask:0xf\n"
        t += f"ds_write_b64 v98, v[{AC}:{AC+1}]\n"
        return items(t)
    def red16(self, b):
        t = ""
        for i in range(8): t += f"v_permlane32_swap_b32 v{b+i}, v{b+8+i}\n"
        for i in range(8): t += f"v_add_f32 v{b+i}, v{b+i}, v{b+8+i}\n"
        for i in range(4): t += f"v_permlane16_swap_b32 v{b+i}, v{b+4+i}\n"
        for i in range(4): t += f"v_add_f32 v{b+i}, v{b+i}, v{b+4+i}\n"
        for pat in ("quad_perm:[1,0,3,2]", "quad_perm:[2,3,0,1]", "row_half_mirror", "row_mirror"):
            for i in range(4): t += f"v_add_f32_dpp v{b+i}, v{b+i}, v{b+i} {pat} row_mask:0xf bank_mask:0xf\n"
        return t
    def modB(self):
        it = items(f"""v_lshrrev_b32 v87, 2, v1
        v_add_u32 v101, {MISC}, v87
        ds_read_b32 v102, v101
        ds_read_b32 v103, v101 offset:256
        ds_read_b32 v104, v101 offset:512
        ds_read_b32 v105, v101 offset:768""")
        it2 = items(f"""v_add_f32 v102, v102, v103
        v_add_f32 v104, v104, v105
        v_add_f32 v102, v102, v104""")
        it2.append(("m", f"buffer_store_dword v102, v87, {srd(WS)}, s{sMODO} offen {WT}", "mod"))
        return it, it2
    def red8(self, v, t):
        return f"""v_add_f32_dpp v{v}, v{v}, v{v} row_ror:8 row_mask:0xf bank_mask:0xf
        v_mov_b32 v{t}, v{v}
        v_permlane16_swap_b32 v{v}, v{t}
        v_add_f32 v{v}, v{v}, v{t}
        v_mov_b32 v{t}, v{v}
        v_permlane32_swap_b32 v{v}, v{t}
        v_add_f32 v{v}, v{v}, v{t}
        """
    XH = 64
    def lnA(self):
        X = self.XH
        t = ""
        for i in range(8): t += f"v_lshlrev_b32 v{X+2*i}, 16, v{88+i}\nv_and_b32 v{X+2*i+1}, 0xffff0000, v{88+i}\n"
        t += f"v_add_f32 v108, v{X}, v{X+1}\nv_add_f32 v109, v{X+2}, v{X+3}\n"
        for i in range(4, 16, 2): t += f"v_add_f32 v108, v108, v{X+i}\nv_add_f32 v109, v109, v{X+i+1}\n"
        t += "v_add_f32 v108, v108, v109\n" + self.red8(108, 110)
        t += f"v_mul_f32 v108, {H(1/128)}, v108\n"
        t += f"v_sub_f32 v110, v{X}, v108\nv_mul_f32 v109, v110, v110\n"
        for i in range(1, 16): t += f"v_sub_f32 v{110+(i&1)}, v{X+i}, v108\nv_fmac_f32 v109, v{110+(i&1)}, v{110+(i&1)}\n"
        t += self.red8(109, 110)
        t += "ds_write_b64 v100, v[108:109]\n"
        return items(t)
    def lnB(self):
        X = self.XH
        it = items(f"""ds_read_b128 v[88:91], v99
        ds_read_b128 v[92:95], v99 offset:16""")
        t = f"""v_add_f32 v108, v88, v90
        v_add_f32 v109, v92, v94
        v_add_f32 v108, v108, v109
        v_mul_f32 v108, {H(0.25)}, v108
        v_add_f32 v109, v89, v91
        v_add_f32 v110, v93, v95
        v_add_f32 v109, v109, v110
        v_sub_f32 v88, v88, v108
        v_sub_f32 v90, v90, v108
        v_sub_f32 v92, v92, v108
        v_sub_f32 v94, v94, v108
        v_mul_f32 v110, v88, v88
        v_fmac_f32 v110, v90, v90
        v_fmac_f32 v110, v92, v92
        v_fmac_f32 v110, v94, v94
        v_fmac_f32 v109, {H(128.0)}, v110
        v_mov_b32 v110, {H(1e-5)}
        v_fmac_f32 v110, {H(1/512)}, v109
        v_rsq_f32 v110, v110
        """
        for i in range(16): t += f"v_sub_f32 v{X+i}, v{X+i}, v108\n"
        for i in range(16): t += f"v_mul_f32 v{X+i}, v{X+i}, v110\n"
        return it, items(t)
    def lnC_loads(self):
        it = items(f"""v_and_b32 v96, 31, v2
        v_lshlrev_b32 v96, 4, v96
        v_lshrrev_b32 v97, 5, v2
        v_lshl_add_u32 v96, v97, 11, v96""")
        ld = []
        for q in range(4):
            ld += [("m", f"buffer_load_dwordx4 v[{80+4*q}:{83+4*q}], v96, {srd(WS)}, s{sLNP} offen")]
            if q < 3: ld += [("s", f"s_add_u32 s{sLNP}, s{sLNP}, 12288")]
        return it, ld
    def lnC_fin(self):
        t = ""
        for e in range(4): t += f"v_add_f32 v{80+e}, v{80+e}, v{84+e}\nv_add_f32 v{88+e}, v{88+e}, v{92+e}\n"
        for e in range(4): t += f"v_add_f32 v{80+e}, v{80+e}, v{88+e}\n"
        rnd = lambda: "".join(f"v_cvt_pk_bf16_f32 v{84+e}, v{80+2*e}, v{81+2*e}\n" for e in range(2)) + "".join(f"v_lshlrev_b32 v{80+2*e}, 16, v{84+e}\nv_and_b32 v{81+2*e}, 0xffff0000, v{84+e}\n" for e in range(2))
        t += "v_lshrrev_b32 v88, 5, v2\nv_cvt_f32_u32 v88, v88\n" + rnd()
        for e in range(4): t += f"v_add_f32 v{80+e}, v{80+e}, v88\n"
        t += rnd()
        for e in range(4): t += f"v_mul_f32 v{80+e}, {H(QSCALE)}, v{80+e}\n"
        t += f"""s_lshl_b32 s{sLNP}, s{sW}, 10
        s_add_u32 s{sLNP}, s{sLNP}, {MISC + 4096}
        v_add_u32 v88, s{sLNP}, v1
        v_add_u32 v18, s{sLNP}, v18
        ds_write_b128 v88, v[80:83]
        """
        return items(t)
    def lnC_rd(self, i):
        return [("l", f"ds_read_b128 v[{80+seg*8+hf*4}:{83+seg*8+hf*4}], v18 offset:{seg*512 + i*256 + hf*16}") for seg in range(2) for hf in range(2)]
    def lnC(self, i):
        X = self.XH + 8 * i
        t = ""
        for e in range(8): t += f"v_fma_f32 v{X+e}, v{X+e}, v{88+e}, v{80+e}\n"
        t2 = ""
        for e in range(4): t2 += f"v_cvt_pk_bf16_f32 v{X+e}, v{X+2*e}, v{X+2*e+1}\n"
        return items(t), items(t2) + [("m", f"buffer_store_dwordx4 v[{X}:{X+3}], v19, {srd(WS)}, s{sHST} offen offset:{2048*i} {WT}", "hst")]

    WF, VACC, ACC = 32, 64, 128
    def proj(self):
        k = self.k; WF, VACC, ACC = self.WF, self.VACC, self.ACC
        M = []
        def kmajor(nk=16):
            for n in range(nk):
                for dt in range(8):
                    for tt in range(4):
                        d = V(ACC + (tt * 8 + dt) * 4)
                        M.append(MF(d, V(WF + 4 * dt), A((n * 4 + tt) * 4), "0" if n == 0 else d))
        kmajor()
        V0 = len(M)
        VST = [(pc, sh, q) for pc in range(4) for sh in range(2) for q in range(4)]
        C4 = E_("C4", "1") == "1"
        for i, (pc, sh, q) in enumerate(VST):
            if C4:
                for tt in range(4):
                    for h in range(4):
                        n = (pc & 1) * 8 + 4 * (q >> 1) + h
                        d = V(VACC + (1 - sh) * 32 + ((q & 1) * 4 + tt) * 4)
                        M.append(MF(d, A((n * 4 + tt) * 4), V(WF + ((i & 1) * 4 + h) * 4), "0" if n == 0 else d))
                continue
            for nt in range(2):
                for tt in range(4):
                    for h in range(2):
                        n = (pc & 1) * 8 + 2 * q + h
                        d = V(VACC + (1 - sh) * 32 + (nt * 4 + tt) * 4)
                        M.append(MF(d, A((n * 4 + tt) * 4), V(WF + ((i & 1) * 4 + nt * 2 + h) * 4), "0" if n == 0 else d))
        Q0 = len(M)
        kmajor(13)
        QL = len(M); WX = {14: 24, 15: 64}
        QORD = [(u, tt) for u in range(4) for tt in (2, 3, 0, 1)]
        for (u, tt) in QORD:
            for dt in (2 * u, 2 * u + 1):
                for n in (13, 14, 15):
                    d = V(ACC + (tt * 8 + dt) * 4)
                    M.append(MF(d, V(WF + 4 * dt) if n == 13 else A(WX[n] + 4 * dt), A((n * 4 + tt) * 4), d))
        ph = Phase(k, M); N = len(M); ph.mspace = int(E_('MSP', '1')); ph.batch = int(E_('BAT', '9'))
        if E_('LAT', '0') == '1': ph.lat = (4, 2)
        ph.livein = {f'v{i}' for i in range(64, 96)}
        def wread(base, n, dt, ag=None):
            o = base + (n & 1) * 8192
            if ag is not None:
                return [("l", f"ds_read_b64_tr_b16 a[{ag+4*dt}:{ag+4*dt+1}], v{8+dt} offset:{o}"),
                        ("l", f"ds_read_b64_tr_b16 a[{ag+4*dt+2}:{ag+4*dt+3}], v{8+dt} offset:{o+1024}")]
            return [("l", f"ds_read_b64_tr_b16 v[{WF+4*dt}:{WF+4*dt+1}], v{8+dt} offset:{o}"),
                    ("l", f"ds_read_b64_tr_b16 v[{WF+4*dt+2}:{WF+4*dt+3}], v{8+dt} offset:{o+1024}")]
        def xread(n, tt):
            s = n >> 1; sl = s % 3
            va = (28 if sl < 2 else 30) + (n & 1)
            return ("l", f"ds_read_b128 {A((n*4+tt)*4)}, v{va} offset:{(sl if sl < 2 else 0)*32768 + tt*2048}")
        def vread(i, nt, h):
            pc, sh, q = VST[i]
            reg = self.VQB[pc]; va = 28 + 2 * sh + nt
            o = (reg if reg < R2 else 0) + (2 * q + h) * 4096
            if C4: va = 28 + 2 * sh + (q & 1); o = (reg if reg < R2 else 0) + (4 * (q >> 1) + nt * 2 + h) * 4096
            f = WF + ((i & 1) * 4 + nt * 2 + h) * 4
            return [("l", f"ds_read_b64_tr_b16 v[{f}:{f+1}], v{va} offset:{o}"), ("l", f"ds_read_b64_tr_b16 v[{f+2}:{f+3}], v{va} offset:{o+512}")]
        BOFF = 40
        KFREE = lambda slot: V0 - 32 + 4 * slot + 4
        MPRE = E_("MPRE", "0")
        if MPRE != "0": self.run(self.modA())
        if MPRE == "2": self.run(self.lnA())
        k.waitvm([("x", 0), ("w", 0)], True); k("s_barrier")
        self.ts()
        for it in wread(self.WSL[0] - R3, 0, 0): k(it[1])
        for tt in range(4): k(xread(0, tt)[1])
        for dt in range(1, 8):
            for it in wread(self.WSL[0] - R3, 0, dt): k(it[1])
        for s in range(7): ph.put("x", self.bar([("x", s + 1), ("w", s + 1)]), 64 * s + BOFF)
        ph.put("x", self.bar([("v", 0)]), 64 * 7 + BOFF)
        BV = [V0 + 128 * c + 110 for c in range(4)]
        for c in range(3): ph.put("x", self.bar([("v", c + 1)]), BV[c])
        ph.put("x", self.bar([("q", i) for i in range(4)]), BV[3])
        BQ = Q0 + 64 * 3 + BOFF
        ph.put("x", self.bar([("q", i) for i in range(4, 8)]), BQ)
        BE = QL + 7
        ph.put("x", self.bar([]), BE)
        for (G0, bases) in ((0, [self.WSL[s % 3] - R3 for s in range(8)]), (Q0, [b - R3 if b >= R3 else b for b in self.WQB])):
            for n in range(0 if G0 else 1, 14 if G0 else 16):
                for dt in range(8):
                    lo = G0 + 32 * (n - 1) + 4 * dt + 4
                    if n == 0: lo = max(BV[3] + 1, (Q0 - 32 + 16 * (dt >> 2) + 13 + (dt & 3)) if C4 else [Q0 - 24, Q0 - 16, Q0 - 8, Q0][dt >> 1])
                    elif n % 2 == 0 and (G0 == 0 or n == 8): lo = max(lo, G0 + 32 * (n - 2) + BOFF + 1)
                    pre = []
                    if G0 and n == 8: pre = [("v", f"v_subrev_u32 v{8+dt}, {R3}, v{8+dt}")]; lo -= 1
                    g = ph.stream(pre + wread(bases[n >> 1], n, dt), lo, G0 + 32 * n + 4 * dt - 6)
                    if n % 2 == 1 and (G0 == 0 or n in (7, 13)): assert g < (G0 + 32 * (n - 1) + BOFF if n < 13 or not G0 else BE), (n, dt, g)
        gq = Q0 + 32 * 9 + 4
        for n in (14, 15):
            for dt in range(8):
                for it in wread(self.WQB[7], n, dt, WX[n]): gq = ph.put(it[0], it[1], gq + 3)
        assert gq < BE - 4, gq
        for i, (u, tt) in enumerate(QORD[:-1]):
            b = ACC + (tt * 8 + 2 * u) * 4
            g = ph.stream([("v", f"v_cvt_pk_bf16_f32 v{b+e}, v{b+2*e}, v{b+2*e+1}") for e in range(4)], QL + 6 * i + 9)
            ph.put("l", f"ds_write_b128 v{vMW}, {V(b)} offset:{(tt>>1)*R1 + ((tt&1)*4+u)*1024}", g + 1)
        self.qlast = QORD[-1]
        for n in range(1, 16):
            lo = 32 * (n - 1) + 2
            if n % 2 == 0: lo = 32 * (n - 2) + BOFF + 1
            gx = ph.stream([xread(n, tt) for tt in range(4)], lo, 32 * n - 6)
        vaddr = items(f"""v_and_b32 v16, 15, v2
        v_lshrrev_b32 v17, 4, v2
        v_lshrrev_b32 v29, 2, v16
        v_and_b32 v16, 3, v16
        v_lshl_add_u32 v28, v17, 3, v29
        v_lshlrev_b32 v28, 7, v28
        v_lshl_add_u32 v28, v16, 3, v28
        v_and_b32 v17, 1, v17
        v_lshrrev_b32 v29, 1, v29
        v_lshl_add_u32 v29, v17, 1, v29
        v_lshl_add_u32 v28, v29, 5, v28
        v_add_u32 v28, 65536, v28
        v_xor_b32 v29, 32, v28
        v_xor_b32 v30, 64, v28
        v_xor_b32 v31, 96, v28
        v_and_b32 v16, 15, v2
        v_lshlrev_b32 v16, 6, v16
        v_add_u32 v16, 65536, v16
        v_mad_i32_i24 v16, v17, s{sHFD}, v16
        v_and_b32 v17, 31, v2
        v_lshlrev_b32 v17, 6, v17""")
        g = ph.stream(vaddr, gx + 1)
        assert g <= 64 * 7 + BOFF + 6, g
        for i, (pc, sh, q) in enumerate(VST):
            g0 = V0 + 16 * i
            for nt in range(2):
                for h in range(2):
                    slot = (i & 1) * 4 + nt * 2 + h
                    if i < 2: lo = max(64 * 7 + BOFF + 1, KFREE(slot))
                    elif C4: lo = g0 - 32 + 12 + nt * 2 + h + 1
                    else: lo = g0 - 32 + 8 * nt + 8
                    if pc > 0: lo = max(lo, BV[pc - 1] + 1)
                    pre = []; first = (q < 2 and nt == 0 and h == 0) if C4 else (q == 0 and h == 0)
                    ra = 28 + 2 * sh + ((q & 1) if C4 else nt)
                    if first and pc in (1, 3): pre = [("v", f"v_xor_b32 v{ra}, 65536, v{ra}")]; lo -= 1
                    after = (not first and q < 2) if C4 else (h and q == 0)
                    g = ph.stream(pre + vread(i, nt, h), max(lo, gprev + 1) if after else lo, g0 - 4 + (0 if C4 else 8 * nt))
                    gprev = g
                    assert g < BV[pc], (i, g)
        first = self.wdma(2) + self.xdma(2)
        if E_("SIDE", "0") == "1": first = self.side() + first
        if E_("SIDE", "0") == "2": first = first + self.side()
        ph.stream(first, 0, BOFF - 1, sid=900)
        ph.stream(items("".join(f"s_mov_b32 s{d}, s{p}\ns_mov_b32 s{d+1}, s{p+1}\ns_mov_b32 s{d+2}, {512*3584}\n" for (d, p) in ((WG_, sPG), (WU_, sPG + 2)))), 120)
        for s in range(8):
            its = (self.wdma(s + 3) + self.xdma(s + 3)) if s < 5 else self.vdma(s - 5)
            if s == 7: its += self.qdma(0) + self.qdma(1)
            g = ph.stream(its, 64 * s + BOFF + 1, None, step=2 if s < 5 else 4, sid=900)
            assert g < (64 * (s + 1) + BOFF if s < 7 else BV[0]), (s, g)
        g = ph.stream(self.vdma(3) + self.qdma(2) + self.qdma(3), BV[0] + 1, None, step=3 if C4 else 5, sid=900); assert g < BV[1]
        ph.stream(self.qdma(4) + self.qdma(5), BV[1] + 1, None, step=6, sid=900)
        ph.stream(self.qdma(6) + self.qdma(7), BV[2] + 1, None, step=6, sid=900)
        m1, m2 = self.modB(); l1, l2 = self.lnB()
        zero = items(f"""v_mov_b32 v112, 0
        v_mov_b32 v113, 0
        v_mov_b32 v114, 0
        v_mov_b32 v115, 0
        v_lshlrev_b32 v116, 4, v0""") + [("m", f"buffer_store_dwordx4 v[112:115], v116, {srd(WS)}, s{sZO} offen {WT}", "zero")] + items(f"""v_min_u32 v116, 496, v116
        s_sub_u32 s{sZO}, s{sZO}, {WS_HF}
        s_lshr_b32 s{sZO}, s{sZO}, 3
        s_add_u32 s{sZO}, s{sZO}, {WS_LF}
        s_cmp_lt_u32 s{sZO}, {WS_LF + 0x8000}
        s_cselect_b32 s{sZO}, s{sZO}, {OOB}
        buffer_store_dwordx4 v[112:115], v116, {srd(WS)}, s{sZO} offen {WT}""", "zero")
        g = ph.stream(items(f"""v_lshlrev_b32 v117, 13, v2
        s_lshl_b32 s{sB}, s{sP}, 19
        s_and_b32 s{sC}, s{sW}, 1
        s_lshl_b32 s{sC}, s{sC}, 7
        s_add_u32 s{sB}, s{sB}, s{sC}"""), int(E_("TGS", "60")), sid=904)
        for w, gp in enumerate(int(x) for x in E_("TG", "102,166,230,294").split(",")):
            if E_("TM", "plain") == "none": continue
            first = f"buffer_load_dword a{240+2*w}, v117, {srd(WUV if w < 2 else WQ)}, s{sC} offen nt" if E_("TM", "plain") == "pair" else ""
            ph.put("x", f"""s_cmp_eq_u32 s{sW}, {w}
            s_cselect_b32 s{sC}, s{sB}, {OOB}
            {first}
            buffer_load_dword a{241+2*w}, v117, {srd(WUV if w < 2 else WQ)}, s{sC} offen offset:4""", gp, tag="pf")
        g = ph.stream(zero, BOFF + 10)
        if MPRE == "0":
            g = ph.stream(self.modA(), int(E_("MG", "41")), sid=901, dense=int(E_("MD", "2")))
            b1 = (g - BOFF) // 64 + 1
            g0 = g
            g = ph.stream(m1, 64 * b1 + BOFF + 1, sid=901, dense=1)
        else:
            b1 = 1; g0 = BOFF + 30
            g = ph.stream(m1, 0, sid=901, dense=1)
        ph.put("x", lambda k: k.waitvm(["zero"]), 64 * b1 + BOFF - 1)
        g = ph.stream(m2[:-1], g + 6, sid=901)
        g = ph.put("x", m2[-1][1], g, tag="mod")
        g = ph.put("x", lambda k: k.waitvm(["mod"]), max(g + int(E_("ED", "60")), 64 * b1 + BOFF + 1))
        ph.put("x", f"buffer_atomic_add v6, v7, {srd(DBG)}, s{sEO} offen sc1", g, tag="flag")
        if MPRE == "2": gl = ph.stream(l1, 30, sid=902); b2 = -1
        else:
            gl = ph.stream(self.lnA(), g0 + 1, sid=902)
            b2 = (gl - BOFF) // 64 + 1
            gl = ph.stream(l1, 64 * b2 + BOFF + 1, sid=902)
        gl = ph.stream(l2, gl + 8, sid=902)
        print("mod barrier", b1, "E at", g, "ln barrier", b2, "lnB end", gl, file=sys.stderr)
        a, ld = self.lnC_loads()
        gl = ph.stream(a, gl + 1, sid=902)
        gva = ph.stream(items("v_mov_b32 v18, v106\nv_mov_b32 v19, v107"), 64 * 5 + BOFF + 1, sid=902)
        PB = int(E_("PB", "5"))
        g = 64 * PB + BOFF
        assert gl < g + 30
        ph.put("x", f"buffer_load_dword v3, v4, {srd(DBG)}, s{sEP} offen {WT}", g - int(E_("PL", "50")))
        ph.put("x", self.poll_check(3, 4, DBG, f"s{sEP}", "E", target=f"s{sET}", sleep=int(E_("ESL", "20"))), g - 1)
        ph.stream(items(f"""s_lshl_b32 s{sZO}, s2, 6
        s_add_u32 s{sZO}, s{sZO}, {WS_LF}
        buffer_store_dword v6, v7, {srd(WS)}, s{sZO} offen {WT}""", "flag"), g + 20)
        g = max(g, gl)
        g = ph.stream(ld, g + 1, sid=902); assert g < V0 - 2
        g = ph.stream(self.lnC_fin(), max(g + int(E_("PL2", "50")), gva + 1), sid=902, dense=int(E_("FD", "1")))
        for i in range(2):
            g = ph.stream(self.lnC_rd(i), g + (6 if i == 0 else 1), sid=902)
            a, b = self.lnC(i)
            g = ph.stream(a, g + 6, sid=902)
            g2 = ph.stream(b, g + 1, sid=902)
        assert g2 < V0 + 60, g2
        print("h stored at", g2, file=sys.stderr)
        g = ph.stream(self.flag_store(sHFO, ["hst"]), g2 + 70)
        def epi(b, off, vtype=False):
            it = [("v", f"v_cvt_pk_bf16_f32 v{b+i}, v{b+2*i}, v{b+2*i+1}") for i in range(4)]
            it.append(("s", f"s_xor_b32 s{sEPI}, s{sVX if vtype else sKVST}, {off & ~4095}"))
            it.append(("m", f"buffer_store_dwordx4 {V(b)}, v1, {srd(WS)}, s{sEPI} offen offset:{off & 4095} {E_('KVP', WT)}", "kv"))
            return it
        ep = []
        K1, K2, K3 = int(E_("K1", "17")), int(E_("K2", "14")), int(E_("K3", "16"))
        kst = [8 + K1 * i for i in range(11)] + [322 + 22 * i for i in range(5)]
        for tt in range(4):
            for u in range(4): ep.append((V0 + kst[tt * 4 + u], epi(ACC + (tt * 8 + 2 * u) * 4, tt * 4096 + u * 1024), Q0 - 4))
        for c in range(4):
            done = V0 + [192, 256, 448, 512][c]
            for nt in range(2):
                for kbl in range(2):
                    i = nt * 2 + kbl
                    lo = done + 6 + K2 * i if c < 2 else max(done + 6, V0 + 454 + K3 * (4 * (c - 2) + i))
                    ep.append((lo, epi(VACC + (1 - (c & 1)) * 32 + (nt * 4 + 2 * kbl) * 4, 32768 + kbl * 8192 + (2 * c + nt) * 1024, True), done + 62 if c < 2 else Q0 + 148))
        if E_("DROPV"): ph.put("x", f"s_cmp_ge_u32 s{sP}, 2\ns_cselect_b32 s{sVX}, 0x70000000, s{sVX}", V0 + 400)
        ep.sort(key=lambda e: e[0])
        g = 0
        for (lo, its, dl) in ep:
            g = ph.stream(its, max(lo, g + 1)); assert g < dl
        g = ph.stream(self.flag_store(sKFO, ["kv"]), g + int(E_("KVD", "60")))
        print("kv flag at", g - Q0, file=sys.stderr)
        HG = V0 + 384
        g = ph.stream([("m", f"buffer_load_dword v3, v16, {srd(WS)}, s{sHF1} offen {WT}")], HG - 44)
        ph.put("x", self.poll_check(3, 16, WS, f"s{sHF1}", "H"), HG)
        g = HG + 1
        for n in range(16):
            for tt in range(4):
                lo = max(HG + 128 if n >= 8 else 0, HG + 1 + 7 * (n * 4 + tt))
                off = (tt & 1) * 16384 + n * 1024
                g = ph.stream([("s", f"s_xor_b32 s{sHLD}, s{sH1 + (tt >> 1)}, {off & ~2047}"),
                               ("m", f"buffer_load_dwordx4 {A((n*4+tt)*4)}, v1, {srd(WS)}, s{sHLD} offen offset:{off & 2047}")], max(lo, g + 1))
        g = ph.stream(moe_setup(), V0 + 20)
        a, ld = late_mod_loads(self, 112)
        g = ph.stream(a + items(f"""v_and_b32 v119, 3, v2
        v_lshlrev_b32 v119, 9, v119
        s_lshr_b32 s{sEO}, s2, 6
        s_add_u32 s{sEO}, s{sEO}, 4
        s_lshl_b32 s{sEO}, s{sEO}, 5
        s_bfe_u32 s{sET}, s2, {3 | (3 << 16)}
        s_add_u32 s{sEO}, s{sEO}, s{sET}
        s_lshl_b32 s{sEO}, s{sEO}, 6
        s_add_u32 s{sEO}, s{sEO}, {WS_LF}
        buffer_load_dword v118, v119, {srd(WS)}, s{sEO} offen {WT}"""), Q0 + 150, sid=903)
        g = ph.put("x", self.poll_check(118, 119, WS, f"s{sEO}", "E2"), g + 50)
        g = ph.stream(ld, g + 1, sid=903)
        g = ph.stream(late_mod_fin(self, 112), g + 60, sid=903)
        KG = int(E_("KG", "50"))
        g = ph.stream([("m", f"buffer_load_dword v3, v17, {srd(WS)}, s{sKFP} offen {WT}")], BQ + KG - 40)
        ph.put("x", self.poll_check(3, 17, WS, f"s{sKFP}", "KV"), BQ + KG)
        its = []
        for (lds, so, tag) in ((R2, (sKV, 0), "k0"), (R3, (sKV, 32768), "v0"), (R4, (sKp, 0), "k1")):
            for g2 in range(2):
                its += self.dma4(WS, [1, 1, 1, 1], (sW8, lds + g2 * 4096), (so[0], so[1] + g2 * 4096), tag)
        g = ph.stream(its, BQ + KG + 1, None, step=int(E_("KST", "4")), sid=900)
        as1, as2 = attn_setup(self)
        g2 = ph.stream(as1, Q0 + 160, sid=906)
        g3 = ph.stream(as2, max(g2, BQ + KG) + 1, sid=906)
        print("setup ends", g2, g3, file=sys.stderr)
        cl = cold_loads(120, sMODO2)
        nf = [i for i, it in enumerate(cl) if it[0] == "m"][0]
        g2 = ph.stream(cl[:nf], g2 + 1, sid=905)
        g = ph.stream(cl[nf:], max(g, g2) + 1, sid=905)
        print("cold loads end at", g, file=sys.stderr)
        CT = E_("CT", "123")
        if "2" in CT: ph.stream(code_touch("L_ct2", "L_attn", "L_code_end", 123, "a61", 6), g + 2)
        if "1" in CT: ph.stream(code_touch("L_ct1", "L_ct1", "L_attn", 119, "v119", 2), 418)
        if self.TS:
            ph.put("x", self.ts, V0 - 1); ph.put("x", self.ts, Q0 - 1)
            for gp in (E_("TSP") or "").split(","):
                if gp: ph.put("x", lambda k: self.ts(k, True), int(gp))
        ph.emit()
        print("proj: overloaded placements", ph.over, file=sys.stderr)
        self.ts()


def build(stop=None):
    g = G()
    k = g.k
    g.startup(); g.proj()
    k.label("L_attn")
    if stop != "proj":
        attention(g)
        if stop != "attn":
            oproj(g); tail(g)
    else:
        qdump(g)
    k.label("L_fin")
    if g.TS:
        if E_("TST"): g.ts(force=True)
        k("s_waitcnt vmcnt(0)"); g.ts(force=bool(E_("TST")))
        k(f"""s_lshl_b32 s{sB}, s2, 2
        s_add_u32 s{sB}, s{sB}, s{sW}
        s_lshl_b32 s{sB}, s{sB}, 6
        s_add_u32 s{sB}, s{sB}, {WS_TS}
        v_cmp_eq_u32 vcc, 0, v2
        v_mov_b32 v6, {OOB}
        s_nop 1
        v_cndmask_b32 v5, v6, v2, vcc""")
        if E_("TSX"): k(f"s_getreg_b32 s{TSR[12]}, hwreg(HW_REG_XCC_ID, 0, 4)\ns_getreg_b32 s{TSR[11]}, hwreg(HW_REG_HW_ID)")
        for n in range(g.nts):
            k(f"v_mov_b32 v4, s{TSR[n]}\nbuffer_store_dword v4, v5, {srd(WS)}, s{sB} offen offset:{4*n}")
        if E_("TSDBG"):
            k(f"s_cmp_eq_u32 s2, {E_('TSDBG')}\ns_cselect_b32 s{sB}, 0, {OOB}\ns_cmp_eq_u32 s{sW}, 0\ns_cselect_b32 s{sB}, s{sB}, {OOB}")
            for n in range(1, g.nts):
                k(f"s_sub_u32 s{sC}, s{TSR[n]}, s{TSR[0]}\nv_mov_b32 v4, s{sC}\nbuffer_store_dword v4, v5, {srd(DBG)}, s{sB} offen offset:{4*n}")
    if E_("SPINT"):
        n = int(E_("SPINT"))
        if E_("SPINW"): k(f"s_cmp_lg_u32 s2, {E_('SPINW')}\ns_cbranch_scc1 L_end")
        k(f"s_add_u32 s{sC}, s{TSR[n]}, 10000")
        k.label("L_spint")
        k(f"s_memrealtime vcc\ns_waitcnt lgkmcnt(0)\ns_sub_u32 s{sB}, vcc_lo, s{sC}\ns_cmp_lt_i32 s{sB}, 0\ns_cbranch_scc1 L_spint")
    k.label("L_end")
    k("s_endpgm")
    lines = k.out + "\n".join(g.tail).split("\n") + ["L_code_end:", "    s_endpgm"]
    lines, nn = fix_hazards(lines, report=bool(E_("NOPS")))
    print("nops inserted:", nn, file=sys.stderr)
    if E_("AL8", "0") == "1":
        lines, na, left = align8(lines)
        print("widened", na, "still misaligned", left, file=sys.stderr)
    hdr = open(os.path.join(HERE, "..", NAME + ".s.ref")).read().split("; Override launch geometry")[0]
    kn = NAME + "_kernel"
    text = hdr + f"""; @launch grid=(256,1,1) block=(256,1,1) lds=163840
.amdgcn_target "amdgcn-amd-amdhsa--gfx950"
.text
.globl {kn}
.p2align 8
.type {kn},@function
{kn}:
""" + "\n".join(lines) + f"""
.section .rodata,"a"
.p2align 6
.amdhsa_kernel {kn}
  .amdhsa_next_free_vgpr 512
  .amdhsa_next_free_sgpr 102
  .amdhsa_accum_offset 256
  .amdhsa_group_segment_fixed_size 0
  .amdhsa_kernarg_size 128
  .amdhsa_user_sgpr_count 2
  .amdhsa_user_sgpr_kernarg_segment_ptr 1
  .amdhsa_system_sgpr_workgroup_id_x 1
.end_amdhsa_kernel
"""
    return text, lines

if __name__ == "__main__":
    path = sys.argv[1] if len(sys.argv) > 1 else os.path.join(HERE, "..", NAME + ".s")
    text, lines = build(E_("STOP"))
    verify_all(lines)
    open(path, "w").write(text)
    print("wrote", path, len(text), file=sys.stderr)
```

```python
from common import *
O_, S_, MK, CI, P_, LA = 128, 96, 80, 64, 48, 32
vMW, vQR, vK, vV0, vV1, vT1, vT2, vPO, vSEN, ONE = 16, 17, 18, 19, 20, 21, 22, 23, 24, 28
Q1, KF, VF, Q2, PRE = 64, 128, 160, 192, 0
DESC = E_("DESC", "0") == "1"
BIG = 2.0 ** 100
LLO, LHI = 2.0 ** -64, 2.0 ** 80

def mask_items(dst, thr, grp):
    t = ""
    for qt in range(2):
        for kt in range(2):
            for r in range(4):
                d = dst + 8 * qt + 4 * kt + r
                c = 16 * kt + r - 16 * qt
                t += f"v_add_f32 v{d}, {H(-c * BIG) if c else '0'}, v{thr}\nv_min_f32 v{d}, v{d}, v{CI + (grp*2+qt)*4 + r}\n"
    return items(t)

def attn_setup(g):
    t = f"""s_and_b32 s{sB}, s{sW}, 1
    s_lshr_b32 s{sC}, s{sW}, 1
    s_lshl_b32 s{sVo}, s{sB}, 13
    s_add_u32 s{sVo}, s{sVo}, {R2}
    v_add_u32 v{vK}, s{sVo}, v1
    s_mul_i32 s{sVo}, s{sB}, 12288
    s_add_u32 s{sVo}, s{sVo}, {R3}
    v_add_u32 v{vV0}, s{sVo}, v1
    s_lshl_b32 s{sVo}, s{sB}, 12
    s_add_u32 s{sVo}, s{sVo}, {R3}
    v_add_u32 v{vV1}, s{sVo}, v1
    v_and_b32 v{vPO}, 15, v2
    v_lshrrev_b32 v{vSEN}, 4, v2
    v_lshlrev_b32 v{vSEN+1}, 2, v{vSEN}
    v_sub_u32 v{vSEN+1}, v{vPO}, v{vSEN+1}
    s_sub_i32 s{sVo}, s{sC}, s{sB}
    s_lshl_b32 s{sVo}, s{sVo}, 5
    v_add_u32 v{vT1}, s{sVo}, v{vSEN+1}
    s_add_u32 s{sVo}, s{sC}, s{sB}
    s_sub_i32 s{sVo}, 1, s{sVo}
    s_lshl_b32 s{sVo}, s{sVo}, 5
    v_add_u32 v{vT2}, s{sVo}, v{vSEN+1}
    v_cvt_f32_i32 v{vT1}, v{vT1}
    v_cvt_f32_i32 v{vT2}, v{vT2}
    v_add_f32 v{vT1}, 0.5, v{vT1}
    v_add_f32 v{vT2}, 0.5, v{vT2}
    v_mul_f32 v{vT1}, {H(BIG)}, v{vT1}
    v_mul_f32 v{vT2}, {H(BIG)}, v{vT2}
    v_lshrrev_b32 v{vSEN+1}, 2, v{vPO}
    v_and_b32 v{vPO}, 3, v{vPO}
    v_lshlrev_b32 v{vPO}, 6, v{vPO}
    v_lshl_add_u32 v{vPO}, v{vSEN+1}, 15, v{vPO}
    v_lshl_add_u32 v{vPO}, v{vSEN}, 4, v{vPO}
    s_lshl_b32 s{sPB}, s{sP}, 20
    s_lshl_b32 s{sVo}, s{sW}, 18
    s_add_u32 s{sPB}, s{sPB}, s{sVo}
    s_lshl_b32 s{sVo}, s{sH}, 10
    s_add_u32 s{sPB}, s{sPB}, s{sVo}
    s_add_u32 s{sPB}, s{sPB}, {WS_P}
    s_mov_b32 s{sN1}, s{sT1}
    s_mov_b32 s{sE}, 2
    s_mov_b32 s{sRedo}, 0
    s_mov_b32 s{sRPL}, 28
    s_mov_b32 s64, 128
    s_lshl_b32 s65, s{sJ}, {1 if E_('OROT', '1') == '1' else 31}
    s_and_b32 s65, s65, 7
    s_xor_b32 s65, s65, s{sW}
    s_lshl_b32 s65, s65, 16
    s_add_u32 s{sKm}, s{sW8}, {R2}
    s_add_u32 s{sVm}, s{sW8}, {R0}
    s_lshl_b32 s{sCLO}, s{sH}, 13
    s_lshl_b32 s{sVo}, s{sB}, 11
    s_add_u32 s{sCLO}, s{sCLO}, s{sVo}
    s_add_u32 s{sCLO}, s{sCLO}, {WS_CTX}
    s_sub_u32 s{sVo}, 3, s{sC}
    s_lshl_b32 s{sVo}, s{sVo}, 18
    s_add_u32 s{sCHI}, s{sCLO}, s{sVo}
    s_lshl_b32 s{sVo}, s{sC}, 18
    s_add_u32 s{sCLO}, s{sCLO}, s{sVo}
    s_add_u32 s{sCFO}, s{sHFO}, {WS_CF - WS_HF}
    s_and_b32 s{sCFP}, s2, {0xff & ~24}
    s_lshl_b32 s{sCFP}, s{sCFP}, 8
    s_sub_u32 s{sVo}, 3, s{sW}
    s_min_u32 s{sVo}, s{sVo}, s{sW}
    s_lshl_b32 s{sVo}, s{sVo}, 7
    s_add_u32 s{sCFP}, s{sCFP}, s{sVo}
    s_add_u32 s{sCFP}, s{sCFP}, {WS_CF}
    """
    t2 = f"""v_add_u32 v{vMW}, s{sW8}, v1
    v_and_b32 v{vQR}, {~8192 & 0xffffffff}, v{vMW}
    """
    for i in range(4): t2 += f"v_mov_b32 v{vSEN+i}, -1\nv_mov_b32 v{ONE+i}, 0x3f803f80\n"
    for i in range(16): t2 += f"v_mov_b32 v{CI+i}, 0\n"
    return items(t), items(t2) + first_c(1)

def first_c(tile, redo=False):
    if tile == 2: return mask_items(MK, vT1, 0)
    it = items(f"""s_cmp_eq_u32 s{sT1}, 0
    s_cselect_b32 s{sVo}, 0, {H(BIG*1024)}
    v_add_f32 v3, s{sVo}, v{vT1}""") + mask_items(S_, 3, 0)
    if redo: return it
    return it + items(f"""s_cmp_eq_u32 s{sT1}, 0
    s_cselect_b32 s{sVo}, 1.0, 0
    v_sub_f32 v3, v{vT2}, v{vT1}
    v_fma_f32 v3, s{sVo}, v3, v{vT1}""") + mask_items(MK, 3, 0)

def qk_m(Q, grp, S, C, order="kt"):
    M = []
    tl = [(0, 0), (1, 0), (0, 1), (1, 1)] if order == "kt" else [(0, 0), (0, 1), (1, 0), (1, 1)]
    for (qt, kt) in tl:
        d = S + 8 * qt + 4 * kt
        for u in range(4):
            c = V(d) if u else (V(CI + (grp * 2 + qt) * 4) if C is None else "0" if C == 0 else V(C + 8 * qt + 4 * kt))
            M.append(MF(V(d), A(KF + (kt * 4 + u) * 4), A(Q + (grp * 2 + qt) * 16 + u * 4), c))
    return M
def pv_m(grp, P, zero, order=range(8), lsum=True):
    M = []
    for qt in range(2 if lsum else 0):
        d = V(LA + (grp * 2 + qt) * 4)
        M.append(MF(d, V(ONE), V(P + 4 * qt), "0" if zero else d))
    for n in order:
        for qt in range(2):
            d = V(O_ + grp * 64 + qt * 32 + n * 4)
            M.append(MF(d, A(VF + 4 * n), V(P + 4 * qt), "0" if zero else d))
    return M
def qread(Q, base, f): return f"ds_read_b128 {A(Q+4*f)}, v{vQR} offset:{base + f*1024}"
def kread(ab, f): return ("l", f"ds_read_b128 {A(KF+4*f)}, v{vK} offset:{ab*16384 + f*1024}")
def vread(ab, n): return ("l", f"ds_read_b128 {A(VF+4*n)}, v{vV0 if n < 4 else vV1} offset:{ab*16384 + n*1024}")
def sm_place(ph, S, P, g0=0, stride=2):
    ge = []
    for j in range(16): ge.append(ph.put("e", f"v_exp_f32 v{S+j}, v{S+j}", g0 + stride * j))
    return ge
def cvt_place(ph, S, P, ge):
    for i in range(8):
        lo = max(ge[2 * i], ge[2 * i + 1])
        if lo + 1 <= len(ph.M) - 1: ph.put("v", f"v_cvt_pk_bf16_f32 v{P+i}, v{S+2*i}, v{S+2*i+1}", lo + 1)
        else: ph.put("x", f"v_cvt_pk_bf16_f32 v{P+i}, v{S+2*i}, v{S+2*i+1}", lo)
def adv_items():
    if DESC: return items(f"""s_add_u32 s{sVo}, s{sKp}, 32768
    s_sub_u32 s{sKp}, 15, s{sE}
    s_cmp_eq_u32 s{sE}, 16
    s_cselect_b32 s{sKp}, s{sT2}, s{sKp}
    s_cmp_gt_u32 s{sE}, s{sN1}
    s_cselect_b32 s{sKp}, s{sKp}, s{sE}
    s_mul_i32 s{sKp}, s{sKp}, {KVS}
    s_add_u32 s{sKp}, s{sKp}, s{sKV}
    s_cmp_ge_u32 s{sE}, 17
    s_cselect_b32 s{sKp}, {OOB - 8192}, s{sKp}
    s_add_u32 s{sE}, s{sE}, 1""")
    return items(f"""s_add_u32 s{sVo}, s{sKp}, 32768
    s_sub_u32 s{sKp}, s{sE}, s{sN1}
    s_sub_u32 s{sKp}, s{sKp}, 1
    s_cmp_gt_u32 s{sE}, s{sN1}
    s_cselect_b32 s{sKp}, s{sKp}, s{sE}
    s_mul_i32 s{sKp}, s{sKp}, {KVS}
    s_add_u32 s{sKp}, s{sKp}, s{sKV}
    s_cmp_ge_u32 s{sE}, 17
    s_cselect_b32 s{sKp}, {OOB - 8192}, s{sKp}
    s_add_u32 s{sE}, s{sE}, 1""")
vL2 = 15
def lin8(sm, so, tog, tag):
    it = []
    for h in range(2):
        it.append(("s", f"s_add_u32 m0, s{sm}, {h*4096}"))
        for i in range(4): it.append(("m", f"buffer_load_dwordx4 v{vL2 if h else 1}, {srd(WS)}, s{so} offen offset:{i*1024} {E_('KVL', '')} lds", tag))
    return it + [("s", f"s_xor_b32 s{sm}, s{sm}, {tog}")]
def kdma(g): return lin8(sKm, sKp, R2 ^ R4, "kd")
def vdma(g): return lin8(sVm, sVo, R3 ^ R0, "vd")
NPEEL = 8
FUSE = E_("FUSE", "0") == "1"
def prefill_items(i):
    if E_("NOPRE"): return []
    return [("s", f"s_add_u32 s{sPO}, s{sPB}, {((i >> 3) << 23) + (i & 1) * 131072}"),
            ("m", f"buffer_store_dwordx4 {V(vSEN)}, v{vQR if E_('PLIN', '1') == '1' else vPO}, {srd(WS)}, s{sPO} offen offset:{((i >> 1) & 3) * 256} {WT}", "pre")]

DG = {"8": {"c": [3, 7, 11, 15, 19, 23, 27, 31], "d": [3, 7, 11, 15, 19, 23, 27, 31], "a": []},
      "7": {"c": [3, 7, 11, 15, 23, 27, 31], "d": [3, 7, 11, 15, 23, 27, 31], "a": [3, 7]},
      "9": {"c": [3, 7, 11, 15, 23, 27, 31], "d": [3, 7, 11, 15, 19, 23, 27, 31], "a": [3]},
      "6": {"c": [3, 7, 15, 19, 27, 31], "d": [0, 7, 11, 19, 23, 31], "a": [3, 7, 15, 19]}}[E_("DG", "8")]
def kv_items(g, name):
    seq = kdma(g) + vdma(g)
    groups = []; pre = []
    for it in seq:
        if it[0] == "m": groups.append([pre, it]); pre = []
        else: pre = pre + [it]
    groups.append([pre, None])
    n0 = {"c": 0, "d": len(DG["c"]), "a": len(DG["c"]) + len(DG["d"])}[name]
    return [(gp, groups[n0 + i][1], groups[n0 + i + 1][0]) for i, gp in enumerate(DG[name])], groups[0][0]
def place_kv(g, ph, name, limit=16):
    lst, first = kv_items(g, name)
    n0 = {"c": 0, "d": len(DG["c"]), "a": len(DG["c"]) + len(DG["d"])}[name]
    if name == "c": ph.stream(first, 0, 1)
    for i, (gp, dma, post) in enumerate(lst):
        if n0 + i >= limit: break
        ph.put("m", dma[1], gp, gp, tag=dma[2])
        ph.stream(post, gp + 1, gp + 2)

def slot_lv(g, Q, name, extra=None):
    S0, S1, P0, P1 = S_, S_ + 16, P_, P_ + 8
    qk, sm, pv = {"a": ((0, S0), (S1, P1), (0, P0)), "b": ((1, S1), (S0, P0), (1, P1)),
                  "c": ((0, S0), (S1, P1), (0, P0)), "d": ((1, S1), (S0, P0), (1, P1))}[name]
    M = qk_m(Q, qk[0], qk[1], None) + pv_m(pv[0], pv[1], False, lsum=name not in "bc")
    ph = Phase(g.k, M)
    seq = kdma(g) + vdma(g); grp = []; pre = []
    for it in seq:
        if it[0] == "m": grp.append([pre, it]); pre = []
        else: pre = pre + [it]
    grp.append([pre, None])
    if name == "c":
        ge = sm_place(ph, *sm, g0=0)
        for n, gp in enumerate([1, 3, 5, 9, 13, 17, 21, 23]): ph.put(*vread(0, n), gp, gp)
        dl, n0 = [7, 11, 15, 19, 25, 29], 0
        ph.stream(grp[0][0], 0, 1)
    if name == "d":
        ge = sm_place(ph, *sm, g0=2)
        for f in range(8): ph.put(*kread(0, f), 5 + 4 * f, 5 + 4 * f)
        dl, n0 = [0, 3, 7, 11, 15, 19, 23, 27, 31], 6
    if name == "a":
        ge = sm_place(ph, *sm, g0=0)
        for n, gp in enumerate([1, 5, 7, 9, 13, 17, 21, 25]): ph.put(*vread(1, n), gp, gp)
        dl, n0 = [3], 15
    if name == "b":
        ge = sm_place(ph, *sm, g0=0)
        for f in range(8): ph.put(*kread(1, f), 9 + 2 * f)
        dl, n0 = [], 0
    for i, gp in enumerate(dl):
        ph.put("m", grp[n0 + i][1][1], gp, gp, tag=grp[n0 + i][1][2]); ph.stream(grp[n0 + i + 1][0], gp + 1, gp + 2)
    vq = [(ge[2 * i + 1] + 1, f"v_cvt_pk_bf16_f32 v{sm[1]+i}, v{sm[0]+2*i}, v{sm[0]+2*i+1}") for i in range(8)]
    if name in "ab": vq += [(ge[j] + 1, f"v_add_f32 v{12+(j>>3)}, v{12+(j>>3)}, v{sm[0]+j}") for j in range(16)]
    if name == "a": vq += [(26, f"v_xor_b32 v{vV0}, {R3 ^ R0}, v{vV0}"), (26, f"v_xor_b32 v{vV1}, {R3 ^ R0}, v{vV1}")]
    if name == "c": vq += [(0, f"v_xor_b32 v{vK}, {R2 ^ R4}, v{vK}")]
    vq.sort(key=lambda x: x[0])
    n = len(M)
    for (lo, t) in vq:
        lo = min(lo, n - 1)
        ok = [gp for gp in range(lo, n) if ph.fits(gp, "v")]
        if ok and ok[0] <= lo + 6: ph.put("v", t, ok[0], ok[0])
        else: ph.g[lo].append(("v", t, None, 0))
    if extra: extra(ph)
    ph.emit()

def slot(g, Q, name, zero=False, Cm=None, extra=None, dma=True, k=None):
    S0, S1, P0, P1 = S_, S_ + 16, P_, P_ + 8
    qk, sm, pv = {"a": ((0, S0), (S1, P1), (0, P0)), "b": ((1, S1), (S0, P0), (1, P1)),
                  "c": ((0, S0), (S1, P1), (0, P0)), "d": ((1, S1), (S0, P0), (1, P1))}[name]
    M = qk_m(Q, qk[0], qk[1], Cm) + pv_m(pv[0], pv[1], zero)
    ph = Phase(k or g.k, M); ph.batch = int(E_("BATA", "0"))
    ge = sm_place(ph, *sm, g0=2 if name != "b" else 0)
    if name in "ac":
        for n, gp in enumerate([0, 1, 5, 9, 13, 17, 21, 25]): ph.put(*vread(1 if name == "a" else 0, n), gp, gp)
    if name == "b":
        for f in range(8): ph.put(*kread(1, f), 9 + 2 * f)
    if name == "d":
        for f in range(8): ph.put(*kread(0, f), 5 + 4 * f, 5 + 4 * f)
    if dma and name != "b": place_kv(g, ph, name)
    cvt_place(ph, *sm, ge)
    if name == "a": ph.stream(items(f"v_xor_b32 v{vV0}, {R3 ^ R0}, v{vV0}\nv_xor_b32 v{vV1}, {R3 ^ R0}, v{vV1}"), 29)
    if name == "b": ph.put("v", f"v_xor_b32 v{vK}, {R2 ^ R4}, v{vK}", 27)
    if extra: extra(ph)
    ph.emit()

def tile(g, T):
    import gen_tail as GT
    k = g.k
    Q = Q1 if T == 1 else Q2
    sT = sT1 if T == 1 else sT2
    S0, S1, P0, P1 = S_, S_ + 16, P_, P_ + 8
    L = f"L_t{T}"
    def prologue(k, first):
        M = qk_m(Q, 0, S0, S0 if T == 1 else None, order="qt") + qk_m(Q, 1, S1, None)
        ph = Phase(k, M)
        if first:
            for f in range(8, 16): ph.put("l", qread(Q1, R0, f), f - 8, f - 8)
            for f in range(16): ph.g[8 + f].append(("l", qread(Q2, R1, f), None, 0))
        ge = []
        for j in range(16):
            gp = 4 * (j // 4) + 8 + (j % 4); ph.g[gp].append(("e", f"v_exp_f32 v{S0+j}, v{S0+j}", None, 0)); ge.append(gp)
        for f in range(8): g1 = ph.put(*kread(1, f), 24 + f, 24 + f)
        ph.put("x", f"v_xor_b32 v{vK}, {R2 ^ R4}, v{vK}", 31)
        if first: ph.put("x", f"""v_lshrrev_b32 v{vQR}, 4, v2
        v_lshlrev_b32 v{vQR}, 15, v{vQR}
        v_and_b32 v14, 255, v1
        v_add_u32 v{vQR}, v{vQR}, v14
        {f"s_and_b32 s{sD}, s2, 1" if E_("ODDX") else ""}
        {f"s_lshl_b32 s{sD}, s{sD}, 30" if E_("ODDX") else ""}
        {f"v_or_b32 v{vQR}, s{sD}, v{vQR}" if E_("ODDX") else ""}""", 31)
        ph.stream(adv_items() + items(f"s_sub_u32 s{sRem}, s{sT}, {1 if T == 1 else NPEEL}"), 0)
        cvt_place(ph, S0, P0, ge)
        ph.emit()
    if T == 1:
        k2 = K(); k2.label(L + "_start"); prologue(k2, False); k2(f"s_branch {L}_p1")
        g.tail.append("\n".join(k2.out))
        prologue(k, True); k.label(L + "_p1")
    elif FUSE:
        k2 = K(); k2.label(L + "_start"); prologue(k2, False); k2("s_waitcnt lgkmcnt(0)\ns_barrier")
        slot(g, Q, "c", zero=True, k=k2); slot(g, Q, "d", zero=True, k=k2); k2(f"s_branch {L}_p1")
        assert g.TS or [e[0] for e in k2.lg] == [e[0] for e in k.lg]
        k.lg = list(k2.lg)
        g.tail.append("\n".join(k2.out))
        k.label(L + "_p1")
    else:
        k.label(L + "_start"); prologue(k, False)
    if not (T == 2 and FUSE): k.waitvm(["kd", "vd", "k1", "v0"], True); k("s_barrier")
    if E_("TSA") == "r" and T == 2 or E_("TSA") == "m1" and T == 2: g.ts(force=True)
    if T == 1: k.vm = []
    st_bar = k.save()
    if T == 1:
        k(f"s_cmp_eq_u32 s{sT1}, 0\ns_cbranch_scc1 {L}_zero")
    if not (T == 2 and FUSE):
        slot(g, Q, "c", zero=True)
        slot(g, Q, "d", zero=True)
    if T == 2:
        for r in range(1, NPEEL):
            slot(g, Q, "a", extra=lambda ph: GT.peel_a(g, ph, r))
            def fb(ph): ph.stream(adv_items(), 10); GT.peel_b(g, ph, r)
            slot(g, Q, "b", extra=fb)
            k.waitvm(["kd", "vd", "ctx"] + (["pre"] if r == 4 else []), True); k("s_barrier")
            if E_("TSA") == "r": g.ts(force=True)
            if r == 1: g.run(g.flag_store(sCFO, []))
            slot(g, Q, "c")
            slot(g, Q, "d")
        k.vm = [e for e in k.vm if e[1] in ("kd", "vd")]
    if T == 1 or NPEEL == 8: k(f"s_cmp_eq_u32 s{sRem}, 0\ns_cbranch_scc1 {L}_diag")
    st_d = k.save()
    k.out.append(".p2align 3")
    k.label(L + "_loop")
    sl = slot_lv if E_("LV") else slot
    sl(g, Q, "a")
    sl(g, Q, "b", extra=lambda ph: ph.stream(adv_items(), 10))
    k.waitvm(["kd", "vd"], True); k("s_barrier")
    k.vm = []
    sl(g, Q, "c")
    sl(g, Q, "d", extra=lambda ph: ph.put("s", f"s_sub_u32 s{sRem}, s{sRem}, 1", 26))
    k(f"s_cmp_lg_u32 s{sRem}, 0\ns_cbranch_scc1 {L}_loop")
    assert [e[1] for e in k.vm] == [e[1] for e in st_d[0]] and [e[0] for e in k.lg] == [e[0] for e in st_d[1]]
    k.label(L + "_diag")
    TM = lambda: g.ts(force=True) if E_("TSA") == f"m{T}" or (E_("TSA") == "r" and T == 2) else None
    TM()
    m2 = mask_items(MK, vT2, 1)
    def xa(ph):
        if T == 2: GT.diag_a(g, ph)
        ph.stream(m2[:10], 17)
    slot(g, Q, "a", Cm=MK, extra=xa)
    def xb(ph):
        if T == 1: ph.stream(adv_items(), 10)
        else: GT.diag_b(g, ph)
        ph.stream(m2[10:], 1)
    slot(g, Q, "b", extra=xb)
    k.waitvm(["kd", "vd", "pre"], True); k("s_barrier")
    if T == 1: k.restore(st_bar)
    TM()
    NO = [4, 5, 6, 7, 0, 1, 2, 3]
    snd = lambda grp, va, base: [("l", f"ds_write_b128 v{va}, {V(O_ + grp*64 + (i&1)*32 + 16 + (i>>1)*4)} offset:{base + i*1024}") for i in range(8)]
    rcv = lambda grp, va, base: [("l", f"ds_read_b128 {V(O_ + grp*64 + (i&1)*32 + 16 + (i>>1)*4)}, v{va} offset:{base + i*1024}") for i in range(8)]
    vS, RS = (vMW, R1) if T == 1 else (11, 0)
    def big(k, zero):
        ph = Phase(k, qk_m(Q, 1, S0, MK, order="qt") + pv_m(0, P0, zero, NO) + pv_m(1, P1, zero, NO))
        for i, n in enumerate(NO): ph.put(*vread(0, n), [0, 1, 4, 7, 10, 13, 16, 19][i], [0, 1, 4, 7, 10, 13, 16, 19][i])
        for i, n in enumerate(NO): ph.put(*vread(1, n), min(51, 37 + 2 * i), min(51, 37 + 2 * i))
        for i, it in enumerate(snd(0, vS, RS)): ph.put("l", it[1], [24, 27, 30, 33, 36, 40, 44, 48][i], [24, 27, 30, 33, 36, 40, 44, 48][i])
        ge1 = []
        for j in range(16): ge1.append(ph.put("e", f"v_exp_f32 v{S1+j}, v{S1+j}", (ge1[-1] if ge1 else 1) + 1))
        ge2 = []
        for j, gp in enumerate([25, 26, 28, 29, 31, 32, 34, 35, 37, 38, 39, 41, 42, 43, 45, 46]): ge2.append(ph.put("e", f"v_exp_f32 v{S0+j}, v{S0+j}", gp, gp))
        for i in range(8): ph.put("v", f"v_cvt_pk_bf16_f32 v{P1+i}, v{S1+2*i}, v{S1+2*i+1}", ge1[2 * i + 1] + 1, 30)
        for i in range(8): ph.put("v", f"v_cvt_pk_bf16_f32 v{P0+i}, v{S0+2*i}, v{S0+2*i+1}", [36, 40, 44, 47, 48, 49, 50, 50][i], [36, 40, 44, 47, 48, 49, 50, 50][i])
        lz = f"s_xor_b32 s{sB}, s{sVm}, 8192" if T == 1 else f"s_xor_b32 s{sB}, s{sW8}, {8192 + R0}"
        hz = f"s_xor_b32 s{sC}, s{sVm}, {R3 ^ R0}" if T == 1 else f"s_add_u32 s{sC}, s{sW8}, {R3}"
        ph.stream(items(f"""{lz}
        v_lshrrev_b32 v13, 1, v1
        v_add_u32 v12, s{sB}, v13"""), 0)
        gl = [2, 6, 11, 15, 20, 23, 29, 34]; gi = 0
        for it in (kdma(g) if T == 1 else GT.wodma(g, 1)):
            if it[0] == "m": ph.g[gl[gi]].append(("m", it[1], it[2], 0)); gi += 1
            else: ph.put("s", it[1], gl[gi - 1] + 1 if gi else 0, gl[gi] - 1 if gi < 8 else None)
        ph.put("v", f"v_mov_b32 v{LA+1}, v{LA+4}", 33, 33)
        if T == 2 and GT.TK < 32: ph.put("x", f"v_readfirstlane_b32 s{GT.sCND}, v10", 50)
        ph.put("x", f"""ds_write_b64 v12, v[{LA}:{LA+1}]
        {hz}
        v_xor_b32 v12, 8192, v12
        v_add_u32 v9, s{sC}, v1
        v_xor_b32 v8, 8192, v{vS}
        v_xor_b32 v10, 8192, v9""", 51)
        ph.emit()
    if T == 1:
        k2 = K(); k2.label(L + "_zero"); big(k2, True); k2(f"s_branch {L}_join")
        g.tail.append("\n".join(k2.out))
    big(k, False)
    k.label(L + "_join")
    g.ts(); TM()
    k(f"""v_xor_b32 v{vV0}, {R3 ^ R0}, v{vV0}
    v_xor_b32 v{vV1}, {R3 ^ R0}, v{vV1}
    s_waitcnt lgkmcnt(0)
    s_barrier""")
    TM()
    def check_txt(RL):
        return f"""v_cmp_le_f32 vcc, {H(LLO)}, v{RL+12}
            s_mov_b64 s[{sXB}:{sXB+1}], vcc
            v_cmp_ge_f32 vcc, {H(LHI)}, v{RL+8}
            s_and_b64 s[{sXB}:{sXB+1}], s[{sXB}:{sXB+1}], vcc
            s_cmp_eq_u64 s[{sXB}:{sXB+1}], -1
            s_cselect_b32 s{sXB}, s{sRedo}, 1
            s_cmp_lg_u32 s{sXB}, 0
            s_cbranch_scc1 {L}_redo
            {L}_safe:"""
    if T == 1 and FUSE:
        RL = MK
        def fins(grp):
            out = []
            for qt in range(2):
                b = O_ + grp * 64 + qt * 32; r = RL + 2 * (grp * 2 + qt)
                for u in range(2):
                    c = b + 8 * u
                    for i in range(8): out.append(("v", f"v_add_f32 v{c+i}, v{c+i}, v{c+16+i}"))
                    for i in range(8): out.append(("v", f"v_mul_f32 v{c+i}, v{c+i}, v{r}"))
                    for i in range(4): out.append(("v", f"v_cvt_pk_bf16_f32 v{c+i}, v{c+2*i}, v{c+2*i+1}"))
                    out.append(("x", f"buffer_store_dwordx4 {V(c)}, v{vL2 if qt else 1}, {srd(WS)}, s{sC if grp else sB} offen offset:{u*1024} {WT}", "ctx"))
            return out
        ph = Phase(k, pv_m(1, P0, False, NO) + qk_m(Q2, 0, S0, 0, order="qt") + qk_m(Q2, 1, S1, 0))
        rc = rcv(0, 8, RS); rc = [rc[i] for i in (0, 2, 4, 6, 1, 3, 5, 7)]
        for i, it in enumerate([("l", f"ds_read_b64 v[{RL+8}:{RL+9}], v12")] + rc[:4] + [kread(0, f) for f in range(4)] + rc[4:] + [kread(0, f) for f in range(4, 8)]): ph.put("l", it[1], i, i)
        for i, it in enumerate(snd(1, 10, 0)): ph.g[17 + 3 * i].append(("l", it[1], None, 0))
        ge = []
        for j, gp in enumerate([27, 28, 30, 31, 33, 34, 36, 37, 39, 40, 41, 42, 43, 44, 45, 46]): ph.g[gp].append(("e", f"v_exp_f32 v{S0+j}, v{S0+j}", None, 0)); ge.append(gp)
        for f in range(8): ph.g[42 + f].append(kread(1, f) + (None, 0))
        g1 = ph.stream(items(f"""s_lshl_b32 s{sB}, s{sT}, 20
        s_add_u32 s{sC}, s{sB}, s{sCHI}
        s_add_u32 s{sB}, s{sB}, s{sCLO}
        v_lshrrev_b32 v11, 4, v2
        v_lshrrev_b32 v13, 2, v1
        v_add_u32 v13, {R1}, v13
        s_xor_b32 s{sD}, s{sW8}, 8192
        v_add_u32 v14, s{sD}, v13
        v_cmp_eq_u32 vcc, 1, v11
        v_add_f32 v{RL}, v{RL+8}, v{LA}
        v_add_f32 v{RL+2}, v{RL+9}, v{LA+4}
        v_cndmask_b32 v12, v{LA}, v{LA+4}, vcc
        v_rcp_f32 v{RL}, v{RL}
        v_rcp_f32 v{RL+2}, v{RL+2}
        v_cmp_eq_u32 vcc, 2, v11
        v_cmp_eq_u32 s[{sXB}:{sXB+1}], 3, v11"""), 2, dense=1, sid=960)
        gv = g1
        f0 = fins(0); st0 = [it for it in f0 if it[0] == "x"]
        g1 = ph.stream([it for it in f0 if it[0] != "x"] + items(f"""v_cndmask_b32 v12, v12, v{LA+8}, vcc
        v_cndmask_b32 v12, v12, v{LA+12}, s[{sXB}:{sXB+1}]""") + [("x", "ds_write_b32 v14, v12")] + items(f"""v_and_b32 v14, {~192 & 0xffffffff}, v13
        v_add_u32 v14, s{sW8}, v14"""), g1 + 1, dense=int(E_("FDN", "2")), sid=960)
        print("fused lo ends", g1, file=sys.stderr)
        gp = gv - 2
        for it in vdma(g):
            ph.put("x", it[1], gp, tag=it[2] if len(it) > 2 else None)
            if it[0] == "m": gp += 3
        for i, it in enumerate(st0): ph.put("x", it[1], max(gp + 4 * i, g1 if i == 3 else 0), tag="ctx")
        ph.stream(adv_items() + items(f"s_sub_u32 s{sRem}, s{sT2}, {NPEEL}"), gp + 1)
        for i in range(8): ph.g[min(49, ge[2 * i + 1] + 2)].append(("v", f"v_cvt_pk_bf16_f32 v{P0+i}, v{S0+2*i}, v{S0+2*i+1}", None, 0))
        ph.put("x", f"v_xor_b32 v{vK}, {R2 ^ R4}, v{vK}", 49)
        ph.emit()
        TM()
        k.waitvm(["kd", "vd"], True); k("s_barrier")
        TM()
        hi = fins(1); NH = int(E_("FNH", "63"))
        def xc(ph):
            rc = rcv(1, 9, 0); rc = [rc[i] for i in (0, 2, 4, 6, 1, 3, 5, 7)]
            rd = [f"ds_read_b32 v{RL+4}, v14 offset:128", f"ds_read_b32 v{RL+6}, v14 offset:192"] + [it[1] for it in rc] + [f"ds_read_b32 v{RL+8+w}, v13 offset:{w*8192}" for w in range(4)]
            for i, t in enumerate(rd): ph.g[[0, 1, 2, 4, 6, 8, 10, 12, 14, 16, 18, 19, 20, 22][i]].append(("l", t, None, 0))
            ph.stream(items(f"""v_add_f32 v{RL+4}, v{RL+4}, v{LA+8}
            v_add_f32 v{RL+6}, v{RL+6}, v{LA+12}
            v_rcp_f32 v{RL+4}, v{RL+4}
            v_rcp_f32 v{RL+6}, v{RL+6}""") + hi[:NH], 7, dense=3)
        slot(g, Q2, "c", zero=True, Cm=0, extra=xc)
        def xd(ph):
            g2 = ph.stream(hi[NH:] + items(f"""v_add_f32 v{RL+8}, v{RL+8}, v{RL+9}
            v_add_f32 v{RL+10}, v{RL+10}, v{RL+11}
            v_min_f32 v{RL+12}, v{RL+8}, v{RL+10}
            v_add_f32 v{RL+8}, v{RL+8}, v{RL+10}"""), 0, dense=2)
            assert g2 < 14, g2
            ph.put("x", check_txt(RL), g2 + 1)
        slot(g, Q2, "d", zero=True, Cm=0, extra=xd)
        redo(g, T)
        g.ts(); TM()
        return
    RL = S1
    ph = Phase(k, pv_m(1, P0, False, NO))
    ph.stream([("l", f"ds_read_b64 v[{RL+8}:{RL+9}], v12")] + rcv(0, 8, RS), 0)
    ph.stream(items(f"""s_lshl_b32 s{sB}, s{sT}, 20
    s_add_u32 s{sC}, s{sB}, s{sCHI}
    s_add_u32 s{sB}, s{sB}, s{sCLO}
    v_lshrrev_b32 v11, 4, v2
    v_lshrrev_b32 v13, 2, v1
    v_add_u32 v13, {R1 if T == 1 else R4}, v13
    s_xor_b32 s{sD}, s{sW8}, 8192
    v_add_u32 v14, s{sD}, v13
    v_cmp_eq_u32 vcc, 1, v11
    v_add_f32 v{RL}, v{RL+8}, v{LA}
    v_add_f32 v{RL+2}, v{RL+9}, v{LA+4}
    v_cndmask_b32 v12, v{LA}, v{LA+4}, vcc
    v_rcp_f32 v{RL}, v{RL}
    v_rcp_f32 v{RL+2}, v{RL+2}
    v_cmp_eq_u32 vcc, 2, v11
    v_cmp_eq_u32 s[{sXB}:{sXB+1}], 3, v11"""), 0)
    sn = snd(1, 9, 0)
    for i in range(3): ph.put("l", sn[i][1], 12 + 2 * i, 12 + 2 * i)
    ph.emit()
    TM()
    def fin(grp):
        out = []
        for qt in range(2):
            b = O_ + grp * 64 + qt * 32; r = RL + 2 * (grp * 2 + qt)
            so = sC if grp else sB
            for u in range(2):
                c = b + 8 * u
                for i in range(0, 8, 2): out.append(("v", f"v_pk_add_f32 v[{c+i}:{c+i+1}], v[{c+i}:{c+i+1}], v[{c+16+i}:{c+16+i+1}]"))
                for i in range(0, 8, 2): out.append(("v", f"v_pk_mul_f32 v[{c+i}:{c+i+1}], v[{c+i}:{c+i+1}], v[{r}:{r+1}] op_sel_hi:[1,0]"))
                for i in range(4): out.append(("v", f"v_cvt_pk_bf16_f32 v{c+i}, v{c+2*i}, v{c+2*i+1}"))
                out.append(("m", f"buffer_store_dwordx4 {V(c)}, v{vL2 if qt else 1}, {srd(WS)}, s{so} offen offset:{u*1024} {E_('CXP', WT)}", "ctx"))
        return out
    ex = GT.merge_x(g) if T == 2 else vdma(g)
    lo = fin(0)
    k(f"""v_cndmask_b32 v12, v12, v{LA+8}, vcc
    v_cndmask_b32 v12, v12, v{LA+12}, s[{sXB}:{sXB+1}]""")
    ne = len(ex) // 2 if T == 1 else len(ex)
    for i in range(5):
        g.run([sn[3 + i]] + lo[i * 11:(i + 1) * 11] + ex[i * ne // 5:(i + 1) * ne // 5])
    k(f"""ds_write_b32 v14, v12
    v_and_b32 v14, {~192 & 0xffffffff}, v13
    v_add_u32 v14, s{sW8}, v14""")
    if E_("TSA") != "r": TM()
    k("s_waitcnt lgkmcnt(0)\ns_barrier")
    TM()
    k(f"ds_read_b32 v{RL+4}, v14 offset:128\nds_read_b32 v{RL+6}, v14 offset:192")
    rc = rcv(1, 10, 0)
    g.run([rc[i] for i in (0, 2, 4, 6, 1, 3, 5, 7)])
    for w in range(4): k(f"ds_read_b32 v{RL+8+w}, v13 offset:{w*8192}")
    k(f"""v_add_f32 v{RL+4}, v{RL+4}, v{LA+8}
    v_add_f32 v{RL+6}, v{RL+6}, v{LA+12}
    v_rcp_f32 v{RL+4}, v{RL+4}
    v_rcp_f32 v{RL+6}, v{RL+6}""")
    hi = fin(1); ex = ex[ne:]
    nxt = [kread(0, f) for f in range(8)] if T == 1 else GT.oread(0) + GT.oread(1)
    for i in range(4):
        g.run(hi[i * 13:(i + 1) * 13] + ex[i * len(ex) // 4:(i + 1) * len(ex) // 4])
        if i == 1:
            k(f"""v_add_f32 v{RL+8}, v{RL+8}, v{RL+9}
            v_add_f32 v{RL+10}, v{RL+10}, v{RL+11}
            v_min_f32 v{RL+12}, v{RL+8}, v{RL+10}
            v_add_f32 v{RL+8}, v{RL+8}, v{RL+10}
            v_cmp_le_f32 vcc, {H(LLO)}, v{RL+12}
            s_mov_b64 s[{sXB}:{sXB+1}], vcc
            v_cmp_ge_f32 vcc, {H(LHI)}, v{RL+8}
            s_and_b64 s[{sXB}:{sXB+1}], s[{sXB}:{sXB+1}], vcc
            s_cmp_eq_u64 s[{sXB}:{sXB+1}], -1
            s_cselect_b32 s{sXB}, s{sRedo}, 1
            s_cmp_lg_u32 s{sXB}, 0
            s_cbranch_scc1 {L}_redo""")
            k.label(L + "_safe")
        if i >= 2: g.run(nxt[(i - 2) * len(nxt) // 2:(i - 1) * len(nxt) // 2])
    redo(g, T)
    g.ts(); TM()

def redo(g, T):
    L = f"L_t{T}"
    Q = Q1 if T == 1 else Q2
    sT = sT1 if T == 1 else sT2
    k = K(); S0, S1, MX = S_, S_ + 16, P_
    k.label(L + "_redo")
    k(f"s_cmp_eq_u32 s{sRedo}, 0\ns_cbranch_scc1 {L}_max\ns_mov_b32 s{sRedo}, 0")
    for i in range(16): k(f"v_mov_b32 v{CI+i}, 0")
    k(f"s_nop 1\ns_branch {L}_safe")
    k.label(L + "_max")
    k(f"""s_waitcnt vmcnt(0) lgkmcnt(0)
    s_barrier
    s_mov_b32 s{sRedo}, 1
    s_and_b32 s{sB}, s{sW}, 1
    s_lshl_b32 s{sB}, s{sB}, 13
    s_sub_u32 s{sC}, s{sKV}, s{sW8}
    s_add_u32 s{sC}, s{sC}, s{sB}
    s_mov_b32 s{sRem}, s{sT}""")
    if T == 2:
        k(f"s_mov_b32 s{sRPL}, 0")
        for i in range(4): k(f"v_mov_b32 v{vSEN+i}, -1")
    for t in range(4): k(f"v_mov_b32 v{MX+t}, 0xff800000")
    def kld(ab):
        k(f"s_add_u32 s{sB}, s{sC}, {ab*16384}")
        for f in range(8): k(f"buffer_load_dwordx4 {A(KF+4*f)}, v{vL2 if f >= 4 else 1}, {srd(WS)}, s{sB} offen offset:{(f&3)*1024}")
    def blk(grp, S, C):
        for m in qk_m(Q, grp, S, C): k(m)
    def mx(grp, S):
        for qt in range(2):
            for i in range(0, 8, 2): k(f"v_max3_f32 v{MX+grp*2+qt}, v{MX+grp*2+qt}, v{S+8*qt+i}, v{S+8*qt+i+1}")
    k.label(L + "_maxl")
    k(f"s_cmp_eq_u32 s{sRem}, 0\ns_cbranch_scc1 {L}_maxd")
    for ab in range(2):
        kld(ab); blk(0, S0, None); blk(1, S1, None); mx(0, S0); mx(1, S1)
    k(f"s_add_u32 s{sC}, s{sC}, {KVS}\ns_sub_u32 s{sRem}, s{sRem}, 1\ns_nop 7\ns_branch {L}_maxl")
    k.label(L + "_maxd")
    kld(0)
    for it in mask_items(MK, vT1, 0): k(it[1])
    blk(0, S0, MK); blk(1, S1, None); mx(0, S0); mx(1, S1)
    kld(1)
    for it in mask_items(MK, vT2, 1): k(it[1])
    blk(1, S0, MK); mx(1, S0)
    for sw in ("v_permlane16_swap_b32", "v_permlane32_swap_b32"):
        for t in range(4): k(f"v_mov_b32 v{MX+4+t}, v{MX+t}")
        for t in range(4): k(f"{sw} v{MX+t}, v{MX+4+t}")
        for t in range(4): k(f"v_max_f32 v{MX+t}, v{MX+t}, v{MX+4+t}")
    k(f"""ds_write_b128 v{vMW}, {V(MX)} offset:{R1}
    v_xor_b32 v8, 8192, v{vMW}
    s_waitcnt lgkmcnt(0)
    s_barrier
    ds_read_b128 {V(MX+4)}, v8 offset:{R1}""")
    for t in range(4): k(f"v_max_f32 v{MX+t}, v{MX+t}, v{MX+4+t}")
    for t in range(4):
        for r in range(4): k(f"v_sub_f32 v{CI+4*t+r}, 0, v{MX+t}")
    k(f"s_mov_b32 s{sE}, 0" if T == 1 else f"s_add_u32 s{sE}, s{sN1}, 1")
    k(f"""s_and_b32 s{sB}, s{sE}, 1
    s_mul_i32 s{sKm}, s{sB}, {R2 ^ R4}
    s_xor_b32 s{sKm}, s{sKm}, {R2}
    s_mul_i32 s{sVm}, s{sB}, {R3 ^ R0}
    s_xor_b32 s{sVm}, s{sVm}, {R3}
    v_and_b32 v{vK}, 0x7fff, v{vK}
    v_or_b32 v{vK}, s{sKm}, v{vK}
    v_and_b32 v{vV0}, 0x7fff, v{vV0}
    v_or_b32 v{vV0}, s{sVm}, v{vV0}
    v_and_b32 v{vV1}, 0x7fff, v{vV1}
    v_or_b32 v{vV1}, s{sVm}, v{vV1}
    s_add_u32 s{sKm}, s{sKm}, s{sW8}
    s_add_u32 s{sVm}, s{sVm}, s{sW8}
    s_add_u32 s{sE}, s{sE}, 2
    s_mov_b32 s{sKp}, s{sKV}""")
    if DESC and T == 2: k(f"s_sub_u32 s{sKp}, s{sT2}, 1\ns_mul_i32 s{sKp}, s{sKp}, {KVS}\ns_add_u32 s{sKp}, s{sKp}, s{sKV}")
    k(f"s_add_u32 s{sVo}, s{sKp}, 32768")
    for it in kdma(g) + vdma(g): k(it[1])
    if DESC and T == 2: k(f"s_sub_u32 s{sKp}, s{sKp}, {KVS}")
    else:
        k(f"""s_cmp_eq_u32 s{sT}, 0
        s_cselect_b32 s{sKp}, {14 if DESC else 0}, 1
        s_mul_i32 s{sKp}, s{sKp}, {KVS}
        s_add_u32 s{sKp}, s{sKp}, s{sKV}""")
    for it in kdma(g): k(it[1])
    if T == 1:
        for it in first_c(1, True) + mask_items(MK, vT2, 1): k(it[1])
        k(f"s_cmp_eq_u32 s{sT1}, 0\ns_cbranch_scc1 {L}_mk")
        for it in mask_items(MK, vT1, 0): k(it[1])
        k.label(L + "_mk")
    k("s_waitcnt vmcnt(0) lgkmcnt(0)\ns_barrier")
    for f in range(8): k(kread(0, f)[1])
    k(f"s_waitcnt lgkmcnt(0)\ns_branch {L}_start")
    g.tail.append("\n".join(k.out))

def attention(g):
    k = g.k; ACC = g.ACC
    u, tt = g.qlast
    b = ACC + (tt * 8 + 2 * u) * 4
    k(f"v_add_u32 v{vL2}, 4096, v1")
    for i in range(4): k(f"v_cvt_pk_bf16_f32 v{b+i}, v{b+2*i}, v{b+2*i+1}")
    k(f"ds_write_b128 v{vMW}, {V(b)} offset:{(tt>>1)*R1 + ((tt&1)*4+u)*1024}")
    k.waitvm(["k0"], True); k("s_barrier")
    for f in range(4): k(qread(Q1, R0, f)); k(kread(0, f)[1])
    for f in range(4, 8): k(kread(0, f)[1])
    for f in range(4, 8): k(qread(Q1, R0, f))
    g.ts()
    tile(g, 1)
    tile(g, 2)

def qdump(g):
    k = g.k; ACC = g.ACC
    k(f"s_lshl_b32 s{sB}, s2, 16\ns_lshl_b32 s{sC}, s{sW}, 14\ns_add_u32 s{sB}, s{sB}, s{sC}\ns_add_u32 s{sB}, s{sB}, {WS_CTX}")
    for tt in range(4):
        for u in range(4):
            b = ACC + (tt * 8 + 2 * u) * 4
            for i in range(4): k(f"v_cvt_pk_bf16_f32 v{b+i}, v{b+2*i}, v{b+2*i+1}")
            k(f"buffer_store_dwordx4 {V(b)}, v1, {srd(WS)}, s{sB} offen offset:{u*1024}")
        k(f"s_add_u32 s{sB}, s{sB}, 4096")
```

```python
import sys, os
sys.path.insert(0, os.path.dirname(os.path.abspath(__file__)))
from common import *
from gen_attn import *
from gen_tail import *

TSR = list(range(83, 96)) + ([76, 77, 78] if not E_('TSP') else [])
NTS = [dict(k=WUK, v=WUV, q=WQ, o=WO)[c] for c in E_('NTS', 'k')]
class G:
    def __init__(self):
        self.k = K(); self.tail = []
        self.TS = E_("TS"); self.nts = 0
    def ts(self, k=None, force=False):
        if not self.TS: return
        if (E_("TSP") or E_("TSO") or E_("TSA") or E_("TST")) and not force: return
        k = k or self.k
        n = self.nts; self.nts += 1
        assert n < len(TSR)
        k(f"{'s_memrealtime' if self.TS == 'r' else 's_memtime'} vcc\ns_waitcnt lgkmcnt(0)\ns_mov_b32 s{TSR[n]}, vcc_lo")
    def ts0(self):
        if not E_("TS0"): return
        self.n0 = getattr(self, "n0", 0) + 1
        self.k(f"s_memrealtime vcc\ns_waitcnt lgkmcnt(0)\nv_writelane_b32 v255, vcc_lo, {self.n0}")
    def poll_check(self, vreg, vaddr, sr, soff, name, target=None, sleep=4):
        def f(k):
            slow, back = k.lab(name + "_slow"), k.lab(name + "_ok")
            cmp_ = f"v_cmp_ne_u32 vcc, 0, v{vreg}" if target is None else f"v_cmp_le_u32 vcc, {target}, v{vreg}"
            k(f"{cmp_}\ns_cmp_eq_u64 vcc, -1\ns_cbranch_scc0 {slow}")
            k.label(back)
            self.tail.append(f"""{slow}:
    s_mov_b32 s{sD}, 0
{slow}_l:
    s_sleep {sleep}
    buffer_load_dword v{vreg}, v{vaddr}, {srd(sr)}, {soff} offen {WT}
    s_add_u32 s{sD}, s{sD}, 1
    s_waitcnt vmcnt(0)
    {cmp_}
    s_cmp_eq_u64 vcc, -1
    s_cbranch_scc1 {back}
    s_cmp_lt_u32 s{sD}, {SPIN}
    s_cbranch_scc1 {slow}_l
    s_branch {back}""")
        return f
    def dma4(self, sr, voffs, m0, so, tag, xor=False, nt=None):
        it = [("s", f"s_add_u32 m0, s{m0[0]}, {m0[1]}"), ("s", f"{'s_xor_b32' if xor else 's_add_u32'} s{sA}, s{so[0]}, {so[1]}")]
        for i in range(4):
            it.append(("m", f"buffer_load_dwordx4 v{voffs[i]}, {srd(sr)}, s{sA} offen offset:{i*1024} {NT if (sr in NTS if nt is None else nt) else ''} {E_('PJL', '')} lds", tag))
        return it
    def run(self, its):
        for it in its:
            if callable(it[1]): it[1](self.k)
            else: self.k(it[1], it[2] if len(it) > 2 else None)
    def bar(self, tags, lgkm0=True):
        def f(k):
            k.waitvm(tags, lgkm0)
            if not E_("NOBAR"): k("s_barrier")
        return f
    def page(self, key):
        if key not in E_("PG4", "ab"): return
        l = self.k.lab("pg")
        self.k(f"s_branch {l}"); self.k.out.append(".p2align 12"); self.k.label(l)
    def flag_store(self, so, tags):
        return [("x", lambda k: k.waitvm(tags)), ("m", f"buffer_store_dword v6, v5, {srd(WS)}, s{so} offen {WT}", "flag")]

    def startup(self):
        k = self.k
        if self.TS: k(f"{'s_memrealtime' if self.TS == 'r' else 's_memtime'} s[58:59]")
        k(f"""s_cmp_ge_u32 s2, 256
        s_cbranch_scc1 L_end
        s_load_dwordx16 s[64:79], s[0:1], 0
        s_load_dwordx16 s[80:95], s[0:1], 64
        s_getpc_b64 s[{sB}:{sC}]
        L_pf1:
        v_lshrrev_b32 v3, 6, v0
        v_and_b32 v2, 63, v0
        s_lshr_b32 s{sJ}, s2, 3
        s_mul_i32 s{sA}, s{sJ}, 24
        v_min_u32 v5, 5, v2
        v_mad_u32_u24 v5, v3, 6, v5
        v_add_u32 v5, s{sA}, v5
        v_lshlrev_b32 v5, 7, v5
        v_min_u32 v5, L_code_end-L_pf1, v5""")
        k(f"global_load_dword a255, v5, s[{sB}:{sC}]", "pf")
        k(f"""v_readfirstlane_b32 s{sW}, v3
        v_lshlrev_b32 v1, 4, v2
        s_and_b32 s{sX}, s2, 7
        s_and_b32 s{sJ}, s{sJ}, 3
        s_lshr_b32 s{sP}, s2, 5
        s_lshl_b32 s{sH}, s{sX}, 2
        s_add_u32 s{sH}, s{sH}, s{sJ}
        s_mov_b32 s{sT1}, s{sP}
        s_sub_u32 s{sT2}, 15, s{sP}
        v_lshrrev_b32 v3, 3, v2
        v_lshrrev_b32 v4, 4, v2
        v_and_b32 v5, 7, v2
        v_xor_b32 v5, v5, v4
        v_lshlrev_b32 v5, 4, v5
        v_lshl_add_u32 v16, v3, 10, v5
        v_xor_b32 v17, 64, v16
        v_add_u32 v17, {7168}, v17
        v_add_u32 v18, {2*7168}, v16
        v_add_u32 v19, {2*7168}, v17
        ; W (k-major): v20..23
        v_bfe_u32 v5, v2, 1, 3
        v_xor_b32 v5, v5, v4
        v_lshlrev_b32 v5, 5, v5
        v_and_b32 v6, 1, v2
        v_lshl_add_u32 v5, v6, 4, v5
        v_lshl_add_u32 v20, v4, 13, v5
        v_add_u32 v21, {31744}, v20
        v_xor_b32 v22, 128, v20
        v_add_u32 v22, {2*31744}, v22
        v_add_u32 v23, {31744}, v22
        s_lshl_b32 s{sW8}, s{sW}, 13
        s_lshl_b32 s{sW4}, s{sW}, 12
        s_lshl_b32 s{sXB}, s{sP}, 18
        s_lshl_b32 s{sA}, s{sW}, 16
        s_add_u32 s{sXB}, s{sXB}, s{sA}
        s_lshl_b32 s{sWB}, s{sW}, 17
        s_lshl_b32 s{sD}, s{sJ}, {int(E_("RJ", "0"))}
        s_xor_b32 s{sD}, s{sD}, s{sP}
        s_lshl_b32 s{sD}, s{sD}, {int(E_("RS", "3"))}
        s_and_b32 s{sD}, s{sD}, 7
        s_lshl_b32 s{sA}, s{sD}, 7
        s_add_u32 s{sXB}, s{sXB}, s{sA}
        s_lshl_b32 s{sA}, s{sD}, 19
        s_add_u32 s{sWB}, s{sWB}, s{sA}
        v_and_b32 v84, 7, v2
        v_lshrrev_b32 v65, 3, v0
        v_mul_u32_u24 v64, 24576, v65
        v_lshl_add_u32 v64, v84, 4, v64
        v_lshlrev_b32 v65, 3, v65
        v_lshrrev_b32 v85, 3, v2
        v_lshlrev_b32 v86, 10, v84
        v_lshl_add_u32 v86, v85, 4, v86
        s_lshl_b32 s{sB}, s{sH}, 8
        s_waitcnt lgkmcnt(0)""")
        def mk(s, p, n, off=None):
            if off is None: k(f"s_mov_b32 s{s}, s{PTR[p]}\ns_mov_b32 s{s+1}, s{PTR[p]+1}\ns_mov_b32 s{s+2}, {n}\ns_mov_b32 s{s+3}, 0x00020000")
            else: k(f"s_add_u32 s{s}, s{PTR[p]}, s{off}\ns_addc_u32 s{s+1}, s{PTR[p]+1}, 0\ns_sub_u32 s{s+2}, {n}, s{off}\ns_mov_b32 s{s+3}, 0x00020000")
        if E_("TS0"): k("v_writelane_b32 v255, s58, 0")
        self.ts0()
        mk(WUK, "wuk", 0x400000, sB); mk(CKV, "ckv", 2048 * 1024)
        self.run(self.wdma(0)); self.ts0(); self.run(self.xdma(0)); self.ts0()
        T0 = E_("T0", "")
        if "x" in T0:
            k(f"""v_lshlrev_b32 v96, 7, v2
            v_min_u32 v96, {15*128}, v96
            s_lshl_b32 s{sC}, s2, 13
            s_lshl_b32 s{sD}, s{sW}, 11
            s_add_u32 s{sC}, s{sC}, s{sD}""")
            k(f"buffer_load_dword a254, v96, {srd(CKV)}, s{sC} offen", "pf")
        if "k" in T0:
            k(f"""v_bfe_u32 v96, v2, 1, 4
            v_lshlrev_b32 v96, 13, v96
            v_lshl_add_u32 v96, v6, 7, v96
            s_lshl_b32 s{sC}, s{sP}, 19
            s_lshl_b32 s{sD}, s{sW}, 17
            s_add_u32 s{sC}, s{sC}, s{sD}""")
            k(f"buffer_load_dword a253, v96, {srd(WUK)}, s{sC} offen", "pf")
        mk(WM, "wmod", 512 * 6144); mk(CS, "c", 1024); mk(XS, "x", 2048 * 1024)
        mk(WS, "ws", WS_SIZE); mk(WUV, "wuv", 0x400000, sB); mk(WQ, "wq", 0x400000, sB); mk(DBG, "dbg", 256)
        k(f"""s_lshl_b32 s{sB}, s{sX}, 19
        s_lshl_b32 s{sD}, s{sJ}, 8
        s_add_u32 s{sB}, s{sB}, s{sD}""")
        mk(WO, "wo", 0x400000, sB)
        mk(WD_, "wd", 1792 * 1024); mk(OUT, "out", 2048 * 1024)
        k(f"s_mov_b64 s[{sPG}:{sPG+1}], s[{PTR['wg']}:{PTR['wg']+1}]\ns_mov_b64 s[{sPG+2}:{sPG+3}], s[{PTR['wu']}:{PTR['wu']+1}]")
        if self.TS: k(f"s_mov_b32 s{TSR[0]}, s58"); self.nts = 1
        mk(WR_, "wr", 1024)
        if E_("STOUCH", "1") == "1":
            k(f"s_load_dword s90, s[{DBG}:{DBG+1}], 64\ns_load_dword s91, s[{WS}:{WS+1}], 0x3f00")
        k(f"""s_lshl_b32 s{sVB}, s{sW}, 19
        s_and_b32 s{sB}, s{sWB}, {7 << 19}
        s_xor_b32 s{sVB}, s{sVB}, s{sB}
        s_lshr_b32 s{sB}, s{sP}, {int(E_("RV", "1"))}
        s_and_b32 s{sB}, s{sB}, {int(E_("RVM", "0"))}
        s_lshl_b32 s{sVX}, s{sB}, 12                ; column half order of the V projection
        s_lshl_b32 s{sB}, s{sB}, 7
        s_add_u32 s{sVB}, s{sVB}, s{sB}
        s_lshl_b32 s{sB}, s{sJ}, 1
        s_xor_b32 s{sB}, s{sB}, s{sP}
        s_and_b32 s{sB}, s{sB}, {int(E_("RQM", "0"))}
        s_lshl_b32 s{sQR}, s{sB}, 11                ; chunk order of the Q projection
        s_lshl_b32 s{sB}, s{sB}, 19
        s_lshl_b32 s{sQB}, s{sW}, 17
        s_add_u32 s{sQB}, s{sQB}, s{sB}
        s_mul_i32 s{sKV}, s{sH}, {KVH}
        s_add_u32 s{sKV}, s{sKV}, {WS_KV}
        s_mul_i32 s{sB}, s{sP}, {2*KVS}
        s_add_u32 s{sKVST}, s{sKV}, s{sB}
        s_lshr_b32 s{sB}, s{sW}, 1
        s_mul_i32 s{sB}, s{sB}, {KVS}
        s_add_u32 s{sKVST}, s{sKVST}, s{sB}
        s_and_b32 s{sB}, s{sW}, 1
        s_lshl_b32 s{sB}, s{sB}, 14
        s_add_u32 s{sKVST}, s{sKVST}, s{sB}
        s_add_u32 s{sKV}, s{sKV}, s{sW8}
        s_cmp_eq_u32 s{sT1}, 0
        s_cselect_b32 s{sKp}, {14 if DESC else 0}, 1
        s_mul_i32 s{sKp}, s{sKp}, {KVS}
        s_add_u32 s{sKp}, s{sKp}, s{sKV}
        s_sub_u32 s{sB}, s{sP}, 2
        s_lshl_b32 s{sEO}, s{sB}, 7
        s_lshl_b32 s{sB}, s{sB}, 3
        s_add_u32 s{sB}, s{sB}, s{sX}
        s_lshl_b32 s{sB}, s{sB}, 8
        s_mul_i32 s{sC}, s{sJ}, 12288
        s_add_u32 s{sB}, s{sB}, s{sC}
        s_add_u32 s{sB}, s{sB}, {WS_MODP}
        s_cmp_ge_u32 s{sP}, 2
        s_cselect_b32 s{sMODO}, s{sB}, {OOB}
        s_cselect_b32 s{sEO}, s{sEO}, {OOB}
        s_cmp_eq_u32 s{sW}, 0
        s_cselect_b32 s{sMODO}, s{sMODO}, {OOB}
        s_lshl_b32 s{sLNP}, s{sW}, 9
        s_add_u32 s{sLNP}, s{sLNP}, {WS_MODP}
        s_lshr_b32 s{sHST}, s2, 1
        s_lshl_b32 s{sHST}, s{sHST}, 14
        s_and_b32 s{sB}, s2, 1
        s_lshl_b32 s{sB}, s{sB}, 7
        s_add_u32 s{sHST}, s{sHST}, s{sB}
        s_add_u32 s{sHST}, s{sHST}, s{sW4}
        s_add_u32 s{sHST}, s{sHST}, {WS_H}
        s_lshl_b32 s{sHFO}, s2, 2
        s_add_u32 s{sHFO}, s{sHFO}, s{sW}
        s_lshl_b32 s{sHFO}, s{sHFO}, 6
        s_add_u32 s{sHFO}, s{sHFO}, {WS_HF}
        s_lshl_b32 s{sKFP}, s{sH}, 11
        s_add_u32 s{sKFP}, s{sKFP}, {WS_KVF}
        s_lshl_b32 s{sKFO}, s{sP}, 2
        s_add_u32 s{sKFO}, s{sKFO}, s{sW}
        s_lshl_b32 s{sKFO}, s{sKFO}, 6
        s_add_u32 s{sKFO}, s{sKFO}, s{sKFP}
        s_lshr_b32 s{sB}, s{sW}, 1
        s_sub_u32 s{sC}, 3, s{sB}
        s_and_b32 s{sA}, s{sW}, 1
        s_cselect_b32 s{sB}, s{sC}, s{sB}          ; row group projected by this wave
        s_lshl_b32 s{sH1}, s{sT1}, 2
        s_add_u32 s{sH1}, s{sH1}, s{sB}
        s_lshl_b32 s{sH2}, s{sT2}, 2
        s_add_u32 s{sH2}, s{sH2}, s{sB}
        s_sub_u32 s{sHFD}, s{sH2}, s{sH1}
        s_lshl_b32 s{sHFD}, s{sHFD}, 10
        s_lshl_b32 s{sHF1}, s{sH1}, 10
        s_add_u32 s{sHF1}, s{sHF1}, {WS_HF - 65536}
        s_lshl_b32 s{sH1}, s{sH1}, 15
        s_add_u32 s{sH1}, s{sH1}, {WS_H}
        s_add_u32 s{sH1}, s{sH1}, s{sQR}
        s_lshl_b32 s{sH2}, s{sH2}, 15
        s_add_u32 s{sH2}, s{sH2}, {WS_H}
        s_add_u32 s{sH2}, s{sH2}, s{sQR}
        s_add_u32 s{sVX}, s{sVX}, s{sKVST}
        {f"s_mov_b32 s{sVX}, 0x70000000" if E_("NOST") else ""}
        {f"s_mov_b32 s{sKVST}, 0x70000000" if E_("NOST") else ""}
        {f"s_mov_b32 s{sH1}, {WS_H}" if E_("NOH") else ""}
        {f"s_mov_b32 s{sH2}, {WS_H}" if E_("NOH") else ""}
        s_cmp_eq_u32 s{sW}, 0
        s_cselect_b32 s{sET}, 32, 0
        s_cselect_b32 s{sEP}, 0, {OOB}""")
        k(f"""v_and_b32 v48, 15, v2          ; i16
        v_lshrrev_b32 v49, 4, v2       ; q4
        v_lshrrev_b32 v50, 1, v48
        v_xor_b32 v50, v50, v49
        v_lshlrev_b32 v50, 4, v50
        v_lshl_add_u32 v28, v48, 7, v50
        v_add_u32 v28, s{sW8}, v28
        v_xor_b32 v29, 64, v28
        v_add_u32 v30, 65536, v28
        v_add_u32 v31, 65536, v29
        v_lshrrev_b32 v50, 2, v48     ; r
        v_and_b32 v51, 3, v48         ; c
        v_lshl_add_u32 v52, v49, 3, v50      ; row = 8q4 + r
        v_lshlrev_b32 v53, 8, v52
        v_lshl_add_u32 v53, v51, 3, v53
        v_add_u32 v53, {R3}, v53
        v_and_b32 v54, 1, v49
        v_lshl_add_u32 v54, v54, 2, v50      ; f""")
        for nt in range(8):
            k(f"v_xor_b32 v55, {nt}, v54\nv_lshl_add_u32 v{8+nt}, v55, 5, v53")
        k(f"""v_bfe_u32 v49, v2, 1, 2
        v_bfe_u32 v50, v2, 4, 1
        v_xor_b32 v49, v49, v50
        v_lshlrev_b32 v49, 5, v49
        v_and_b32 v50, 1, v2
        v_lshl_add_u32 v49, v50, 4, v49
        v_lshl_add_u32 v24, v85, 13, v49
        v_xor_b32 v25, 64, v24
        v_add_u32 v25, {64512}, v25
        v_add_u32 v26, {2*64512}, v24
        v_add_u32 v27, {2*64512}, v25
        v_cmp_eq_u32 vcc, 0, v2
        v_mov_b32 v6, {OOB}
        v_cndmask_b32 v5, v6, v2, vcc
        v_cmp_eq_u32 vcc, 0, v0
        v_cndmask_b32 v7, v6, v0, vcc
        v_and_b32 v48, 8, v2
        v_cmp_eq_u32 vcc, 0, v48
        v_lshlrev_b32 v48, 5, v84
        v_lshrrev_b32 v49, 1, v2
        v_and_b32 v49, 24, v49
        v_add_u32 v48, v48, v49
        s_lshl_b32 s{sB}, s{sW}, 8
        s_add_u32 s{sB}, s{sB}, {MISC}
        v_add_u32 v48, s{sB}, v48
        v_mov_b32 v49, {MISC + 1024}
        v_cndmask_b32 v98, v49, v48, vcc
        v_lshlrev_b32 v99, 5, v84
        v_add_u32 v99, {MISC + 2048}, v99
        s_lshl_b32 s{sB}, s{sW}, 3
        v_add_u32 v100, s{sB}, v99
        v_lshlrev_b32 v106, 5, v85
        v_lshlrev_b32 v107, 8, v85
        v_lshl_add_u32 v107, v84, 4, v107
        s_sub_u32 s{sB}, s2, 64
        s_lshl_b32 s{sZO}, s{sB}, 12
        s_add_u32 s{sZO}, s{sZO}, {WS_HF}
        s_cmp_lt_u32 s{sB}, 64
        s_cselect_b32 s{sZO}, s{sZO}, {OOB}
        s_mul_i32 s{sD}, s{sJ}, {128*6144}
        s_sub_u32 s{sSD}, s{sP}, 2
        s_lshl_b32 s{sSD}, s{sSD}, 3
        s_add_u32 s{sSD}, s{sSD}, s{sX}
        s_lshl_b32 s{sSD}, s{sSD}, 7
        s_add_u32 s{sSD}, s{sSD}, s{sD}
        s_cmp_ge_u32 s{sP}, 2
        s_cselect_b32 s{sSD}, s{sSD}, {OOB - 0x10000}
        {f"s_cmp_lt_u32 s{sP}, 4" if E_("NOLATE") else ""}
        {f"s_cselect_b32 s{sSD}, s{sSD}, {OOB - 0x10000}" if E_("NOLATE") else ""}
        s_lshl_b32 s{sB}, s{sJ}, 8
        v_add_u32 v65, s{sB}, v65
        v_mov_b32 v6, 1
        v_and_b32 v4, 1, v2
        v_lshlrev_b32 v4, 7, v4""")
        self.ts0()
        if E_("SIDE", "0") == "0": self.run(self.side())
        self.run(self.wdma(1) + self.xdma(1))
        self.ts0()
        if E_("TS0"):
            k.waitvm([("x", 0), ("w", 0)], True); self.ts0()
            k.waitvm(["pf"], True); self.ts0()
            k("s_waitcnt vmcnt(0)"); self.ts0()
            k(f"""s_lshl_b32 s{sB}, s2, 2
            s_add_u32 s{sB}, s{sB}, s{sW}
            s_lshl_b32 s{sB}, s{sB}, 6
            s_add_u32 s{sB}, s{sB}, {WS_TS}
            v_lshlrev_b32 v5, 2, v2
            s_mov_b64 exec, 0xffff
            buffer_store_dword v255, v5, {srd(WS)}, s{sB} offen
            s_endpgm""")

    def side(self):
        return items(f"""buffer_load_dwordx2 v[66:67], v65, {srd(CS)}, 0 offen
        buffer_load_dwordx4 v[68:71], v64, {srd(WM)}, s{sSD} offen {NT}
        s_add_u32 s{sSD}, s{sSD}, 6144
        buffer_load_dwordx4 v[72:75], v64, {srd(WM)}, s{sSD} offen {NT}
        s_add_u32 s{sSD}, s{sSD}, 6144
        buffer_load_dwordx4 v[76:79], v64, {srd(WM)}, s{sSD} offen {NT}
        s_add_u32 s{sSD}, s{sSD}, 6144
        buffer_load_dwordx4 v[80:83], v64, {srd(WM)}, s{sSD} offen {NT}
        s_lshl_b32 s{sSD}, s2, 5
        s_add_u32 s{sSD}, s{sSD}, s{sW}
        s_lshl_b32 s{sSD}, s{sSD}, 8
        buffer_load_dwordx4 v[88:91], v86, {srd(XS)}, s{sSD} offen {NT}
        buffer_load_dwordx4 v[92:95], v86, {srd(XS)}, s{sSD} offen offset:128 {NT}""")
    XR = [R0, R1, R2]
    WSL = [R3, R3 + 16384, R4]
    WQB = [R4, R3, R3 + 16384, MISC, R0, R0 + 16384, R1, R1 + 16384]
    VQB = [R2, R0, R1, R2]
    def xdma(self, s):
        it = []
        for g in range(2):
            it += self.dma4(CKV, [16, 17, 18, 19], (sW8, self.XR[s % 3] + g * 4096), (sXB, s * 128 + g * 32768), ("x", s), True)
        return it
    def wdma(self, s): return self.dma4(WUK, [20, 21, 22, 23], (sW4, self.WSL[s % 3]), (sWB, s * 64 * 8192), ("w", s), True)
    def qdma(self, c): return self.dma4(WQ, [20, 21, 22, 23], (sW4, self.WQB[c]), (sQB, c * 64 * 8192), ("q", c), True)
    def vdma(self, c):
        it = []
        for g in range(2):
            it += self.dma4(WUV, [24, 25, 26, 27], (sW8, self.VQB[c] + g * 4096), (sVB, (c >> 1) * 128 + (c & 1) * 256 * 8192 + g * 4 * 65536), ("v", c), True, c < int(E_("VNT", "0")))
        return it

    def modA(self):
        C, T, AC = 102, 108, 120
        t = f"""v_lshlrev_b32 v{C}, 16, v66
        v_and_b32 v{C+1}, 0xffff0000, v66
        v_lshlrev_b32 v{C+2}, 16, v67
        v_and_b32 v{C+3}, 0xffff0000, v67
        """
        for i in range(4): t += f"v_mul_f32 v{T+i}, {H(-LOG2E)}, v{C+i}\n"
        for i in range(4): t += f"v_exp_f32 v{T+i}, v{T+i}\n"
        for i in range(4): t += f"v_add_f32 v{T+i}, 1.0, v{T+i}\n"
        for i in range(4): t += f"v_rcp_f32 v{T+i}, v{T+i}\n"
        for i in range(4): t += f"v_mul_f32 v{C+i}, v{C+i}, v{T+i}\n"
        t += f"""v_cvt_pk_bf16_f32 v{T}, v{C}, v{C+1}
        v_cvt_pk_bf16_f32 v{T+1}, v{C+2}, v{C+3}
        v_lshlrev_b32 v{C}, 16, v{T}
        v_and_b32 v{C+1}, 0xffff0000, v{T}
        v_lshlrev_b32 v{C+2}, 16, v{T+1}
        v_and_b32 v{C+3}, 0xffff0000, v{T+1}
        """
        for r in range(4):
            for i in range(4):
                a, b = T + 2 * (i & 1), T + 2 * (i & 1) + 1
                op = "v_mul_f32" if r == 0 else "v_fmac_f32"
                t += f"""v_lshlrev_b32 v{a}, 16, v{68+4*r+i}
                v_and_b32 v{b}, 0xffff0000, v{68+4*r+i}
                {op} v{AC+2*i}, v{a}, v{C+r}
                {op} v{AC+2*i+1}, v{b}, v{C+r}
                """
        for i in range(4): t += f"v_permlane32_swap_b32 v{AC+i}, v{AC+4+i}\n"
        for i in range(4): t += f"v_add_f32 v{AC+i}, v{AC+i}, v{AC+4+i}\n"
        for i in range(2): t += f"v_permlane16_swap_b32 v{AC+i}, v{AC+2+i}\n"
        for i in range(2): t += f"v_add_f32 v{AC+i}, v{AC+i}, v{AC+2+i}\n"
        for i in range(2): t += f"v_add_f32_dpp v{AC+i}, v{AC+i}, v{AC+i} row_ror:8 row_mask:0xf bank_mask:0xf\n"
        t += f"ds_write_b64 v98, v[{AC}:{AC+1}]\n"
        return items(t)
    def red16(self, b):
        t = ""
        for i in range(8): t += f"v_permlane32_swap_b32 v{b+i}, v{b+8+i}\n"
        for i in range(8): t += f"v_add_f32 v{b+i}, v{b+i}, v{b+8+i}\n"
        for i in range(4): t += f"v_permlane16_swap_b32 v{b+i}, v{b+4+i}\n"
        for i in range(4): t += f"v_add_f32 v{b+i}, v{b+i}, v{b+4+i}\n"
        for pat in ("quad_perm:[1,0,3,2]", "quad_perm:[2,3,0,1]", "row_half_mirror", "row_mirror"):
            for i in range(4): t += f"v_add_f32_dpp v{b+i}, v{b+i}, v{b+i} {pat} row_mask:0xf bank_mask:0xf\n"
        return t
    def modB(self):
        it = items(f"""v_lshrrev_b32 v87, 2, v1
        v_add_u32 v101, {MISC}, v87
        ds_read_b32 v102, v101
        ds_read_b32 v103, v101 offset:256
        ds_read_b32 v104, v101 offset:512
        ds_read_b32 v105, v101 offset:768""")
        it2 = items(f"""v_add_f32 v102, v102, v103
        v_add_f32 v104, v104, v105
        v_add_f32 v102, v102, v104""")
        it2.append(("m", f"buffer_store_dword v102, v87, {srd(WS)}, s{sMODO} offen {WT}", "mod"))
        return it, it2
    def red8(self, v, t):
        return f"""v_add_f32_dpp v{v}, v{v}, v{v} row_ror:8 row_mask:0xf bank_mask:0xf
        v_mov_b32 v{t}, v{v}
        v_permlane16_swap_b32 v{v}, v{t}
        v_add_f32 v{v}, v{v}, v{t}
        v_mov_b32 v{t}, v{v}
        v_permlane32_swap_b32 v{v}, v{t}
        v_add_f32 v{v}, v{v}, v{t}
        """
    XH = 64
    def lnA(self):
        X = self.XH
        t = ""
        for i in range(8): t += f"v_lshlrev_b32 v{X+2*i}, 16, v{88+i}\nv_and_b32 v{X+2*i+1}, 0xffff0000, v{88+i}\n"
        t += f"v_add_f32 v108, v{X}, v{X+1}\nv_add_f32 v109, v{X+2}, v{X+3}\n"
        for i in range(4, 16, 2): t += f"v_add_f32 v108, v108, v{X+i}\nv_add_f32 v109, v109, v{X+i+1}\n"
        t += "v_add_f32 v108, v108, v109\n" + self.red8(108, 110)
        t += f"v_mul_f32 v108, {H(1/128)}, v108\n"
        t += f"v_sub_f32 v110, v{X}, v108\nv_mul_f32 v109, v110, v110\n"
        for i in range(1, 16): t += f"v_sub_f32 v{110+(i&1)}, v{X+i}, v108\nv_fmac_f32 v109, v{110+(i&1)}, v{110+(i&1)}\n"
        t += self.red8(109, 110)
        t += "ds_write_b64 v100, v[108:109]\n"
        return items(t)
    def lnB(self):
        X = self.XH
        it = items(f"""ds_read_b128 v[88:91], v99
        ds_read_b128 v[92:95], v99 offset:16""")
        t = f"""v_add_f32 v108, v88, v90
        v_add_f32 v109, v92, v94
        v_add_f32 v108, v108, v109
        v_mul_f32 v108, {H(0.25)}, v108
        v_add_f32 v109, v89, v91
        v_add_f32 v110, v93, v95
        v_add_f32 v109, v109, v110
        v_sub_f32 v88, v88, v108
        v_sub_f32 v90, v90, v108
        v_sub_f32 v92, v92, v108
        v_sub_f32 v94, v94, v108
        v_mul_f32 v110, v88, v88
        v_fmac_f32 v110, v90, v90
        v_fmac_f32 v110, v92, v92
        v_fmac_f32 v110, v94, v94
        v_fmac_f32 v109, {H(128.0)}, v110
        v_mov_b32 v110, {H(1e-5)}
        v_fmac_f32 v110, {H(1/512)}, v109
        v_rsq_f32 v110, v110
        """
        for i in range(16): t += f"v_sub_f32 v{X+i}, v{X+i}, v108\n"
        for i in range(16): t += f"v_mul_f32 v{X+i}, v{X+i}, v110\n"
        return it, items(t)
    def lnC_loads(self):
        it = items(f"""v_and_b32 v96, 31, v2
        v_lshlrev_b32 v96, 4, v96
        v_lshrrev_b32 v97, 5, v2
        v_lshl_add_u32 v96, v97, 11, v96""")
        ld = []
        for q in range(4):
            ld += [("m", f"buffer_load_dwordx4 v[{80+4*q}:{83+4*q}], v96, {srd(WS)}, s{sLNP} offen")]
            if q < 3: ld += [("s", f"s_add_u32 s{sLNP}, s{sLNP}, 12288")]
        return it, ld
    def lnC_fin(self):
        t = ""
        for e in range(4): t += f"v_add_f32 v{80+e}, v{80+e}, v{84+e}\nv_add_f32 v{88+e}, v{88+e}, v{92+e}\n"
        for e in range(4): t += f"v_add_f32 v{80+e}, v{80+e}, v{88+e}\n"
        rnd = lambda: "".join(f"v_cvt_pk_bf16_f32 v{84+e}, v{80+2*e}, v{81+2*e}\n" for e in range(2)) + "".join(f"v_lshlrev_b32 v{80+2*e}, 16, v{84+e}\nv_and_b32 v{81+2*e}, 0xffff0000, v{84+e}\n" for e in range(2))
        t += "v_lshrrev_b32 v88, 5, v2\nv_cvt_f32_u32 v88, v88\n" + rnd()
        for e in range(4): t += f"v_add_f32 v{80+e}, v{80+e}, v88\n"
        t += rnd()
        for e in range(4): t += f"v_mul_f32 v{80+e}, {H(QSCALE)}, v{80+e}\n"
        t += f"""s_lshl_b32 s{sLNP}, s{sW}, 10
        s_add_u32 s{sLNP}, s{sLNP}, {MISC + 4096}
        v_add_u32 v88, s{sLNP}, v1
        v_add_u32 v18, s{sLNP}, v18
        ds_write_b128 v88, v[80:83]
        """
        return items(t)
    def lnC_rd(self, i):
        return [("l", f"ds_read_b128 v[{80+seg*8+hf*4}:{83+seg*8+hf*4}], v18 offset:{seg*512 + i*256 + hf*16}") for seg in range(2) for hf in range(2)]
    def lnC(self, i):
        X = self.XH + 8 * i
        t = ""
        for e in range(8): t += f"v_fma_f32 v{X+e}, v{X+e}, v{88+e}, v{80+e}\n"
        t2 = ""
        for e in range(4): t2 += f"v_cvt_pk_bf16_f32 v{X+e}, v{X+2*e}, v{X+2*e+1}\n"
        return items(t), items(t2) + [("m", f"buffer_store_dwordx4 v[{X}:{X+3}], v19, {srd(WS)}, s{sHST} offen offset:{2048*i} {WT}", "hst")]

    WF, VACC, ACC = 32, 64, 128
    def proj(self):
        k = self.k; WF, VACC, ACC = self.WF, self.VACC, self.ACC
        M = []
        def kmajor(nk=16):
            for n in range(nk):
                for dt in range(8):
                    for tt in range(4):
                        d = V(ACC + (tt * 8 + dt) * 4)
                        M.append(MF(d, V(WF + 4 * dt), A((n * 4 + tt) * 4), "0" if n == 0 else d))
        KL = E_("KL", "1") == "1"
        kmajor(14 if KL else 16)
        KORD = [(u, tt) for u in range(4) for tt in range(4)]
        if KL:
            for (u, tt) in KORD:
                for dt in (2 * u, 2 * u + 1):
                    for n in (14, 15):
                        d = V(ACC + (tt * 8 + dt) * 4)
                        M.append(MF(d, V((WF if n == 14 else 96) + 4 * dt), A((n * 4 + tt) * 4), d))
        V0 = len(M)
        VST = [(pc, sh, q) for pc in range(4) for sh in range(2) for q in range(4)]
        C4 = E_("C4", "1") == "1"
        for i, (pc, sh, q) in enumerate(VST):
            if C4:
                for tt in range(4):
                    for h in range(4):
                        n = (pc & 1) * 8 + 4 * (q >> 1) + h
                        d = V(VACC + (1 - sh) * 32 + ((q & 1) * 4 + tt) * 4)
                        M.append(MF(d, A((n * 4 + tt) * 4), V(WF + ((i & 1) * 4 + h) * 4), "0" if n == 0 else d))
                continue
            for nt in range(2):
                for tt in range(4):
                    for h in range(2):
                        n = (pc & 1) * 8 + 2 * q + h
                        d = V(VACC + (1 - sh) * 32 + (nt * 4 + tt) * 4)
                        M.append(MF(d, A((n * 4 + tt) * 4), V(WF + ((i & 1) * 4 + nt * 2 + h) * 4), "0" if n == 0 else d))
        Q0 = len(M)
        kmajor(13)
        QL = len(M); WX = {14: 24, 15: 64}
        QORD = [(u, tt) for u in range(4) for tt in (2, 3, 0, 1)]
        for (u, tt) in QORD:
            for dt in (2 * u, 2 * u + 1):
                for n in (13, 14, 15):
                    d = V(ACC + (tt * 8 + dt) * 4)
                    M.append(MF(d, V(WF + 4 * dt) if n == 13 else A(WX[n] + 4 * dt), A((n * 4 + tt) * 4), d))
        ph = Phase(k, M); N = len(M); ph.mspace = int(E_('MSP', '1')); ph.batch = int(E_('BAT', '9'))
        if E_('LAT', '0') == '1': ph.lat = (4, 2)
        ph.livein = {f'v{i}' for i in range(64, 96)}
        def wread(base, n, dt, ag=None):
            o = base + (n & 1) * 8192
            if ag is not None:
                return [("l", f"ds_read_b64_tr_b16 a[{ag+4*dt}:{ag+4*dt+1}], v{8+dt} offset:{o}"),
                        ("l", f"ds_read_b64_tr_b16 a[{ag+4*dt+2}:{ag+4*dt+3}], v{8+dt} offset:{o+1024}")]
            return [("l", f"ds_read_b64_tr_b16 v[{WF+4*dt}:{WF+4*dt+1}], v{8+dt} offset:{o}"),
                    ("l", f"ds_read_b64_tr_b16 v[{WF+4*dt+2}:{WF+4*dt+3}], v{8+dt} offset:{o+1024}")]
        def xread(n, tt):
            s = n >> 1; sl = s % 3
            va = (28 if sl < 2 else 30) + (n & 1)
            return ("l", f"ds_read_b128 {A((n*4+tt)*4)}, v{va} offset:{(sl if sl < 2 else 0)*32768 + tt*2048}")
        def vread(i, nt, h):
            pc, sh, q = VST[i]
            reg = self.VQB[pc]; va = 28 + 2 * sh + nt
            o = (reg if reg < R2 else 0) + (2 * q + h) * 4096
            if C4: va = 28 + 2 * sh + (q & 1); o = (reg if reg < R2 else 0) + (4 * (q >> 1) + nt * 2 + h) * 4096
            f = WF + ((i & 1) * 4 + nt * 2 + h) * 4
            return [("l", f"ds_read_b64_tr_b16 v[{f}:{f+1}], v{va} offset:{o}"), ("l", f"ds_read_b64_tr_b16 v[{f+2}:{f+3}], v{va} offset:{o+512}")]
        BOFF = 40
        KFREE = (lambda slot: V0 - 64 + 16 * (slot >> 1) + 16) if KL else (lambda slot: V0 - 32 + 4 * slot + 4)
        MPRE = E_("MPRE", "0")
        if MPRE != "0": self.run(self.modA())
        if MPRE == "2": self.run(self.lnA())
        k.waitvm([("x", 0), ("w", 0)], True); k("s_barrier")
        self.ts()
        for it in wread(self.WSL[0] - R3, 0, 0): k(it[1])
        for tt in range(4): k(xread(0, tt)[1])
        for dt in range(1, 8):
            for it in wread(self.WSL[0] - R3, 0, dt): k(it[1])
        for s in range(7): ph.put("x", self.bar([("x", s + 1), ("w", s + 1)]), 64 * s + BOFF)
        ph.put("x", self.bar([("v", 0)]), 64 * 7 + BOFF)
        BV = [V0 + 128 * c + 110 for c in range(4)]
        for c in range(3): ph.put("x", self.bar([("v", c + 1)]), BV[c])
        ph.put("x", self.bar([("q", i) for i in range(4)]), BV[3])
        BQ = Q0 + 64 * 3 + BOFF
        ph.put("x", self.bar([("q", i) for i in range(4, 8)]), BQ)
        BE = QL + 7
        ph.put("x", self.bar([]), BE)
        for (G0, bases) in ((0, [self.WSL[s % 3] - R3 for s in range(8)]), (Q0, [b - R3 if b >= R3 else b for b in self.WQB])):
            for n in range(0 if G0 else 1, 14 if G0 or KL else 16):
                for dt in range(8):
                    lo = G0 + 32 * (n - 1) + 4 * dt + 4
                    if n == 0: lo = max(BV[3] + 1, (Q0 - 32 + 16 * (dt >> 2) + 13 + (dt & 3)) if C4 else [Q0 - 24, Q0 - 16, Q0 - 8, Q0][dt >> 1])
                    elif n % 2 == 0 and (G0 == 0 or n == 8): lo = max(lo, G0 + 32 * (n - 2) + BOFF + 1)
                    pre = []
                    if G0 and n == 8: pre = [("v", f"v_subrev_u32 v{8+dt}, {R3}, v{8+dt}")]; lo -= 1
                    g = ph.stream(pre + wread(bases[n >> 1], n, dt), lo, G0 + 32 * n + 4 * dt - 6)
                    if n % 2 == 1 and (G0 == 0 or n in (7, 13)): assert g < (G0 + 32 * (n - 1) + BOFF if n < 13 or not G0 else BE), (n, dt, g)
        if KL:
            b7 = self.WSL[7 % 3] - R3; g = 64 * 6 + BOFF
            for u in range(4):
                its = []
                for dt in (2 * u, 2 * u + 1):
                    w14 = wread(b7, 14, dt)
                    its += [w14[0] + (None, 32 * 13 + 4 * dt + 4), w14[1]]
                    its += [(it[0], it[1].replace(f"v[{WF+4*dt}:{WF+4*dt+1}]", f"v[{96+4*dt}:{97+4*dt}]").replace(f"v[{WF+4*dt+2}:{WF+4*dt+3}]", f"v[{98+4*dt}:{99+4*dt}]")) for it in wread(b7, 15, dt)]
                if u == 0: its = its[:4] + [xread(14, 0), xread(15, 0)] + its[4:] + [xread(n, tt) for tt in range(1, 4) for n in (14, 15)]
                g = ph.stream(its, max(g + 1, V0 - 64 + 16 * u - 24))
                if u == 0: gx = g
                assert g < (V0 - 64 + 16 * u - 5 if u else V0 - 64 - 4), (u, g)
        gq = Q0 + 32 * 9 + 4
        for n in (14, 15):
            for dt in range(8):
                for it in wread(self.WQB[7], n, dt, WX[n]): gq = ph.put(it[0], it[1], gq + 3)
        assert gq < BE - 4, gq
        for i, (u, tt) in enumerate(QORD[:-1]):
            b = ACC + (tt * 8 + 2 * u) * 4
            g = ph.stream([("v", f"v_cvt_pk_bf16_f32 v{b+e}, v{b+2*e}, v{b+2*e+1}") for e in range(4)], QL + 6 * i + 9)
            ph.put("l", f"ds_write_b128 v{vMW}, {V(b)} offset:{(tt>>1)*R1 + ((tt&1)*4+u)*1024}", g + 1)
        self.qlast = QORD[-1]
        for n in range(1, 14 if KL else 16):
            lo = 32 * (n - 1) + 2
            if n % 2 == 0: lo = 32 * (n - 2) + BOFF + 1
            gx2 = ph.stream([xread(n, tt) for tt in range(4)], lo, 32 * n - 6)
        if not KL: gx = gx2
        vaddr = items(f"""v_and_b32 v16, 15, v2
        v_lshrrev_b32 v17, 4, v2
        v_lshrrev_b32 v29, 2, v16
        v_and_b32 v16, 3, v16
        v_lshl_add_u32 v28, v17, 3, v29
        v_lshlrev_b32 v28, 7, v28
        v_lshl_add_u32 v28, v16, 3, v28
        v_and_b32 v17, 1, v17
        v_lshrrev_b32 v29, 1, v29
        v_lshl_add_u32 v29, v17, 1, v29
        v_lshl_add_u32 v28, v29, 5, v28
        v_add_u32 v28, 65536, v28
        v_xor_b32 v29, 32, v28
        v_xor_b32 v30, 64, v28
        v_xor_b32 v31, 96, v28
        v_and_b32 v16, 15, v2
        v_lshlrev_b32 v16, 6, v16
        v_add_u32 v16, 65536, v16
        v_mad_i32_i24 v16, v17, s{sHFD}, v16
        v_and_b32 v17, 31, v2
        v_lshlrev_b32 v17, 6, v17""")
        g = ph.stream(vaddr, gx + 1)
        assert g <= 64 * 7 + BOFF + 6, g
        for i, (pc, sh, q) in enumerate(VST):
            g0 = V0 + 16 * i
            for nt in range(2):
                for h in range(2):
                    slot = (i & 1) * 4 + nt * 2 + h
                    if i < 2: lo = max(64 * 7 + BOFF + 1, KFREE(slot))
                    elif C4: lo = g0 - 32 + 12 + nt * 2 + h + 1
                    else: lo = g0 - 32 + 8 * nt + 8
                    if pc > 0: lo = max(lo, BV[pc - 1] + 1)
                    pre = []; first = (q < 2 and nt == 0 and h == 0) if C4 else (q == 0 and h == 0)
                    ra = 28 + 2 * sh + ((q & 1) if C4 else nt)
                    if first and pc in (1, 3): pre = [("v", f"v_xor_b32 v{ra}, 65536, v{ra}")]; lo -= 1
                    after = (not first and q < 2) if C4 else (h and q == 0)
                    g = ph.stream(pre + vread(i, nt, h), max(lo, gprev + 1) if after else lo, g0 - 4 + (0 if C4 else 8 * nt))
                    gprev = g
                    assert g < BV[pc], (i, g)
        first = self.wdma(2) + self.xdma(2)
        if E_("SIDE", "0") == "1": first = self.side() + first
        if E_("SIDE", "0") == "2": first = first + self.side()
        ph.stream(first, 0, BOFF - 1, sid=900)
        ph.stream(items("".join(f"s_mov_b32 s{d}, s{p}\ns_mov_b32 s{d+1}, s{p+1}\ns_mov_b32 s{d+2}, {512*3584}\n" for (d, p) in ((WG_, sPG), (WU_, sPG + 2)))), 120)
        for s in range(8):
            its = (self.wdma(s + 3) + self.xdma(s + 3)) if s < 5 else self.vdma(s - 5)
            if s == 7: its += self.qdma(0) + self.qdma(1)
            g = ph.stream(its, 64 * s + BOFF + 1, None, step=2 if s < 5 or (s == 6 and KL) else 4, sid=900)
            assert g < (64 * (s + 1) + BOFF if s < 7 else BV[0]), (s, g)
        g = ph.stream(self.vdma(3) + self.qdma(2) + self.qdma(3), BV[0] + 1, None, step=3 if C4 else 5, sid=900); assert g < BV[1]
        ph.stream(self.qdma(4) + self.qdma(5), BV[1] + 1, None, step=6, sid=900)
        ph.stream(self.qdma(6) + self.qdma(7), BV[2] + 1, None, step=6, sid=900)
        m1, m2 = self.modB(); l1, l2 = self.lnB()
        zero = items(f"""v_mov_b32 v112, 0
        v_mov_b32 v113, 0
        v_mov_b32 v114, 0
        v_mov_b32 v115, 0
        v_lshlrev_b32 v116, 4, v0""") + [("m", f"buffer_store_dwordx4 v[112:115], v116, {srd(WS)}, s{sZO} offen {WT}", "zero")] + items(f"""v_min_u32 v116, 496, v116
        s_sub_u32 s{sZO}, s{sZO}, {WS_HF}
        s_lshr_b32 s{sZO}, s{sZO}, 3
        s_add_u32 s{sZO}, s{sZO}, {WS_LF}
        s_cmp_lt_u32 s{sZO}, {WS_LF + 0x8000}
        s_cselect_b32 s{sZO}, s{sZO}, {OOB}
        buffer_store_dwordx4 v[112:115], v116, {srd(WS)}, s{sZO} offen {WT}""", "zero")
        g = ph.stream(items(f"""v_lshlrev_b32 v117, 13, v2
        s_lshl_b32 s{sB}, s{sP}, 19
        s_and_b32 s{sC}, s{sW}, 1
        s_lshl_b32 s{sC}, s{sC}, 7
        s_add_u32 s{sB}, s{sB}, s{sC}"""), int(E_("TGS", "60")), sid=904)
        for w, gp in enumerate(int(x) for x in E_("TG", "102,166,230,294").split(",")):
            if E_("TM", "plain") == "none": continue
            first = f"buffer_load_dword a{240+2*w}, v117, {srd(WUV if w < 2 else WQ)}, s{sC} offen nt" if E_("TM", "plain") == "pair" else ""
            ph.put("x", f"""s_cmp_eq_u32 s{sW}, {w}
            s_cselect_b32 s{sC}, s{sB}, {OOB}
            {first}
            buffer_load_dword a{241+2*w}, v117, {srd(WUV if w < 2 else WQ)}, s{sC} offen offset:4""", gp, tag="pf")
        if E_("TG2"):
            ph.put("x", f"""s_cmp_lt_u32 s{sW}, 2
            s_cselect_b32 s{sC}, s{sB}, {OOB}
            buffer_load_dword v118, v117, {srd(WUV)}, s{sC} offen offset:8
            s_cselect_b32 s{sC}, {OOB}, s{sB}
            buffer_load_dword v116, v117, {srd(WQ)}, s{sC} offen offset:8""", int(E_("TG2")), tag="pf")
        g = ph.stream(zero, BOFF + 10)
        if MPRE == "0":
            g = ph.stream(self.modA(), int(E_("MG", "41")), sid=901, dense=int(E_("MD", "2")))
            b1 = (g - BOFF) // 64 + 1
            g0 = g
            g = ph.stream(m1, 64 * b1 + BOFF + 1, sid=901, dense=1)
        else:
            b1 = 1; g0 = BOFF + 30
            g = ph.stream(m1, 0, sid=901, dense=1)
        ph.put("x", lambda k: k.waitvm(["zero"]), 64 * b1 + BOFF - 1)
        g = ph.stream(m2[:-1], g + 6, sid=901)
        g = ph.put("x", m2[-1][1], g, tag="mod")
        g = ph.put("x", lambda k: k.waitvm(["mod"]), max(g + int(E_("ED", "60")), 64 * b1 + BOFF + 1))
        ph.put("x", f"buffer_atomic_add v6, v7, {srd(DBG)}, s{sEO} offen sc1", g, tag="flag")
        if MPRE == "2": gl = ph.stream(l1, 30, sid=902); b2 = -1
        else:
            gl = ph.stream(self.lnA(), g0 + 1, sid=902)
            b2 = (gl - BOFF) // 64 + 1
            gl = ph.stream(l1, 64 * b2 + BOFF + 1, sid=902)
        gl = ph.stream(l2, gl + 8, sid=902)
        print("mod barrier", b1, "E at", g, "ln barrier", b2, "lnB end", gl, file=sys.stderr)
        a, ld = self.lnC_loads()
        gl = ph.stream(a, gl + 1, sid=902)
        gva = ph.stream(items("v_mov_b32 v18, v106\nv_mov_b32 v19, v107"), 64 * 5 + BOFF + 1, sid=902)
        PB = int(E_("PB", "5"))
        g = 64 * PB + BOFF
        assert gl < g + 30
        ph.put("x", f"buffer_load_dword v3, v4, {srd(DBG)}, s{sEP} offen {WT}", g - int(E_("PL", "50")))
        ph.put("x", self.poll_check(3, 4, DBG, f"s{sEP}", "E", target=f"s{sET}", sleep=int(E_("ESL", "20"))), g - 1)
        ph.stream(items(f"""s_lshl_b32 s{sZO}, s2, 6
        s_add_u32 s{sZO}, s{sZO}, {WS_LF}
        buffer_store_dword v6, v7, {srd(WS)}, s{sZO} offen {WT}""", "flag"), g + 20)
        g = max(g, gl)
        g = ph.stream(ld, g + 1, sid=902); assert g < 64 * 6 + BOFF
        g = ph.stream(self.lnC_fin(), max(g + int(E_("PL2", "50")), gva + 1), sid=902, dense=int(E_("FD", "1")))
        for i in range(2):
            g = ph.stream(self.lnC_rd(i), g + (6 if i == 0 else 1), sid=902)
            a, b = self.lnC(i)
            g = ph.stream(a, g + 6, sid=902)
            g2 = ph.stream(b, g + 1, sid=902)
        assert g2 < V0 + 60, g2
        print("h stored at", g2, file=sys.stderr)
        g = ph.stream(self.flag_store(sHFO, ["hst"]), g2 + 70)
        def epi(b, off, vtype=False):
            it = [("v", f"v_cvt_pk_bf16_f32 v{b+i}, v{b+2*i}, v{b+2*i+1}") for i in range(4)]
            it.append(("s", f"{'s_xor_b32' if KVH == 1 << 20 else 's_add_u32'} s{sEPI}, s{sVX if vtype else sKVST}, {off & ~4095}"))
            it.append(("m", f"buffer_store_dwordx4 {V(b)}, v1, {srd(WS)}, s{sEPI} offen offset:{off & 4095} {E_('KVP', WT)}", "kv"))
            return it
        ep = []
        K1, K2, K3 = int(E_("K1", "17")), int(E_("K2", "14")), int(E_("K3", "16"))
        kst = [8 + K1 * i for i in range(11)] + [322 + 22 * i for i in range(5)]
        if KL:
            K0, KN = int(E_("K0", "-54")), int(E_("KN", "15")); K1 = int(E_("K1", "16"))
            kst = [K0 + K1 * i for i in range(KN)] + [330 + 30 * i for i in range(16 - KN)]
        for i, (u, tt) in enumerate(KORD): ep.append((V0 + kst[i], epi(ACC + (tt * 8 + 2 * u) * 4, tt * 4096 + u * 1024), Q0 - 4))
        for c in range(4):
            done = V0 + [192, 256, 448, 512][c]
            for nt in range(2):
                for kbl in range(2):
                    i = nt * 2 + kbl
                    lo = done + 6 + K2 * i if c < 2 else max(done + 6, V0 + 454 + K3 * (4 * (c - 2) + i))
                    ep.append((lo, epi(VACC + (1 - (c & 1)) * 32 + (nt * 4 + 2 * kbl) * 4, 32768 + kbl * 8192 + (2 * c + nt) * 1024, True), done + 62 if c < 2 else Q0 + 148))
        if E_("DROPV"): ph.put("x", f"s_cmp_ge_u32 s{sP}, 2\ns_cselect_b32 s{sVX}, 0x70000000, s{sVX}", V0 + 400)
        ep.sort(key=lambda e: e[0])
        g = 0
        for (lo, its, dl) in ep:
            g = ph.stream(its, max(lo, g + 1)); assert g < dl
        g = ph.stream(self.flag_store(sKFO, ["kv"]), g + int(E_("KVD", "60")))
        print("kv flag at", g - Q0, file=sys.stderr)
        HG = V0 + 384
        g = ph.stream([("m", f"buffer_load_dword v3, v16, {srd(WS)}, s{sHF1} offen {WT}")], HG - 44)
        ph.put("x", self.poll_check(3, 16, WS, f"s{sHF1}", "H"), HG)
        g = HG + 1
        for n in range(16):
            for tt in range(4):
                lo = max(HG + 128 if n >= 8 else 0, HG + 1 + 7 * (n * 4 + tt))
                off = (tt & 1) * 16384 + n * 1024
                g = ph.stream([("s", f"s_xor_b32 s{sHLD}, s{sH1 + (tt >> 1)}, {off & ~2047}"),
                               ("m", f"buffer_load_dwordx4 {A((n*4+tt)*4)}, v1, {srd(WS)}, s{sHLD} offen offset:{off & 2047}")], max(lo, g + 1))
        g = ph.stream(moe_setup(), V0 + 20)
        a, ld = late_mod_loads(self, 112)
        g = ph.stream(a + items(f"""v_and_b32 v119, 3, v2
        v_lshlrev_b32 v119, 9, v119
        s_lshr_b32 s{sEO}, s2, 6
        s_add_u32 s{sEO}, s{sEO}, 4
        s_lshl_b32 s{sEO}, s{sEO}, 5
        s_bfe_u32 s{sET}, s2, {3 | (3 << 16)}
        s_add_u32 s{sEO}, s{sEO}, s{sET}
        s_lshl_b32 s{sEO}, s{sEO}, 6
        s_add_u32 s{sEO}, s{sEO}, {WS_LF}
        buffer_load_dword v118, v119, {srd(WS)}, s{sEO} offen {WT}"""), Q0 + 150, sid=903)
        g = ph.put("x", self.poll_check(118, 119, WS, f"s{sEO}", "E2"), g + 50)
        g = ph.stream(ld, g + 1, sid=903)
        g = ph.stream(late_mod_fin(self, 112), g + 60, sid=903)
        KG = int(E_("KG", "50"))
        g = ph.stream([("m", f"buffer_load_dword v3, v17, {srd(WS)}, s{sKFP} offen {WT}")], BQ + KG - 40)
        ph.put("x", self.poll_check(3, 17, WS, f"s{sKFP}", "KV"), BQ + KG)
        its = []
        for (lds, so, tag) in ((R2, (sKV, 0), "k0"), (R3, (sKV, 32768), "v0"), (R4, (sKp, 0), "k1")):
            for g2 in range(2):
                its += self.dma4(WS, [1, 1, 1, 1], (sW8, lds + g2 * 4096), (so[0], so[1] + g2 * 4096), tag)
        g = ph.stream(its, BQ + KG + 1, None, step=int(E_("KST", "4")), sid=900)
        as1, as2 = attn_setup(self)
        g2 = ph.stream(as1, Q0 + 160, sid=906)
        g3 = ph.stream(as2, max(g2, BQ + KG) + 1, sid=906)
        print("setup ends", g2, g3, file=sys.stderr)
        cl = cold_loads(120, sMODO2)
        nf = [i for i, it in enumerate(cl) if it[0] == "m"][0]
        g2 = ph.stream(cl[:nf], g2 + 1, sid=905)
        g = ph.stream(cl[nf:], max(g, g2) + 1, sid=905)
        print("cold loads end at", g, file=sys.stderr)
        CT = E_("CT", "123")
        if "2" in CT: ph.stream(code_touch("L_ct2", "L_attn", "L_code_end", 123, "a61", 6), g + 2)
        if "1" in CT: ph.stream(code_touch("L_ct1", "L_ct1", "L_attn", 3, "v3", 2), 418)
        if self.TS:
            ph.put("x", self.ts, V0 - 1); ph.put("x", self.ts, Q0 - 1)
            for gp in (E_("TSP") or "").split(","):
                if gp: ph.put("x", lambda k: self.ts(k, True), int(gp))
        ph.emit()
        print("proj: overloaded placements", ph.over, file=sys.stderr)
        self.ts()


def build(stop=None):
    g = G()
    k = g.k
    g.startup(); g.proj()
    k.label("L_attn")
    if stop != "proj":
        attention(g)
        if stop != "attn":
            oproj(g); tail(g)
    else:
        qdump(g)
    k.label("L_fin")
    if g.TS:
        if E_("TST"): g.ts(force=True)
        k("s_waitcnt vmcnt(0)"); g.ts(force=bool(E_("TST")))
        k(f"""s_lshl_b32 s{sB}, s2, 2
        s_add_u32 s{sB}, s{sB}, s{sW}
        s_lshl_b32 s{sB}, s{sB}, 6
        s_add_u32 s{sB}, s{sB}, {WS_TS}
        v_cmp_eq_u32 vcc, 0, v2
        v_mov_b32 v6, {OOB}
        s_nop 1
        v_cndmask_b32 v5, v6, v2, vcc""")
        if E_("TSX"): k(f"s_getreg_b32 s{TSR[12]}, hwreg(HW_REG_XCC_ID, 0, 4)\ns_getreg_b32 s{TSR[11]}, hwreg(HW_REG_HW_ID)")
        for n in range(g.nts):
            k(f"v_mov_b32 v4, s{TSR[n]}\nbuffer_store_dword v4, v5, {srd(WS)}, s{sB} offen offset:{4*n}")
        if E_("TSDBG"):
            k(f"s_cmp_eq_u32 s2, {E_('TSDBG')}\ns_cselect_b32 s{sB}, 0, {OOB}\ns_cmp_eq_u32 s{sW}, 0\ns_cselect_b32 s{sB}, s{sB}, {OOB}")
            for n in range(1, g.nts):
                k(f"s_sub_u32 s{sC}, s{TSR[n]}, s{TSR[0]}\nv_mov_b32 v4, s{sC}\nbuffer_store_dword v4, v5, {srd(DBG)}, s{sB} offen offset:{4*n}")
    if E_("SPINT"):
        n = int(E_("SPINT"))
        if E_("SPINW"): k(f"s_cmp_lg_u32 s2, {E_('SPINW')}\ns_cbranch_scc1 L_end")
        k(f"s_add_u32 s{sC}, s{TSR[n]}, 10000")
        k.label("L_spint")
        k(f"s_memrealtime vcc\ns_waitcnt lgkmcnt(0)\ns_sub_u32 s{sB}, vcc_lo, s{sC}\ns_cmp_lt_i32 s{sB}, 0\ns_cbranch_scc1 L_spint")
    k.label("L_end")
    k("s_endpgm")
    lines = k.out + "\n".join(g.tail).split("\n") + ["L_code_end:", "    s_endpgm"]
    lines, nn = fix_hazards(lines, report=bool(E_("NOPS")))
    print("nops inserted:", nn, file=sys.stderr)
    if E_("AL8", "0") == "1":
        lines, na, left = align8(lines)
        print("widened", na, "still misaligned", left, file=sys.stderr)
    hdr = open(os.path.join(HERE, "..", NAME + ".s.ref")).read().split("; Override launch geometry")[0]
    kn = NAME + "_kernel"
    text = hdr + f"""; @launch grid=(256,1,1) block=(256,1,1) lds=163840
.amdgcn_target "amdgcn-amd-amdhsa--gfx950"
; Generated by g3/gen.py.  One workgroup (4 waves, 512 registers) per CU; workgroup = (head = 4*(wg&7) + ((wg>>3)&3), p = wg>>5).
;   K / V projection of 256 tokens, Q projection of the query tiles p and 15-p (modulation GEMV and layer norm 1 interleaved),
;   causal attention of both tiles, output projection split over 8 head groups, partial-sum exchange, layer norm 2, router arg-max,
;   expert MLP of the selected token.
; Softmax: exp2(s) without an offset; every row sum is checked against [2^-64, 2^80] and a tile that fails is computed again with
;   the true row maxima subtracted (L_t*_redo).
; Hand-offs between workgroups: write-through stores + flags (zeroed in this launch behind counters in d_debug) or sentinel-filled data;
;   s_sleep appears only as back-off of these polls.
.text
.globl {kn}
.p2align 8
.type {kn},@function
{kn}:
""" + "\n".join(lines) + f"""
.section .rodata,"a"
.p2align 6
.amdhsa_kernel {kn}
  .amdhsa_next_free_vgpr 512
  .amdhsa_next_free_sgpr 102
  .amdhsa_accum_offset 256
  .amdhsa_group_segment_fixed_size 0
  .amdhsa_kernarg_size 128
  .amdhsa_user_sgpr_count 2
  .amdhsa_user_sgpr_kernarg_segment_ptr 1
  .amdhsa_system_sgpr_workgroup_id_x 1
.end_amdhsa_kernel
"""
    return text, lines

if __name__ == "__main__":
    path = sys.argv[1] if len(sys.argv) > 1 else os.path.join(HERE, "..", NAME + ".s")
    text, lines = build(E_("STOP"))
    verify_all(lines)
    open(path, "w").write(text)
    print("wrote", path, len(text), file=sys.stderr)
```

```python
from common import *
from gen_attn import *
sFO, sWOB, sXL, sPS, sTOK1, sTOK2, sPC, sKEY, sIDX, sCND, sCG, sC2 = 64, 65, 74, 75, 68, 69, 70, 71, 72, 73, 66, 67
CNT = E_("CNT", "")
sPM = 12
ROT = E_("OROT", "1") == "1"
sLM = 70
OQB = [R1, R2, R0, R3]
WOV = 8
OA = 56
WR0, OACC, X2, MW = 192, 64, 128, 128
def X1R(f): return 64 + 4 * f if f < 16 else 4 * (f - 16)
QM = E_("QM", "1") == "1"
PCH, PKH = ([0, 0, 1, 1], [0, 1, 0, 1]) if QM else ([0, 1, 0, 1], [0, 0, 1, 1])
def wodma(g, c, vb=24):
    it = []
    for h in range(2):
        it += g.dma4(WO, [vb + i for i in range(4)], (sW8, OQB[c] + h * 4096), (sWOB, PCH[c] * 128 + PKH[c] * 262144 + h * 32768), f"wo{c}", True)
    return it
def xload(pas, f):
    off = f * 1024
    dst = A(X1R(f)) if pas == 0 else V(X2 + 4 * f)
    return [("s", f"s_xor_b32 s{sXL}, s{sXC}, {off & ~4095}"), ("m", f"buffer_load_dwordx4 {dst}, v1, {srd(WS)}, s{sXL} offen offset:{off & 4095}")]
def xc_items(sT):
    return items(f"""s_lshl_b32 s{sXC}, s{sT}, 2
    s_add_u32 s{sXC}, s{sXC}, s{sW}
    s_lshl_b32 s{sXC}, s{sXC}, 3
    s_add_u32 s{sXC}, s{sXC}, s{sX}
    s_lshl_b32 s{sXC}, s{sXC}, 2
    s_add_u32 s{sXC}, s{sXC}, {f"s{sJ}" if ROT else "0"}
    s_lshl_b32 s{sXC}, s{sXC}, 13
    s_add_u32 s{sXC}, s{sXC}, {WS_CTX}""")

def moe_setup():
    return items(f"""s_lshr_b32 s{sB}, s2, 3
    s_mul_i32 s{sCG}, s{sX}, 28
    s_add_u32 s{sCG}, s{sCG}, s{sB}
    s_cmp_lt_u32 s{sB}, 28
    s_cselect_b32 s{sCG}, s{sCG}, 255
    s_lshl_b32 s{sC2}, s{sX}, 3
    s_add_u32 s{sC2}, s{sC2}, s{sB}
    s_sub_u32 s{sC2}, s{sC2}, 24
    s_cmp_ge_u32 s{sB}, 24
    s_cselect_b32 s{sC2}, s{sC2}, 255""")
WS_GP, WS_UP, WS_DP = 0x400000, 0x600000, 0x800000
RA, RAi, RB, RBi = ("v_lshrrev_b32", 3, "v_and_b32", 7) if E_("RPT", "1") == "0" else ("v_and_b32", 7, "v_lshrrev_b32", 3)
def repack_loads(t0, s0):
    return items(f"""s_lshl_b32 s{s0}, s2, 2
    s_add_u32 s{s0}, s{s0}, s{sW}
    s_and_b32 s{sB}, s{s0}, 31
    s_lshr_b32 s{sC}, s{s0}, 5
    s_sub_u32 s{sC}, s{sC}, 4
    s_and_b32 s{sC}, s{sC}, 31
    {f"s_bitcmp1_b32 s2, 0" if E_("ODDX") else ""}
    {f"s_cselect_b32 s{sC}, 31, s{sC}" if E_("ODDX") else ""}
    {RA} v{t0+1}, {RAi}, v2
    v_and_b32 v{t0}, 4, v{t0+1}
    v_and_b32 v{t0+2}, 2, v{t0+1}
    v_lshl_add_u32 v{t0}, v{t0+2}, 3, v{t0}
    v_and_b32 v{t0+2}, 1, v{t0+1}
    v_lshl_add_u32 v{t0}, v{t0+2}, 1, v{t0}
    v_mul_u32_u24 v{t0}, 3584, v{t0}
    {RB} v{t0+2}, {RBi}, v2
    v_lshl_add_u32 v{t0}, v{t0+2}, 4, v{t0}
    v_lshlrev_b32 v{t0+1}, 13, v{t0+1}
    v_lshl_add_u32 v{t0+1}, v{t0+2}, 4, v{t0+1}
    s_lshr_b32 s{s0}, s{sB}, 1
    s_lshl_b32 s{s0}, s{s0}, 2
    s_and_b32 s{sB}, s{sB}, 1
    s_add_u32 s{s0}, s{s0}, s{sB}
    s_mul_i32 s{s0}, s{s0}, {8*3584}
    s_lshl_b32 s{sB}, s{sC}, 7
    s_add_u32 s{s0}, s{s0}, s{sB}
    s_cmp_lt_u32 s{sC}, 28
    s_cselect_b32 s{s0}, s{s0}, {OOB}
    buffer_load_dwordx4 {A(PRE)}, v{t0}, {srd(WG_)}, s{s0} offen {CNT}
    buffer_load_dwordx4 {A(PRE+4)}, v{t0}, {srd(WG_)}, s{s0} offen offset:3584 {CNT}
    buffer_load_dwordx4 {A(PRE+8)}, v{t0}, {srd(WU_)}, s{s0} offen {CNT}
    buffer_load_dwordx4 {A(PRE+12)}, v{t0}, {srd(WU_)}, s{s0} offen offset:3584 {CNT}
    s_lshl_b32 s{s0}, s{sC}, 16
    s_lshl_b32 s{sB}, s{sW}, 11
    s_add_u32 s{s0}, s{s0}, s{sB}
    s_lshl_b32 s{sB}, s{sX}, 7
    s_add_u32 s{s0}, s{s0}, s{sB}
    buffer_load_dwordx4 {A(PRE+16)}, v{t0+1}, {srd(WD_)}, s{s0} offen {CNT}
    buffer_load_dwordx4 {A(PRE+20)}, v{t0+1}, {srd(WD_)}, s{s0} offen offset:1024 {CNT}""", "ex")
def repack_stores(t0, s0):
    return items(f"""s_lshr_b32 s{sC}, s2, 3
    s_sub_u32 s{sC}, s{sC}, 4
    s_and_b32 s{sC}, s{sC}, 31
    {f"s_bitcmp1_b32 s2, 0" if E_("ODDX") else ""}
    {f"s_cselect_b32 s{sC}, 31, s{sC}" if E_("ODDX") else ""}
    {RA} v{t0+2}, {RAi}, v2
    v_lshlrev_b32 v{t0+2}, 4, v{t0+2}
    {RB} v{t0+1}, {RBi}, v2
    v_lshl_add_u32 v{t0}, v{t0+1}, 13, v{t0+2}
    v_mul_u32_u24 v{t0+1}, 28672, v{t0+1}
    v_add_u32 v{t0+1}, v{t0+1}, v{t0+2}
    s_lshl_b32 s{s0}, s{sX}, 2
    s_add_u32 s{s0}, s{s0}, s{sW}
    s_lshl_b32 s{s0}, s{s0}, 7
    s_lshl_b32 s{sB}, s{sC}, 16
    s_add_u32 s{s0}, s{s0}, s{sB}
    s_add_u32 s{s0}, s{s0}, {WS_GP}
    s_cmp_lt_u32 s{sC}, s{sRPL}
    s_cselect_b32 s{s0}, s{s0}, {OOB - 0x400000}
    buffer_store_dwordx4 {A(PRE)}, v{t0}, {srd(WS)}, s{s0} offen {WT}
    s_add_u32 s{s0}, s{s0}, 4096
    buffer_store_dwordx4 {A(PRE+4)}, v{t0}, {srd(WS)}, s{s0} offen {WT}
    s_add_u32 s{s0}, s{s0}, {WS_UP - WS_GP - 4096}
    buffer_store_dwordx4 {A(PRE+8)}, v{t0}, {srd(WS)}, s{s0} offen {WT}
    s_add_u32 s{s0}, s{s0}, 4096
    buffer_store_dwordx4 {A(PRE+12)}, v{t0}, {srd(WS)}, s{s0} offen {WT}
    s_mul_i32 s{s0}, s{sX}, {8*28672}
    s_mul_i32 s{sB}, s{sW}, {2*3584}
    s_add_u32 s{s0}, s{s0}, s{sB}
    s_lshl_b32 s{sB}, s{sC}, 7
    s_add_u32 s{s0}, s{s0}, s{sB}
    s_add_u32 s{s0}, s{s0}, {WS_DP}
    s_cmp_lt_u32 s{sC}, s{sRPL}
    s_cselect_b32 s{s0}, s{s0}, {OOB}
    buffer_store_dwordx4 {A(PRE+16)}, v{t0+1}, {srd(WS)}, s{s0} offen {WT}
    buffer_store_dwordx4 {A(PRE+20)}, v{t0+1}, {srd(WS)}, s{s0} offen offset:3584 {WT}""", "pre")
MG, MD = 112, 128
def moe_loads(t0, s0):
    t = f"""v_lshlrev_b32 v{t0}, 4, v0
    v_cmp_gt_u32 vcc, 224, v0
    v_mov_b32 v{t0+1}, {OOB}
    v_cndmask_b32 v{t0+1}, v{t0+1}, v{t0}, vcc
    s_lshl_b32 s{s0}, s{sCG}, 13
    s_add_u32 s{s0}, s{s0}, {WS_GP}
    s_cmp_lt_u32 s{sCG}, 224
    s_cselect_b32 s{s0}, s{s0}, {OOB - 0x400000}
    buffer_load_dwordx4 {V(MG)}, v{t0}, {srd(WS)}, s{s0} offen
    s_add_u32 s{s0}, s{s0}, 4096
    buffer_load_dwordx4 {V(MG+4)}, v{t0}, {srd(WS)}, s{s0} offen
    s_add_u32 s{s0}, s{s0}, {WS_UP - WS_GP - 4096}
    buffer_load_dwordx4 {V(MG+8)}, v{t0}, {srd(WS)}, s{s0} offen
    s_add_u32 s{s0}, s{s0}, 4096
    buffer_load_dwordx4 {V(MG+12)}, v{t0}, {srd(WS)}, s{s0} offen
    s_mul_i32 s{s0}, s{sC2}, 28672
    s_add_u32 s{s0}, s{s0}, {WS_DP}
    s_cmp_lt_u32 s{sC2}, 64
    s_cselect_b32 s{s0}, s{s0}, {OOB - 0x400000}
    """
    for r in range(8):
        t += f"buffer_load_dwordx4 {V(MD+4*r)}, v{t0+1}, {srd(WS)}, s{s0} offen offset:{(r&1)*3584}\n"
        if r & 1 and r < 7: t += f"s_add_u32 s{s0}, s{s0}, 7168\n"
    return items(t, "ex")
def merge1_extra(g):
    t = f"""v_lshlrev_b32 v12, 3, v0
    s_lshl_b32 s{sC}, s2, 11
    s_add_u32 s{sC}, s{sC}, {WS_CAND}
    buffer_store_dwordx2 v[{vSEN}:{vSEN+1}], v12, {srd(WS)}, s{sC} offen {WT}
    s_lshl_b32 s{sC}, s2, 6
    s_add_u32 s{sC}, s{sC}, {WS_KEY}
    v_mov_b32 v13, 0
    buffer_store_dword v13, v7, {srd(WS)}, s{sC} offen {WT}
    s_lshl_b32 s{sC}, s{sCG}, 6
    s_add_u32 s{sC}, s{sC}, {WS_ACT}
    buffer_store_dwordx4 {V(vSEN)}, v7, {srd(WS)}, s{sC} offen {WT}
    buffer_store_dwordx4 {V(vSEN)}, v7, {srd(WS)}, s{sC} offen offset:16 {WT}
    """
    return items(t, "pre")
def late_mod_loads(g, b):
    it = items(f"""v_lshlrev_b32 v{b+4}, 2, v0
    v_cmp_gt_u32 vcc, 8, v0
    v_mov_b32 v{b+5}, {OOB}
    v_cndmask_b32 v{b+4}, v{b+5}, v{b+4}, vcc
    s_lshl_b32 s{sLM}, s2, 5
    s_add_u32 s{sLM}, s{sLM}, {WS_MODP + 4096}""")
    ld = []
    for q in range(4):
        ld += [("m", f"buffer_load_dword v{b+q}, v{b+4}, {srd(WS)}, s{sLM} offen"), ("s", f"s_add_u32 s{sLM}, s{sLM}, 12288")]
    return it, ld
def late_mod_fin(g, b):
    return items(f"""v_add_f32 v{b}, v{b}, v{b+1}
    v_add_f32 v{b+2}, v{b+2}, v{b+3}
    v_add_f32 v{b}, v{b}, v{b+2}
    v_cvt_pk_bf16_f32 v{b}, v{b}, v{b}
    v_and_b32 v{b}, 0xffff0000, v{b}
    s_lshr_b32 s{sLM}, s2, 6
    s_cmp_eq_u32 s{sLM}, 2
    s_cselect_b32 s{sLM}, 1.0, 0
    v_add_f32 v{b}, s{sLM}, v{b}
    v_cvt_pk_bf16_f32 v{b}, v{b}, v{b}
    v_and_b32 v{b}, 0xffff0000, v{b}
    s_lshl_b32 s{sLM}, s2, 5
    s_add_u32 s{sLM}, s{sLM}, {WS_MOD + 4096}
    buffer_store_dword v{b}, v{b+4}, {srd(WS)}, s{sLM} offen {WT}""", "ex")
def wo_voff(b):
    return items(f"""v_lshrrev_b32 v{b+1}, 1, v2
    v_lshrrev_b32 v{b+2}, 4, v2
    v_xor_b32 v{b+1}, v{b+1}, v{b+2}
    v_and_b32 v{b+1}, 3, v{b+1}
    v_lshlrev_b32 v{b+1}, 5, v{b+1}
    v_and_b32 v{b+2}, 1, v2
    v_lshl_add_u32 v{b+1}, v{b+2}, 4, v{b+1}
    v_lshrrev_b32 v{b}, 3, v2
    v_lshl_add_u32 v{b}, v{b}, 10, v{b+1}
    v_bfe_u32 v4, v2, 1, 2
    v_lshlrev_b32 v4, 11, v4
    v_lshl_add_u32 v4, v{b+2}, 6, v4
    v_add_u32 v{b+1}, 7168, v{b}
    v_add_u32 v{b+2}, {2*7168}, v{b}
    v_add_u32 v{b+3}, {3*7168}, v{b}""")
def cold_loads(t0, s0):
    return repack_loads(t0, s0) + items(f"""
    v_lshrrev_b32 v{t0+1}, 1, v2
    v_and_b32 v{t0+1}, 15, v{t0+1}
    v_lshlrev_b32 v{t0+1}, 10, v{t0+1}
    v_and_b32 v{t0+2}, 1, v2
    v_lshl_add_u32 v{t0+1}, v{t0+2}, 7, v{t0+1}
    s_lshl_b32 s{s0}, s{sP}, 2
    s_add_u32 s{s0}, s{s0}, s{sW}
    s_lshl_b32 s{s0}, s{s0}, 14
    buffer_load_dword a60, v{t0+1}, {srd(WO)}, s{s0} offen""", "ex")
def split_m(its, n):
    c = 0
    for i, it in enumerate(its):
        if it[0] == "m":
            c += 1
            if c == n: return its[:i + 1], its[i + 1:]
    return its, []
def peel_plan(g):
    pf = lambda a, b: sum((prefill_items(i) for i in range(a, b)), [])
    rs = []; rest = repack_stores(12, sPF)
    for i in range(6):
        a, rest = split_m(rest, 1); rs.append(a)
    wo = wodma(g, 0, 8)
    xl = lambda a, b: sum((xload(0, f) for f in range(a, b)), [])
    fsig = items(f"""s_lshl_b32 s{sFO}, s2, 6
    s_add_u32 s{sFO}, s{sFO}, {WS_FF}
    buffer_store_dword v6, v7, {srd(WS)}, s{sFO} offen {WT}""", "flag")
    cpoll = [("m", f"buffer_load_dword v3, v4, {srd(WS)}, s{sCFP} offen {WT}")]
    fc = first_c(2); wv = wo_voff(8)
    return [([pf(0, 2), rs[0]], [rs[1] + pf(2, 7), wv[:8]]),
            ([rs[2] + pf(7, 10)], [rs[3] + pf(10, 14), wv[8:]]),
            ([rs[4] + pf(14, 16) + cpoll], [rs[5] + merge1_extra(g), fc[:6]]),
            ([xc_items(sT1) + [("x", g.poll_check(3, 4, WS, f"s{sCFP}", "C1"))] + xl(0, 5)], [wo[:6] + xl(5, 8), fc[6:12]]),
            ([fsig + xl(8, 13)], [wo[6:] + xl(13, 16), fc[12:18]]),
            ([xl(16, 22)], [xl(22, 28), fc[18:26]]),
            ([xl(28, 32), fc[26:]], [])]
def peel_a(g, ph, r):
    for st in peel_plan(g)[r - 1][0]: ph.stream(st, 8 if any(it[0] == "m" for it in st[:3]) else 0)
def peel_b(g, ph, r):
    for st in peel_plan(g)[r - 1][1]: ph.stream(st, 0)
def diag_a(g, ph):
    if TK < 32:
        ph.stream(items(f"""v_mov_b32 v10, 1
        s_lshl_b32 s{sCND}, s{sP}, 2
        s_add_u32 s{sCND}, s{sCND}, s{sW}
        s_lshl_b32 s{sCND}, s{sCND}, 6
        s_add_u32 s{sCND}, s{sCND}, {WS_LF + 32}"""), 8)
    ph.stream(items("".join(f"v_mov_b32 v{24+i}, v{8+i}\n" for i in range(4)) + f"""v_add_u32 v11, {R4}, v{vMW}
    v_lshlrev_b32 v12, 6, v0
    s_mov_b32 s{sKEY}, {WS_FF}
    buffer_load_dword v3, v12, {srd(WS)}, s{sKEY} offen {WT}
    v_bfe_u32 v13, v2, 1, 4
    v_lshlrev_b32 v13, 10, v13
    v_and_b32 v14, 1, v2
    v_lshl_add_u32 v13, v14, 7, v13
    s_lshl_b32 s{sXL}, s{sP}, 2
    s_add_u32 s{sXL}, s{sXL}, s{sW}
    s_lshl_b32 s{sXL}, s{sXL}, 14
    {f"buffer_load_dword v14, v13, {srd(WO)}, s{sXL} offen" if E_("WOT", "1") == "1" else ""}"""), 0, dense=1)
def diag_b(g, ph):
    if E_("XT", "1") == "1":
        ph.stream(items(f"""s_and_b32 s{sTOK1}, s2, 31
        s_lshl_b32 s{sTOK1}, s{sTOK1}, 2
        s_add_u32 s{sTOK1}, s{sTOK1}, s{sW}
        s_lshl_b32 s{sTOK2}, s{sT1}, 7
        s_add_u32 s{sTOK1}, s{sTOK1}, s{sTOK2}
        s_lshl_b32 s{sTOK1}, s{sTOK1}, 10
        s_sub_u32 s{sTOK2}, s{sT2}, s{sT1}
        s_lshl_b32 s{sTOK2}, s{sTOK2}, 17
        v_bfe_u32 v9, v2, 3, 1
        v_mul_lo_u32 v9, v9, s{sTOK2}
        v_and_b32 v8, 7, v2
        v_lshl_add_u32 v9, v8, 7, v9
        buffer_load_dword v8, v9, {srd(XS)}, s{sTOK1} offen""", "pf"), 2)
    if TK < 32: ph.put("x", f"buffer_atomic_add v10, v5, {srd(WS)}, s{sCND} offen sc0 sc1", 3)
    if "3" in E_("CT", "123"): ph.stream(code_touch("L_ct3", "L_ct3", "L_end", 13, "v13", 4), 1)
    ph.put("x", g.poll_check(3, 12, WS, f"s{sKEY}", "F"), 31)
def merge_x(g):
    its = items(f"""v_lshrrev_b32 v{OA+2}, 2, v2
    v_and_b32 v{OA+1}, 3, v2
    v_lshlrev_b32 v{OA}, 7, v{OA+2}
    v_lshl_add_u32 v{OA}, v{OA+1}, 3, v{OA}
    v_bfe_u32 v{OA+1}, v2, 3, 2
    v_lshl_add_u32 v{OA}, v{OA+1}, 5, v{OA}
    v_xor_b32 v{OA+1}, 32, v{OA}
    v_xor_b32 v{OA+2}, 64, v{OA}
    v_xor_b32 v{OA+3}, 96, v{OA}
    v_add_u32 v{OA+4}, {R2}, v{OA}
    v_add_u32 v{OA+5}, {R2}, v{OA+1}
    v_add_u32 v{OA+6}, {R2}, v{OA+2}
    v_add_u32 v{OA+7}, {R2}, v{OA+3}""")
    return its

KS = int(E_("KS", "0"))
OC4 = E_("OC4", "0") == "1" and KS == 0
XE, OE = 128, 8
def steps(var):
    top = 8 - KS if var == "odd" else 8
    ex = list(range(8, 8 + KS)) if var == "even" else []
    s0 = [(c, n2) for c in range(2) for n2 in range(4)] + [(c, n2) for c in range(2) for n2 in range(4, top)] + [(c, n2) for c in range(2) for n2 in ex]
    s0 += [(c, n2) for c in (2, 3) for n2 in list(range(top)) + ex]
    s1 = [(c, n2) for c in range(4) for n2 in range(4)] + [(c, n2) for c in range(4) for n2 in range(4, 8)]
    return [(0,) + s for s in s0] + [(1,) + s for s in s1]
def piece(st):
    _, c, n2 = st
    return 4 if n2 >= 8 else [q for q in range(4) if PCH[q] == c >> 1 and PKH[q] == n2 >> 2][0]
def oread(i, ST=None):
    st = (ST or steps("even"))[i]; _, c, n2 = st
    it = []
    for nt in range(2):
        for h in range(2):
            if n2 >= 8: va = OE + 2 * (c & 1) + nt; o = (c >> 1) * 16384 + (2 * (n2 - 6 - KS) + h) * 4096
            else:
                reg = OQB[piece(st)]
                va = OA + (0 if reg < R2 else 4) + 2 * (c & 1) + nt; o = (reg & 0xffff) + (2 * (n2 & 3) + h) * 4096
                if OC4: va = OA + (0 if reg < R2 else 4) + 2 * (c & 1) + (n2 & 1); o = (reg & 0xffff) + (2 * (n2 & 2) + nt * 2 + h) * 4096
            f = WR0 + ((i & 3) * 4 + nt * 2 + h) * 4
            it += [("l", f"ds_read_b64_tr_b16 a[{f}:{f+1}], v{va} offset:{o}"), ("l", f"ds_read_b64_tr_b16 a[{f+2}:{f+3}], v{va} offset:{o+2048}")]
    return it
def oproj_first(g):
    g.run(oread(0) + oread(1))

GW, K0 = 8, 16
P1R, P2R, GA, CB, SB, GB, XR1, XR2, WRR = 128, 192, 160, 168, 176, 184, 32, 36, 40
vPL, vCB, vCF = 44, 45, 46
SV = int(E_("SV", "0"))
XRB, P1B = 28, 224
def pload(T12, dst, nb=0, base=None):
    it = []
    for x in range(8):
        it += [("s", f"s_add_u32 s{sXL}, s{base or sPC}, {(T12 << 23) + nb * 32768 + x * 4096}"), ("m", f"buffer_load_dwordx4 {V(dst+4*x)}, v{vPL}, {srd(WS)}, s{sXL} offen {WT}")]
    return it

def epi(pas, c):
    it = []
    for tt in range(2):
        b = OACC + c * 16 + tt * 8
        it += [("v", f"v_cvt_pk_bf16_f32 v{b+i}, v{b+2*i}, v{b+2*i+1}") for i in range(4)]
        it += [("v", f"v_min_u32 v{b+i}, -2, v{b+i}") for i in range(4)]
        it += [("s", f"s_add_u32 s{sPS}, s{sPB}, {(pas << 23) + tt * 131072}"), ("m", f"buffer_store_dwordx4 {V(b)}, v{vPO}, {srd(WS)}, s{sPS} offen offset:{c*256} {WT}", "pst")]
    return it

def oproj_phase(g, var):
    k = g.k
    ST = steps(var); PB = 8 * (len(ST) - 32)
    EV = lambda key, d: int(E_(key + "_" + var, E_(key, str(d))))
    M = []
    for i, (pas, c, n2) in enumerate(ST):
        if OC4:
            for tt in range(2):
                for h in range(4):
                    n = 4 * (n2 >> 1) + h; f = (n >> 2) * 8 + tt * 4 + h
                    d = V(OACC + c * 16 + tt * 8 + (n2 & 1) * 4)
                    M.append(MF(d, A(WR0 + ((i & 3) * 4 + h) * 4), A(X1R(f)) if pas == 0 else V(X2 + 4 * f), "0" if n == 0 else d))
            continue
        oc = E_("OC1", "0")
        seq = {"0": [(nt, tt, h) for nt in range(2) for tt in range(2) for h in range(2)],
               "1": [(nt, tt, h) for h in range(2) for nt in range(2) for tt in range(2)],
               "2": [(nt, tt, h) for nt in range(2) for h in range(2) for tt in range(2)]}[oc]
        for (nt, tt, h) in seq:
            if True:
                if True:
                    n = 2 * n2 + h; f = (n >> 2) * 8 + tt * 4 + (n & 3)
                    x = A(XE + 4 * (tt * 4 + 2 * (n2 - 6 - KS) + h)) if n2 >= 8 else A(X1R(f)) if pas == 0 else V(X2 + 4 * f)
                    d = V(OACC + c * 16 + tt * 8 + nt * 4)
                    M.append(MF(d, A(WR0 + ((i & 3) * 4 + nt * 2 + h) * 4), x, "0" if n == 0 else d))
    ph = Phase(k, M); ph.thin = True; ph.batch = int(E_('BATO', '9'))
    first2 = 8 * min(i for i, st in enumerate(ST) if piece(st) >= 2)
    Z0 = min(EV("Z0", 102), first2 - 14)
    short = var == "odd" and KS > 0
    ZC = EV("ZC", 92 if short else 102)
    ph.put("x", g.bar(["wo1"], False), 34)
    if ZC == Z0: ph.put("x", g.bar(["wo2", "wo3", "wo4", "ctx"], False), Z0)
    else: ph.put("x", g.bar(["wo2"], False), Z0); ph.put("x", g.bar(["wo3", "ctx"], False), ZC)
    st4 = 3 if var == "even" and KS else 4
    gx = ph.stream(wodma(g, 2), 0, None, step=4, sid=940)
    gxe = 4
    if var == "even" and KS:
        gxe = ph.stream(items(f"""s_add_u32 s{sKEY}, s{sXC}, {4 << 13}
        s_xor_b32 s{sKEY}, s{sKEY}, {3 << 13}
        s_xor_b32 s{sIDX}, s{sJ}, 3
        s_lshl_b32 s{sIDX}, s{sIDX}, 1
        s_and_b32 s{sB}, s{sW}, 1
        s_add_u32 s{sIDX}, s{sIDX}, s{sB}
        s_lshl_b32 s{sIDX}, s{sIDX}, 16
        s_lshr_b32 s{sB}, s{sW}, 1
        s_lshl_b32 s{sB}, s{sB}, 7
        s_add_u32 s{sIDX}, s{sIDX}, s{sB}""" + "".join(f"\nv_add_u32 v{OE+q}, {R4}, v{OA+q}" for q in range(4))), 0, sid=941)
        w4 = []
        for h in range(2): w4 += g.dma4(WO, [24, 25, 26, 27], (sW8, R4 + h * 4096), (sIDX, 524288 + h * 32768), "wo4")
        gx = ph.stream(w4, max(gx, 34) + 1, None, step=st4, sid=940)
        xe = []
        for u in range(4 - 2 * KS, 4):
            for tt in range(2): xe.append(("m", f"buffer_load_dwordx4 {A(XE + 4*(tt*4+u))}, v{vL2 if tt else 1}, {srd(WS)}, s{sKEY} offen offset:{u*1024}"))
        ph.stream(xe, gxe + 1, None, step=4, sid=941)
    gx = ph.stream(wodma(g, 3), max(gx, 34) + 1, None, step=st4, sid=940)
    CD = EV("CD", 80 if short else 90); CK = PB - EV("CK", 56 - 10 * KS if short else 56)
    g1 = ph.stream([("s", f"s_add_u32 s{sCFO}, s{sCFO}, 65536"), ("s", f"s_add_u32 s{sCFP}, s{sCFP}, 65536")] + xc_items(sT2), gxe + 1)
    g1 = ph.stream(g.flag_store(sCFO, ["ctx"]), CD)
    gpl = g1 = ph.stream([("m", f"buffer_load_dword v3, v4, {srd(WS)}, s{sCFP} offen {WT}")], CK - EV("CL", 45))
    ph.put("x", g.poll_check(3, 4, WS, f"s{sCFP}", "C2"), CK)
    xl2 = lambda a, b: sum((xload(1, (n >> 2) * 8 + tt * 4 + (n & 3)) for n in range(a, b) for tt in range(2)), [])
    g1 = ph.stream(xl2(0, 4), ZC + 1, None, step=3, sid=951)
    g1 = ph.stream(xl2(4, 8), max(g1, CK) + 1, None, step=EV("XST", 4), sid=951)
    g1 = ph.stream(xl2(8, 16), max(g1 + 1, PB - 6), None, step=5, sid=951)
    g2 = ph.stream(items(f"""v_lshrrev_b32 v{vCF}, 2, v2
    v_and_b32 v{vCB}, 3, v2
    v_lshlrev_b32 v{vPL}, 8, v{vCF}
    v_lshl_add_u32 v{vPL}, v{vCB}, 4, v{vPL}
    v_lshlrev_b32 v{vCB}, 3, v{vCB}
    v_lshl_add_u32 v{vCB}, v{vCF}, 6, v{vCB}
    v_lshlrev_b32 v{vCF}, 1, v{vCB}
    s_lshl_b32 s{sPC}, s2, 15
    s_lshl_b32 s{sB}, s{sW}, 6
    s_add_u32 s{sPC}, s{sPC}, s{sB}
    s_add_u32 s{sPC}, s{sPC}, {WS_P}
    s_and_b32 s{sTOK1}, s2, 31
    s_lshl_b32 s{sTOK1}, s{sTOK1}, 2
    s_add_u32 s{sTOK1}, s{sTOK1}, s{sW}
    s_lshl_b32 s{sTOK2}, s{sT2}, 7
    s_add_u32 s{sTOK2}, s{sTOK2}, s{sTOK1}
    s_lshl_b32 s{sB}, s{sT1}, 7
    s_add_u32 s{sTOK1}, s{sTOK1}, s{sB}
    s_lshl_b32 s{sB}, s{sTOK1}, 10
    s_lshl_b32 s{sC}, s{sTOK2}, 10"""), 60, sid=950)
    x1l = f"""buffer_load_dwordx2 v[{XR1}:{XR1+1}], v{vCB}, {srd(XS)}, s{sB} offen
    buffer_load_dwordx2 v[{XR1+2}:{XR1+3}], v{vCB}, {srd(XS)}, s{sB} offen offset:32
    """
    if SV == 1 and var == "odd": x1l = ""
    if SV and var == "even": x1l += f"""s_add_u32 s{sB}, s{sB}, 4096
    buffer_load_dwordx2 v[{XRB}:{XRB+1}], v{vCB}, {srd(XS)}, s{sB} offen
    buffer_load_dwordx2 v[{XRB+2}:{XRB+3}], v{vCB}, {srd(XS)}, s{sB} offen offset:32
    """
    g2 = ph.stream(items(x1l + f"""buffer_load_dwordx2 v[{XR2}:{XR2+1}], v{vCB}, {srd(XS)}, s{sC} offen
    buffer_load_dwordx2 v[{XR2+2}:{XR2+3}], v{vCB}, {srd(XS)}, s{sC} offen offset:32
    buffer_load_dwordx2 v[{WRR}:{WRR+1}], v{vCB}, {srd(WR_)}, 0 offen
    buffer_load_dwordx2 v[{WRR+2}:{WRR+3}], v{vCB}, {srd(WR_)}, 0 offen offset:32"""), max(g1 + 1, PB + 84), None, step=4, sid=950)
    gwr = g2
    its = []
    for (R, seg) in ((CB, 4), (SB, 3), (GA, 2), (GB, 5)):
        its += [("s", f"s_mov_b32 s{sXL}, {WS_MOD + seg*2048}"), ("m", f"buffer_load_dwordx4 {V(R)}, v{vCF}, {srd(WS)}, s{sXL} offen"), ("m", f"buffer_load_dwordx4 {V(R+4)}, v{vCF}, {srd(WS)}, s{sXL} offen offset:64")]
    if TK < 32 and var == "odd": its = its[:6] + pload(0, P1R) + its[6:]
    g2 = ph.stream(its, max(g2 + 1, PB + 130), None, step=3)
    if TK < 32 and var == "odd": g2 -= 24
    if SV == 2 and var == "odd":
        ph.stream(items(f"s_cmp_lt_u32 s{sW}, 2\ns_cselect_b32 s{sCND}, s{sPC}, {OOB - 0x100000}") + pload(0, P1R, 0, sCND), max(g2 + 1, PB + EV("P1G", 216)), None, step=4)
    elif E_("NOP1") and var != "odd":
        ph.stream(items("".join(f"v_mov_b32 v{P1R+i}, -1\n" for i in range(32))), PB + 134)
    elif not ((SV or TK < 32) and var == "odd"): ph.stream(pload(0, P1R), max(g2 + 1, PB + EV("P1G", 216)), None, step=EV("P1S", 4))
    kk = K(); unpack(kk, 48, WRR, 8)
    for i in range(8): kk(f"v_mul_f32 v{GW+i}, v{48+i}, v{CB+i}")
    kk(f"v_mul_f32 v{K0}, v48, v{SB}")
    for i in range(1, 8): kk(f"v_fmac_f32 v{K0}, v{48+i}, v{SB+i}")
    allred(kk, [K0], tmp=[19])
    gk = items("\n".join(kk.out))
    g3 = 0
    for c in range(4):
        done = 8 * max(i for i, st in enumerate(ST) if st[0] == 0 and st[1] == c) + 8
        g3 = ph.stream(epi(0, c), max(done + 6, g3 + 1, gpl - 7 if c == 1 and E_("CFX", "1") == "1" else 0)); assert g3 < PB + 32 * c - 2, g3
    for c in range(3): ph.stream(epi(1, c), PB + 128 + 32 * (c + 1) + 6)
    ph.stream(gk[:8], gwr + 40, sid=952)
    ph.stream(gk[8:], g2 + 30, PB + 244, sid=952)
    for i in range(2, len(ST)):
        lo = 8 * (i - 3)
        if ST[i][0] == 0:
            pc = piece(ST[i])
            lo = max(lo, [0, 35, Z0 + 1, ZC + 1, Z0 + 1][pc])
        ph.stream(oread(i, ST), lo, 8 * i - int(E_('ODL', '13')))
    if g.TS:
        n0 = g.nts
        ph.put("x", g.ts, PB - 1)
        for gp in (E_("TSO") or "").split(","):
            if gp: ph.put("x", lambda k: g.ts(k, True), int(gp))
    ph.emit()
    print("oproj", var, ": overloaded placements", ph.over, file=sys.stderr)

TK = int(E_("TK", "24"))
def oproj(g):
    k = g.k
    if KS or SV or TK < 32:
        st = k.save(); n0 = g.nts
        if TK < 32: k(f"s_cmp_ge_u32 s{sCND}, {TK}\ns_cbranch_scc1 L_op_odd")
        else: k("s_bitcmp1_b32 s2, 0\ns_cbranch_scc1 L_op_odd")
        oproj_phase(g, "even"); after(g, "even")
        k("s_branch L_op_join")
        k.restore(st); g.nts = n0
        k.label("L_op_odd")
        oproj_phase(g, "odd"); after(g, "odd")
        g.page("a")
        k.label("L_op_join")
    else: oproj_phase(g, "all"); after(g, "all"); g.page("a")

D1, D2, H1, H2, O1, O2, KEY1, KEY2 = 64, 80, 20, 24, 56, 60, 17, 18
def after(g, var):
    k = g.k
    TT = lambda: g.ts(force=True) if E_('TST') else None
    g.run(epi(1, 3))
    if E_("TSO"): g.ts(force=True)
    pm = 0xf << (4 * int(E_("PQC", "0"))); pm |= pm << 16
    k(f"s_mov_b32 s{sPM}, {pm:#x}\ns_mov_b32 s{sPM+1}, {pm:#x}")
    two = SV and var == "even"
    if two and SV == 2: k(f"s_cmp_ge_u32 s{sW}, 2\ns_cselect_b32 s{sCND}, s{sPC}, {OOB - 0x100000}"); g.run(pload(0, P1B, 1, sCND))
    elif two: g.run(pload(0, P1B, 1))
    for i in range(0, 32, 2): k(f"v_mov_b64 v[{P2R+i}:{P2R+i+1}], -1")
    k(f"s_mov_b64 exec, s[{sPM}:{sPM+1}]")
    g.run(pload(1, P2R))
    k("s_mov_b64 exec, -1")
    g.ts(force=bool(E_("TSO"))); TT()
    k("v_mov_b32 v100, 0x3f80\nv_mov_b32 v101, 0x3f800000")
    unpack(k, D2 + 8, XR2, 8)
    if SV == 1 and var == "odd":
        k(f"v_mov_b32 v{KEY1}, 0\ns_mov_b32 s{sTOK1}, {OOB >> 10}")
    else:
        slow, ok = k.lab("P1_slow"), k.lab("P1_ok")
        unpack(k, D1 + 8, XR1, 8)
        t = f"v_max_u32 v3, v{P1R}, v{P1R+1}\n"
        for i in range(2, 32, 2): t += f"v_max3_u32 v3, v3, v{P1R+i}, v{P1R+i+1}\n"
        k(t + f"v_cmp_eq_u32 vcc, -1, v3\ns_cbranch_vccnz {slow}")
        k.label(ok)
        k2 = K(); k2.nlab = 5000 + k.nlab * 20; k2.label(slow); g2 = type("g2", (), dict(k=k2, run=lambda self, its: [k2(it[1]) for it in its]))()
        p1 = 0xf << (4 * int(E_("PQ1", "3"))); p1 |= p1 << 16
        k2(f"s_mov_b32 s14, {p1:#x}\ns_mov_b32 s15, {p1:#x}")
        part_wait(g2, 0, P1R, pmask=14); k2(f"s_branch {ok}")
        g.tail.append("\n".join(k2.out))
        token(g, P1R, XR1, D1, sTOK1, KEY1); token2(g, XR1, D1, H1, O1)
    if SV == 2 and var == "odd":
        token3(g, D1, H1, O1)
        k(f"""s_cmp_lt_u32 s{sW}, 2
        s_cselect_b32 s{sTOK1}, s{sTOK1}, {OOB >> 10}
        s_cselect_b32 s{sB}, -1, 0
        v_and_b32 v{KEY1}, s{sB}, v{KEY1}""")
    if two:
        HB, OB, KB = 104, 108, 103
        token3(g, D1, H1, O1)
        if SV == 2: k(f"s_cmp_lt_u32 s{sW}, 2\ns_cbranch_scc1 L_one")
        unpack(k, D1 + 8, XRB, 8)
        k(f"s_add_u32 s{sIDX}, s{sTOK1}, 4")
        part_wait(g, 0, P1B, 1)
        token(g, P1B, XRB, D1, sIDX, KB); token2(g, XRB, D1, HB, OB); token3(g, D1, HB, OB)
        k(f"v_cmp_gt_u32 vcc, v{KB}, v{KEY1}\ns_cbranch_vccz L_keep")
        k(f"v_mov_b32 v{KEY1}, v{KB}\ns_mov_b32 s{sB}, s{sTOK1}\ns_mov_b32 s{sTOK1}, s{sIDX}\ns_mov_b32 s{sIDX}, s{sB}")
        for i in range(4): k(f"v_mov_b32 v{H1+i}, v{HB+i}\nv_mov_b32 v{XR1+i}, v{XRB+i}\nv_swap_b32 v{O1+i}, v{OB+i}")
        k.label("L_keep")
        k(f"""s_lshl_b32 s{sB}, s{sIDX}, 10
        buffer_store_dwordx2 v[{OB}:{OB+1}], v{vCB}, {srd(OUT)}, s{sB} offen
        buffer_store_dwordx2 v[{OB+2}:{OB+3}], v{vCB}, {srd(OUT)}, s{sB} offen offset:32""")
        k.label("L_one")
    g.run(moe_loads(98, sPF)[:7])
    k(f"""s_lshl_b32 s{sB}, s{sW}, 2
    v_mov_b32 v47, s{sB}
    v_mov_b32 v102, 0
    s_lshl_b32 s{sB}, s2, 6
    s_add_u32 s{sB}, s{sB}, {WS_KEY}
    s_lshl_b32 s{sC}, s2, 11
    s_add_u32 s{sC}, s{sC}, {WS_CAND}""")
    g.ts()

def allred(k, regs, op="v_add_f32", tmp=None):
    for pat in ("quad_perm:[1,0,3,2]", "quad_perm:[2,3,0,1]", "row_half_mirror", "row_mirror"):
        for r in regs: k(f"{op}_dpp v{r}, v{r}, v{r} {pat} row_mask:0xf bank_mask:0xf")
    for sw in ("v_permlane16_swap_b32", "v_permlane32_swap_b32"):
        for r, t in zip(regs, tmp): k(f"v_mov_b32 v{t}, v{r}")
        for r, t in zip(regs, tmp): k(f"{sw} v{r}, v{t}")
        for r, t in zip(regs, tmp): k(f"{op} v{r}, v{r}, v{t}")
def unpack(k, dst, src, n):
    for i in range(n // 2):
        k(f"v_lshlrev_b32 v{dst+2*i}, 16, v{src+i}\nv_and_b32 v{dst+2*i+1}, 0xffff0000, v{src+i}")
def pack(k, dst, src, n):
    for i in range(n // 2): k(f"v_cvt_pk_bf16_f32 v{dst+i}, v{src+2*i}, v{src+2*i+1}")
def bf1(k, r): k(f"v_cvt_pk_bf16_f32 v{r}, v{r}, v{r}\nv_and_b32 v{r}, 0xffff0000, v{r}")

def sent_wait(g, regs, reload_items, name, sleep=2):
    k = g.k
    lp, ok = k.lab(name + "_l"), k.lab(name + "_ok")
    k(f"s_mov_b32 s{sD}, 0")
    k.label(lp)
    k("s_waitcnt vmcnt(0)")
    k(f"v_max_u32 v3, v{regs[0]}, v{regs[1]}")
    rest = regs[2:]
    for i in range(0, len(rest) - 1, 2): k(f"v_max3_u32 v3, v3, v{rest[i]}, v{rest[i+1]}")
    k(f"""v_cmp_eq_u32 vcc, -1, v3
    s_add_u32 s{sD}, s{sD}, 1
    s_cbranch_vccz {ok}
    s_cmp_ge_u32 s{sD}, {SPIN}
    s_cbranch_scc1 {ok}
    s_mov_b64 exec, vcc""")
    if sleep: k(f"s_sleep {sleep}")
    g.run(reload_items)
    k(f"s_branch {lp}")
    k.label(ok)
    k("s_mov_b64 exec, -1")
    k.vm = []

def part_wait(g, T12, R, nb=0, pmask=None):
    k = g.k
    lp, ok = k.lab("P2_l"), k.lab("P2_ok")
    k(f"s_mov_b32 s{sD}, 0")
    k.label(lp)
    k("s_waitcnt vmcnt(0)")
    for x in range(8): k(f"v_max_u32 v{48+x}, v{R+4*x}, v{R+4*x+1}\nv_max3_u32 v{48+x}, v{48+x}, v{R+4*x+2}, v{R+4*x+3}")
    k(f"""v_max3_u32 v3, v48, v49, v50
    v_max3_u32 v3, v3, v51, v52
    v_max3_u32 v3, v3, v53, v54
    v_max_u32 v3, v3, v55
    v_cmp_eq_u32 vcc, -1, v3
    s_add_u32 s{sD}, s{sD}, 1
    s_cbranch_vccz {ok}
    s_cmp_ge_u32 s{sD}, {SPIN}
    s_cbranch_scc1 {ok}
    s_sleep {E_("PSL", "1")}""")
    pl = pload(T12, R, nb)
    for x in range(8):
        sk = k.lab("P2_s")
        k(f"v_cmp_eq_u32 vcc, -1, v{48+x}\ns_cbranch_vccz {sk}\ns_and_b64 s[{sXB}:{sXB+1}], vcc, s[{pmask or sPM}:{(pmask or sPM)+1}]\ns_cselect_b64 exec, s[{sXB}:{sXB+1}], vcc")
        g.run(pl[2 * x:2 * x + 2])
        k("s_mov_b64 exec, -1")
        k.label(sk)
    k(f"s_branch {lp}")
    k.label(ok)
    k.vm = []

def token(g, PR, XR, D, sTOK, key):
    k = g.k; T = 48
    unpack(k, D, PR, 8)
    for x in range(1, 8):
        for i in range(8): k(f"v_dot2c_f32_bf16 v{D+i}, v{PR+4*x+(i>>1)}, v{100+(i&1)}")
    for i in range(0, 8, 2): k(f"v_pk_fma_f32 v[{D+i}:{D+i+1}], v[{D+i}:{D+i+1}], v[{GA+i}:{GA+i+1}], v[{D+8+i}:{D+9+i}]")
    pack(k, XR, D, 8); unpack(k, D, XR, 8)
    k(f"""v_pk_add_f32 v[{T}:{T+1}], v[{D}:{D+1}], v[{D+2}:{D+3}]
    v_pk_add_f32 v[{T+2}:{T+3}], v[{D+4}:{D+5}], v[{D+6}:{D+7}]
    v_pk_add_f32 v[{T}:{T+1}], v[{T}:{T+1}], v[{T+2}:{T+3}]
    v_add_f32 v{T}, v{T}, v{T+1}""")
    allred(k, [T], tmp=[T + 1])
    k(f"v_mul_f32 v{T}, {H(-1/512)}, v{T}")
    for i in range(0, 8, 2): k(f"v_pk_add_f32 v[{D+8+i}:{D+9+i}], v[{D+i}:{D+i+1}], v[{T}:{T+1}] op_sel_hi:[1,0]")
    k(f"v_pk_mul_f32 v[{T+2}:{T+3}], v[{D+8}:{D+9}], v[{D+8}:{D+9}]\nv_pk_mul_f32 v[{T+4}:{T+5}], v[{D+8}:{D+9}], v[{GW}:{GW+1}]")
    for i in range(2, 8, 2):
        k(f"v_pk_fma_f32 v[{T+2}:{T+3}], v[{D+8+i}:{D+9+i}], v[{D+8+i}:{D+9+i}], v[{T+2}:{T+3}]")
        k(f"v_pk_fma_f32 v[{T+4}:{T+5}], v[{D+8+i}:{D+9+i}], v[{GW+i}:{GW+i+1}], v[{T+4}:{T+5}]")
    k(f"v_add_f32 v{T+2}, v{T+2}, v{T+3}\nv_add_f32 v{T+4}, v{T+4}, v{T+5}")
    allred(k, [T + 2, T + 4], tmp=[T + 3, T + 5])
    k(f"""v_mov_b32 v{T}, {H(1e-5)}
    v_fmac_f32 v{T}, {H(1/512)}, v{T+2}
    v_rsq_f32 v{T}, v{T}
    v_fma_f32 v{T+4}, v{T+4}, v{T}, v{K0}
    v_ashrrev_i32 v{T+5}, 31, v{T+4}
    v_or_b32 v{T+5}, 0x80000000, v{T+5}
    v_xor_b32 v{T+5}, v{T+5}, v{T+4}
    v_and_b32 v{T+5}, 0xfffff800, v{T+5}
    v_or_b32 v{key}, s{sTOK}, v{T+5}""")
def token2(g, XR, D, HP, OP):
    k = g.k; T = 48
    for i in range(0, 8, 2): k(f"v_pk_mul_f32 v[{D+8+i}:{D+9+i}], v[{D+8+i}:{D+9+i}], v[{T}:{T+1}] op_sel_hi:[1,0]")
    for i in range(0, 8, 2): k(f"v_pk_fma_f32 v[{D+8+i}:{D+9+i}], v[{D+8+i}:{D+9+i}], v[{CB+i}:{CB+i+1}], v[{SB+i}:{SB+i+1}]")
    pack(k, HP, D + 8, 8)
def token3(g, D, HP, OP):
    k = g.k
    unpack(k, D + 8, HP, 8)
    for i in range(0, 8, 2): k(f"v_pk_mul_f32 v[{D+8+i}:{D+9+i}], v[{D+8+i}:{D+9+i}], v[{GB+i}:{GB+i+1}]")
    pack(k, OP, D + 8, 8); unpack(k, D + 8, OP, 8)
    for i in range(0, 8, 2): k(f"v_pk_add_f32 v[{D+8+i}:{D+9+i}], v[{D+8+i}:{D+9+i}], v[{D+i}:{D+i+1}]")
    pack(k, OP, D + 8, 8)

def tail(g):
    k = g.k
    TT = lambda: g.ts(force=True) if E_('TST') else None
    GU, WDF = 160, [192 + i for i in range(64)]
    ml = moe_loads(98, sPF)
    part_wait(g, 1, P2R)
    g.ts(); TT()
    token(g, P2R, XR2, D2, sTOK2, KEY2)
    TT()
    k(f"""v_max3_u32 v19, v{KEY1}, v{KEY2}, 1
    ds_write_b32 v47, v19
    s_waitcnt lgkmcnt(0)
    s_barrier
    ds_read_b128 v[52:55], v102""")
    token2(g, XR2, D2, H2, O2)
    k(f"""v_max_u32 v52, v52, v53
    v_max3_u32 v52, v52, v54, v55
    v_cmp_eq_u32 vcc, v52, v19
    s_cbranch_vccz L_notbest
    buffer_store_dword v19, v5, {srd(WS)}, s{sB} offen {WT}
    v_cmp_gt_u32 vcc, v{KEY1}, v{KEY2}""")
    for i in range(4): k(f"v_cndmask_b32 v{28+i}, v{H2+i}, v{H1+i}, vcc\nv_cndmask_b32 v{40+i}, v{XR2+i}, v{XR1+i}, vcc")
    for i in range(4): k(f"v_min_u32 v{28+i}, -2, v{28+i}\nv_min_u32 v{40+i}, -2, v{40+i}")
    k(f"""buffer_store_dwordx4 v[28:31], v1, {srd(WS)}, s{sC} offen {WT}
    buffer_store_dwordx4 v[40:43], v1, {srd(WS)}, s{sC} offen offset:1024 {WT}""")
    k.vm = k.vm[:-3]
    k.label("L_notbest")
    TT()
    g.run(ml[7:])
    if not SV: token3(g, D1, H1, O1)
    token3(g, D2, H2, O2)
    W16 = E_("W16", "1") == "1"
    if W16:
        k("""v_and_b32 v104, 1, v2
        v_cmp_eq_u32 vcc, 1, v104""")
        for O in (O1, O2):
            k(f"""v_cndmask_b32 v104, v{O+2}, v{O}, vcc
            v_cndmask_b32 v105, v{O+3}, v{O+1}, vcc
            v_mov_b32_dpp v106, v104 quad_perm:[1,0,3,2] row_mask:0xf bank_mask:0xf
            v_mov_b32_dpp v107, v105 quad_perm:[1,0,3,2] row_mask:0xf bank_mask:0xf
            v_cndmask_b32 v{O}, v{O}, v106, vcc
            v_cndmask_b32 v{O+1}, v{O+1}, v107, vcc
            v_cndmask_b32 v{O+2}, v106, v{O+2}, vcc
            v_cndmask_b32 v{O+3}, v107, v{O+3}, vcc""")
        k("""v_lshrrev_b32 v103, 2, v2
        v_lshlrev_b32 v103, 6, v103
        v_and_b32 v104, 1, v2
        v_lshl_add_u32 v103, v104, 5, v103
        v_and_b32 v104, 2, v2
        v_lshl_add_u32 v103, v104, 3, v103""")
        if E_("EO", "0") == "1":
            k(f"v_readfirstlane_b32 s{sIDX}, v52\ns_and_b32 s{sCND}, s{sIDX}, 2047")
            for (sT, O) in ((sTOK1, O1), (sTOK2, O2)):
                k(f"""s_lshl_b32 s{sB}, s{sT}, 10
                s_cmp_eq_u32 s{sT}, s{sCND}
                s_cselect_b32 s{sB}, {OOB}, s{sB}
                s_cselect_b32 s{sT}, s{sT}, {OOB >> 10}
                buffer_store_dwordx4 v[{O}:{O+3}], v103, {srd(OUT)}, s{sB} offen sc1""")
    k(f"""v_lshlrev_b32 v4, 6, v0
    s_mov_b32 s{sKEY}, {WS_KEY}
    s_mov_b32 s{sD}, 0""")
    g.page("b")
    k.label("L_kl")
    k(f"""buffer_load_dword v3, v4, {srd(WS)}, s{sKEY} offen {WT}
    s_add_u32 s{sD}, s{sD}, 1
    s_waitcnt vmcnt(0)
    v_cmp_eq_u32 vcc, 0, v3
    s_cbranch_vccz L_kd
    s_cmp_ge_u32 s{sD}, {SPIN}
    s_cbranch_scc1 L_kd
    s_mov_b64 exec, vcc
    s_sleep {E_("KSL", "2")}
    s_branch L_kl""")
    k.label("L_kd")
    k("s_mov_b64 exec, -1")
    TT()
    allred(k, [3], op="v_max_u32", tmp=[19])
    k(f"""ds_write_b32 v47, v3 offset:64
    s_waitcnt lgkmcnt(0)
    s_barrier
    ds_read_b128 v[52:55], v102 offset:64
    v_lshlrev_b32 v4, 2, v0
    v_max_u32 v52, v52, v53
    v_max3_u32 v52, v52, v54, v55
    v_readfirstlane_b32 s{sKEY}, v52
    s_and_b32 s{sIDX}, s{sKEY}, 2047
    s_lshr_b32 s{sB}, s{sIDX}, 7
    s_sub_u32 s{sC}, 15, s{sB}
    s_min_u32 s{sB}, s{sB}, s{sC}
    s_lshl_b32 s{sB}, s{sB}, 16
    s_and_b32 s{sC}, s{sIDX}, {1026 if SV == 2 else 1024}
    s_cmp_eq_u32 s{sC}, {2 if SV == 2 else 0}
    s_cselect_b32 s{sCND}, {30 if SV else 31}, 31
    s_lshr_b32 s{sC}, s{sIDX}, 2
    s_and_b32 s{sCND}, s{sCND}, s{sC}
    s_lshl_b32 s{sCND}, s{sCND}, 2
    s_lshl_b32 s{sCND}, s{sCND}, 9
    s_add_u32 s{sCND}, s{sCND}, s{sB}
    s_add_u32 s{sCND}, s{sCND}, {WS_CAND}""")
    hl = [("m", f"buffer_load_dword v19, v4, {srd(WS)}, s{sCND} offen {WT}")]
    g.run(hl)
    g.ts(); TT()
    if W16:
        for (sT, O) in ((sTOK1, O1), (sTOK2, O2)):
            k(f"""s_lshl_b32 s{sB}, s{sT}, 10
            s_cmp_eq_u32 s{sT}, s{sIDX}
            s_cselect_b32 s{sB}, {OOB}, s{sB}
            buffer_store_dwordx4 v[{O}:{O+3}], v103, {srd(OUT)}, s{sB} offen {E_("OP", "sc1")}""")
    for (sT, O) in ((sTOK1, O1), (sTOK2, O2)) if not W16 else ():
        k(f"""s_lshl_b32 s{sB}, s{sT}, 10
        s_cmp_eq_u32 s{sT}, s{sIDX}
        s_cselect_b32 s{sB}, {OOB}, s{sB}
        buffer_store_dwordx2 v[{O}:{O+1}], v{vCB}, {srd(OUT)}, s{sB} offen {E_("OP", "sc1")}
        buffer_store_dwordx2 v[{O+2}:{O+3}], v{vCB}, {srd(OUT)}, s{sB} offen offset:32 {E_("OP", "sc1")}""")
    k(f"s_cmp_ge_u32 s{sCG}, 224\ns_cbranch_scc1 L_nprod")
    lp, ok = "L_hl", "L_hok"
    unpack(k, GU, MG, 32)
    k(f"s_mov_b32 s{sD}, 0\ns_waitcnt vmcnt({2 if W16 else 4})")
    k.label(lp)
    k(f"""v_cmp_eq_u32 vcc, -1, v19
    s_add_u32 s{sD}, s{sD}, 1
    s_cbranch_vccz {ok}
    s_cmp_ge_u32 s{sD}, {SPIN}
    s_cbranch_scc1 {ok}""")
    g.run(hl)
    k(f"s_waitcnt vmcnt(0)\ns_branch {lp}")
    k.label(ok)
    TT()
    k(f"v_lshlrev_b32 v48, 16, v19\nv_and_b32 v50, 0xffff0000, v19")
    for m in range(2):
        for i in range(0, 8, 2):
            d = 64 + 8 * m + i
            k(f"v_pk_mul_f32 v[{d}:{d+1}], v[{GU+16*m+i}:{GU+16*m+i+1}], v[48:49] op_sel_hi:[1,0]")
    for m in range(2):
        for i in range(0, 8, 2):
            d = 64 + 8 * m + i
            k(f"v_pk_fma_f32 v[{d}:{d+1}], v[{GU+16*m+8+i}:{GU+16*m+8+i+1}], v[50:51], v[{d}:{d+1}] op_sel_hi:[1,0,1]")
    k(g.red16(64))
    k(f"""v_and_b32 v50, 15, v2
    v_cmp_eq_u32 vcc, 0, v50
    v_mov_b32 v51, 1024
    v_cndmask_b32 v51, v51, v0, vcc
    ds_write_b128 v51, v[64:67] offset:256
    v_lshlrev_b32 v50, 2, v50
    s_waitcnt lgkmcnt(0)
    s_barrier
    s_cmp_lg_u32 s{sW}, 0
    s_cbranch_scc1 L_nprod
    ds_read_b32 v64, v50 offset:256
    ds_read_b32 v65, v50 offset:320
    ds_read_b32 v66, v50 offset:384
    ds_read_b32 v67, v50 offset:448
    v_cmp_gt_u32 vcc, 8, v2
    v_mov_b32 v51, {OOB}
    v_cndmask_b32 v51, v51, v50, vcc
    s_lshl_b32 s{sB}, s{sCG}, 6
    s_add_u32 s{sB}, s{sB}, {WS_ACT}
    v_add_f32 v64, v64, v65
    v_add_f32 v66, v66, v67
    v_add_f32 v64, v64, v66""")
    bf1(k, 64)
    k(f"""v_mov_b32_dpp v65, v64 row_ror:8 row_mask:0xf bank_mask:0xf
    v_mul_f32 v66, {H(-LOG2E)}, v64
    v_exp_f32 v66, v66
    v_add_f32 v66, 1.0, v66
    v_rcp_f32 v66, v66
    v_mul_f32 v64, v64, v66""")
    bf1(k, 64)
    k("v_mul_f32 v64, v64, v65")
    bf1(k, 64)
    k(f"buffer_store_dword v64, v51, {srd(WS)}, s{sB} offen {WT}")
    k.label("L_nprod")
    k.vm = []; k.lg = []
    TT()
    k(f"s_cmp_ge_u32 s{sC2}, 64\ns_cbranch_scc1 L_fin")
    k(f"""v_lshlrev_b32 v4, 6, v0
    v_cmp_gt_u32 vcc, 224, v0
    v_mov_b32 v51, {OOB}
    v_cndmask_b32 v4, v51, v4, vcc
    s_mov_b32 s{sB}, {WS_ACT}
    v_and_b32 v52, 7, v2
    s_lshl_b32 s{sC}, s{sC2}, 3
    v_add_u32 v52, s{sC}, v52            ; column
    v_lshrrev_b32 v53, 5, v52
    v_lshlrev_b32 v53, 6, v53
    v_and_b32 v54, 12, v52
    v_lshl_add_u32 v53, v54, 2, v53
    v_bfe_u32 v54, v52, 4, 1
    v_lshl_add_u32 v53, v54, 3, v53
    v_and_b32 v54, 2, v52
    v_lshl_add_u32 v53, v54, 1, v53
    v_lshlrev_b32 v54, 2, v52
    s_mov_b32 s{sC}, {WS_MOD + 5*2048}
    buffer_load_dword v55, v54, {srd(WS)}, s{sC} offen""")
    al = [("m", f"buffer_load_dwordx4 v[80:83], v4, {srd(WS)}, s{sB} offen {WT}"), ("m", f"buffer_load_dwordx4 v[84:87], v4, {srd(WS)}, s{sB} offen offset:16 {WT}"),
          ("m", f"buffer_load_dword v88, v53, {srd(WS)}, s{sCND} offen {WT}"), ("m", f"buffer_load_dword v89, v53, {srd(WS)}, s{sCND} offen offset:1024 {WT}")]
    g.run(al[2:])
    unpack(k, WDF[0], MD, 64)
    k(f"""s_and_b32 s{sC}, s{sKEY}, 0xfffff800
    s_or_b32 s{sC}, s{sC}, 0x400
    v_mov_b32 v90, s{sC}
    v_not_b32 v91, v90
    v_ashrrev_i32 v91, 31, v91
    v_or_b32 v91, 0x80000000, v91
    v_xor_b32 v90, v90, v91""")
    bf1(k, 90)
    k(f"""v_mul_f32 v90, {H(-LOG2E)}, v90
    v_exp_f32 v90, v90
    v_add_f32 v90, 1.0, v90
    v_rcp_f32 v90, v90""")
    bf1(k, 90)
    sent_wait(g, [88, 89], al[2:], "CND", sleep=1)
    k(f"""v_and_b32 v51, 1, v52
    v_cmp_eq_u32 vcc, 0, v51
    v_lshlrev_b32 v91, 16, v88
    v_and_b32 v88, 0xffff0000, v88
    v_cndmask_b32 v88, v88, v91, vcc
    v_lshlrev_b32 v91, 16, v89
    v_and_b32 v89, 0xffff0000, v89
    v_cndmask_b32 v89, v89, v91, vcc
    v_and_b32 v50, 15, v2
    v_cmp_eq_u32 vcc, 0, v50
    v_lshrrev_b32 v51, 1, v0
    v_mov_b32 v50, 1024
    v_cndmask_b32 v51, v50, v51, vcc
    v_and_b32 v50, 7, v2
    v_lshlrev_b32 v50, 2, v50
    v_cmp_gt_u32 vcc, 8, v2
    v_lshlrev_b32 v52, 1, v52
    v_mov_b32 v53, {OOB}
    v_cndmask_b32 v52, v53, v52, vcc""")
    k(f"""s_cmp_lt_u32 s{sCG}, 224
    s_cbranch_scc1 L_asl
    s_sleep {E_('ASL7', '16')}""")
    k.label("L_asl")
    k(f"s_sleep {E_('ASL', '7')}")
    g.run(al[:2])
    TT()
    sent_wait(g, list(range(80, 88)), al[:2], "ACT", sleep=int(E_("ASL2", "2")))
    TT()
    for r in range(8):
        for i in range(0, 8, 2):
            w = WDF[8 * r + i]; a = 80 + (r & ~1); sel = r & 1
            if r == 0: k(f"v_pk_mul_f32 v[{64+i}:{65+i}], v[{w}:{w+1}], v[{a}:{a+1}] op_sel_hi:[1,0]")
            else: k(f"v_pk_fma_f32 v[{64+i}:{65+i}], v[{w}:{w+1}], v[{a}:{a+1}], v[{64+i}:{65+i}] op_sel:[0,{sel},0] op_sel_hi:[1,{sel},1]")
    for i in range(4): k(f"v_permlane32_swap_b32 v{64+i}, v{68+i}")
    for i in range(4): k(f"v_add_f32 v{64+i}, v{64+i}, v{68+i}")
    for i in range(2): k(f"v_permlane16_swap_b32 v{64+i}, v{66+i}")
    for i in range(2): k(f"v_add_f32 v{64+i}, v{64+i}, v{66+i}")
    for pat in ("quad_perm:[1,0,3,2]", "quad_perm:[2,3,0,1]", "row_half_mirror", "row_mirror"):
        for i in range(2): k(f"v_add_f32_dpp v{64+i}, v{64+i}, v{64+i} {pat} row_mask:0xf bank_mask:0xf")
    k(f"""ds_write_b64 v51, v[64:65] offset:2048
    s_waitcnt lgkmcnt(0)
    s_barrier
    s_cmp_lg_u32 s{sW}, 0
    s_cbranch_scc1 L_fin
    ds_read_b32 v64, v50 offset:2048
    ds_read_b32 v65, v50 offset:2080
    ds_read_b32 v66, v50 offset:2112
    ds_read_b32 v67, v50 offset:2144
    s_lshl_b32 s{sB}, s{sIDX}, 10
    v_add_f32 v64, v64, v65
    v_add_f32 v66, v66, v67
    v_add_f32 v64, v64, v66""")
    bf1(k, 64)
    k("v_mul_f32 v64, v64, v90"); bf1(k, 64)
    k("v_add_f32 v64, v64, v88"); bf1(k, 64)
    k("v_mul_f32 v64, v64, v55"); bf1(k, 64)
    k(f"""v_add_f32 v64, v64, v89
    v_cvt_pk_bf16_f32 v64, v64, v64
    buffer_store_short v64, v52, {srd(OUT)}, s{sB} offen {E_("FP", "sc1")}""")

def verify_all(lines):
    tot = 0
    for name, (n1, n2, slow) in {"p0": (0, 15, False), "p3": (3, 12, False), "p1": (1, 14, True), "redo0": (0, 15, False), "redo3": (3, 12, False)}.items():
        def decide(lab, c):
            if lab == "L_op_odd": return name in ("p3", "p1")
            if lab.endswith("_redo"): return name.startswith("redo")
            if lab.endswith("_max"): return c == 0
            if lab.endswith("_mk"): return n1 == 0
            if lab.endswith("_maxd"): return c >= min(2, n1 if "t1" in lab else n2)
            if lab == "L_t1_zero": return n1 == 0
            if lab == "L_t1_diag": return n1 == 1
            if lab == "L_t2_diag": return name == "p1"
            if lab == "L_t1_loop": return c % 2 < min(n1 - 2, 1)
            if lab == "L_t2_loop": return c % 3 < 2
            if "_slow" in lab and not lab.endswith("_l"): return slow
            if "_ok" in lab or lab in ("L_kd", "L_hok"): return (c >= 2) if slow and ("P2" in lab or "ACT" in lab or "CND" in lab or lab in ("L_kd", "L_hok")) else True
            if lab == "L_notbest": return slow
            if lab == "L_keep": return name == "p0"
            return False
        T = trace(lines, decide)
        e = verify(T)
        tot += len(e)
        print(f"verify {name}: {len(T)} instrs, {len(e)} problems", file=sys.stderr)
        for x in e[:12]: print("   ", x, file=sys.stderr)
    assert tot == 0
```

```python
from common import *
O_, S_, MK, CI, P_, LA = 128, 96, 80, 64, 48, 32
vMW, vQR, vK, vV0, vV1, vT1, vT2, vPO, vSEN, ONE = 16, 17, 18, 19, 20, 21, 22, 23, 24, 28
Q1, KF, VF, Q2, PRE = 64, 128, 160, 192, 0
DESC = E_("DESC", "0") == "1"
BIG = 2.0 ** 100
LLO, LHI = 2.0 ** -64, 2.0 ** 80

def mask_items(dst, thr, grp):
    t = ""
    for qt in range(2):
        for kt in range(2):
            for r in range(4):
                d = dst + 8 * qt + 4 * kt + r
                c = 16 * kt + r - 16 * qt
                t += f"v_add_f32 v{d}, {H(-c * BIG) if c else '0'}, v{thr}\nv_min_f32 v{d}, v{d}, v{CI + (grp*2+qt)*4 + r}\n"
    return items(t)

def attn_setup(g):
    t = f"""s_and_b32 s{sB}, s{sW}, 1
    s_lshr_b32 s{sC}, s{sW}, 1
    s_lshl_b32 s{sVo}, s{sB}, 13
    s_add_u32 s{sVo}, s{sVo}, {R2}
    v_add_u32 v{vK}, s{sVo}, v1
    s_mul_i32 s{sVo}, s{sB}, 12288
    s_add_u32 s{sVo}, s{sVo}, {R3}
    v_add_u32 v{vV0}, s{sVo}, v1
    s_lshl_b32 s{sVo}, s{sB}, 12
    s_add_u32 s{sVo}, s{sVo}, {R3}
    v_add_u32 v{vV1}, s{sVo}, v1
    v_and_b32 v{vPO}, 15, v2
    v_lshrrev_b32 v{vSEN}, 4, v2
    v_lshlrev_b32 v{vSEN+1}, 2, v{vSEN}
    v_sub_u32 v{vSEN+1}, v{vPO}, v{vSEN+1}
    s_sub_i32 s{sVo}, s{sC}, s{sB}
    s_lshl_b32 s{sVo}, s{sVo}, 5
    v_add_u32 v{vT1}, s{sVo}, v{vSEN+1}
    s_add_u32 s{sVo}, s{sC}, s{sB}
    s_sub_i32 s{sVo}, 1, s{sVo}
    s_lshl_b32 s{sVo}, s{sVo}, 5
    v_add_u32 v{vT2}, s{sVo}, v{vSEN+1}
    v_cvt_f32_i32 v{vT1}, v{vT1}
    v_cvt_f32_i32 v{vT2}, v{vT2}
    v_add_f32 v{vT1}, 0.5, v{vT1}
    v_add_f32 v{vT2}, 0.5, v{vT2}
    v_mul_f32 v{vT1}, {H(BIG)}, v{vT1}
    v_mul_f32 v{vT2}, {H(BIG)}, v{vT2}
    v_lshrrev_b32 v{vSEN+1}, 2, v{vPO}
    v_and_b32 v{vPO}, 3, v{vPO}
    v_lshlrev_b32 v{vPO}, 6, v{vPO}
    v_lshl_add_u32 v{vPO}, v{vSEN+1}, 15, v{vPO}
    v_lshl_add_u32 v{vPO}, v{vSEN}, 4, v{vPO}
    s_lshl_b32 s{sPB}, s{sP}, 20
    s_lshl_b32 s{sVo}, s{sW}, 18
    s_add_u32 s{sPB}, s{sPB}, s{sVo}
    s_lshl_b32 s{sVo}, s{sH}, 10
    s_add_u32 s{sPB}, s{sPB}, s{sVo}
    s_add_u32 s{sPB}, s{sPB}, {WS_P}
    s_mov_b32 s{sN1}, s{sT1}
    s_mov_b32 s{sE}, 2
    s_mov_b32 s{sRedo}, 0
    s_mov_b32 s{sRPL}, 28
    {f"s_lshl_b32 s{sPLB}, s2, 2" if PFK else ""}
    {f"s_add_u32 s{sPLB}, s{sPLB}, s{sW}" if PFK else ""}
    {f"s_lshl_b32 s{sPLB}, s{sPLB}, 14" if PFK else ""}
    {f"s_add_u32 s{sPLB}, s{sPLB}, {WS_P}" if PFK else ""}
    s_mov_b32 s64, 128
    s_lshl_b32 s65, s{sJ}, {1 if E_('OROT', '1') == '1' else 31}
    s_and_b32 s65, s65, 7
    s_xor_b32 s65, s65, s{sW}
    s_lshl_b32 s65, s65, 16
    s_add_u32 s{sKm}, s{sW8}, {R2}
    s_add_u32 s{sVm}, s{sW8}, {R0}
    s_lshl_b32 s{sCLO}, s{sH}, 13
    s_lshl_b32 s{sVo}, s{sB}, 11
    s_add_u32 s{sCLO}, s{sCLO}, s{sVo}
    s_add_u32 s{sCLO}, s{sCLO}, {WS_CTX}
    s_sub_u32 s{sVo}, 3, s{sC}
    s_lshl_b32 s{sVo}, s{sVo}, 18
    s_add_u32 s{sCHI}, s{sCLO}, s{sVo}
    s_lshl_b32 s{sVo}, s{sC}, 18
    s_add_u32 s{sCLO}, s{sCLO}, s{sVo}
    s_add_u32 s{sCFO}, s{sHFO}, {WS_CF - WS_HF}
    s_and_b32 s{sCFP}, s2, {0xff & ~24}
    s_lshl_b32 s{sCFP}, s{sCFP}, 8
    s_sub_u32 s{sVo}, 3, s{sW}
    s_min_u32 s{sVo}, s{sVo}, s{sW}
    s_lshl_b32 s{sVo}, s{sVo}, 7
    s_add_u32 s{sCFP}, s{sCFP}, s{sVo}
    s_add_u32 s{sCFP}, s{sCFP}, {WS_CF}
    """
    t2 = f"""v_add_u32 v{vMW}, s{sW8}, v1
    v_and_b32 v{vQR}, {~8192 & 0xffffffff}, v{vMW}
    """
    for i in range(4): t2 += f"v_mov_b32 v{vSEN+i}, -1\nv_mov_b32 v{ONE+i}, 0x3f803f80\n"
    for i in range(16): t2 += f"v_mov_b32 v{CI+i}, 0\n"
    return items(t), items(t2) + first_c(1)

def first_c(tile, redo=False):
    if tile == 2: return mask_items(MK, vT1, 0)
    it = items(f"""s_cmp_eq_u32 s{sT1}, 0
    s_cselect_b32 s{sVo}, 0, {H(BIG*1024)}
    v_add_f32 v3, s{sVo}, v{vT1}""") + mask_items(S_, 3, 0)
    if redo: return it
    return it + items(f"""s_cmp_eq_u32 s{sT1}, 0
    s_cselect_b32 s{sVo}, 1.0, 0
    v_sub_f32 v3, v{vT2}, v{vT1}
    v_fma_f32 v3, s{sVo}, v3, v{vT1}""") + mask_items(MK, 3, 0)

def qk_m(Q, grp, S, C, order="kt"):
    M = []
    tl = [(0, 0), (1, 0), (0, 1), (1, 1)] if order == "kt" else [(0, 0), (0, 1), (1, 0), (1, 1)]
    for (qt, kt) in tl:
        d = S + 8 * qt + 4 * kt
        for u in range(4):
            c = V(d) if u else (V(CI + (grp * 2 + qt) * 4) if C is None else "0" if C == 0 else V(C + 8 * qt + 4 * kt))
            M.append(MF(V(d), A(KF + (kt * 4 + u) * 4), A(Q + (grp * 2 + qt) * 16 + u * 4), c))
    return M
def pv_m(grp, P, zero, order=range(8), lsum=True):
    M = []
    for qt in range(2 if lsum else 0):
        d = V(LA + (grp * 2 + qt) * 4)
        M.append(MF(d, V(ONE), V(P + 4 * qt), "0" if zero else d))
    for n in order:
        for qt in range(2):
            d = V(O_ + grp * 64 + qt * 32 + n * 4)
            M.append(MF(d, A(VF + 4 * n), V(P + 4 * qt), "0" if zero else d))
    return M
def qread(Q, base, f): return f"ds_read_b128 {A(Q+4*f)}, v{vQR} offset:{base + f*1024}"
def kread(ab, f): return ("l", f"ds_read_b128 {A(KF+4*f)}, v{vK} offset:{ab*16384 + f*1024}")
def vread(ab, n): return ("l", f"ds_read_b128 {A(VF+4*n)}, v{vV0 if n < 4 else vV1} offset:{ab*16384 + n*1024}")
def sm_place(ph, S, P, g0=0, stride=2):
    ge = []
    for j in range(16): ge.append(ph.put("e", f"v_exp_f32 v{S+j}, v{S+j}", g0 + stride * j))
    return ge
def cvt_place(ph, S, P, ge):
    for i in range(8):
        lo = max(ge[2 * i], ge[2 * i + 1])
        if lo + 1 <= len(ph.M) - 1: ph.put("v", f"v_cvt_pk_bf16_f32 v{P+i}, v{S+2*i}, v{S+2*i+1}", lo + 1)
        else: ph.put("x", f"v_cvt_pk_bf16_f32 v{P+i}, v{S+2*i}, v{S+2*i+1}", lo)
def adv_items():
    if DESC: return items(f"""s_add_u32 s{sVo}, s{sKp}, 32768
    s_sub_u32 s{sKp}, 15, s{sE}
    s_cmp_eq_u32 s{sE}, 16
    s_cselect_b32 s{sKp}, s{sT2}, s{sKp}
    s_cmp_gt_u32 s{sE}, s{sN1}
    s_cselect_b32 s{sKp}, s{sKp}, s{sE}
    s_mul_i32 s{sKp}, s{sKp}, {KVS}
    s_add_u32 s{sKp}, s{sKp}, s{sKV}
    s_cmp_ge_u32 s{sE}, 17
    s_cselect_b32 s{sKp}, {OOB - 8192}, s{sKp}
    s_add_u32 s{sE}, s{sE}, 1""")
    return items(f"""s_add_u32 s{sVo}, s{sKp}, 32768
    s_sub_u32 s{sKp}, s{sE}, s{sN1}
    s_sub_u32 s{sKp}, s{sKp}, 1
    s_cmp_gt_u32 s{sE}, s{sN1}
    s_cselect_b32 s{sKp}, s{sKp}, s{sE}
    s_mul_i32 s{sKp}, s{sKp}, {KVS}
    s_add_u32 s{sKp}, s{sKp}, s{sKV}
    s_cmp_ge_u32 s{sE}, 17
    s_cselect_b32 s{sKp}, {OOB - 8192}, s{sKp}
    s_add_u32 s{sE}, s{sE}, 1""")
vL2 = 15
sPLB = 1
def lin8(sm, so, tog, tag):
    it = []
    for h in range(2):
        it.append(("s", f"s_add_u32 m0, s{sm}, {h*4096}"))
        for i in range(4): it.append(("m", f"buffer_load_dwordx4 v{vL2 if h else 1}, {srd(WS)}, s{so} offen offset:{i*1024} {E_('KVL', '')} lds", tag))
    return it + [("s", f"s_xor_b32 s{sm}, s{sm}, {tog}")]
def kdma(g): return lin8(sKm, sKp, R2 ^ R4, "kd")
def vdma(g): return lin8(sVm, sVo, R3 ^ R0, "vd")
NPEEL = 8
FUSE = E_("FUSE", "0") == "1"
def prefill_items(i):
    if E_("NOPRE") or i < PFK: return []
    if PFK:
        return [("s", f"s_add_u32 s{sPO}, s{sPLB}, {i * 1024 & ~4095}"),
                ("m", f"buffer_store_dwordx4 {V(vSEN)}, v1, {srd(WS)}, s{sPO} offen offset:{i * 1024 & 4095} {WT}", "pre")]
    return [("s", f"s_add_u32 s{sPO}, s{sPB}, {((i >> 3) << 23) + (i & 1) * 131072}"),
            ("m", f"buffer_store_dwordx4 {V(vSEN)}, v{vQR if E_('PLIN', '1') == '1' else vPO}, {srd(WS)}, s{sPO} offen offset:{((i >> 1) & 3) * 256} {WT}", "pre")]

DG = {"8": {"c": [3, 7, 11, 15, 19, 23, 27, 31], "d": [3, 7, 11, 15, 19, 23, 27, 31], "a": []},
      "7": {"c": [3, 7, 11, 15, 23, 27, 31], "d": [3, 7, 11, 15, 23, 27, 31], "a": [3, 7]},
      "9": {"c": [3, 7, 11, 15, 23, 27, 31], "d": [3, 7, 11, 15, 19, 23, 27, 31], "a": [3]},
      "6": {"c": [3, 7, 15, 19, 27, 31], "d": [0, 7, 11, 19, 23, 31], "a": [3, 7, 15, 19]}}[E_("DG", "8")]
def kv_items(g, name):
    seq = kdma(g) + vdma(g)
    groups = []; pre = []
    for it in seq:
        if it[0] == "m": groups.append([pre, it]); pre = []
        else: pre = pre + [it]
    groups.append([pre, None])
    n0 = {"c": 0, "d": len(DG["c"]), "a": len(DG["c"]) + len(DG["d"])}[name]
    return [(gp, groups[n0 + i][1], groups[n0 + i + 1][0]) for i, gp in enumerate(DG[name])], groups[0][0]
def place_kv(g, ph, name, limit=16):
    lst, first = kv_items(g, name)
    n0 = {"c": 0, "d": len(DG["c"]), "a": len(DG["c"]) + len(DG["d"])}[name]
    if name == "c": ph.stream(first, 0, 1)
    for i, (gp, dma, post) in enumerate(lst):
        if n0 + i >= limit: break
        ph.put("m", dma[1], gp, gp, tag=dma[2])
        ph.stream(post, gp + 1, gp + 2)

def slot_lv(g, Q, name, extra=None):
    S0, S1, P0, P1 = S_, S_ + 16, P_, P_ + 8
    qk, sm, pv = {"a": ((0, S0), (S1, P1), (0, P0)), "b": ((1, S1), (S0, P0), (1, P1)),
                  "c": ((0, S0), (S1, P1), (0, P0)), "d": ((1, S1), (S0, P0), (1, P1))}[name]
    M = qk_m(Q, qk[0], qk[1], None) + pv_m(pv[0], pv[1], False, lsum=name not in "bc")
    ph = Phase(g.k, M)
    seq = kdma(g) + vdma(g); grp = []; pre = []
    for it in seq:
        if it[0] == "m": grp.append([pre, it]); pre = []
        else: pre = pre + [it]
    grp.append([pre, None])
    if name == "c":
        ge = sm_place(ph, *sm, g0=0)
        for n, gp in enumerate([1, 3, 5, 9, 13, 17, 21, 23]): ph.put(*vread(0, n), gp, gp)
        dl, n0 = [7, 11, 15, 19, 25, 29], 0
        ph.stream(grp[0][0], 0, 1)
    if name == "d":
        ge = sm_place(ph, *sm, g0=2)
        for f in range(8): ph.put(*kread(0, f), 5 + 4 * f, 5 + 4 * f)
        dl, n0 = [0, 3, 7, 11, 15, 19, 23, 27, 31], 6
    if name == "a":
        ge = sm_place(ph, *sm, g0=0)
        for n, gp in enumerate([1, 5, 7, 9, 13, 17, 21, 25]): ph.put(*vread(1, n), gp, gp)
        dl, n0 = [3], 15
    if name == "b":
        ge = sm_place(ph, *sm, g0=0)
        for f in range(8): ph.put(*kread(1, f), 9 + 2 * f)
        dl, n0 = [], 0
    for i, gp in enumerate(dl):
        ph.put("m", grp[n0 + i][1][1], gp, gp, tag=grp[n0 + i][1][2]); ph.stream(grp[n0 + i + 1][0], gp + 1, gp + 2)
    vq = [(ge[2 * i + 1] + 1, f"v_cvt_pk_bf16_f32 v{sm[1]+i}, v{sm[0]+2*i}, v{sm[0]+2*i+1}") for i in range(8)]
    if name in "ab": vq += [(ge[j] + 1, f"v_add_f32 v{12+(j>>3)}, v{12+(j>>3)}, v{sm[0]+j}") for j in range(16)]
    if name == "a": vq += [(26, f"v_xor_b32 v{vV0}, {R3 ^ R0}, v{vV0}"), (26, f"v_xor_b32 v{vV1}, {R3 ^ R0}, v{vV1}")]
    if name == "c": vq += [(0, f"v_xor_b32 v{vK}, {R2 ^ R4}, v{vK}")]
    vq.sort(key=lambda x: x[0])
    n = len(M)
    for (lo, t) in vq:
        lo = min(lo, n - 1)
        ok = [gp for gp in range(lo, n) if ph.fits(gp, "v")]
        if ok and ok[0] <= lo + 6: ph.put("v", t, ok[0], ok[0])
        else: ph.g[lo].append(("v", t, None, 0))
    if extra: extra(ph)
    ph.emit()

def slot(g, Q, name, zero=False, Cm=None, extra=None, dma=True, k=None):
    S0, S1, P0, P1 = S_, S_ + 16, P_, P_ + 8
    qk, sm, pv = {"a": ((0, S0), (S1, P1), (0, P0)), "b": ((1, S1), (S0, P0), (1, P1)),
                  "c": ((0, S0), (S1, P1), (0, P0)), "d": ((1, S1), (S0, P0), (1, P1))}[name]
    M = qk_m(Q, qk[0], qk[1], Cm) + pv_m(pv[0], pv[1], zero)
    ph = Phase(k or g.k, M); ph.batch = int(E_("BATA", "0"))
    ge = sm_place(ph, *sm, g0=2 if name != "b" else 0)
    if name in "ac":
        for n, gp in enumerate([0, 1, 5, 9, 13, 17, 21, 25]): ph.put(*vread(1 if name == "a" else 0, n), gp, gp)
    if name == "b":
        for f in range(8): ph.put(*kread(1, f), 9 + 2 * f)
    if name == "d":
        for f in range(8): ph.put(*kread(0, f), 5 + 4 * f, 5 + 4 * f)
    if dma and name != "b": place_kv(g, ph, name)
    cvt_place(ph, *sm, ge)
    if name == "a": ph.stream(items(f"v_xor_b32 v{vV0}, {R3 ^ R0}, v{vV0}\nv_xor_b32 v{vV1}, {R3 ^ R0}, v{vV1}"), 29)
    if name == "b": ph.put("v", f"v_xor_b32 v{vK}, {R2 ^ R4}, v{vK}", 27)
    if extra: extra(ph)
    ph.emit()

def tile(g, T):
    import gen_tail as GT
    k = g.k
    Q = Q1 if T == 1 else Q2
    sT = sT1 if T == 1 else sT2
    S0, S1, P0, P1 = S_, S_ + 16, P_, P_ + 8
    L = f"L_t{T}"
    def prologue(k, first):
        M = qk_m(Q, 0, S0, S0 if T == 1 else None, order="qt") + qk_m(Q, 1, S1, None)
        ph = Phase(k, M)
        if first:
            for f in range(8, 16): ph.put("l", qread(Q1, R0, f), f - 8, f - 8)
            for f in range(16): ph.g[8 + f].append(("l", qread(Q2, R1, f), None, 0))
        ge = []
        for j in range(16):
            gp = 4 * (j // 4) + 8 + (j % 4); ph.g[gp].append(("e", f"v_exp_f32 v{S0+j}, v{S0+j}", None, 0)); ge.append(gp)
        for f in range(8): g1 = ph.put(*kread(1, f), 24 + f, 24 + f)
        ph.put("x", f"v_xor_b32 v{vK}, {R2 ^ R4}, v{vK}", 31)
        if first: ph.put("x", f"""v_lshrrev_b32 v{vQR}, 4, v2
        v_lshlrev_b32 v{vQR}, 15, v{vQR}
        v_and_b32 v14, 255, v1
        v_add_u32 v{vQR}, v{vQR}, v14
        {f"s_and_b32 s{sD}, s2, 1" if E_("ODDX") else ""}
        {f"s_lshl_b32 s{sD}, s{sD}, 30" if E_("ODDX") else ""}
        {f"v_or_b32 v{vQR}, s{sD}, v{vQR}" if E_("ODDX") else ""}""", 31)
        ph.stream(adv_items() + items(f"s_sub_u32 s{sRem}, s{sT}, {1 if T == 1 else NPEEL}"), 0)
        cvt_place(ph, S0, P0, ge)
        ph.emit()
    if T == 1:
        k2 = K(); k2.label(L + "_start"); prologue(k2, False); k2(f"s_branch {L}_p1")
        g.tail.append("\n".join(k2.out))
        prologue(k, True); k.label(L + "_p1")
    elif FUSE:
        k2 = K(); k2.label(L + "_start"); prologue(k2, False); k2("s_waitcnt lgkmcnt(0)\ns_barrier")
        slot(g, Q, "c", zero=True, k=k2); slot(g, Q, "d", zero=True, k=k2); k2(f"s_branch {L}_p1")
        assert g.TS or [e[0] for e in k2.lg] == [e[0] for e in k.lg]
        k.lg = list(k2.lg)
        g.tail.append("\n".join(k2.out))
        k.label(L + "_p1")
    else:
        k.label(L + "_start"); prologue(k, False)
    if not (T == 2 and FUSE): k.waitvm(["kd", "vd", "k1", "v0"], True); k("s_barrier")
    if E_("TSA") == "r" and T == 2 or E_("TSA") == "m1" and T == 2: g.ts(force=True)
    if T == 1: k.vm = []
    st_bar = k.save()
    if T == 1:
        k(f"s_cmp_eq_u32 s{sT1}, 0\ns_cbranch_scc1 {L}_zero")
    if not (T == 2 and FUSE):
        slot(g, Q, "c", zero=True)
        slot(g, Q, "d", zero=True)
    if T == 2:
        for r in range(1, NPEEL):
            slot(g, Q, "a", extra=lambda ph: GT.peel_a(g, ph, r))
            def fb(ph): ph.stream(adv_items(), 10); GT.peel_b(g, ph, r)
            slot(g, Q, "b", extra=fb)
            k.waitvm(["kd", "vd", "ctx"] + (["pre"] if r == 4 else []), True); k("s_barrier")
            if E_("TSA") == "r": g.ts(force=True)
            if r == 1: g.run(g.flag_store(sCFO, []))
            slot(g, Q, "c")
            slot(g, Q, "d")
        k.vm = [e for e in k.vm if e[1] in ("kd", "vd")]
    if T == 1 or NPEEL == 8: k(f"s_cmp_eq_u32 s{sRem}, 0\ns_cbranch_scc1 {L}_diag")
    st_d = k.save()
    k.out.append(".p2align 3")
    k.label(L + "_loop")
    sl = slot_lv if E_("LV") else slot
    dv = DV and T == 1
    vflag = f"buffer_store_dword v6, v5, {srd(WS)}, s{sVFA} offen {WT}\ns_mov_b32 s{sVFA}, s{sKFO}\ns_mov_b32 s{sKFO}, {OOB}"
    sl(g, Q, "a", extra=(lambda ph: ph.stream(g.late[:8], 0, None, step=8)) if dv else None)
    def lb(ph):
        g1 = ph.stream(adv_items(), 10)
        if dv:
            for i, gp in enumerate([1, 7, 29, 33]): ph.put("s", g.late[8 + 2 * i][1], gp - 1, gp - 1); ph.put("m", g.late[9 + 2 * i][1], gp, gp, tag="kv2")
        if dv: ph.stream(items(f"""s_cmp_ge_u32 s{sE}, 6
        s_cselect_b32 s{sVP}, s{sVFP}, {OOB}
        s_cselect_b32 s{sVT}, 1, 0
        buffer_load_dword v3, v4, {srd(WS)}, s{sVP} offen {WT}""", "vf"), g1 + 1)
    sl(g, Q, "b", extra=lb)
    k.waitvm(["kd", "vd"], True); k("s_barrier")
    if dv: k.vm = k.vm[[e[1] for e in k.vm].index("vf"):]
    else: k.vm = []
    if dv:
        k(vflag + f"\ns_mov_b32 s{sVL}, 0x70000000", "flag")
    sl(g, Q, "c", extra=(lambda ph: ph.put("x", g.poll_check(3, 4, WS, f"s{sVP}", "VF", target=f"s{sVT}"), 33)) if dv else None)
    k.vm = [e for e in k.vm if e[1] not in ("flag", "kv2")]
    sl(g, Q, "d", extra=lambda ph: ph.put("s", f"s_sub_u32 s{sRem}, s{sRem}, 1", 26))
    k(f"s_cmp_lg_u32 s{sRem}, 0\ns_cbranch_scc1 {L}_loop")
    assert [e[1] for e in k.vm] == [e[1] for e in st_d[0]] and [e[0] for e in k.lg] == [e[0] for e in st_d[1]]
    k.label(L + "_diag")
    TM = lambda: g.ts(force=True) if E_("TSA") == f"m{T}" or (E_("TSA") == "r" and T == 2) else None
    TM()
    m2 = mask_items(MK, vT2, 1)
    def xa(ph):
        if T == 2: GT.diag_a(g, ph)
        ph.stream(m2[:10], 17)
    slot(g, Q, "a", Cm=MK, extra=xa)
    def xb(ph):
        if T == 1: ph.stream(adv_items(), 10)
        else: GT.diag_b(g, ph)
        ph.stream(m2[10:], 1)
    slot(g, Q, "b", extra=xb)
    k.waitvm(["kd", "vd", "pre"], True); k("s_barrier")
    if dv: k(vflag, "flag")
    if T == 1: k.restore(st_bar)
    TM()
    NO = [4, 5, 6, 7, 0, 1, 2, 3]
    snd = lambda grp, va, base: [("l", f"ds_write_b128 v{va}, {V(O_ + grp*64 + (i&1)*32 + 16 + (i>>1)*4)} offset:{base + i*1024}") for i in range(8)]
    rcv = lambda grp, va, base: [("l", f"ds_read_b128 {V(O_ + grp*64 + (i&1)*32 + 16 + (i>>1)*4)}, v{va} offset:{base + i*1024}") for i in range(8)]
    vS, RS = (vMW, R1) if T == 1 else (11, 0)
    def big(k, zero):
        ph = Phase(k, qk_m(Q, 1, S0, MK, order="qt") + pv_m(0, P0, zero, NO) + pv_m(1, P1, zero, NO))
        for i, n in enumerate(NO): ph.put(*vread(0, n), [0, 1, 4, 7, 10, 13, 16, 19][i], [0, 1, 4, 7, 10, 13, 16, 19][i])
        for i, n in enumerate(NO): ph.put(*vread(1, n), min(51, 37 + 2 * i), min(51, 37 + 2 * i))
        for i, it in enumerate(snd(0, vS, RS)): ph.put("l", it[1], [24, 27, 30, 33, 36, 40, 44, 48][i], [24, 27, 30, 33, 36, 40, 44, 48][i])
        ge1 = []
        for j in range(16): ge1.append(ph.put("e", f"v_exp_f32 v{S1+j}, v{S1+j}", (ge1[-1] if ge1 else 1) + 1))
        ge2 = []
        for j, gp in enumerate([25, 26, 28, 29, 31, 32, 34, 35, 37, 38, 39, 41, 42, 43, 45, 46]): ge2.append(ph.put("e", f"v_exp_f32 v{S0+j}, v{S0+j}", gp, gp))
        for i in range(8): ph.put("v", f"v_cvt_pk_bf16_f32 v{P1+i}, v{S1+2*i}, v{S1+2*i+1}", ge1[2 * i + 1] + 1, 30)
        for i in range(8): ph.put("v", f"v_cvt_pk_bf16_f32 v{P0+i}, v{S0+2*i}, v{S0+2*i+1}", [36, 40, 44, 47, 48, 49, 50, 50][i], [36, 40, 44, 47, 48, 49, 50, 50][i])
        lz = f"s_xor_b32 s{sB}, s{sVm}, 8192" if T == 1 else f"s_xor_b32 s{sB}, s{sW8}, {8192 + R0}"
        hz = f"s_xor_b32 s{sC}, s{sVm}, {R3 ^ R0}" if T == 1 else f"s_add_u32 s{sC}, s{sW8}, {R3}"
        ph.stream(items(f"""{lz}
        v_lshrrev_b32 v13, 1, v1
        v_add_u32 v12, s{sB}, v13"""), 0)
        gl = [2, 6, 11, 15, 20, 23, 29, 34]; gi = 0
        for it in (kdma(g) if T == 1 else GT.wodma(g, 1)):
            if it[0] == "m": ph.g[gl[gi]].append(("m", it[1], it[2], 0)); gi += 1
            else: ph.put("s", it[1], gl[gi - 1] + 1 if gi else 0, gl[gi] - 1 if gi < 8 else None)
        ph.put("v", f"v_mov_b32 v{LA+1}, v{LA+4}", 33, 33)
        if T == 2 and GT.TK < 32: ph.put("x", f"v_readfirstlane_b32 s{GT.sCND}, v10", 50)
        ph.put("x", f"""ds_write_b64 v12, v[{LA}:{LA+1}]
        {hz}
        v_xor_b32 v12, 8192, v12
        v_add_u32 v9, s{sC}, v1
        v_xor_b32 v8, 8192, v{vS}
        v_xor_b32 v10, 8192, v9""", 51)
        ph.emit()
    if T == 1:
        k2 = K(); k2.label(L + "_zero"); big(k2, True); k2(f"s_branch {L}_join")
        g.tail.append("\n".join(k2.out))
    big(k, False)
    k.label(L + "_join")
    g.ts(); TM()
    k(f"""v_xor_b32 v{vV0}, {R3 ^ R0}, v{vV0}
    v_xor_b32 v{vV1}, {R3 ^ R0}, v{vV1}
    s_waitcnt lgkmcnt(0)
    s_barrier""")
    TM()
    def check_txt(RL):
        return f"""v_cmp_le_f32 vcc, {H(LLO)}, v{RL+12}
            s_mov_b64 s[{sXB}:{sXB+1}], vcc
            v_cmp_ge_f32 vcc, {H(LHI)}, v{RL+8}
            s_and_b64 s[{sXB}:{sXB+1}], s[{sXB}:{sXB+1}], vcc
            s_cmp_eq_u64 s[{sXB}:{sXB+1}], -1
            s_cselect_b32 s{sXB}, s{sRedo}, 1
            s_cmp_lg_u32 s{sXB}, 0
            s_cbranch_scc1 {L}_redo
            {L}_safe:"""
    if T == 1 and FUSE:
        RL = MK
        def fins(grp):
            out = []
            for qt in range(2):
                b = O_ + grp * 64 + qt * 32; r = RL + 2 * (grp * 2 + qt)
                for u in range(2):
                    c = b + 8 * u
                    for i in range(8): out.append(("v", f"v_add_f32 v{c+i}, v{c+i}, v{c+16+i}"))
                    for i in range(8): out.append(("v", f"v_mul_f32 v{c+i}, v{c+i}, v{r}"))
                    for i in range(4): out.append(("v", f"v_cvt_pk_bf16_f32 v{c+i}, v{c+2*i}, v{c+2*i+1}"))
                    out.append(("x", f"buffer_store_dwordx4 {V(c)}, v{vL2 if qt else 1}, {srd(WS)}, s{sC if grp else sB} offen offset:{u*1024} {WT}", "ctx"))
            return out
        ph = Phase(k, pv_m(1, P0, False, NO) + qk_m(Q2, 0, S0, 0, order="qt") + qk_m(Q2, 1, S1, 0))
        rc = rcv(0, 8, RS); rc = [rc[i] for i in (0, 2, 4, 6, 1, 3, 5, 7)]
        for i, it in enumerate([("l", f"ds_read_b64 v[{RL+8}:{RL+9}], v12")] + rc[:4] + [kread(0, f) for f in range(4)] + rc[4:] + [kread(0, f) for f in range(4, 8)]): ph.put("l", it[1], i, i)
        for i, it in enumerate(snd(1, 10, 0)): ph.g[17 + 3 * i].append(("l", it[1], None, 0))
        ge = []
        for j, gp in enumerate([27, 28, 30, 31, 33, 34, 36, 37, 39, 40, 41, 42, 43, 44, 45, 46]): ph.g[gp].append(("e", f"v_exp_f32 v{S0+j}, v{S0+j}", None, 0)); ge.append(gp)
        for f in range(8): ph.g[42 + f].append(kread(1, f) + (None, 0))
        g1 = ph.stream(items(f"""s_lshl_b32 s{sB}, s{sT}, 20
        s_add_u32 s{sC}, s{sB}, s{sCHI}
        s_add_u32 s{sB}, s{sB}, s{sCLO}
        v_lshrrev_b32 v11, 4, v2
        v_lshrrev_b32 v13, 2, v1
        v_add_u32 v13, {R1}, v13
        s_xor_b32 s{sD}, s{sW8}, 8192
        v_add_u32 v14, s{sD}, v13
        v_cmp_eq_u32 vcc, 1, v11
        v_add_f32 v{RL}, v{RL+8}, v{LA}
        v_add_f32 v{RL+2}, v{RL+9}, v{LA+4}
        v_cndmask_b32 v12, v{LA}, v{LA+4}, vcc
        v_rcp_f32 v{RL}, v{RL}
        v_rcp_f32 v{RL+2}, v{RL+2}
        v_cmp_eq_u32 vcc, 2, v11
        v_cmp_eq_u32 s[{sXB}:{sXB+1}], 3, v11"""), 2, dense=1, sid=960)
        gv = g1
        f0 = fins(0); st0 = [it for it in f0 if it[0] == "x"]
        g1 = ph.stream([it for it in f0 if it[0] != "x"] + items(f"""v_cndmask_b32 v12, v12, v{LA+8}, vcc
        v_cndmask_b32 v12, v12, v{LA+12}, s[{sXB}:{sXB+1}]""") + [("x", "ds_write_b32 v14, v12")] + items(f"""v_and_b32 v14, {~192 & 0xffffffff}, v13
        v_add_u32 v14, s{sW8}, v14"""), g1 + 1, dense=int(E_("FDN", "2")), sid=960)
        print("fused lo ends", g1, file=sys.stderr)
        gp = gv - 2
        for it in vdma(g):
            ph.put("x", it[1], gp, tag=it[2] if len(it) > 2 else None)
            if it[0] == "m": gp += 3
        for i, it in enumerate(st0): ph.put("x", it[1], max(gp + 4 * i, g1 if i == 3 else 0), tag="ctx")
        ph.stream(adv_items() + items(f"s_sub_u32 s{sRem}, s{sT2}, {NPEEL}"), gp + 1)
        for i in range(8): ph.g[min(49, ge[2 * i + 1] + 2)].append(("v", f"v_cvt_pk_bf16_f32 v{P0+i}, v{S0+2*i}, v{S0+2*i+1}", None, 0))
        ph.put("x", f"v_xor_b32 v{vK}, {R2 ^ R4}, v{vK}", 49)
        ph.emit()
        TM()
        k.waitvm(["kd", "vd"], True); k("s_barrier")
        TM()
        hi = fins(1); NH = int(E_("FNH", "63"))
        def xc(ph):
            rc = rcv(1, 9, 0); rc = [rc[i] for i in (0, 2, 4, 6, 1, 3, 5, 7)]
            rd = [f"ds_read_b32 v{RL+4}, v14 offset:128", f"ds_read_b32 v{RL+6}, v14 offset:192"] + [it[1] for it in rc] + [f"ds_read_b32 v{RL+8+w}, v13 offset:{w*8192}" for w in range(4)]
            for i, t in enumerate(rd): ph.g[[0, 1, 2, 4, 6, 8, 10, 12, 14, 16, 18, 19, 20, 22][i]].append(("l", t, None, 0))
            ph.stream(items(f"""v_add_f32 v{RL+4}, v{RL+4}, v{LA+8}
            v_add_f32 v{RL+6}, v{RL+6}, v{LA+12}
            v_rcp_f32 v{RL+4}, v{RL+4}
            v_rcp_f32 v{RL+6}, v{RL+6}""") + hi[:NH], 7, dense=3)
        slot(g, Q2, "c", zero=True, Cm=0, extra=xc)
        def xd(ph):
            g2 = ph.stream(hi[NH:] + items(f"""v_add_f32 v{RL+8}, v{RL+8}, v{RL+9}
            v_add_f32 v{RL+10}, v{RL+10}, v{RL+11}
            v_min_f32 v{RL+12}, v{RL+8}, v{RL+10}
            v_add_f32 v{RL+8}, v{RL+8}, v{RL+10}"""), 0, dense=2)
            assert g2 < 14, g2
            ph.put("x", check_txt(RL), g2 + 1)
        slot(g, Q2, "d", zero=True, Cm=0, extra=xd)
        redo(g, T)
        g.ts(); TM()
        return
    RL = S1
    ph = Phase(k, pv_m(1, P0, False, NO))
    ph.stream([("l", f"ds_read_b64 v[{RL+8}:{RL+9}], v12")] + rcv(0, 8, RS), 0)
    ph.stream(items(f"""s_lshl_b32 s{sB}, s{sT}, 20
    s_add_u32 s{sC}, s{sB}, s{sCHI}
    s_add_u32 s{sB}, s{sB}, s{sCLO}
    v_lshrrev_b32 v11, 4, v2
    v_lshrrev_b32 v13, 2, v1
    v_add_u32 v13, {R1 if T == 1 else R4}, v13
    s_xor_b32 s{sD}, s{sW8}, 8192
    v_add_u32 v14, s{sD}, v13
    v_cmp_eq_u32 vcc, 1, v11
    v_add_f32 v{RL}, v{RL+8}, v{LA}
    v_add_f32 v{RL+2}, v{RL+9}, v{LA+4}
    v_cndmask_b32 v12, v{LA}, v{LA+4}, vcc
    v_rcp_f32 v{RL}, v{RL}
    v_rcp_f32 v{RL+2}, v{RL+2}
    v_cmp_eq_u32 vcc, 2, v11
    v_cmp_eq_u32 s[{sXB}:{sXB+1}], 3, v11"""), 0)
    sn = snd(1, 9, 0)
    for i in range(3): ph.put("l", sn[i][1], 12 + 2 * i, 12 + 2 * i)
    ph.emit()
    TM()
    def fin(grp):
        out = []
        for qt in range(2):
            b = O_ + grp * 64 + qt * 32; r = RL + 2 * (grp * 2 + qt)
            so = sC if grp else sB
            for u in range(2):
                c = b + 8 * u
                for i in range(0, 8, 2): out.append(("v", f"v_pk_add_f32 v[{c+i}:{c+i+1}], v[{c+i}:{c+i+1}], v[{c+16+i}:{c+16+i+1}]"))
                for i in range(0, 8, 2): out.append(("v", f"v_pk_mul_f32 v[{c+i}:{c+i+1}], v[{c+i}:{c+i+1}], v[{r}:{r+1}] op_sel_hi:[1,0]"))
                for i in range(4): out.append(("v", f"v_cvt_pk_bf16_f32 v{c+i}, v{c+2*i}, v{c+2*i+1}"))
                out.append(("m", f"buffer_store_dwordx4 {V(c)}, v{vL2 if qt else 1}, {srd(WS)}, s{so} offen offset:{u*1024} {E_('CXP', WT)}", "ctx"))
        return out
    ex = GT.merge_x(g) if T == 2 else vdma(g)
    lo = fin(0)
    k(f"""v_cndmask_b32 v12, v12, v{LA+8}, vcc
    v_cndmask_b32 v12, v12, v{LA+12}, s[{sXB}:{sXB+1}]""")
    ne = len(ex) // 2 if T == 1 else len(ex)
    for i in range(5):
        g.run([sn[3 + i]] + lo[i * 11:(i + 1) * 11] + ex[i * ne // 5:(i + 1) * ne // 5])
    k(f"""ds_write_b32 v14, v12
    v_and_b32 v14, {~192 & 0xffffffff}, v13
    v_add_u32 v14, s{sW8}, v14""")
    if E_("TSA") != "r": TM()
    k("s_waitcnt lgkmcnt(0)\ns_barrier")
    TM()
    k(f"ds_read_b32 v{RL+4}, v14 offset:128\nds_read_b32 v{RL+6}, v14 offset:192")
    rc = rcv(1, 10, 0)
    g.run([rc[i] for i in (0, 2, 4, 6, 1, 3, 5, 7)])
    for w in range(4): k(f"ds_read_b32 v{RL+8+w}, v13 offset:{w*8192}")
    k(f"""v_add_f32 v{RL+4}, v{RL+4}, v{LA+8}
    v_add_f32 v{RL+6}, v{RL+6}, v{LA+12}
    v_rcp_f32 v{RL+4}, v{RL+4}
    v_rcp_f32 v{RL+6}, v{RL+6}""")
    hi = fin(1); ex = ex[ne:]
    nxt = [kread(0, f) for f in range(8)] if T == 1 else GT.oread(0) + GT.oread(1)
    for i in range(4):
        g.run(hi[i * 13:(i + 1) * 13] + ex[i * len(ex) // 4:(i + 1) * len(ex) // 4])
        if i == 1:
            k(f"""v_add_f32 v{RL+8}, v{RL+8}, v{RL+9}
            v_add_f32 v{RL+10}, v{RL+10}, v{RL+11}
            v_min_f32 v{RL+12}, v{RL+8}, v{RL+10}
            v_add_f32 v{RL+8}, v{RL+8}, v{RL+10}
            v_cmp_le_f32 vcc, {H(LLO)}, v{RL+12}
            s_mov_b64 s[{sXB}:{sXB+1}], vcc
            v_cmp_ge_f32 vcc, {H(LHI)}, v{RL+8}
            s_and_b64 s[{sXB}:{sXB+1}], s[{sXB}:{sXB+1}], vcc
            s_cmp_eq_u64 s[{sXB}:{sXB+1}], -1
            s_cselect_b32 s{sXB}, s{sRedo}, 1
            s_cmp_lg_u32 s{sXB}, 0
            s_cbranch_scc1 {L}_redo""")
            k.label(L + "_safe")
        if i >= 2: g.run(nxt[(i - 2) * len(nxt) // 2:(i - 1) * len(nxt) // 2])
    redo(g, T)
    g.ts(); TM()

def redo(g, T):
    L = f"L_t{T}"
    Q = Q1 if T == 1 else Q2
    sT = sT1 if T == 1 else sT2
    k = K(); S0, S1, MX = S_, S_ + 16, P_
    k.label(L + "_redo")
    k(f"s_cmp_eq_u32 s{sRedo}, 0\ns_cbranch_scc1 {L}_max\ns_mov_b32 s{sRedo}, 0")
    for i in range(16): k(f"v_mov_b32 v{CI+i}, 0")
    k(f"s_nop 1\ns_branch {L}_safe")
    k.label(L + "_max")
    k(f"""s_waitcnt vmcnt(0) lgkmcnt(0)
    s_barrier
    s_mov_b32 s{sRedo}, 1
    s_and_b32 s{sB}, s{sW}, 1
    s_lshl_b32 s{sB}, s{sB}, 13
    s_sub_u32 s{sC}, s{sKV}, s{sW8}
    s_add_u32 s{sC}, s{sC}, s{sB}
    s_mov_b32 s{sRem}, s{sT}""")
    if T == 2:
        k(f"s_mov_b32 s{sRPL}, 0")
        if PFK: k(f"s_mov_b32 s{sPLB}, {OOB - 0x10000}")
        for i in range(4): k(f"v_mov_b32 v{vSEN+i}, -1")
    for t in range(4): k(f"v_mov_b32 v{MX+t}, 0xff800000")
    def kld(ab):
        k(f"s_add_u32 s{sB}, s{sC}, {ab*16384}")
        for f in range(8): k(f"buffer_load_dwordx4 {A(KF+4*f)}, v{vL2 if f >= 4 else 1}, {srd(WS)}, s{sB} offen offset:{(f&3)*1024}")
    def blk(grp, S, C):
        for m in qk_m(Q, grp, S, C): k(m)
    def mx(grp, S):
        for qt in range(2):
            for i in range(0, 8, 2): k(f"v_max3_f32 v{MX+grp*2+qt}, v{MX+grp*2+qt}, v{S+8*qt+i}, v{S+8*qt+i+1}")
    k.label(L + "_maxl")
    k(f"s_cmp_eq_u32 s{sRem}, 0\ns_cbranch_scc1 {L}_maxd")
    for ab in range(2):
        kld(ab); blk(0, S0, None); blk(1, S1, None); mx(0, S0); mx(1, S1)
    k(f"s_add_u32 s{sC}, s{sC}, {KVS}\ns_sub_u32 s{sRem}, s{sRem}, 1\ns_nop 7\ns_branch {L}_maxl")
    k.label(L + "_maxd")
    kld(0)
    for it in mask_items(MK, vT1, 0): k(it[1])
    blk(0, S0, MK); blk(1, S1, None); mx(0, S0); mx(1, S1)
    kld(1)
    for it in mask_items(MK, vT2, 1): k(it[1])
    blk(1, S0, MK); mx(1, S0)
    for sw in ("v_permlane16_swap_b32", "v_permlane32_swap_b32"):
        for t in range(4): k(f"v_mov_b32 v{MX+4+t}, v{MX+t}")
        for t in range(4): k(f"{sw} v{MX+t}, v{MX+4+t}")
        for t in range(4): k(f"v_max_f32 v{MX+t}, v{MX+t}, v{MX+4+t}")
    k(f"""ds_write_b128 v{vMW}, {V(MX)} offset:{R1}
    v_xor_b32 v8, 8192, v{vMW}
    s_waitcnt lgkmcnt(0)
    s_barrier
    ds_read_b128 {V(MX+4)}, v8 offset:{R1}""")
    for t in range(4): k(f"v_max_f32 v{MX+t}, v{MX+t}, v{MX+4+t}")
    for t in range(4):
        for r in range(4): k(f"v_sub_f32 v{CI+4*t+r}, 0, v{MX+t}")
    k(f"s_mov_b32 s{sE}, 0" if T == 1 else f"s_add_u32 s{sE}, s{sN1}, 1")
    k(f"""s_and_b32 s{sB}, s{sE}, 1
    s_mul_i32 s{sKm}, s{sB}, {R2 ^ R4}
    s_xor_b32 s{sKm}, s{sKm}, {R2}
    s_mul_i32 s{sVm}, s{sB}, {R3 ^ R0}
    s_xor_b32 s{sVm}, s{sVm}, {R3}
    v_and_b32 v{vK}, 0x7fff, v{vK}
    v_or_b32 v{vK}, s{sKm}, v{vK}
    v_and_b32 v{vV0}, 0x7fff, v{vV0}
    v_or_b32 v{vV0}, s{sVm}, v{vV0}
    v_and_b32 v{vV1}, 0x7fff, v{vV1}
    v_or_b32 v{vV1}, s{sVm}, v{vV1}
    s_add_u32 s{sKm}, s{sKm}, s{sW8}
    s_add_u32 s{sVm}, s{sVm}, s{sW8}
    s_add_u32 s{sE}, s{sE}, 2
    s_mov_b32 s{sKp}, s{sKV}""")
    if DESC and T == 2: k(f"s_sub_u32 s{sKp}, s{sT2}, 1\ns_mul_i32 s{sKp}, s{sKp}, {KVS}\ns_add_u32 s{sKp}, s{sKp}, s{sKV}")
    k(f"s_add_u32 s{sVo}, s{sKp}, 32768")
    for it in kdma(g) + vdma(g): k(it[1])
    if DESC and T == 2: k(f"s_sub_u32 s{sKp}, s{sKp}, {KVS}")
    else:
        k(f"""s_cmp_eq_u32 s{sT}, 0
        s_cselect_b32 s{sKp}, {14 if DESC else 0}, 1
        s_mul_i32 s{sKp}, s{sKp}, {KVS}
        s_add_u32 s{sKp}, s{sKp}, s{sKV}""")
    for it in kdma(g): k(it[1])
    if T == 1:
        for it in first_c(1, True) + mask_items(MK, vT2, 1): k(it[1])
        k(f"s_cmp_eq_u32 s{sT1}, 0\ns_cbranch_scc1 {L}_mk")
        for it in mask_items(MK, vT1, 0): k(it[1])
        k.label(L + "_mk")
    k("s_waitcnt vmcnt(0) lgkmcnt(0)\ns_barrier")
    for f in range(8): k(kread(0, f)[1])
    k(f"s_waitcnt lgkmcnt(0)\ns_branch {L}_start")
    g.tail.append("\n".join(k.out))

def attention(g):
    k = g.k; ACC = g.ACC
    u, tt = g.qlast
    b = ACC + (tt * 8 + 2 * u) * 4
    k(f"v_add_u32 v{vL2}, 4096, v1")
    for i in range(4): k(f"v_cvt_pk_bf16_f32 v{b+i}, v{b+2*i}, v{b+2*i+1}")
    k(f"ds_write_b128 v{vMW}, {V(b)} offset:{(tt>>1)*R1 + ((tt&1)*4+u)*1024}")
    k.waitvm(["k0"], True); k("s_barrier")
    for f in range(4): k(qread(Q1, R0, f)); k(kread(0, f)[1])
    for f in range(4, 8): k(kread(0, f)[1])
    for f in range(4, 8): k(qread(Q1, R0, f))
    g.ts()
    tile(g, 1)
    tile(g, 2)

def qdump(g):
    k = g.k; ACC = g.ACC
    k(f"s_lshl_b32 s{sB}, s2, 16\ns_lshl_b32 s{sC}, s{sW}, 14\ns_add_u32 s{sB}, s{sB}, s{sC}\ns_add_u32 s{sB}, s{sB}, {WS_CTX}")
    for tt in range(4):
        for u in range(4):
            b = ACC + (tt * 8 + 2 * u) * 4
            for i in range(4): k(f"v_cvt_pk_bf16_f32 v{b+i}, v{b+2*i}, v{b+2*i+1}")
            k(f"buffer_store_dwordx4 {V(b)}, v1, {srd(WS)}, s{sB} offen offset:{u*1024}")
        k(f"s_add_u32 s{sB}, s{sB}, 4096")
```

```python
from common import *
from gen_attn import *
sFO, sWOB, sXL, sPS, sTOK1, sTOK2, sPC, sKEY, sIDX, sCND, sCG, sC2 = 64, 65, 74, 75, 68, 69, 70, 71, 72, 73, 66, 67
CNT = E_("CNT", "")
sPM = 12
ROT = E_("OROT", "1") == "1"
sLM = 70
OQB = [R1, R2, R0, R3]
WOV = 8
OA = 56
WR0, OACC, X2, MW = 192, 64, 128, 128
def X1R(f): return 64 + 4 * f if f < 16 else 4 * (f - 16)
QM = E_("QM", "1") == "1"
PCH, PKH = ([0, 0, 1, 1], [0, 1, 0, 1]) if QM else ([0, 1, 0, 1], [0, 0, 1, 1])
def wodma(g, c, vb=24):
    it = []
    for h in range(2):
        it += g.dma4(WO, [vb + i for i in range(4)], (sW8, OQB[c] + h * 4096), (sWOB, PCH[c] * 128 + PKH[c] * 262144 + h * 32768), f"wo{c}", True)
    return it
def xload(pas, f):
    off = f * 1024
    dst = A(X1R(f)) if pas == 0 else V(X2 + 4 * f)
    return [("s", f"s_xor_b32 s{sXL}, s{sXC}, {off & ~4095}"), ("m", f"buffer_load_dwordx4 {dst}, v1, {srd(WS)}, s{sXL} offen offset:{off & 4095}")]
def xc_items(sT):
    return items(f"""s_lshl_b32 s{sXC}, s{sT}, 2
    s_add_u32 s{sXC}, s{sXC}, s{sW}
    s_lshl_b32 s{sXC}, s{sXC}, 3
    s_add_u32 s{sXC}, s{sXC}, s{sX}
    s_lshl_b32 s{sXC}, s{sXC}, 2
    s_add_u32 s{sXC}, s{sXC}, {f"s{sJ}" if ROT else "0"}
    s_lshl_b32 s{sXC}, s{sXC}, 13
    s_add_u32 s{sXC}, s{sXC}, {WS_CTX}""")

def moe_setup():
    return items(f"""s_lshr_b32 s{sB}, s2, 3
    s_mul_i32 s{sCG}, s{sX}, 28
    s_add_u32 s{sCG}, s{sCG}, s{sB}
    s_cmp_lt_u32 s{sB}, 28
    s_cselect_b32 s{sCG}, s{sCG}, 255
    s_lshl_b32 s{sC2}, s{sX}, 3
    s_add_u32 s{sC2}, s{sC2}, s{sB}
    s_sub_u32 s{sC2}, s{sC2}, 24
    s_cmp_ge_u32 s{sB}, 24
    s_cselect_b32 s{sC2}, s{sC2}, 255""")
WS_GP, WS_UP, WS_DP = 0x400000, 0x600000, 0x800000
RA, RAi, RB, RBi = ("v_lshrrev_b32", 3, "v_and_b32", 7) if E_("RPT", "1") == "0" else ("v_and_b32", 7, "v_lshrrev_b32", 3)
def repack_loads(t0, s0):
    return items(f"""s_lshl_b32 s{s0}, s2, 2
    s_add_u32 s{s0}, s{s0}, s{sW}
    s_and_b32 s{sB}, s{s0}, 31
    s_lshr_b32 s{sC}, s{s0}, 5
    s_sub_u32 s{sC}, s{sC}, 4
    s_and_b32 s{sC}, s{sC}, 31
    {f"s_bitcmp1_b32 s2, 0" if E_("ODDX") else ""}
    {f"s_cselect_b32 s{sC}, 31, s{sC}" if E_("ODDX") else ""}
    {RA} v{t0+1}, {RAi}, v2
    v_and_b32 v{t0}, 4, v{t0+1}
    v_and_b32 v{t0+2}, 2, v{t0+1}
    v_lshl_add_u32 v{t0}, v{t0+2}, 3, v{t0}
    v_and_b32 v{t0+2}, 1, v{t0+1}
    v_lshl_add_u32 v{t0}, v{t0+2}, 1, v{t0}
    v_mul_u32_u24 v{t0}, 3584, v{t0}
    {RB} v{t0+2}, {RBi}, v2
    v_lshl_add_u32 v{t0}, v{t0+2}, 4, v{t0}
    v_lshlrev_b32 v{t0+1}, 13, v{t0+1}
    v_lshl_add_u32 v{t0+1}, v{t0+2}, 4, v{t0+1}
    s_lshr_b32 s{s0}, s{sB}, 1
    s_lshl_b32 s{s0}, s{s0}, 2
    s_and_b32 s{sB}, s{sB}, 1
    s_add_u32 s{s0}, s{s0}, s{sB}
    s_mul_i32 s{s0}, s{s0}, {8*3584}
    s_lshl_b32 s{sB}, s{sC}, 7
    s_add_u32 s{s0}, s{s0}, s{sB}
    s_cmp_lt_u32 s{sC}, 28
    s_cselect_b32 s{s0}, s{s0}, {OOB}
    buffer_load_dwordx4 {A(PRE)}, v{t0}, {srd(WG_)}, s{s0} offen {CNT}
    buffer_load_dwordx4 {A(PRE+4)}, v{t0}, {srd(WG_)}, s{s0} offen offset:3584 {CNT}
    buffer_load_dwordx4 {A(PRE+8)}, v{t0}, {srd(WU_)}, s{s0} offen {CNT}
    buffer_load_dwordx4 {A(PRE+12)}, v{t0}, {srd(WU_)}, s{s0} offen offset:3584 {CNT}
    s_lshl_b32 s{s0}, s{sC}, 16
    s_lshl_b32 s{sB}, s{sW}, 11
    s_add_u32 s{s0}, s{s0}, s{sB}
    s_lshl_b32 s{sB}, s{sX}, 7
    s_add_u32 s{s0}, s{s0}, s{sB}
    buffer_load_dwordx4 {A(PRE+16)}, v{t0+1}, {srd(WD_)}, s{s0} offen {CNT}
    buffer_load_dwordx4 {A(PRE+20)}, v{t0+1}, {srd(WD_)}, s{s0} offen offset:1024 {CNT}""", "ex")
def repack_stores(t0, s0):
    return items(f"""s_lshr_b32 s{sC}, s2, 3
    s_sub_u32 s{sC}, s{sC}, 4
    s_and_b32 s{sC}, s{sC}, 31
    {f"s_bitcmp1_b32 s2, 0" if E_("ODDX") else ""}
    {f"s_cselect_b32 s{sC}, 31, s{sC}" if E_("ODDX") else ""}
    {RA} v{t0+2}, {RAi}, v2
    v_lshlrev_b32 v{t0+2}, 4, v{t0+2}
    {RB} v{t0+1}, {RBi}, v2
    v_lshl_add_u32 v{t0}, v{t0+1}, 13, v{t0+2}
    v_mul_u32_u24 v{t0+1}, 28672, v{t0+1}
    v_add_u32 v{t0+1}, v{t0+1}, v{t0+2}
    s_lshl_b32 s{s0}, s{sX}, 2
    s_add_u32 s{s0}, s{s0}, s{sW}
    s_lshl_b32 s{s0}, s{s0}, 7
    s_lshl_b32 s{sB}, s{sC}, 16
    s_add_u32 s{s0}, s{s0}, s{sB}
    s_add_u32 s{s0}, s{s0}, {WS_GP}
    s_cmp_lt_u32 s{sC}, s{sRPL}
    s_cselect_b32 s{s0}, s{s0}, {OOB - 0x400000}
    buffer_store_dwordx4 {A(PRE)}, v{t0}, {srd(WS)}, s{s0} offen {WT}
    s_add_u32 s{s0}, s{s0}, 4096
    buffer_store_dwordx4 {A(PRE+4)}, v{t0}, {srd(WS)}, s{s0} offen {WT}
    s_add_u32 s{s0}, s{s0}, {WS_UP - WS_GP - 4096}
    buffer_store_dwordx4 {A(PRE+8)}, v{t0}, {srd(WS)}, s{s0} offen {WT}
    s_add_u32 s{s0}, s{s0}, 4096
    buffer_store_dwordx4 {A(PRE+12)}, v{t0}, {srd(WS)}, s{s0} offen {WT}
    s_mul_i32 s{s0}, s{sX}, {8*28672}
    s_mul_i32 s{sB}, s{sW}, {2*3584}
    s_add_u32 s{s0}, s{s0}, s{sB}
    s_lshl_b32 s{sB}, s{sC}, 7
    s_add_u32 s{s0}, s{s0}, s{sB}
    s_add_u32 s{s0}, s{s0}, {WS_DP}
    s_cmp_lt_u32 s{sC}, s{sRPL}
    s_cselect_b32 s{s0}, s{s0}, {OOB}
    buffer_store_dwordx4 {A(PRE+16)}, v{t0+1}, {srd(WS)}, s{s0} offen {WT}
    buffer_store_dwordx4 {A(PRE+20)}, v{t0+1}, {srd(WS)}, s{s0} offen offset:3584 {WT}""", "pre")
MG, MD = 112, 128
def moe_loads(t0, s0):
    t = f"""v_lshlrev_b32 v{t0}, 4, v0
    v_cmp_gt_u32 vcc, 224, v0
    v_mov_b32 v{t0+1}, {OOB}
    v_cndmask_b32 v{t0+1}, v{t0+1}, v{t0}, vcc
    s_lshl_b32 s{s0}, s{sCG}, 13
    s_add_u32 s{s0}, s{s0}, {WS_GP}
    s_cmp_lt_u32 s{sCG}, 224
    s_cselect_b32 s{s0}, s{s0}, {OOB - 0x400000}
    buffer_load_dwordx4 {V(MG)}, v{t0}, {srd(WS)}, s{s0} offen
    s_add_u32 s{s0}, s{s0}, 4096
    buffer_load_dwordx4 {V(MG+4)}, v{t0}, {srd(WS)}, s{s0} offen
    s_add_u32 s{s0}, s{s0}, {WS_UP - WS_GP - 4096}
    buffer_load_dwordx4 {V(MG+8)}, v{t0}, {srd(WS)}, s{s0} offen
    s_add_u32 s{s0}, s{s0}, 4096
    buffer_load_dwordx4 {V(MG+12)}, v{t0}, {srd(WS)}, s{s0} offen
    s_mul_i32 s{s0}, s{sC2}, 28672
    s_add_u32 s{s0}, s{s0}, {WS_DP}
    s_cmp_lt_u32 s{sC2}, 64
    s_cselect_b32 s{s0}, s{s0}, {OOB - 0x400000}
    """
    for r in range(8):
        t += f"buffer_load_dwordx4 {V(MD+4*r)}, v{t0+1}, {srd(WS)}, s{s0} offen offset:{(r&1)*3584}\n"
        if r & 1 and r < 7: t += f"s_add_u32 s{s0}, s{s0}, 7168\n"
    return items(t, "ex")
def merge1_extra(g):
    t = f"""v_lshlrev_b32 v12, 3, v0
    s_lshl_b32 s{sC}, s2, 11
    s_add_u32 s{sC}, s{sC}, {WS_CAND}
    buffer_store_dwordx2 v[{vSEN}:{vSEN+1}], v12, {srd(WS)}, s{sC} offen {WT}
    s_lshl_b32 s{sC}, s2, 6
    s_add_u32 s{sC}, s{sC}, {WS_KEY}
    v_mov_b32 v13, 0
    buffer_store_dword v13, v7, {srd(WS)}, s{sC} offen {WT}
    s_lshl_b32 s{sC}, s{sCG}, 6
    s_add_u32 s{sC}, s{sC}, {WS_ACT}
    buffer_store_dwordx4 {V(vSEN)}, v7, {srd(WS)}, s{sC} offen {WT}
    buffer_store_dwordx4 {V(vSEN)}, v7, {srd(WS)}, s{sC} offen offset:16 {WT}
    """
    return items(t, "pre")
def late_mod_loads(g, b):
    it = items(f"""v_lshlrev_b32 v{b+4}, 2, v0
    v_cmp_gt_u32 vcc, 8, v0
    v_mov_b32 v{b+5}, {OOB}
    v_cndmask_b32 v{b+4}, v{b+5}, v{b+4}, vcc
    s_lshl_b32 s{sLM}, s2, 5
    s_add_u32 s{sLM}, s{sLM}, {WS_MODP + 4096}""")
    ld = []
    for q in range(4):
        ld += [("m", f"buffer_load_dword v{b+q}, v{b+4}, {srd(WS)}, s{sLM} offen"), ("s", f"s_add_u32 s{sLM}, s{sLM}, 12288")]
    return it, ld
def late_mod_fin(g, b):
    return items(f"""v_add_f32 v{b}, v{b}, v{b+1}
    v_add_f32 v{b+2}, v{b+2}, v{b+3}
    v_add_f32 v{b}, v{b}, v{b+2}
    v_cvt_pk_bf16_f32 v{b}, v{b}, v{b}
    v_and_b32 v{b}, 0xffff0000, v{b}
    s_lshr_b32 s{sLM}, s2, 6
    s_cmp_eq_u32 s{sLM}, 2
    s_cselect_b32 s{sLM}, 1.0, 0
    v_add_f32 v{b}, s{sLM}, v{b}
    v_cvt_pk_bf16_f32 v{b}, v{b}, v{b}
    v_and_b32 v{b}, 0xffff0000, v{b}
    s_lshl_b32 s{sLM}, s2, 5
    s_add_u32 s{sLM}, s{sLM}, {WS_MOD + 4096}
    buffer_store_dword v{b}, v{b+4}, {srd(WS)}, s{sLM} offen {WT}""", "ex")
def wo_voff(b):
    return items(f"""v_lshrrev_b32 v{b+1}, 1, v2
    v_lshrrev_b32 v{b+2}, 4, v2
    v_xor_b32 v{b+1}, v{b+1}, v{b+2}
    v_and_b32 v{b+1}, 3, v{b+1}
    v_lshlrev_b32 v{b+1}, 5, v{b+1}
    v_and_b32 v{b+2}, 1, v2
    v_lshl_add_u32 v{b+1}, v{b+2}, 4, v{b+1}
    v_lshrrev_b32 v{b}, 3, v2
    v_lshl_add_u32 v{b}, v{b}, 10, v{b+1}
    v_bfe_u32 v4, v2, 1, 2
    v_lshlrev_b32 v4, 11, v4
    v_lshl_add_u32 v4, v{b+2}, 6, v4
    v_add_u32 v{b+1}, 7168, v{b}
    v_add_u32 v{b+2}, {2*7168}, v{b}
    v_add_u32 v{b+3}, {3*7168}, v{b}""")
def cold_loads(t0, s0):
    return repack_loads(t0, s0) + items(f"""
    v_lshrrev_b32 v{t0+1}, 1, v2
    v_and_b32 v{t0+1}, 15, v{t0+1}
    v_lshlrev_b32 v{t0+1}, 10, v{t0+1}
    v_and_b32 v{t0+2}, 1, v2
    v_lshl_add_u32 v{t0+1}, v{t0+2}, 7, v{t0+1}
    s_lshl_b32 s{s0}, s{sP}, 2
    s_add_u32 s{s0}, s{s0}, s{sW}
    s_lshl_b32 s{s0}, s{s0}, 14
    buffer_load_dword a60, v{t0+1}, {srd(WO)}, s{s0} offen""", "ex")
def split_m(its, n):
    c = 0
    for i, it in enumerate(its):
        if it[0] == "m":
            c += 1
            if c == n: return its[:i + 1], its[i + 1:]
    return its, []
def peel_plan(g):
    pf = lambda a, b: sum((prefill_items(i) for i in range(a, b)), [])
    rs = []; rest = repack_stores(12, sPF)
    for i in range(6):
        a, rest = split_m(rest, 1); rs.append(a)
    wo = wodma(g, 0, 8)
    xl = lambda a, b: sum((xload(0, f) for f in range(a, b)), [])
    fsig = items(f"""s_lshl_b32 s{sFO}, s2, 6
    s_add_u32 s{sFO}, s{sFO}, {WS_FF}
    buffer_store_dword v6, v7, {srd(WS)}, s{sFO} offen {WT}""", "flag")
    cpoll = [("m", f"buffer_load_dword v3, v4, {srd(WS)}, s{sCFP} offen {WT}")]
    vp = items(f"""s_cmp_eq_u32 s{sRedo}, 0
    s_cselect_b32 s{sVP}, s{sVFP}, {OOB}
    s_cselect_b32 s{sVT}, 1, 0
    buffer_load_dword v3, v4, {srd(WS)}, s{sVP} offen {WT}""") if DV else []
    vc = [("x", g.poll_check(3, 4, WS, f"s{sVP}", "VF2", target=f"s{sVT}"), None, 12)] if DV else []
    fc = first_c(2); wv = wo_voff(8)
    return [([pf(0, 2), rs[0]], [rs[1] + pf(2, 7), wv[:8]]),
            ([vp + rs[2] + pf(7, 10)], [rs[3] + pf(10, 14), vc + wv[8:]]),
            ([rs[4] + pf(14, 16) + cpoll], [rs[5] + merge1_extra(g), fc[:6]]),
            ([xc_items(sT1) + [("x", g.poll_check(3, 4, WS, f"s{sCFP}", "C1"))] + xl(0, 5)], [wo[:6] + xl(5, 8), fc[6:12]]),
            ([fsig + xl(8, 13)], [wo[6:] + xl(13, 16), fc[12:18]]),
            ([xl(16, 22)], [xl(22, 28), fc[18:26]]),
            ([xl(28, 32), fc[26:]], [])]
def peel_a(g, ph, r):
    for st in peel_plan(g)[r - 1][0]: ph.stream(st, 8 if any(it[0] == "m" for it in st[:3]) else 0)
def peel_b(g, ph, r):
    for st in peel_plan(g)[r - 1][1]: ph.stream(st, 0)
def diag_a(g, ph):
    if TK < 32:
        ph.stream(items(f"""v_mov_b32 v10, 1
        s_lshl_b32 s{sCND}, s{sP}, 2
        s_add_u32 s{sCND}, s{sCND}, s{sW}
        s_lshl_b32 s{sCND}, s{sCND}, 6
        s_add_u32 s{sCND}, s{sCND}, {WS_LF + 32}"""), 8)
    ph.stream(items("".join(f"v_mov_b32 v{24+i}, v{8+i}\n" for i in range(4)) + f"""v_add_u32 v11, {R4}, v{vMW}
    v_lshlrev_b32 v12, 6, v0
    s_mov_b32 s{sKEY}, {WS_FF}
    buffer_load_dword v3, v12, {srd(WS)}, s{sKEY} offen {WT}
    v_bfe_u32 v13, v2, 1, 4
    v_lshlrev_b32 v13, 10, v13
    v_and_b32 v14, 1, v2
    v_lshl_add_u32 v13, v14, 7, v13
    s_lshl_b32 s{sXL}, s{sP}, 2
    s_add_u32 s{sXL}, s{sXL}, s{sW}
    s_lshl_b32 s{sXL}, s{sXL}, 14
    {f"buffer_load_dword v14, v13, {srd(WO)}, s{sXL} offen" if E_("WOT", "1") == "1" else ""}"""), 0, dense=1)
def diag_b(g, ph):
    if E_("XT", "1") == "1":
        ph.stream(items(f"""s_and_b32 s{sTOK1}, s2, 31
        s_lshl_b32 s{sTOK1}, s{sTOK1}, 2
        s_add_u32 s{sTOK1}, s{sTOK1}, s{sW}
        s_lshl_b32 s{sTOK2}, s{sT1}, 7
        s_add_u32 s{sTOK1}, s{sTOK1}, s{sTOK2}
        s_lshl_b32 s{sTOK1}, s{sTOK1}, 10
        s_sub_u32 s{sTOK2}, s{sT2}, s{sT1}
        s_lshl_b32 s{sTOK2}, s{sTOK2}, 17
        v_bfe_u32 v9, v2, 3, 1
        v_mul_lo_u32 v9, v9, s{sTOK2}
        v_and_b32 v8, 7, v2
        v_lshl_add_u32 v9, v8, 7, v9
        buffer_load_dword v8, v9, {srd(XS)}, s{sTOK1} offen""", "pf"), 2)
    if TK < 32: ph.put("x", f"buffer_atomic_add v10, v5, {srd(WS)}, s{sCND} offen sc0 sc1", 3)
    if "3" in E_("CT", "123"): ph.stream(code_touch("L_ct3", "L_ct3", "L_end", 13, "v13", 4), 1)
    ph.put("x", g.poll_check(3, 12, WS, f"s{sKEY}", "F"), 31)
def merge_x(g):
    its = items(f"""v_lshrrev_b32 v{OA+2}, 2, v2
    v_and_b32 v{OA+1}, 3, v2
    v_lshlrev_b32 v{OA}, 7, v{OA+2}
    v_lshl_add_u32 v{OA}, v{OA+1}, 3, v{OA}
    v_bfe_u32 v{OA+1}, v2, 3, 2
    v_lshl_add_u32 v{OA}, v{OA+1}, 5, v{OA}
    v_xor_b32 v{OA+1}, 32, v{OA}
    v_xor_b32 v{OA+2}, 64, v{OA}
    v_xor_b32 v{OA+3}, 96, v{OA}
    v_add_u32 v{OA+4}, {R2}, v{OA}
    v_add_u32 v{OA+5}, {R2}, v{OA+1}
    v_add_u32 v{OA+6}, {R2}, v{OA+2}
    v_add_u32 v{OA+7}, {R2}, v{OA+3}""")
    return its

KS = int(E_("KS", "0"))
OC4 = E_("OC4", "0") == "1" and KS == 0
XE, OE = 128, 8
def steps(var):
    top = 8 - KS if var == "odd" else 8
    ex = list(range(8, 8 + KS)) if var == "even" else []
    s0 = [(c, n2) for c in range(2) for n2 in range(4)] + [(c, n2) for c in range(2) for n2 in range(4, top)] + [(c, n2) for c in range(2) for n2 in ex]
    s0 += [(c, n2) for c in (2, 3) for n2 in list(range(top)) + ex]
    s1 = [(c, n2) for c in range(4) for n2 in range(4)] + [(c, n2) for c in range(4) for n2 in range(4, 8)]
    return [(0,) + s for s in s0] + [(1,) + s for s in s1]
def piece(st):
    _, c, n2 = st
    return 4 if n2 >= 8 else [q for q in range(4) if PCH[q] == c >> 1 and PKH[q] == n2 >> 2][0]
def oread(i, ST=None):
    st = (ST or steps("even"))[i]; _, c, n2 = st
    it = []
    for nt in range(2):
        for h in range(2):
            if n2 >= 8: va = OE + 2 * (c & 1) + nt; o = (c >> 1) * 16384 + (2 * (n2 - 6 - KS) + h) * 4096
            else:
                reg = OQB[piece(st)]
                va = OA + (0 if reg < R2 else 4) + 2 * (c & 1) + nt; o = (reg & 0xffff) + (2 * (n2 & 3) + h) * 4096
                if OC4: va = OA + (0 if reg < R2 else 4) + 2 * (c & 1) + (n2 & 1); o = (reg & 0xffff) + (2 * (n2 & 2) + nt * 2 + h) * 4096
            f = WR0 + ((i & 3) * 4 + nt * 2 + h) * 4
            it += [("l", f"ds_read_b64_tr_b16 a[{f}:{f+1}], v{va} offset:{o}"), ("l", f"ds_read_b64_tr_b16 a[{f+2}:{f+3}], v{va} offset:{o+2048}")]
    return it
def oproj_first(g):
    g.run(oread(0) + oread(1))

GW, K0 = 8, 16
P1R, P2R, GA, CB, SB, GB, XR1, XR2, WRR = 128, 192, 160, 168, 176, 184, 32, 36, 40
vPL, vCB, vCF = 44, 45, 46
SV = int(E_("SV", "0"))
XRB, P1B = 28, 224
def pload(T12, dst, nb=0, base=None):
    it = []
    for x in range(8):
        it += [("s", f"s_add_u32 s{sXL}, s{base or sPC}, {(T12 << 23) + nb * 32768 + x * 4096}"), ("m", f"buffer_load_dwordx4 {V(dst+4*x)}, v{vPL}, {srd(WS)}, s{sXL} offen {WT}")]
    return it

def epi(pas, c):
    it = []
    for tt in range(2):
        b = OACC + c * 16 + tt * 8
        it += [("v", f"v_cvt_pk_bf16_f32 v{b+i}, v{b+2*i}, v{b+2*i+1}") for i in range(4)]
        it += [("v", f"v_min_u32 v{b+i}, -2, v{b+i}") for i in range(4)]
        it += [("s", f"s_add_u32 s{sPS}, s{sPB}, {(pas << 23) + tt * 131072}"), ("m", f"buffer_store_dwordx4 {V(b)}, v{vPO}, {srd(WS)}, s{sPS} offen offset:{c*256} {WT}", "pst")]
    return it

def oproj_phase(g, var):
    k = g.k
    ST = steps(var); PB = 8 * (len(ST) - 32)
    EV = lambda key, d: int(E_(key + "_" + var, E_(key, str(d))))
    M = []
    for i, (pas, c, n2) in enumerate(ST):
        if OC4:
            for tt in range(2):
                for h in range(4):
                    n = 4 * (n2 >> 1) + h; f = (n >> 2) * 8 + tt * 4 + h
                    d = V(OACC + c * 16 + tt * 8 + (n2 & 1) * 4)
                    M.append(MF(d, A(WR0 + ((i & 3) * 4 + h) * 4), A(X1R(f)) if pas == 0 else V(X2 + 4 * f), "0" if n == 0 else d))
            continue
        oc = E_("OC1", "0")
        seq = {"0": [(nt, tt, h) for nt in range(2) for tt in range(2) for h in range(2)],
               "1": [(nt, tt, h) for h in range(2) for nt in range(2) for tt in range(2)],
               "2": [(nt, tt, h) for nt in range(2) for h in range(2) for tt in range(2)]}[oc]
        for (nt, tt, h) in seq:
            if True:
                if True:
                    n = 2 * n2 + h; f = (n >> 2) * 8 + tt * 4 + (n & 3)
                    x = A(XE + 4 * (tt * 4 + 2 * (n2 - 6 - KS) + h)) if n2 >= 8 else A(X1R(f)) if pas == 0 else V(X2 + 4 * f)
                    d = V(OACC + c * 16 + tt * 8 + nt * 4)
                    M.append(MF(d, A(WR0 + ((i & 3) * 4 + nt * 2 + h) * 4), x, "0" if n == 0 else d))
    ph = Phase(k, M); ph.thin = True; ph.batch = int(E_('BATO', '9'))
    first2 = 8 * min(i for i, st in enumerate(ST) if piece(st) >= 2)
    Z0 = min(EV("Z0", 102), first2 - 14)
    short = var == "odd" and KS > 0
    ZC = EV("ZC", 92 if short else 102)
    ph.put("x", g.bar(["wo1"], False), 34)
    if ZC == Z0: ph.put("x", g.bar(["wo2", "wo3", "wo4", "ctx"], False), Z0)
    else: ph.put("x", g.bar(["wo2"], False), Z0); ph.put("x", g.bar(["wo3", "ctx"], False), ZC)
    st4 = 3 if var == "even" and KS else 4
    gx = ph.stream(wodma(g, 2), 0, None, step=4, sid=940)
    gxe = 4
    if var == "even" and KS:
        gxe = ph.stream(items(f"""s_add_u32 s{sKEY}, s{sXC}, {4 << 13}
        s_xor_b32 s{sKEY}, s{sKEY}, {3 << 13}
        s_xor_b32 s{sIDX}, s{sJ}, 3
        s_lshl_b32 s{sIDX}, s{sIDX}, 1
        s_and_b32 s{sB}, s{sW}, 1
        s_add_u32 s{sIDX}, s{sIDX}, s{sB}
        s_lshl_b32 s{sIDX}, s{sIDX}, 16
        s_lshr_b32 s{sB}, s{sW}, 1
        s_lshl_b32 s{sB}, s{sB}, 7
        s_add_u32 s{sIDX}, s{sIDX}, s{sB}""" + "".join(f"\nv_add_u32 v{OE+q}, {R4}, v{OA+q}" for q in range(4))), 0, sid=941)
        w4 = []
        for h in range(2): w4 += g.dma4(WO, [24, 25, 26, 27], (sW8, R4 + h * 4096), (sIDX, 524288 + h * 32768), "wo4")
        gx = ph.stream(w4, max(gx, 34) + 1, None, step=st4, sid=940)
        xe = []
        for u in range(4 - 2 * KS, 4):
            for tt in range(2): xe.append(("m", f"buffer_load_dwordx4 {A(XE + 4*(tt*4+u))}, v{vL2 if tt else 1}, {srd(WS)}, s{sKEY} offen offset:{u*1024}"))
        ph.stream(xe, gxe + 1, None, step=4, sid=941)
    gx = ph.stream(wodma(g, 3), max(gx, 34) + 1, None, step=st4, sid=940)
    CD = EV("CD", 80 if short else 90); CK = PB - EV("CK", 56 - 10 * KS if short else 56)
    g1 = ph.stream([("s", f"s_add_u32 s{sCFO}, s{sCFO}, 65536"), ("s", f"s_add_u32 s{sCFP}, s{sCFP}, 65536")] + xc_items(sT2), gxe + 1)
    g1 = ph.stream(g.flag_store(sCFO, ["ctx"]), CD)
    gpl = g1 = ph.stream([("m", f"buffer_load_dword v3, v4, {srd(WS)}, s{sCFP} offen {WT}")], CK - EV("CL", 45))
    ph.put("x", g.poll_check(3, 4, WS, f"s{sCFP}", "C2"), CK)
    xl2 = lambda a, b: sum((xload(1, (n >> 2) * 8 + tt * 4 + (n & 3)) for n in range(a, b) for tt in range(2)), [])
    g1 = ph.stream(xl2(0, 4), ZC + 1, None, step=3, sid=951)
    g1 = ph.stream(xl2(4, 8), max(g1, CK) + 1, None, step=EV("XST", 4), sid=951)
    g1 = ph.stream(xl2(8, 16), max(g1 + 1, PB - 6), None, step=5, sid=951)
    g2 = ph.stream(items(f"""v_lshrrev_b32 v{vCF}, 2, v2
    v_and_b32 v{vCB}, 3, v2
    v_lshlrev_b32 v{vPL}, 8, v{vCF}
    v_lshl_add_u32 v{vPL}, v{vCB}, 4, v{vPL}
    v_lshlrev_b32 v{vCB}, 3, v{vCB}
    v_lshl_add_u32 v{vCB}, v{vCF}, 6, v{vCB}
    v_lshlrev_b32 v{vCF}, 1, v{vCB}
    s_lshl_b32 s{sPC}, s2, 15
    s_lshl_b32 s{sB}, s{sW}, 6
    s_add_u32 s{sPC}, s{sPC}, s{sB}
    s_add_u32 s{sPC}, s{sPC}, {WS_P}
    s_and_b32 s{sTOK1}, s2, 31
    s_lshl_b32 s{sTOK1}, s{sTOK1}, 2
    s_add_u32 s{sTOK1}, s{sTOK1}, s{sW}
    s_lshl_b32 s{sTOK2}, s{sT2}, 7
    s_add_u32 s{sTOK2}, s{sTOK2}, s{sTOK1}
    s_lshl_b32 s{sB}, s{sT1}, 7
    s_add_u32 s{sTOK1}, s{sTOK1}, s{sB}
    s_lshl_b32 s{sB}, s{sTOK1}, 10
    s_lshl_b32 s{sC}, s{sTOK2}, 10"""), 60, sid=950)
    x1l = f"""buffer_load_dwordx2 v[{XR1}:{XR1+1}], v{vCB}, {srd(XS)}, s{sB} offen
    buffer_load_dwordx2 v[{XR1+2}:{XR1+3}], v{vCB}, {srd(XS)}, s{sB} offen offset:32
    """
    if SV == 1 and var == "odd": x1l = ""
    if SV and var == "even": x1l += f"""s_add_u32 s{sB}, s{sB}, 4096
    buffer_load_dwordx2 v[{XRB}:{XRB+1}], v{vCB}, {srd(XS)}, s{sB} offen
    buffer_load_dwordx2 v[{XRB+2}:{XRB+3}], v{vCB}, {srd(XS)}, s{sB} offen offset:32
    """
    g2 = ph.stream(items(x1l + f"""buffer_load_dwordx2 v[{XR2}:{XR2+1}], v{vCB}, {srd(XS)}, s{sC} offen
    buffer_load_dwordx2 v[{XR2+2}:{XR2+3}], v{vCB}, {srd(XS)}, s{sC} offen offset:32
    buffer_load_dwordx2 v[{WRR}:{WRR+1}], v{vCB}, {srd(WR_)}, 0 offen
    buffer_load_dwordx2 v[{WRR+2}:{WRR+3}], v{vCB}, {srd(WR_)}, 0 offen offset:32"""), max(g1 + 1, PB + 84), None, step=4, sid=950)
    gwr = g2
    its = []
    for (R, seg) in ((CB, 4), (SB, 3), (GA, 2), (GB, 5)):
        its += [("s", f"s_mov_b32 s{sXL}, {WS_MOD + seg*2048}"), ("m", f"buffer_load_dwordx4 {V(R)}, v{vCF}, {srd(WS)}, s{sXL} offen"), ("m", f"buffer_load_dwordx4 {V(R+4)}, v{vCF}, {srd(WS)}, s{sXL} offen offset:64")]
    if TK < 32 and var == "odd": its = its[:6] + pload(0, P1R) + its[6:]
    g2 = ph.stream(its, max(g2 + 1, PB + 130), None, step=3)
    if TK < 32 and var == "odd": g2 -= 24
    if SV == 2 and var == "odd":
        ph.stream(items(f"s_cmp_lt_u32 s{sW}, 2\ns_cselect_b32 s{sCND}, s{sPC}, {OOB - 0x100000}") + pload(0, P1R, 0, sCND), max(g2 + 1, PB + EV("P1G", 216)), None, step=4)
    elif E_("NOP1") and var != "odd":
        ph.stream(items("".join(f"v_mov_b32 v{P1R+i}, -1\n" for i in range(32))), PB + 134)
    elif not ((SV or TK < 32) and var == "odd"): ph.stream(pload(0, P1R), max(g2 + 1, PB + EV("P1G", 216)), None, step=EV("P1S", 4))
    kk = K(); unpack(kk, 48, WRR, 8)
    for i in range(8): kk(f"v_mul_f32 v{GW+i}, v{48+i}, v{CB+i}")
    kk(f"v_mul_f32 v{K0}, v48, v{SB}")
    for i in range(1, 8): kk(f"v_fmac_f32 v{K0}, v{48+i}, v{SB+i}")
    allred(kk, [K0], tmp=[19])
    gk = items("\n".join(kk.out))
    g3 = 0
    for c in range(4):
        done = 8 * max(i for i, st in enumerate(ST) if st[0] == 0 and st[1] == c) + 8
        g3 = ph.stream(epi(0, c), max(done + 6, g3 + 1, gpl - 7 if c == 1 and E_("CFX", "1") == "1" else 0)); assert g3 < PB + 32 * c - 2, g3
    for c in range(3): ph.stream(epi(1, c), PB + 128 + 32 * (c + 1) + 6)
    ph.stream(gk[:8], gwr + 40, sid=952)
    ph.stream(gk[8:], g2 + 30, PB + 244, sid=952)
    for i in range(2, len(ST)):
        lo = 8 * (i - 3)
        if ST[i][0] == 0:
            pc = piece(ST[i])
            lo = max(lo, [0, 35, Z0 + 1, ZC + 1, Z0 + 1][pc])
        ph.stream(oread(i, ST), lo, 8 * i - int(E_('ODL', '13')))
    if g.TS:
        n0 = g.nts
        ph.put("x", g.ts, PB - 1)
        for gp in (E_("TSO") or "").split(","):
            if gp: ph.put("x", lambda k: g.ts(k, True), int(gp))
    ph.emit()
    print("oproj", var, ": overloaded placements", ph.over, file=sys.stderr)

TK = int(E_("TK", "24"))
def oproj(g):
    k = g.k
    if KS or SV or TK < 32:
        st = k.save(); n0 = g.nts
        if TK < 32: k(f"s_cmp_ge_u32 s{sCND}, {TK}\ns_cbranch_scc1 L_op_odd")
        else: k("s_bitcmp1_b32 s2, 0\ns_cbranch_scc1 L_op_odd")
        oproj_phase(g, "even"); after(g, "even")
        k("s_branch L_op_join")
        k.restore(st); g.nts = n0
        k.label("L_op_odd")
        oproj_phase(g, "odd"); after(g, "odd")
        g.page("a")
        k.label("L_op_join")
    else: oproj_phase(g, "all"); after(g, "all"); g.page("a")

D1, D2, H1, H2, O1, O2, KEY1, KEY2 = 64, 80, 20, 24, 56, 60, 17, 18
def after(g, var):
    k = g.k
    TT = lambda: g.ts(force=True) if E_('TST') else None
    g.run(epi(1, 3))
    if E_("TSO"): g.ts(force=True)
    pm = 0xf << (4 * int(E_("PQC", "0"))); pm |= pm << 16
    k(f"s_mov_b32 s{sPM}, {pm:#x}\ns_mov_b32 s{sPM+1}, {pm:#x}")
    two = SV and var == "even"
    if two and SV == 2: k(f"s_cmp_ge_u32 s{sW}, 2\ns_cselect_b32 s{sCND}, s{sPC}, {OOB - 0x100000}"); g.run(pload(0, P1B, 1, sCND))
    elif two: g.run(pload(0, P1B, 1))
    for i in range(0, 32, 2): k(f"v_mov_b64 v[{P2R+i}:{P2R+i+1}], -1")
    k(f"s_mov_b64 exec, s[{sPM}:{sPM+1}]")
    g.run(pload(1, P2R))
    k("s_mov_b64 exec, -1")
    g.ts(force=bool(E_("TSO"))); TT()
    k("v_mov_b32 v100, 0x3f80\nv_mov_b32 v101, 0x3f800000")
    unpack(k, D2 + 8, XR2, 8)
    if SV == 1 and var == "odd":
        k(f"v_mov_b32 v{KEY1}, 0\ns_mov_b32 s{sTOK1}, {OOB >> 10}")
    else:
        slow, ok = k.lab("P1_slow"), k.lab("P1_ok")
        unpack(k, D1 + 8, XR1, 8)
        t = f"v_max_u32 v3, v{P1R}, v{P1R+1}\n"
        for i in range(2, 32, 2): t += f"v_max3_u32 v3, v3, v{P1R+i}, v{P1R+i+1}\n"
        k(t + f"v_cmp_eq_u32 vcc, -1, v3\ns_cbranch_vccnz {slow}")
        k.label(ok)
        k2 = K(); k2.nlab = 5000 + k.nlab * 20; k2.label(slow); g2 = type("g2", (), dict(k=k2, run=lambda self, its: [k2(it[1]) for it in its]))()
        p1 = 0xf << (4 * int(E_("PQ1", "3"))); p1 |= p1 << 16
        k2(f"s_mov_b32 s14, {p1:#x}\ns_mov_b32 s15, {p1:#x}")
        part_wait(g2, 0, P1R, pmask=14); k2(f"s_branch {ok}")
        g.tail.append("\n".join(k2.out))
        token(g, P1R, XR1, D1, sTOK1, KEY1); token2(g, XR1, D1, H1, O1)
    if SV == 2 and var == "odd":
        token3(g, D1, H1, O1)
        k(f"""s_cmp_lt_u32 s{sW}, 2
        s_cselect_b32 s{sTOK1}, s{sTOK1}, {OOB >> 10}
        s_cselect_b32 s{sB}, -1, 0
        v_and_b32 v{KEY1}, s{sB}, v{KEY1}""")
    if two:
        HB, OB, KB = 104, 108, 103
        token3(g, D1, H1, O1)
        if SV == 2: k(f"s_cmp_lt_u32 s{sW}, 2\ns_cbranch_scc1 L_one")
        unpack(k, D1 + 8, XRB, 8)
        k(f"s_add_u32 s{sIDX}, s{sTOK1}, 4")
        part_wait(g, 0, P1B, 1)
        token(g, P1B, XRB, D1, sIDX, KB); token2(g, XRB, D1, HB, OB); token3(g, D1, HB, OB)
        k(f"v_cmp_gt_u32 vcc, v{KB}, v{KEY1}\ns_cbranch_vccz L_keep")
        k(f"v_mov_b32 v{KEY1}, v{KB}\ns_mov_b32 s{sB}, s{sTOK1}\ns_mov_b32 s{sTOK1}, s{sIDX}\ns_mov_b32 s{sIDX}, s{sB}")
        for i in range(4): k(f"v_mov_b32 v{H1+i}, v{HB+i}\nv_mov_b32 v{XR1+i}, v{XRB+i}\nv_swap_b32 v{O1+i}, v{OB+i}")
        k.label("L_keep")
        k(f"""s_lshl_b32 s{sB}, s{sIDX}, 10
        buffer_store_dwordx2 v[{OB}:{OB+1}], v{vCB}, {srd(OUT)}, s{sB} offen
        buffer_store_dwordx2 v[{OB+2}:{OB+3}], v{vCB}, {srd(OUT)}, s{sB} offen offset:32""")
        k.label("L_one")
    g.run(moe_loads(98, sPF)[:7])
    k(f"""s_lshl_b32 s{sB}, s{sW}, 2
    v_mov_b32 v47, s{sB}
    v_mov_b32 v102, 0
    s_lshl_b32 s{sB}, s2, 6
    s_add_u32 s{sB}, s{sB}, {WS_KEY}
    s_lshl_b32 s{sC}, s2, 11
    s_add_u32 s{sC}, s{sC}, {WS_CAND}""")
    g.ts()

def allred(k, regs, op="v_add_f32", tmp=None):
    for pat in ("quad_perm:[1,0,3,2]", "quad_perm:[2,3,0,1]", "row_half_mirror", "row_mirror"):
        for r in regs: k(f"{op}_dpp v{r}, v{r}, v{r} {pat} row_mask:0xf bank_mask:0xf")
    for sw in ("v_permlane16_swap_b32", "v_permlane32_swap_b32"):
        for r, t in zip(regs, tmp): k(f"v_mov_b32 v{t}, v{r}")
        for r, t in zip(regs, tmp): k(f"{sw} v{r}, v{t}")
        for r, t in zip(regs, tmp): k(f"{op} v{r}, v{r}, v{t}")
def unpack(k, dst, src, n):
    for i in range(n // 2):
        k(f"v_lshlrev_b32 v{dst+2*i}, 16, v{src+i}\nv_and_b32 v{dst+2*i+1}, 0xffff0000, v{src+i}")
def pack(k, dst, src, n):
    for i in range(n // 2): k(f"v_cvt_pk_bf16_f32 v{dst+i}, v{src+2*i}, v{src+2*i+1}")
def bf1(k, r): k(f"v_cvt_pk_bf16_f32 v{r}, v{r}, v{r}\nv_and_b32 v{r}, 0xffff0000, v{r}")

def sent_wait(g, regs, reload_items, name, sleep=2):
    k = g.k
    lp, ok = k.lab(name + "_l"), k.lab(name + "_ok")
    k(f"s_mov_b32 s{sD}, 0")
    k.label(lp)
    k("s_waitcnt vmcnt(0)")
    k(f"v_max_u32 v3, v{regs[0]}, v{regs[1]}")
    rest = regs[2:]
    for i in range(0, len(rest) - 1, 2): k(f"v_max3_u32 v3, v3, v{rest[i]}, v{rest[i+1]}")
    k(f"""v_cmp_eq_u32 vcc, -1, v3
    s_add_u32 s{sD}, s{sD}, 1
    s_cbranch_vccz {ok}
    s_cmp_ge_u32 s{sD}, {SPIN}
    s_cbranch_scc1 {ok}
    s_mov_b64 exec, vcc""")
    if sleep: k(f"s_sleep {sleep}")
    g.run(reload_items)
    k(f"s_branch {lp}")
    k.label(ok)
    k("s_mov_b64 exec, -1")
    k.vm = []

def part_wait(g, T12, R, nb=0, pmask=None):
    k = g.k
    lp, ok = k.lab("P2_l"), k.lab("P2_ok")
    k(f"s_mov_b32 s{sD}, 0")
    k.label(lp)
    k("s_waitcnt vmcnt(0)")
    for x in range(8): k(f"v_max_u32 v{48+x}, v{R+4*x}, v{R+4*x+1}\nv_max3_u32 v{48+x}, v{48+x}, v{R+4*x+2}, v{R+4*x+3}")
    k(f"""v_max3_u32 v3, v48, v49, v50
    v_max3_u32 v3, v3, v51, v52
    v_max3_u32 v3, v3, v53, v54
    v_max_u32 v3, v3, v55
    v_cmp_eq_u32 vcc, -1, v3
    s_add_u32 s{sD}, s{sD}, 1
    s_cbranch_vccz {ok}
    s_cmp_ge_u32 s{sD}, {SPIN}
    s_cbranch_scc1 {ok}
    s_sleep {E_("PSL", "1")}""")
    pl = pload(T12, R, nb)
    for x in range(8):
        sk = k.lab("P2_s")
        k(f"v_cmp_eq_u32 vcc, -1, v{48+x}\ns_cbranch_vccz {sk}\ns_and_b64 s[{sXB}:{sXB+1}], vcc, s[{pmask or sPM}:{(pmask or sPM)+1}]\ns_cselect_b64 exec, s[{sXB}:{sXB+1}], vcc")
        g.run(pl[2 * x:2 * x + 2])
        k("s_mov_b64 exec, -1")
        k.label(sk)
    k(f"s_branch {lp}")
    k.label(ok)
    k.vm = []

def token(g, PR, XR, D, sTOK, key):
    k = g.k; T = 48
    unpack(k, D, PR, 8)
    for x in range(1, 8):
        for i in range(8): k(f"v_dot2c_f32_bf16 v{D+i}, v{PR+4*x+(i>>1)}, v{100+(i&1)}")
    for i in range(0, 8, 2): k(f"v_pk_fma_f32 v[{D+i}:{D+i+1}], v[{D+i}:{D+i+1}], v[{GA+i}:{GA+i+1}], v[{D+8+i}:{D+9+i}]")
    pack(k, XR, D, 8); unpack(k, D, XR, 8)
    k(f"""v_pk_add_f32 v[{T}:{T+1}], v[{D}:{D+1}], v[{D+2}:{D+3}]
    v_pk_add_f32 v[{T+2}:{T+3}], v[{D+4}:{D+5}], v[{D+6}:{D+7}]
    v_pk_add_f32 v[{T}:{T+1}], v[{T}:{T+1}], v[{T+2}:{T+3}]
    v_add_f32 v{T}, v{T}, v{T+1}""")
    allred(k, [T], tmp=[T + 1])
    k(f"v_mul_f32 v{T}, {H(-1/512)}, v{T}")
    for i in range(0, 8, 2): k(f"v_pk_add_f32 v[{D+8+i}:{D+9+i}], v[{D+i}:{D+i+1}], v[{T}:{T+1}] op_sel_hi:[1,0]")
    k(f"v_pk_mul_f32 v[{T+2}:{T+3}], v[{D+8}:{D+9}], v[{D+8}:{D+9}]\nv_pk_mul_f32 v[{T+4}:{T+5}], v[{D+8}:{D+9}], v[{GW}:{GW+1}]")
    for i in range(2, 8, 2):
        k(f"v_pk_fma_f32 v[{T+2}:{T+3}], v[{D+8+i}:{D+9+i}], v[{D+8+i}:{D+9+i}], v[{T+2}:{T+3}]")
        k(f"v_pk_fma_f32 v[{T+4}:{T+5}], v[{D+8+i}:{D+9+i}], v[{GW+i}:{GW+i+1}], v[{T+4}:{T+5}]")
    k(f"v_add_f32 v{T+2}, v{T+2}, v{T+3}\nv_add_f32 v{T+4}, v{T+4}, v{T+5}")
    allred(k, [T + 2, T + 4], tmp=[T + 3, T + 5])
    k(f"""v_mov_b32 v{T}, {H(1e-5)}
    v_fmac_f32 v{T}, {H(1/512)}, v{T+2}
    v_rsq_f32 v{T}, v{T}
    v_fma_f32 v{T+4}, v{T+4}, v{T}, v{K0}
    v_ashrrev_i32 v{T+5}, 31, v{T+4}
    v_or_b32 v{T+5}, 0x80000000, v{T+5}
    v_xor_b32 v{T+5}, v{T+5}, v{T+4}
    v_and_b32 v{T+5}, 0xfffff800, v{T+5}
    v_or_b32 v{key}, s{sTOK}, v{T+5}""")
def token2(g, XR, D, HP, OP):
    k = g.k; T = 48
    for i in range(0, 8, 2): k(f"v_pk_mul_f32 v[{D+8+i}:{D+9+i}], v[{D+8+i}:{D+9+i}], v[{T}:{T+1}] op_sel_hi:[1,0]")
    for i in range(0, 8, 2): k(f"v_pk_fma_f32 v[{D+8+i}:{D+9+i}], v[{D+8+i}:{D+9+i}], v[{CB+i}:{CB+i+1}], v[{SB+i}:{SB+i+1}]")
    pack(k, HP, D + 8, 8)
def token3(g, D, HP, OP):
    k = g.k
    unpack(k, D + 8, HP, 8)
    for i in range(0, 8, 2): k(f"v_pk_mul_f32 v[{D+8+i}:{D+9+i}], v[{D+8+i}:{D+9+i}], v[{GB+i}:{GB+i+1}]")
    pack(k, OP, D + 8, 8); unpack(k, D + 8, OP, 8)
    for i in range(0, 8, 2): k(f"v_pk_add_f32 v[{D+8+i}:{D+9+i}], v[{D+8+i}:{D+9+i}], v[{D+i}:{D+i+1}]")
    pack(k, OP, D + 8, 8)

def tail(g):
    k = g.k
    TT = lambda: g.ts(force=True) if E_('TST') else None
    GU, WDF = 160, [192 + i for i in range(64)]
    ml = moe_loads(98, sPF)
    part_wait(g, 1, P2R)
    g.ts(); TT()
    token(g, P2R, XR2, D2, sTOK2, KEY2)
    TT()
    k(f"""v_max3_u32 v19, v{KEY1}, v{KEY2}, 1
    ds_write_b32 v47, v19
    s_waitcnt lgkmcnt(0)
    s_barrier
    ds_read_b128 v[52:55], v102""")
    token2(g, XR2, D2, H2, O2)
    k(f"""v_max_u32 v52, v52, v53
    v_max3_u32 v52, v52, v54, v55
    v_cmp_eq_u32 vcc, v52, v19
    s_cbranch_vccz L_notbest
    buffer_store_dword v19, v5, {srd(WS)}, s{sB} offen {WT}
    v_cmp_gt_u32 vcc, v{KEY1}, v{KEY2}""")
    for i in range(4): k(f"v_cndmask_b32 v{28+i}, v{H2+i}, v{H1+i}, vcc\nv_cndmask_b32 v{40+i}, v{XR2+i}, v{XR1+i}, vcc")
    for i in range(4): k(f"v_min_u32 v{28+i}, -2, v{28+i}\nv_min_u32 v{40+i}, -2, v{40+i}")
    k(f"""buffer_store_dwordx4 v[28:31], v1, {srd(WS)}, s{sC} offen {WT}
    buffer_store_dwordx4 v[40:43], v1, {srd(WS)}, s{sC} offen offset:1024 {WT}""")
    k.vm = k.vm[:-3]
    k.label("L_notbest")
    TT()
    g.run(ml[7:])
    if not SV: token3(g, D1, H1, O1)
    token3(g, D2, H2, O2)
    W16 = E_("W16", "1") == "1"
    if W16:
        k("""v_and_b32 v104, 1, v2
        v_cmp_eq_u32 vcc, 1, v104""")
        for O in (O1, O2):
            k(f"""v_cndmask_b32 v104, v{O+2}, v{O}, vcc
            v_cndmask_b32 v105, v{O+3}, v{O+1}, vcc
            v_mov_b32_dpp v106, v104 quad_perm:[1,0,3,2] row_mask:0xf bank_mask:0xf
            v_mov_b32_dpp v107, v105 quad_perm:[1,0,3,2] row_mask:0xf bank_mask:0xf
            v_cndmask_b32 v{O}, v{O}, v106, vcc
            v_cndmask_b32 v{O+1}, v{O+1}, v107, vcc
            v_cndmask_b32 v{O+2}, v106, v{O+2}, vcc
            v_cndmask_b32 v{O+3}, v107, v{O+3}, vcc""")
        k("""v_lshrrev_b32 v103, 2, v2
        v_lshlrev_b32 v103, 6, v103
        v_and_b32 v104, 1, v2
        v_lshl_add_u32 v103, v104, 5, v103
        v_and_b32 v104, 2, v2
        v_lshl_add_u32 v103, v104, 3, v103""")
        if E_("EO", "0") == "1":
            k(f"v_readfirstlane_b32 s{sIDX}, v52\ns_and_b32 s{sCND}, s{sIDX}, 2047")
            for (sT, O) in ((sTOK1, O1), (sTOK2, O2)):
                k(f"""s_lshl_b32 s{sB}, s{sT}, 10
                s_cmp_eq_u32 s{sT}, s{sCND}
                s_cselect_b32 s{sB}, {OOB}, s{sB}
                s_cselect_b32 s{sT}, s{sT}, {OOB >> 10}
                buffer_store_dwordx4 v[{O}:{O+3}], v103, {srd(OUT)}, s{sB} offen sc1""")
    k(f"""v_lshlrev_b32 v4, 6, v0
    s_mov_b32 s{sKEY}, {WS_KEY}
    s_mov_b32 s{sD}, 0""")
    g.page("b")
    k.label("L_kl")
    k(f"""buffer_load_dword v3, v4, {srd(WS)}, s{sKEY} offen {WT}
    s_add_u32 s{sD}, s{sD}, 1
    s_waitcnt vmcnt(0)
    v_cmp_eq_u32 vcc, 0, v3
    s_cbranch_vccz L_kd
    s_cmp_ge_u32 s{sD}, {SPIN}
    s_cbranch_scc1 L_kd
    s_mov_b64 exec, vcc
    s_sleep {E_("KSL", "2")}
    s_branch L_kl""")
    k.label("L_kd")
    k("s_mov_b64 exec, -1")
    TT()
    allred(k, [3], op="v_max_u32", tmp=[19])
    k(f"""ds_write_b32 v47, v3 offset:64
    s_waitcnt lgkmcnt(0)
    s_barrier
    ds_read_b128 v[52:55], v102 offset:64
    v_lshlrev_b32 v4, 2, v0
    v_max_u32 v52, v52, v53
    v_max3_u32 v52, v52, v54, v55
    v_readfirstlane_b32 s{sKEY}, v52
    s_and_b32 s{sIDX}, s{sKEY}, 2047
    s_lshr_b32 s{sB}, s{sIDX}, 7
    s_sub_u32 s{sC}, 15, s{sB}
    s_min_u32 s{sB}, s{sB}, s{sC}
    s_lshl_b32 s{sB}, s{sB}, 16
    s_and_b32 s{sC}, s{sIDX}, {1026 if SV == 2 else 1024}
    s_cmp_eq_u32 s{sC}, {2 if SV == 2 else 0}
    s_cselect_b32 s{sCND}, {30 if SV else 31}, 31
    s_lshr_b32 s{sC}, s{sIDX}, 2
    s_and_b32 s{sCND}, s{sCND}, s{sC}
    s_lshl_b32 s{sCND}, s{sCND}, 2
    s_lshl_b32 s{sCND}, s{sCND}, 9
    s_add_u32 s{sCND}, s{sCND}, s{sB}
    s_add_u32 s{sCND}, s{sCND}, {WS_CAND}""")
    hl = [("m", f"buffer_load_dword v19, v4, {srd(WS)}, s{sCND} offen {WT}")]
    g.run(hl)
    g.ts(); TT()
    if W16:
        for (sT, O) in ((sTOK1, O1), (sTOK2, O2)):
            k(f"""s_lshl_b32 s{sB}, s{sT}, 10
            s_cmp_eq_u32 s{sT}, s{sIDX}
            s_cselect_b32 s{sB}, {OOB}, s{sB}
            buffer_store_dwordx4 v[{O}:{O+3}], v103, {srd(OUT)}, s{sB} offen {E_("OP", "sc1")}""")
    for (sT, O) in ((sTOK1, O1), (sTOK2, O2)) if not W16 else ():
        k(f"""s_lshl_b32 s{sB}, s{sT}, 10
        s_cmp_eq_u32 s{sT}, s{sIDX}
        s_cselect_b32 s{sB}, {OOB}, s{sB}
        buffer_store_dwordx2 v[{O}:{O+1}], v{vCB}, {srd(OUT)}, s{sB} offen {E_("OP", "sc1")}
        buffer_store_dwordx2 v[{O+2}:{O+3}], v{vCB}, {srd(OUT)}, s{sB} offen offset:32 {E_("OP", "sc1")}""")
    k(f"s_cmp_ge_u32 s{sCG}, 224\ns_cbranch_scc1 L_nprod")
    lp, ok = "L_hl", "L_hok"
    unpack(k, GU, MG, 32)
    k(f"s_mov_b32 s{sD}, 0\ns_waitcnt vmcnt({2 if W16 else 4})")
    k.label(lp)
    k(f"""v_cmp_eq_u32 vcc, -1, v19
    s_add_u32 s{sD}, s{sD}, 1
    s_cbranch_vccz {ok}
    s_cmp_ge_u32 s{sD}, {SPIN}
    s_cbranch_scc1 {ok}""")
    g.run(hl)
    k(f"s_waitcnt vmcnt(0)\ns_branch {lp}")
    k.label(ok)
    TT()
    k(f"v_lshlrev_b32 v48, 16, v19\nv_and_b32 v50, 0xffff0000, v19")
    for m in range(2):
        for i in range(0, 8, 2):
            d = 64 + 8 * m + i
            k(f"v_pk_mul_f32 v[{d}:{d+1}], v[{GU+16*m+i}:{GU+16*m+i+1}], v[48:49] op_sel_hi:[1,0]")
    for m in range(2):
        for i in range(0, 8, 2):
            d = 64 + 8 * m + i
            k(f"v_pk_fma_f32 v[{d}:{d+1}], v[{GU+16*m+8+i}:{GU+16*m+8+i+1}], v[50:51], v[{d}:{d+1}] op_sel_hi:[1,0,1]")
    k(g.red16(64))
    k(f"""v_and_b32 v50, 15, v2
    v_cmp_eq_u32 vcc, 0, v50
    v_mov_b32 v51, 1024
    v_cndmask_b32 v51, v51, v0, vcc
    ds_write_b128 v51, v[64:67] offset:256
    v_lshlrev_b32 v50, 2, v50
    s_waitcnt lgkmcnt(0)
    s_barrier
    s_cmp_lg_u32 s{sW}, 0
    s_cbranch_scc1 L_nprod
    ds_read_b32 v64, v50 offset:256
    ds_read_b32 v65, v50 offset:320
    ds_read_b32 v66, v50 offset:384
    ds_read_b32 v67, v50 offset:448
    v_cmp_gt_u32 vcc, 8, v2
    v_mov_b32 v51, {OOB}
    v_cndmask_b32 v51, v51, v50, vcc
    s_lshl_b32 s{sB}, s{sCG}, 6
    s_add_u32 s{sB}, s{sB}, {WS_ACT}
    v_add_f32 v64, v64, v65
    v_add_f32 v66, v66, v67
    v_add_f32 v64, v64, v66""")
    bf1(k, 64)
    k(f"""v_mov_b32_dpp v65, v64 row_ror:8 row_mask:0xf bank_mask:0xf
    v_mul_f32 v66, {H(-LOG2E)}, v64
    v_exp_f32 v66, v66
    v_add_f32 v66, 1.0, v66
    v_rcp_f32 v66, v66
    v_mul_f32 v64, v64, v66""")
    bf1(k, 64)
    k("v_mul_f32 v64, v64, v65")
    bf1(k, 64)
    k(f"buffer_store_dword v64, v51, {srd(WS)}, s{sB} offen {WT}")
    k.label("L_nprod")
    k.vm = []; k.lg = []
    TT()
    k(f"s_cmp_ge_u32 s{sC2}, 64\ns_cbranch_scc1 L_fin")
    k(f"""v_lshlrev_b32 v4, 6, v0
    v_cmp_gt_u32 vcc, 224, v0
    v_mov_b32 v51, {OOB}
    v_cndmask_b32 v4, v51, v4, vcc
    s_mov_b32 s{sB}, {WS_ACT}
    v_and_b32 v52, 7, v2
    s_lshl_b32 s{sC}, s{sC2}, 3
    v_add_u32 v52, s{sC}, v52            ; column
    v_lshrrev_b32 v53, 5, v52
    v_lshlrev_b32 v53, 6, v53
    v_and_b32 v54, 12, v52
    v_lshl_add_u32 v53, v54, 2, v53
    v_bfe_u32 v54, v52, 4, 1
    v_lshl_add_u32 v53, v54, 3, v53
    v_and_b32 v54, 2, v52
    v_lshl_add_u32 v53, v54, 1, v53
    v_lshlrev_b32 v54, 2, v52
    s_mov_b32 s{sC}, {WS_MOD + 5*2048}
    buffer_load_dword v55, v54, {srd(WS)}, s{sC} offen""")
    al = [("m", f"buffer_load_dwordx4 v[80:83], v4, {srd(WS)}, s{sB} offen {WT}"), ("m", f"buffer_load_dwordx4 v[84:87], v4, {srd(WS)}, s{sB} offen offset:16 {WT}"),
          ("m", f"buffer_load_dword v88, v53, {srd(WS)}, s{sCND} offen {WT}"), ("m", f"buffer_load_dword v89, v53, {srd(WS)}, s{sCND} offen offset:1024 {WT}")]
    g.run(al[2:])
    unpack(k, WDF[0], MD, 64)
    k(f"""s_and_b32 s{sC}, s{sKEY}, 0xfffff800
    s_or_b32 s{sC}, s{sC}, 0x400
    v_mov_b32 v90, s{sC}
    v_not_b32 v91, v90
    v_ashrrev_i32 v91, 31, v91
    v_or_b32 v91, 0x80000000, v91
    v_xor_b32 v90, v90, v91""")
    bf1(k, 90)
    k(f"""v_mul_f32 v90, {H(-LOG2E)}, v90
    v_exp_f32 v90, v90
    v_add_f32 v90, 1.0, v90
    v_rcp_f32 v90, v90""")
    bf1(k, 90)
    sent_wait(g, [88, 89], al[2:], "CND", sleep=1)
    k(f"""v_and_b32 v51, 1, v52
    v_cmp_eq_u32 vcc, 0, v51
    v_lshlrev_b32 v91, 16, v88
    v_and_b32 v88, 0xffff0000, v88
    v_cndmask_b32 v88, v88, v91, vcc
    v_lshlrev_b32 v91, 16, v89
    v_and_b32 v89, 0xffff0000, v89
    v_cndmask_b32 v89, v89, v91, vcc
    v_and_b32 v50, 15, v2
    v_cmp_eq_u32 vcc, 0, v50
    v_lshrrev_b32 v51, 1, v0
    v_mov_b32 v50, 1024
    v_cndmask_b32 v51, v50, v51, vcc
    v_and_b32 v50, 7, v2
    v_lshlrev_b32 v50, 2, v50
    v_cmp_gt_u32 vcc, 8, v2
    v_lshlrev_b32 v52, 1, v52
    v_mov_b32 v53, {OOB}
    v_cndmask_b32 v52, v53, v52, vcc""")
    k(f"""s_cmp_lt_u32 s{sCG}, 224
    s_cbranch_scc1 L_asl
    s_sleep {E_('ASL7', '16')}""")
    k.label("L_asl")
    k(f"s_sleep {E_('ASL', '7')}")
    g.run(al[:2])
    TT()
    sent_wait(g, list(range(80, 88)), al[:2], "ACT", sleep=int(E_("ASL2", "2")))
    TT()
    for r in range(8):
        for i in range(0, 8, 2):
            w = WDF[8 * r + i]; a = 80 + (r & ~1); sel = r & 1
            if r == 0: k(f"v_pk_mul_f32 v[{64+i}:{65+i}], v[{w}:{w+1}], v[{a}:{a+1}] op_sel_hi:[1,0]")
            else: k(f"v_pk_fma_f32 v[{64+i}:{65+i}], v[{w}:{w+1}], v[{a}:{a+1}], v[{64+i}:{65+i}] op_sel:[0,{sel},0] op_sel_hi:[1,{sel},1]")
    for i in range(4): k(f"v_permlane32_swap_b32 v{64+i}, v{68+i}")
    for i in range(4): k(f"v_add_f32 v{64+i}, v{64+i}, v{68+i}")
    for i in range(2): k(f"v_permlane16_swap_b32 v{64+i}, v{66+i}")
    for i in range(2): k(f"v_add_f32 v{64+i}, v{64+i}, v{66+i}")
    for pat in ("quad_perm:[1,0,3,2]", "quad_perm:[2,3,0,1]", "row_half_mirror", "row_mirror"):
        for i in range(2): k(f"v_add_f32_dpp v{64+i}, v{64+i}, v{64+i} {pat} row_mask:0xf bank_mask:0xf")
    k(f"""ds_write_b64 v51, v[64:65] offset:2048
    s_waitcnt lgkmcnt(0)
    s_barrier
    s_cmp_lg_u32 s{sW}, 0
    s_cbranch_scc1 L_fin
    ds_read_b32 v64, v50 offset:2048
    ds_read_b32 v65, v50 offset:2080
    ds_read_b32 v66, v50 offset:2112
    ds_read_b32 v67, v50 offset:2144
    s_lshl_b32 s{sB}, s{sIDX}, 10
    v_add_f32 v64, v64, v65
    v_add_f32 v66, v66, v67
    v_add_f32 v64, v64, v66""")
    bf1(k, 64)
    k("v_mul_f32 v64, v64, v90"); bf1(k, 64)
    k("v_add_f32 v64, v64, v88"); bf1(k, 64)
    k("v_mul_f32 v64, v64, v55"); bf1(k, 64)
    k(f"""v_add_f32 v64, v64, v89
    v_cvt_pk_bf16_f32 v64, v64, v64
    buffer_store_short v64, v52, {srd(OUT)}, s{sB} offen {E_("FP", "sc1")}""")

def verify_all(lines):
    tot = 0
    for name, (n1, n2, slow) in {"p0": (0, 15, False), "p3": (3, 12, False), "p1": (1, 14, True), "redo0": (0, 15, False), "redo3": (3, 12, False)}.items():
        def decide(lab, c):
            if lab == "L_op_odd": return name in ("p3", "p1")
            if lab.endswith("_redo"): return name.startswith("redo")
            if lab.endswith("_max"): return c == 0
            if lab.endswith("_mk"): return n1 == 0
            if lab.endswith("_maxd"): return c >= min(2, n1 if "t1" in lab else n2)
            if lab == "L_t1_zero": return n1 == 0
            if lab == "L_t1_diag": return n1 == 1
            if lab == "L_t2_diag": return name == "p1"
            if lab == "L_t1_loop": return c % 2 < min(n1 - 2, 1)
            if lab == "L_t2_loop": return c % 3 < 2
            if "_slow" in lab and not lab.endswith("_l"): return slow
            if "_ok" in lab or lab in ("L_kd", "L_hok"): return (c >= 2) if slow and ("P2" in lab or "ACT" in lab or "CND" in lab or lab in ("L_kd", "L_hok")) else True
            if lab == "L_notbest": return slow
            if lab == "L_keep": return name == "p0"
            return False
        T = trace(lines, decide)
        e = verify(T)
        tot += len(e)
        print(f"verify {name}: {len(T)} instrs, {len(e)} problems", file=sys.stderr)
        for x in e[:12]: print("   ", x, file=sys.stderr)
    assert tot == 0
```

```python
import sys, os
sys.path.insert(0, os.path.dirname(os.path.abspath(__file__)))
from common import *
from gen_attn import *
from gen_tail import *

TSR = list(range(83, 96)) + ([76, 77, 78] if not E_('TSP') else [])
NTS = [dict(k=WUK, v=WUV, q=WQ, o=WO)[c] for c in E_('NTS', 'k')]
class G:
    def __init__(self):
        self.k = K(); self.tail = []
        self.TS = E_("TS"); self.nts = 0
    def ts(self, k=None, force=False):
        if not self.TS: return
        if (E_("TSP") or E_("TSO") or E_("TSA") or E_("TST")) and not force: return
        k = k or self.k
        n = self.nts; self.nts += 1
        assert n < len(TSR)
        k(f"{'s_memrealtime' if self.TS == 'r' else 's_memtime'} vcc\ns_waitcnt lgkmcnt(0)\ns_mov_b32 s{TSR[n]}, vcc_lo")
    def ts0(self):
        if not E_("TS0"): return
        self.n0 = getattr(self, "n0", 0) + 1
        self.k(f"s_memrealtime vcc\ns_waitcnt lgkmcnt(0)\nv_writelane_b32 v255, vcc_lo, {self.n0}")
    def poll_check(self, vreg, vaddr, sr, soff, name, target=None, sleep=4):
        def f(k):
            slow, back = k.lab(name + "_slow"), k.lab(name + "_ok")
            cmp_ = f"v_cmp_ne_u32 vcc, 0, v{vreg}" if target is None else f"v_cmp_le_u32 vcc, {target}, v{vreg}"
            k(f"{cmp_}\ns_cmp_eq_u64 vcc, -1\ns_cbranch_scc0 {slow}")
            k.label(back)
            self.tail.append(f"""{slow}:
    s_mov_b32 s{sD}, 0
{slow}_l:
    s_sleep {sleep}
    buffer_load_dword v{vreg}, v{vaddr}, {srd(sr)}, {soff} offen {WT}
    s_add_u32 s{sD}, s{sD}, 1
    s_waitcnt vmcnt(0)
    {cmp_}
    s_cmp_eq_u64 vcc, -1
    s_cbranch_scc1 {back}
    s_cmp_lt_u32 s{sD}, {SPIN}
    s_cbranch_scc1 {slow}_l
    s_branch {back}""")
        return f
    def dma4(self, sr, voffs, m0, so, tag, xor=False, nt=None):
        it = [("s", f"s_add_u32 m0, s{m0[0]}, {m0[1]}"), ("s", f"{'s_xor_b32' if xor else 's_add_u32'} s{sA}, s{so[0]}, {so[1]}")]
        for i in range(4):
            it.append(("m", f"buffer_load_dwordx4 v{voffs[i]}, {srd(sr)}, s{sA} offen offset:{i*1024} {NT if (sr in NTS if nt is None else nt) else ''} {E_('PJL', '')} lds", tag))
        return it
    def run(self, its):
        for it in its:
            if callable(it[1]): it[1](self.k)
            else: self.k(it[1], it[2] if len(it) > 2 else None)
    def bar(self, tags, lgkm0=True):
        def f(k):
            k.waitvm(tags, lgkm0)
            if not E_("NOBAR"): k("s_barrier")
        return f
    def page(self, key):
        if key not in E_("PG4", "ab"): return
        l = self.k.lab("pg")
        self.k(f"s_branch {l}"); self.k.out.append(".p2align 12"); self.k.label(l)
    def flag_store(self, so, tags):
        return [("x", lambda k: k.waitvm(tags)), ("m", f"buffer_store_dword v6, v5, {srd(WS)}, s{so} offen {WT}", "flag")]

    def startup(self):
        k = self.k
        if self.TS: k(f"{'s_memrealtime' if self.TS == 'r' else 's_memtime'} s[58:59]")
        k(f"""s_cmp_ge_u32 s2, 256
        s_cbranch_scc1 L_end
        s_load_dwordx16 s[64:79], s[0:1], 0
        s_load_dwordx16 s[80:95], s[0:1], 64
        s_getpc_b64 s[{sB}:{sC}]
        L_pf1:
        v_lshrrev_b32 v3, 6, v0
        v_and_b32 v2, 63, v0
        s_lshr_b32 s{sJ}, s2, 3
        s_mul_i32 s{sA}, s{sJ}, 24
        v_min_u32 v5, 5, v2
        v_mad_u32_u24 v5, v3, 6, v5
        v_add_u32 v5, s{sA}, v5
        v_lshlrev_b32 v5, 7, v5
        v_min_u32 v5, L_code_end-L_pf1, v5""")
        k(f"global_load_dword a255, v5, s[{sB}:{sC}]", "pf")
        k(f"""v_readfirstlane_b32 s{sW}, v3
        v_lshlrev_b32 v1, 4, v2
        s_and_b32 s{sX}, s2, 7
        s_and_b32 s{sJ}, s{sJ}, 3
        s_lshr_b32 s{sP}, s2, 5
        s_lshl_b32 s{sH}, s{sX}, 2
        s_add_u32 s{sH}, s{sH}, s{sJ}
        s_mov_b32 s{sT1}, s{sP}
        s_sub_u32 s{sT2}, 15, s{sP}
        v_lshrrev_b32 v3, 3, v2
        v_lshrrev_b32 v4, 4, v2
        v_and_b32 v5, 7, v2
        v_xor_b32 v5, v5, v4
        v_lshlrev_b32 v5, 4, v5
        v_lshl_add_u32 v16, v3, 10, v5
        v_xor_b32 v17, 64, v16
        v_add_u32 v17, {7168}, v17
        v_add_u32 v18, {2*7168}, v16
        v_add_u32 v19, {2*7168}, v17
        ; W (k-major): v20..23
        v_bfe_u32 v5, v2, 1, 3
        v_xor_b32 v5, v5, v4
        v_lshlrev_b32 v5, 5, v5
        v_and_b32 v6, 1, v2
        v_lshl_add_u32 v5, v6, 4, v5
        v_lshl_add_u32 v20, v4, 13, v5
        v_add_u32 v21, {31744}, v20
        v_xor_b32 v22, 128, v20
        v_add_u32 v22, {2*31744}, v22
        v_add_u32 v23, {31744}, v22
        s_lshl_b32 s{sW8}, s{sW}, 13
        s_lshl_b32 s{sW4}, s{sW}, 12
        s_lshl_b32 s{sXB}, s{sP}, 18
        s_lshl_b32 s{sA}, s{sW}, 16
        s_add_u32 s{sXB}, s{sXB}, s{sA}
        s_lshl_b32 s{sWB}, s{sW}, 17
        s_lshl_b32 s{sD}, s{sJ}, {int(E_("RJ", "0"))}
        s_xor_b32 s{sD}, s{sD}, s{sP}
        s_lshl_b32 s{sD}, s{sD}, {int(E_("RS", "3"))}
        s_and_b32 s{sD}, s{sD}, 7
        s_lshl_b32 s{sA}, s{sD}, 7
        s_add_u32 s{sXB}, s{sXB}, s{sA}
        s_lshl_b32 s{sA}, s{sD}, 19
        s_add_u32 s{sWB}, s{sWB}, s{sA}
        v_and_b32 v84, 7, v2
        v_lshrrev_b32 v65, 3, v0
        v_mul_u32_u24 v64, 24576, v65
        v_lshl_add_u32 v64, v84, 4, v64
        v_lshlrev_b32 v65, 3, v65
        v_lshrrev_b32 v85, 3, v2
        v_lshlrev_b32 v86, 10, v84
        v_lshl_add_u32 v86, v85, 4, v86
        s_lshl_b32 s{sB}, s{sH}, 8
        s_waitcnt lgkmcnt(0)""")
        def mk(s, p, n, off=None):
            if off is None: k(f"s_mov_b32 s{s}, s{PTR[p]}\ns_mov_b32 s{s+1}, s{PTR[p]+1}\ns_mov_b32 s{s+2}, {n}\ns_mov_b32 s{s+3}, 0x00020000")
            else: k(f"s_add_u32 s{s}, s{PTR[p]}, s{off}\ns_addc_u32 s{s+1}, s{PTR[p]+1}, 0\ns_sub_u32 s{s+2}, {n}, s{off}\ns_mov_b32 s{s+3}, 0x00020000")
        if E_("TS0"): k("v_writelane_b32 v255, s58, 0")
        self.ts0()
        mk(WUK, "wuk", 0x400000, sB); mk(CKV, "ckv", 2048 * 1024)
        self.run(self.wdma(0)); self.ts0(); self.run(self.xdma(0)); self.ts0()
        T0 = E_("T0", "")
        if "x" in T0:
            k(f"""v_lshlrev_b32 v96, 7, v2
            v_min_u32 v96, {15*128}, v96
            s_lshl_b32 s{sC}, s2, 13
            s_lshl_b32 s{sD}, s{sW}, 11
            s_add_u32 s{sC}, s{sC}, s{sD}""")
            k(f"buffer_load_dword a254, v96, {srd(CKV)}, s{sC} offen", "pf")
        if "k" in T0:
            k(f"""v_bfe_u32 v96, v2, 1, 4
            v_lshlrev_b32 v96, 13, v96
            v_lshl_add_u32 v96, v6, 7, v96
            s_lshl_b32 s{sC}, s{sP}, 19
            s_lshl_b32 s{sD}, s{sW}, 17
            s_add_u32 s{sC}, s{sC}, s{sD}""")
            k(f"buffer_load_dword a253, v96, {srd(WUK)}, s{sC} offen", "pf")
        mk(WM, "wmod", 512 * 6144); mk(CS, "c", 1024); mk(XS, "x", 2048 * 1024)
        mk(WS, "ws", WS_SIZE); mk(WUV, "wuv", 0x400000, sB); mk(WQ, "wq", 0x400000, sB); mk(DBG, "dbg", 256)
        k(f"""s_lshl_b32 s{sB}, s{sX}, 19
        s_lshl_b32 s{sD}, s{sJ}, 8
        s_add_u32 s{sB}, s{sB}, s{sD}""")
        mk(WO, "wo", 0x400000, sB)
        mk(WD_, "wd", 1792 * 1024); mk(OUT, "out", 2048 * 1024)
        k(f"s_mov_b64 s[{sPG}:{sPG+1}], s[{PTR['wg']}:{PTR['wg']+1}]\ns_mov_b64 s[{sPG+2}:{sPG+3}], s[{PTR['wu']}:{PTR['wu']+1}]")
        if self.TS: k(f"s_mov_b32 s{TSR[0]}, s58"); self.nts = 1
        mk(WR_, "wr", 1024)
        if E_("STOUCH", "1") == "1":
            k(f"s_load_dword s90, s[{DBG}:{DBG+1}], 64\ns_load_dword s91, s[{WS}:{WS+1}], 0x3f00")
        k(f"""s_lshl_b32 s{sVB}, s{sW}, 19
        s_and_b32 s{sB}, s{sWB}, {7 << 19}
        s_xor_b32 s{sVB}, s{sVB}, s{sB}
        s_lshr_b32 s{sB}, s{sP}, {int(E_("RV", "1"))}
        s_and_b32 s{sB}, s{sB}, {int(E_("RVM", "0"))}
        s_lshl_b32 s{sVX}, s{sB}, 12                ; column half order of the V projection
        s_lshl_b32 s{sB}, s{sB}, 7
        s_add_u32 s{sVB}, s{sVB}, s{sB}
        s_lshl_b32 s{sB}, s{sJ}, 1
        s_xor_b32 s{sB}, s{sB}, s{sP}
        s_and_b32 s{sB}, s{sB}, {int(E_("RQM", "0"))}
        s_lshl_b32 s{sQR}, s{sB}, 11                ; chunk order of the Q projection
        s_lshl_b32 s{sB}, s{sB}, 19
        s_lshl_b32 s{sQB}, s{sW}, 17
        s_add_u32 s{sQB}, s{sQB}, s{sB}
        s_mul_i32 s{sKV}, s{sH}, {KVH}
        s_add_u32 s{sKV}, s{sKV}, {WS_KV}
        s_mul_i32 s{sB}, s{sP}, {2*KVS}
        s_add_u32 s{sKVST}, s{sKV}, s{sB}
        s_lshr_b32 s{sB}, s{sW}, 1
        s_mul_i32 s{sB}, s{sB}, {KVS}
        s_add_u32 s{sKVST}, s{sKVST}, s{sB}
        s_and_b32 s{sB}, s{sW}, 1
        s_lshl_b32 s{sB}, s{sB}, 14
        s_add_u32 s{sKVST}, s{sKVST}, s{sB}
        s_add_u32 s{sKV}, s{sKV}, s{sW8}
        s_cmp_eq_u32 s{sT1}, 0
        s_cselect_b32 s{sKp}, {14 if DESC else 0}, 1
        s_mul_i32 s{sKp}, s{sKp}, {KVS}
        s_add_u32 s{sKp}, s{sKp}, s{sKV}
        s_sub_u32 s{sB}, s{sP}, 2
        s_lshl_b32 s{sEO}, s{sB}, 7
        s_lshl_b32 s{sB}, s{sB}, 3
        s_add_u32 s{sB}, s{sB}, s{sX}
        s_lshl_b32 s{sB}, s{sB}, 8
        s_mul_i32 s{sC}, s{sJ}, 12288
        s_add_u32 s{sB}, s{sB}, s{sC}
        s_add_u32 s{sB}, s{sB}, {WS_MODP}
        s_cmp_ge_u32 s{sP}, 2
        s_cselect_b32 s{sMODO}, s{sB}, {OOB}
        s_cselect_b32 s{sEO}, s{sEO}, {OOB}
        s_cmp_eq_u32 s{sW}, 0
        s_cselect_b32 s{sMODO}, s{sMODO}, {OOB}
        s_lshl_b32 s{sLNP}, s{sW}, 9
        s_add_u32 s{sLNP}, s{sLNP}, {WS_MODP}
        s_lshr_b32 s{sHST}, s2, 1
        s_lshl_b32 s{sHST}, s{sHST}, 14
        s_and_b32 s{sB}, s2, 1
        s_lshl_b32 s{sB}, s{sB}, 7
        s_add_u32 s{sHST}, s{sHST}, s{sB}
        s_add_u32 s{sHST}, s{sHST}, s{sW4}
        s_add_u32 s{sHST}, s{sHST}, {WS_H}
        s_lshl_b32 s{sHFO}, s2, 2
        s_add_u32 s{sHFO}, s{sHFO}, s{sW}
        s_lshl_b32 s{sHFO}, s{sHFO}, 6
        s_add_u32 s{sHFO}, s{sHFO}, {WS_HF}
        s_lshl_b32 s{sKFP}, s{sH}, 11
        s_add_u32 s{sKFP}, s{sKFP}, {WS_KVF}
        s_lshl_b32 s{sKFO}, s{sP}, 2
        s_add_u32 s{sKFO}, s{sKFO}, s{sW}
        s_lshl_b32 s{sKFO}, s{sKFO}, 6
        s_add_u32 s{sKFO}, s{sKFO}, s{sKFP}
        s_lshr_b32 s{sB}, s{sW}, 1
        s_sub_u32 s{sC}, 3, s{sB}
        s_and_b32 s{sA}, s{sW}, 1
        s_cselect_b32 s{sB}, s{sC}, s{sB}          ; row group projected by this wave
        s_lshl_b32 s{sH1}, s{sT1}, 2
        s_add_u32 s{sH1}, s{sH1}, s{sB}
        s_lshl_b32 s{sH2}, s{sT2}, 2
        s_add_u32 s{sH2}, s{sH2}, s{sB}
        s_sub_u32 s{sHFD}, s{sH2}, s{sH1}
        s_lshl_b32 s{sHFD}, s{sHFD}, 10
        s_lshl_b32 s{sHF1}, s{sH1}, 10
        s_add_u32 s{sHF1}, s{sHF1}, {WS_HF - 65536}
        s_lshl_b32 s{sH1}, s{sH1}, 15
        s_add_u32 s{sH1}, s{sH1}, {WS_H}
        s_add_u32 s{sH1}, s{sH1}, s{sQR}
        s_lshl_b32 s{sH2}, s{sH2}, 15
        s_add_u32 s{sH2}, s{sH2}, {WS_H}
        s_add_u32 s{sH2}, s{sH2}, s{sQR}
        s_add_u32 s{sVX}, s{sVX}, s{sKVST}
        {f"s_mov_b32 s{sVX}, 0x70000000" if E_("NOST") else ""}
        {f"s_mov_b32 s{sKVST}, 0x70000000" if E_("NOST") else ""}
        {f"s_mov_b32 s{sH1}, {WS_H}" if E_("NOH") else ""}
        {f"s_mov_b32 s{sH2}, {WS_H}" if E_("NOH") else ""}
        s_cmp_eq_u32 s{sW}, 0
        s_cselect_b32 s{sET}, 32, 0
        s_cselect_b32 s{sEP}, 0, {OOB}""")
        k(f"""v_and_b32 v48, 15, v2          ; i16
        v_lshrrev_b32 v49, 4, v2       ; q4
        v_lshrrev_b32 v50, 1, v48
        v_xor_b32 v50, v50, v49
        v_lshlrev_b32 v50, 4, v50
        v_lshl_add_u32 v28, v48, 7, v50
        v_add_u32 v28, s{sW8}, v28
        v_xor_b32 v29, 64, v28
        v_add_u32 v30, 65536, v28
        v_add_u32 v31, 65536, v29
        v_lshrrev_b32 v50, 2, v48     ; r
        v_and_b32 v51, 3, v48         ; c
        v_lshl_add_u32 v52, v49, 3, v50      ; row = 8q4 + r
        v_lshlrev_b32 v53, 8, v52
        v_lshl_add_u32 v53, v51, 3, v53
        v_add_u32 v53, {R3}, v53
        v_and_b32 v54, 1, v49
        v_lshl_add_u32 v54, v54, 2, v50      ; f""")
        for nt in range(8):
            k(f"v_xor_b32 v55, {nt}, v54\nv_lshl_add_u32 v{8+nt}, v55, 5, v53")
        k(f"""v_bfe_u32 v49, v2, 1, 2
        v_bfe_u32 v50, v2, 4, 1
        v_xor_b32 v49, v49, v50
        v_lshlrev_b32 v49, 5, v49
        v_and_b32 v50, 1, v2
        v_lshl_add_u32 v49, v50, 4, v49
        v_lshl_add_u32 v24, v85, 13, v49
        v_xor_b32 v25, 64, v24
        v_add_u32 v25, {64512}, v25
        v_add_u32 v26, {2*64512}, v24
        v_add_u32 v27, {2*64512}, v25
        v_cmp_eq_u32 vcc, 0, v2
        v_mov_b32 v6, {OOB}
        v_cndmask_b32 v5, v6, v2, vcc
        v_cmp_eq_u32 vcc, 0, v0
        v_cndmask_b32 v7, v6, v0, vcc
        v_and_b32 v48, 8, v2
        v_cmp_eq_u32 vcc, 0, v48
        v_lshlrev_b32 v48, 5, v84
        v_lshrrev_b32 v49, 1, v2
        v_and_b32 v49, 24, v49
        v_add_u32 v48, v48, v49
        s_lshl_b32 s{sB}, s{sW}, 8
        s_add_u32 s{sB}, s{sB}, {MISC}
        v_add_u32 v48, s{sB}, v48
        v_mov_b32 v49, {MISC + 1024}
        v_cndmask_b32 v98, v49, v48, vcc
        v_lshlrev_b32 v99, 5, v84
        v_add_u32 v99, {MISC + 2048}, v99
        s_lshl_b32 s{sB}, s{sW}, 3
        v_add_u32 v100, s{sB}, v99
        v_lshlrev_b32 v106, 5, v85
        v_lshlrev_b32 v107, 8, v85
        v_lshl_add_u32 v107, v84, 4, v107
        s_sub_u32 s{sB}, s2, 64
        s_lshl_b32 s{sZO}, s{sB}, 12
        s_add_u32 s{sZO}, s{sZO}, {WS_HF}
        s_cmp_lt_u32 s{sB}, 64
        s_cselect_b32 s{sZO}, s{sZO}, {OOB}
        s_mul_i32 s{sD}, s{sJ}, {128*6144}
        s_sub_u32 s{sSD}, s{sP}, 2
        s_lshl_b32 s{sSD}, s{sSD}, 3
        s_add_u32 s{sSD}, s{sSD}, s{sX}
        s_lshl_b32 s{sSD}, s{sSD}, 7
        s_add_u32 s{sSD}, s{sSD}, s{sD}
        s_cmp_ge_u32 s{sP}, 2
        s_cselect_b32 s{sSD}, s{sSD}, {OOB - 0x10000}
        {f"s_cmp_lt_u32 s{sP}, 4" if E_("NOLATE") else ""}
        {f"s_cselect_b32 s{sSD}, s{sSD}, {OOB - 0x10000}" if E_("NOLATE") else ""}
        s_lshl_b32 s{sB}, s{sJ}, 8
        v_add_u32 v65, s{sB}, v65
        v_mov_b32 v6, 1
        v_and_b32 v4, 1, v2
        v_lshlrev_b32 v4, 7, v4""")
        self.ts0()
        if E_("SIDE", "0") == "0": self.run(self.side())
        self.run(self.wdma(1) + self.xdma(1))
        self.ts0()
        if E_("TS0"):
            k.waitvm([("x", 0), ("w", 0)], True); self.ts0()
            k.waitvm(["pf"], True); self.ts0()
            k("s_waitcnt vmcnt(0)"); self.ts0()
            k(f"""s_lshl_b32 s{sB}, s2, 2
            s_add_u32 s{sB}, s{sB}, s{sW}
            s_lshl_b32 s{sB}, s{sB}, 6
            s_add_u32 s{sB}, s{sB}, {WS_TS}
            v_lshlrev_b32 v5, 2, v2
            s_mov_b64 exec, 0xffff
            buffer_store_dword v255, v5, {srd(WS)}, s{sB} offen
            s_endpgm""")

    def side(self):
        return items(f"""buffer_load_dwordx2 v[66:67], v65, {srd(CS)}, 0 offen
        buffer_load_dwordx4 v[68:71], v64, {srd(WM)}, s{sSD} offen {NT}
        s_add_u32 s{sSD}, s{sSD}, 6144
        buffer_load_dwordx4 v[72:75], v64, {srd(WM)}, s{sSD} offen {NT}
        s_add_u32 s{sSD}, s{sSD}, 6144
        buffer_load_dwordx4 v[76:79], v64, {srd(WM)}, s{sSD} offen {NT}
        s_add_u32 s{sSD}, s{sSD}, 6144
        buffer_load_dwordx4 v[80:83], v64, {srd(WM)}, s{sSD} offen {NT}
        s_lshl_b32 s{sSD}, s2, 5
        s_add_u32 s{sSD}, s{sSD}, s{sW}
        s_lshl_b32 s{sSD}, s{sSD}, 8
        buffer_load_dwordx4 v[88:91], v86, {srd(XS)}, s{sSD} offen {NT}
        buffer_load_dwordx4 v[92:95], v86, {srd(XS)}, s{sSD} offen offset:128 {NT}""")
    XR = [R0, R1, R2]
    WSL = [R3, R3 + 16384, R4]
    WQB = [R4, R3, R3 + 16384, MISC, R0, R0 + 16384, R1, R1 + 16384]
    VQB = [R2, R0, R1, R2]
    def xdma(self, s):
        it = []
        for g in range(2):
            it += self.dma4(CKV, [16, 17, 18, 19], (sW8, self.XR[s % 3] + g * 4096), (sXB, s * 128 + g * 32768), ("x", s), True)
        return it
    def wdma(self, s): return self.dma4(WUK, [20, 21, 22, 23], (sW4, self.WSL[s % 3]), (sWB, s * 64 * 8192), ("w", s), True)
    def qdma(self, c): return self.dma4(WQ, [20, 21, 22, 23], (sW4, self.WQB[c]), (sQB, c * 64 * 8192), ("q", c), True)
    def vdma(self, c):
        it = []
        for g in range(2):
            it += self.dma4(WUV, [24, 25, 26, 27], (sW8, self.VQB[c] + g * 4096), (sVB, (c >> 1) * 128 + (c & 1) * 256 * 8192 + g * 4 * 65536), ("v", c), True, c < int(E_("VNT", "0")))
        return it

    def modA(self):
        C, T, AC = 102, 108, 120
        t = f"""v_lshlrev_b32 v{C}, 16, v66
        v_and_b32 v{C+1}, 0xffff0000, v66
        v_lshlrev_b32 v{C+2}, 16, v67
        v_and_b32 v{C+3}, 0xffff0000, v67
        """
        for i in range(4): t += f"v_mul_f32 v{T+i}, {H(-LOG2E)}, v{C+i}\n"
        for i in range(4): t += f"v_exp_f32 v{T+i}, v{T+i}\n"
        for i in range(4): t += f"v_add_f32 v{T+i}, 1.0, v{T+i}\n"
        for i in range(4): t += f"v_rcp_f32 v{T+i}, v{T+i}\n"
        for i in range(4): t += f"v_mul_f32 v{C+i}, v{C+i}, v{T+i}\n"
        t += f"""v_cvt_pk_bf16_f32 v{T}, v{C}, v{C+1}
        v_cvt_pk_bf16_f32 v{T+1}, v{C+2}, v{C+3}
        v_lshlrev_b32 v{C}, 16, v{T}
        v_and_b32 v{C+1}, 0xffff0000, v{T}
        v_lshlrev_b32 v{C+2}, 16, v{T+1}
        v_and_b32 v{C+3}, 0xffff0000, v{T+1}
        """
        for r in range(4):
            for i in range(4):
                a, b = T + 2 * (i & 1), T + 2 * (i & 1) + 1
                op = "v_mul_f32" if r == 0 else "v_fmac_f32"
                t += f"""v_lshlrev_b32 v{a}, 16, v{68+4*r+i}
                v_and_b32 v{b}, 0xffff0000, v{68+4*r+i}
                {op} v{AC+2*i}, v{a}, v{C+r}
                {op} v{AC+2*i+1}, v{b}, v{C+r}
                """
        for i in range(4): t += f"v_permlane32_swap_b32 v{AC+i}, v{AC+4+i}\n"
        for i in range(4): t += f"v_add_f32 v{AC+i}, v{AC+i}, v{AC+4+i}\n"
        for i in range(2): t += f"v_permlane16_swap_b32 v{AC+i}, v{AC+2+i}\n"
        for i in range(2): t += f"v_add_f32 v{AC+i}, v{AC+i}, v{AC+2+i}\n"
        for i in range(2): t += f"v_add_f32_dpp v{AC+i}, v{AC+i}, v{AC+i} row_ror:8 row_mask:0xf bank_mask:0xf\n"
        t += f"ds_write_b64 v98, v[{AC}:{AC+1}]\n"
        return items(t)
    def red16(self, b):
        t = ""
        for i in range(8): t += f"v_permlane32_swap_b32 v{b+i}, v{b+8+i}\n"
        for i in range(8): t += f"v_add_f32 v{b+i}, v{b+i}, v{b+8+i}\n"
        for i in range(4): t += f"v_permlane16_swap_b32 v{b+i}, v{b+4+i}\n"
        for i in range(4): t += f"v_add_f32 v{b+i}, v{b+i}, v{b+4+i}\n"
        for pat in ("quad_perm:[1,0,3,2]", "quad_perm:[2,3,0,1]", "row_half_mirror", "row_mirror"):
            for i in range(4): t += f"v_add_f32_dpp v{b+i}, v{b+i}, v{b+i} {pat} row_mask:0xf bank_mask:0xf\n"
        return t
    def modB(self):
        it = items(f"""v_lshrrev_b32 v87, 2, v1
        v_add_u32 v101, {MISC}, v87
        ds_read_b32 v102, v101
        ds_read_b32 v103, v101 offset:256
        ds_read_b32 v104, v101 offset:512
        ds_read_b32 v105, v101 offset:768""")
        it2 = items(f"""v_add_f32 v102, v102, v103
        v_add_f32 v104, v104, v105
        v_add_f32 v102, v102, v104""")
        it2.append(("m", f"buffer_store_dword v102, v87, {srd(WS)}, s{sMODO} offen {WT}", "mod"))
        return it, it2
    def red8(self, v, t):
        return f"""v_add_f32_dpp v{v}, v{v}, v{v} row_ror:8 row_mask:0xf bank_mask:0xf
        v_mov_b32 v{t}, v{v}
        v_permlane16_swap_b32 v{v}, v{t}
        v_add_f32 v{v}, v{v}, v{t}
        v_mov_b32 v{t}, v{v}
        v_permlane32_swap_b32 v{v}, v{t}
        v_add_f32 v{v}, v{v}, v{t}
        """
    XH = 64
    def lnA(self):
        X = self.XH
        t = ""
        for i in range(8): t += f"v_lshlrev_b32 v{X+2*i}, 16, v{88+i}\nv_and_b32 v{X+2*i+1}, 0xffff0000, v{88+i}\n"
        t += f"v_add_f32 v108, v{X}, v{X+1}\nv_add_f32 v109, v{X+2}, v{X+3}\n"
        for i in range(4, 16, 2): t += f"v_add_f32 v108, v108, v{X+i}\nv_add_f32 v109, v109, v{X+i+1}\n"
        t += "v_add_f32 v108, v108, v109\n" + self.red8(108, 110)
        t += f"v_mul_f32 v108, {H(1/128)}, v108\n"
        t += f"v_sub_f32 v110, v{X}, v108\nv_mul_f32 v109, v110, v110\n"
        for i in range(1, 16): t += f"v_sub_f32 v{110+(i&1)}, v{X+i}, v108\nv_fmac_f32 v109, v{110+(i&1)}, v{110+(i&1)}\n"
        t += self.red8(109, 110)
        t += "ds_write_b64 v100, v[108:109]\n"
        return items(t)
    def lnB(self):
        X = self.XH
        it = items(f"""ds_read_b128 v[88:91], v99
        ds_read_b128 v[92:95], v99 offset:16""")
        t = f"""v_add_f32 v108, v88, v90
        v_add_f32 v109, v92, v94
        v_add_f32 v108, v108, v109
        v_mul_f32 v108, {H(0.25)}, v108
        v_add_f32 v109, v89, v91
        v_add_f32 v110, v93, v95
        v_add_f32 v109, v109, v110
        v_sub_f32 v88, v88, v108
        v_sub_f32 v90, v90, v108
        v_sub_f32 v92, v92, v108
        v_sub_f32 v94, v94, v108
        v_mul_f32 v110, v88, v88
        v_fmac_f32 v110, v90, v90
        v_fmac_f32 v110, v92, v92
        v_fmac_f32 v110, v94, v94
        v_fmac_f32 v109, {H(128.0)}, v110
        v_mov_b32 v110, {H(1e-5)}
        v_fmac_f32 v110, {H(1/512)}, v109
        v_rsq_f32 v110, v110
        """
        for i in range(16): t += f"v_sub_f32 v{X+i}, v{X+i}, v108\n"
        for i in range(16): t += f"v_mul_f32 v{X+i}, v{X+i}, v110\n"
        return it, items(t)
    def lnC_loads(self):
        it = items(f"""v_and_b32 v96, 31, v2
        v_lshlrev_b32 v96, 4, v96
        v_lshrrev_b32 v97, 5, v2
        v_lshl_add_u32 v96, v97, 11, v96""")
        ld = []
        for q in range(4):
            ld += [("m", f"buffer_load_dwordx4 v[{80+4*q}:{83+4*q}], v96, {srd(WS)}, s{sLNP} offen")]
            if q < 3: ld += [("s", f"s_add_u32 s{sLNP}, s{sLNP}, 12288")]
        return it, ld
    def lnC_fin(self):
        t = ""
        for e in range(4): t += f"v_add_f32 v{80+e}, v{80+e}, v{84+e}\nv_add_f32 v{88+e}, v{88+e}, v{92+e}\n"
        for e in range(4): t += f"v_add_f32 v{80+e}, v{80+e}, v{88+e}\n"
        rnd = lambda: "".join(f"v_cvt_pk_bf16_f32 v{84+e}, v{80+2*e}, v{81+2*e}\n" for e in range(2)) + "".join(f"v_lshlrev_b32 v{80+2*e}, 16, v{84+e}\nv_and_b32 v{81+2*e}, 0xffff0000, v{84+e}\n" for e in range(2))
        t += "v_lshrrev_b32 v88, 5, v2\nv_cvt_f32_u32 v88, v88\n" + rnd()
        for e in range(4): t += f"v_add_f32 v{80+e}, v{80+e}, v88\n"
        t += rnd()
        for e in range(4): t += f"v_mul_f32 v{80+e}, {H(QSCALE)}, v{80+e}\n"
        t += f"""s_lshl_b32 s{sLNP}, s{sW}, 10
        s_add_u32 s{sLNP}, s{sLNP}, {MISC + 4096}
        v_add_u32 v88, s{sLNP}, v1
        v_add_u32 v18, s{sLNP}, v18
        ds_write_b128 v88, v[80:83]
        """
        return items(t)
    def lnC_rd(self, i):
        return [("l", f"ds_read_b128 v[{80+seg*8+hf*4}:{83+seg*8+hf*4}], v18 offset:{seg*512 + i*256 + hf*16}") for seg in range(2) for hf in range(2)]
    def lnC(self, i):
        X = self.XH + 8 * i
        t = ""
        for e in range(8): t += f"v_fma_f32 v{X+e}, v{X+e}, v{88+e}, v{80+e}\n"
        t2 = ""
        for e in range(4): t2 += f"v_cvt_pk_bf16_f32 v{X+e}, v{X+2*e}, v{X+2*e+1}\n"
        return items(t), items(t2) + [("m", f"buffer_store_dwordx4 v[{X}:{X+3}], v19, {srd(WS)}, s{sHST} offen offset:{2048*i} {WT}", "hst")]

    WF, VACC, ACC = 32, 64, 128
    def proj(self):
        k = self.k; WF, VACC, ACC = self.WF, self.VACC, self.ACC
        M = []
        def kmajor(nk=16):
            for n in range(nk):
                for dt in range(8):
                    for tt in range(4):
                        d = V(ACC + (tt * 8 + dt) * 4)
                        M.append(MF(d, V(WF + 4 * dt), A((n * 4 + tt) * 4), "0" if n == 0 else d))
        KL = E_("KL", "1") == "1"
        kmajor(14 if KL else 16)
        KORD = [(u, tt) for u in range(4) for tt in range(4)]
        if KL:
            for (u, tt) in KORD:
                for dt in (2 * u, 2 * u + 1):
                    for n in (14, 15):
                        d = V(ACC + (tt * 8 + dt) * 4)
                        M.append(MF(d, V((WF if n == 14 else 96) + 4 * dt), A((n * 4 + tt) * 4), d))
        V0 = len(M)
        VST = [(pc, sh, q) for pc in range(4) for sh in range(2) for q in range(4)]
        C4 = E_("C4", "1") == "1"
        for i, (pc, sh, q) in enumerate(VST):
            if C4:
                for tt in range(4):
                    for h in range(4):
                        n = (pc & 1) * 8 + 4 * (q >> 1) + h
                        d = V(VACC + (1 - sh) * 32 + ((q & 1) * 4 + tt) * 4)
                        M.append(MF(d, A((n * 4 + tt) * 4), V(WF + ((i & 1) * 4 + h) * 4), "0" if n == 0 else d))
                continue
            for nt in range(2):
                for tt in range(4):
                    for h in range(2):
                        n = (pc & 1) * 8 + 2 * q + h
                        d = V(VACC + (1 - sh) * 32 + (nt * 4 + tt) * 4)
                        M.append(MF(d, A((n * 4 + tt) * 4), V(WF + ((i & 1) * 4 + nt * 2 + h) * 4), "0" if n == 0 else d))
        Q0 = len(M)
        kmajor(13)
        QL = len(M); WX = {14: 96, 15: 64}
        QORD = [(u, tt) for u in range(4) for tt in (2, 3, 0, 1)]
        for (u, tt) in QORD:
            for dt in (2 * u, 2 * u + 1):
                for n in (13, 14, 15):
                    d = V(ACC + (tt * 8 + dt) * 4)
                    M.append(MF(d, V(WF + 4 * dt) if n == 13 else A(WX[n] + 4 * dt), A((n * 4 + tt) * 4), d))
        ph = Phase(k, M); N = len(M); ph.mspace = int(E_('MSP', '1')); ph.batch = int(E_('BAT', '9'))
        if E_('LAT', '0') == '1': ph.lat = (4, 2)
        ph.livein = {f'v{i}' for i in range(64, 96)}
        def wread(base, n, dt, ag=None):
            o = base + (n & 1) * 8192
            if ag is not None:
                return [("l", f"ds_read_b64_tr_b16 a[{ag+4*dt}:{ag+4*dt+1}], v{8+dt} offset:{o}"),
                        ("l", f"ds_read_b64_tr_b16 a[{ag+4*dt+2}:{ag+4*dt+3}], v{8+dt} offset:{o+1024}")]
            return [("l", f"ds_read_b64_tr_b16 v[{WF+4*dt}:{WF+4*dt+1}], v{8+dt} offset:{o}"),
                    ("l", f"ds_read_b64_tr_b16 v[{WF+4*dt+2}:{WF+4*dt+3}], v{8+dt} offset:{o+1024}")]
        def xread(n, tt):
            s = n >> 1; sl = s % 3
            va = (28 if sl < 2 else 30) + (n & 1)
            return ("l", f"ds_read_b128 {A((n*4+tt)*4)}, v{va} offset:{(sl if sl < 2 else 0)*32768 + tt*2048}")
        def vread(i, nt, h):
            pc, sh, q = VST[i]
            reg = self.VQB[pc]; va = 28 + 2 * sh + nt
            o = (reg if reg < R2 else 0) + (2 * q + h) * 4096
            if C4: va = 28 + 2 * sh + (q & 1); o = (reg if reg < R2 else 0) + (4 * (q >> 1) + nt * 2 + h) * 4096
            f = WF + ((i & 1) * 4 + nt * 2 + h) * 4
            return [("l", f"ds_read_b64_tr_b16 v[{f}:{f+1}], v{va} offset:{o}"), ("l", f"ds_read_b64_tr_b16 v[{f+2}:{f+3}], v{va} offset:{o+512}")]
        BOFF = 40
        KFREE = (lambda slot: V0 - 64 + 16 * (slot >> 1) + 16) if KL else (lambda slot: V0 - 32 + 4 * slot + 4)
        MPRE = E_("MPRE", "0")
        if MPRE != "0": self.run(self.modA())
        if MPRE == "2": self.run(self.lnA())
        k.waitvm([("x", 0), ("w", 0)], True); k("s_barrier")
        self.ts()
        for it in wread(self.WSL[0] - R3, 0, 0): k(it[1])
        for tt in range(4): k(xread(0, tt)[1])
        for dt in range(1, 8):
            for it in wread(self.WSL[0] - R3, 0, dt): k(it[1])
        for s in range(7): ph.put("x", self.bar([("x", s + 1), ("w", s + 1)]), 64 * s + BOFF)
        ph.put("x", self.bar([("v", 0)]), 64 * 7 + BOFF)
        BV = [V0 + 128 * c + 110 for c in range(4)]
        for c in range(3): ph.put("x", self.bar([("v", c + 1)]), BV[c])
        ph.put("x", self.bar([("q", i) for i in range(4)]), BV[3])
        BQ = Q0 + 64 * 3 + BOFF
        ph.put("x", self.bar([("q", i) for i in range(4, 8)]), BQ)
        BE = QL + 7
        ph.put("x", self.bar([]), BE)
        for (G0, bases) in ((0, [self.WSL[s % 3] - R3 for s in range(8)]), (Q0, [b - R3 if b >= R3 else b for b in self.WQB])):
            for n in range(0 if G0 else 1, 14 if G0 or KL else 16):
                for dt in range(8):
                    lo = G0 + 32 * (n - 1) + 4 * dt + 4
                    if n == 0: lo = max(BV[3] + 1, (Q0 - 32 + 16 * (dt >> 2) + 13 + (dt & 3)) if C4 else [Q0 - 24, Q0 - 16, Q0 - 8, Q0][dt >> 1])
                    elif n % 2 == 0 and (G0 == 0 or n == 8): lo = max(lo, G0 + 32 * (n - 2) + BOFF + 1)
                    pre = []
                    if G0 and n == 8: pre = [("v", f"v_subrev_u32 v{8+dt}, {R3}, v{8+dt}")]; lo -= 1
                    g = ph.stream(pre + wread(bases[n >> 1], n, dt), lo, G0 + 32 * n + 4 * dt - 6)
                    if n % 2 == 1 and (G0 == 0 or n in (7, 13)): assert g < (G0 + 32 * (n - 1) + BOFF if n < 13 or not G0 else BE), (n, dt, g)
        if KL:
            b7 = self.WSL[7 % 3] - R3; g = 64 * 6 + BOFF
            for u in range(4):
                its = []
                for dt in (2 * u, 2 * u + 1):
                    w14 = wread(b7, 14, dt)
                    its += [w14[0] + (None, 32 * 13 + 4 * dt + 4), w14[1]]
                    its += [(it[0], it[1].replace(f"v[{WF+4*dt}:{WF+4*dt+1}]", f"v[{96+4*dt}:{97+4*dt}]").replace(f"v[{WF+4*dt+2}:{WF+4*dt+3}]", f"v[{98+4*dt}:{99+4*dt}]")) for it in wread(b7, 15, dt)]
                if u == 0: its = its[:4] + [xread(14, 0), xread(15, 0)] + its[4:] + [xread(n, tt) for tt in range(1, 4) for n in (14, 15)]
                g = ph.stream(its, max(g + 1, V0 - 64 + 16 * u - 24))
                if u == 0: gx = g
                assert g < (V0 - 64 + 16 * u - 5 if u else V0 - 64 - 4), (u, g)
        gq = Q0 + 32 * 9 + 4
        for n in (14, 15):
            for dt in range(8):
                for it in wread(self.WQB[7], n, dt, WX[n]): gq = ph.put(it[0], it[1], gq + 3)
        assert gq < BE - 4, gq
        for i, (u, tt) in enumerate(QORD[:-1]):
            b = ACC + (tt * 8 + 2 * u) * 4
            g = ph.stream([("v", f"v_cvt_pk_bf16_f32 v{b+e}, v{b+2*e}, v{b+2*e+1}") for e in range(4)], QL + 6 * i + 9)
            ph.put("l", f"ds_write_b128 v{vMW}, {V(b)} offset:{(tt>>1)*R1 + ((tt&1)*4+u)*1024}", g + 1)
        self.qlast = QORD[-1]
        for n in range(1, 14 if KL else 16):
            lo = 32 * (n - 1) + 2
            if n % 2 == 0: lo = 32 * (n - 2) + BOFF + 1
            gx2 = ph.stream([xread(n, tt) for tt in range(4)], lo, 32 * n - 6)
        if not KL: gx = gx2
        vaddr = items(f"""v_and_b32 v16, 15, v2
        v_lshrrev_b32 v17, 4, v2
        v_lshrrev_b32 v29, 2, v16
        v_and_b32 v16, 3, v16
        v_lshl_add_u32 v28, v17, 3, v29
        v_lshlrev_b32 v28, 7, v28
        v_lshl_add_u32 v28, v16, 3, v28
        v_and_b32 v17, 1, v17
        v_lshrrev_b32 v29, 1, v29
        v_lshl_add_u32 v29, v17, 1, v29
        v_lshl_add_u32 v28, v29, 5, v28
        v_add_u32 v28, 65536, v28
        v_xor_b32 v29, 32, v28
        v_xor_b32 v30, 64, v28
        v_xor_b32 v31, 96, v28
        v_and_b32 v16, 15, v2
        v_lshlrev_b32 v16, 6, v16
        v_add_u32 v16, 65536, v16
        v_mad_i32_i24 v16, v17, s{sHFD}, v16
        v_and_b32 v17, 31, v2
        v_lshlrev_b32 v17, 6, v17""")
        g = ph.stream(vaddr, gx + 1)
        assert g <= 64 * 7 + BOFF + 6, g
        for i, (pc, sh, q) in enumerate(VST):
            g0 = V0 + 16 * i
            for nt in range(2):
                for h in range(2):
                    slot = (i & 1) * 4 + nt * 2 + h
                    if i < 2: lo = max(64 * 7 + BOFF + 1, KFREE(slot))
                    elif C4: lo = g0 - 32 + 12 + nt * 2 + h + 1
                    else: lo = g0 - 32 + 8 * nt + 8
                    if pc > 0: lo = max(lo, BV[pc - 1] + 1)
                    pre = []; first = (q < 2 and nt == 0 and h == 0) if C4 else (q == 0 and h == 0)
                    ra = 28 + 2 * sh + ((q & 1) if C4 else nt)
                    if first and pc in (1, 3): pre = [("v", f"v_xor_b32 v{ra}, 65536, v{ra}")]; lo -= 1
                    after = (not first and q < 2) if C4 else (h and q == 0)
                    g = ph.stream(pre + vread(i, nt, h), max(lo, gprev + 1) if after else lo, g0 - 4 + (0 if C4 else 8 * nt))
                    gprev = g
                    assert g < BV[pc], (i, g)
        first = self.wdma(2) + self.xdma(2)
        if E_("SIDE", "0") == "1": first = self.side() + first
        if E_("SIDE", "0") == "2": first = first + self.side()
        ph.stream(first, 0, BOFF - 1, sid=900)
        ph.stream(items("".join(f"s_mov_b32 s{d}, s{p}\ns_mov_b32 s{d+1}, s{p+1}\ns_mov_b32 s{d+2}, {512*3584}\n" for (d, p) in ((WG_, sPG), (WU_, sPG + 2)))), 120)
        for s in range(8):
            its = (self.wdma(s + 3) + self.xdma(s + 3)) if s < 5 else self.vdma(s - 5)
            if s == 7: its += self.qdma(0) + self.qdma(1)
            g = ph.stream(its, 64 * s + BOFF + 1, None, step=2 if s < 5 or (s == 6 and KL) else 4, sid=900)
            assert g < (64 * (s + 1) + BOFF if s < 7 else BV[0]), (s, g)
        g = ph.stream(self.vdma(3) + self.qdma(2) + self.qdma(3), BV[0] + 1, None, step=3 if C4 else 5, sid=900); assert g < BV[1]
        ph.stream(self.qdma(4) + self.qdma(5), BV[1] + 1, None, step=6, sid=900)
        ph.stream(self.qdma(6) + self.qdma(7), BV[2] + 1, None, step=6, sid=900)
        m1, m2 = self.modB(); l1, l2 = self.lnB()
        zero = items(f"""v_mov_b32 v112, 0
        v_mov_b32 v113, 0
        v_mov_b32 v114, 0
        v_mov_b32 v115, 0
        v_lshlrev_b32 v116, 4, v0""") + [("m", f"buffer_store_dwordx4 v[112:115], v116, {srd(WS)}, s{sZO} offen {WT}", "zero")] + items(f"""v_min_u32 v116, 496, v116
        s_sub_u32 s{sZO}, s{sZO}, {WS_HF}
        s_lshr_b32 s{sZO}, s{sZO}, 3
        s_add_u32 s{sZO}, s{sZO}, {WS_LF}
        s_cmp_lt_u32 s{sZO}, {WS_LF + 0x8000}
        s_cselect_b32 s{sZO}, s{sZO}, {OOB}
        buffer_store_dwordx4 v[112:115], v116, {srd(WS)}, s{sZO} offen {WT}""", "zero")
        g = ph.stream(items(f"""v_lshlrev_b32 v117, 13, v2
        s_lshl_b32 s{sB}, s{sP}, 19
        s_and_b32 s{sC}, s{sW}, 1
        s_lshl_b32 s{sC}, s{sC}, 7
        s_add_u32 s{sB}, s{sB}, s{sC}"""), int(E_("TGS", "60")), sid=904)
        for w, gp in enumerate(int(x) for x in E_("TG", "102,166,230,294").split(",")):
            if E_("TM", "plain") == "none": continue
            first = f"buffer_load_dword a{240+2*w}, v117, {srd(WUV if w < 2 else WQ)}, s{sC} offen nt" if E_("TM", "plain") == "pair" else ""
            ph.put("x", f"""s_cmp_eq_u32 s{sW}, {w}
            s_cselect_b32 s{sC}, s{sB}, {OOB}
            {first}
            buffer_load_dword a{241+2*w}, v117, {srd(WUV if w < 2 else WQ)}, s{sC} offen offset:4""", gp, tag="pf")
        if PFK:
            its = items("".join(f"v_mov_b32 v{124+e}, -1\n" for e in range(4)) + f"""s_lshl_b32 s{sSD}, s2, 2
            s_add_u32 s{sSD}, s{sSD}, s{sW}
            s_lshl_b32 s{sSD}, s{sSD}, 14
            s_add_u32 s{sSD}, s{sSD}, {WS_P}""")
            for i in range(PFK):
                its.append(("m", f"buffer_store_dwordx4 v[124:127], v1, {srd(WS)}, s{sSD} offen offset:{(i & 3) * 1024} {WT}", "pre"))
                if i & 3 == 3: its.append(("s", f"s_add_u32 s{sSD}, s{sSD}, 4096"))
            gpf = ph.stream(its, int(E_("PFG", "200")), None, step=int(E_("PFS", "24")))
            print("early fill ends", gpf, file=sys.stderr); assert gpf < 452
        if E_("TG2"):
            ph.put("x", f"""s_cmp_lt_u32 s{sW}, 2
            s_cselect_b32 s{sC}, s{sB}, {OOB}
            buffer_load_dword v118, v117, {srd(WUV)}, s{sC} offen offset:8
            s_cselect_b32 s{sC}, {OOB}, s{sB}
            buffer_load_dword v116, v117, {srd(WQ)}, s{sC} offen offset:8""", int(E_("TG2")), tag="pf")
        g = ph.stream(zero, BOFF + 10)
        if MPRE == "0":
            g = ph.stream(self.modA(), int(E_("MG", "41")), sid=901, dense=int(E_("MD", "2")))
            b1 = (g - BOFF) // 64 + 1
            g0 = g
            g = ph.stream(m1, 64 * b1 + BOFF + 1, sid=901, dense=1)
        else:
            b1 = 1; g0 = BOFF + 30
            g = ph.stream(m1, 0, sid=901, dense=1)
        ph.put("x", lambda k: k.waitvm(["zero"]), 64 * b1 + BOFF - 1)
        g = ph.stream(m2[:-1], g + 6, sid=901)
        g = ph.put("x", m2[-1][1], g, tag="mod")
        g = ph.put("x", lambda k: k.waitvm(["mod"]), max(g + int(E_("ED", "60")), 64 * b1 + BOFF + 1))
        ph.put("x", f"buffer_atomic_add v6, v7, {srd(DBG)}, s{sEO} offen sc1", g, tag="flag")
        if MPRE == "2": gl = ph.stream(l1, 30, sid=902); b2 = -1
        else:
            gl = ph.stream(self.lnA(), g0 + 1, sid=902)
            b2 = (gl - BOFF) // 64 + 1
            gl = ph.stream(l1, 64 * b2 + BOFF + 1, sid=902)
        gl = ph.stream(l2, gl + 8, sid=902)
        print("mod barrier", b1, "E at", g, "ln barrier", b2, "lnB end", gl, file=sys.stderr)
        a, ld = self.lnC_loads()
        gl = ph.stream(a, gl + 1, sid=902)
        gva = ph.stream(items("v_mov_b32 v18, v106\nv_mov_b32 v19, v107"), 64 * 5 + BOFF + 1, sid=902)
        PB = int(E_("PB", "5"))
        g = 64 * PB + BOFF
        assert gl < g + 30
        ph.put("x", f"buffer_load_dword v3, v4, {srd(DBG)}, s{sEP} offen {WT}", g - int(E_("PL", "50")))
        ph.put("x", self.poll_check(3, 4, DBG, f"s{sEP}", "E", target=f"s{sET}", sleep=int(E_("ESL", "20"))), g - 1)
        ph.stream(items(f"""s_lshl_b32 s{sZO}, s2, 6
        s_add_u32 s{sZO}, s{sZO}, {WS_LF}
        buffer_store_dword v6, v7, {srd(WS)}, s{sZO} offen {WT}""", "flag"), g + 20)
        g = max(g, gl)
        g = ph.stream(ld, g + 1, sid=902); assert g < 64 * 6 + BOFF
        g = ph.stream(self.lnC_fin(), max(g + int(E_("PL2", "50")), gva + 1), sid=902, dense=int(E_("FD", "1")))
        for i in range(2):
            g = ph.stream(self.lnC_rd(i), g + (6 if i == 0 else 1), sid=902)
            a, b = self.lnC(i)
            g = ph.stream(a, g + 6, sid=902)
            g2 = ph.stream(b, g + 1, sid=902)
        assert g2 < V0 + 60, g2
        print("h stored at", g2, file=sys.stderr)
        g = ph.stream(self.flag_store(sHFO, ["hst"]), g2 + 70)
        def epi(b, off, vtype=False):
            it = [("v", f"v_cvt_pk_bf16_f32 v{b+i}, v{b+2*i}, v{b+2*i+1}") for i in range(4)]
            it.append(("s", f"{'s_xor_b32' if KVH == 1 << 20 else 's_add_u32'} s{sEPI}, s{sVX if vtype else sKVST}, {off & ~4095}"))
            it.append(("m", f"buffer_store_dwordx4 {V(b)}, v1, {srd(WS)}, s{sEPI} offen offset:{off & 4095} {E_('KVP', WT)}", "kv"))
            return it
        ep = []
        K1, K2, K3 = int(E_("K1", "17")), int(E_("K2", "14")), int(E_("K3", "16"))
        kst = [8 + K1 * i for i in range(11)] + [322 + 22 * i for i in range(5)]
        if KL:
            K0, KN = int(E_("K0", "-54")), int(E_("KN", "15")); K1 = int(E_("K1", "16"))
            kst = [K0 + K1 * i for i in range(KN)] + [330 + 30 * i for i in range(16 - KN)]
        for i, (u, tt) in enumerate(KORD): ep.append((V0 + kst[i], epi(ACC + (tt * 8 + 2 * u) * 4, tt * 4096 + u * 1024), Q0 - 4))
        for c in range(4):
            done = V0 + [192, 256, 448, 512][c]
            for nt in range(2):
                for kbl in range(2):
                    i = nt * 2 + kbl
                    lo = done + 6 + K2 * i if c < 2 else max(done + 6, V0 + 454 + K3 * (4 * (c - 2) + i))
                    ep.append((lo, epi(VACC + (1 - (c & 1)) * 32 + (nt * 4 + 2 * kbl) * 4, 32768 + kbl * 8192 + (2 * c + nt) * 1024, True), done + 62 if c < 2 else Q0 + 148))
        late = []
        if DV:
            ph.put("x", f"s_cmp_ge_u32 s{sP}, 2\ns_cselect_b32 s{sVL}, s{sVX}, 0x70000000\ns_cselect_b32 s{sVX}, 0x70000000, s{sVX}", V0 + 400)
            mv = []
            for c in (2, 3):
                for nt in range(2):
                    for kbl in range(2):
                        i = 4 * (c - 2) + nt * 2 + kbl; b = VACC + (1 - (c & 1)) * 32 + (nt * 4 + 2 * kbl) * 4
                        off = 32768 + kbl * 8192 + (2 * c + nt) * 1024
                        mv += [("v", f"v_accvgpr_write_b32 a{24+4*i+e}, v{b+e}") for e in range(4)]
                        late += [("s", f"s_add_u32 s{sEPI}, s{sVL}, {off & ~4095}"), ("m", f"buffer_store_dwordx4 {A(24+4*i)}, v1, {srd(WS)}, s{sEPI} offen offset:{off & 4095} {WT}", "kv2")]
        ep.sort(key=lambda e: e[0])
        g = 0
        for (lo, its, dl) in ep:
            g = ph.stream(its, max(lo, g + 1)); assert g < dl
        if DV:
            gm = ph.stream(mv, max(g + 1, Q0 + 128)); assert gm < Q0 + 172, gm
        g = ph.stream(self.flag_store(sKFO, ["kv"]), g + int(E_("KVD", "60")))
        print("kv flag at", g - Q0, file=sys.stderr)
        HG = V0 + 384
        g = ph.stream([("m", f"buffer_load_dword v3, v16, {srd(WS)}, s{sHF1} offen {WT}")], HG - 44)
        ph.put("x", self.poll_check(3, 16, WS, f"s{sHF1}", "H"), HG)
        g = HG + 1
        for n in range(16):
            for tt in range(4):
                lo = max(HG + 128 if n >= 8 else 0, HG + 1 + 7 * (n * 4 + tt))
                off = (tt & 1) * 16384 + n * 1024
                g = ph.stream([("s", f"s_xor_b32 s{sHLD}, s{sH1 + (tt >> 1)}, {off & ~2047}"),
                               ("m", f"buffer_load_dwordx4 {A((n*4+tt)*4)}, v1, {srd(WS)}, s{sHLD} offen offset:{off & 2047}")], max(lo, g + 1))
        g = ph.stream(moe_setup(), V0 + 20)
        a, ld = late_mod_loads(self, 112)
        g = ph.stream(a + items(f"""v_and_b32 v119, 3, v2
        v_lshlrev_b32 v119, 9, v119
        s_lshr_b32 s{sEO}, s2, 6
        s_add_u32 s{sEO}, s{sEO}, 4
        s_lshl_b32 s{sEO}, s{sEO}, 5
        s_bfe_u32 s{sET}, s2, {3 | (3 << 16)}
        s_add_u32 s{sEO}, s{sEO}, s{sET}
        s_lshl_b32 s{sEO}, s{sEO}, 6
        s_add_u32 s{sEO}, s{sEO}, {WS_LF}
        buffer_load_dword v118, v119, {srd(WS)}, s{sEO} offen {WT}"""), Q0 + 172, sid=903)
        g = ph.put("x", self.poll_check(118, 119, WS, f"s{sEO}", "E2"), g + 50)
        g = ph.stream(ld, g + 1, sid=903)
        g = ph.stream(late_mod_fin(self, 112), g + 60, sid=903)
        KG = int(E_("KG", "50"))
        g = ph.stream([("m", f"buffer_load_dword v3, v17, {srd(WS)}, s{sKFP} offen {WT}")], BQ + KG - 40)
        ph.put("x", self.poll_check(3, 17, WS, f"s{sKFP}", "KV"), BQ + KG)
        its = []
        for (lds, so, tag) in ((R2, (sKV, 0), "k0"), (R3, (sKV, 32768), "v0"), (R4, (sKp, 0), "k1")):
            for g2 in range(2):
                its += self.dma4(WS, [1, 1, 1, 1], (sW8, lds + g2 * 4096), (so[0], so[1] + g2 * 4096), tag)
        g = ph.stream(its, BQ + KG + 1, None, step=int(E_("KST", "4")), sid=900)
        as1, as2 = attn_setup(self)
        g2 = ph.stream(as1, Q0 + 160, sid=906)
        g3 = ph.stream(as2, max(g2, BQ + KG) + 1, sid=906)
        print("setup ends", g2, g3, file=sys.stderr)
        cl = cold_loads(120, sMODO2)
        nf = [i for i, it in enumerate(cl) if it[0] == "m"][0]
        g2 = ph.stream(cl[:nf], g2 + 1, sid=905)
        g = ph.stream(cl[nf:], max(g, g2) + 1, sid=905)
        print("cold loads end at", g, file=sys.stderr)
        CT = E_("CT", "123")
        if "2" in CT: ph.stream(code_touch("L_ct2", "L_attn", "L_code_end", 123, "a61", 6), g + 2)
        if DV:
            self.late = [(it[0], it[1].replace(f"s{sEPI}", f"s{sVX}")) + it[2:] for it in late]
            g = ph.stream(items(f"""s_add_u32 s{sKFO}, s{sKFO}, 4
            s_mov_b32 s{sVFA}, {OOB}
            s_add_u32 s{sVFP}, s{sKFP}, {512 + 4}
            v_min_u32 v4, 23, v2
            v_lshlrev_b32 v4, 6, v4"""), g + 4, None, step=int(E_("LST", "8")))
            print("late stores end at", g, file=sys.stderr)
        if "1" in CT: ph.stream(code_touch("L_ct1", "L_ct1", "L_attn", 3, "v3", 2), 418)
        if self.TS:
            ph.put("x", self.ts, V0 - 1); ph.put("x", self.ts, Q0 - 1)
            for gp in (E_("TSP") or "").split(","):
                if gp: ph.put("x", lambda k: self.ts(k, True), int(gp))
        ph.emit()
        print("proj: overloaded placements", ph.over, file=sys.stderr)
        self.ts()


def build(stop=None):
    g = G()
    k = g.k
    g.startup(); g.proj()
    k.label("L_attn")
    if stop != "proj":
        attention(g)
        if stop != "attn":
            oproj(g); tail(g)
    else:
        qdump(g)
    k.label("L_fin")
    if g.TS:
        if E_("TST"): g.ts(force=True)
        k("s_waitcnt vmcnt(0)"); g.ts(force=bool(E_("TST")))
        k(f"""s_lshl_b32 s{sB}, s2, 2
        s_add_u32 s{sB}, s{sB}, s{sW}
        s_lshl_b32 s{sB}, s{sB}, 6
        s_add_u32 s{sB}, s{sB}, {WS_TS}
        v_cmp_eq_u32 vcc, 0, v2
        v_mov_b32 v6, {OOB}
        s_nop 1
        v_cndmask_b32 v5, v6, v2, vcc""")
        if E_("TSX"): k(f"s_getreg_b32 s{TSR[12]}, hwreg(HW_REG_XCC_ID, 0, 4)\ns_getreg_b32 s{TSR[11]}, hwreg(HW_REG_HW_ID)")
        for n in range(g.nts):
            k(f"v_mov_b32 v4, s{TSR[n]}\nbuffer_store_dword v4, v5, {srd(WS)}, s{sB} offen offset:{4*n}")
        if E_("TSDBG"):
            k(f"s_cmp_eq_u32 s2, {E_('TSDBG')}\ns_cselect_b32 s{sB}, 0, {OOB}\ns_cmp_eq_u32 s{sW}, 0\ns_cselect_b32 s{sB}, s{sB}, {OOB}")
            for n in range(1, g.nts):
                k(f"s_sub_u32 s{sC}, s{TSR[n]}, s{TSR[0]}\nv_mov_b32 v4, s{sC}\nbuffer_store_dword v4, v5, {srd(DBG)}, s{sB} offen offset:{4*n}")
    if E_("SPINT"):
        n = int(E_("SPINT"))
        if E_("SPINW"): k(f"s_cmp_lg_u32 s2, {E_('SPINW')}\ns_cbranch_scc1 L_end")
        k(f"s_add_u32 s{sC}, s{TSR[n]}, 10000")
        k.label("L_spint")
        k(f"s_memrealtime vcc\ns_waitcnt lgkmcnt(0)\ns_sub_u32 s{sB}, vcc_lo, s{sC}\ns_cmp_lt_i32 s{sB}, 0\ns_cbranch_scc1 L_spint")
    k.label("L_end")
    k("s_endpgm")
    lines = k.out + "\n".join(g.tail).split("\n") + ["L_code_end:", "    s_endpgm"]
    lines, nn = fix_hazards(lines, report=bool(E_("NOPS")))
    print("nops inserted:", nn, file=sys.stderr)
    if E_("AL8", "0") == "1":
        lines, na, left = align8(lines)
        print("widened", na, "still misaligned", left, file=sys.stderr)
    hdr = open(os.path.join(HERE, "..", NAME + ".s.ref")).read().split("; Override launch geometry")[0]
    kn = NAME + "_kernel"
    text = hdr + f"""; @launch grid=(256,1,1) block=(256,1,1) lds=163840
.amdgcn_target "amdgcn-amd-amdhsa--gfx950"
; Generated by g3/gen.py.  One workgroup (4 waves, 512 registers) per CU; workgroup = (head = 4*(wg&7) + ((wg>>3)&3), p = wg>>5).
;   K / V projection of 256 tokens, Q projection of the query tiles p and 15-p (modulation GEMV and layer norm 1 interleaved),
;   causal attention of both tiles, output projection split over 8 head groups, partial-sum exchange, layer norm 2, router arg-max,
;   expert MLP of the selected token.
; Softmax: exp2(s) without an offset; every row sum is checked against [2^-64, 2^80] and a tile that fails is computed again with
;   the true row maxima subtracted (L_t*_redo).
; Hand-offs between workgroups: write-through stores + flags (zeroed in this launch behind counters in d_debug) or sentinel-filled data;
;   s_sleep appears only as back-off of these polls.
.text
.globl {kn}
.p2align 8
.type {kn},@function
{kn}:
""" + "\n".join(lines) + f"""
.section .rodata,"a"
.p2align 6
.amdhsa_kernel {kn}
  .amdhsa_next_free_vgpr 512
  .amdhsa_next_free_sgpr 102
  .amdhsa_accum_offset 256
  .amdhsa_group_segment_fixed_size 0
  .amdhsa_kernarg_size 128
  .amdhsa_user_sgpr_count 2
  .amdhsa_user_sgpr_kernarg_segment_ptr 1
  .amdhsa_system_sgpr_workgroup_id_x 1
.end_amdhsa_kernel
"""
    return text, lines

if __name__ == "__main__":
    path = sys.argv[1] if len(sys.argv) > 1 else os.path.join(HERE, "..", NAME + ".s")
    text, lines = build(E_("STOP"))
    verify_all(lines)
    open(path, "w").write(text)
    print("wrote", path, len(text), file=sys.stderr)
```
